```python
import torch

def _softmax(x, axis=-1):
    return torch.softmax(x, dim=axis)

def _gelu(x):
    return torch.nn.functional.gelu(x, approximate='tanh')

def _silu(x):
    return torch.nn.functional.silu(x)

def _sigmoid(x):
    return torch.sigmoid(x)

def _layernorm(x, axis=-1, eps=1e-05):
    m = x.mean(dim=axis, keepdim=True)
    v = x.var(dim=axis, keepdim=True, unbiased=False)
    return (x - m) / torch.sqrt(v + eps)

def _scatter_add(tgt, idx, src, axis=0):
    return tgt.clone().index_add_(axis, idx, src)

def _segment_sum(src, seg, n):
    out = torch.zeros((n,) + src.shape[1:], dtype=src.dtype)
    return out.index_add_(0, seg, src)

def _pad(x, pw):
    flat = tuple((v for pair in reversed(pw) for v in pair))
    return torch.nn.functional.pad(x, flat)
kernel_name = 'recurrent_scan__memory_aug_recurrent_mem_tr__dense_activation_relu__prompt'

def setup_inputs():

    _w = lambda a: (lambda t: t.to(torch.bfloat16) if t.is_floating_point() else t)(torch.as_tensor(a))

    def _A_setup():
        B, S, Dm = (1, 2048, 640)
        H, Dh = (32, 192)
        M, seg = (8, 32)
        seg = min(seg, S)
        S = S // seg * seg
        return {'x': _w((lambda *s: torch.randn(*s, dtype=torch.bfloat16) * 0.05)(B, S, Dm)), 'mem0': _w((lambda *s: torch.randn(*s, dtype=torch.bfloat16) * 0.2)(B, M, Dm)), 'Wq': _w((lambda *s: torch.randn(*s, dtype=torch.bfloat16) * 0.8)(Dm, H, Dh) * Dm ** (-0.5)), 'Wk': _w((lambda *s: torch.randn(*s, dtype=torch.bfloat16) * 0.8)(Dm, H, Dh) * Dm ** (-0.5)), 'Wv': _w((lambda *s: torch.randn(*s, dtype=torch.bfloat16) * 0.2)(Dm, H, Dh) * Dm ** (-0.5)), 'Wo': _w((lambda *s: torch.randn(*s, dtype=torch.bfloat16) * 0.2)(H, Dh, Dm) * (H * Dh) ** (-0.5)), 'seg_len': seg}
    _A_in = _A_setup()

    def _B_setup():
        B, S, D, Dff = (1, 2048, 640, 1536)
        return {'x': _w((lambda *s: torch.randn(*s, dtype=torch.bfloat16) * 0.05)(B, S, D)), 'w1': _w((lambda *s: torch.randn(*s, dtype=torch.bfloat16) * 0.1)(D, Dff)), 'w2': _w((lambda *s: torch.randn(*s, dtype=torch.bfloat16) * 0.1)(Dff, D))}
    _B_in = _B_setup()
    return {'A_x': _A_in['x'], 'A_mem0': _A_in['mem0'], 'A_Wq': _A_in['Wq'], 'A_Wk': _A_in['Wk'], 'A_Wv': _A_in['Wv'], 'A_Wo': _A_in['Wo'], 'A_seg_len': _A_in['seg_len'], 'B_x': _B_in['x'], 'B_w1': _B_in['w1'], 'B_w2': _B_in['w2']}

def reference(A_x, A_mem0, A_Wq, A_Wk, A_Wv, A_Wo, A_seg_len, B_x, B_w1, B_w2):

    def _A_ref(x, mem0, Wq, Wk, Wv, Wo, seg_len):
        B, S, Dm = x.shape
        H, Dh = (Wq.shape[1], Wq.shape[2])
        M = mem0.shape[1]
        scale = Dh ** (-0.5)
        n_seg = S // seg_len
        L = M + seg_len
        idx = torch.arange(L)
        mask = (idx[:, None] < M) | (idx[:, None] >= idx[None, :])
        mem = mem0
        outs = []
        for s in range(n_seg):
            xs = x[:, s * seg_len:(s + 1) * seg_len, :].clone()
            h = torch.concatenate([mem, xs], axis=1)
            q = torch.einsum('btd,dhe->bhte', h, Wq)
            k = torch.einsum('btd,dhe->bhte', h, Wk)
            v = torch.einsum('btd,dhe->bhte', h, Wv)
            scores = torch.einsum('bhqe,bhke->bhqk', q, k) * scale
            scores = torch.where(mask[None, None], scores, -1000000000.0)
            p = _softmax(scores, axis=-1)
            o = torch.einsum('bhqk,bhke->bhqe', p, v)
            o = torch.einsum('bhte,hed->btd', o, Wo)
            mem = o[:, :M, :].clone()
            outs.append(o[:, M:, :])
        return torch.concatenate(outs, axis=1)

    def _B_ref(x, w1, w2):
        h = torch.einsum('bsd,df->bsf', x, w1)
        zero = torch.zeros_like(h)
        h = torch.maximum(h, zero)
        return torch.einsum('bsf,fd->bsd', h, w2)
    x = A_x
    xn = _layernorm(x, axis=-1)
    s = _A_ref(xn, A_mem0, A_Wq, A_Wk, A_Wv, A_Wo, A_seg_len)
    g = _silu(_B_ref(xn, B_w1, B_w2))
    return x + s * g
```

```python
import re

REG_RE = re.compile(r'^(-|\|)?(abs\()?([vas])(\d+|\[(\d+):(\d+)\])\)?\|?$')

def regs_of(tok):
    tok = tok.strip()
    if tok in ('vcc', 'vcc_lo', 'vcc_hi'): return {('x', 'vcc')}
    if tok in ('exec', 'exec_lo', 'exec_hi'): return {('x', 'exec')}
    if tok == 'm0': return {('x', 'm0')}
    m = REG_RE.match(tok)
    if not m: return set()
    k = m.group(3)
    if m.group(5) is not None:
        return {(k, i) for i in range(int(m.group(5)), int(m.group(6)) + 1)}
    return {(k, int(m.group(4)))}

def split_ops(s):
    ops, depth, cur = [], 0, ''
    for ch in s:
        if ch in '[(': depth += 1
        elif ch in '])': depth -= 1
        if ch == ',' and depth == 0:
            ops.append(cur.strip()); cur = ''
        else: cur += ch
    if cur.strip(): ops.append(cur.strip())
    return ops

TRANS = ('v_exp_f32', 'v_log_f32', 'v_rcp_f32', 'v_rsq_f32', 'v_sqrt_f32', 'v_sin_f32', 'v_cos_f32', 'v_rcp_iflag_f32')

class Ins:
    __slots__ = ('text', 'mn', 'kind', 'wr', 'rd', 'rdA', 'rdC', 'passes', 'states', 'label', 'target', 'data', 'mods', 'uncond', 'sconst')
    def __init__(self, text):
        self.text = text
        self.label = None; self.target = None; self.uncond = False
        self.wr = set(); self.rd = set(); self.rdA = set(); self.rdC = set(); self.data = set(); self.sconst = set()
        self.passes = 0; self.states = 1
        t = text.split(';')[0].strip()
        if t.endswith(':'):
            self.kind = 'label'; self.label = t[:-1]; self.mn = ''; self.states = 0; return
        if t.startswith('.') or not t:
            self.kind = 'dir'; self.mn = ''; self.states = 0; return
        parts = t.split(None, 1)
        mn = self.mn = parts[0]
        rest = parts[1] if len(parts) > 1 else ''
        ops = split_ops(rest)
        mods = []
        ops2 = []
        for o in ops:
            w = o.split()
            ops2.append(w[0]); mods += w[1:]
        ops = ops2; self.mods = mods
        R = regs_of
        if mn.startswith('v_mfma') or mn.startswith('v_smfmac'):
            self.kind = 'mfma'
            self.passes = 8 if ('32x32' in mn) else 4
            self.wr = R(ops[0])
            if mn.startswith('v_smfmac'):
                self.rdA = R(ops[1]) | R(ops[2]) | R(ops[3]); self.rdC = R(ops[0])
            else:
                self.rdA = R(ops[1]) | R(ops[2]); self.rdC = R(ops[3])
            self.rd = self.rdA | self.rdC
        elif mn.startswith('v_'):
            self.kind = 'valu'
            base = mn.replace('_e32', '').replace('_e64', '').replace('_dpp', '').replace('_sdwa', '')
            if base.startswith('v_cmp'):
                self.wr = R(ops[0]); srcs = ops[1:]
                if base.startswith('v_cmpx'): self.wr |= {('x', 'exec')}
            elif base.startswith('v_permlane') and 'swap' in base or base == 'v_swap_b32':
                self.wr = R(ops[0]) | R(ops[1]); srcs = ops
            elif base in ('v_add_co_u32', 'v_sub_co_u32', 'v_addc_co_u32', 'v_subb_co_u32', 'v_subrev_co_u32'):
                self.wr = R(ops[0]) | R(ops[1]); srcs = ops[2:]
            elif base in ('v_fmac_f32', 'v_dot2c_f32_bf16', 'v_pk_fmac_f16', 'v_writelane_b32'):
                self.wr = R(ops[0]); srcs = ops
            elif base == 'v_nop':
                srcs = []
            else:
                self.wr = R(ops[0]); srcs = ops[1:]
            if mn.endswith('_dpp'): srcs = list(srcs) + [ops[0]]
            for s in srcs: self.rd |= R(s)
            if base == 'v_cndmask_b32' and len(ops) == 3: self.rd |= {('x', 'vcc')}
            self.sconst = {r for r in self.rd if r[0] in 's' or r == ('x', 'vcc')}
        elif mn.startswith('ds_'):
            self.kind = 'ds'
            if mn.startswith('ds_read') or mn.startswith('ds_bpermute') or mn.startswith('ds_permute') or mn.startswith('ds_swizzle'):
                self.wr = R(ops[0])
                for s in ops[1:]: self.rd |= R(s)
            else:
                for s in ops: self.rd |= R(s)
        elif mn.startswith('buffer_') or mn.startswith('global_'):
            self.kind = 'vmem'
            if mn.startswith('buffer_load'):
                if 'lds' in mods:
                    for s in ops: self.rd |= R(s)
                    self.rd |= {('x', 'm0')}
                else:
                    self.wr = R(ops[0])
                    for s in ops[1:]: self.rd |= R(s)
            elif mn.startswith('buffer_store'):
                self.data = R(ops[0])
                for s in ops: self.rd |= R(s)
            elif mn.startswith('buffer_atomic'):
                for s in ops: self.rd |= R(s)
                if 'sc0' in mods: self.wr = R(ops[0])
            elif mn in ('buffer_inv', 'buffer_wbl2'):
                pass
            else:
                raise ValueError('unhandled vmem ' + text)
        elif mn.startswith('s_'):
            self.kind = 'salu'
            if mn == 's_nop':
                self.states = int(ops[0], 0) + 1
            elif mn in ('s_branch',) or mn.startswith('s_cbranch'):
                self.kind = 'branch'; self.target = ops[0]; self.uncond = (mn == 's_branch')
            elif mn == 's_endpgm':
                self.kind = 'end'
            elif mn in ('s_waitcnt', 's_barrier', 's_sleep', 's_setprio', 's_sethalt'):
                pass
            elif mn.startswith('s_cmp') or mn.startswith('s_bitcmp'):
                for s in ops: self.rd |= R(s)
            else:
                self.wr = R(ops[0])
                for s in ops[1:]: self.rd |= R(s)
                if 'saveexec' in mn: self.wr |= {('x', 'exec')}
        else:
            raise ValueError('unknown instr: ' + text)

def need(prod, cons):
    n = 0
    pk, ck = prod.kind, cons.kind
    if pk == 'valu':
        vw = {r for r in prod.wr if r[0] in 'va'}
        sw = {r for r in prod.wr if r[0] == 's' or r == ('x', 'vcc')}
        if ck == 'mfma' and (vw & cons.rd): n = max(n, 2)
        if prod.mn.startswith('v_dot') and cons.mn != prod.mn and (vw & (cons.rd | cons.wr)): n = max(n, 3)
        if ck == 'valu':
            if ('permlane' in cons.mn or cons.mn.endswith('_dpp')) and (vw & cons.rd): n = max(n, 2)
            if (cons.mn.startswith('v_readfirstlane') or cons.mn.startswith('v_readlane')) and (vw & cons.rd): n = max(n, 1)
            if re.sub(r'_e(32|64)$', '', prod.mn) in TRANS and (vw & cons.rd) and re.sub(r'_e(32|64)$', '', cons.mn) not in TRANS: n = max(n, 1)
            if sw & cons.sconst: n = max(n, 4 if ('lane_b32' in cons.mn and not cons.mn.startswith('v_readfirst')) else 2)
            if ('x', 'exec') in prod.wr:
                if cons.mn.endswith('_dpp'): n = max(n, 5)
                if 'lane' in cons.mn: n = max(n, 4)
        if ck == 'vmem' and (sw & cons.rd): n = max(n, 5)
        if ck == 'mfma' and ('x', 'exec') in prod.wr: n = max(n, 4)
        if ck == 'salu' and (sw & cons.rd): n = max(n, 1)
    elif pk == 'mfma':
        P = prod.passes
        big = {4: 8, 8: 12}[P]; ovl = {4: 6, 8: 10}[P]; war = {4: 3, 8: 7}[P]
        if ck == 'mfma':
            if prod.wr & cons.rdA: n = max(n, big)
            if prod.wr & cons.rdC:
                if not (prod.wr == cons.rdC and prod.passes == cons.passes): n = max(n, ovl)
            elif prod.wr & cons.wr: n = max(n, ovl)
        elif ck in ('valu', 'vmem', 'ds'):
            if prod.wr & (cons.rd | cons.wr): n = max(n, big)
            if ck == 'valu' and (prod.rdC & cons.wr): n = max(n, war)
    elif pk == 'vmem':
        if len(prod.data) >= 3 and (prod.data & cons.wr): n = max(n, 2)
    elif pk == 'salu':
        if ('x', 'm0') in prod.wr and ck == 'vmem' and ('x', 'm0') in cons.rd: n = max(n, 1)
    return n

MAXLOOK = 12

class Asm:
    def __init__(self):
        self.lines = []
        self.uid = 0
    def e(self, s):
        for ln in s.split('\n'):
            ln = ln.strip()
            if ln: self.lines.append(ln)
    __call__ = e
    def label(self, base='L'):
        self.uid += 1
        return f'{base}_{self.uid}'
    def fix_hazards(self, verbose=False):
        ins = [Ins(l) for l in self.lines]
        total_added = 0
        out = []
        for c in ins:
            if c.kind not in ('label', 'dir', 'branch', 'end'):
                d = 0; worst = 0; j = len(out) - 1
                while j >= 0 and d < MAXLOOK:
                    p = out[j]
                    if p.kind == 'end' or (p.kind == 'branch' and p.uncond): break
                    if p.kind not in ('label', 'dir'):
                        n = need(p, c)
                        if n > d: worst = max(worst, n - d)
                    d += p.states; j -= 1
                if worst:
                    out.append(Ins(f's_nop {worst-1}')); total_added += 1
                    if verbose: print('hazard pad', worst, 'before', c.text)
            out.append(c)
        ins = out
        for it in range(50):
            lab = {x.label: i for i, x in enumerate(ins) if x.kind == 'label'}
            preds = [[] for _ in ins]
            for i, x in enumerate(ins):
                if i + 1 < len(ins) and not (x.kind == 'end' or (x.kind == 'branch' and x.uncond)):
                    preds[i + 1].append(i)
                if x.kind == 'branch': preds[lab[x.target]].append(i)
            adds = {}
            for i, c in enumerate(ins):
                if c.kind in ('label', 'dir', 'branch', 'end'): continue
                stack = [(p, 0) for p in preds[i]]
                seen = {}
                worst = 0
                while stack:
                    j, d = stack.pop()
                    if seen.get(j, 99) <= d: continue
                    seen[j] = d
                    p = ins[j]
                    if p.kind not in ('label', 'dir'):
                        n = need(p, c)
                        if n > d: worst = max(worst, n - d)
                    d2 = d + p.states
                    if d2 < MAXLOOK:
                        for q in preds[j]: stack.append((q, d2))
                if worst: adds[i] = worst
            if not adds: break
            out = []
            last_added_at = -100
            for i, x in enumerate(ins):
                if i in adds and (i - last_added_at) > MAXLOOK + 4:
                    out.append(Ins(f's_nop {adds[i]-1}')); total_added += 1; last_added_at = i
                    if verbose: print('hazard pad', adds[i], 'before', x.text)
                out.append(x)
            ins = out
        else:
            raise RuntimeError('hazard fixing did not converge')
        self.lines = [x.text for x in ins]
        return total_added
    def text(self):
        return '\n'.join(self.lines) + '\n'
```

```python
from asmdsl import Asm
from layout import *
import struct
def f2u(x): return struct.unpack('<I', struct.pack('<f', x))[0]

class Trk:
    def __init__(self, a, name, maxn):
        self.a, self.name, self.maxn = a, name, maxn
        self.q = []; self.done = 0
    def reset(self): self.q = []; self.done = 0
    def issue(self, tag): self.q.append(tag)
    def wait(self, *tags):
        idx = -1
        for i in range(len(self.q) - 1, self.done - 1, -1):
            if self.q[i] in tags: idx = i; break
        if idx < self.done: return False
        n = min(len(self.q) - 1 - idx, self.maxn)
        self.a(f's_waitcnt {self.name}({n})')
        self.done = len(self.q) - n
        return True
    def all(self):
        self.a(f's_waitcnt {self.name}(0)'); self.done = len(self.q)

S_WS, S_DBG, S_WA, S_WB, S_AUX, S_OUT = 's[8:11]', 's[12:15]', 's[16:19]', 's[20:23]', 's[24:27]', 's[28:31]'
SWV, SXCC, SSLOT = 's3', 's4', 's5'
STMO = 's65'
STAMP0 = 84

def srd(a, dst, ptr, nbytes):
    b = int(dst[2:dst.index(':')]); p = int(ptr[2:ptr.index(':')])
    a(f's_mov_b32 s{b}, s{p}'); a(f's_mov_b32 s{b+1}, s{p+1}')
    a(f's_mov_b32 s{b+2}, {nbytes}'); a(f's_mov_b32 s{b+3}, 0x20000')

def lanefn(a, dst, f, tmp, wave_mul=0):
    c = f(0); w = [f(1 << i) - c for i in range(6)]
    for l in range(64): assert f(l) == c + sum(w[i] for i in range(6) if l >> i & 1), ('not bit-affine', l)
    if wave_mul:
        a(f's_mul_i32 s67, {SWV}, {wave_mul}'); a(f's_add_u32 s67, s67, {c & 0xffffffff}'); a(f'v_mov_b32 v{dst}, s67')
    else: a(f'v_mov_b32 v{dst}, {c & 0xffffffff}')
    i = 0
    while i < 6:
        if w[i] == 0: i += 1; continue
        n = 1
        while i + n < 6 and w[i + n] == w[i] << n: n += 1
        a(f'v_bfe_u32 v{tmp}, v0, {i}, {n}'); a(f's_mov_b32 s67, {w[i] & 0xffffffff}')
        a(f'v_mad_i32_i24 v{dst}, v{tmp}, s67, v{dst}')
        i += n

def budget_loop(a, lp, lout):
    a(f's_cmp_eq_u32 {STMO}, 0'); a(f's_cbranch_scc1 {lout}')
    a(f's_sub_u32 {STMO}, {STMO}, 1'); a(f's_branch {lp}')

def poll_tail(a, lpoll, ldone):
    a(f's_cbranch_vccz {ldone}')
    budget_loop(a, lpoll, ldone)
    a(f'{ldone}:')

def stamp(a, opt, i):
    if opt.get('stamps'): a(f's_mem{"" if opt.get("cyc") else "real"}time s[{STAMP0+2*i}:{STAMP0+2*i+1}]')

def merge(a, lg, items, side):
    def run(lst):
        for s in lst:
            if isinstance(s, str): a(s)
            elif callable(s): s()
            elif s[0] == 'lds': a(s[1]); lg.issue(s[2])
            elif s[0] == 'wait': lg.wait(*s[1:])
    run(side.get(-1, []))
    for i, (t, needs) in enumerate(items):
        if needs: lg.wait(*needs)
        a(t)
        run(side.get(i, []))

def dma_voff(a, dst, stride, t0, t1):
    a(f'v_lshrrev_b32 v{t0}, 3, v0'); a(f'v_and_b32 v{t1}, 6, v{t0}'); a(f'v_and_b32 v{dst}, 7, v0')
    a(f'v_xor_b32 v{dst}, v{dst}, v{t1}'); a(f'v_lshlrev_b32 v{dst}, 4, v{dst}')
    a(f's_mov_b32 s67, {stride}'); a(f'v_mad_u32_u24 v{dst}, v{t0}, s67, v{dst}')
```

```python
from common import *

SC = 0.07216878364870322 * 1.4426950408889634

def wfrag(f, half=None):
    if f < 32: k, b = 'a', f * 8
    else: k, b = 'v', 176 + (f - 32) * 8
    if half is None: return f'{k}[{b}:{b+7}]'
    return k, b + 4 * half

VL16, VGW, VAR, VFR, VXW, VXS, VDR, VIDX, V9, V10, V11, V12, VT0, VT1, VT2 = range(1, 16)
VA = 16
VACC0 = 56
VACC1 = 68
VB = 80
VKX = 112
VQF = 136
VTMP = 160
VOX = 112
SSTEP, SH, SX, SDT = 's62', 's63', 's64', 's66'
SMASK8 = 's[70:71]'
SCM = [f's[{72+2*r}:{73+2*r}]' for r in range(4)]
SCHK = 's80'
S_ONE0, S_ONE1 = 's100', 's101'
NCH = [3, 3, 2, 2]
STREAM = ['sc1 nt']

def sparse_base(l, pad):
    ga, rp, cp = l >> 4, (l >> 2) & 3, l & 3
    k = 32*(ga >> 1) + 16*(rp >> 1) + 8*(ga & 1) + 2*(rp & 1)
    return k*16 + cp*8 + (k >> 4)*pad

def common_addr(a):
    T = VTMP
    a(f'v_lshlrev_b32 v{VL16}, 4, v0')
    a(f's_mul_i32 s6, {SWV}, 3'); a(f's_lshl_b32 s7, {SWV}, 1'); a('s_add_u32 s7, s7, 2'); a('s_min_u32 s6, s6, s7')
    a(f's_lshl_b32 {SCHK}, s6, 10')
    lanefn(a, VGW, lambda l: LDS_MEM + l*16 + (l >> 4)*64, T)
    a('s_mul_i32 s67, s6, 1280'); a(f'v_add_u32 v{VGW}, s67, v{VGW}')
    lanefn(a, VAR, lambda l: LDS_MEM + sparse_base(l, 64), T)
    lanefn(a, VFR, lambda l: l*16, T, 36864)
    lanefn(a, VIDX, lambda l: 0x4444 + (l & 1)*0xaaaa, T)
    a(f'v_and_b32 v{T}, 8, v0'); a(f'v_cmp_ne_u32 {SMASK8}, 0, v{T}')

def loader(a, role, after_first=None):
    vm = Trk(a, 'vmcnt', 63)
    T = 160
    VD0, VD1, VR0 = T, T + 1, T + 2
    dma_voff(a, VD0, 12288, T + 6, T + 7); dma_voff(a, VD1, 1280, T + 6, T + 7)
    row = lambda l: 4*((l >> 4) & 1) + 2*((l >> 2) & 1) + ((l >> 3) & 1)
    lanefn(a, T + 6, lambda l: row(l) & 6, T + 8); lanefn(a, T + 7, lambda l: (l >> 1) & 1, T + 8, 2)
    a(f'v_xor_b32 v{T+7}, v{T+7}, v{T+6}')
    lanefn(a, VR0, lambda l: (l >> 5)*1024 + row(l)*128 + (l & 1)*8, T + 8)
    a(f'v_lshl_add_u32 v{VR0}, v{T+7}, 4, v{VR0}')
    a(f'v_add_u32 v{VR0+1}, 49152, v{VR0}'); a(f'v_add_u32 v{VR0+2}, 98304, v{VR0}')
    a(f's_mul_i32 s68, {SH}, 384'); a(f's_mul_i32 s67, {SWV}, {8*12288}'); a('s_add_u32 s68, s68, s67')
    a(f's_mul_i32 s69, {SH}, {192*1280}'); a(f's_mul_i32 s67, {SWV}, {8*1280}'); a('s_add_u32 s69, s69, s67')
    a(f's_lshl_b32 s7, {SWV}, 10')
    k2 = 'X' if role == 'qk' else 'Y'
    slabs = [('X', S_WA, i) for i in range(14)] + [(k2, S_WB, i) for i in range(14)] + \
            [('X', S_WA, i) for i in range(14, 20)] + [(k2, S_WB, i) for i in range(14, 20)]
    def dma(n):
        kind, sr, i = slabs[n]
        for c in range(3):
            a(f's_add_u32 m0, s7, {(n % 12)*LDS_SLAB + c*4096}')
            if kind == 'X': a(f's_add_u32 s67, s68, {i*32*12288 + c*128}')
            else: a(f's_add_u32 s67, s69, {((i&1)*96 + c*32)*1280 + (i>>1)*128}')
            a(f'buffer_load_dwordx4 v{VD0 if kind=="X" else VD1}, {sr}, s67 offen lds')
            vm.issue(n)
    def dest(n, c):
        kind, sr, i = slabs[n]
        second = (n >= 14) if n < 28 else (n >= 34)
        if kind == 'X': t, kb, half = c, i >> 1, i & 1; f = t * 7 + kb; lf = (kb - 7) * 3 + t
        else:
            ks = (i & 1) * 3 + c; kb, half = ks >> 1, ks & 1; tile = i >> 1
            f = tile * 3 + kb; lf = (tile - 7) * 3 + kb
        if second: f += 21; lf += 9
        return f, lf, half
    def reads(n):
        slot = n % 12
        base = VR0 + slot // 4; off0 = (slot % 4) * LDS_SLAB
        for c in range(3):
            f, lf, half = dest(n, c)
            if n < 28: k, b = wfrag(f, half)
            else: k, b = 'v', 16 + lf * 8 + half * 4
            for aa in range(2):
                a(f'ds_read_b64_tr_b16 {k}[{b+2*aa}:{b+2*aa+1}], v{base} offset:{off0 + c*4096 + aa*2048}')
    for n in range(11): dma(n)
    for n in range(40):
        vm.wait(n)
        a('s_waitcnt lgkmcnt(0)')
        a('s_barrier')
        if n + 11 < 40: dma(n + 11)
        reads(n)
        if n == 0 and after_first: after_first()
    a('s_waitcnt lgkmcnt(0)'); a('s_barrier')
    for lf in range(18):
        for half in range(2):
            b = 16 + lf * 8 + half * 4
            a(f'ds_write_b128 v{VFR}, v[{b}:{b+3}] offset:{lf*2048 + half*1024}')
    a('s_waitcnt lgkmcnt(0)')

def mem0_load(a):
    lanefn(a, 18, lambda l: (l & 7)*1280 + (l >> 3)*16, 16)
    lanefn(a, 19, lambda l: LDS_MEM + (l >> 3)*128 + (l >> 4)*64 + (l & 7)*4, 16)
    for n in range(10): a(f'buffer_load_dwordx4 v[{24+4*n}:{27+4*n}], v18, {S_AUX}, 0 offen offset:{n*128}')
def mem0_write(a):
    for n in range(10):
        for e in range(4): a(f'ds_write_b32 v19, v{24+4*n+e} offset:{n*1280 + e*32}')

def maxchk(a, regs, first=True):
    regs = list(regs)
    if first:
        a(f'v_max3_u32 v{VT0}, v{regs[0]}, v{regs[1]}, v{regs[2]}'); regs = regs[3:]
    while regs:
        if len(regs) >= 2: a(f'v_max3_u32 v{VT0}, v{VT0}, v{regs[0]}, v{regs[1]}'); regs = regs[2:]
        else: a(f'v_max_u32 v{VT0}, v{VT0}, v{regs[0]}'); regs = []

def gather_setup(a, step_add=0):
    a(f's_add_u32 s67, {SSTEP}, {step_add}'); a('s_and_b32 s67, s67, 3'); a('s_lshl_b32 s67, s67, 1')
    a(f's_add_u32 s68, s67, 1'); a(f's_sub_u32 s68, s68, {SX}'); a(f's_add_u32 s67, s67, {SX}')
    a('s_mul_i32 s67, s67, 10240'); a('s_mul_i32 s68, s68, 10240')
    a(f's_add_u32 s34, s68, {MEMR_OFF}'); a(f's_add_u32 s33, s34, {SCHK}')
    a(f's_add_u32 s32, s67, {SCHK}'); a(f's_add_u32 s32, s32, {MEML_OFF}')

def gather(a, n, RB, opt, st, direct=None, warm=None):
    RA = VA + 24
    ld = lambda r, so, c: a(f'buffer_load_dwordx4 v[{r+4*c}:{r+4*c+3}], v{VL16}, {S_WS}, {so} offen offset:{c*1024} sc1')
    def chk(regs): maxchk(a, regs); a(f'v_cmp_eq_u32 vcc, -1, v{VT0}')
    l0, l0d, l1, l1d, l1ok, lf, lfa, lfb, lA, lB, ldone, lout = [a.label('Lg') for _ in range(12)]
    if direct: a(f's_cmp_lg_u32 {direct}, 0'); a(f's_cbranch_scc1 {l0d}')
    a(f'{l0}:')
    if warm is not None: ld(warm, 's35', 0)
    ld(RB, 's32', n - 1)
    a('s_waitcnt vmcnt(0)')
    chk(range(RB + 4*(n-1), RB + 4*n))
    poll_tail(a, l0, l0d)
    stamp(a, opt, st[0])
    for c in range(n): ld(RB, 's32', c)
    for c in range(n): ld(RA, 's33', c)
    a('s_waitcnt lgkmcnt(0)'); a('s_barrier')
    a(f's_waitcnt vmcnt({n})')
    chk(range(RB, RB + 4*n))
    a(f's_cbranch_vccnz {l1}')
    a(f'{l1ok}:')
    stamp(a, opt, st[1])
    for c in range(n):
        for i in range(4):
            a(f'v_lshlrev_b32 v{VA+8*c+2*i}, 16, v{RB+4*c+i}'); a(f'v_and_b32 v{VA+8*c+2*i+1}, 0xffff0000, v{RB+4*c+i}')
    for c in range(n): ld(RB, 's33', c)
    def proc(R):
        stamp(a, opt, st[2])
        for c in range(n):
            b = VA + 8*c
            for i in range(4):
                a(f'v_dot2c_f32_bf16 v{b+2*i}, {S_ONE0}, v{R+4*c+i}'); a(f'v_dot2c_f32_bf16 v{b+2*i+1}, {S_ONE1}, v{R+4*c+i}')
            for i in range(4): a(f'v_cvt_pk_bf16_f32 v{b+i}, v{b+2*i}, v{b+2*i+1}')
            a(f'ds_write_b128 v{VGW}, v[{b}:{b+3}] offset:{c*1280}')
    a(f'{lA}:')
    a(f's_waitcnt vmcnt({n})'); chk(range(RA, RA + 4*n))
    a(f's_cbranch_vccnz {lfa}')
    a(f'{lf}:')
    proc(RA)
    def outofline():
        a(f'{l1}:')
        for c in range(n): ld(RB, 's32', c)
        a('s_waitcnt vmcnt(0)'); chk(range(RB, RB + 4*n))
        a(f's_cbranch_vccz {l1ok}')
        budget_loop(a, l1, l1ok)
        a(f'{lfa}:')
        for c in range(n): ld(RA, 's33', c)
        a(f's_waitcnt vmcnt({n})'); chk(range(RB, RB + 4*n))
        a(f's_cbranch_vccnz {lfb}')
        proc(RB)
        a(f's_branch {ldone}')
        a(f'{lfb}:')
        for c in range(n): ld(RB, 's33', c)
        budget_loop(a, lA, lf)
    a(f'{ldone}:')
    return outofline

def a_reads(kb, pos):
    return [('lds', f'ds_read_b64_tr_b16 v[{VA+4*pos+2*x}:{VA+4*pos+2*x+1}], v{VAR} offset:{kb*1280 + x*64}', f'A{kb}') for x in range(2)]
def frag_reads(lf, slot):
    return [('lds', f'ds_read_b128 v[{VB+8*slot+4*x}:{VB+8*slot+4*x+3}], v{VFR} offset:{lf*2048 + x*1024}', f'F{lf}') for x in range(2)]
def smf(acc, A, B): return f'v_smfmac_f32_16x16x64_bf16 v[{acc}:{acc+3}], v[{A}:{A+3}], {B}, v{VIDX}'
def post(acc, out):
    return [f'v_add_f32 v{acc}, v{acc}, v{acc+1}', f'v_add_f32 v{acc+2}, v{acc+2}, v{acc+3}', f'v_cvt_pk_bf16_f32 v{out}, v{acc}, v{acc+2}']

def allred(op, v, t, stages=(16, 32)):
    r = []
    for st in stages: r += [f'v_mov_b32 v{t}, v{v}', f'v_permlane{st}_swap_b32 v{v}, v{t}', f'{op} v{v}, v{v}, v{t}']
    return r

def stamp_flush(a, opt, n):
    if not opt.get('stamps'): return
    a('s_waitcnt lgkmcnt(0)')
    a(f's_lshl_b32 s67, {SSLOT}, 2'); a(f's_add_u32 s67, s67, {SWV}'); a('s_lshl_b32 s67, s67, 6'); a(f's_add_u32 s67, s67, {SSTEP}')
    a('s_lshl_b32 s67, s67, 6'); a(f's_add_u32 s67, s67, {STAMP_OFF}')
    a(f'v_lshlrev_b32 v{VT1}, 2, v0')
    for i in range(n): a(f'v_writelane_b32 v{VT0}, s{STAMP0+2*i}, {i}')
    a('s_mov_b64 exec, 0xffff')
    a(f'buffer_store_dword v{VT0}, v{VT1}, {S_WS}, s67 offen')
    a('s_mov_b64 exec, -1')

def check_flags(a, opt, n):
    if opt.get('noflags'): return
    lp, ld, ls = a.label('Lf'), a.label('Lfd'), a.label('Lfs')
    a(f's_and_b32 s67, s82, 3'); a('s_cmp_lg_u32 s67, 0'); a(f's_cbranch_scc1 {ls}')
    a('s_lshl_b32 s67, s82, 7'); a('s_add_u32 s67, s67, s81')
    a(f'v_and_b32 v{VT1}, {n-1}, v0'); a(f'v_lshlrev_b32 v{VT1}, 2, v{VT1}')
    a(f'{lp}:')
    a(f'buffer_load_dword v{VT0}, v{VT1}, {S_WS}, s67 offen sc1'); a('s_waitcnt vmcnt(0)')
    a(f'v_cmp_ne_u32 vcc, 1, v{VT0}')
    poll_tail(a, lp, ld)
    a(f'{ls}:')

def progress(a, opt, add=1, wait=True):
    if opt.get('nocopy'): return
    if wait: a('s_waitcnt vmcnt(0)')
    a(f's_lshl_b32 s67, {SSLOT}, 2'); a(f's_add_u32 s67, s67, {SWV}'); a('s_lshl_b32 s67, s67, 2'); a(f's_add_u32 s67, s67, {PROG_OFF}')
    a(f's_add_u32 s68, {SSTEP}, {add}'); a(f'v_mov_b32 v{VT0}, s68'); a(f'v_mov_b32 v{VT1}, 0')
    a('s_mov_b64 exec, 1')
    a(f'buffer_store_dword v{VT0}, v{VT1}, {S_WS}, s67 offen sc1')
    a('s_mov_b64 exec, -1')

def load_frags6(a, dst, base_off, ct, seg='s82'):
    a(f's_lshl_b32 s67, {seg}, 5'); a(f's_add_u32 s67, s67, {SH}'); a('s_mul_i32 s67, s67, 12288')
    a(f's_add_u32 s67, s67, {base_off + ct*6144}'); a('s_add_u32 s68, s67, 4096')
    for kk in range(6):
        a(f'buffer_load_dwordx4 v[{dst+4*kk}:{dst+4*kk+3}], v{VL16}, {S_WS}, {"s67" if kk < 4 else "s68"} offen offset:{(kk&3)*1024} {STREAM[0]}')

def build_stream(first_items, second_items):
    items = []; ldsq = []; idx2 = {}
    def add(it):
        kind, acc, A, ref, needs = it
        if kind == 'reg': items.append((smf(acc, A, wfrag(ref)), needs))
        elif kind == 'lds':
            sl = len(ldsq) % 4; ldsq.append((len(items), ref, sl))
            items.append((smf(acc, A, f'v[{VB+8*sl}:{VB+8*sl+7}]'), needs + [f'F{ref}']))
        else: items.append((ref, needs))
    for it in first_items: add(it)
    n = 0
    for it in second_items:
        if it[0] != 'raw': idx2[n] = len(items); n += 1
        add(it)
    return items, ldsq, idx2

class Sides:
    def __init__(self): self.side = {}; self.busy = set(); self.vbusy = {}
    def put(self, g, r): self.side.setdefault(g, []).append(r)
    def lds(self, g, r, force=False):
        if not force:
            while g in self.busy: g += 1
        self.put(g, r); self.busy.add(g); return g
    def valu(self, g, instrs, per=1):
        for s in instrs:
            if isinstance(s, tuple): self.lds(max(g - 1, 0) if self.vbusy.get(g, 0) == 0 else g, s, True); continue
            while self.vbusy.get(g, 0) >= per: g += 1
            self.put(g, s); self.vbusy[g] = self.vbusy.get(g, 0) + 1
        return g + 1
    def refills(self, ldsq):
        for n in range(len(ldsq) - 4):
            g = ldsq[n][0]
            lim = ldsq[n+4][0] - 6
            for r in frag_reads(ldsq[n+4][1], ldsq[n][2]):
                g2 = g
                while g2 in self.busy: g2 += 1
                if g2 <= lim: g = self.lds(g2, r)
                else: g = self.lds(max(g, min(lim, g + 1)), r, True)
                assert g < ldsq[n+4][0] - 1, (n, g, ldsq[n+4])

DPP8 = 'row_ror:8 row_mask:0xf bank_mask:0xf'
def softx(S, e0, t):
    m, l = e0 + 2, e0 + 3
    r = [f'v_cndmask_b32 v{e0}, v{S}, v{S+2}, {SMASK8}', f'v_cndmask_b32 v{e0+1}, v{S+1}, v{S+3}, {SMASK8}',
         f'v_max_f32 v{m}, v{e0}, v{e0+1}', f'v_max_f32_dpp v{m}, v{m}, v{m} {DPP8}'] + allred('v_max_f32', m, t)
    r += [f'v_mul_f32 v{m}, s83, v{m}']
    r += [f'v_fma_f32 v{e0+i}, v{e0+i}, s83, -v{m}' for i in range(2)]
    r += [f'v_exp_f32 v{e0+i}, v{e0+i}' for i in range(2)]
    r += [f'v_add_f32 v{l}, v{e0}, v{e0+1}']
    return r

def dense_reads(dst, off, tagp):
    return [('lds', f'ds_read_b64_tr_b16 v[{dst+4*kk+2*x}:{dst+4*kk+2*x+1}], v{VDR} offset:{off + (2*kk+x)*256}', f'{tagp}{kk}')
            for kk in range(6) for x in range(2)]

def preload_b(a, lg, ldsq):
    for n in range(4):
        for r in frag_reads(ldsq[n][1], ldsq[n][2]): a(r[1]); lg.issue(r[2])

QORD = [0, 7, 1, 2, 3, 8, 4, 5, 6, 9]
KORD = [0, 7, 1, 2, 8, 3, 4, 9, 5, 6]

def qk_setup(a, opt):
    common_addr(a)
    T = VTMP
    rho = lambda l: 2*(l & 7) + ((l >> 3) & 1)
    lanefn(a, VXW, lambda l: LDS_MEM + (l & 15)*16 + (l >> 4)*4, T, 256)
    lanefn(a, VDR, lambda l: LDS_MEM + (l >> 2)*16 + (l & 1)*8, T)
    lanefn(a, V9, lambda l: (l >> 5)*256 + rho(l)*16 + ((l >> 4) & 1)*8, T)
    lanefn(a, V10, lambda l: rho(l)*16 + ((l >> 4) & 1)*4, T)
    lanefn(a, V11, lambda l: LDS_MEM + 3072 + l*16, T)
    lanefn(a, V12, lambda l: (l & 15)*16 + ((l >> 4) & 1)*8, T)
    a(f'v_and_b32 v{T+1}, 15, v0')
    for r in range(4):
        lanefn(a, T + 2, lambda l: (l >> 4)*4 + r, T); a(f'v_cmp_le_u32 {SCM[r]}, v{T+2}, v{T+1}')
    a(f's_lshl_b32 s81, {SH}, 2'); a(f's_add_u32 s81, s81, {FLAG_OFF}')

def px_off(a, dst, add):
    a(f's_add_u32 s67, {SSTEP}, {add}'); a('s_and_b32 s67, s67, 3'); a('s_lshl_b32 s67, s67, 1'); a(f's_add_u32 s67, s67, {SX}')
    a('s_mul_i32 s67, s67, 10240'); a(f's_add_u32 s67, s67, {PA_OFF}')
    a(f's_and_b32 s68, {SH}, 15'); a(f's_lshl_b32 s{dst}, s68, 9'); a(f's_add_u32 s{dst}, s{dst}, s67')
    a(f's_lshr_b32 s{dst+1}, s68, 1'); a(f's_lshl_b32 s{dst+1}, s{dst+1}, 8'); a(f's_add_u32 s{dst+1}, s{dst+1}, s67')
    a('s_and_b32 s68, s68, 1'); a('s_lshl_b32 s68, s68, 3'); a(f's_add_u32 s{dst+1}, s{dst+1}, s68'); a(f's_add_u32 s{dst+1}, s{dst+1}, 8192')

def qk_init_clear(a):
    a(f'v_mov_b32 v{VTMP}, -1'); a(f'v_mov_b32 v{VTMP+1}, -1')
    for sl in range(4):
        px_off(a, 32, sl)
        a(f'buffer_store_dwordx2 v[{VTMP}:{VTMP+1}], v{V9}, {S_WS}, s32 offen sc1')
        a(f'buffer_store_dword v{VTMP}, v{V10}, {S_WS}, s33 offen sc1')

def qk_prefetch(a, w, opt):
    ls = a.label('Lnp')
    a(f's_cmp_ge_u32 s82, {1 if opt.get("nopf") else 64}'); a(f's_cbranch_scc1 {ls}')
    check_flags(a, opt, 1)
    if w < 2: load_frags6(a, VKX, KF_OFF, w)
    else: load_frags6(a, VKX, QF_OFF, w - 2); load_frags6(a, VQF, KF_OFF, 0)
    a(f'{ls}:')

def mf(D, A, B, first): return f'v_mfma_f32_16x16x32_bf16 v[{D}:{D+3}], v[{A}:{A+3}], v[{B}:{B+3}], ' + ('0' if first else f'v[{D}:{D+3}]')

def qk_loop(a, w, sc, opt):
    lg = Trk(a, 'lgkmcnt', 15)
    ltop, lent = a.label('Lqk'), a.label('Lqkent')
    QEX = LDS_EX - LDS_MEM
    SACC, SM = VTMP, VTMP + 4
    AP = {kb: VA + 4*p for p, kb in enumerate(QORD)}
    first = [('reg' if kb < 7 else 'lds', VACC0 + 4*t, AP[kb], t*7 + kb if kb < 7 else (kb-7)*3 + t, [f'A{kb}']) for kb in QORD for t in range(3)]
    second = []
    n = 0
    SX0 = opt.get('sx0', 16)
    for t in range(3):
        for kb in KORD:
            second.append(('reg' if kb < 7 else 'lds', VACC1 + 4*t, AP[kb], 21 + t*7 + kb if kb < 7 else 9 + (kb-7)*3 + t, []))
            if w < 2 and SX0 <= n < SX0 + 6:
                kk = n - SX0
                second.append(('raw', 0, 0, mf(SACC, VKX + 4*kk, VQF + 4*kk, kk == 0), [f'Q{kk}']))
            n += 1
    items, ldsq, k2 = build_stream(first, second)
    sd = Sides()
    sd.side[-1] = [r for p, kb in enumerate(QORD[:3]) for r in a_reads(kb, p)]
    for p, kb in enumerate(QORD[3:]):
        for x, r in enumerate(a_reads(kb, p + 3)): sd.lds(3*p + x, r)
    sd.put(8, f's_waitcnt vmcnt({1 if w >= 2 and not opt.get("nocopy") else 0})')
    wr = lambda acc, t, off, tag: ('lds', f'ds_write_b32 v{VXW}, v{acc} offset:{off + t*1024}', tag)
    ins = []
    for t in range(3): ins += post(VACC0 + 4*t, VACC0 + 4*t) + [wr(VACC0 + 4*t, t, QEX, 'QW')]
    gq = sd.valu(k2[1], ins, opt.get('qper', 2))
    gb = gq + 1
    sd.put(gb, ('wait', 'QW')); sd.put(gb, 's_barrier')
    if w < 2:
        rr = dense_reads(VQF, QEX, 'Q')
        for i, r in enumerate(rr): sd.lds(gb + (i * (k2[SX0] - gb)) // 12, r, True)
    for t in range(2): sd.valu(k2[10*t + 12], post(VACC1 + 4*t, VACC1 + 4*t) + [wr(VACC1 + 4*t, t, 0, 'KW')])
    E0, T = VTMP + 8, VTMP + 12
    M0, L0 = E0 + 2, E0 + 3
    p0 = softx(SACC, E0, T)
    np0 = 0
    if w < 2:
        g = k2[SX0 + 8]
        while np0 < len(p0):
            g2 = g
            while sd.vbusy.get(g2, 0) >= 1: g2 += 1
            if g2 >= len(items): break
            sd.valu(g2, [p0[np0]]); np0 += 1; g = g2
    if w >= 2 and not opt.get('nocopy'):
        sd.put(0, 's_mov_b64 exec, 1'); sd.put(0, f'buffer_store_dword v{VT1}, v{VT2}, {S_WS}, s47 offen sc1'); sd.put(0, 's_mov_b64 exec, -1')
    sd.refills(ldsq)

    def top():
        preload_b(a, lg, ldsq)
        for r in range(24): a(f'v_mov_b32 v{VACC0+r}, 0')
        if w == 0: px_off(a, 76, 0); px_off(a, 78, 2)
        if w >= 2: a(f'v_mov_b32 v{VT1}, {SSTEP}'); a(f'v_mov_b32 v{VT2}, 0')
    a(f's_mov_b32 {SSTEP}, 0'); a('s_mov_b32 s82, 0'); a(f's_mov_b32 s83, {f2u(SC):#x}')
    if w >= 2: a(f's_lshl_b32 s47, {SSLOT}, 4'); a(f's_add_u32 s47, s47, {PROG_OFF + 4*w}')
    qk_prefetch(a, w, opt)
    top()
    a(f's_branch {lent}')
    a(f'{ltop}:')
    lg.reset()
    top()
    gather_setup(a)
    warm = None
    if w == 1 and not opt.get('nowarm'):
        a(f's_and_b32 s35, {SH}, 15'); a('s_min_u32 s35, s35, 9'); a('s_lshl_b32 s35, s35, 10'); a('s_add_u32 s35, s35, s34')
        warm = VTMP + 12
    ool = gather(a, NCH[w], VTMP, opt, (0, 6, 7), None, warm)
    a(f'{lent}:')
    a('s_waitcnt lgkmcnt(0)'); a('s_barrier')
    stamp(a, opt, 1)
    lg.reset()
    merge(a, lg, items, sd.side)
    stamp(a, opt, 2)
    if w < 2:
        for s_ in p0[np0:np0+6]: a(s_)
        np0 += 6
    for s_ in post(VACC1 + 8, VACC1 + 8): a(s_)
    a(wr(VACC1 + 8, 2, 0, '')[1]); lg.issue('KW')
    if w < 2:
        for s_ in p0[np0:]: a(s_)
    if w == 1: a(f'ds_write_b128 v{V11}, v[{E0}:{E0+3}]')
    if w == 0:
        lg.all(); a('s_barrier')
        E1 = VB; M1, L1 = E1 + 2, E1 + 3
        rr = dense_reads(VA, 0, 'K')
        for r in rr[:6]: a(r[1]); lg.issue(r[2])
        rest = rr[6:] + [('lds', f'ds_read_b128 v[{E1}:{E1+3}], v{V11}', 'S1')]
        for kk in range(6):
            lg.wait(f'K{kk}')
            a(mf(SM, VA + 4*kk, VQF + 4*kk, kk == 0))
            for r in rest[:3]: a(r[1]); lg.issue(r[2])
            rest = rest[3:]
        MM_, LM, F0, F1 = VB + 4, VB + 5, VB + 6, VB + 7
        lg.wait('S1')
        a(f'v_max_f32 v{F0}, v{M0}, v{M1}')
        a(f's_add_u32 s82, {SSTEP}, 1')
        stamp(a, opt, 3)
        a(f'v_cndmask_b32 v{SM}, v{SM}, v{SM+2}, {SMASK8}'); a(f'v_cndmask_b32 v{SM+1}, v{SM+1}, v{SM+3}, {SMASK8}')
        a(f'v_max_f32 v{MM_}, v{SM}, v{SM+1}'); a(f'v_max_f32_dpp v{MM_}, v{MM_}, v{MM_} {DPP8}')
        for s_ in allred('v_max_f32', MM_, T, (16,)): a(s_)
        a(f'v_mul_f32 v{MM_}, s83, v{MM_}'); a(f'v_max_f32 v{MM_}, v{MM_}, v{F0}')
        a(f'v_fma_f32 v{SM}, v{SM}, s83, -v{MM_}'); a(f'v_fma_f32 v{SM+1}, v{SM+1}, s83, -v{MM_}')
        a(f'v_sub_f32 v{F0}, v{M0}, v{MM_}'); a(f'v_sub_f32 v{F1}, v{M1}, v{MM_}')
        a(f'v_exp_f32 v{F0}, v{F0}'); a(f'v_exp_f32 v{F1}, v{F1}'); a(f'v_exp_f32 v{SM}, v{SM}'); a(f'v_exp_f32 v{SM+1}, v{SM+1}')
        a(f'v_mul_f32 v{L0}, v{L0}, v{F0}'); a(f'v_fmac_f32 v{L0}, v{L1}, v{F1}')
        a(f'v_add_f32 v{LM}, v{SM}, v{SM+1}'); a(f'v_fmac_f32 v{L0}, 0.5, v{LM}')
        a(f'v_mul_f32 v{E0}, v{E0}, v{F0}'); a(f'v_mul_f32 v{E0+1}, v{E0+1}, v{F0}')
        a(f'v_add_f32_dpp v{LM}, v{L0}, v{L0} {DPP8}')
        a(f'v_mov_b32 v{T}, v{LM}'); a(f'v_mul_f32 v{E1}, v{E1}, v{F1}'); a(f'v_mul_f32 v{E1+1}, v{E1+1}, v{F1}')
        a(f'v_permlane16_swap_b32 v{LM}, v{T}'); a(f'v_add_f32 v{LM}, v{LM}, v{T}')
        for s_ in allred('v_add_f32', LM, T, (32,)): a(s_)
        a(f'v_rcp_f32 v{LM}, v{LM}')
        a(f'v_mul_f32 v{E0}, v{E0}, v{LM}'); a(f'v_mul_f32 v{E0+1}, v{E0+1}, v{LM}')
        a(f'v_mul_f32 v{E1}, v{E1}, v{LM}'); a(f'v_mul_f32 v{E1+1}, v{E1+1}, v{LM}')
        a(f'v_cvt_pk_bf16_f32 v{E0}, v{E0}, v{E0+1}'); a(f'v_cvt_pk_bf16_f32 v{E0+1}, v{E1}, v{E1+1}')
        a(f'buffer_store_dwordx2 v[{E0}:{E0+1}], v{V9}, {S_WS}, s76 offen {sc}')
        a(f'v_mul_f32 v{SM}, v{SM}, v{LM}'); a(f'v_mul_f32 v{SM+1}, v{SM+1}, v{LM}')
        a(f'v_cvt_pk_bf16_f32 v{SM}, v{SM}, v{SM+1}')
        a(f'buffer_store_dword v{SM}, v{V10}, {S_WS}, s77 offen {sc}')
        stamp(a, opt, 4)
        a(f'v_mov_b32 v{VB}, -1'); a(f'v_mov_b32 v{VB+1}, -1')
        a(f'buffer_store_dwordx2 v[{VB}:{VB+1}], v{V9}, {S_WS}, s78 offen {sc}')
        a(f'buffer_store_dword v{VB}, v{V10}, {S_WS}, s79 offen {sc}')
        qk_prefetch(a, w, opt)
    elif w == 1:
        lg.all(); a('s_barrier')
        a(f's_add_u32 s82, {SSTEP}, 1')
        qk_prefetch(a, w, opt)
    else:
        qt = w - 2
        if qt == 1 and not opt.get('nopf'): load_frags6(a, VA, KF_OFF, 1, SSTEP)
        lg.all(); a('s_barrier')
        for r in dense_reads(VB, 0, 'K'): a(r[1]); lg.issue(r[2])
        X0, X1, SMM = VTMP, VTMP + 4, VTMP + 8
        for kk in range(6): a(mf(X0, VQF + 4*kk, VKX + 4*kk, kk == 0))
        for kk in range(6):
            lg.wait(f'K{kk}'); a(mf(SMM, VB + 4*kk, VKX + 4*kk, kk == 0))
        if qt == 1:
            a('s_waitcnt vmcnt(0)')
            for kk in range(6): a(mf(X1, VA + 4*kk, VKX + 4*kk, kk == 0))
        a(f's_add_u32 s82, {SSTEP}, 1')
        qk_prefetch(a, w, opt)
        M, L, T = VTMP + 12, VTMP + 13, VTMP + 14
        D = X1 if qt == 1 else X0
        a(f'v_mov_b32 v{T}, 0xff7fffff')
        for r in range(4): a(f'v_cndmask_b32 v{D+r}, v{T}, v{D+r}, {SCM[r]}')
        vals = list(range(X0, X0 + 4)) + (list(range(X1, X1 + 4)) if qt else [])
        allv = vals + list(range(SMM, SMM + 4))
        a(f'v_max3_f32 v{M}, v{allv[0]}, v{allv[1]}, v{allv[2]}')
        rest = allv[3:]
        while rest:
            if len(rest) >= 2: a(f'v_max3_f32 v{M}, v{M}, v{rest[0]}, v{rest[1]}'); rest = rest[2:]
            else: a(f'v_max_f32 v{M}, v{M}, v{rest[0]}'); rest = []
        for s_ in allred('v_max_f32', M, T): a(s_)
        a(f'v_mul_f32 v{M}, s83, v{M}')
        for v in allv: a(f'v_fma_f32 v{v}, v{v}, s83, -v{M}')
        for v in allv: a(f'v_exp_f32 v{v}, v{v}')
        a(f'v_add_f32 v{L}, v{SMM}, v{SMM+1}'); a(f'v_add_f32 v{T}, v{SMM+2}, v{SMM+3}'); a(f'v_add_f32 v{L}, v{L}, v{T}')
        a(f'v_mul_f32 v{L}, 0.5, v{L}')
        for v in vals: a(f'v_add_f32 v{L}, v{L}, v{v}')
        for s_ in allred('v_add_f32', L, T): a(s_)
        a(f'v_rcp_f32 v{L}, v{L}')
        for v in allv: a(f'v_mul_f32 v{v}, v{v}, v{L}')
        a(f'v_cvt_pk_bf16_f32 v{X0}, v{X0}, v{X0+1}'); a(f'v_cvt_pk_bf16_f32 v{X0+1}, v{X0+2}, v{X0+3}')
        if qt: a(f'v_cvt_pk_bf16_f32 v{X0+2}, v{X1}, v{X1+1}'); a(f'v_cvt_pk_bf16_f32 v{X0+3}, v{X1+2}, v{X1+3}')
        else: a(f'v_mov_b32 v{X0+2}, 0'); a(f'v_mov_b32 v{X0+3}, 0')
        a(f'v_cvt_pk_bf16_f32 v{SMM}, v{SMM}, v{SMM+1}'); a(f'v_cvt_pk_bf16_f32 v{SMM+1}, v{SMM+2}, v{SMM+3}')
        a(f's_lshl_b32 s67, {SSTEP}, 5'); a(f's_add_u32 s67, s67, {SH}'); a('s_lshl_b32 s67, s67, 11'); a(f's_add_u32 s67, s67, {P3X_OFF + qt*1024}')
        if not opt.get('nocopy'): a(f'buffer_store_dwordx4 v[{X0}:{X0+3}], v{VL16}, {S_WS}, s67 offen sc1')
        a(f's_lshl_b32 s67, {SSTEP}, 3'); a(f's_lshr_b32 s68, {SH}, 2'); a('s_add_u32 s67, s67, s68'); a('s_lshl_b32 s67, s67, 11')
        a(f's_and_b32 s68, {SH}, 3'); a('s_lshl_b32 s68, s68, 8'); a('s_add_u32 s67, s67, s68'); a(f's_add_u32 s67, s67, {P3M_OFF + qt*1024}')
        if not opt.get('nocopy'): a(f'buffer_store_dwordx2 v[{SMM}:{SMM+1}], v{V12}, {S_WS}, s67 offen sc1')
        stamp(a, opt, 3)
    stamp(a, opt, 5)
    stamp_flush(a, opt, 8)
    a(f's_add_u32 {SSTEP}, {SSTEP}, 1'); a(f's_cmp_lt_u32 {SSTEP}, 64'); a(f's_cbranch_scc1 {ltop}')
    if w >= 2: progress(a, opt, 0, True)
    a('s_waitcnt vmcnt(0)'); a('s_endpgm')
    ool()

def vo_setup(a, opt):
    common_addr(a)
    T = VTMP
    lanefn(a, VXW, lambda l: LDS_EX + ((l & 15) >> 1)*32 + (l >> 4)*8 + (l & 1)*2, T, 256)
    lanefn(a, VXS, lambda l: 0x05040100 + (l & 1)*(0x03020706 - 0x05040100), T) if False else None
    a(f'v_and_b32 v{T}, 1, v0'); a(f'v_cmp_ne_u32 vcc, 0, v{T}'); a(f'v_mov_b32 v{T}, 0x05040100'); a(f'v_mov_b32 v{T+1}, 0x03020706')
    a(f'v_cndmask_b32 v{VXS}, v{T}, v{T+1}, vcc')
    lanefn(a, VDR, lambda l: LDS_EX + sparse_base(l, 0), T)
    lanefn(a, V9, lambda l: ((l >> 4) & 1)*1024 + (l & 15)*16 + (l >> 5)*8, T, 256)
    lanefn(a, V10, lambda l: (l >> 4)*10240 + (l & 15)*16, T)
    lanefn(a, V11, lambda l: (l >> 4)*1024 + (l & 15)*16, T, 256)
    lanefn(a, V12, lambda l: ((l & 15) >> 1)*32 + (l >> 4)*8 + (l & 1)*4, T)
    a(f's_and_b32 {SDT}, {SH}, 15'); a(f's_lshl_b32 s67, {SWV}, 4'); a(f's_add_u32 {SDT}, {SDT}, s67')
    a(f's_lshl_b32 s81, {SX}, 6'); a(f's_add_u32 s81, s81, {FLAG_OFF + 128}')

def vom_store1(src, k, base, sc):
    if k < 2: return f'buffer_store_dwordx4 v[{src}:{src+3}], v{V11}, {S_WS}, {base[k]} offen {sc}'
    return f'buffer_store_dwordx2 v[{src}:{src+1}], v{V9}, {S_WS}, {base[2]} offen {sc}'
def vom_stores(a, base_s, src, sc, same=False):
    a(f's_add_u32 s67, s{base_s}, 4096'); a(f's_add_u32 s68, s{base_s}, 8192')
    for k in range(3): a(vom_store1(src if same else src + 4*k, k, (f's{base_s}', 's67', 's68'), sc))
def vomr_off(a, dst, add):
    a(f's_add_u32 s67, {SSTEP}, {add}'); a('s_and_b32 s67, s67, 3'); a('s_lshl_b32 s67, s67, 5'); a(f's_add_u32 s67, s67, {SH}')
    a(f's_mul_i32 s{dst}, s67, 10240'); a(f's_add_u32 s{dst}, s{dst}, {VOMR_OFF}')
def memp_off(a, dst, add, dt=SDT):
    a(f's_add_u32 s67, {SSTEP}, {add}'); a('s_and_b32 s67, s67, 3'); a('s_lshl_b32 s67, s67, 1'); a(f's_add_u32 s67, s67, {SX}')
    a(f's_mul_i32 s{dst+1}, s67, 10240'); a(f's_lshl_b32 s67, {dt}, 8'); a(f's_add_u32 s{dst+1}, s{dst+1}, s67')
    a(f's_add_u32 s{dst}, s{dst+1}, {MEML_OFF}'); a(f's_add_u32 s{dst+1}, s{dst+1}, {MEMR_OFF}')

def vo_init_clear(a):
    for r in range(4): a(f'v_mov_b32 v{VA+16+r}, -1')
    ls = a.label('Lnc')
    for sl in range(4):
        vomr_off(a, 32, sl); vom_stores(a, 32, VA + 16, 'sc1', True)
    a(f's_cmp_ge_u32 {SDT}, 40'); a(f's_cbranch_scc1 {ls}')
    for sl in range(4):
        memp_off(a, 32, sl)
        a(f'buffer_store_dword v{VA+16}, v{V12}, {S_WS}, s32 offen sc1')
        a(f'buffer_store_dword v{VA+16}, v{V12}, {S_WS}, s33 offen sc1')
    a(f'{ls}:')

VORD = [0, 7, 1, 2, 3, 8, 4, 5, 9, 6]
OORD = [8, 0, 1, 9, 2, 3, 4, 7, 5, 6]

PEND = []
def vo_loop(a, n, sc, opt):
    lg = Trk(a, 'lgkmcnt', 15)
    ltop, lent = a.label('Lvo'), a.label('Lvoent')
    VV = VACC1; PK = VACC0
    AP = {kb: VA + 4*p for p, kb in enumerate(VORD)}
    seq = [(kb, t) for kb in VORD[:6] for t in range(3)] + [(kb, t) for t in range(3) for kb in VORD[6:]]
    first = [('reg' if kb < 7 else 'lds', VACC0 + 4*t, AP[kb], t*7 + kb if kb < 7 else (kb-7)*3 + t, [f'A{kb}']) for kb, t in seq]
    second = [('reg' if tile < 7 else 'lds', VA + 4*i, VV + 4*kb, 21 + tile*3 + kb if tile < 7 else 9 + (tile-7)*3 + kb, [f'V{kb}'])
              for i, tile in enumerate(OORD) for kb in range(3)]
    items, ldsq, k2 = build_stream(first, second)
    nv = 30
    sd = Sides()
    CP = VOX + 52
    sd.side[-1] = [r for p, kb in enumerate(VORD[:6]) for r in a_reads(kb, p)]
    for k in range(3):
        if not opt.get('nocopy'): sd.put(k, vom_store1(CP + 4*k, k, ('s48', 's49', 's50'), 'sc1'))
        sd.put(7 + k, vom_store1(VOX + 48, k, ('s51', 's52', 's53'), sc))
    vsp = opt.get('vsp', 2)
    for hh in range(16):
        g = 10 + hh * vsp
        if g >= 29: g += 1
        sd.put(g, f'buffer_load_dwordx4 v[{VOX+4*hh}:{VOX+4*hh+3}], v{VL16}, {S_WS}, s83 offen {STREAM[0]}')
        sd.put(g, 's_add_u32 s83, s83, s82')
    sd.put(5, f's_waitcnt vmcnt({0 if opt.get("nocopy") else 3})')
    for p, kb in enumerate(VORD[6:]):
        for x, r in enumerate(a_reads(kb, p + 6)): sd.lds(6 + 2*p + x, r)
    wr = lambda acc, t: [('lds', f'ds_write_b16 v{VXW}, v{acc} offset:{t*1024}', 'VW'), ('lds', f'ds_write_b16_d16_hi v{VXW}, v{acc} offset:{t*1024+4}', 'VW')]
    sd.valu(24, post(VACC0, VACC0) + wr(VACC0, 0))
    def mid():
        for r in range(8): a(f'v_mov_b32 v{VA+r}, 0')
        for t in (1, 2):
            for s_ in post(VACC0 + 4*t, VACC0 + 4*t): a(s_)
            for r in wr(VACC0 + 4*t, t): a(r[1]); lg.issue(r[2])
        for r in range(8, 24): a(f'v_mov_b32 v{VA+r}, 0')
        lg.wait('VW'); a('s_barrier')
        for kb in range(3):
            for x in range(2):
                a(f'ds_read_b64_tr_b16 v[{VV+4*kb+2*x}:{VV+4*kb+2*x+1}], v{VDR} offset:{kb*1024 + x*64}'); lg.issue(f'V{kb}')
        for r in range(24, 40): a(f'v_mov_b32 v{VA+r}, 0')
    sd.put(29, mid)
    pos = {t: i for i, t in enumerate(OORD)}
    base = ('s44', 's45', 's46')
    tail = []; gfree = nv
    done = set()
    for i, t in enumerate(OORD):
        ins = post(VA + 4*i, PK + t)
        done.add(t)
        q = t >> 2
        if q < 2 and all(4*q + j in done for j in range(4)):
            b = PK + 4*q
            ins += [f'v_permlane16_swap_b32 v{b}, v{b+1}', f'v_permlane16_swap_b32 v{b+2}, v{b+3}',
                    f'v_permlane32_swap_b32 v{b}, v{b+2}', f'v_permlane32_swap_b32 v{b+1}, v{b+3}', vom_store1(b, q, base, sc)]
        if q == 2 and 8 in done and 9 in done:
            ins += [f'v_permlane16_swap_b32 v{PK+8}, v{PK+9}', vom_store1(PK + 8, 2, base, sc)]
        g = max(nv + 3*i + 2 + 3, gfree)
        if g + len(ins) <= len(items) + 1 and not tail: gfree = sd.valu(g, ins) - 1
        else: tail += ins
    for g in [g for g in sd.side if g >= len(items)]: tail = sd.side.pop(g) + tail
    sd.refills(ldsq)

    def park():
        for r in range(10): a(f'v_mov_b32 v{CP+r}, v{PK+r}')
        for r in range(4): a(f'v_mov_b32 v{VOX+48+r}, -1')
        a(f's_sub_u32 s69, {SSTEP}, 1')
        a('s_lshl_b32 s67, s69, 5'); a(f's_add_u32 s67, s67, {SH}'); a('s_mul_i32 s48, s67, 10240'); a(f's_add_u32 s48, s48, {VOM_OFF}')
        a('s_add_u32 s49, s48, 4096'); a('s_add_u32 s50, s48, 8192')
        vomr_off(a, 51, 1); a('s_add_u32 s52, s51, 4096'); a('s_add_u32 s53, s51, 8192')
    def top():
        preload_b(a, lg, ldsq)
        vomr_off(a, 44, 0); a('s_add_u32 s45, s44, 4096'); a('s_add_u32 s46, s44, 8192')
        a(f's_and_b32 s69, {SSTEP}, 3')
        a('s_lshl_b32 s67, s69, 5'); a(f's_lshl_b32 s68, {SX}, 4'); a('s_add_u32 s67, s67, s68')
        a('s_mul_i32 s72, s67, 10240'); a(f's_lshl_b32 s68, {SDT}, 8'); a('s_add_u32 s72, s72, s68'); a(f's_add_u32 s72, s72, {VOMR_OFF}')
        a('s_add_u32 s73, s72, 40960'); a('s_add_u32 s74, s73, 40960'); a('s_add_u32 s75, s74, 40960')
        a('s_lshl_b32 s67, s69, 1'); a(f's_add_u32 s67, s67, {SX}')
        a('s_mul_i32 s76, s67, 10240'); a(f's_add_u32 s76, s76, {SCHK}'); a(f's_add_u32 s76, s76, {PA_OFF}')
        memp_off(a, 77, 1)
        a(f's_cmp_lt_u32 {SDT}, 40'); a('s_cselect_b32 s54, 1, 0')
        a(f's_cmp_eq_u32 {SSTEP}, 63'); a('s_cselect_b32 s79, 0, s54')
        if opt.get('nopf'): a('s_mov_b32 s82, 0')
        else: a(f's_mov_b32 s82, {SSTEP}')
        a('s_mul_i32 s67, s82, 40'); a(f's_lshl_b32 s68, {SX}, 4'); a('s_add_u32 s67, s67, s68'); a('s_mul_i32 s83, s67, 40960')
        a(f's_lshl_b32 s68, {SDT}, 10'); a('s_add_u32 s83, s83, s68'); a(f's_add_u32 s83, s83, {VOF_OFF}')
        for r in range(12): a(f'v_mov_b32 v{VACC0+r}, 0')
        check_flags(a, opt, 16)
        a('s_cmp_eq_u32 s79, 0'); a('s_cselect_b32 s83, 0x20000000, s83'); a('s_mov_b32 s82, 40960')
    a(f's_mov_b32 {SSTEP}, 0')
    for r in range(48, 54): a(f's_mov_b32 s{r}, 0x20000000')
    top()
    a(f's_branch {lent}')
    a(f'{ltop}:')
    lg.reset()
    park(); top()
    if opt.get('dsleep'): a(f's_sleep {opt["dsleep"]}')
    ool = gather(a, n, VACC1, opt, (0, 5, 7), 's54')
    a(f'{lent}:')
    a('s_waitcnt lgkmcnt(0)'); a('s_barrier')
    stamp(a, opt, 1)
    lg.reset()
    merge(a, lg, items, sd.side)
    for s_ in tail:
        a(s_)
    stamp(a, opt, 3)
    if opt.get('dbgvox'): a('s_waitcnt vmcnt(0)'); stamp(a, opt, 5)
    lnext, lnd, lfin = a.label('Lnx'), a.label('Lnd'), a.label('Lfin')
    a(f's_cmp_eq_u32 {SSTEP}, 63'); a(f's_cbranch_scc1 {lfin}')
    ACC = VB + 28
    def vom_loads():
        for q in range(4): a(f'buffer_load_dwordx4 v[{VB+4*q}:{VB+4*q+3}], v{V10}, {S_WS}, s{72+q} offen sc1')
    def vom_check():
        maxchk(a, [VB + 2*i for i in range(8)]); a(f'v_cmp_eq_u32 vcc, -1, v{VT0}')
    PA_, PB_ = VB + 16, VACC1
    ldp = lambda R: [a(f'buffer_load_dwordx4 v[{R+4*c}:{R+4*c+3}], v{VL16}, {S_WS}, s76 offen offset:{c*1024} sc1') for c in range(n)]
    lp, ld, lfa, lfb, lv, lvok = [a.label('Lp') for _ in range(6)]
    def pcheck(R):
        for c in range(n):
            a(f's_waitcnt vmcnt({2*n-1-c})')
            a(f'ds_write_b128 v{VT1}, v[{R+4*c}:{R+4*c+3}] offset:{c*1024}')
            maxchk(a, range(R + 4*c, R + 4*c + 4), c == 0)
        a(f'v_cmp_eq_u32 vcc, -1, v{VT0}')
    ldp(PA_)
    a(f'v_add_u32 v{VT1}, {SCHK}, v{VL16}'); a(f'v_add_u32 v{VT1}, {LDS_MEM}, v{VT1}'); a(f'v_add_u32 v{VT2}, {LDS_MEM}, v{VL16}')
    for r in range(4): a(f'v_mov_b32 v{ACC+r}, 0')
    gather_setup(a, 1)
    a(f's_sleep {opt.get("pstag", 1)}')
    ldp(PB_)
    a(f'{lp}:')
    pcheck(PA_)
    a(f's_cbranch_vccnz {lfa}')
    a(f'{ld}:')
    stamp(a, opt, 4)
    a('s_cmp_eq_u32 s79, 0'); a(f's_cbranch_scc1 {lnd}')
    vom_loads()
    a('s_waitcnt lgkmcnt(0)'); a('s_barrier')
    for c in range(10): a(f'ds_read_b128 v[{VA+4*c}:{VA+4*c+3}], v{VT2} offset:{c*1024}')
    for pp in range(8):
        a(f's_waitcnt lgkmcnt({9-pp})'); a(smf(ACC, VA + 4*pp, f'v[{VOX+8*pp}:{VOX+8*pp+7}]'))
    a('s_waitcnt vmcnt(0)'); vom_check()
    a(f's_cbranch_vccnz {lv}')
    a(f'{lvok}:')
    def ool2():
        a(f'{lfa}:')
        ldp(PA_); pcheck(PB_)
        a(f's_cbranch_vccz {ld}')
        ldp(PB_)
        budget_loop(a, lp, ld)
        a(f'{lv}:')
        vom_loads(); a('s_waitcnt vmcnt(0)'); vom_check()
        a(f's_cbranch_vccz {lvok}')
        budget_loop(a, lv, lvok)
    stamp(a, opt, 2)
    a('s_waitcnt lgkmcnt(0)')
    for m in range(2): a(smf(ACC, VA + 32 + 4*m, f'v[{VB+8*m}:{VB+8*m+7}]'))
    for s_ in post(ACC, ACC): a(s_)
    a(f'v_mov_b32_dpp v{ACC+1}, v{ACC} quad_perm:[1,0,3,2] row_mask:0xf bank_mask:0xf')
    a(f'v_perm_b32 v{ACC}, v{ACC+1}, v{ACC}, v{VXS}')
    a(f'buffer_store_dword v{ACC}, v{V12}, {S_WS}, s78 offen sc1')
    a(f'buffer_store_dword v{ACC}, v{V12}, {S_WS}, s77 offen {sc}')
    stamp(a, opt, 6)
    a(f's_branch {lnext}')
    a(f'{lnd}:')
    a('s_waitcnt lgkmcnt(0)'); a('s_barrier')
    a('s_waitcnt vmcnt(0)')
    if n == 2:
        a(f's_cmp_lg_u32 {SWV}, 3'); a(f's_cbranch_scc1 {lnext}')
        progress(a, opt, 0, False)
        a(f'v_mov_b32 v{VT2}, -1')
        a(f's_and_b32 s35, {SH}, 15')
        memp_off(a, 55, 3, 's35')
        for i in range(3):
            if i == 2: a('s_cmp_ge_u32 s35, 8'); a(f's_cbranch_scc1 {lnext}')
            a(f'buffer_store_dword v{VT2}, v{V12}, {S_WS}, s55 offen {sc}')
            a(f'buffer_store_dword v{VT2}, v{V12}, {S_WS}, s56 offen sc1')
            if i < 2: a('s_add_u32 s55, s55, 4096'); a('s_add_u32 s56, s56, 4096')
    a(f'{lnext}:')
    stamp_flush(a, opt, 8)
    a(f's_add_u32 {SSTEP}, {SSTEP}, 1'); a(f's_branch {ltop}')
    a(f'{lfin}:')
    a(f's_add_u32 {SSTEP}, {SSTEP}, 1')
    park()
    for k in range(3): a(vom_store1(CP + 4*k, k, ('s48', 's49', 's50'), 'sc1'))
    a('s_waitcnt vmcnt(0)'); a('s_barrier')
    if n == 2:
        lf2 = a.label('Lfin')
        a(f's_cmp_lg_u32 {SWV}, 3'); a(f's_cbranch_scc1 {lf2}')
        progress(a, opt, 0, False)
        a(f'{lf2}:')
    a('s_waitcnt vmcnt(0)'); a('s_endpgm')
    ool(); ool2()

def chain_main(a, opt):
    lvo = a.label('Lrole_vo')
    STREAM[0] = opt.get('stream', 'sc1 nt')
    a(f's_lshr_b32 {SX}, {SSLOT}, 5'); a(f's_and_b32 s67, {SSLOT}, 15'); a(f's_lshl_b32 {SH}, {SX}, 4'); a(f's_add_u32 {SH}, {SH}, s67')
    a(f's_mov_b32 {STMO}, {opt.get("tmo", 1 << 21)}'); a(f's_mov_b32 {SSTEP}, 0')
    srd(a, S_AUX, 's[38:39]', 8*640*2)
    a(f's_mov_b32 {S_ONE0}, 0x00003f80'); a(f's_mov_b32 {S_ONE1}, 0x3f800000')
    a(f's_bitcmp1_b32 {SSLOT}, 4'); a(f's_cbranch_scc1 {lvo}')
    for role in ('qk', 'vo'):
        if role == 'vo': a(f'{lvo}:')
        if role == 'qk':
            srd(a, S_WA, 's[40:41]', 640*6144*2); srd(a, S_WB, 's[42:43]', 640*6144*2); qk_setup(a, opt)
        else:
            srd(a, S_WA, 's[44:45]', 640*6144*2); srd(a, S_WB, 's[46:47]', 640*6144*2); vo_setup(a, opt)
        a(f's_lshl_b32 s67, {SSLOT}, 2'); a(f's_add_u32 s67, s67, {SWV}'); a('s_lshl_b32 s67, s67, 2'); a(f's_add_u32 s67, s67, {PROG_OFF}')
        a(f's_cmp_lt_u32 {SWV}, {2 if role == "qk" else 3}'); a('s_cselect_b32 s68, 255, 0')
        a(f'v_mov_b32 v{VT0}, s68'); a(f'v_mov_b32 v{VT1}, 0')
        a(f'buffer_store_dword v{VT0}, v{VT1}, {S_WS}, s67 offen sc1')
        l1, l2, l3 = a.label('Ls'), a.label('Ls'), a.label('Ls')
        if not opt.get('noflags'):
            a(f's_cmp_lg_u32 {SWV}, 1'); a(f's_cbranch_scc1 {l1}')
            a(f'v_and_b32 v{VT2}, 31, v0'); a(f'v_lshlrev_b32 v{VT2}, 2, v{VT2}')
            a(f's_lshl_b32 s67, {SSLOT}, 7'); a(f's_add_u32 s67, s67, {FLAG_OFF}')
            a(f'buffer_store_dword v{VT1}, v{VT2}, {S_WS}, s67 offen sc1')
            a(f'{l1}:')
        if role == 'vo': vo_init_clear(a)
        a(f's_cmp_lg_u32 {SWV}, 0'); a(f's_cbranch_scc1 {l2}')
        if role == 'qk': qk_init_clear(a)
        mem0_load(a)
        a(f'{l2}:')
        def after_first():
            a(f's_cmp_lg_u32 {SWV}, 0'); a(f's_cbranch_scc1 {l3}')
            a(f'v_mov_b32 v{VT0}, 1'); a(f'v_mov_b32 v{VT1}, {DBG_READY*4}')
            a('s_mov_b64 exec, 1')
            a(f'buffer_atomic_add v{VT0}, v{VT1}, {S_DBG}, 0 offen sc1')
            a('s_mov_b64 exec, -1')
            mem0_write(a)
            a(f'{l3}:')
        loader(a, role, after_first)
        lp, ld, lslow = a.label('Lr'), a.label('Lrd'), a.label('Lslow')
        a(f'v_lshlrev_b32 v{VT1}, 2, v0')
        a(f'{lp}:')
        a(f'buffer_load_dword v{VT0}, v{VT1}, {S_DBG}, 0 offen sc1'); a('s_waitcnt vmcnt(0)')
        a(f'v_readlane_b32 s67, v{VT0}, {DBG_READY}')
        a(f's_cmp_eq_u32 {STMO}, 0'); a(f's_cbranch_scc1 {ld}')
        a(f's_sub_u32 {STMO}, {STMO}, 1')
        a('s_cmp_lt_u32 s67, 64'); a(f's_cbranch_scc1 {lp}')
        a(f'{ld}:')
        a(f'v_readlane_b32 s67, v{VT0}, 0'); a(f'v_readlane_b32 s68, v{VT0}, 1'); a('s_min_u32 s67, s67, s68')
        if opt.get('force_slow'): a('s_mov_b32 s67, 0')
        a('s_cmp_lt_u32 s67, 32'); a(f's_cbranch_scc1 {lslow}')
        for sc in ('', 'sc1'):
            if sc: a(f'{lslow}:')
            if role == 'qk':
                labs = [a.label('Lw') for _ in range(4)]
                for w in range(1, 4): a(f's_cmp_eq_u32 {SWV}, {w}'); a(f's_cbranch_scc1 {labs[w]}')
                for w in range(4):
                    a(f'{labs[w]}:'); qk_loop(a, w, sc, opt)
            else:
                l23 = a.label('Lw')
                a(f's_cmp_ge_u32 {SWV}, 2'); a(f's_cbranch_scc1 {l23}')
                vo_loop(a, 3, sc, opt)
                a(f'{l23}:')
                vo_loop(a, 2, sc, opt)
```

```python
from common import *

SG, SCOMBO, SG3, SPH = 's62', 's63', 's64', 's66'
SD = [f's{70+q}' for q in range(6)]
SINC, SDSLOT, SRSLOT = 's76', 's77', 's78'
SXN, SOUT, SFLG, SRELU, SDPH = 's79', 's80', 's81', 's82', 's83'
SKIND, STILE, SHD = 's84', 's85', 's86'
SK2, ST2, SH2 = 's87', 's88', 's89'
SSTR = 's90'
OOB = 0x20000000
S_X = 's[20:23]'
VL16, VD, VROW, VSWZ, VR0 = 1, 2, 3, 4, 5
VRD = 9
VFLG, VONE, VT0, VT1 = 13, 14, 15, 16
ACC = 64; VFR = 160; WB = 208; STG = 128
SLOT = 24576; RING = 6 * SLOT
LDS_LN = RING
DBG_LNB = 128

def task_info(r, k, t, h):
    return [f's_mul_i32 {t}, {r}, 3', f's_add_u32 {t}, {t}, {SG3}',
            f's_lshr_b32 {k}, {SCOMBO}, 5', f's_and_b32 {h}, {SCOMBO}, 31',
            f's_lshl_b32 s67, {SCOMBO}, 1', f's_add_u32 s67, s67, {SG3}', 's_sub_u32 s67, s67, 1',
            's_lshr_b32 s68, s67, 4', 's_and_b32 s67, s67, 15',
            f's_cmp_gt_u32 {t}, 15',
            f's_cselect_b32 {k}, 2, {k}', f's_cselect_b32 {h}, s68, {h}', f's_cselect_b32 {t}, s67, {t}']

def dma_switch():
    r = [f's_lshr_b32 s69, {SDPH}, 1'] + task_info('s69', SK2, ST2, SH2)
    r += [f's_cmp_eq_u32 {SK2}, 1',
          's_cselect_b32 s92, s44, s40', 's_cselect_b32 s93, s45, s41', 's_cselect_b32 s94, s46, s42', 's_cselect_b32 s95, s47, s43',
          f's_cmp_eq_u32 {SK2}, 2',
          's_cselect_b32 s92, s52, s92', 's_cselect_b32 s93, s53, s93', 's_cselect_b32 s94, s54, s94', 's_cselect_b32 s95, s55, s95',
          f's_cselect_b32 {SSTR}, 3, 12', f's_mul_i32 {SSTR}, {SSTR}, 1024', f's_mul_i32 s18, {SSTR}, 640',
          f's_bitcmp1_b32 {SDPH}, 0',
          's_cselect_b32 s16, s94, s92', 's_cselect_b32 s17, s95, s93',
          f's_cselect_b32 s69, {SK2}, 0',
          f's_cmp_ge_u32 {SDPH}, 12', 's_cselect_b32 s18, 0, s18',
          f's_mul_i32 s67, {SH2}, 384', f's_mul_i32 s68, {SH2}, {192*1280}',
          's_cmp_lg_u32 s69, 0',
          f's_cselect_b32 {SSTR}, 1280, {SSTR}', 's_cselect_b32 s67, s68, s67',
          f's_lshl_b32 s68, {SSTR}, 5',
          f's_mul_i32 s92, {SWV}, {SSTR}', 's_lshl_b32 s92, s92, 3', f's_add_u32 {SD[0]}, s67, s92',
          f's_lshl_b32 s93, {SSTR}, 6', 's_mul_i32 s94, s68, 3',
          's_cmp_lg_u32 s69, 0',
          f's_cselect_b32 {SINC}, 128, s93', 's_cselect_b32 s92, s68, 128', 's_cselect_b32 s93, s94, s68',
          f's_add_u32 {SD[1]}, {SD[0]}, s92', f's_add_u32 {SD[2]}, {SD[1]}, s92',
          f's_add_u32 {SD[3]}, {SD[0]}, s93', f's_add_u32 {SD[4]}, {SD[3]}, s92', f's_add_u32 {SD[5]}, {SD[4]}, s92',
          f'v_mad_u32_u24 v{VD}, v{VROW}, {SSTR}, v{VSWZ}',
          f's_add_u32 {SDPH}, {SDPH}, 1']
    return r

def dma_pair():
    r = []
    for q in range(6):
        r += [f's_add_u32 m0, {SDSLOT}, {q*4096}', f'buffer_load_dwordx4 v{VD}, {S_WA}, {SD[q]} offen lds']
    return r
def dma_adv():
    return [f'v_add_u32 v{VD}, {SINC}, v{VD}',
            f's_add_u32 {SDSLOT}, {SDSLOT}, {SLOT}', f's_cmp_ge_u32 {SDSLOT}, {RING}', f's_cselect_b32 s67, {RING}, 0', f's_sub_u32 {SDSLOT}, {SDSLOT}, s67']

def xn_reg(ct, kk): return (ct * 20 + kk) * 4
def xn_loads(kk0):
    r = []
    for ct in range(2):
        r.append(f's_add_u32 s91, {SXN}, {ct*20480 + kk0*1024}')
        for j in range(2):
            b = xn_reg(ct, kk0 + j)
            r.append(f'buffer_load_dwordx4 a[{b}:{b+3}], v{VL16}, {S_WS}, s91 offen offset:{j*1024} sc1')
    return r
def y_out(i):
    r = [f's_add_u32 s91, {SOUT}, {i*4096}']
    for tt in range(4):
        for ct in range(2):
            b = ACC + (i & 1) * 32 + (tt * 2 + ct) * 4
            for x in range(2): r.append(f'v_cvt_pk_bf16_f32 v{STG+4*tt+2*ct+x}, v{b+2*x}, v{b+2*x+1}')
        r.append(f'buffer_store_dwordx4 v[{STG+4*tt}:{STG+4*tt+3}], v{VL16}, {S_WS}, s91 offen offset:{tt*1024} sc1')
    return r

LA = 6
def wread(f):
    q, tt = f >> 2, f & 3
    b = WB + (f % 12) * 4
    return [f'ds_read_b64_tr_b16 v[{b+2*x}:{b+2*x+1}], v{VRD+tt} offset:{q*4096 + x*2048}' for x in range(2)]
def rd_advance():
    return [f's_add_u32 {SRSLOT}, {SRSLOT}, {SLOT}', f's_cmp_ge_u32 {SRSLOT}, {RING}', f's_cselect_b32 s67, {RING}, 0', f's_sub_u32 {SRSLOT}, {SRSLOT}, s67']

def phase(a, kind, opt):
    XW = [36, 38, 44, 50, 56]
    for i in range(10):
        early = []
        if kind == 'X' and i >= 1: early += xn_loads(2*i - 2)
        if kind == 'Y' and i >= 1: early += [None, None] + y_out(i - 1)
        early += dma_adv()
        if i == 5: early += dma_switch()
        early += rd_advance()
        late = dma_pair()
        ne = len(early); nl = len(late)
        if kind == 'X' and i < 5: a(f's_waitcnt vmcnt({XW[i]})')
        for n in range(48):
            f, ct = n >> 1, n & 1
            q, tt = f >> 2, f & 3
            w = WB + (f % 12) * 4
            if n % 4 == 0: a(f's_waitcnt lgkmcnt({2*LA - 4})')
            if kind == 'X':
                kk = 2*i + q // 3; t = (q % 3) * 4 + tt
                d = ACC + (t * 2 + ct) * 4; x = xn_reg(ct, kk)
                a(f'v_mfma_f32_16x16x32_bf16 v[{d}:{d+3}], v[{w}:{w+3}], a[{x}:{x+3}], ' + ('0' if kk == 0 else f'v[{d}:{d+3}]'))
            else:
                d = ACC + (i & 1) * 32 + (tt * 2 + ct) * 4; x = VFR + (ct * 6 + q) * 4
                a(f'v_mfma_f32_16x16x32_bf16 v[{d}:{d+3}], v[{x}:{x+3}], v[{w}:{w+3}], ' + ('0' if q == 0 else f'v[{d}:{d+3}]'))
            if n == 35:
                a(f's_waitcnt vmcnt({20 if (kind == "X" and i == 2) else 34})'); a('s_barrier')
                if kind == 'X' and i == 2:
                    a(f'buffer_store_dword v{VONE}, v{VFLG}, {S_WS}, {SFLG} offen sc1'); a(f's_mov_b32 {SFLG}, {OOB}')
            fr = f + LA
            if fr >= 24 and fr < 28 and ct == 0: a(f'v_add_u32 v{VRD + (fr & 3)}, {SRSLOT}, v{VR0 + (fr & 3)}')
            a(wread(fr % 24)[ct])
            if n < 35:
                k = (ne * (n + 1) + 34) // 35 - (ne * n + 34) // 35
                for _ in range(k):
                    s_ = early.pop(0)
                    if s_: a(s_)
            elif n >= 36:
                k = (nl * (n - 35) + 11) // 12 - (nl * (n - 36) + 11) // 12
                for _ in range(k): a(late.pop(0))
        assert not early and not late

def allred(op, v, t):
    r = []
    for st in (16, 32): r += [f'v_mov_b32 v{t}, v{v}', f'v_permlane{st}_swap_b32 v{v}, v{t}', f'{op} v{v}, v{v}, v{t}']
    return r

def ln_loads(a):
    lanefn(a, VT0, lambda l: (l & 15) * 1280 + (l >> 4) * 8, VT1, 5 * 64)
    a(f's_mul_i32 s68, {SG}, {16*1280}')
    for k in range(5):
        for x in range(2): a(f'buffer_load_dwordx2 v[{32+4*k+2*x}:{33+4*k+2*x}], v{VT0}, {S_X}, s68 offen offset:{k*64 + x*32}')

def ln_compute(a, nafter):
    F = 64; T = 20
    a(f's_waitcnt vmcnt({nafter})')
    for j in range(20):
        a(f'v_lshlrev_b32 v{F+2*j}, 16, v{32+j}'); a(f'v_and_b32 v{F+2*j+1}, 0xffff0000, v{32+j}')
    def tree(dst, first, step, j0=1):
        a(first)
        for j in range(j0, 20): a(step(j))
        a(f'v_add_f32 v{dst}, v{dst}, v{dst+1}')
    def xchg(v, off):
        for s_ in allred('v_add_f32', v, T + 8): a(s_)
        a(f'ds_write_b32 v{T+10}, v{v} offset:{off}'); a('s_waitcnt lgkmcnt(0)'); a('s_barrier')
        a(f'ds_read_b128 v[{T+4}:{T+7}], v{T+11} offset:{off}'); a('s_waitcnt lgkmcnt(0)')
        a(f'v_add_f32 v{T+4}, v{T+4}, v{T+5}'); a(f'v_add_f32 v{T+6}, v{T+6}, v{T+7}'); a(f'v_add_f32 v{v}, v{T+4}, v{T+6}')
    lanefn(a, T + 11, lambda l: LDS_LN + (l & 15) * 16, T + 9)
    a(f's_lshl_b32 s67, {SWV}, 2'); a(f'v_add_u32 v{T+10}, s67, v{T+11}')
    tree(T, f'v_pk_add_f32 v[{T}:{T+1}], v[{F}:{F+1}], v[{F+2}:{F+3}]', lambda j: f'v_pk_add_f32 v[{T}:{T+1}], v[{T}:{T+1}], v[{F+2*j}:{F+2*j+1}]', 2)
    xchg(T, 0)
    a(f's_mov_b32 s67, {f2u(-1.0/640):#x}')
    a(f'v_mul_f32 v{T}, s67, v{T}'); a(f'v_mov_b32 v{T+1}, v{T}')
    G = 112
    for j in range(20): a(f'v_pk_add_f32 v[{G+2*j}:{G+2*j+1}], v[{F+2*j}:{F+2*j+1}], v[{T}:{T+1}]')
    tree(T + 2, f'v_pk_mul_f32 v[{T+2}:{T+3}], v[{G}:{G+1}], v[{G}:{G+1}]',
         lambda j: f'v_pk_fma_f32 v[{T+2}:{T+3}], v[{G+2*j}:{G+2*j+1}], v[{G+2*j}:{G+2*j+1}], v[{T+2}:{T+3}]')
    xchg(T + 2, 256)
    def rnd(v): a(f'v_cvt_pk_bf16_f32 v{v}, v{v}, v{v}'); a(f'v_lshlrev_b32 v{v}, 16, v{v}')
    a(f's_mov_b32 s67, {f2u(1.0/640):#x}'); a(f'v_mul_f32 v{T+2}, s67, v{T+2}'); rnd(T + 2)
    a(f'v_add_f32 v{T+2}, {f2u(1e-5):#x}, v{T+2}'); rnd(T + 2)
    a(f'v_sqrt_f32 v{T+2}, v{T+2}'); rnd(T + 2)
    a(f'v_rcp_f32 v{T+2}, v{T+2}'); a(f'v_mov_b32 v{T+3}, v{T+2}')
    rnd(T); a(f'v_mov_b32 v{T+1}, v{T}')
    for j in range(20):
        p = F + 2*j
        a(f'v_pk_add_f32 v[{p}:{p+1}], v[{p}:{p+1}], v[{T}:{T+1}]')
    for j in range(20): a(f'v_cvt_pk_bf16_f32 v{32+j}, v{F+2*j}, v{F+2*j+1}')
    for j in range(20):
        a(f'v_lshlrev_b32 v{F+2*j}, 16, v{32+j}'); a(f'v_and_b32 v{F+2*j+1}, 0xffff0000, v{32+j}')
    for j in range(20): a(f'v_pk_mul_f32 v[{F+2*j}:{F+2*j+1}], v[{F+2*j}:{F+2*j+1}], v[{T+2}:{T+3}]')
    for j in range(20): a(f'v_cvt_pk_bf16_f32 v{32+j}, v{F+2*j}, v{F+2*j+1}')
    a(f's_mul_i32 s68, {SG}, 20480'); a(f's_mul_i32 s67, {SWV}, 5120'); a('s_add_u32 s68, s68, s67'); a(f's_add_u32 s68, s68, {XN_OFF}')
    a('s_add_u32 s69, s68, 4096')
    for k in range(5):
        a(f'buffer_store_dwordx4 v[{32+4*k}:{35+4*k}], v{VL16}, {S_WS}, {"s68" if k < 4 else "s69"} offen offset:{(k&3)*1024} sc1')
    a('s_waitcnt vmcnt(0)'); a('s_barrier')
    a(f's_add_u32 s68, {SG}, {DBG_LNB}')
    a(f'buffer_store_byte v{VONE}, v{VFLG}, {S_DBG}, s68 offen sc1')

def gstamp(a, opt, idx):
    if not opt.get('gstamps'): return
    a('s_memrealtime s[96:97]'); a('s_waitcnt lgkmcnt(0)')
    a(f's_lshl_b32 s98, {SG}, 8');
    if isinstance(idx, int): a(f's_add_u32 s98, s98, {idx*4}')
    else: a(f's_lshl_b32 s99, {idx[0]}, 2'); a('s_add_u32 s98, s98, s99'); a(f's_add_u32 s98, s98, {idx[1]*4}')
    a(f's_add_u32 s98, s98, {STAMP_OFF + 0x100000}')
    a(f'v_mov_b32 v{VT0}, s96')
    a(f'buffer_store_dword v{VT0}, v{VFLG}, {S_WS}, s98 offen')

def gemm_main(a, opt):
    a(f's_sub_u32 {SG}, {SSLOT}, 64'); a(f's_mul_i32 {SCOMBO}, {SG}, 171'); a(f's_lshr_b32 {SCOMBO}, {SCOMBO}, 9')
    a(f's_mul_i32 s67, {SCOMBO}, 3'); a(f's_sub_u32 {SG3}, {SG}, s67')
    a(f's_mov_b32 {STMO}, {opt.get("tmo", 1 << 21)}')
    srd(a, S_X, 's[36:37]', 2048*640*2); srd(a, S_OUT, 's[56:57]', 2048*640*2); srd(a, S_WA, 's[40:41]', 0)
    a(f'v_lshlrev_b32 v{VL16}, 4, v0')
    a(f'v_mov_b32 v{VONE}, 1'); a(f'v_cmp_eq_u32 vcc, 0, v0'); a(f'v_mov_b32 v{VT0}, 0x40000000'); a(f'v_cndmask_b32 v{VFLG}, v{VT0}, 0, vcc')
    lnl, lnc = a.label('Lnoln'), a.label('Lnoln')
    a(f's_cmp_ge_u32 {SG}, 128'); a(f's_cbranch_scc1 {lnl}')
    ln_loads(a)
    a(f'{lnl}:')
    gstamp(a, opt, 0)
    a(f'v_lshrrev_b32 v{VROW}, 3, v0'); a(f'v_and_b32 v{VT0}, 6, v{VROW}'); a(f'v_and_b32 v{VSWZ}, 7, v0')
    a(f'v_xor_b32 v{VSWZ}, v{VSWZ}, v{VT0}'); a(f'v_lshlrev_b32 v{VSWZ}, 4, v{VSWZ}')
    a(f's_mov_b32 {SDPH}, 0'); a(f's_lshl_b32 {SDSLOT}, {SWV}, 10'); a(f's_mov_b32 {SRSLOT}, 0')
    for s_ in dma_switch(): a(s_)
    for j in range(5):
        for s_ in dma_pair() + (dma_adv() if j < 4 else []): a(s_)
    row = lambda l: 4*((l >> 4) & 1) + ((l >> 2) & 3)
    lanefn(a, VT0, lambda l: (row(l) & 6) | ((l >> 1) & 1), VT1)
    lanefn(a, VR0, lambda l: (l >> 5)*1024 + row(l)*128 + (l & 1)*8, VT1)
    a(f'v_lshl_add_u32 v{VR0}, v{VT0}, 4, v{VR0}')
    for tt in range(1, 4): a(f'v_xor_b32 v{VR0+tt}, {tt*32}, v{VR0}')
    for tt in range(4): a(f'v_mov_b32 v{VRD+tt}, v{VR0+tt}')
    a(f's_cmp_ge_u32 {SG}, 128'); a(f's_cbranch_scc1 {lnc}')
    ln_compute(a, 30 + (1 if opt.get('gstamps') else 0))
    a(f'{lnc}:')
    gstamp(a, opt, 1)
    lp, ld = a.label('Lgp'), a.label('Lgd')
    a(f'v_lshlrev_b32 v{VT1}, 2, v0')
    a(f'v_mov_b32 v17, 0x01010101'); a(f'v_mov_b32 v18, 64'); a(f'v_cmp_eq_u32 vcc, {DBG_READY}, v0'); a('v_cndmask_b32 v17, v17, v18, vcc')
    a(f's_mov_b32 s92, {0 if opt.get("no_chain") else 1 << DBG_READY}'); a('s_mov_b32 s93, -1')
    a(f'{lp}:')
    a(f'buffer_load_dword v{VT0}, v{VT1}, {S_DBG}, 0 offen sc1'); a('s_waitcnt vmcnt(0)')
    a(f'v_cmp_ne_u32 vcc, v17, v{VT0}'); a('s_and_b64 vcc, vcc, s[92:93]')
    poll_tail(a, lp, ld)
    gstamp(a, opt, 2)
    a(f's_mov_b32 {SPH}, 0'); a(f's_mov_b32 {SFLG}, {OOB}')
    for s_ in task_info(SPH, SKIND, STILE, SHD): a(s_)
    def xn_base(tile):
        a(f's_lshl_b32 {SXN}, {tile}, 2'); a(f's_add_u32 {SXN}, {SXN}, {SWV}'); a(f's_mul_i32 {SXN}, {SXN}, 40960');
        if XN_OFF: a(f's_add_u32 {SXN}, {SXN}, {XN_OFF}')
    xn_base(STILE)
    for kk in range(20):
        for ct in range(2):
            b = xn_reg(ct, kk)
            a(f's_add_u32 s91, {SXN}, {ct*20480 + kk*1024}')
            a(f'buffer_load_dwordx4 a[{b}:{b+3}], v{VL16}, {S_WS}, s91 offen sc1')
    a('s_barrier')
    for f in range(LA):
        for s_ in wread(f): a(s_)
    lx, ly, lnq, lfin, lnr = [a.label('Lph') for _ in range(5)]
    a(f'{lx}:')
    a(f's_lshr_b32 s69, {SPH}, 1'); a('s_add_u32 s69, s69, 1')
    for s_ in task_info('s69', SK2, ST2, SH2): a(s_)
    a(f's_and_b32 s67, {SPH}, 1'); a(f's_or_b32 s67, s67, {SKIND}'); a('s_cmp_eq_u32 s67, 0'); a(f's_cselect_b32 {ST2}, {STILE}, {ST2}')
    a('s_cselect_b32 s69, 0, s69')
    xn_base(ST2)
    a('s_cmp_ge_u32 s69, 6'); a(f's_cselect_b32 {SXN}, {OOB}, {SXN}')
    phase(a, 'X', opt)
    for s_ in xn_loads(18): a(s_)
    for ct in range(2):
        for ks in range(6):
            for x in range(4):
                b = ACC + ((2*ks + (x >> 1)) * 2 + ct) * 4 + (x & 1) * 2
                a(f'v_cvt_pk_bf16_f32 v{VFR + (ct*6+ks)*4 + x}, v{b}, v{b+1}')
    a(f's_lshl_b32 s69, {STILE}, 2'); a(f's_add_u32 s69, s69, {SWV}')
    a(f's_cmp_lg_u32 {SKIND}, 0'); a(f's_cbranch_scc1 {lnq}')
    a('s_lshl_b32 s67, s69, 5'); a(f's_add_u32 s67, s67, {SHD}'); a('s_mul_i32 s67, s67, 12288')
    a(f's_bitcmp1_b32 {SPH}, 0'); a(f's_cselect_b32 s68, {KF_OFF - QF_OFF}, 0'); a('s_add_u32 s67, s67, s68'); a(f's_add_u32 s67, s67, {QF_OFF}')
    for j in range(12):
        if j % 4 == 0 and j: a('s_add_u32 s67, s67, 4096')
        a(f'buffer_store_dwordx4 v[{VFR+4*j}:{VFR+4*j+3}], v{VL16}, {S_WS}, s67 offen offset:{(j&3)*1024} sc1')
    gstamp(a, opt, (SPH, 4))
    a(f's_add_u32 {SPH}, {SPH}, 1'); a(f's_bitcmp1_b32 {SPH}, 0'); a(f's_cbranch_scc1 {lx}')
    a(f's_lshl_b32 {SFLG}, {SHD}, 2')
    a(f's_branch {lfin}')
    a(f'{lnq}:')
    a(f's_cmp_lg_u32 {SKIND}, 2'); a(f's_cbranch_scc1 {lnr}')
    for j in range(48): a(f'v_pk_max_i16 v{VFR+j}, v{VFR+j}, 0')
    a(f's_add_u32 {SHD}, {SHD}, 32')
    a(f'{lnr}:')
    a('s_mul_i32 s67, s69, 40'); a(f's_add_u32 s67, s67, {SHD}'); a(f's_mul_i32 {SOUT}, s67, 40960'); a(f's_add_u32 {SOUT}, {SOUT}, {VOF_OFF}')
    gstamp(a, opt, (SPH, 4))
    a(f's_add_u32 {SPH}, {SPH}, 1')
    phase(a, 'Y', opt)
    for s_ in y_out(9): a(s_)
    gstamp(a, opt, (SPH, 4))
    a(f's_add_u32 {SPH}, {SPH}, 1')
    a(f's_lshl_b32 {SFLG}, {SHD}, 2'); a(f's_add_u32 {SFLG}, {SFLG}, 128')
    a(f'{lfin}:')
    a(f's_lshl_b32 s67, {STILE}, 9'); a(f's_add_u32 {SFLG}, {SFLG}, s67'); a(f's_add_u32 {SFLG}, {SFLG}, {FLAG_OFF}')
    a(f's_lshr_b32 s69, {SPH}, 1')
    for s_ in task_info('s69', SKIND, STILE, SHD): a(s_)
    a(f's_cmp_lt_u32 {SPH}, 12'); a(f's_cbranch_scc1 {lx}')
    a('s_waitcnt vmcnt(0) lgkmcnt(0)'); a('s_barrier')
    a(f'buffer_store_dword v{VONE}, v{VFLG}, {S_WS}, {SFLG} offen sc1')
    gstamp(a, opt, 16)
    if opt.get('no3b'):
        a('s_waitcnt vmcnt(0)'); a('s_endpgm'); return
    final_tasks(a, opt)

def final_tasks(a, opt):
    SJ, SSEG, SDT = 's70', 's71', 's72'
    VM, A0, G0, PB, ID, XR, GV = 16, 48, 56, 64, 128, 136, 140
    VMO, VXO, VPR, VFO, VPO = 150, 151, 152, 153, 154
    T0, T1 = 156, 157
    a(f'v_and_b32 v{T0}, 15, v0'); a(f'v_lshrrev_b32 v{T1}, 4, v0'); a(f'v_lshlrev_b32 v{T1}, 2, v{T1}'); a(f'v_sub_u32 v{T0}, v{T0}, v{T1}')
    for r in (0, 1, 4, 5): a(f'v_mov_b32 v{ID+r}, 0')
    a(f'v_mov_b32 v{T1}, 0x3f80'); a(f'v_mov_b32 v{GV}, 0x3f800000')
    for d in range(2):
        a(f'v_cmp_eq_u32 vcc, {2*d}, v{T0}'); a(f'v_cndmask_b32 v{ID+2+d}, 0, v{T1}, vcc')
        a(f'v_cmp_eq_u32 vcc, {2*d+1}, v{T0}'); a(f'v_cndmask_b32 v{ID+2+d}, v{ID+2+d}, v{GV}, vcc')
    lanefn(a, VMO, lambda l: (l >> 4)*10240 + (l & 15)*16, T0)
    lanefn(a, VXO, lambda l: (l & 15)*1280 + (l >> 4)*8, T0)
    a(f'v_min_u32 v{VFO}, 39, v0'); a(f'v_lshlrev_b32 v{VFO}, 2, v{VFO}')
    a(f's_mov_b32 {SJ}, {SG}')
    ltop, lp, ld, lq, lqd, lw = [a.label('Lfb') for _ in range(6)]
    a(f'{ltop}:')
    a(f's_mul_i32 {SSEG}, {SJ}, 205'); a(f's_lshr_b32 {SSEG}, {SSEG}, 11'); a(f's_mul_i32 s67, {SSEG}, 10'); a(f's_sub_u32 {SDT}, {SJ}, s67')
    a(f's_lshl_b32 {SDT}, {SDT}, 2'); a(f's_add_u32 {SDT}, {SDT}, {SWV}')
    a(f's_lshr_b32 s73, {SSEG}, 2'); a('s_lshl_b32 s73, s73, 9'); a(f's_add_u32 s73, s73, {FLAG_OFF + 128}')
    a(f'{lp}:')
    a(f'buffer_load_dword v{T0}, v{VFO}, {S_WS}, s73 offen sc1'); a('s_waitcnt vmcnt(0)')
    a(f'v_cmp_ne_u32 vcc, 1, v{T0}')
    poll_tail(a, lp, ld)
    a(f's_mul_i32 s73, {SSEG}, {40*40960}'); a(f's_lshl_b32 s67, {SDT}, 10'); a('s_add_u32 s73, s73, s67'); a(f's_add_u32 s73, s73, {VOF_OFF}')
    a(f's_add_u32 s74, s73, {32*40960}')
    for hh in range(32, 40):
        a(f'buffer_load_dwordx4 a[{4*hh}:{4*hh+3}], v{VL16}, {S_WS}, s74 offen sc1'); a('s_add_u32 s74, s74, 40960')
    a(f's_mul_i32 s75, {SSEG}, {32*1280}'); a(f's_lshl_b32 s67, {SDT}, 5'); a('s_add_u32 s75, s75, s67'); a(f's_add_u32 s76, s75, {16*1280}')
    for qt in range(2): a(f'buffer_load_dwordx2 v[{XR+2*qt}:{XR+2*qt+1}], v{VXO}, {S_X}, s{75+qt} offen')
    for hh in range(32):
        a(f'buffer_load_dwordx4 a[{4*hh}:{4*hh+3}], v{VL16}, {S_WS}, s73 offen sc1'); a('s_add_u32 s73, s73, 40960')
    for hh in range(32, 40):
        a(f's_waitcnt vmcnt({34 + 39 - hh})')
        for qt in range(2):
            d = G0 + 4*qt; b = ID + 2 - 2*qt
            a(f'v_mfma_f32_16x16x32_bf16 v[{d}:{d+3}], a[{4*hh}:{4*hh+3}], v[{b}:{b+3}], ' + ('0' if hh == 32 else f'v[{d}:{d+3}]'))
    def rnd8(src, dst):
        for j in range(4): a(f'v_cvt_pk_bf16_f32 v{PB+j}, v{src+2*j}, v{src+2*j+1}')
        for j in range(4): a(f'v_lshlrev_b32 v{dst+2*j}, 16, v{PB+j}'); a(f'v_and_b32 v{dst+2*j+1}, 0xffff0000, v{PB+j}')
    rnd8(G0, G0)
    a(f's_mov_b32 s67, {f2u(-1.4426950408889634):#x}')
    for j in range(8): a(f'v_mul_f32 v{GV+j}, s67, v{G0+j}')
    for j in range(8): a(f'v_exp_f32 v{GV+j}, v{GV+j}')
    for j in range(8): a(f'v_add_f32 v{GV+j}, 1.0, v{GV+j}')
    for j in range(8): a(f'v_rcp_f32 v{GV+j}, v{GV+j}')
    for j in range(8): a(f'v_mul_f32 v{GV+j}, v{GV+j}, v{G0+j}')
    rnd8(GV, GV)
    a(f's_cmp_lg_u32 {SWV}, 0'); a(f's_cbranch_scc1 {lw}')
    a(f's_mov_b32 s73, {PROG_OFF}')
    a(f'{lq}:')
    a(f'buffer_load_dwordx4 v[{PB}:{PB+3}], v{VL16}, {S_WS}, s73 offen sc1'); a('s_waitcnt vmcnt(0)')
    a(f'v_min3_u32 v{PB}, v{PB}, v{PB+1}, v{PB+2}'); a(f'v_min_u32 v{PB}, v{PB}, v{PB+3}')
    a(f'v_cmp_ge_u32 vcc, {SSEG}, v{PB}')
    a(f's_cbranch_vccz {lqd}')
    a(f's_sleep {opt.get("psleep", 4)}')
    budget_loop(a, lq, lqd)
    a(f'{lqd}:')
    a(f'{lw}:')
    a('s_barrier')
    a(f's_mul_i32 s73, {SSEG}, {32*10240}'); a(f's_lshl_b32 s67, {SDT}, 8'); a('s_add_u32 s73, s73, s67'); a(f's_add_u32 s73, s73, {VOM_OFF}')
    a(f's_lshl_b32 s74, {SWV}, 10'); a(f's_lshl_b32 s77, {SSEG}, 16'); a('s_add_u32 s77, s77, s74'); a(f's_add_u32 s77, s77, {P3X_OFF}')
    a(f's_lshl_b32 s78, {SSEG}, 14'); a('s_add_u32 s78, s78, s74'); a(f's_add_u32 s78, s78, {P3M_OFF}')
    for n in range(20):
        a(f's_add_u32 m0, s74, {n*4096}')
        a(f'buffer_load_dwordx4 v{VL16}, {S_WS}, {"s77" if n < 16 else "s78"} offen sc1 lds')
        a(f's_add_u32 {"s77" if n < 16 else "s78"}, {"s77" if n < 16 else "s78"}, 4096')
        if n == 4:
            for m in range(8):
                a(f'buffer_load_dwordx4 v[{VM+4*m}:{VM+4*m+3}], v{VMO}, {S_WS}, s73 offen sc1'); a('s_add_u32 s73, s73, 40960')
    a(f'v_add_u32 v{VPR}, 32768, v{VL16}')
    for st in range(4):
        a(f's_waitcnt vmcnt({[23, 10, 5, 0][st]})'); a('s_barrier')
        def rd(c):
            base, off = (VL16, c*1024) if c < 32 else (VPR, c*1024 - 32768)
            b = PB + (c % 16) * 4
            a(f'ds_read_b128 v[{b}:{b+3}], v{base} offset:{off}')
        for c in range(20*st, 20*st + 8): rd(c)
        for c in range(20*st, 20*st + 20):
            left = min(20*st + 20, c + 8) - c - 1
            a(f's_waitcnt lgkmcnt({left})')
            h2, qt = c >> 1, c & 1
            A = f'a[{4*h2}:{4*h2+3}]' if c < 64 else f'v[{VM+4*(h2-32)}:{VM+4*(h2-32)+3}]'
            d = A0 + 4*qt; b = PB + (c % 16) * 4
            a(f'v_mfma_f32_16x16x32_bf16 v[{d}:{d+3}], {A}, v[{b}:{b+3}], ' + ('0' if c < 2 else f'v[{d}:{d+3}]'))
            if c + 8 < 20*st + 20: rd(c + 8)
    rnd8(A0, A0)
    for j in range(8): a(f'v_mul_f32 v{A0+j}, v{A0+j}, v{GV+j}')
    rnd8(A0, A0)
    for j in range(4): a(f'v_lshlrev_b32 v{G0+2*j}, 16, v{XR+j}'); a(f'v_and_b32 v{G0+2*j+1}, 0xffff0000, v{XR+j}')
    for j in range(8): a(f'v_add_f32 v{A0+j}, v{A0+j}, v{G0+j}')
    for j in range(4): a(f'v_cvt_pk_bf16_f32 v{A0+j}, v{A0+2*j}, v{A0+2*j+1}')
    for qt in range(2): a(f'buffer_store_dwordx2 v[{A0+2*qt}:{A0+2*qt+1}], v{VXO}, {S_OUT}, s{75+qt} offen')
    if opt.get('gstamps'):
        a(f's_mul_i32 s79, {SJ}, 171'); a('s_lshr_b32 s79, s79, 15')
        gstamp(a, opt, ('s79', 20))
    a(f's_add_u32 {SJ}, {SJ}, 192'); a(f's_cmp_lt_u32 {SJ}, 640'); a(f's_cbranch_scc1 {ltop}')
    a('s_waitcnt vmcnt(0)'); a('s_endpgm')
```

```python
S_TOK, DM, NH, DH, MM, SEG, NSEG, DFF = 2048, 640, 32, 192, 8, 32, 64, 1536
WS_BYTES = 268435456
XN_OFF   = 0x00000000
QF_OFF   = 0x00300000
KF_OFF   = 0x01B00000
VOF_OFF  = 0x03300000
VOM_OFF  = 0x09700000
P3X_OFF  = 0x0AB00000
P3M_OFF  = 0x0AF00000
RING_OFF = 0x0B000000
MEML_OFF = RING_OFF + 0
MEMR_OFF = RING_OFF + 0x14000
PA_OFF   = RING_OFF + 0x28000
VOMR_OFF = RING_OFF + 0x40000
FLAG_OFF = 0x0B200000
PROG_OFF = FLAG_OFF + 0x2000
STAMP_OFF = 0x0B300000
DBG_RANK = 0
DBG_OVF = 8
DBG_READY = 9
DBG_LN = 16
LDS_RING = 0
LDS_SLAB = 12288
LDS_MEM = 147456
LDS_EX = LDS_MEM + 12736
LDS_MISC = LDS_EX + 3072
LDS_TOTAL = 163840
```

```python
import sys
sys.path.insert(0, "dev")
from asmdsl import Asm
from layout import *
from gen_chain import *

NAME = "recurrent_scan__memory_aug_recurrent_mem_tr__dense_activation_relu__prompt"

def prologue(a, opt):
    a('s_cmp_ge_u32 s2, 256'); a('s_cbranch_scc1 L_end')
    a('s_load_dwordx16 s[36:51], s[0:1], 0'); a('s_load_dwordx8 s[52:59], s[0:1], 64'); a('s_load_dwordx2 s[60:61], s[0:1], 96')
    a('v_lshrrev_b32 v1, 6, v0'); a('v_and_b32 v0, 63, v0'); a(f'v_readfirstlane_b32 {SWV}, v1')
    a(f's_getreg_b32 {SXCC}, hwreg(HW_REG_XCC_ID)'); a(f's_and_b32 {SXCC}, {SXCC}, 7')
    if opt.get('fake_xcc') == 1: a(f's_lshr_b32 {SXCC}, s2, 5')
    if opt.get('fake_xcc') == 2: a(f's_lshr_b32 {SXCC}, s2, 6'); a(f's_add_u32 {SXCC}, {SXCC}, 1')
    a('s_waitcnt lgkmcnt(0)')
    srd(a, S_WS, 's[60:61]', WS_BYTES); srd(a, S_DBG, 's[58:59]', 256)
    lw, lov, lgot, lall = a.label('Lp'), a.label('Lov'), a.label('Lgot'), a.label('Lall')
    a(f'v_mov_b32 v4, {LDS_MISC}')
    a(f's_cmp_lg_u32 {SWV}, 0'); a(f's_cbranch_scc1 {lw}')
    def atomic(dw_off_v):
        a('v_mov_b32 v2, 1')
        a('s_mov_b64 exec, 1')
        a(f'buffer_atomic_add v2, v3, {S_DBG}, 0 offen sc0 sc1'); a('s_waitcnt vmcnt(0)')
        a('s_mov_b64 exec, -1')
        a('v_readfirstlane_b32 s6, v2')
    a(f's_lshl_b32 s6, {SXCC}, 2'); a('v_mov_b32 v3, s6')
    atomic(3)
    a(f's_lshl_b32 {SSLOT}, {SXCC}, 5'); a(f's_add_u32 {SSLOT}, {SSLOT}, s6')
    a('s_cmp_lt_u32 s6, 32'); a(f's_cbranch_scc1 {lgot}')
    a(f'v_mov_b32 v3, {DBG_OVF*4}')
    atomic(3)
    a('v_lshlrev_b32 v3, 2, v0'); a(f's_mov_b32 s32, {1 << 20}')
    a(f'{lov}:')
    a(f'buffer_load_dword v2, v3, {S_DBG}, 0 offen sc1'); a('s_waitcnt vmcnt(0)')
    for x in range(8): a(f'v_readlane_b32 s{84+x}, v2, {x}')
    a('s_mov_b32 s7, 0')
    for x in range(8): a(f's_add_u32 s7, s7, s{84+x}')
    a('s_cmp_eq_u32 s32, 0'); a(f's_cbranch_scc1 {lall}')
    a('s_sub_u32 s32, s32, 1')
    a('s_cmp_lt_u32 s7, 256'); a(f's_cbranch_scc1 {lov}')
    a(f'{lall}:')
    for x in range(8):
        a(f's_min_u32 s33, s{84+x}, 32'); a('s_sub_u32 s34, 32, s33')
        a(f's_add_u32 {SSLOT}, s33, s6'); a(f's_add_u32 {SSLOT}, {SSLOT}, {32*x}')
        a('s_cmp_lt_u32 s6, s34'); a(f's_cbranch_scc1 {lgot}')
        a('s_sub_u32 s6, s6, s34')
    a(f's_mov_b32 {SSLOT}, 255')
    a(f'{lgot}:')
    a(f'v_mov_b32 v2, {SSLOT}'); a('ds_write_b32 v4, v2'); a('s_waitcnt lgkmcnt(0)')
    a(f'{lw}:')
    a('s_barrier')
    a('ds_read_b32 v2, v4'); a('s_waitcnt lgkmcnt(0)')
    a(f'v_readfirstlane_b32 {SSLOT}, v2')
    a(f's_and_b32 {SSLOT}, {SSLOT}, 255')

def generate(opt):
    a = Asm()
    prologue(a, opt)
    a(f's_cmp_ge_u32 {SSLOT}, 64'); a('s_cbranch_scc1 L_gemm')
    if opt.get('no_chain'): a('s_endpgm')
    else: chain_main(a, opt)
    a('L_gemm:')
    if opt.get('chain_only'):
        a('s_endpgm')
    else:
        from gen_gemm import gemm_main
        gemm_main(a, opt)
    a('L_end:')
    n = a.fix_hazards(opt.get('verbose'))
    body = a.text()
    hdr = open(f'cdna_kernels/{NAME}.s.ref').read().split('; Override launch geometry')[0]
    kn = NAME + '_kernel'
    out = hdr + f"""; @launch grid=(256,1,1) block=(256,1,1) lds={LDS_TOTAL}
.amdgcn_target "amdgcn-amd-amdhsa--gfx950"
.text
.globl {kn}
.p2align 8
.type {kn},@function
{kn}:
{body}s_endpgm
.section .rodata,"a"
.p2align 6
.amdhsa_kernel {kn}
  .amdhsa_next_free_vgpr 512
  .amdhsa_next_free_sgpr 102
  .amdhsa_accum_offset 256
  .amdhsa_group_segment_fixed_size 0
  .amdhsa_kernarg_size 104
  .amdhsa_user_sgpr_count 2
  .amdhsa_user_sgpr_kernarg_segment_ptr 1
  .amdhsa_system_sgpr_workgroup_id_x 1
.end_amdhsa_kernel
"""
    return out, n, len(a.lines)

if __name__ == '__main__':
    import json
    opt = json.loads(sys.argv[2]) if len(sys.argv) > 2 else {}
    out, n, nl = generate(opt)
    open(sys.argv[1], 'w').write(out)
    print(f'wrote {sys.argv[1]}: {nl} lines, {n} hazard pads, {len(out)} bytes')
```

```python
import re

REG_RE = re.compile(r'^(-|\|)?(abs\()?([vas])(\d+|\[(\d+):(\d+)\])\)?\|?$')

def regs_of(tok):
    tok = tok.strip()
    if tok in ('vcc', 'vcc_lo', 'vcc_hi'): return {('x', 'vcc')}
    if tok in ('exec', 'exec_lo', 'exec_hi'): return {('x', 'exec')}
    if tok == 'm0': return {('x', 'm0')}
    m = REG_RE.match(tok)
    if not m: return set()
    k = m.group(3)
    if m.group(5) is not None:
        return {(k, i) for i in range(int(m.group(5)), int(m.group(6)) + 1)}
    return {(k, int(m.group(4)))}

def split_ops(s):
    ops, depth, cur = [], 0, ''
    for ch in s:
        if ch in '[(': depth += 1
        elif ch in '])': depth -= 1
        if ch == ',' and depth == 0:
            ops.append(cur.strip()); cur = ''
        else: cur += ch
    if cur.strip(): ops.append(cur.strip())
    return ops

TRANS = ('v_exp_f32', 'v_log_f32', 'v_rcp_f32', 'v_rsq_f32', 'v_sqrt_f32', 'v_sin_f32', 'v_cos_f32', 'v_rcp_iflag_f32')

class Ins:
    __slots__ = ('text', 'mn', 'kind', 'wr', 'rd', 'rdA', 'rdC', 'passes', 'states', 'label', 'target', 'data', 'mods', 'uncond', 'sconst')
    def __init__(self, text):
        self.text = text
        self.label = None; self.target = None; self.uncond = False
        self.wr = set(); self.rd = set(); self.rdA = set(); self.rdC = set(); self.data = set(); self.sconst = set()
        self.passes = 0; self.states = 1
        t = text.split(';')[0].strip()
        if t.endswith(':'):
            self.kind = 'label'; self.label = t[:-1]; self.mn = ''; self.states = 0; return
        if t.startswith('.') or not t:
            self.kind = 'dir'; self.mn = ''; self.states = 0; return
        parts = t.split(None, 1)
        mn = self.mn = parts[0]
        rest = parts[1] if len(parts) > 1 else ''
        ops = split_ops(rest)
        mods = []
        ops2 = []
        for o in ops:
            w = o.split()
            ops2.append(w[0]); mods += w[1:]
        ops = ops2; self.mods = mods
        R = regs_of
        if mn.startswith('v_mfma') or mn.startswith('v_smfmac'):
            self.kind = 'mfma'
            self.passes = 8 if ('32x32' in mn) else 4
            self.wr = R(ops[0])
            if mn.startswith('v_smfmac'):
                self.rdA = R(ops[1]) | R(ops[2]) | R(ops[3]); self.rdC = R(ops[0])
            else:
                self.rdA = R(ops[1]) | R(ops[2]); self.rdC = R(ops[3])
            self.rd = self.rdA | self.rdC
        elif mn.startswith('v_'):
            self.kind = 'valu'
            base = mn.replace('_e32', '').replace('_e64', '').replace('_dpp', '').replace('_sdwa', '')
            if base.startswith('v_cmp'):
                self.wr = R(ops[0]); srcs = ops[1:]
                if base.startswith('v_cmpx'): self.wr |= {('x', 'exec')}
            elif base.startswith('v_permlane') and 'swap' in base or base == 'v_swap_b32':
                self.wr = R(ops[0]) | R(ops[1]); srcs = ops
            elif base in ('v_add_co_u32', 'v_sub_co_u32', 'v_addc_co_u32', 'v_subb_co_u32', 'v_subrev_co_u32'):
                self.wr = R(ops[0]) | R(ops[1]); srcs = ops[2:]
            elif base in ('v_fmac_f32', 'v_dot2c_f32_bf16', 'v_pk_fmac_f16', 'v_writelane_b32'):
                self.wr = R(ops[0]); srcs = ops
            elif base == 'v_nop':
                srcs = []
            else:
                self.wr = R(ops[0]); srcs = ops[1:]
            if mn.endswith('_dpp'): srcs = list(srcs) + [ops[0]]
            for s in srcs: self.rd |= R(s)
            if base == 'v_cndmask_b32' and len(ops) == 3: self.rd |= {('x', 'vcc')}
            self.sconst = {r for r in self.rd if r[0] in 's' or r == ('x', 'vcc')}
        elif mn.startswith('ds_'):
            self.kind = 'ds'
            if mn.startswith('ds_read') or mn.startswith('ds_bpermute') or mn.startswith('ds_permute') or mn.startswith('ds_swizzle'):
                self.wr = R(ops[0])
                for s in ops[1:]: self.rd |= R(s)
            else:
                for s in ops: self.rd |= R(s)
        elif mn.startswith('buffer_') or mn.startswith('global_'):
            self.kind = 'vmem'
            if mn.startswith('buffer_load'):
                if 'lds' in mods:
                    for s in ops: self.rd |= R(s)
                    self.rd |= {('x', 'm0')}
                else:
                    self.wr = R(ops[0])
                    for s in ops[1:]: self.rd |= R(s)
            elif mn.startswith('buffer_store'):
                self.data = R(ops[0])
                for s in ops: self.rd |= R(s)
            elif mn.startswith('buffer_atomic'):
                for s in ops: self.rd |= R(s)
                if 'sc0' in mods: self.wr = R(ops[0])
            elif mn.startswith('global_load'):
                self.wr = R(ops[0])
                for s in ops[1:]: self.rd |= R(s)
            elif mn in ('buffer_inv', 'buffer_wbl2'):
                pass
            else:
                raise ValueError('unhandled vmem ' + text)
        elif mn.startswith('s_'):
            self.kind = 'salu'
            if mn == 's_nop':
                self.states = int(ops[0], 0) + 1
            elif mn in ('s_branch',) or mn.startswith('s_cbranch'):
                self.kind = 'branch'; self.target = ops[0]; self.uncond = (mn == 's_branch')
            elif mn == 's_endpgm':
                self.kind = 'end'
            elif mn in ('s_waitcnt', 's_barrier', 's_sleep', 's_setprio', 's_sethalt'):
                pass
            elif mn.startswith('s_cmp') or mn.startswith('s_bitcmp'):
                for s in ops: self.rd |= R(s)
            else:
                self.wr = R(ops[0])
                for s in ops[1:]: self.rd |= R(s)
                if 'saveexec' in mn: self.wr |= {('x', 'exec')}
        else:
            raise ValueError('unknown instr: ' + text)

def need(prod, cons):
    n = 0
    pk, ck = prod.kind, cons.kind
    if pk == 'valu':
        vw = {r for r in prod.wr if r[0] in 'va'}
        sw = {r for r in prod.wr if r[0] == 's' or r == ('x', 'vcc')}
        if ck == 'mfma' and (vw & cons.rd): n = max(n, 2)
        if prod.mn.startswith('v_dot') and cons.mn != prod.mn and (vw & (cons.rd | cons.wr)): n = max(n, 3)
        if ck == 'valu':
            if ('permlane' in cons.mn or cons.mn.endswith('_dpp')) and (vw & cons.rd): n = max(n, 2)
            if (cons.mn.startswith('v_readfirstlane') or cons.mn.startswith('v_readlane')) and (vw & cons.rd): n = max(n, 1)
            if re.sub(r'_e(32|64)$', '', prod.mn) in TRANS and (vw & cons.rd) and re.sub(r'_e(32|64)$', '', cons.mn) not in TRANS: n = max(n, 1)
            if sw & cons.sconst: n = max(n, 4 if ('lane_b32' in cons.mn and not cons.mn.startswith('v_readfirst')) else 2)
            if ('x', 'exec') in prod.wr:
                if cons.mn.endswith('_dpp'): n = max(n, 5)
                if 'lane' in cons.mn: n = max(n, 4)
        if ck == 'vmem' and (sw & cons.rd): n = max(n, 5)
        if ck == 'mfma' and ('x', 'exec') in prod.wr: n = max(n, 4)
        if ck == 'salu' and (sw & cons.rd): n = max(n, 1)
    elif pk == 'mfma':
        P = prod.passes
        big = {4: 8, 8: 12}[P]; ovl = {4: 6, 8: 10}[P]; war = {4: 3, 8: 7}[P]
        if ck == 'mfma':
            if prod.wr & cons.rdA: n = max(n, big)
            if prod.wr & cons.rdC:
                if not (prod.wr == cons.rdC and prod.passes == cons.passes): n = max(n, ovl)
            elif prod.wr & cons.wr: n = max(n, ovl)
        elif ck in ('valu', 'vmem', 'ds'):
            if prod.wr & (cons.rd | cons.wr): n = max(n, big)
            if ck == 'valu' and (prod.rdC & cons.wr): n = max(n, war)
    elif pk == 'vmem':
        if len(prod.data) >= 3 and (prod.data & cons.wr): n = max(n, 2)
    elif pk == 'salu':
        if ('x', 'm0') in prod.wr and ck == 'vmem' and ('x', 'm0') in cons.rd: n = max(n, 1)
    return n

MAXLOOK = 12

class Asm:
    def __init__(self):
        self.lines = []
        self.uid = 0
    def e(self, s):
        for ln in s.split('\n'):
            ln = ln.strip()
            if ln: self.lines.append(ln)
    __call__ = e
    def label(self, base='L'):
        self.uid += 1
        return f'{base}_{self.uid}'
    def fix_hazards(self, verbose=False):
        ins = [Ins(l) for l in self.lines]
        total_added = 0
        out = []
        for c in ins:
            if c.kind not in ('label', 'dir', 'branch', 'end'):
                d = 0; worst = 0; j = len(out) - 1; ms = None
                while j >= 0 and d < MAXLOOK:
                    p = out[j]
                    if p.kind == 'end' or (p.kind == 'branch' and p.uncond): break
                    if p.kind not in ('label', 'dir'):
                        n = need(p, c)
                        e = d
                        if p.kind == 'mfma' and ms is not None: e = max(d, ms + p.passes)
                        if n > e: worst = max(worst, n - e)
                    if p.kind == 'mfma': ms = d if ms is None else ms + p.passes
                    d += p.states; j -= 1
                if worst:
                    out.append(Ins(f's_nop {worst-1}')); total_added += 1
                    if verbose: print('hazard pad', worst, 'before', c.text)
            out.append(c)
        ins = out
        for it in range(50):
            lab = {x.label: i for i, x in enumerate(ins) if x.kind == 'label'}
            preds = [[] for _ in ins]
            for i, x in enumerate(ins):
                if i + 1 < len(ins) and not (x.kind == 'end' or (x.kind == 'branch' and x.uncond)):
                    preds[i + 1].append(i)
                if x.kind == 'branch': preds[lab[x.target]].append(i)
            adds = {}
            for i, c in enumerate(ins):
                if c.kind in ('label', 'dir', 'branch', 'end'): continue
                stack = [(p, 0, -1) for p in preds[i]]
                seen = set()
                worst = 0
                while stack:
                    j, d, ms = stack.pop()
                    if (j, d, ms) in seen: continue
                    seen.add((j, d, ms))
                    p = ins[j]
                    if p.kind not in ('label', 'dir'):
                        n = need(p, c)
                        e = d
                        if p.kind == 'mfma' and ms >= 0: e = max(d, ms + p.passes)
                        if n > e: worst = max(worst, n - e)
                    if p.kind == 'mfma': ms = d if ms < 0 else ms + p.passes
                    d2 = d + p.states
                    if d2 < MAXLOOK:
                        for q in preds[j]: stack.append((q, d2, ms))
                if worst: adds[i] = worst
            if not adds: break
            out = []
            last_added_at = -100
            for i, x in enumerate(ins):
                if i in adds and (i - last_added_at) > MAXLOOK + 4:
                    out.append(Ins(f's_nop {adds[i]-1}')); total_added += 1; last_added_at = i
                    if verbose: print('hazard pad', adds[i], 'before', x.text)
                out.append(x)
            ins = out
        else:
            raise RuntimeError('hazard fixing did not converge')
        self.lines = [x.text for x in ins]
        return total_added
    def text(self):
        return '\n'.join(self.lines) + '\n'
```

```python
from asmdsl import Asm
from layout import *
import struct
def f2u(x): return struct.unpack('<I', struct.pack('<f', x))[0]

class Trk:
    def __init__(self, a, name, maxn):
        self.a, self.name, self.maxn = a, name, maxn
        self.q = []; self.done = 0
    def reset(self): self.q = []; self.done = 0
    def issue(self, tag): self.q.append(tag)
    def wait(self, *tags):
        idx = -1
        for i in range(len(self.q) - 1, self.done - 1, -1):
            if self.q[i] in tags: idx = i; break
        if idx < self.done: return False
        n = min(len(self.q) - 1 - idx, self.maxn)
        self.a(f's_waitcnt {self.name}({n})')
        self.done = len(self.q) - n
        return True
    def all(self):
        self.a(f's_waitcnt {self.name}(0)'); self.done = len(self.q)

S_WS, S_DBG, S_WA, S_WB, S_AUX, S_OUT = 's[8:11]', 's[12:15]', 's[16:19]', 's[20:23]', 's[24:27]', 's[28:31]'
SWV, SXCC, SSLOT = 's3', 's4', 's5'
STMO = 's65'
STAMP0 = 84

def srd(a, dst, ptr, nbytes):
    b = int(dst[2:dst.index(':')]); p = int(ptr[2:ptr.index(':')])
    a(f's_mov_b32 s{b}, s{p}'); a(f's_mov_b32 s{b+1}, s{p+1}')
    a(f's_mov_b32 s{b+2}, {nbytes}'); a(f's_mov_b32 s{b+3}, 0x20000')

def lanefn(a, dst, f, tmp, wave_mul=0):
    c = f(0); w = [f(1 << i) - c for i in range(6)]
    for l in range(64): assert f(l) == c + sum(w[i] for i in range(6) if l >> i & 1), ('not bit-affine', l)
    if wave_mul:
        a(f's_mul_i32 s67, {SWV}, {wave_mul}'); a(f's_add_u32 s67, s67, {c & 0xffffffff}'); a(f'v_mov_b32 v{dst}, s67')
    else: a(f'v_mov_b32 v{dst}, {c & 0xffffffff}')
    i = 0
    while i < 6:
        if w[i] == 0: i += 1; continue
        n = 1
        while i + n < 6 and w[i + n] == w[i] << n: n += 1
        a(f'v_bfe_u32 v{tmp}, v0, {i}, {n}'); a(f's_mov_b32 s67, {w[i] & 0xffffffff}')
        a(f'v_mad_i32_i24 v{dst}, v{tmp}, s67, v{dst}')
        i += n

def budget_loop(a, lp, lout):
    a(f's_cmp_eq_u32 {STMO}, 0'); a(f's_cbranch_scc1 {lout}')
    a(f's_sub_u32 {STMO}, {STMO}, 1'); a(f's_branch {lp}')

def poll_tail(a, lpoll, ldone):
    a(f's_cbranch_vccz {ldone}')
    budget_loop(a, lpoll, ldone)
    a(f'{ldone}:')

def stamp(a, opt, i):
    if opt.get('stamps'): a(f's_mem{"" if opt.get("cyc") else "real"}time s[{STAMP0+2*i}:{STAMP0+2*i+1}]')

def merge(a, lg, items, side):
    from asmdsl import Ins
    txt = lambda s: s if isinstance(s, str) else (s[1] if not callable(s) and s[0] == 'lds' else None)
    isv = lambda s: isinstance(s, str) and s.startswith('v_')
    def emit(s):
        if isinstance(s, str): a(s)
        elif callable(s): s()
        elif s[0] == 'lds': a(s[1]); lg.issue(s[2])
        elif s[0] == 'wait': lg.wait(*s[1:])
    def run(lst, nxt):
        head, tail = [], []
        for s in lst:
            if isv(s): tail.append(s); continue
            dep = False
            if txt(s) and tail:
                x = Ins(txt(s))
                for v in tail:
                    if txt(v) is None: dep = True; continue
                    y = Ins(txt(v))
                    if (x.rd | x.wr) & y.wr or x.wr & y.rd: dep = True
            if dep: tail.append(s); merge.late += 1
            else: head.append(s)
        for s in head: emit(s)
        if nxt and all(isv(s) for s in tail): lg.wait(*nxt)
        for s in tail: emit(s)
    run(side.get(-1, []), None)
    for i, (t, needs) in enumerate(items):
        if needs: lg.wait(*needs)
        a(t)
        run(side.get(i, []), items[i+1][1] if i + 1 < len(items) else None)
merge.late = 0

def dma_voff(a, dst, stride, t0, t1):
    a(f'v_lshrrev_b32 v{t0}, 3, v0'); a(f'v_and_b32 v{t1}, 6, v{t0}'); a(f'v_and_b32 v{dst}, 7, v0')
    a(f'v_xor_b32 v{dst}, v{dst}, v{t1}'); a(f'v_lshlrev_b32 v{dst}, 4, v{dst}')
    a(f's_mov_b32 s67, {stride}'); a(f'v_mad_u32_u24 v{dst}, v{t0}, s67, v{dst}')

def tstamp(a, opt, idx, vt=(250, 251)):
    if not opt.get('gstamps'): return
    a('s_memrealtime s[96:97]'); a('s_waitcnt lgkmcnt(0)')
    a(f's_lshl_b32 s98, {SSLOT}, 10')
    if isinstance(idx, int): a(f's_add_u32 s98, s98, {idx*4}')
    else: a(f's_lshl_b32 s99, {idx[0]}, 2'); a('s_add_u32 s98, s98, s99'); a(f's_add_u32 s98, s98, {idx[1]*4}')
    a(f's_add_u32 s98, s98, {STAMP_OFF + 0x100000}')
    a(f'v_mov_b32 v{vt[0]}, s96'); a(f'v_mov_b32 v{vt[1]}, 0')
    a(f'buffer_store_dword v{vt[0]}, v{vt[1]}, {S_WS}, s98 offen')

def calibrate(a, idx):
    lc = a.label('Lcal')
    a(f's_cmp_lg_u32 {SWV}, 0'); a(f's_cbranch_scc1 {lc}')
    a(f's_add_u32 s70, s60, {MEMR_OFF + 0x7ffff}'); a('s_and_b32 s70, s70, 0xfff80000'); a('s_sub_u32 s70, s70, s60')
    a(f's_lshl_b32 s71, {idx}, 7'); a('s_add_u32 s70, s70, s71'); a('s_add_u32 s70, s70, 6144'); a('s_add_u32 s71, s70, 8192')
    a('v_mov_b32 v16, 0'); a('s_mov_b64 exec, 1'); a('s_mov_b32 s72, -1'); a('s_mov_b32 s73, -1')
    a('s_waitcnt vmcnt(0)')
    for r in range(4):
        for p in range(2):
            a('s_memtime s[74:75]'); a(f'buffer_store_dword v16, v16, {S_WS}, s{70+p} offen sc1'); a('s_waitcnt vmcnt(0)')
            a('s_memtime s[76:77]'); a('s_waitcnt lgkmcnt(0)'); a('s_sub_u32 s76, s76, s74'); a(f's_min_u32 s{72+p}, s{72+p}, s76')
        a('s_add_u32 s70, s70, 32768'); a('s_add_u32 s71, s71, 32768')
    a('s_cmp_lt_u32 s73, s72'); a('s_cselect_b32 s72, 1, 0'); a(f's_lshr_b32 s73, {SXCC}, 2'); a('s_xor_b32 s72, s72, s73'); a('s_add_u32 s72, s72, 256')
    a('v_mov_b32 v17, s72'); a(f'v_mov_b32 v16, {DBG_VOTE*4}')
    a(f'buffer_atomic_add v17, v16, {S_DBG}, 0 offen sc1')
    a('s_mov_b64 exec, -1')
    a(f'{lc}:')
```

```python
from common import *

SC = 0.07216878364870322 * 1.4426950408889634

def wfrag(f, half=None):
    if f < 32: k, b = 'a', f * 8
    else: k, b = 'v', 176 + (f - 32) * 8
    if half is None: return f'{k}[{b}:{b+7}]'
    return k, b + 4 * half

VL16, VGW, VAR, VFR, VXW, VXS, VDR, VIDX, V9, V10, V11, V12, VT0, VT1, VT2 = range(1, 16)
VA = 16
VACC0 = 56
VACC1 = 68
VB = 80
VKX = 112
VQF = 136
VTMP = 160
VOX = 112
SSTEP, SH, SX, SDT = 's62', 's63', 's64', 's66'
SMASK8 = 's[70:71]'
SCM = [f's[{72+2*r}:{73+2*r}]' for r in range(4)]
SCHK = 's80'
S_ONE0, S_ONE1 = 's100', 's101'
NCH = [3, 3, 2, 2]
OWN = [[0, 1, 2], [3, 4, 5], [6, 7], [8, 9]]
REGKB = [0, 1, 3, 4, 6, 7, 8]; LDSKB = [2, 5, 9]
REGT = [0, 2, 3, 4, 6, 7, 8]; LDST = [1, 5, 9]
def yfrag(tile, kb):
    if tile in REGT: return 'reg', 21 + REGT.index(tile)*3 + kb
    return 'lds', 9 + LDST.index(tile)*3 + kb
def xfrag(kb, t, second):
    if kb in REGKB: return 'reg', t*7 + REGKB.index(kb) + (21 if second else 0)
    return 'lds', LDSKB.index(kb)*3 + t + (9 if second else 0)
def apos(w, order):
    ap = {kb: VA + 8*c for c, kb in enumerate(OWN[w])}
    free = [VA + 4*i for i in range(10) if VA + 4*i not in ap.values()]
    for kb in order:
        if kb not in ap: ap[kb] = free.pop(0)
    return ap
STREAM = ['sc1 nt']

def tile_pat(l):
    g, c = l >> 4, l & 15
    return (4*g + 2*(c & 1) + (c >> 3))*16 + ((c >> 1) & 3)*4

def common_addr(a):
    T = VTMP
    a(f'v_lshlrev_b32 v{VL16}, 4, v0')
    a(f's_mul_i32 s6, {SWV}, 3'); a(f's_lshl_b32 s7, {SWV}, 1'); a('s_add_u32 s7, s7, 2'); a('s_min_u32 s6, s6, s7')
    a(f's_lshl_b32 {SCHK}, s6, 10')
    a(f'v_add_u32 v{VAR}, {LDS_MEM}, v{VL16}'); a(f'v_add_u32 v{VGW}, {SCHK}, v{VAR}')
    lanefn(a, VFR, lambda l: l*16, T, 36864)
    lanefn(a, VIDX, lambda l: 0x4444 + (l & 1)*0xaaaa, T)
    a(f'v_and_b32 v{T}, 8, v0'); a(f'v_cmp_ne_u32 {SMASK8}, 0, v{T}')

def loader(a, role, after_first=None):
    vm = Trk(a, 'vmcnt', 63)
    T = 160
    VD0, VD1, VR0 = T, T + 1, T + 2
    dma_voff(a, VD0, 12288, T + 8, T + 9); dma_voff(a, VD1, 1280, T + 8, T + 9)
    for aa in range(2):
        R = VR0 + 3*aa
        row = lambda l: 4*((l >> 4) & 1) + 2*aa + ((l >> 2) & 1)
        lanefn(a, T + 8, lambda l: row(l) & 6, T + 10); lanefn(a, T + 9, lambda l: (l >> 1) & 1, T + 10, 2)
        a(f'v_xor_b32 v{T+9}, v{T+9}, v{T+8}')
        lanefn(a, R, lambda l: (l >> 5)*2048 + ((l >> 3) & 1)*1024 + row(l)*128 + (l & 1)*8, T + 10)
        a(f'v_lshl_add_u32 v{R}, v{T+9}, 4, v{R}')
        a(f'v_add_u32 v{R+1}, 49152, v{R}'); a(f'v_add_u32 v{R+2}, 98304, v{R}')
    a(f's_mul_i32 s68, {SH}, 384'); a(f's_mul_i32 s67, {SWV}, {8*12288}'); a('s_add_u32 s68, s68, s67')
    a(f's_mul_i32 s69, {SH}, {192*1280}'); a(f's_mul_i32 s67, {SWV}, {8*1280}'); a('s_add_u32 s69, s69, s67')
    a(f's_lshl_b32 s7, {SWV}, 10')
    k2 = 'X' if role == 'qk' else 'Y'
    slabs = [('X', S_WA, i) for i in range(14)] + [(k2, S_WB, i) for i in range(14)] + \
            [('X', S_WA, i) for i in range(14, 20)] + [(k2, S_WB, i) for i in range(14, 20)]
    def dma(n):
        kind, sr, i = slabs[n]
        for c in range(3):
            a(f's_add_u32 m0, s7, {(n % 12)*LDS_SLAB + c*4096}')
            if kind == 'X': a(f's_add_u32 s67, s68, {(2*(REGKB + LDSKB)[i >> 1] + (i & 1))*32*12288 + c*128}')
            else: a(f's_add_u32 s67, s69, {((i&1)*96 + c*32)*1280 + (REGT + LDST)[i >> 1]*128}')
            a(f'buffer_load_dwordx4 v{VD0 if kind=="X" else VD1}, {sr}, s67 offen lds')
            vm.issue(n)
    def dest(n, c):
        kind, sr, i = slabs[n]
        second = (n >= 14) if n < 28 else (n >= 34)
        if kind == 'X': t, kb, half = c, i >> 1, i & 1; f = t * 7 + kb; lf = (kb - 7) * 3 + t
        else:
            ks = (i & 1) * 3 + c; kb, half = ks >> 1, ks & 1; tile = i >> 1
            f = tile * 3 + kb; lf = (tile - 7) * 3 + kb
        if second: f += 21; lf += 9
        return f, lf, half
    def reads(n):
        slot = n % 12
        base = VR0 + slot // 4; off0 = (slot % 4) * LDS_SLAB
        for c in range(3):
            f, lf, half = dest(n, c)
            if n < 28: k, b = wfrag(f, half)
            else: k, b = 'v', 16 + lf * 8 + half * 4
            for aa in range(2):
                a(f'ds_read_b64_tr_b16 {k}[{b+2*aa}:{b+2*aa+1}], v{base + 3*aa} offset:{off0 + c*4096}')
    for n in range(11): dma(n)
    for n in range(40):
        vm.wait(n)
        a('s_waitcnt lgkmcnt(0)')
        a('s_barrier')
        if n + 11 < 40: dma(n + 11)
        reads(n)
        if n == 0 and after_first: after_first()
    a('s_waitcnt lgkmcnt(0)'); a('s_barrier')
    for lf in range(18):
        for half in range(2):
            b = 16 + lf * 8 + half * 4
            a(f'ds_write_b128 v{VFR}, v[{b}:{b+3}] offset:{lf*2048 + half*1024}')
    a('s_waitcnt lgkmcnt(0)')

def mem0_load(a):
    lanefn(a, 18, lambda l: (l & 7)*1280 + (l >> 3)*16, 16)
    lanefn(a, 19, lambda l: LDS_MEM + (l >> 4)*256 + (2*(l & 7) + ((l >> 3) & 1))*16, 16)
    for n in range(10): a(f'buffer_load_dwordx4 v[{24+4*n}:{27+4*n}], v18, {S_AUX}, 0 offen offset:{n*128}')
def mem0_write(a):
    for n in range(10): a(f'ds_write_b128 v19, v[{24+4*n}:{27+4*n}] offset:{n*1024}')

def maxchk(a, regs, first=True):
    regs = list(regs)
    if first:
        a(f'v_max3_u32 v{VT0}, v{regs[0]}, v{regs[1]}, v{regs[2]}'); regs = regs[3:]
    while regs:
        if len(regs) >= 2: a(f'v_max3_u32 v{VT0}, v{VT0}, v{regs[0]}, v{regs[1]}'); regs = regs[2:]
        else: a(f'v_max_u32 v{VT0}, v{VT0}, v{regs[0]}'); regs = []


def gather_setup(a, step_add=0):
    a(f's_add_u32 s67, {SSTEP}, {step_add}'); a('s_and_b32 s67, s67, 3'); a('s_lshl_b32 s67, s67, 1')
    a(f's_add_u32 s68, s67, 1'); a(f's_sub_u32 s68, s68, {SX}'); a(f's_add_u32 s67, s67, {SX}')
    a('s_mul_i32 s67, s67, 10240'); a('s_lshl_b32 s68, s68, 15')
    a(f's_add_u32 s33, s68, {SMR}'); a('s_add_u32 s33, s33, s58')
    a(f's_add_u32 s32, s67, {SCHK}'); a(f's_add_u32 s32, s32, {MEML_OFF}')

def gather(a, n, R, opt, st, rsleep=0, R2=None):
    ld = lambda r, so: [a(f'buffer_load_dwordx4 v[{r+4*c}:{r+4*c+3}], v{VL16}, {S_WS}, {so} offen offset:{c*1024} sc1') for c in range(n)]
    def chk(r, k=0): a(f's_waitcnt vmcnt({k})'); maxchk(a, range(r, r + 4*n)); a(f'v_cmp_eq_u32 vcc, -1, v{VT0}')
    l1, l1ok, l2, l2ok = [a.label('Lg') for _ in range(4)]
    stamp(a, opt, st[0])
    if R2 is None:
        a(f'{l1}:')
        ld(R, 's32'); chk(R)
        poll_tail(a, l1, l1ok)
    else:
        ld(R, 's32'); ld(R2, 's33'); chk(R, n)
        a(f's_cbranch_vccnz {l1}')
        a(f'{l1ok}:')
    stamp(a, opt, st[1])
    for c in range(n):
        for i in range(4):
            a(f'v_lshlrev_b32 v{VA+8*c+2*i}, 16, v{R+4*c+i}'); a(f'v_and_b32 v{VA+8*c+2*i+1}, 0xffff0000, v{R+4*c+i}')
    Q = R if R2 is None else R2
    if R2 is None:
        if rsleep: a(f's_sleep {rsleep}')
        ld(Q, 's33')
    chk(Q)
    a(f's_cbranch_vccnz {l2}')
    a(f'{l2ok}:')
    stamp(a, opt, st[2])
    for c in range(n):
        b = VA + 8*c
        for i in range(4):
            a(f'v_dot2c_f32_bf16 v{b+2*i}, {S_ONE0}, v{Q+4*c+i}'); a(f'v_dot2c_f32_bf16 v{b+2*i+1}, {S_ONE1}, v{Q+4*c+i}')
        for i in range(4): a(f'v_cvt_pk_bf16_f32 v{b+i}, v{b+2*i}, v{b+2*i+1}')
        a(f'ds_write_b128 v{VGW}, v[{b}:{b+3}] offset:{c*1024}')
    def outofline():
        if R2 is not None:
            a(f'{l1}:')
            ld(R, 's32'); ld(R2, 's33'); chk(R, n)
            a(f's_cbranch_vccz {l1ok}')
            budget_loop(a, l1, l1ok)
        a(f'{l2}:')
        ld(Q, 's33'); chk(Q)
        a(f's_cbranch_vccz {l2ok}')
        budget_loop(a, l2, l2ok)
    return outofline

def a_read(kb, reg):
    return ('lds', f'ds_read_b128 v[{reg}:{reg+3}], v{VAR} offset:{kb*1024}', f'A{kb}')
def frag_reads(lf, slot):
    return [('lds', f'ds_read_b128 v[{VB+8*slot+4*x}:{VB+8*slot+4*x+3}], v{VFR} offset:{lf*2048 + x*1024}', f'F{lf}') for x in range(2)]
def smf(acc, A, B): return f'v_smfmac_f32_16x16x64_bf16 v[{acc}:{acc+3}], v[{A}:{A+3}], {B}, v{VIDX}'
def post(acc, out):
    return [f'v_add_f32 v{acc}, v{acc}, v{acc+1}', f'v_add_f32 v{acc+2}, v{acc+2}, v{acc+3}', f'v_cvt_pk_bf16_f32 v{out}, v{acc}, v{acc+2}']

def allred(op, v, t, stages=(16, 32)):
    r = []
    for st in stages: r += [f'v_mov_b32 v{t}, v{v}', f'v_permlane{st}_swap_b32 v{v}, v{t}', f'{op} v{v}, v{v}, v{t}']
    return r

def stamp_flush(a, opt, n):
    if not opt.get('stamps'): return
    a('s_waitcnt lgkmcnt(0)')
    a(f's_lshl_b32 s67, {SSLOT}, 2'); a(f's_add_u32 s67, s67, {SWV}'); a('s_lshl_b32 s67, s67, 6'); a(f's_add_u32 s67, s67, {SSTEP}')
    a('s_lshl_b32 s67, s67, 6'); a(f's_add_u32 s67, s67, {STAMP_OFF}')
    a(f'v_lshlrev_b32 v{VT1}, 2, v0')
    for i in range(n): a(f'v_writelane_b32 v{VT0}, s{STAMP0+2*i}, {i}')
    a('s_mov_b64 exec, 0xffff')
    a(f'buffer_store_dword v{VT0}, v{VT1}, {S_WS}, s67 offen')
    a('s_mov_b64 exec, -1')

SPC = 's60'
SMR = 's59'
def check_flags(a, opt, kind):
    if opt.get('noflags'): return
    lp, ld = a.label('Lf'), a.label('Lfd')
    a('s_sub_u32 s61, s82, 8'); a('s_max_i32 s61, s61, 0'); a('s_lshr_b32 s61, s61, 2'); a('s_add_u32 s61, s61, s82')
    a(f's_cmp_gt_u32 {SPC}, s61'); a(f's_cbranch_scc1 {ld}')
    if kind == 'K': a(f'v_and_b32 v{VT1}, 15, v0'); a(f'v_min_u32 v{VT1}, 2, v{VT1}'); a(f'v_lshlrev_b32 v{VT1}, 7, v{VT1}')
    elif kind == 'Y16': a(f'v_and_b32 v{VT1}, 15, v0'); a(f'v_lshlrev_b32 v{VT1}, 7, v{VT1}')
    else: a(f'v_and_b32 v{VT1}, 3, v0'); a(f'v_mul_u32_u24 v{VT1}, {40*128}, v{VT1}')
    a(f'{lp}:')
    a(f'buffer_load_dword v{VT0}, v{VT1}, {S_WS}, s81 offen sc1'); a('s_waitcnt vmcnt(0)')
    for r in (8, 4, 2, 1): a(f'v_min_u32_dpp v{VT0}, v{VT0}, v{VT0} row_ror:{r} row_mask:0xf bank_mask:0xf')
    a(f'v_readfirstlane_b32 {SPC}, v{VT0}')
    a(f's_cmp_gt_u32 {SPC}, s61'); a(f's_cbranch_scc1 {ld}')
    budget_loop(a, lp, ld)
    a(f'{ld}:')

def load_frags6(a, dst, base_off, ct, seg='s82'):
    a(f's_lshl_b32 s67, {seg}, 5'); a(f's_add_u32 s67, s67, {SH}'); a('s_mul_i32 s67, s67, 12288')
    a(f's_add_u32 s67, s67, {base_off + ct*6144}'); a('s_add_u32 s68, s67, 4096')
    for kk in range(6):
        a(f'buffer_load_dwordx4 v[{dst+4*kk}:{dst+4*kk+3}], v{VL16}, {S_WS}, {"s67" if kk < 4 else "s68"} offen offset:{(kk&3)*1024} {STREAM[0]}')

def build_stream(first_items, second_items):
    items = []; ldsq = []; idx2 = {}
    def add(it):
        kind, acc, A, ref, needs = it
        if kind == 'reg': items.append((smf(acc, A, wfrag(ref)), needs))
        elif kind == 'lds':
            sl = len(ldsq) % 4; ldsq.append((len(items), ref, sl))
            items.append((smf(acc, A, f'v[{VB+8*sl}:{VB+8*sl+7}]'), needs + [f'F{ref}']))
        else: items.append((ref, needs))
    for it in first_items: add(it)
    n = 0
    for it in second_items:
        if it[0] != 'raw': idx2[n] = len(items); n += 1
        add(it)
    return items, ldsq, idx2

class Sides:
    def __init__(self): self.side = {}; self.busy = set(); self.vbusy = {}
    def put(self, g, r): self.side.setdefault(g, []).append(r)
    def lds(self, g, r, force=False):
        if not force:
            while g in self.busy: g += 1
        self.put(g, r); self.busy.add(g); return g
    def valu(self, g, instrs, per=1):
        last = g - 1; end = g
        for s in instrs:
            if isinstance(s, tuple): self.lds(last + 1, s, True); end = max(end, last + 2); continue
            if not s.startswith('v_'): self.put(last + 1, s); end = max(end, last + 2); continue
            while self.vbusy.get(g, 0) >= per: g += 1
            self.put(g, s); self.vbusy[g] = self.vbusy.get(g, 0) + 1; last = g; end = max(end, g + 1)
        self.nxt = g
        return end
    def refills(self, ldsq):
        for n in range(len(ldsq) - 4):
            g = ldsq[n][0]
            lim = ldsq[n+4][0] - 6
            for r in frag_reads(ldsq[n+4][1], ldsq[n][2]):
                g2 = g
                while g2 in self.busy: g2 += 1
                if g2 <= lim: g = self.lds(g2, r)
                else: g = self.lds(max(g, min(lim, g + 1)), r, True)
                assert g < ldsq[n+4][0] - 1, (n, g, ldsq[n+4])

DPP8 = 'row_ror:8 row_mask:0xf bank_mask:0xf'
def dense_reads(dst, off, tagp, kks=range(6)):
    return [('lds', f'ds_read_b64_tr_b16 v[{dst+4*kk+2*x}:{dst+4*kk+2*x+1}], v{VDR} offset:{off + (2*kk+x)*256}', f'{tagp}{kk}')
            for kk in kks for x in range(2)]

def preload_b(a, lg, ldsq):
    for n in range(4):
        for r in frag_reads(ldsq[n][1], ldsq[n][2]): a(r[1]); lg.issue(r[2])

QORD = [[0, 1, 2, 3, 4, 5, 6, 7, 9, 8], [3, 4, 5, 0, 1, 2, 6, 7, 9, 8], [6, 7, 2, 0, 1, 5, 3, 4, 9, 8], [8, 9, 0, 1, 2, 3, 4, 6, 5, 7]]
KORD = [0, 2, 1, 3, 5, 4, 6, 9, 7, 8]

def qk_setup(a, opt):
    common_addr(a)
    T = VTMP
    rho = lambda l: 2*(l & 7) + ((l >> 3) & 1)
    lanefn(a, VXW, lambda l: LDS_MEM + (l & 15)*16 + (l >> 4)*4, T, 256)
    lanefn(a, VDR, lambda l: LDS_MEM + (l >> 2)*16 + (l & 1)*8, T)
    lanefn(a, V9, lambda l: (l >> 5)*256 + rho(l)*16 + ((l >> 4) & 1)*8, T)
    lanefn(a, V10, lambda l: rho(l)*16 + ((l >> 4) & 1)*4, T)
    lanefn(a, V11, lambda l: LDS_MEM + 3072 + l*16, T)
    lanefn(a, V12, lambda l: LDS_MEM + ((l >> 3) & 1)*512 + (2*(l & 7) + (l >> 5))*16 + ((l >> 4) & 1)*8, T)
    a(f's_and_b32 s68, {SH}, 15'); a('s_min_u32 s68, s68, 9'); a('s_lshl_b32 s68, s68, 10'); a(f'v_add_u32 v{V12}, s68, v{V12}')
    lanefn(a, VXS, lambda l: ((l >> 3) & 1)*1024 + (l >> 4)*256 + (l & 7)*16, T)
    a(f's_mul_i32 s67, {SX}, 12288'); a(f's_add_u32 s67, s67, {PA_OFF}')
    a(f's_and_b32 s68, {SH}, 15'); a('s_lshl_b32 s76, s68, 9'); a('s_add_u32 s76, s76, s67')
    a('s_lshr_b32 s77, s68, 1'); a('s_lshl_b32 s77, s77, 8'); a('s_add_u32 s77, s77, s67')
    a('s_and_b32 s68, s68, 1'); a('s_lshl_b32 s68, s68, 3'); a('s_add_u32 s77, s77, s68'); a('s_add_u32 s77, s77, 8192')

def qk_init_clear(a):
    a(f'v_mov_b32 v{VTMP}, -1'); a(f'v_mov_b32 v{VTMP+1}, -1')
    a(f'buffer_store_dwordx2 v[{VTMP}:{VTMP+1}], v{V9}, {S_WS}, s76 offen sc1')
    a(f'buffer_store_dword v{VTMP}, v{V10}, {S_WS}, s77 offen sc1')

def mf(D, A, B, first): return f'v_mfma_f32_16x16x32_bf16 v[{D}:{D+3}], v[{A}:{A+3}], v[{B}:{B+3}], ' + ('0' if first else f'v[{D}:{D+3}]')

def stream_head(sd, w, order, AP, opt, rest):
    g = opt.get('gb1', 3)
    sd.put(g, ('wait', 'GW')); sd.put(g, 's_barrier')
    for kb in order:
        if kb not in OWN[w]:
            sd.lds(g, a_read(kb, AP[kb]), True); g += 1
    return g

def qk_loop(a, w, sc, opt):
    lg = Trk(a, 'lgkmcnt', 15)
    ltop, lent, lfin = a.label('Lqk'), a.label('Lqkent'), a.label('Lqkfin')
    QEX = LDS_EX - LDS_MEM
    SACC, SM = VTMP, VTMP + 4
    QO = QORD[w]
    AP = apos(w, QO)
    seq = [(kb, t) for kb in QO[:6] for t in range(3)] + [(kb, t) for t in range(3) for kb in QO[6:]]
    first = [(xfrag(kb, t, 0)[0], VACC0 + 4*t, AP[kb], xfrag(kb, t, 0)[1], [f'A{kb}']) for kb, t in seq]
    second = []
    n = 0
    SX0 = opt.get('sx0', 8)
    for t in range(3):
        for kb in KORD:
            second.append((xfrag(kb, t, 1)[0], VACC1 + 4*t, AP[kb], xfrag(kb, t, 1)[1], []))
            if w >= 2 and n == SX0:
                for kk in range(6): second.append(('raw', 0, 0, mf(SACC, VKX + 4*kk, VQF + 4*kk, kk == 0), [f'Q{kk}']))
            n += 1
    items, ldsq, k2 = build_stream(first, second)
    sd = Sides()
    stream_head(sd, w, QO, AP, opt, None)
    sd.put(opt.get('gb1', 3), lambda: stamp(a, opt, 1))
    pub_rd = [('lds', f'ds_read_b64 v[{VKX+2*x}:{VKX+2*x+1}], v{V12} offset:{x*256}', 'PUB') for x in range(2)]
    pub_st = f'buffer_store_dwordx4 v[{VKX}:{VKX+3}], v{VXS}, {S_WS}, s44 offen sc1'
    if w == 1:
        for r in pub_rd: sd.lds(18, r)
        sd.put(25, ('wait', 'PUB')); sd.put(25, pub_st)
        for j in range(6):
            sd.put(1 + 3*j, f'buffer_load_dword v{VKX+4+j}, v{V9}, {S_WS}, s{[45, 48, 49][j >> 1]} offen sc1')
            if j % 2 == 0: sd.put(2 + 3*j, f's_add_u32 s{[45, 48, 49][j >> 1]}, s{[45, 48, 49][j >> 1]}, 8192')
    wr = lambda acc, t, off, tag: ('lds', f'ds_write_b32 v{VXW}, v{acc} offset:{off + t*1024}', tag)
    for t in range(3): gq = sd.valu([23, 27, 31][t], post(VACC0 + 4*t, VACC0 + 4*t) + [wr(VACC0 + 4*t, t, QEX, 'QW')], 2 if t == 2 else 1)
    gb = gq + opt.get('gba', 2)
    sd.put(gb, ('wait', 'QW')); sd.put(gb, 's_barrier')
    if opt.get('diag'): sd.put(gb, lambda: stamp(a, opt, 0))
    if w != 1:
        rr = dense_reads(VQF, QEX, 'Q')
        span = (k2[SX0] + 3 - gb) if w >= 2 else 14
        for i, r in enumerate(rr): sd.lds(gb + (i * span) // 12, r, w >= 2)
    gk = 0
    for t in range(2): gk = sd.valu(k2[10*t + 11], post(VACC1 + 4*t, VACC1 + 4*t) + [wr(VACC1 + 4*t, t, 0, 'KW')])
    E0, T, X0 = VTMP + 8, VTMP + 12, VTMP + 4
    ool4 = None
    if w >= 2:
        lsx, lsxb = a.label('Lsx'), a.label('Lsxb')
        p0 = [f'v_cndmask_b32 v{X0}, v{SACC}, v{SACC+2}, {SMASK8}', f'v_cndmask_b32 v{X0+1}, v{SACC+1}, v{SACC+3}, {SMASK8}',
              f'v_mul_f32 v{X0}, s83, v{X0}', f'v_mul_f32 v{X0+1}, s83, v{X0+1}', f'v_exp_f32 v{E0}, v{X0}', f'v_exp_f32 v{E0+1}, v{X0+1}',
              f'v_max_f32 v{T}, |v{X0}|, |v{X0+1}|', f'v_add_f32 v{E0+3}, v{E0}, v{E0+1}', f'v_cmp_lt_f32 vcc, s79, v{T}']
        g = sd.valu(k2[SX0 + 2], p0)
        sd.put(g, lambda: (a(f's_cbranch_vccnz {lsx}'), a(f'{lsxb}:')))
        sd.lds(g, ('lds', f'ds_write_b128 v{V11}, v[{E0}:{E0+3}] offset:{(w-2)*1024}', 'KW'), True)
        g = max(g + 3, gk + 2)
        sd.put(g, ('wait', 'KW')); sd.put(g, 's_barrier')
        def ool4():
            m = E0 + 2
            a(f'{lsx}:')
            a(f'v_max_f32 v{m}, v{X0}, v{X0+1}'); a(f'v_max_f32_dpp v{m}, v{m}, v{m} {DPP8}')
            for s_ in allred('v_max_f32', m, T): a(s_)
            for i in range(2): a(f'v_sub_f32 v{E0+i}, v{X0+i}, v{m}')
            for i in range(2): a(f'v_exp_f32 v{E0+i}, v{E0+i}')
            a(f'v_add_f32 v{E0+3}, v{E0}, v{E0+1}')
            a(f's_branch {lsxb}')
        sd.valu(5, [f'v_mov_b32 v{E0+2}, 0'])
    sd.refills(ldsq)

    def top():
        preload_b(a, lg, ldsq)
        for r in range(24): a(f'v_mov_b32 v{VACC0+r}, 0')
        if w == 0: a(f's_bitcmp1_b32 {SSTEP}, 0'); a('s_cselect_b32 s78, -1.0, 1.0')
        if w == 1:
            a(f's_lshr_b32 s67, {SSTEP}, 2'); a('s_mul_i32 s44, s67, 40960'); a(f's_bfe_u32 s67, {SSTEP}, 0x10001'); a('s_mul_i32 s67, s67, 20480')
            a('s_add_u32 s44, s44, s67'); a(f's_and_b32 s67, {SSTEP}, 1'); a('s_lshl_b32 s67, s67, 7'); a('s_add_u32 s44, s44, s67'); a('s_add_u32 s44, s44, s47')
    def prefetch():
        ls = a.label('Lnp')
        if w == 1: a(f's_mov_b32 s45, {OOB}')
        a(f's_cmp_ge_u32 s82, {1 if opt.get("nopf") else 63}'); a(f's_cbranch_scc1 {ls}')
        if w >= 2:
            check_flags(a, opt, 'K'); load_frags6(a, VKX, KF_OFF, w - 2)
        elif not opt.get('notouch'):
            check_flags(a, opt, 'Y16')
            a(f's_mul_i32 s45, s82, {40*40960}'); a('s_add_u32 s45, s45, s50')
        a(f'{ls}:')
        if w == 1:
            a(f's_add_u32 s48, s45, {16*40960}'); a(f's_add_u32 s49, s45, {32*40960}'); a(f's_bitcmp1_b32 {SH}, 3'); a(f's_cselect_b32 s49, {OOB}, s49')
    def mprog():
        a(f's_add_u32 s67, {SSTEP}, 1'); a(f'v_mov_b32 v{VT0}, s67'); a(f'v_mov_b32 v{VT1}, 0')
        a('s_mov_b64 exec, 1')
        a(f'buffer_store_dword v{VT0}, v{VT1}, {S_WS}, s46 offen sc1')
        a('s_mov_b64 exec, -1')
    a(f's_mov_b32 {SSTEP}, 0'); a(f's_mov_b32 s83, {f2u(SC):#x}'); a(f's_mov_b32 s79, {f2u(opt.get("safe", 60.0)):#x}')
    if w >= 2: a('s_mov_b32 s82, 0'); a(f's_mul_i32 s81, {SH}, 384'); a(f's_add_u32 s81, s81, {PRGX_OFF + 96*128}'); prefetch()
    if w == 1:
        a(f'v_lshlrev_b32 v{V9}, 7, v0')
        a(f's_lshl_b32 s81, {SX}, 11'); a(f's_bfe_u32 s67, {SH}, 0x20002'); a(f's_mul_i32 s67, s67, {40*128}'); a('s_add_u32 s81, s81, s67'); a(f's_add_u32 s81, s81, {PRGY_OFF}')
        a(f's_and_b32 s50, {SH}, 15'); a('s_mul_i32 s50, s50, 40960'); a(f's_lshl_b32 s67, {SX}, 14'); a('s_add_u32 s50, s50, s67'); a(f's_add_u32 s50, s50, {VOF_OFF}')
        a(f's_lshl_b32 s46, {SH}, 7'); a(f's_add_u32 s46, s46, {MPRG_OFF}'); a(f's_lshl_b32 s47, {SH}, 11'); a(f's_add_u32 s47, s47, {XN_OFF + 64*40960}')
        a(f's_cmp_ge_u32 {SH}, 10'); a(f's_cselect_b32 s46, {OOB}, s46'); a(f's_cselect_b32 s47, {OOB}, s47')
        a('s_mov_b32 s82, 1'); prefetch()
    top()
    for kb in OWN[w]: a(a_read(kb, AP[kb])[1])
    a('s_waitcnt vmcnt(0) lgkmcnt(0)')
    a(f's_branch {lent}')
    a(f'{ltop}:')
    lg.reset()
    a('s_barrier')
    top()
    gather_setup(a)
    if opt.get('qsleep', 12): a(f's_sleep {opt.get("qsleep", 12)}')
    a('s_waitcnt lgkmcnt(0)')
    ool = gather(a, NCH[w], VTMP, {k: v for k, v in opt.items() if k != 'stamps'} if opt.get('diag') else opt, (0, 6, 7), opt.get('qrs', 0), VQF if opt.get('qj', 0) else None)
    a(f's_cmp_eq_u32 {SSTEP}, 63'); a(f's_cbranch_scc1 {lfin}')
    a(f'{lent}:')
    lg.reset(); lg.issue('GW')
    merge(a, lg, items, sd.side)
    stamp(a, opt, 2)
    EA, EB = VB, VB + 4
    U, LM, F0, F1, LS = VB + 8, VB + 9, VB + 10, VB + 11, VB + 12
    if w < 2:
        lg.wait('KW'); a('s_barrier')
        if w == 0:
            a(f'ds_read_b128 v[{EA}:{EA+3}], v{V11}'); lg.issue('E'); a(f'ds_read_b128 v[{EB}:{EB+3}], v{V11} offset:1024'); lg.issue('E')
            for r in dense_reads(VKX, 0, 'K', range(4)): a(r[1]); lg.issue(r[2])
    for s_ in post(VACC1 + 8, VACC1 + 8): a(s_)
    a(wr(VACC1 + 8, 2, 0, '')[1]); lg.issue('KW')
    redl = [f'v_add_f32_dpp v{LS}, v{LS}, v{LS} {DPP8}', f'v_mov_b32 v{T}, v{LS}', f'v_permlane16_swap_b32 v{LS}, v{T}', f'v_add_f32 v{LS}, v{LS}, v{T}',
            f'v_mov_b32 v{T}, v{LS}', f'v_permlane32_swap_b32 v{LS}, v{T}', f'v_add_f32 v{LS}, v{LS}, v{T}', f'v_mul_f32 v{LS}, s78, v{LS}']
    if w == 0:
        lg.wait('E')
        sh = [f'v_add_f32 v{LS}, v{EA+3}, v{EB+3}', f'v_max_f32 v{U}, |v{EA+2}|, |v{EB+2}|', redl[0], redl[1], f'v_mul_f32 v{U}, 0x71800000, v{U}', redl[2], redl[3], redl[4]]
        for kk in range(4):
            lg.wait(f'K{kk}'); a(mf(SM, VKX + 4*kk, VQF + 4*kk, kk == 0))
            a(sh.pop(0)); a(sh.pop(0))
    lg.all(); a('s_barrier')
    if opt.get('diag'): stamp(a, opt, 6)
    ool3 = None
    if w == 0:
        lslow, lback = a.label('Lsm'), a.label('Lsb')
        for r in dense_reads(VKX, 0, 'K', range(4, 6)): a(r[1]); lg.issue(r[2])
        for s_ in redl[5:]: a(s_)
        for kk in range(4, 6):
            lg.wait(f'K{kk}'); a(mf(SM, VKX + 4*kk, VQF + 4*kk, False))
        stamp(a, opt, 3)
        a(f'v_cndmask_b32 v{SM}, v{SM}, v{SM+2}, {SMASK8}'); a(f'v_cndmask_b32 v{SM+1}, v{SM+1}, v{SM+3}, {SMASK8}')
        a(f'v_mul_f32 v{SM}, s83, v{SM}'); a(f'v_mul_f32 v{SM+1}, s83, v{SM+1}')
        a(f'v_exp_f32 v{SM+2}, v{SM}'); a(f'v_exp_f32 v{SM+3}, v{SM+1}')
        a(f'v_max3_f32 v{U}, |v{SM}|, |v{SM+1}|, v{U}')
        a(f'v_add_f32 v{LM}, v{SM+2}, v{SM+3}')
        a(f'v_cmp_lt_f32 vcc, s79, v{U}')
        a(f's_cbranch_vccnz {lslow}')
        a(f'{lback}:')
        a(f'v_add_f32_dpp v{LM}, v{LM}, v{LM} {DPP8}')
        a(f'v_mov_b32 v{T}, v{LM}')
        a(f'v_permlane16_swap_b32 v{LM}, v{T}'); a(f'v_add_f32 v{LM}, v{LM}, v{T}')
        a(f'v_fma_f32 v{LM}, v{LM}, s78, v{LS}')
        a(f'v_rcp_f32 v{LM}, v{LM}')
        a(f'v_mul_f32 v{EA}, v{EA}, v{LM}'); a(f'v_mul_f32 v{EA+1}, v{EA+1}, v{LM}')
        a(f'v_mul_f32 v{EB}, v{EB}, v{LM}'); a(f'v_mul_f32 v{EB+1}, v{EB+1}, v{LM}')
        a(f'v_cvt_pk_bf16_f32 v{EA}, v{EA}, v{EA+1}'); a(f'v_cvt_pk_bf16_f32 v{EA+1}, v{EB}, v{EB+1}')
        a(f'buffer_store_dwordx2 v[{EA}:{EA+1}], v{V9}, {S_WS}, s76 offen {sc}')
        a(f'v_mul_f32 v{SM+2}, v{SM+2}, v{LM}'); a(f'v_mul_f32 v{SM+3}, v{SM+3}, v{LM}')
        a(f'v_cvt_pk_bf16_f32 v{SM}, v{SM+2}, v{SM+3}')
        a(f'buffer_store_dword v{SM}, v{V10}, {S_WS}, s77 offen {sc}')
        stamp(a, opt, 4)
        def ool3():
            a(f'{lslow}:')
            a(f'v_max_f32 v{U}, v{SM}, v{SM+1}'); a(f'v_max_f32_dpp v{U}, v{U}, v{U} {DPP8}')
            for s_ in allred('v_max_f32', U, T, (16,)): a(s_)
            a(f'v_max3_f32 v{U}, v{U}, v{EA+2}, v{EB+2}')
            a(f'v_sub_f32 v{SM}, v{SM}, v{U}'); a(f'v_sub_f32 v{SM+1}, v{SM+1}, v{U}'); a(f'v_sub_f32 v{F0}, v{EA+2}, v{U}'); a(f'v_sub_f32 v{F1}, v{EB+2}, v{U}')
            a(f'v_exp_f32 v{SM+2}, v{SM}'); a(f'v_exp_f32 v{SM+3}, v{SM+1}'); a(f'v_exp_f32 v{F0}, v{F0}'); a(f'v_exp_f32 v{F1}, v{F1}')
            a(f'v_mul_f32 v{LS}, v{EA+3}, v{F0}'); a(f'v_fmac_f32 v{LS}, v{EB+3}, v{F1}')
            for s_ in redl: a(s_)
            for i in range(2): a(f'v_mul_f32 v{EA+i}, v{EA+i}, v{F0}'); a(f'v_mul_f32 v{EB+i}, v{EB+i}, v{F1}')
            a(f'v_add_f32 v{LM}, v{SM+2}, v{SM+3}')
            a(f's_branch {lback}')
    elif w == 1:
        a('s_waitcnt vmcnt(0)'); mprog()
        a(f's_add_u32 s82, {SSTEP}, 2'); prefetch()
    else:
        a(f's_add_u32 s82, {SSTEP}, 1'); prefetch()
    stamp(a, opt, 5)
    stamp_flush(a, opt, 8)
    a(f's_add_u32 {SSTEP}, {SSTEP}, 1'); a(f's_branch {ltop}')
    a(f'{lfin}:')
    a('s_waitcnt lgkmcnt(0)'); a('s_barrier')
    if w == 1:
        for r in pub_rd: a(r[1])
        a('s_waitcnt lgkmcnt(0)'); a(pub_st); a('s_waitcnt vmcnt(0)'); mprog()
    a('s_waitcnt vmcnt(0)'); a('s_endpgm')
    ool()
    if ool3: ool3()
    if ool4: ool4()

def vo_setup(a, opt):
    common_addr(a)
    T = VTMP
    lanefn(a, VXW, lambda l: LDS_EX + tile_pat(l), T, 256)
    a(f'v_and_b32 v{T}, 1, v0'); a(f'v_cmp_ne_u32 vcc, 0, v{T}'); a(f'v_mov_b32 v{T}, 0x05040100'); a(f'v_mov_b32 v{T+1}, 0x03020706')
    a(f'v_cndmask_b32 v{VXS}, v{T}, v{T+1}, vcc')
    lanefn(a, V9, lambda l: ((l >> 4) & 1)*1024 + (l & 15)*16 + (l >> 5)*8, T, 256)
    lanefn(a, V10, lambda l: (l >> 4)*10240 + (l & 15)*16, T)
    lanefn(a, V11, lambda l: (l >> 4)*1024 + (l & 15)*16, T, 256)
    lanefn(a, V12, tile_pat, T)
    a(f's_and_b32 {SDT}, {SH}, 15'); a(f's_lshl_b32 s67, {SWV}, 4'); a(f's_add_u32 {SDT}, {SDT}, s67')
    a(f's_lshl_b32 s81, {SX}, 11'); a(f's_bfe_u32 s67, {SDT}, 0x20002'); a(f's_mul_i32 s67, s67, {40*128}'); a('s_add_u32 s81, s81, s67'); a(f's_add_u32 s81, s81, {PRGY_OFF}')
    a(f's_mul_i32 s44, {SH}, 10240'); a(f's_add_u32 s44, s44, {VOMR_OFF}'); a('s_add_u32 s45, s44, 4096'); a('s_add_u32 s46, s44, 8192')
    a(f's_mul_i32 s72, {SX}, {16*10240}'); a(f's_lshl_b32 s68, {SDT}, 8'); a('s_add_u32 s72, s72, s68'); a(f's_add_u32 s72, s72, {VOMR_OFF}')
    a('s_add_u32 s73, s72, 40960'); a('s_add_u32 s74, s73, 40960'); a('s_add_u32 s75, s74, 40960')
    a(f's_mul_i32 s49, {SX}, 12288'); a(f's_add_u32 s49, s49, {PA_OFF}'); a(f's_add_u32 s76, s49, {SCHK}'); a('s_add_u32 s49, s49, 10240')
    a(f's_lshl_b32 s48, {SDT}, 4'); a('s_add_u32 s48, s48, s49')
    a(f's_mul_i32 s47, {SDT}, 40960'); a(f's_lshl_b32 s67, {SX}, 14'); a('s_add_u32 s47, s47, s67'); a(f's_add_u32 s47, s47, {VOF_OFF}')

def vom_store1(src, k, base, sc):
    if k < 2: return f'buffer_store_dwordx4 v[{src}:{src+3}], v{V11}, {S_WS}, {base[k]} offen {sc}'
    return f'buffer_store_dwordx2 v[{src}:{src+1}], v{V9}, {S_WS}, {base[2]} offen {sc}'
def memp_off(a, dst, add, dt=SDT):
    a(f's_add_u32 s67, {SSTEP}, {add}'); a('s_and_b32 s67, s67, 3'); a('s_lshl_b32 s67, s67, 1'); a(f's_add_u32 s67, s67, {SX}')
    a(f's_mul_i32 s{dst}, s67, 10240'); a(f's_lshl_b32 s{dst+1}, s67, 15'); a(f's_lshl_b32 s67, {dt}, 8')
    a(f's_add_u32 s{dst}, s{dst}, s67'); a(f's_add_u32 s{dst+1}, s{dst+1}, s67'); a(f's_add_u32 s{dst}, s{dst}, {MEML_OFF}')
    a(f's_add_u32 s{dst+1}, s{dst+1}, {SMR}'); a(f's_cmp_ge_u32 {dt}, 24'); a('s_cselect_b32 s67, 10240, 0'); a(f's_add_u32 s{dst+1}, s{dst+1}, s67')

def vo_init_clear(a):
    a(f'v_mov_b32 v{VA+16}, -1'); a(f'v_mov_b32 v{VA+17}, 0')
    ls = a.label('Lnc')
    a(f'buffer_store_dword v{VA+17}, v{VA+17}, {S_WS}, s48 offen sc1')
    a(f's_cmp_ge_u32 {SDT}, 40'); a(f's_cbranch_scc1 {ls}')
    for sl in range(4):
        memp_off(a, 32, sl)
        a(f'buffer_store_dword v{VA+16}, v{V12}, {S_WS}, s32 offen sc1')
        a(f'buffer_store_dword v{VA+16}, v{V12}, {S_WS}, s33 offen sc1')
        a('s_add_u32 s33, s33, 8192')
        a(f'buffer_store_dword v{VA+16}, v{V12}, {S_WS}, s33 offen sc1')
    a(f'{ls}:')

VORD = [[0, 1, 2, 3, 4, 5, 6, 9, 7, 8], [3, 4, 5, 0, 1, 2, 6, 9, 7, 8], [6, 7, 2, 0, 1, 5, 3, 9, 4, 8], [8, 9, 0, 1, 3, 2, 4, 5, 6, 7]]
OORD = [0, 1, 2, 3, 4, 5, 6, 7, 8, 9]
OORD0 = [0, 2, 1, 3, 4, 5, 6, 7, 9, 8]
def pairup(acc, tmp):
    return [f'v_mov_b32_dpp v{tmp}, v{acc} quad_perm:[1,0,3,2] row_mask:0xf bank_mask:0xf', f'v_perm_b32 v{acc}, v{tmp}, v{acc}, v{VXS}']

def vo_loop(a, w, duty, sc, opt):
    n = NCH[w]; VO = VORD[w]
    lg = Trk(a, 'lgkmcnt', 15)
    ltop, lent = a.label('Lvo'), a.label('Lvoent')
    VV = VACC1; PK = VACC0
    EXO = LDS_EX - LDS_MEM
    AP = apos(w, VO)
    OA = {t: (VOX + 44 + 4*i if i < 5 else AP[VO[i - 5]]) for i, t in enumerate(OORD)}
    seq = [(kb, t) for kb in VO[:5] for t in range(3)] + [(kb, t) for t in range(3) for kb in VO[5:]]
    first = [(xfrag(kb, t, 0)[0], VACC0 + 4*t, AP[kb], xfrag(kb, t, 0)[1], [f'A{kb}']) for kb, t in seq]
    oseq = [(t, 0) for t in OORD0] + [(t, kb) for t in OORD for kb in (1, 2)]
    second = [(yfrag(tile, kb)[0], OA[tile], VV + 4*kb, yfrag(tile, kb)[1], [f'V{kb}']) for tile, kb in oseq]
    items, ldsq, k2 = build_stream(first, second)
    sd = Sides()
    stream_head(sd, w, VO, AP, opt, None)
    sd.put(opt.get('gb1', 3), lambda: stamp(a, opt, 1))
    vox = lambda hh: f'buffer_load_dwordx4 v[{VOX+4*hh}:{VOX+4*hh+3}], v{VL16}, {S_WS}, s83 offen offset:{(hh & 3)*1024} {STREAM[0]}'
    vsp = opt.get('vsp', 3)
    NIN = opt.get('nin', 16)
    if duty:
        for hh in range(min(NIN, 11)):
            g = opt.get('vs0', 1) + hh * vsp
            sd.put(g, vox(hh))
            if hh & 3 == 3: sd.put(g + 1, 's_add_u32 s83, s83, 4096')
    zer = [f'v_mov_b32 v{AP[VO[r >> 2]] + (r & 3)}, 0' for r in range(20)]
    sd.valu(3, zer[:14])
    wr = lambda acc, t: ('lds', f'ds_write_b32 v{VXW}, v{acc} offset:{t*1024}', f'VW{t}')
    vpost = lambda t: post(VACC0 + 4*t, VACC0 + 4*t) + zer[14+2*t:16+2*t] + pairup(VACC0 + 4*t, VACC0 + 4*t + 1) + [wr(VACC0 + 4*t, t)]
    vrd = lambda kb: ('lds', f'ds_read_b128 v[{VV+4*kb}:{VV+4*kb+3}], v{VAR} offset:{EXO + kb*1024}', f'V{kb}')
    g = sd.valu(21, vpost(0), 2) - 1
    sd.put(g + 2, ('wait', 'VW0')); sd.put(g + 2, 's_barrier'); sd.lds(g + 2, vrd(0), True)
    g = sd.valu(26, vpost(1), 2)
    g = sd.valu(31, vpost(2), 2)
    sd.put(g + 1, ('wait', 'VW2')); sd.put(g + 1, 's_barrier'); sd.lds(g + 1, vrd(1), True); sd.lds(g + 2, vrd(2), True)
    if opt.get('diag'): sd.put(g + 1, lambda: stamp(a, opt, 0)); sd.put(29, lambda: stamp(a, opt, 5)); sd.put(39, lambda: stamp(a, opt, 7))
    base = ('s44', 's45', 's46')
    tail = []; gfree = 40
    done = set()
    for i, t in enumerate(OORD):
        ins = post(OA[t], PK + t)
        if duty and 11 + i < min(NIN, 16):
            if i == 1: ins.append('s_add_u32 s83, s83, 4096')
            ins.append(vox(11 + i))
        done.add(t)
        q = t >> 2
        if q < 2 and all(4*q + j in done for j in range(4)):
            b = PK + 4*q
            ins += [f'v_permlane16_swap_b32 v{b}, v{b+1}', f'v_permlane16_swap_b32 v{b+2}, v{b+3}',
                    f'v_permlane32_swap_b32 v{b}, v{b+2}', f'v_permlane32_swap_b32 v{b+1}, v{b+3}', vom_store1(b, q, base, sc)]
        if q == 2 and 8 in done and 9 in done:
            ins += [f'v_permlane16_swap_b32 v{PK+8}, v{PK+9}', vom_store1(PK + 8, 2, base, sc)]
        g = max(41 + 2*i + 2, gfree)
        if g < len(items) and not tail: sd.valu(g, ins, 2); gfree = sd.nxt
        else: tail += ins
    ex = []
    for g in sorted(g for g in sd.side if g >= len(items)): ex += sd.side.pop(g)
    tail = ex + tail
    sd.refills(ldsq)

    def top():
        preload_b(a, lg, ldsq)
        a(f's_add_u32 s51, {SSTEP}, 1')
        a(f's_bitcmp1_b32 {SSTEP}, 0'); a('s_cselect_b32 s50, 0x80008000, 0')
        if duty:
            memp_off(a, 77, 1)
            if opt.get('nopf'): a('s_mov_b32 s82, 0')
            else: a(f's_mov_b32 s82, {SSTEP}')
            a(f's_mul_i32 s83, s82, {40*40960}'); a('s_add_u32 s83, s83, s47')
        for r in range(12): a(f'v_mov_b32 v{VACC0+r}, 0')
        for r in range(20): a(f'v_mov_b32 v{VOX+44+r}, 0')
        if duty: check_flags(a, opt, 'Y16')
    a(f's_mov_b32 {SSTEP}, 0')
    top()
    for kb in OWN[w]: a(a_read(kb, AP[kb])[1])
    a('s_waitcnt lgkmcnt(0)')
    a(f's_branch {lent}')
    a(f'{ltop}:')
    lg.reset()
    a('s_barrier')
    top()
    if opt.get('vsleep', 2): a(f's_sleep {opt.get("vsleep", 2)}')
    a('s_waitcnt lgkmcnt(0)')
    ool = gather(a, n, VACC1, {k: v for k, v in opt.items() if k != 'stamps'} if opt.get('diag') else opt, (0, 5, 7), opt.get('vrs', 0), VOX if opt.get('vj', 1) else None)
    a(f'{lent}:')
    lg.reset(); lg.issue('GW')
    merge(a, lg, items, sd.side)
    for s_ in tail:
        a(s_)
    stamp(a, opt, 3)
    ACC = VB + 28
    R, TG = VB + 16, VACC0 + 10
    def ldp():
        for c in range(n): a(f'buffer_load_dwordx4 v[{R+4*c}:{R+4*c+3}], v{VL16}, {S_WS}, s76 offen offset:{c*1024} sc1')
    lt, ltd, lp, ld = [a.label('Lp') for _ in range(4)]
    def pcheck(extra):
        for c in range(n):
            a(f's_waitcnt vmcnt({n - 1 - c + extra})')
            a(f'ds_write_b128 v{VGW}, v[{R+4*c}:{R+4*c+3}] offset:{c*1024}')
            b = R + 4*c
            if c == 0: a(f'v_bitop3_b32 v{VT0}, v{b}, v{b+2}, s50 bitop3:0x7e')
            else: a(f'v_bitop3_b32 v{VT1}, v{b}, v{b+2}, s50 bitop3:0x7e'); a(f'v_or_b32 v{VT0}, v{VT0}, v{VT1}')
            if n == 2: a(f'v_bitop3_b32 v{VT1}, v{b+1}, v{b+3}, s50 bitop3:0x7e'); a(f'v_or_b32 v{VT0}, v{VT0}, v{VT1}')
        a(f'v_cmp_gt_i32 vcc, 0, v{VT0}')
    a(f'v_mov_b32 v{ACC}, s51'); a(f'v_mov_b32 v{ACC+1}, 0')
    gather_setup(a, 1)
    a('s_waitcnt vmcnt(0)')
    a('s_mov_b64 exec, 1')
    a(f'buffer_store_dword v{ACC}, v{ACC+1}, {S_WS}, s48 offen {sc}')
    a('s_mov_b64 exec, -1')
    if duty:
        for hh in range(NIN, 16):
            if hh & 3 == 0 and hh and not (hh == NIN and hh <= 11): a('s_add_u32 s83, s83, 4096')
            a(vox(hh))
        a(f'{lt}:')
        a(f'buffer_load_dword v{TG}, v{VL16}, {S_WS}, s49 offen sc1')
        ldp()
        a(f's_waitcnt vmcnt({n})')
        a(f'v_cmp_gt_u32 vcc, s51, v{TG}')
        poll_tail(a, lt, ltd)
        for q in range(4): a(f'buffer_load_dwordx4 v[{VB+4*q}:{VB+4*q+3}], v{V10}, {S_WS}, s{72+q} offen sc1')
        if not opt.get('diag'): stamp(a, opt, 2)
        for r in range(4): a(f'v_mov_b32 v{ACC+r}, 0')
        pcheck(4)
    else:
        ldp(); pcheck(0)
    a(f's_cbranch_vccnz {lp}')
    a(f'{ld}:')
    stamp(a, opt, 4)
    def ool2():
        a(f'{lp}:')
        ldp(); pcheck(0)
        a(f's_cbranch_vccz {ld}')
        budget_loop(a, lp, ld)
    if not duty: a('s_waitcnt lgkmcnt(0)'); a('s_barrier')
    if duty:
        bop = lambda pp: f'v[{VOX+8*pp}:{VOX+8*pp+7}]' if pp < 8 else f'v[{VB+8*(pp-8)}:{VB+8*(pp-8)+7}]'
        rest = [c for c in range(10) if c not in OWN[w]]
        a(smf(ACC, R, bop(OWN[w][0])))
        a('s_waitcnt lgkmcnt(0)'); a('s_barrier')
        for c in rest[:3]: a(f'ds_read_b128 v[{VA+4*c}:{VA+4*c+3}], v{VAR} offset:{c*1024}')
        k = 3
        for j in range(1, n):
            a(smf(ACC, R + 4*j, bop(OWN[w][j])))
            for c in rest[k:k+2]: a(f'ds_read_b128 v[{VA+4*c}:{VA+4*c+3}], v{VAR} offset:{c*1024}')
            k += 2
        for c in rest[k:]: a(f'ds_read_b128 v[{VA+4*c}:{VA+4*c+3}], v{VAR} offset:{c*1024}')
        for j, pp in enumerate(rest):
            a(f's_waitcnt lgkmcnt({len(rest)-1-j})' if pp != 8 else 's_waitcnt vmcnt(0) lgkmcnt(1)')
            a(smf(ACC, VA + 4*pp, bop(pp)))
        for s_ in post(ACC, ACC): a(s_)
        a(f'v_xor_b32 v{ACC}, s50, v{ACC}')
        for s_ in pairup(ACC, ACC + 1): a(s_)
        for so, fl in ([('s78', 'sc1'), ('s77', sc)] if opt.get('rfirst') else [('s77', sc), ('s78', 'sc1')]):
            a(f'buffer_store_dword v{ACC}, v{V12}, {S_WS}, {so} offen {fl}')
        stamp(a, opt, 6)
    elif w == 3:
        lnext = a.label('Lnx')
        a(f'v_mov_b32 v{VT2}, -1')
        a(f's_and_b32 s35, {SH}, 15')
        for i in range(3):
            if i == 2: a('s_cmp_ge_u32 s35, 40'); a(f's_cbranch_scc1 {lnext}')
            memp_off(a, 55, 3, 's35')
            a(f'buffer_store_dword v{VT2}, v{V12}, {S_WS}, s56 offen sc1')
            a(f'buffer_store_dword v{VT2}, v{V12}, {S_WS}, s55 offen {sc}')
            if i < 2: a('s_add_u32 s35, s35, 16')
        a(f'{lnext}:')
    stamp_flush(a, opt, 8)
    a(f's_add_u32 {SSTEP}, {SSTEP}, 1'); a(f's_cmp_lt_u32 {SSTEP}, 63'); a(f's_cbranch_scc1 {ltop}')
    a('s_waitcnt vmcnt(0)'); a('s_endpgm')
    ool(); ool2()

def chain_main(a, opt):
    lvo = a.label('Lrole_vo')
    tstamp(a, opt, 0, (14, 15))
    STREAM[0] = opt.get('stream', 'sc1')
    a(f's_lshr_b32 {SX}, {SSLOT}, 5'); a(f's_and_b32 s67, {SSLOT}, 15'); a(f's_lshl_b32 {SH}, {SX}, 4'); a(f's_add_u32 {SH}, {SH}, s67')
    a(f's_mov_b32 {STMO}, {opt.get("tmo", 1 << 21)}'); a(f's_mov_b32 {SSTEP}, 0')
    srd(a, S_AUX, 's[38:39]', 8*640*2)
    a(f's_add_u32 {SMR}, s60, {MEMR_OFF + 0x7ffff}'); a(f's_and_b32 {SMR}, {SMR}, 0xfff80000'); a(f's_sub_u32 {SMR}, {SMR}, s60')
    a(f's_mul_i32 s58, {SWV}, 3072'); a(f's_lshl_b32 s67, {SWV}, 11'); a('s_add_u32 s67, s67, 12288'); a(f's_cmp_ge_u32 {SWV}, 2'); a('s_cselect_b32 s58, s67, s58')
    a(f's_mov_b32 {S_ONE0}, 0x00003f80'); a(f's_mov_b32 {S_ONE1}, 0x3f800000')
    a(f's_bitcmp1_b32 {SSLOT}, 4'); a(f's_cbranch_scc1 {lvo}')
    for role in ('qk', 'vo'):
        if role == 'vo': a(f'{lvo}:')
        if role == 'qk':
            srd(a, S_WA, 's[40:41]', 640*6144*2); srd(a, S_WB, 's[42:43]', 640*6144*2); qk_setup(a, opt)
        else:
            srd(a, S_WA, 's[44:45]', 640*6144*2); srd(a, S_WB, 's[46:47]', 640*6144*2); vo_setup(a, opt)
        l1, l2, l3 = a.label('Ls'), a.label('Ls'), a.label('Ls')
        a(f's_mov_b32 {SPC}, 0')
        if role == 'vo': vo_init_clear(a)
        a(f's_cmp_lg_u32 {SWV}, 0'); a(f's_cbranch_scc1 {l2}')
        if role == 'qk': qk_init_clear(a)
        a(f's_lshl_b32 s67, 1, {SXCC}'); a(f'v_mov_b32 v{VT0}, s67'); a(f's_lshl_b32 s67, {SX}, 2'); a(f'v_mov_b32 v{VT1}, s67')
        a('s_mov_b64 exec, 1')
        a(f'buffer_atomic_or v{VT0}, v{VT1}, {S_DBG}, 0 offen sc1')
        a('s_mov_b64 exec, -1')
        mem0_load(a)
        a(f'{l2}:')
        def after_first():
            a(f's_cmp_lg_u32 {SWV}, 0'); a(f's_cbranch_scc1 {l3}')
            a(f'v_mov_b32 v{VT0}, 1'); a(f'v_mov_b32 v{VT1}, {DBG_READY*4}')
            a('s_mov_b64 exec, 1')
            a(f'buffer_atomic_add v{VT0}, v{VT1}, {S_DBG}, 0 offen sc1')
            a('s_mov_b64 exec, -1')
            mem0_write(a)
            a(f'{l3}:')
        loader(a, role, after_first)
        tstamp(a, opt, 1, (14, 15))
        lp, ld, lslow = a.label('Lr'), a.label('Lrd'), a.label('Lslow')
        a(f'v_lshlrev_b32 v{VT1}, 2, v0')
        a(f'{lp}:')
        a(f'buffer_load_dword v{VT0}, v{VT1}, {S_DBG}, 0 offen sc1'); a('s_waitcnt vmcnt(0)')
        a(f'v_readlane_b32 s67, v{VT0}, {DBG_READY}')
        a(f'v_readlane_b32 s68, v{VT0}, {DBG_VOTE}'); a(f's_cmp_lt_u32 s68, {NAREA*256}'); a('s_cselect_b32 s67, 0, s67')
        if not opt.get('noflags'):
            a(f'v_readlane_b32 s68, v{VT0}, {DBG_AREA}'); a(f's_cmp_lt_u32 s68, {NAREA}'); a('s_cselect_b32 s67, 0, s67')
        a(f's_cmp_eq_u32 {STMO}, 0'); a(f's_cbranch_scc1 {ld}')
        a(f's_sub_u32 {STMO}, {STMO}, 1')
        a('s_cmp_lt_u32 s67, 64'); a(f's_cbranch_scc1 {lp}')
        a(f'{ld}:')
        a(f'v_readlane_b32 s67, v{VT0}, {DBG_VOTE}'); a('s_and_b32 s67, s67, 255'); a(f's_cmp_gt_u32 s67, {NAREA//2}'); a('s_cselect_b32 s67, 1, 0')
        a(f'v_readlane_b32 s68, v{VT0}, 0'); a('s_cmp_gt_u32 s68, 15'); a('s_cselect_b32 s68, 1, 0'); a('s_xor_b32 s67, s67, s68'); a('s_lshl_b32 s67, s67, 13')
        if 'par' in opt: a(f's_mov_b32 s67, {opt["par"]*8192}')
        a(f's_add_u32 {SMR}, {SMR}, s67')
        a(f'v_readlane_b32 s67, v{VT0}, 0'); a(f'v_readlane_b32 s68, v{VT0}, 1')
        a('s_bcnt1_i32_b32 s67, s67'); a('s_bcnt1_i32_b32 s68, s68'); a('s_max_u32 s67, s67, s68')
        if opt.get('force_slow'): a('s_mov_b32 s67, 2')
        a('s_cmp_lg_u32 s67, 1'); a(f's_cbranch_scc1 {lslow}')
        for sc in ('', 'sc1'):
            if sc: a(f'{lslow}:')
            if role == 'qk':
                labs = [a.label('Lw') for _ in range(4)]
                for w in range(1, 4): a(f's_cmp_eq_u32 {SWV}, {w}'); a(f's_cbranch_scc1 {labs[w]}')
                for w in range(4):
                    a(f'{labs[w]}:'); qk_loop(a, w, sc, opt)
            else:
                labs = [a.label('Lw') for _ in range(5)]
                a(f's_cmp_eq_u32 {SWV}, 1'); a(f's_cbranch_scc1 {labs[1]}'); a(f's_cmp_eq_u32 {SWV}, 3'); a(f's_cbranch_scc1 {labs[4]}')
                a(f's_cmp_ge_u32 {SDT}, 40'); a(f's_cbranch_scc1 {labs[3]}'); a(f's_cmp_eq_u32 {SWV}, 2'); a(f's_cbranch_scc1 {labs[2]}')
                for i, (w, duty) in enumerate([(0, True), (1, True), (2, True), (2, False), (3, False)]):
                    a(f'{labs[i]}:'); vo_loop(a, w, duty, sc, opt)
```

```python
from common import *

SG, SU = 's62', 's63'
SSEG = 's66'
S_X = 's[20:23]'
VL16, VD, VFLG, VONE, VT0, VT1, VRD, VPV, VMAX = 1, 2, 3, 4, 5, 6, 7, 8, 9
VR0 = 10
WRING = 81920

def mfma(d, A, B, first): return f'v_mfma_f32_16x16x32_bf16 v[{d}:{d+3}], {A}, {B}, ' + ('0' if first else f'v[{d}:{d+3}]')
def allred(op, v, t):
    r = []
    for st in (16, 32): r += [f'v_mov_b32 v{t}, v{v}', f'v_permlane{st}_swap_b32 v{v}, v{t}', f'{op} v{v}, v{v}, v{t}']
    return r
def wreg(f, vbase):
    return ('a', 4*f) if f < 64 else ('v', vbase + 4*(f - 64))
def wstr(f, vbase):
    k, b = wreg(f, vbase); return f'{k}[{b}:{b+3}]'

def area_wait(a):
    lp, ld = a.label('Lgp'), a.label('Lgd')
    a(f's_mov_b32 s92, {DBG_AREA*4}')
    a(f'{lp}:')
    a(f'buffer_load_dword v{VT0}, v{VFLG}, {S_DBG}, s92 offen sc1'); a('s_waitcnt vmcnt(0)')
    a(f'v_readfirstlane_b32 s93, v{VT0}')
    a(f's_cmp_ge_u32 s93, {NAREA}'); a(f's_cbranch_scc1 {ld}')
    a('s_sleep 8')
    budget_loop(a, lp, ld)
    a(f'{ld}:')
def ln_wait(a):
    lp, ld = a.label('Lgp'), a.label('Lgd')
    a(f'v_lshlrev_b32 v{VT1}, 7, v0'); a(f's_mov_b32 s92, {LNF_OFF}')
    a(f'{lp}:')
    a(f'buffer_load_dword v{VT0}, v{VT1}, {S_WS}, s92 offen sc1'); a('s_waitcnt vmcnt(0)')
    a(f'v_cmp_ne_u32 vcc, 1, v{VT0}')
    a(f's_cbranch_vccz {ld}')
    a('s_sleep 4')
    budget_loop(a, lp, ld)
    a(f'{ld}:')

def wloader(a, nsl, soff, dest, stride, hook):
    vm = Trk(a, 'vmcnt', 63)
    a(f'v_lshrrev_b32 v20, 3, v0'); a('v_and_b32 v21, 6, v20'); a(f'v_and_b32 v{VD}, 7, v0')
    a(f'v_xor_b32 v{VD}, v{VD}, v21'); a(f'v_lshlrev_b32 v{VD}, 4, v{VD}'); a(f'v_mad_u32_u24 v{VD}, v20, {stride}, v{VD}')
    a(f's_lshl_b32 s71, {stride}, 3')
    a(f's_mul_i32 s72, {SWV}, 20480'); a(f's_add_u32 s72, s72, {WRING}')
    def dma(n):
        for s_ in soff(n): a(s_)
        for rb in range(4):
            a(f's_add_u32 m0, s72, {(n % 5)*4096 + rb*1024}')
            if rb: a('s_add_u32 s73, s73, s71')
            else: a('s_nop 0')
            a(f'buffer_load_dwordx4 v{VD}, {S_WA}, s73 offen lds'); vm.issue(n)
    for n in range(5): dma(n)
    row = lambda l: 4*((l >> 4) & 1) + ((l >> 2) & 3)
    lanefn(a, 20, lambda l: (row(l) & 6) | ((l >> 1) & 1), 21)
    lanefn(a, VR0, lambda l: (l >> 5)*1024 + row(l)*128 + (l & 1)*8, 21)
    a(f'v_lshl_add_u32 v{VR0}, v20, 4, v{VR0}'); a(f'v_add_u32 v{VR0}, s72, v{VR0}')
    for tt in range(1, 4): a(f'v_xor_b32 v{VR0+tt}, {tt*32}, v{VR0}')
    for n in range(nsl):
        vm.wait(n)
        for tt in range(4):
            k, b = dest(n, tt)
            for x in range(2): a(f'ds_read_b64_tr_b16 {k}[{b+2*x}:{b+2*x+1}], v{VR0+tt} offset:{(n % 5)*4096 + x*2048}')
        hook(n, vm)
        a('s_waitcnt lgkmcnt(0)')
        if n + 5 < nsl: dma(n + 5)

def spread(lst, n, total):
    return (lst * (n + 1) + total - 1) // total - (lst * n + total - 1) // total

def x_unit(a, opt):
    ACC, XB, STG, WV = 64, 128, 160, 192
    SSTR, SPRG, SOB, SOS, SXD, SXL = 's74', 's75', 's76', 's77', 's78', 's79'
    a(f's_mul_i32 s67, {SU}, 43'); a('s_lshr_b32 s67, s67, 10')
    a('s_mul_i32 s68, s67, 24'); a(f's_sub_u32 s68, {SU}, s68')
    a('s_lshl_b32 s68, s68, 2'); a(f's_add_u32 s68, s68, {SWV}')
    a('s_lshl_b32 s70, s68, 7')
    a('s_mov_b32 s16, s40'); a('s_mov_b32 s17, s41')
    for m, p in ((1, 42), (2, 44), (3, 52)):
        a(f's_cmp_eq_u32 s67, {m}'); a(f's_cselect_b32 s16, s{p}, s16'); a(f's_cselect_b32 s17, s{p+1}, s17')
    a(f's_cselect_b32 {SSTR}, 3, 12'); a(f's_cselect_b32 s69, 0, 0x80008000'); a(f'v_mov_b32 v{VMAX}, s69')
    a(f's_mul_i32 {SSTR}, {SSTR}, 1024'); a(f's_mul_i32 s18, {SSTR}, 640')
    a(f's_lshl_b32 {SPRG}, {SU}, 9'); a(f's_lshl_b32 s69, {SWV}, 7'); a(f's_add_u32 {SPRG}, {SPRG}, s69'); a(f's_add_u32 {SPRG}, {SPRG}, {PRGX_OFF}')
    a('s_mul_i32 s69, s68, 171'); a('s_lshr_b32 s69, s69, 9')
    a('s_mul_i32 s80, s69, 3'); a('s_sub_u32 s80, s68, s80'); a('s_lshl_b32 s80, s80, 11')
    a(f's_mul_i32 {SOB}, s69, 12288'); a(f's_add_u32 {SOB}, {SOB}, s80')
    a(f's_mov_b32 s69, {QF_OFF}')
    a('s_cmp_eq_u32 s67, 1'); a(f's_cselect_b32 s69, {KF_OFF}, s69')
    a('s_cmp_eq_u32 s67, 2'); a(f's_cselect_b32 s69, {VF_OFF}, s69')
    a('s_cmp_eq_u32 s67, 3'); a(f's_cselect_b32 s69, {VF_OFF + 32*12288}, s69')
    a(f's_add_u32 {SOB}, {SOB}, s69')
    a('s_cmp_ge_u32 s67, 2'); a(f's_cselect_b32 {SOS}, 40, 32'); a(f's_mul_i32 {SOS}, {SOS}, 12288')
    a(f's_lshl_b32 s81, {SSTR}, 5')
    SNX, SNM, SCNT, SNJ = 's85', 's86', 's87', 's88'
    J = ['s89', 's90', 's91', 's94']
    a('s_sub_u32 s69, s67, 1'); a('s_cmp_lt_u32 s69, 2'); a(f's_cselect_b32 {SCNT}, 12, 0xffff'); a(f's_cselect_b32 {SNJ}, 77, 64')
    a(f's_mov_b32 {SNX}, 0'); a(f's_mov_b32 {SNM}, 0')
    a(f's_mul_i32 s95, {SWV}, 10240'); a(f's_mov_b32 {SXL}, s95')
    ools = []
    def mwait():
        lp, ld = a.label('Lmp'), a.label('Lmd')
        a(f'v_min_u32 v{VT1}, 9, v0'); a(f'v_lshlrev_b32 v{VT1}, 7, v{VT1}'); a(f's_lshl_b32 s92, {SNM}, 2'); a('s_add_u32 s92, s92, 4'); a(f's_mov_b32 s93, {MPRG_OFF}')
        a(f'{lp}:')
        a(f'buffer_load_dword v{VT0}, v{VT1}, {S_WS}, s93 offen sc1'); a('s_waitcnt vmcnt(0)')
        a(f'v_cmp_gt_u32 vcc, s92, v{VT0}')
        a(f's_cbranch_vccz {ld}')
        a(f's_sleep {opt.get("msleep", 4)}')
        budget_loop(a, lp, ld)
        a(f'{ld}:')
    def nextjob(dst):
        lm, lb = a.label('Lnm'), a.label('Lnb')
        def br(): a(f's_cbranch_scc1 {lm}'); a(f's_mov_b32 {dst}, {SNX}'); a(f's_add_u32 {SNX}, {SNX}, 1'); a(f's_sub_u32 {SCNT}, {SCNT}, 1'); a(f'{lb}:')
        def ool():
            a(f'{lm}:'); mwait()
            a(f's_add_u32 {dst}, {SNM}, 64'); a(f's_add_u32 {SNM}, {SNM}, 1'); a(f's_cmp_lt_u32 {SNM}, 13'); a(f's_cselect_b32 {SCNT}, 4, 0xffff')
            a(f's_branch {lb}')
        ools.append(ool)
        return [f's_cmp_eq_u32 {SCNT}, 0', br, f's_mul_i32 {SXD}, {dst}, 40960', f's_add_u32 {SXD}, {SXD}, s95']
    def xdma():
        r = []
        for j in range(10):
            if j % 4 == 0: r += [f's_add_u32 m0, {SXL}, {j*1024}', f's_add_u32 s73, {SXD}, {XN_OFF + j*1024}']
            r.append(f'buffer_load_dwordx4 v{VL16}, {S_WS}, s73 offen offset:{(j&3)*1024} sc1 lds')
        return r
    def xadv(): return [f's_add_u32 {SXL}, {SXL}, 40960', f's_cmp_ge_u32 {SXL}, 163840', 's_cselect_b32 s73, 163840, 0', f's_sub_u32 {SXL}, {SXL}, s73']
    def em(lst):
        for s_ in lst:
            if callable(s_): s_()
            elif s_: a(s_)
    def hook(n, vm):
        if n == opt.get('lnat', 19):
            lw = a.label('Lxw')
            a(f's_cmp_lg_u32 {SWV}, 0'); a(f's_cbranch_scc1 {lw}')
            area_wait(a); ln_wait(a)
            a(f'{lw}:'); a('s_barrier')
            for j in range(2):
                em(nextjob(J[1 + j]) + xdma() + xadv())
                for _ in range(10): vm.issue('x')
    wloader(a, 20, lambda n: [f's_mul_i32 s73, s81, {n}', 's_add_u32 s73, s73, s70'], lambda n, tt: wreg(n*4 + tt, WV), SSTR, hook)
    a('s_waitcnt vmcnt(0)'); a('s_barrier')
    tstamp(a, opt, 1, (14, 15))
    em(nextjob(J[3]) + xdma())
    LA = 4
    def xread(f):
        kk, ct = f >> 1, f & 1; b = XB + (f % 8)*4
        return f'ds_read_b128 v[{b}:{b+3}], v{VRD} offset:{ct*20480 + kk*1024}'
    a(f'v_mov_b32 v{VRD}, v{VL16}'); a('s_mov_b32 s82, 0')
    for f in range(LA): a(xread(f))
    def epi(par):
        r = [f's_mul_i32 s84, {J[0]}, {SOS}', f's_add_u32 s84, s84, {SOB}', 's_add_u32 s83, s84, 6144',
             f's_sub_u32 s93, {J[0]}, 8', 's_max_i32 s93, s93, 0', 's_lshr_b32 s93, s93, 2', f's_add_u32 s93, s93, {J[0]}',
             f's_mul_i32 s92, {J[0]}, 5', 's_sub_u32 s92, s92, 308', f's_min_u32 s92, s92, {J[0]}',
             f's_cmp_lt_u32 {J[0]}, 64', 's_cselect_b32 s93, s93, s92', 's_add_u32 s93, s93, 1', f'v_mov_b32 v{VPV}, s93']
        for ct in range(2):
            for j in range(2):
                o = STG + (ct*2 + j)*4
                for x in range(4):
                    b = ACC + par*32 + ((2*j + (x >> 1))*2 + ct)*4 + (x & 1)*2
                    r.append(f'v_cvt_pk_bf16_f32 v{o+x}, v{b}, v{b+1}')
                for x in range(4): r.append(f'v_pk_max_i16 v{o+x}, v{o+x}, v{VMAX}')
                r.append(f'buffer_store_dwordx4 v[{o}:{o+3}], v{VL16}, {S_WS}, {"s84" if ct == 0 else "s83"} offen offset:{j*1024} sc1')
        return r
    def prg(): return ['s_waitcnt vmcnt(0)', f'buffer_store_dword v{VPV}, v{VFLG}, {S_WS}, {SPRG} offen sc1']
    def stream(par, early, mid, late, cont):
        ne, nl = len(early), len(late)
        for n in range(160):
            f, tt = n >> 2, n & 3
            kk, ct = f >> 1, f & 1
            if tt == 0: a(f's_waitcnt lgkmcnt({LA-1 if (cont or f + LA <= 40) else 39 - f})')
            d = ACC + par*32 + (tt*2 + ct)*4; b = XB + (f % 8)*4
            a(mfma(d, wstr(kk*4 + tt, WV), f'v[{b}:{b+3}]', kk == 0))
            if n == 143 and cont: a('s_barrier'); a(f'v_add_u32 v{VRD}, s82, v{VL16}')
            if tt == 0 and (cont or f + LA < 40): a(xread((f + LA) % 40))
            if n < 70: em([early.pop(0) for _ in range(spread(ne, n, 70))])
            if n == opt.get('xpg', 112): em(mid)
            if n >= 144: em([late.pop(0) for _ in range(spread(nl, n - 144, 16))])
        assert not early and not late
    a(f's_mov_b32 {SSEG}, 0'); a(f's_mov_b32 s64, {SOB}'); a(f's_mov_b32 {SOB}, {OOB}'); a(f's_mov_b32 s7, {SPRG}'); a(f's_mov_b32 {SPRG}, {OOB}'); a(f's_mov_b32 {J[0]}, 0')
    lt, lx0, lx1, ltail = a.label('Lx'), a.label('Lx'), a.label('Lx'), a.label('Lx')
    a(f'{lt}:')
    for par in range(2):
        early = [None, None, None] + epi(par ^ 1) + xadv() + ['s_add_u32 s82, s82, 40960', 's_cmp_ge_u32 s82, 163840', 's_cselect_b32 s82, 0, s82']
        mid = prg() + [f's_mov_b32 {SOB}, s64', f's_mov_b32 {SPRG}, s7', f's_mov_b32 {J[0]}, {J[1]}', f's_mov_b32 {J[1]}, {J[2]}', f's_mov_b32 {J[2]}, {J[3]}'] + nextjob(J[3])
        stream(par, early, mid, xdma(), True)
        tstamp(a, opt, (SSEG, 8), (14, 15))
        a(f's_add_u32 {SSEG}, {SSEG}, 1'); a(f's_cmp_ge_u32 {SSEG}, {SNJ}'); a(f's_cbranch_scc1 {lx0 if par == 0 else lx1}')
    a(f's_branch {lt}')
    a(f'{lx1}:')
    em(epi(1) + prg())
    a('s_waitcnt vmcnt(0) lgkmcnt(0)'); a('s_endpgm')
    a(f'{lx0}:')
    em(epi(0) + prg())
    a(f'{ltail}:')
    mwait()
    a(f's_add_u32 {J[0]}, {SNM}, 64'); a(f's_mul_i32 {SXD}, {J[0]}, 40960'); a(f's_add_u32 {SXD}, {SXD}, s95'); a(f's_mov_b32 {SXL}, s95')
    a('s_waitcnt lgkmcnt(0)'); a('s_barrier')
    em(xdma())
    a(f'v_mov_b32 v{VRD}, v{VL16}')
    a('s_waitcnt vmcnt(0)'); a('s_barrier')
    for f in range(LA): a(xread(f))
    stream(0, [], [], [], False)
    em(epi(0) + prg())
    tstamp(a, opt, (SSEG, 8), (14, 15))
    a(f's_add_u32 {SSEG}, {SSEG}, 1')
    a(f's_add_u32 {SNM}, {SNM}, 1'); a(f's_cmp_lt_u32 {SNM}, 16'); a(f's_cbranch_scc1 {ltail}')
    a('s_waitcnt vmcnt(0)'); a('s_endpgm')
    for o in ools: o()

def y_unit(a, opt):
    VF, ACC, STG, WV = 64, 112, 128, 224
    SPRG, SOB, SVB, SPX, SPA = 's75', 's76', 's77', 's78', 's79'
    a(f's_cmp_ge_u32 {SU}, 32'); a('s_cselect_b32 s16, s54, s46'); a('s_cselect_b32 s17, s55, s47')
    a('s_cselect_b32 s18, 1, 4'); a(f's_mul_i32 s18, s18, {1536*1280}')
    a(f's_and_b32 s67, {SU}, 31'); a(f's_mul_i32 s70, s67, {192*1280}'); a(f's_lshl_b32 s67, {SWV}, 7'); a('s_add_u32 s70, s70, s67')
    a(f's_mul_i32 {SPRG}, {SWV}, 40'); a(f's_add_u32 {SPRG}, {SPRG}, {SU}'); a(f's_lshl_b32 {SPRG}, {SPRG}, 7'); a(f's_add_u32 {SPRG}, {SPRG}, {PRGY_OFF}')
    SJOB, SNX, SNM, SCNT, SPOS, SMB = 's84', 's85', 's86', 's87', 's88', 's89'
    VMJ = 16
    a(f's_lshl_b32 {SOB}, {SU}, 10'); a(f's_mul_i32 s67, {SWV}, {4*40960}'); a(f's_add_u32 {SOB}, {SOB}, s67'); a(f's_add_u32 {SOB}, {SOB}, {VOF_OFF}')
    a(f's_mul_i32 {SMB}, {SU}, 10240'); a(f's_lshl_b32 s67, {SWV}, 10'); a(f's_add_u32 {SMB}, {SMB}, s67'); a(f's_add_u32 {SMB}, {SMB}, {VOM_OFF}')
    a(f's_mul_i32 {SVB}, {SU}, 12288'); a(f's_and_b32 s67, {SWV}, 1'); a('s_mul_i32 s80, s67, 6144'); a(f's_add_u32 {SVB}, {SVB}, s80'); a(f's_add_u32 {SVB}, {SVB}, {VF_OFF}')
    a(f's_mul_i32 {SPA}, {SU}, 384'); a(f's_add_u32 {SPA}, {SPA}, {PRGX_OFF + 192*128}'); a(f's_mov_b32 {SPX}, 0')
    lanefn(a, VMJ, lambda l: (l >> 5)*327680 + (l & 15)*16 + ((l >> 4) & 1)*8, 17)
    a('s_mov_b32 s74, 1280')
    l2 = a.label('Ly2')
    a(f's_cmp_ge_u32 {SWV}, 2'); a(f's_cbranch_scc1 {l2}')
    for ng in (3, 2):
        if ng == 2: a(f'{l2}:')
        def hook(n, vm): pass
        wloader(a, 6*ng, lambda n: [f's_add_u32 s73, s70, {(n // 6)*512 + (n % 6)*32*1280}'],
                lambda n, tt: wreg(((n // 6)*4 + tt)*6 + n % 6, WV), 's74', hook)
        tstamp(a, opt, 1, (14, 15))
        def fetch():
            lp, ld = a.label('Lyp'), a.label('Lyd')
            a(f's_cmp_gt_u32 {SPX}, {SPOS}'); a(f's_cbranch_scc1 {ld}')
            a(f'v_min_u32 v{VT1}, 2, v0'); a(f'v_lshlrev_b32 v{VT1}, 7, v{VT1}')
            a(f'{lp}:')
            a(f'buffer_load_dword v{VT0}, v{VT1}, {S_WS}, {SPA} offen sc1'); a('s_waitcnt vmcnt(0)')
            for j in range(3): a(f'v_readlane_b32 s{81+j}, v{VT0}, {j}')
            a('s_min_u32 s81, s81, s82'); a(f's_min_u32 {SPX}, s81, s83')
            a(f's_cmp_gt_u32 {SPX}, {SPOS}'); a(f's_cbranch_scc1 {ld}')
            a('s_sleep 2')
            budget_loop(a, lp, ld)
            a(f'{ld}:')
            a(f's_and_b32 s81, {SSEG}, 1'); a('s_mul_i32 s81, s81, 12288'); a('s_add_u32 s81, s81, s80')
            a(f's_mul_i32 s82, {SJOB}, {40*12288}'); a(f's_add_u32 s82, s82, {SVB}')
            for j in range(6):
                if j % 4 == 0: a(f's_add_u32 m0, s81, {j*1024}'); a(f's_add_u32 s73, s82, {j*1024}')
                a(f'buffer_load_dwordx4 v{VL16}, {S_WS}, s73 offen offset:{(j&3)*1024} sc1 lds')
        a(f's_mov_b32 {SSEG}, 0'); a(f's_mov_b32 {SJOB}, 0'); a(f's_mov_b32 {SPOS}, 0'); a(f's_mov_b32 {SNX}, 1'); a(f's_mov_b32 {SNM}, 0'); a(f's_mov_b32 {SCNT}, 11')
        a(f'v_mov_b32 v{VPV}, 0')
        if ng == 2:
            area_wait(a)
            fetch(); a('s_waitcnt vmcnt(0)')
        lt, lm, lj, le, lnx, lsk, lgo = [a.label('Ly') for _ in range(7)]
        a(f'{lt}:')
        a(f's_and_b32 s81, {SSEG}, 1'); a('s_mul_i32 s81, s81, 12288'); a(f'v_add_u32 v{VRD}, s81, v{VL16}')
        a(f's_mul_i32 s90, {SJOB}, {40*40960}'); a(f's_add_u32 s90, s90, {SOB}')
        a(f's_sub_u32 s91, {SJOB}, 64'); a(f's_mul_i32 s91, s91, {4*327680}'); a(f's_add_u32 s91, s91, {SMB}')
        a('s_barrier')
        for ks in range(6):
            for ct in range(2):
                b = VF + (ct*6 + ks)*4
                a(f'ds_read_b128 v[{b}:{b+3}], v{VRD} offset:{(ct*6 + ks)*1024}')
        a(f's_cmp_ge_u32 {SJOB}, 64'); a(f's_cbranch_scc1 {lm}')
        for mj in (0, 1):
            if mj: a(f'{lm}:')
            def out(i):
                gi, tt = i >> 2, i & 3
                o = STG + (i & 3)*4
                if mj: r = [f's_add_u32 s82, s91, {gi*4096}', f's_add_u32 s83, s91, {gi*4096 + 2*327680}'] if tt == 0 else []
                else: r = [f's_add_u32 s83, s90, {(16*gi + tt)*40960}']
                for ct in range(2):
                    b = ACC + (i & 1)*8 + ct*4
                    for x in range(2): r.append(f'v_cvt_pk_bf16_f32 v{o+2*ct+x}, v{b+2*x}, v{b+2*x+1}')
                if mj: r += [f'buffer_store_dwordx2 v[{o+2*ct}:{o+2*ct+1}], v{VMJ}, {S_WS}, s{82+ct} offen offset:{tt*256} sc1' for ct in range(2)]
                else: r.append(f'buffer_store_dwordx4 v[{o}:{o+3}], v{VL16}, {S_WS}, s83 offen sc1')
                return r
            for i in range(4*ng):
                side = [None]*4 + out(i - 1) if i else []
                if ng == 3 and i == 7:
                    side[0:2] = [f's_waitcnt vmcnt({12 if mj else 6})', f'buffer_store_dword v{VPV}, v{VFLG}, {S_WS}, {SPRG} offen sc1']
                for n in range(12):
                    ks, ct = n >> 1, n & 1
                    if i == 0: a(f's_waitcnt lgkmcnt({11 - n})')
                    b = VF + (ct*6 + ks)*4
                    a(mfma(ACC + (i & 1)*8 + ct*4, f'v[{b}:{b+3}]', wstr(i*6 + ks, WV), ks == 0))
                    if side:
                        s_ = side.pop(0)
                        if s_: a(s_)
                assert not side, side
            for s_ in out(4*ng - 1): a(s_)
            if not mj: a(f's_branch {lj}')
        a(f'{lj}:')
        tstamp(a, opt, (SSEG, 8), (14, 15))
        a(f's_add_u32 {SPOS}, {SPOS}, 1'); a(f'v_mov_b32 v{VPV}, {SPOS}'); a(f's_add_u32 {SSEG}, {SSEG}, 1')
        a(f's_cmp_lg_u32 {SCNT}, 0'); a(f's_cbranch_scc1 {lnx}')
        a(f's_add_u32 {SJOB}, {SNM}, 64'); a(f's_add_u32 {SNM}, {SNM}, 1'); a(f's_cmp_lt_u32 {SNX}, 64'); a(f's_cselect_b32 {SCNT}, 4, 0')
        a(f's_cmp_gt_u32 {SJOB}, 79'); a(f's_cbranch_scc1 {le}')
        a(f's_cmp_lt_u32 {SU}, 32'); a(f's_cbranch_scc1 {lgo}')
        a(f's_cmp_ge_u32 {SNX}, 64'); a(f's_cbranch_scc1 {le}')
        a(f's_add_u32 {SPOS}, {SPOS}, 1')
        a(f'{lnx}:')
        a(f's_mov_b32 {SJOB}, {SNX}'); a(f's_add_u32 {SNX}, {SNX}, 1'); a(f's_sub_u32 {SCNT}, {SCNT}, 1')
        a(f'{lgo}:')
        if ng == 2:
            lq = a.label('Lyq')
            a(f's_cmp_gt_u32 {SPX}, {SPOS}'); a(f's_cbranch_scc1 {lq}')
            a('s_waitcnt vmcnt(0)'); a(f'buffer_store_dword v{VPV}, v{VFLG}, {S_WS}, {SPRG} offen sc1')
            a(f'{lq}:')
            fetch()
            a('s_waitcnt vmcnt(0)')
            a(f'buffer_store_dword v{VPV}, v{VFLG}, {S_WS}, {SPRG} offen sc1')
        else:
            lq = a.label('Lyq')
            a(f's_cmp_lt_u32 {SJOB}, 64'); a(f's_cbranch_scc1 {lt}')
            a('s_waitcnt vmcnt(0)'); a(f'buffer_store_dword v{VPV}, v{VFLG}, {S_WS}, {SPRG} offen sc1')
        a(f's_branch {lt}')
        a(f'{le}:')
        a('s_waitcnt vmcnt(0)')
        a(f'buffer_store_dword v{VPV}, v{VFLG}, {S_WS}, {SPRG} offen sc1')
        a('s_waitcnt vmcnt(0)'); a('s_endpgm')

def layer_norm(a):
    L, F, G, T = 16, 64, 144, 224
    lanefn(a, VT0, lambda l: (l & 15)*1280 + (l >> 4)*8, VT1, 5*64)
    a(f's_mul_i32 s68, {SU}, {32*1280}'); a(f's_add_u32 s69, s68, {16*1280}')
    for c in range(2):
        for k in range(5):
            for x in range(2): a(f'buffer_load_dwordx2 v[{L+20*c+4*k+2*x}:{L+20*c+4*k+2*x+1}], v{VT0}, {S_X}, s{68+c} offen offset:{k*64 + x*32}')
    AW, AR, TT = T + 16, T + 17, T + 18
    lanefn(a, AR, lambda l: (l & 15)*16, TT)
    a(f's_lshl_b32 s67, {SWV}, 2'); a(f'v_add_u32 v{AW}, s67, v{AR}')
    def unpack(c):
        for j in range(20):
            a(f'v_lshlrev_b32 v{F+40*c+2*j}, 16, v{L+20*c+j}'); a(f'v_and_b32 v{F+40*c+2*j+1}, 0xffff0000, v{L+20*c+j}')
    def xchg(off, reg):
        for c in range(2):
            v = T + 8*c + reg
            a(f'v_add_f32 v{v}, v{v}, v{v+1}')
            for s_ in allred('v_add_f32', v, TT): a(s_)
            a(f'ds_write_b32 v{AW}, v{v} offset:{off + c*256}')
        a('s_waitcnt lgkmcnt(0)'); a('s_barrier')
        for c in range(2): a(f'ds_read_b128 v[{T+8*c+4}:{T+8*c+7}], v{AR} offset:{off + c*256}')
        a('s_waitcnt lgkmcnt(0)')
        for c in range(2):
            q = T + 8*c + 4
            a(f'v_add_f32 v{q}, v{q}, v{q+1}'); a(f'v_add_f32 v{q+2}, v{q+2}, v{q+3}'); a(f'v_add_f32 v{T+8*c+reg}, v{q}, v{q+2}')
    pr = lambda r: f'v[{r}:{r+1}]'
    for c in range(2):
        a(f's_waitcnt vmcnt({10*(1-c)})'); unpack(c)
        f, t = F + 40*c, T + 8*c
        a(f'v_pk_add_f32 {pr(t)}, {pr(f)}, {pr(f+2)}')
        for j in range(2, 20): a(f'v_pk_add_f32 {pr(t)}, {pr(t)}, {pr(f+2*j)}')
    xchg(0, 0)
    a(f's_mov_b32 s67, {f2u(-1.0/640):#x}')
    for c in range(2):
        f, g, t = F + 40*c, G + 40*c, T + 8*c
        a(f'v_mul_f32 v{t}, s67, v{t}'); a(f'v_mov_b32 v{t+1}, v{t}')
        for j in range(20): a(f'v_pk_add_f32 {pr(g+2*j)}, {pr(f+2*j)}, {pr(t)}')
        a(f'v_pk_mul_f32 {pr(t+2)}, {pr(g)}, {pr(g)}')
        for j in range(1, 20): a(f'v_pk_fma_f32 {pr(t+2)}, {pr(g+2*j)}, {pr(g+2*j)}, {pr(t+2)}')
    xchg(512, 2)
    def rnd(v): a(f'v_cvt_pk_bf16_f32 v{v}, v{v}, v{v}'); a(f'v_lshlrev_b32 v{v}, 16, v{v}')
    a(f's_mov_b32 s67, {f2u(1.0/640):#x}')
    a(f's_mul_i32 s68, {SU}, 40960'); a(f's_mul_i32 s69, {SWV}, 5120'); a('s_add_u32 s68, s68, s69')
    if XN_OFF: a(f's_add_u32 s68, s68, {XN_OFF}')
    for c in range(2):
        f, t, l = F + 40*c, T + 8*c, L + 20*c
        a(f'v_mul_f32 v{t+2}, s67, v{t+2}'); rnd(t + 2)
        a(f'v_add_f32 v{t+2}, {f2u(1e-5):#x}, v{t+2}'); rnd(t + 2)
        a(f'v_sqrt_f32 v{t+2}, v{t+2}'); rnd(t + 2)
        a(f'v_rcp_f32 v{t+2}, v{t+2}'); rnd(t); a(f'v_mov_b32 v{t+3}, v{t+2}'); a(f'v_mov_b32 v{t+1}, v{t}')
        for j in range(20): a(f'v_pk_add_f32 {pr(f+2*j)}, {pr(f+2*j)}, {pr(t)}')
        for j in range(20): a(f'v_cvt_pk_bf16_f32 v{l+j}, v{f+2*j}, v{f+2*j+1}')
        unpack(c)
        for j in range(20): a(f'v_pk_mul_f32 {pr(f+2*j)}, {pr(f+2*j)}, {pr(t+2)}')
        for j in range(20): a(f'v_cvt_pk_bf16_f32 v{l+j}, v{f+2*j}, v{f+2*j+1}')
        a('s_add_u32 s69, s68, 4096')
        for k in range(5):
            a(f'buffer_store_dwordx4 v[{l+4*k}:{l+4*k+3}], v{VL16}, {S_WS}, {"s68" if k < 4 else "s69"} offen offset:{(k&3)*1024} sc1')
        a('s_add_u32 s68, s68, 20480')
    area_wait(a)
    a('s_barrier')
    a(f's_lshl_b32 s68, {SU}, 7'); a(f's_add_u32 s68, s68, {LNF_OFF}')
    a(f'buffer_store_dword v{VONE}, v{VFLG}, {S_WS}, s68 offen sc1')

SC = 0.07216878364870322 * 1.4426950408889634
def posx(a, dst, seg): a(f's_sub_u32 {dst}, {seg}, 8'); a(f's_max_i32 {dst}, {dst}, 0'); a(f's_lshr_b32 {dst}, {dst}, 2'); a(f's_add_u32 {dst}, {dst}, {seg}')
def posm(a, dst, b, t): a(f's_mul_i32 {dst}, {b}, 5'); a(f's_add_u32 {dst}, {dst}, 12'); a(f's_add_u32 {t}, {b}, 64'); a(f's_min_u32 {dst}, {dst}, {t}')
def poll_gt(a, opt, voff, soff, thr, T, sleep):
    lp, ld = a.label('Lq'), a.label('Lqd')
    a(f'{lp}:')
    a(f'buffer_load_dword v{T}, v{voff}, {S_WS}, {soff} offen sc1'); a('s_waitcnt vmcnt(0)')
    a(f'v_cmp_ge_u32 vcc, {thr}, v{T}')
    a(f's_cbranch_vccz {ld}')
    a(f's_sleep {sleep}')
    budget_loop(a, lp, ld)
    a(f'{ld}:')

def f_class(a, opt):
    lnl, lz, lz2, lf = a.label('Lnoln'), a.label('Lz'), a.label('Lz'), a.label('Lfu')
    a(f's_cmp_ge_u32 {SU}, 64'); a(f's_cbranch_scc1 {lz}')
    layer_norm(a)
    a(f's_branch {lnl}')
    a(f'{lz}:')
    for r in range(4): a(f'v_mov_b32 v{16+r}, 0')
    a(f's_sub_u32 s69, {SU}, 64'); a('s_mul_i32 s68, s69, 12288'); a(f's_mul_i32 s67, {SWV}, 3072'); a('s_add_u32 s68, s68, s67'); a(f's_add_u32 s68, s68, {FLAG_OFF}')
    for x in range(3): a(f'buffer_store_dwordx4 v[16:19], v{VL16}, {S_WS}, s68 offen offset:{x*1024} sc1')
    a('s_waitcnt vmcnt(0)'); a('s_barrier')
    a(f's_cmp_lg_u32 {SWV}, 0'); a(f's_cbranch_scc1 {lz2}')
    a(f's_mov_b32 s68, {DBG_AREA*4}')
    a(f'buffer_atomic_add v{VONE}, v{VFLG}, {S_DBG}, s68 offen sc1')
    a(f'{lz2}:')
    calibrate(a, 's69')
    a('s_barrier')
    area_wait(a)
    a(f'{lnl}:')
    tstamp(a, opt, 1, (14, 15))
    a(f's_cmp_ge_u32 {SU}, 72'); a('s_cbranch_scc1 L_wend')
    if opt.get('no3b'): a('s_branch L_wend'); return
    a(f's_cmp_ge_u32 {SU}, 32'); a(f's_cbranch_scc1 {lf}')
    p_unit(a, opt)
    a(f'{lf}:')
    f_unit(a, opt)

def p_unit(a, opt):
    QF, KF, KM, X00, X01, X11, M0, M1 = 16, 64, 112, 136, 140, 144, 148, 152
    VQO, VMO, T0, M, L, T = 156, 157, 158, 159, 160, 161
    SB, SHD, SPR, SVAL = 's70', 's71', 's72', 's[74:75]'
    SCM = [f's[{76+2*r}:{77+2*r}]' for r in range(4)]
    a(f's_and_b32 {SHD}, {SU}, 7'); a(f's_lshl_b32 {SHD}, {SHD}, 2'); a(f's_add_u32 {SHD}, {SHD}, {SWV}')
    a(f's_lshl_b32 {SPR}, {SU}, 9'); a(f's_lshl_b32 s67, {SWV}, 7'); a(f's_add_u32 {SPR}, {SPR}, s67'); a(f's_add_u32 {SPR}, {SPR}, {PRGP_OFF}')
    a(f'v_min_u32 v{VQO}, 5, v0'); a(f'v_cmp_lt_u32 vcc, 2, v{VQO}'); a(f'v_add_u32 v{T0}, 93, v{VQO}'); a(f'v_cndmask_b32 v{VQO}, v{VQO}, v{T0}, vcc'); a(f'v_lshlrev_b32 v{VQO}, 7, v{VQO}')
    a(f'v_min_u32 v{VT1}, 2, v0'); a(f'v_lshlrev_b32 v{VT1}, 7, v{VT1}')
    lanefn(a, VMO, lambda l: (l & 15)*16 + ((l >> 4) & 1)*8, T0)
    a(f'v_and_b32 v{T}, 15, v0')
    for r in range(4):
        lanefn(a, M, lambda l: (l >> 4)*4 + r, T0); a(f'v_cmp_le_u32 {SCM[r]}, v{M}, v{T}')
    a(f's_bitcmp1_b32 {SU}, 3'); a('s_cselect_b32 s74, 0, -1'); a('s_cselect_b32 s75, -1, 0')
    a(f's_mul_i32 s73, {SHD}, 384'); a(f's_add_u32 s73, s73, {PRGX_OFF}'); a(f's_add_u32 s88, s73, {96*128}')
    a(f's_mov_b32 s84, {f2u(SC):#x}'); a(f's_mov_b32 {SB}, 0')
    lt = a.label('Lp')
    a(f'{lt}:')
    a(f's_lshl_b32 {SSEG}, {SB}, 2'); a(f's_lshr_b32 s67, {SU}, 3'); a(f's_add_u32 {SSEG}, {SSEG}, s67')
    posx(a, 's85', SSEG)
    poll_gt(a, opt, VQO, 's73', 's85', T0, 16)
    def frags(dst, n, base):
        for j in range(n):
            if j % 4 == 0: a(f's_add_u32 s87, s86, {base + j*1024}')
            a(f'buffer_load_dwordx4 v[{dst+4*j}:{dst+4*j+3}], v{VL16}, {S_WS}, s87 offen offset:{(j&3)*1024} sc1')
    a(f's_lshl_b32 s86, {SSEG}, 5'); a(f's_add_u32 s86, s86, {SHD}'); a('s_mul_i32 s86, s86, 12288')
    frags(QF, 12, QF_OFF); frags(KF, 12, KF_OFF)
    vr = lambda b: f'v[{b}:{b+3}]'
    a('s_waitcnt vmcnt(6)')
    for kk in range(6): a(mfma(X00, vr(KF + 4*kk), vr(QF + 4*kk), kk == 0)); a(mfma(X01, vr(KF + 4*kk), vr(QF + 24 + 4*kk), kk == 0))
    a('s_waitcnt vmcnt(0)')
    for kk in range(6): a(mfma(X11, vr(KF + 24 + 4*kk), vr(QF + 24 + 4*kk), kk == 0))
    a(f'v_mov_b32 v{T}, 0xff7fffff')
    for D in (X00, X11):
        for r in range(4): a(f'v_cndmask_b32 v{D+r}, v{T}, v{D+r}, {SCM[r]}')
    posm(a, 's85', SB, 's67')
    poll_gt(a, opt, VT1, 's88', 's85', T0, opt.get('psleep', 4))
    a(f's_add_u32 s86, {SB}, 64'); a('s_lshl_b32 s86, s86, 5'); a(f's_add_u32 s86, s86, {SHD}'); a('s_mul_i32 s86, s86, 12288')
    a(f's_bitcmp1_b32 {SU}, 4'); a('s_cselect_b32 s67, 6144, 0'); a('s_add_u32 s86, s86, s67')
    frags(KM, 6, KF_OFF)
    for kk in range(6):
        a(f's_waitcnt vmcnt({5-kk})')
        a(mfma(M0, vr(KM + 4*kk), vr(QF + 4*kk), kk == 0)); a(mfma(M1, vr(KM + 4*kk), vr(QF + 24 + 4*kk), kk == 0))
    a(f's_lshl_b32 s86, {SSEG}, 5'); a(f's_add_u32 s86, s86, {SHD}'); a('s_lshl_b32 s86, s86, 11'); a(f's_add_u32 s86, s86, {P3X_OFF}')
    a(f's_lshl_b32 s87, {SSEG}, 3'); a(f's_lshr_b32 s67, {SHD}, 2'); a('s_add_u32 s87, s87, s67'); a('s_lshl_b32 s87, s87, 11')
    a(f's_and_b32 s67, {SHD}, 3'); a('s_lshl_b32 s67, s67, 8'); a('s_add_u32 s87, s87, s67'); a(f's_add_u32 s87, s87, {P3M_OFF}')
    a(f'v_mov_b32 v{T}, 0xff7fffff')
    for D in (M0, M1):
        for r in range(4): a(f'v_cndmask_b32 v{D+r}, v{T}, v{D+r}, {SVAL}')
    for qt, tiles in ((0, [X00, M0]), (1, [X01, X11, M1])):
        allv = [D + r for D in tiles for r in range(4)]
        a(f'v_max3_f32 v{M}, v{allv[0]}, v{allv[1]}, v{allv[2]}')
        rest = allv[3:]
        while rest:
            if len(rest) >= 2: a(f'v_max3_f32 v{M}, v{M}, v{rest[0]}, v{rest[1]}'); rest = rest[2:]
            else: a(f'v_max_f32 v{M}, v{M}, v{rest[0]}'); rest = []
        for s_ in allred('v_max_f32', M, T): a(s_)
        a(f'v_mul_f32 v{M}, s84, v{M}')
        for v in allv: a(f'v_fma_f32 v{v}, v{v}, s84, -v{M}')
        for v in allv: a(f'v_exp_f32 v{v}, v{v}')
        a(f'v_add_f32 v{L}, v{allv[0]}, v{allv[1]}')
        for v in allv[2:]: a(f'v_add_f32 v{L}, v{L}, v{v}')
        for s_ in allred('v_add_f32', L, T): a(s_)
        a(f'v_rcp_f32 v{L}, v{L}')
        for v in allv: a(f'v_mul_f32 v{v}, v{v}, v{L}')
        o = tiles[0]; m = tiles[-1]
        a(f'v_cvt_pk_bf16_f32 v{o}, v{o}, v{o+1}'); a(f'v_cvt_pk_bf16_f32 v{o+1}, v{o+2}, v{o+3}')
        if qt: a(f'v_cvt_pk_bf16_f32 v{o+2}, v{X11}, v{X11+1}'); a(f'v_cvt_pk_bf16_f32 v{o+3}, v{X11+2}, v{X11+3}')
        else: a(f'v_mov_b32 v{o+2}, 0'); a(f'v_mov_b32 v{o+3}, 0')
        a(f'v_cvt_pk_bf16_f32 v{m}, v{m}, v{m+1}'); a(f'v_cvt_pk_bf16_f32 v{m+1}, v{m+2}, v{m+3}')
        a(f'buffer_store_dwordx4 v[{o}:{o+3}], v{VL16}, {S_WS}, s86 offen offset:{qt*1024} sc1')
        a(f's_mov_b64 exec, {SVAL}')
        a(f'buffer_store_dwordx2 v[{m}:{m+1}], v{VMO}, {S_WS}, s87 offen offset:{qt*1024} sc1')
        a('s_mov_b64 exec, -1')
    a(f's_add_u32 {SB}, {SB}, 1'); a(f'v_mov_b32 v{VPV}, {SB}'); a('s_waitcnt vmcnt(0)')
    a(f'buffer_store_dword v{VPV}, v{VFLG}, {S_WS}, {SPR} offen sc1')
    tstamp(a, opt, (SB, 7), (14, 15))
    a(f's_cmp_lt_u32 {SB}, 16'); a(f's_cbranch_scc1 {lt}')
    a('s_waitcnt vmcnt(0)'); a('s_endpgm')

def f_unit(a, opt):
    SB, SDT, SSG = 's70', 's72', 's71'
    VM, A0, G0, PB, ID, XR, GV = 16, 48, 56, 64, 128, 136, 140
    VMO, VXO, VPR, VFO, VPO, VTH = 150, 151, 152, 153, 154, 155
    T0, T1 = 156, 157
    a(f'v_and_b32 v{T0}, 15, v0'); a(f'v_lshrrev_b32 v{T1}, 4, v0'); a(f'v_lshlrev_b32 v{T1}, 2, v{T1}'); a(f'v_sub_u32 v{T0}, v{T0}, v{T1}')
    for r in (0, 1, 4, 5): a(f'v_mov_b32 v{ID+r}, 0')
    a(f'v_mov_b32 v{T1}, 0x3f80'); a(f'v_mov_b32 v{GV}, 0x3f800000')
    for d in range(2):
        a(f'v_cmp_eq_u32 vcc, {2*d}, v{T0}'); a(f'v_cndmask_b32 v{ID+2+d}, 0, v{T1}, vcc')
        a(f'v_cmp_eq_u32 vcc, {2*d+1}, v{T0}'); a(f'v_cndmask_b32 v{ID+2+d}, v{ID+2+d}, v{GV}, vcc')
    lanefn(a, VMO, lambda l: (l >> 4)*10240 + (l & 15)*16, T0)
    lanefn(a, VXO, lambda l: (l & 15)*1280 + (l >> 4)*8, T0)
    a(f's_sub_u32 s68, {SU}, 32'); a(f's_mul_i32 {SSG}, s68, 205'); a(f's_lshr_b32 {SSG}, {SSG}, 11'); a(f's_mul_i32 s67, {SSG}, 10'); a(f's_sub_u32 {SDT}, s68, s67')
    a(f's_and_b32 s79, {SDT}, 3'); a(f's_mul_i32 s79, s79, {40*128}'); a(f's_add_u32 s79, s79, {PRGY_OFF}')
    a(f's_lshl_b32 {SDT}, {SDT}, 2'); a(f's_add_u32 {SDT}, {SDT}, {SWV}')
    a(f'v_min_u32 v{VFO}, 39, v0'); a(f'v_lshlrev_b32 v{VFO}, 7, v{VFO}')
    a(f'v_lshlrev_b32 v{VPO}, 7, v0'); a(f's_lshl_b32 s67, {SSG}, 12'); a(f's_add_u32 s67, s67, {PRGP_OFF - 32*128}'); a('s_sub_u32 s67, s67, s79')
    a(f'v_add_u32 v{T0}, s67, v{VPO}'); a('s_mov_b32 s80, 0'); a('s_mov_b32 s81, -1'); a(f'v_cndmask_b32 v{VPO}, v{VPO}, v{T0}, s[80:81]')
    a(f's_mov_b32 {SB}, 0')
    ltop, ld, lw = [a.label('Lfb') for _ in range(3)]
    a(f'{ltop}:')
    a(f's_lshl_b32 {SSEG}, {SB}, 2'); a(f's_add_u32 {SSEG}, {SSEG}, {SSG}')
    a(f's_cmp_lg_u32 {SWV}, 0'); a(f's_cbranch_scc1 {ld}')
    posx(a, 's73', SSEG)
    poll_gt(a, opt, VFO, 's79', 's73', T0, opt.get('ysleep', 16))
    a(f'{ld}:')
    a('s_barrier')
    a(f's_mul_i32 s73, {SSEG}, 40'); a(f's_add_u32 s73, s73, {SDT}'); a('s_mul_i32 s73, s73, 40960'); a(f's_add_u32 s73, s73, {VOF_OFF}')
    def vo(hh):
        if hh % 4 == 0: a(f's_add_u32 s74, s73, {hh*1024}')
        a(f'buffer_load_dwordx4 a[{4*hh}:{4*hh+3}], v{VL16}, {S_WS}, s74 offen offset:{(hh&3)*1024} sc1')
    for hh in range(32, 40): vo(hh)
    a(f's_mul_i32 s75, {SSEG}, {32*1280}'); a(f's_lshl_b32 s67, {SDT}, 5'); a('s_add_u32 s75, s75, s67'); a(f's_add_u32 s76, s75, {16*1280}')
    for qt in range(2): a(f'buffer_load_dwordx2 v[{XR+2*qt}:{XR+2*qt+1}], v{VXO}, {S_X}, s{75+qt} offen')
    for hh in range(32): vo(hh)
    for hh in range(32, 40):
        a(f's_waitcnt vmcnt({34 + 39 - hh})')
        for qt in range(2):
            b = ID + 2 - 2*qt
            a(mfma(G0 + 4*qt, f'a[{4*hh}:{4*hh+3}]', f'v[{b}:{b+3}]', hh == 32))
    def rnd8(src, dst):
        for j in range(4): a(f'v_cvt_pk_bf16_f32 v{PB+j}, v{src+2*j}, v{src+2*j+1}')
        for j in range(4): a(f'v_lshlrev_b32 v{dst+2*j}, 16, v{PB+j}'); a(f'v_and_b32 v{dst+2*j+1}, 0xffff0000, v{PB+j}')
    rnd8(G0, G0)
    a(f's_mov_b32 s67, {f2u(-1.4426950408889634):#x}')
    for j in range(8): a(f'v_mul_f32 v{GV+j}, s67, v{G0+j}')
    for j in range(8): a(f'v_exp_f32 v{GV+j}, v{GV+j}')
    for j in range(8): a(f'v_add_f32 v{GV+j}, 1.0, v{GV+j}')
    for j in range(8): a(f'v_rcp_f32 v{GV+j}, v{GV+j}')
    for j in range(8): a(f'v_mul_f32 v{GV+j}, v{GV+j}, v{G0+j}')
    rnd8(GV, GV)
    a(f's_cmp_lg_u32 {SWV}, 0'); a(f's_cbranch_scc1 {lw}')
    posm(a, 's73', SB, 's67')
    a(f'v_mov_b32 v{VTH}, s73'); a(f'v_mov_b32 v{T0}, {SB}'); a(f'v_cndmask_b32 v{VTH}, v{VTH}, v{T0}, s[80:81]')
    poll_gt(a, opt, VPO, 's79', f'v{VTH}', PB, opt.get('psleep', 4))
    a(f'{lw}:')
    a('s_barrier')
    a(f's_mul_i32 s73, {SSEG}, {32*10240}'); a(f's_lshl_b32 s67, {SDT}, 8'); a('s_add_u32 s73, s73, s67'); a(f's_add_u32 s73, s73, {VOM_OFF}')
    a(f's_lshl_b32 s74, {SWV}, 10'); a(f's_lshl_b32 s77, {SSEG}, 16'); a('s_add_u32 s77, s77, s74'); a(f's_add_u32 s77, s77, {P3X_OFF}')
    a(f's_lshl_b32 s78, {SSEG}, 14'); a('s_add_u32 s78, s78, s74'); a(f's_add_u32 s78, s78, {P3M_OFF}')
    for n in range(20):
        sr = "s77" if n < 16 else "s78"
        a(f's_add_u32 m0, s74, {n*4096}')
        if n not in (0, 16): a(f's_add_u32 {sr}, {sr}, 4096')
        a(f'buffer_load_dwordx4 v{VL16}, {S_WS}, {sr} offen sc1 lds')
        if n == 4:
            for m in range(8):
                a(f'buffer_load_dwordx4 v[{VM+4*m}:{VM+4*m+3}], v{VMO}, {S_WS}, s73 offen sc1'); a('s_add_u32 s73, s73, 40960')
    a(f'v_add_u32 v{VPR}, 32768, v{VL16}')
    for st in range(4):
        a(f's_waitcnt vmcnt({[23, 10, 5, 0][st]})'); a('s_barrier')
        def rd(c):
            base, off = (VL16, c*1024) if c < 32 else (VPR, c*1024 - 32768)
            b = PB + (c % 16) * 4
            a(f'ds_read_b128 v[{b}:{b+3}], v{base} offset:{off}')
        for c in range(20*st, 20*st + 8): rd(c)
        for c in range(20*st, 20*st + 20):
            left = min(20*st + 20, c + 8) - c - 1
            a(f's_waitcnt lgkmcnt({left})')
            h2, qt = c >> 1, c & 1
            A = f'a[{4*h2}:{4*h2+3}]' if c < 64 else f'v[{VM+4*(h2-32)}:{VM+4*(h2-32)+3}]'
            b = PB + (c % 16) * 4
            a(mfma(A0 + 4*qt, A, f'v[{b}:{b+3}]', c < 2))
            if c + 8 < 20*st + 20: rd(c + 8)
    rnd8(A0, A0)
    for j in range(8): a(f'v_mul_f32 v{A0+j}, v{A0+j}, v{GV+j}')
    rnd8(A0, A0)
    for j in range(4): a(f'v_lshlrev_b32 v{G0+2*j}, 16, v{XR+j}'); a(f'v_and_b32 v{G0+2*j+1}, 0xffff0000, v{XR+j}')
    for j in range(8): a(f'v_add_f32 v{A0+j}, v{A0+j}, v{G0+j}')
    for j in range(4): a(f'v_cvt_pk_bf16_f32 v{A0+j}, v{A0+2*j}, v{A0+2*j+1}')
    for qt in range(2): a(f'buffer_store_dwordx2 v[{A0+2*qt}:{A0+2*qt+1}], v{VXO}, {S_OUT}, s{75+qt} offen')
    tstamp(a, opt, (SB, 8), (14, 15))
    a(f's_add_u32 {SB}, {SB}, 1'); a(f's_cmp_lt_u32 {SB}, 16'); a(f's_cbranch_scc1 {ltop}')
    a('s_waitcnt vmcnt(0)'); a('s_endpgm')

def gemm_main(a, opt):
    tstamp(a, opt, 0, (14, 15))
    a(f's_sub_u32 {SG}, {SSLOT}, 64')
    a(f's_mov_b32 {STMO}, {opt.get("tmo", 1 << 21)}')
    srd(a, S_X, 's[36:37]', 2048*640*2); srd(a, S_OUT, 's[56:57]', 2048*640*2); srd(a, S_WA, 's[40:41]', 0)
    a(f'v_lshlrev_b32 v{VL16}, 4, v0')
    a(f'v_mov_b32 v{VONE}, 1'); a(f'v_cmp_eq_u32 vcc, 0, v0'); a(f'v_mov_b32 v{VT0}, 0x40000000'); a(f'v_cndmask_b32 v{VFLG}, v{VT0}, 0, vcc')
    ly, lf = a.label('Lyu'), a.label('Lfu')
    a(f's_lshr_b32 s67, {SG}, 5'); a(f's_and_b32 s68, {SG}, 31')
    a(f's_mul_i32 {SU}, s67, 13'); a(f's_add_u32 {SU}, {SU}, s68')
    a('s_cmp_ge_u32 s68, 13'); a(f's_cbranch_scc1 {ly}')
    x_unit(a, opt)
    a(f'{ly}:')
    a('s_sub_u32 s68, s68, 13'); a('s_min_u32 s69, s67, 4')
    a('s_cmp_lt_u32 s67, 4'); a('s_cselect_b32 s70, 7, 6')
    a(f's_mul_i32 {SU}, s67, 6'); a(f's_add_u32 {SU}, {SU}, s69'); a(f's_add_u32 {SU}, {SU}, s68')
    a('s_cmp_ge_u32 s68, s70'); a(f's_cbranch_scc1 {lf}')
    y_unit(a, opt)
    a(f'{lf}:')
    a(f's_mul_i32 {SU}, s67, 13'); a(f's_sub_u32 {SU}, {SU}, s69'); a(f's_add_u32 {SU}, {SU}, s68'); a(f's_sub_u32 {SU}, {SU}, s70')
    f_class(a, opt)
    a('L_wend:'); a('s_waitcnt vmcnt(0)')
```

```python
S_TOK, DM, NH, DH, MM, SEG, NSEG, DFF = 2048, 640, 32, 192, 8, 32, 64, 1536
WS_BYTES = 268435456
XN_OFF   = 0x00000000
QF_OFF   = 0x00400000
KF_OFF   = 0x01C00000
VOF_OFF  = 0x03A00000
VOM_OFF  = 0x09E00000
P3X_OFF  = 0x0B200000
P3M_OFF  = 0x0B600000
RING_OFF = 0x0B700000
MEML_OFF = RING_OFF + 0
MEMR_OFF = 0x0E200000
PA_OFF   = RING_OFF + 0x28000
VOMR_OFF = RING_OFF + 0x40000
FLAG_OFF = 0x0B800000
PRGX_OFF = FLAG_OFF
PRGY_OFF = FLAG_OFF + 320*128
PRGP_OFF = FLAG_OFF + 480*128
LNF_OFF  = FLAG_OFF + 608*128
MPRG_OFF = FLAG_OFF + 672*128
STAMP_OFF = 0x0B900000
VF_OFF   = 0x0BC00000
DBG_READY = 9
DBG_VOTE = 10
DBG_AREA = 40
NAREA = 10
LDS_RING = 0
LDS_SLAB = 12288
LDS_MEM = 147456
LDS_EX = LDS_MEM + 12736
LDS_TOTAL = 163840
OOB = 0x20000000
def pos_x(s): return s + (max(s - 8, 0) >> 2)
def pos_m(b): return 12 + 5*b if b <= 12 else 77 + (b - 13)
```

```python
import sys
sys.path.insert(0, "dev")
from asmdsl import Asm
from layout import *
from gen_chain import *

NAME = "recurrent_scan__memory_aug_recurrent_mem_tr__dense_activation_relu__prompt"

def prologue(a, opt):
    a('s_cmp_ge_u32 s2, 256'); a('s_cbranch_scc1 L_end')
    a('s_load_dwordx16 s[36:51], s[0:1], 0'); a('s_load_dwordx8 s[52:59], s[0:1], 64'); a('s_load_dwordx2 s[60:61], s[0:1], 96')
    a('v_lshrrev_b32 v1, 6, v0'); a('v_and_b32 v0, 63, v0'); a(f'v_readfirstlane_b32 {SWV}, v1')
    a(f's_getreg_b32 {SXCC}, hwreg(HW_REG_XCC_ID)'); a(f's_and_b32 {SXCC}, {SXCC}, 7')
    if opt.get('perm_slot'): a(f's_mov_b32 {SSLOT}, s2')
    else: a(f's_and_b32 {SSLOT}, s2, 7'); a(f's_lshl_b32 {SSLOT}, {SSLOT}, 5'); a('s_lshr_b32 s6, s2, 3'); a(f's_add_u32 {SSLOT}, {SSLOT}, s6')
    a('s_waitcnt lgkmcnt(0)')
    srd(a, S_WS, 's[60:61]', WS_BYTES); srd(a, S_DBG, 's[58:59]', 256)

def generate(opt):
    a = Asm()
    prologue(a, opt)
    a(f's_cmp_ge_u32 {SSLOT}, 64'); a('s_cbranch_scc1 L_gemm')
    if opt.get('no_chain'): a('s_endpgm')
    else: chain_main(a, opt)
    a('L_gemm:')
    if opt.get('chain_only'):
        a(f's_cmp_lt_u32 {SSLOT}, 246'); a('s_cbranch_scc1 L_end')
        a(f's_sub_u32 s62, {SSLOT}, 246'); calibrate(a, 's62'); a('s_waitcnt vmcnt(0)')
        a('s_endpgm')
    else:
        from gen_gemm import gemm_main
        gemm_main(a, opt)
    a('L_end:')
    n = a.fix_hazards(opt.get('verbose'))
    body = a.text()
    hdr = open(f'cdna_kernels/{NAME}.s.ref').read().split('; Override launch geometry')[0]
    kn = NAME + '_kernel'
    out = hdr + f"""; @launch grid=(256,1,1) block=(256,1,1) lds={LDS_TOTAL}
.amdgcn_target "amdgcn-amd-amdhsa--gfx950"
.text
.globl {kn}
.p2align 8
.type {kn},@function
{kn}:
{body}s_endpgm
.section .rodata,"a"
.p2align 6
.amdhsa_kernel {kn}
  .amdhsa_next_free_vgpr 512
  .amdhsa_next_free_sgpr 102
  .amdhsa_accum_offset 256
  .amdhsa_group_segment_fixed_size 0
  .amdhsa_kernarg_size 104
  .amdhsa_user_sgpr_count 2
  .amdhsa_user_sgpr_kernarg_segment_ptr 1
  .amdhsa_system_sgpr_workgroup_id_x 1
.end_amdhsa_kernel
"""
    return out, n, len(a.lines)

if __name__ == '__main__':
    import json
    opt = json.loads(sys.argv[2]) if len(sys.argv) > 2 else {}
    out, n, nl = generate(opt)
    open(sys.argv[1], 'w').write(out)
    import common; print(f'wrote {sys.argv[1]}: {nl} lines, {n} hazard pads, {len(out)} bytes, late {common.merge.late}')
```

```python
from asmdsl import Asm
from layout import *
import struct
def f2u(x): return struct.unpack('<I', struct.pack('<f', x))[0]

class Trk:
    def __init__(self, a, name, maxn):
        self.a, self.name, self.maxn = a, name, maxn
        self.q = []; self.done = 0
    def reset(self): self.q = []; self.done = 0
    def issue(self, tag): self.q.append(tag)
    def wait(self, *tags):
        idx = -1
        for i in range(len(self.q) - 1, self.done - 1, -1):
            if self.q[i] in tags: idx = i; break
        if idx < self.done: return False
        n = min(len(self.q) - 1 - idx, self.maxn)
        self.a(f's_waitcnt {self.name}({n})')
        self.done = len(self.q) - n
        return True
    def all(self):
        self.a(f's_waitcnt {self.name}(0)'); self.done = len(self.q)

S_WS, S_DBG, S_WA, S_WB, S_AUX, S_OUT = 's[8:11]', 's[12:15]', 's[16:19]', 's[20:23]', 's[24:27]', 's[28:31]'
SWV, SXCC, SSLOT = 's3', 's4', 's5'
STMO = 's65'
STAMP0 = 84

def srd(a, dst, ptr, nbytes):
    b = int(dst[2:dst.index(':')]); p = int(ptr[2:ptr.index(':')])
    a(f's_mov_b32 s{b}, s{p}'); a(f's_mov_b32 s{b+1}, s{p+1}')
    a(f's_mov_b32 s{b+2}, {nbytes}'); a(f's_mov_b32 s{b+3}, 0x20000')

def lanefn(a, dst, f, tmp, wave_mul=0):
    c = f(0); w = [f(1 << i) - c for i in range(6)]
    for l in range(64): assert f(l) == c + sum(w[i] for i in range(6) if l >> i & 1), ('not bit-affine', l)
    if wave_mul:
        a(f's_mul_i32 s67, {SWV}, {wave_mul}'); a(f's_add_u32 s67, s67, {c & 0xffffffff}'); a(f'v_mov_b32 v{dst}, s67')
    else: a(f'v_mov_b32 v{dst}, {c & 0xffffffff}')
    i = 0
    while i < 6:
        if w[i] == 0: i += 1; continue
        n = 1
        while i + n < 6 and w[i + n] == w[i] << n: n += 1
        a(f'v_bfe_u32 v{tmp}, v0, {i}, {n}'); a(f's_mov_b32 s67, {w[i] & 0xffffffff}')
        a(f'v_mad_i32_i24 v{dst}, v{tmp}, s67, v{dst}')
        i += n

def budget_loop(a, lp, lout):
    a(f's_cmp_eq_u32 {STMO}, 0'); a(f's_cbranch_scc1 {lout}')
    a(f's_sub_u32 {STMO}, {STMO}, 1'); a(f's_branch {lp}')

def poll_tail(a, lpoll, ldone):
    a(f's_cbranch_vccz {ldone}')
    budget_loop(a, lpoll, ldone)
    a(f'{ldone}:')

def stamp(a, opt, i):
    if opt.get('stamps'): a(f's_mem{"" if opt.get("cyc") else "real"}time s[{STAMP0+2*i}:{STAMP0+2*i+1}]')

def merge(a, lg, items, side):
    from asmdsl import Ins
    txt = lambda s: s if isinstance(s, str) else (s[1] if not callable(s) and s[0] == 'lds' else None)
    isv = lambda s: isinstance(s, str) and s.startswith('v_')
    def emit(s):
        if isinstance(s, str): a(s)
        elif callable(s): s()
        elif s[0] == 'lds': a(s[1]); lg.issue(s[2])
        elif s[0] == 'wait': lg.wait(*s[1:])
    def run(lst, nxt):
        head, tail = [], []
        for s in lst:
            if isv(s): tail.append(s); continue
            dep = False
            if txt(s) and tail:
                x = Ins(txt(s))
                for v in tail:
                    if txt(v) is None: dep = True; continue
                    y = Ins(txt(v))
                    if (x.rd | x.wr) & y.wr or x.wr & y.rd: dep = True
            if dep: tail.append(s); merge.late += 1
            else: head.append(s)
        for s in head: emit(s)
        if nxt and all(isv(s) for s in tail): lg.wait(*nxt)
        for s in tail: emit(s)
    run(side.get(-1, []), None)
    for i, (t, needs) in enumerate(items):
        if needs: lg.wait(*needs)
        a(t)
        run(side.get(i, []), items[i+1][1] if i + 1 < len(items) else None)
merge.late = 0

def dma_voff(a, dst, stride, t0, t1):
    a(f'v_lshrrev_b32 v{t0}, 3, v0'); a(f'v_and_b32 v{t1}, 6, v{t0}'); a(f'v_and_b32 v{dst}, 7, v0')
    a(f'v_xor_b32 v{dst}, v{dst}, v{t1}'); a(f'v_lshlrev_b32 v{dst}, 4, v{dst}')
    a(f's_mov_b32 s67, {stride}'); a(f'v_mad_u32_u24 v{dst}, v{t0}, s67, v{dst}')

def tstamp(a, opt, idx, vt=(250, 251)):
    if not opt.get('gstamps'): return
    a('s_memrealtime s[96:97]'); a('s_waitcnt lgkmcnt(0)')
    a(f's_lshl_b32 s98, {SSLOT}, 10')
    if isinstance(idx, int): a(f's_add_u32 s98, s98, {idx*4}')
    else: a(f's_lshl_b32 s99, {idx[0]}, 2'); a('s_add_u32 s98, s98, s99'); a(f's_add_u32 s98, s98, {idx[1]*4}')
    a(f's_add_u32 s98, s98, {STAMP_OFF + 0x100000}')
    a(f'v_mov_b32 v{vt[0]}, s96'); a(f'v_mov_b32 v{vt[1]}, 0')
    a(f'buffer_store_dword v{vt[0]}, v{vt[1]}, {S_WS}, s98 offen')

def calibrate(a, idx, dbg=False):
    lc = a.label('Lcal')
    a(f's_cmp_lg_u32 {SWV}, 0'); a(f's_cbranch_scc1 {lc}')
    a(f's_add_u32 s70, s60, {MEMR_OFF + 0x7ffff}'); a('s_and_b32 s70, s70, 0xfff80000'); a('s_sub_u32 s70, s70, s60')
    a(f's_lshl_b32 s71, {idx}, 7'); a('s_add_u32 s70, s70, s71'); a('s_add_u32 s70, s70, 6144'); a('s_add_u32 s71, s70, 8192')
    a('v_mov_b32 v16, 0'); a('s_mov_b64 exec, 1'); a('s_mov_b32 s72, -1'); a('s_mov_b32 s73, -1')
    a('s_waitcnt vmcnt(0)')
    for r in range(8):
        for p in range(2):
            a('s_memtime s[74:75]'); a(f'buffer_store_dword v16, v16, {S_WS}, s{70+p} offen sc1'); a('s_waitcnt vmcnt(0)')
            a('s_memtime s[76:77]'); a('s_waitcnt lgkmcnt(0)'); a('s_sub_u32 s76, s76, s74'); a(f's_min_u32 s{72+p}, s{72+p}, s76')
        a('s_add_u32 s70, s70, 32768'); a('s_add_u32 s71, s71, 32768')
    if dbg:
        a('v_mov_b32 v18, s72'); a('v_mov_b32 v19, s73'); a(f's_lshl_b32 s74, {idx}, 3'); a('s_add_u32 s74, s74, 48')
        a(f'buffer_store_dwordx2 v[18:19], v16, {S_DBG}, s74 offen')
    a('s_cmp_lt_u32 s73, s72'); a('s_cselect_b32 s72, 1, 0'); a(f's_lshr_b32 s73, {SXCC}, 2'); a('s_xor_b32 s72, s72, s73'); a('s_add_u32 s72, s72, 256')
    a('v_mov_b32 v17, s72'); a(f'v_mov_b32 v16, {DBG_VOTE*4}')
    a(f'buffer_atomic_add v17, v16, {S_DBG}, 0 offen sc1')
    a('s_mov_b64 exec, -1')
    a(f'{lc}:')
```

```python
from common import *

SC = 0.07216878364870322 * 1.4426950408889634

def wfrag(f, half=None):
    if f < 32: k, b = 'a', f * 8
    else: k, b = 'v', 176 + (f - 32) * 8
    if half is None: return f'{k}[{b}:{b+7}]'
    return k, b + 4 * half

VL16, VGW, VAR, VFR, VXW, VXS, VDR, VIDX, V9, V10, V11, V12, VT0, VT1, VT2 = range(1, 16)
VA = 16
VACC0 = 56
VACC1 = 68
VB = 80
VKX = 112
VQF = 136
VTMP = 160
VOX = 112
SSTEP, SH, SX, SDT = 's62', 's63', 's64', 's66'
SMASK8 = 's[70:71]'
SCM = [f's[{72+2*r}:{73+2*r}]' for r in range(4)]
SCHK = 's80'
S_ONE0, S_ONE1 = 's100', 's101'
NCH = [3, 3, 2, 2]
OWN = [[0, 1, 2], [3, 4, 5], [6, 7], [8, 9]]
REGKB = [0, 1, 3, 4, 6, 7, 8]; LDSKB = [2, 5, 9]
REGT = [0, 2, 3, 4, 6, 7, 8]; LDST = [1, 5, 9]
def yfrag(tile, kb):
    if tile in REGT: return 'reg', 21 + REGT.index(tile)*3 + kb
    return 'lds', 9 + LDST.index(tile)*3 + kb
def xfrag(kb, t, second):
    if kb in REGKB: return 'reg', t*7 + REGKB.index(kb) + (21 if second else 0)
    return 'lds', LDSKB.index(kb)*3 + t + (9 if second else 0)
def apos(w, order):
    ap = {kb: VA + 8*c for c, kb in enumerate(OWN[w])}
    free = [VA + 4*i for i in range(10) if VA + 4*i not in ap.values()]
    for kb in order:
        if kb not in ap: ap[kb] = free.pop(0)
    return ap
STREAM = ['sc1 nt']

def tile_pat(l):
    g, c = l >> 4, l & 15
    return (4*g + 2*(c & 1) + (c >> 3))*16 + ((c >> 1) & 3)*4

def common_addr(a):
    T = VTMP
    a(f'v_lshlrev_b32 v{VL16}, 4, v0')
    a(f's_mul_i32 s6, {SWV}, 3'); a(f's_lshl_b32 s7, {SWV}, 1'); a('s_add_u32 s7, s7, 2'); a('s_min_u32 s6, s6, s7')
    a(f's_lshl_b32 {SCHK}, s6, 10')
    a(f'v_add_u32 v{VAR}, {LDS_MEM}, v{VL16}'); a(f'v_add_u32 v{VGW}, {SCHK}, v{VAR}')
    lanefn(a, VFR, lambda l: l*16, T, 36864)
    lanefn(a, VIDX, lambda l: 0x4444 + (l & 1)*0xaaaa, T)
    a(f'v_and_b32 v{T}, 8, v0'); a(f'v_cmp_ne_u32 {SMASK8}, 0, v{T}')

def loader(a, role, after_first=None):
    vm = Trk(a, 'vmcnt', 63)
    T = 160
    VD0, VD1, VR0 = T, T + 1, T + 2
    dma_voff(a, VD0, 12288, T + 8, T + 9); dma_voff(a, VD1, 1280, T + 8, T + 9)
    for aa in range(2):
        R = VR0 + 3*aa
        row = lambda l: 4*((l >> 4) & 1) + 2*aa + ((l >> 2) & 1)
        lanefn(a, T + 8, lambda l: row(l) & 6, T + 10); lanefn(a, T + 9, lambda l: (l >> 1) & 1, T + 10, 2)
        a(f'v_xor_b32 v{T+9}, v{T+9}, v{T+8}')
        lanefn(a, R, lambda l: (l >> 5)*2048 + ((l >> 3) & 1)*1024 + row(l)*128 + (l & 1)*8, T + 10)
        a(f'v_lshl_add_u32 v{R}, v{T+9}, 4, v{R}')
        a(f'v_add_u32 v{R+1}, 49152, v{R}'); a(f'v_add_u32 v{R+2}, 98304, v{R}')
    a(f's_mul_i32 s68, {SH}, 384'); a(f's_mul_i32 s67, {SWV}, {8*12288}'); a('s_add_u32 s68, s68, s67')
    a(f's_mul_i32 s69, {SH}, {192*1280}'); a(f's_mul_i32 s67, {SWV}, {8*1280}'); a('s_add_u32 s69, s69, s67')
    a(f's_lshl_b32 s7, {SWV}, 10')
    k2 = 'X' if role == 'qk' else 'Y'
    slabs = [('X', S_WA, i) for i in range(14)] + [(k2, S_WB, i) for i in range(14)] + \
            [('X', S_WA, i) for i in range(14, 20)] + [(k2, S_WB, i) for i in range(14, 20)]
    def dma(n):
        kind, sr, i = slabs[n]
        for c in range(3):
            a(f's_add_u32 m0, s7, {(n % 12)*LDS_SLAB + c*4096}')
            if kind == 'X': a(f's_add_u32 s67, s68, {(2*(REGKB + LDSKB)[i >> 1] + (i & 1))*32*12288 + c*128}')
            else: a(f's_add_u32 s67, s69, {((i&1)*96 + c*32)*1280 + (REGT + LDST)[i >> 1]*128}')
            a(f'buffer_load_dwordx4 v{VD0 if kind=="X" else VD1}, {sr}, s67 offen lds')
            vm.issue(n)
    def dest(n, c):
        kind, sr, i = slabs[n]
        second = (n >= 14) if n < 28 else (n >= 34)
        if kind == 'X': t, kb, half = c, i >> 1, i & 1; f = t * 7 + kb; lf = (kb - 7) * 3 + t
        else:
            ks = (i & 1) * 3 + c; kb, half = ks >> 1, ks & 1; tile = i >> 1
            f = tile * 3 + kb; lf = (tile - 7) * 3 + kb
        if second: f += 21; lf += 9
        return f, lf, half
    def reads(n):
        slot = n % 12
        base = VR0 + slot // 4; off0 = (slot % 4) * LDS_SLAB
        for c in range(3):
            f, lf, half = dest(n, c)
            if n < 28: k, b = wfrag(f, half)
            else: k, b = 'v', 16 + lf * 8 + half * 4
            for aa in range(2):
                a(f'ds_read_b64_tr_b16 {k}[{b+2*aa}:{b+2*aa+1}], v{base + 3*aa} offset:{off0 + c*4096}')
    for n in range(11): dma(n)
    for n in range(40):
        vm.wait(n)
        a('s_waitcnt lgkmcnt(0)')
        a('s_barrier')
        if n + 11 < 40: dma(n + 11)
        reads(n)
        if n == 0 and after_first: after_first()
    a('s_waitcnt lgkmcnt(0)'); a('s_barrier')
    for lf in range(18):
        for half in range(2):
            b = 16 + lf * 8 + half * 4
            a(f'ds_write_b128 v{VFR}, v[{b}:{b+3}] offset:{lf*2048 + half*1024}')
    a('s_waitcnt lgkmcnt(0)')

def mem0_load(a):
    lanefn(a, 18, lambda l: (l & 7)*1280 + (l >> 3)*16, 16)
    lanefn(a, 19, lambda l: LDS_MEM + (l >> 4)*256 + (2*(l & 7) + ((l >> 3) & 1))*16, 16)
    for n in range(10): a(f'buffer_load_dwordx4 v[{24+4*n}:{27+4*n}], v18, {S_AUX}, 0 offen offset:{n*128}')
def mem0_write(a):
    for n in range(10): a(f'ds_write_b128 v19, v[{24+4*n}:{27+4*n}] offset:{n*1024}')

def maxchk(a, regs, first=True):
    regs = list(regs)
    if first:
        a(f'v_max3_u32 v{VT0}, v{regs[0]}, v{regs[1]}, v{regs[2]}'); regs = regs[3:]
    while regs:
        if len(regs) >= 2: a(f'v_max3_u32 v{VT0}, v{VT0}, v{regs[0]}, v{regs[1]}'); regs = regs[2:]
        else: a(f'v_max_u32 v{VT0}, v{VT0}, v{regs[0]}'); regs = []


def gather_setup(a, step_add=0):
    a(f's_add_u32 s67, {SSTEP}, {step_add}'); a('s_and_b32 s67, s67, 3'); a('s_lshl_b32 s67, s67, 1')
    a(f's_add_u32 s68, s67, 1'); a(f's_sub_u32 s68, s68, {SX}'); a(f's_add_u32 s67, s67, {SX}')
    a('s_mul_i32 s67, s67, 10240'); a('s_lshl_b32 s68, s68, 15')
    a(f's_add_u32 s33, s68, {SMR}'); a('s_add_u32 s33, s33, s58')
    a(f's_add_u32 s32, s67, {SCHK}'); a(f's_add_u32 s32, s32, {MEML_OFF}')

def gather(a, n, R, opt, st, rsleep=0, R2=None, det=None):
    ld = lambda r, so: [a(f'buffer_load_dwordx4 v[{r+4*c}:{r+4*c+3}], v{VL16}, {S_WS}, {so} offen offset:{c*1024} sc1') for c in range(n)]
    def chk(r, k=0): a(f's_waitcnt vmcnt({k})'); maxchk(a, range(r, r + 4*n)); a(f'v_cmp_eq_u32 vcc, -1, v{VT0}')
    l1, l1ok, l2, l2ok = [a.label('Lg') for _ in range(4)]
    if det is not None:
        l0, l0d = a.label('Lg'), a.label('Lg')
        a(f'{l0}:')
        a(f'buffer_load_dword v{R}, v{det}, {S_WS}, s32 offen sc1'); a('s_waitcnt vmcnt(0)'); a(f'v_cmp_eq_u32 vcc, -1, v{R}')
        poll_tail(a, l0, l0d)
    stamp(a, opt, st[0])
    if R2 is None:
        a(f'{l1}:')
        ld(R, 's32'); chk(R)
        poll_tail(a, l1, l1ok)
    else:
        ld(R, 's32'); ld(R2, 's33'); chk(R, n)
        a(f's_cbranch_vccnz {l1}')
        a(f'{l1ok}:')
    stamp(a, opt, st[1])
    for c in range(n):
        for i in range(4):
            a(f'v_lshlrev_b32 v{VA+8*c+2*i}, 16, v{R+4*c+i}'); a(f'v_and_b32 v{VA+8*c+2*i+1}, 0xffff0000, v{R+4*c+i}')
    Q = R if R2 is None else R2
    if R2 is None:
        if rsleep: a(f's_sleep {rsleep}')
        ld(Q, 's33')
    chk(Q)
    a(f's_cbranch_vccnz {l2}')
    a(f'{l2ok}:')
    stamp(a, opt, st[2])
    for c in range(n):
        b = VA + 8*c
        for i in range(4):
            a(f'v_dot2c_f32_bf16 v{b+2*i}, {S_ONE0}, v{Q+4*c+i}'); a(f'v_dot2c_f32_bf16 v{b+2*i+1}, {S_ONE1}, v{Q+4*c+i}')
        for i in range(4): a(f'v_cvt_pk_bf16_f32 v{b+i}, v{b+2*i}, v{b+2*i+1}')
        a(f'ds_write_b128 v{VGW}, v[{b}:{b+3}] offset:{c*1024}')
    def outofline():
        if R2 is not None:
            a(f'{l1}:')
            ld(R, 's32'); ld(R2, 's33'); chk(R, n)
            a(f's_cbranch_vccz {l1ok}')
            budget_loop(a, l1, l1ok)
        a(f'{l2}:')
        ld(Q, 's33'); chk(Q)
        a(f's_cbranch_vccz {l2ok}')
        budget_loop(a, l2, l2ok)
    return outofline

def a_read(kb, reg):
    return ('lds', f'ds_read_b128 v[{reg}:{reg+3}], v{VAR} offset:{kb*1024}', f'A{kb}')
def frag_reads(lf, slot):
    return [('lds', f'ds_read_b128 v[{VB+8*slot+4*x}:{VB+8*slot+4*x+3}], v{VFR} offset:{lf*2048 + x*1024}', f'F{lf}') for x in range(2)]
def smf(acc, A, B): return f'v_smfmac_f32_16x16x64_bf16 v[{acc}:{acc+3}], v[{A}:{A+3}], {B}, v{VIDX}'
def post(acc, out):
    return [f'v_add_f32 v{acc}, v{acc}, v{acc+1}', f'v_add_f32 v{acc+2}, v{acc+2}, v{acc+3}', f'v_cvt_pk_bf16_f32 v{out}, v{acc}, v{acc+2}']

def allred(op, v, t, stages=(16, 32)):
    r = []
    for st in stages: r += [f'v_mov_b32 v{t}, v{v}', f'v_permlane{st}_swap_b32 v{v}, v{t}', f'{op} v{v}, v{v}, v{t}']
    return r

def stamp_flush(a, opt, n):
    if not opt.get('stamps'): return
    a('s_waitcnt lgkmcnt(0)')
    a(f's_lshl_b32 s67, {SSLOT}, 2'); a(f's_add_u32 s67, s67, {SWV}'); a('s_lshl_b32 s67, s67, 6'); a(f's_add_u32 s67, s67, {SSTEP}')
    a('s_lshl_b32 s67, s67, 6'); a(f's_add_u32 s67, s67, {STAMP_OFF}')
    a(f'v_lshlrev_b32 v{VT1}, 2, v0')
    for i in range(n): a(f'v_writelane_b32 v{VT0}, s{STAMP0+2*i}, {i}')
    a('s_mov_b64 exec, 0xffff')
    a(f'buffer_store_dword v{VT0}, v{VT1}, {S_WS}, s67 offen')
    a('s_mov_b64 exec, -1')

SPC = 's60'
SMR = 's59'
TFIRST = 3
def check_flags(a, opt, kind):
    if opt.get('noflags'): return
    lp, ld = a.label('Lf'), a.label('Lfd')
    a(f's_sub_u32 s61, s82, {LEAD-4}'); a('s_max_i32 s61, s61, 0'); a('s_lshr_b32 s61, s61, 2'); a('s_add_u32 s61, s61, s82')
    a(f's_cmp_gt_u32 {SPC}, s61'); a(f's_cbranch_scc1 {ld}')
    if kind == 'K': a(f'v_and_b32 v{VT1}, 15, v0'); a(f'v_min_u32 v{VT1}, 2, v{VT1}'); a(f'v_lshlrev_b32 v{VT1}, 7, v{VT1}')
    elif kind == 'Y16': a(f'v_and_b32 v{VT1}, 15, v0'); a(f'v_lshlrev_b32 v{VT1}, 7, v{VT1}')
    else: a(f'v_and_b32 v{VT1}, 3, v0'); a(f'v_mul_u32_u24 v{VT1}, {40*128}, v{VT1}')
    a(f'{lp}:')
    a(f'buffer_load_dword v{VT0}, v{VT1}, {S_WS}, s81 offen sc1'); a('s_waitcnt vmcnt(0)')
    for r in (8, 4, 2, 1): a(f'v_min_u32_dpp v{VT0}, v{VT0}, v{VT0} row_ror:{r} row_mask:0xf bank_mask:0xf')
    a(f'v_readfirstlane_b32 {SPC}, v{VT0}')
    a(f's_cmp_gt_u32 {SPC}, s61'); a(f's_cbranch_scc1 {ld}')
    budget_loop(a, lp, ld)
    a(f'{ld}:')

def cprog(a):
    a('s_waitcnt vmcnt(0)')
    a(f's_lshl_b32 s67, {SSLOT}, 7'); a(f's_add_u32 s67, s67, {CPRG_OFF}'); a(f's_add_u32 s68, {SSTEP}, 1'); a(f'v_mov_b32 v{VT0}, s68'); a(f'v_mov_b32 v{VT1}, 0')
    a('s_mov_b64 exec, 1')
    a(f'buffer_store_dword v{VT0}, v{VT1}, {S_WS}, s67 offen sc1')
    a('s_mov_b64 exec, -1')

def load_frags6(a, dst, base_off, ct, seg='s82'):
    a(f's_lshl_b32 s67, {seg}, 5'); a(f's_add_u32 s67, s67, {SH}'); a('s_mul_i32 s67, s67, 12288')
    a(f's_add_u32 s67, s67, {base_off + ct*6144}'); a('s_add_u32 s68, s67, 4096')
    for kk in range(6):
        a(f'buffer_load_dwordx4 v[{dst+4*kk}:{dst+4*kk+3}], v{VL16}, {S_WS}, {"s67" if kk < 4 else "s68"} offen offset:{(kk&3)*1024} {STREAM[0]}')

def build_stream(first_items, second_items):
    items = []; ldsq = []; idx2 = {}
    def add(it):
        kind, acc, A, ref, needs = it
        if kind == 'reg': items.append((smf(acc, A, wfrag(ref)), needs))
        elif kind == 'lds':
            sl = len(ldsq) % 4; ldsq.append((len(items), ref, sl))
            items.append((smf(acc, A, f'v[{VB+8*sl}:{VB+8*sl+7}]'), needs + [f'F{ref}']))
        else: items.append((ref, needs))
    for it in first_items: add(it)
    n = 0
    for it in second_items:
        if it[0] != 'raw': idx2[n] = len(items); n += 1
        add(it)
    return items, ldsq, idx2

class Sides:
    def __init__(self): self.side = {}; self.busy = set(); self.vbusy = {}
    def put(self, g, r): self.side.setdefault(g, []).append(r)
    def lds(self, g, r, force=False):
        if not force:
            while g in self.busy: g += 1
        self.put(g, r); self.busy.add(g); return g
    def valu(self, g, instrs, per=1):
        last = g - 1; end = g
        for s in instrs:
            if s is None: g = last + 2; continue
            if isinstance(s, tuple): self.lds(last + 1, s, True); end = max(end, last + 2); continue
            if not s.startswith('v_'): self.put(last + 1, s); end = max(end, last + 2); continue
            while self.vbusy.get(g, 0) >= per: g += 1
            self.put(g, s); self.vbusy[g] = self.vbusy.get(g, 0) + 1; last = g; end = max(end, g + 1)
        self.nxt = g
        return end
    def refills(self, ldsq):
        for n in range(len(ldsq) - 4):
            g = ldsq[n][0]
            lim = ldsq[n+4][0] - 6
            for r in frag_reads(ldsq[n+4][1], ldsq[n][2]):
                g2 = g
                while g2 in self.busy: g2 += 1
                if g2 <= lim: g = self.lds(g2, r)
                else: g = self.lds(max(g, min(lim, g + 1)), r, True)
                assert g < ldsq[n+4][0] - 1, (n, g, ldsq[n+4])

DPP8 = 'row_ror:8 row_mask:0xf bank_mask:0xf'
def dense_reads(dst, off, tagp, kks=range(6)):
    return [('lds', f'ds_read_b64_tr_b16 v[{dst+4*kk+2*x}:{dst+4*kk+2*x+1}], v{VDR} offset:{off + (2*kk+x)*256}', f'{tagp}{kk}')
            for kk in kks for x in range(2)]

def preload_b(a, lg, ldsq):
    for n in range(4):
        for r in frag_reads(ldsq[n][1], ldsq[n][2]): a(r[1]); lg.issue(r[2])

QORD = [[0, 1, 2, 3, 4, 5, 6, 7, 9, 8], [3, 4, 5, 0, 1, 2, 6, 7, 9, 8], [6, 7, 2, 0, 1, 5, 3, 4, 9, 8], [8, 9, 0, 1, 2, 3, 4, 6, 5, 7]]
KORD = [0, 2, 1, 3, 5, 4, 6, 9, 7, 8]

def qk_setup(a, opt):
    common_addr(a)
    T = VTMP
    rho = lambda l: 2*(l & 7) + ((l >> 3) & 1)
    lanefn(a, VXW, lambda l: LDS_MEM + (l & 15)*16 + (l >> 4)*4, T, 256)
    lanefn(a, VDR, lambda l: LDS_MEM + (l >> 2)*16 + (l & 1)*8, T)
    lanefn(a, V9, lambda l: (l >> 5)*256 + rho(l)*16 + ((l >> 4) & 1)*8, T)
    lanefn(a, V10, lambda l: rho(l)*16 + ((l >> 4) & 1)*4, T)
    lanefn(a, V11, lambda l: LDS_MEM + 3072 + l*16, T)
    lanefn(a, V12, lambda l: LDS_MEM + ((l >> 3) & 1)*512 + (2*(l & 7) + (l >> 5))*16 + ((l >> 4) & 1)*8, T)
    a(f's_and_b32 s68, {SH}, 15'); a('s_min_u32 s68, s68, 9'); a('s_lshl_b32 s68, s68, 10'); a(f'v_add_u32 v{V12}, s68, v{V12}')
    lanefn(a, VXS, lambda l: ((l >> 3) & 1)*1024 + (l >> 4)*256 + (l & 7)*16, T)
    a(f's_mul_i32 s67, {SX}, 12288'); a(f's_add_u32 s67, s67, {PA_OFF}')
    a(f's_and_b32 s68, {SH}, 15'); a('s_lshl_b32 s76, s68, 9'); a('s_add_u32 s76, s76, s67')
    a('s_lshr_b32 s77, s68, 1'); a('s_lshl_b32 s77, s77, 8'); a('s_add_u32 s77, s77, s67')
    a('s_and_b32 s68, s68, 1'); a('s_lshl_b32 s68, s68, 3'); a('s_add_u32 s77, s77, s68'); a('s_add_u32 s77, s77, 8192')

def qk_init_clear(a):
    a(f'v_mov_b32 v{VTMP}, -1'); a(f'v_mov_b32 v{VTMP+1}, -1')
    a(f'buffer_store_dwordx2 v[{VTMP}:{VTMP+1}], v{V9}, {S_WS}, s76 offen sc1')
    a(f'buffer_store_dword v{VTMP}, v{V10}, {S_WS}, s77 offen sc1')

def mf(D, A, B, first): return f'v_mfma_f32_16x16x32_bf16 v[{D}:{D+3}], v[{A}:{A+3}], v[{B}:{B+3}], ' + ('0' if first else f'v[{D}:{D+3}]')

def stream_head(sd, w, order, AP, opt, rest):
    g = opt.get('gb1', 3)
    sd.put(g, ('wait', 'GW')); sd.put(g, 's_barrier')
    for kb in order:
        if kb not in OWN[w]:
            sd.lds(g, a_read(kb, AP[kb]), True); g += 1
    return g

def qk_loop(a, w, sc, opt):
    VZ = VTMP + 15
    lg = Trk(a, 'lgkmcnt', 15)
    ltop, lent, lfin = a.label('Lqk'), a.label('Lqkent'), a.label('Lqkfin')
    QEX = LDS_EX - LDS_MEM
    SACC, SM = VTMP, VTMP + 4
    QO = QORD[w]
    AP = apos(w, QO)
    seq = [(kb, t) for kb in QO[:6] for t in range(3)] + [(kb, t) for t in range(3) for kb in QO[6:]]
    first = [(xfrag(kb, t, 0)[0], VACC0 + 4*t, AP[kb], xfrag(kb, t, 0)[1], [f'A{kb}']) for kb, t in seq]
    second = []
    n = 0
    SX0 = opt.get('sx0', 8)
    for t in range(3):
        for kb in KORD:
            second.append((xfrag(kb, t, 1)[0], VACC1 + 4*t, AP[kb], xfrag(kb, t, 1)[1], []))
            if w >= 2 and n == SX0:
                for kk in range(6): second.append(('raw', 0, 0, mf(SACC, VKX + 4*kk, VQF + 4*kk, kk == 0), [f'Q{kk}']))
            n += 1
    items, ldsq, k2 = build_stream(first, second)
    sd = Sides()
    stream_head(sd, w, QO, AP, opt, None)
    sd.put(opt.get('gb1', 3), lambda: stamp(a, opt, 1))
    pub_rd = [('lds', f'ds_read_b64 v[{VKX+2*x}:{VKX+2*x+1}], v{V12} offset:{x*256}', 'PUB') for x in range(2)]
    pub_st = f'buffer_store_dwordx4 v[{VKX}:{VKX+3}], v{VXS}, {S_WS}, s44 offen sc1'
    if w == 1:
        sd.put(0, f'buffer_store_dword v{VT1}, v{VT2}, {S_WS}, s46 offen sc1')
        for r in pub_rd: sd.lds(18, r)
        sd.put(25, ('wait', 'PUB')); sd.put(25, pub_st)
        for j in range(6):
            sd.put(1 + 3*j, f'buffer_load_dword v{VKX+4+j}, v{V9}, {S_WS}, s{[45, 48, 49][j >> 1]} offen sc1')
            if j % 2 == 0: sd.put(2 + 3*j, f's_add_u32 s{[45, 48, 49][j >> 1]}, s{[45, 48, 49][j >> 1]}, 8192')
    wr = lambda acc, t, off, tag: ('lds', f'ds_write_b32 v{VXW}, v{acc} offset:{off + t*1024}', tag)
    for t in range(3): gq = sd.valu([23, 27, 31][t], post(VACC0 + 4*t, VACC0 + 4*t) + [wr(VACC0 + 4*t, t, QEX, 'QW')], 2 if t == 2 else 1)
    gb = gq + opt.get('gba', 2)
    sd.put(gb, ('wait', 'QW')); sd.put(gb, 's_barrier')
    if opt.get('diag'): sd.put(gb, lambda: stamp(a, opt, 0))
    if w != 1:
        rr = dense_reads(VQF, QEX, 'Q')
        span = (k2[SX0] + 3 - gb) if w >= 2 else 14
        for i, r in enumerate(rr): sd.lds(gb + (i * span) // 12, r, w >= 2)
    gk = 0
    for t in range(2): gk = sd.valu(k2[10*t + 11], post(VACC1 + 4*t, VACC1 + 4*t) + [wr(VACC1 + 4*t, t, 0, 'KW')])
    E0, T, X0 = VTMP + 8, VTMP + 12, VTMP + 4
    ool4 = None
    if w >= 2:
        lsx, lsxb = a.label('Lsx'), a.label('Lsxb')
        p0 = [f'v_cndmask_b32 v{X0}, v{SACC}, v{SACC+2}, {SMASK8}', f'v_cndmask_b32 v{X0+1}, v{SACC+1}, v{SACC+3}, {SMASK8}',
              f'v_mul_f32 v{X0}, s83, v{X0}', f'v_mul_f32 v{X0+1}, s83, v{X0+1}', f'v_exp_f32 v{E0}, v{X0}', f'v_exp_f32 v{E0+1}, v{X0+1}',
              f'v_max_f32 v{T}, |v{X0}|, |v{X0+1}|', f'v_add_f32 v{E0+3}, v{E0}, v{E0+1}', f'v_cmp_lt_f32 vcc, s79, v{T}']
        g = sd.valu(k2[SX0 + 2], p0)
        sd.put(g, lambda: (a(f's_cbranch_vccnz {lsx}'), a(f'{lsxb}:')))
        sd.lds(g, ('lds', f'ds_write_b128 v{V11}, v[{E0}:{E0+3}] offset:{(w-2)*1024}', 'KW'), True)
        g = max(g + 3, gk + 2)
        sd.put(g, ('wait', 'KW')); sd.put(g, 's_barrier')
        def ool4():
            m = E0 + 2
            a(f'{lsx}:')
            a(f'v_max_f32 v{m}, v{X0}, v{X0+1}'); a(f'v_max_f32_dpp v{m}, v{m}, v{m} {DPP8}')
            for s_ in allred('v_max_f32', m, T): a(s_)
            for i in range(2): a(f'v_sub_f32 v{E0+i}, v{X0+i}, v{m}')
            for i in range(2): a(f'v_exp_f32 v{E0+i}, v{E0+i}')
            a(f'v_add_f32 v{E0+3}, v{E0}, v{E0+1}')
            a(f's_branch {lsxb}')
        sd.valu(5, [f'v_mov_b32 v{E0+2}, 0'])
    sd.refills(ldsq)

    def top():
        preload_b(a, lg, ldsq)
        for r in range(0, 24, 2): a(f'v_mov_b64 v[{VACC0+r}:{VACC0+r+1}], 0')
        if w == 0: a(f's_bitcmp1_b32 {SSTEP}, 0'); a('s_cselect_b32 s78, -1.0, 1.0')
        if w == 1:
            a(f'v_mov_b32 v{VT1}, {SSTEP}')
            a(f's_lshr_b32 s67, {SSTEP}, 2'); a('s_mul_i32 s44, s67, 40960'); a(f's_bfe_u32 s67, {SSTEP}, 0x10001'); a('s_mul_i32 s67, s67, 20480')
            a('s_add_u32 s44, s44, s67'); a(f's_and_b32 s67, {SSTEP}, 1'); a('s_lshl_b32 s67, s67, 7'); a('s_add_u32 s44, s44, s67'); a('s_add_u32 s44, s44, s47')
    def prefetch():
        ls = a.label('Lnp')
        if w == 1: a(f's_mov_b32 s45, {OOB}')
        a(f's_cmp_ge_u32 s82, {1 if opt.get("nopf") else 63}'); a(f's_cbranch_scc1 {ls}')
        if w >= 2:
            check_flags(a, opt, 'K'); load_frags6(a, VKX, KF_OFF, w - 2)
        elif not opt.get('notouch'):
            a(f's_cmp_lt_u32 s82, {TFIRST}'); a(f's_cbranch_scc1 {ls}')
            check_flags(a, opt, 'Y16')
            a(f's_mul_i32 s45, s82, {40*40960}'); a('s_add_u32 s45, s45, s50')
        a(f'{ls}:')
        if w == 1:
            a(f's_add_u32 s48, s45, {16*40960}'); a(f's_add_u32 s49, s45, {32*40960}'); a(f's_bitcmp1_b32 {SH}, 3'); a(f's_cselect_b32 s49, {OOB}, s49')
    a(f's_mov_b32 {SSTEP}, 0'); a(f's_mov_b32 s83, {f2u(SC):#x}'); a(f's_mov_b32 s79, {f2u(opt.get("safe", 60.0)):#x}')
    if w >= 2: a('s_mov_b32 s82, 0'); a(f's_mul_i32 s81, {SH}, 384'); a(f's_add_u32 s81, s81, {PRGX_OFF + 96*128}'); prefetch()
    if w == 1:
        a(f'v_lshlrev_b32 v{V9}, 7, v0')
        a(f'v_cmp_eq_u32 vcc, 0, v0'); a(f'v_mov_b32 v{VT2}, 0x40000000'); a(f'v_cndmask_b32 v{VT2}, v{VT2}, 0, vcc')
        a(f's_lshl_b32 s81, {SX}, 11'); a(f's_bfe_u32 s67, {SH}, 0x20002'); a(f's_mul_i32 s67, s67, {40*128}'); a('s_add_u32 s81, s81, s67'); a(f's_add_u32 s81, s81, {PRGY_OFF}')
        a(f's_and_b32 s50, {SH}, 15'); a('s_mul_i32 s50, s50, 40960'); a(f's_lshl_b32 s67, {SX}, 14'); a('s_add_u32 s50, s50, s67'); a(f's_add_u32 s50, s50, {VOF_OFF}')
        a(f's_lshl_b32 s46, {SH}, 7'); a(f's_add_u32 s46, s46, {MPRG_OFF}'); a(f's_lshl_b32 s47, {SH}, 11'); a(f's_add_u32 s47, s47, {XN_OFF + 64*40960}')
        a(f's_cmp_ge_u32 {SH}, 10'); a(f's_cselect_b32 s46, {OOB}, s46'); a(f's_cselect_b32 s47, {OOB}, s47')
        for r in (45, 48, 49): a(f's_mov_b32 s{r}, {OOB}')
    top()
    for kb in OWN[w]: a(a_read(kb, AP[kb])[1])
    a('s_waitcnt vmcnt(0) lgkmcnt(0)')
    a(f's_branch {lent}')
    a(f'{ltop}:')
    lg.reset()
    a('s_barrier')
    top()
    gather_setup(a)
    if opt.get('qsleep', 12): a(f's_sleep {opt.get("qsleep", 12)}')
    if opt.get('qdet', 0): a(f'v_and_b32 v{VZ}, {(8 if NCH[w] == 2 else 16) - 1}, v0'); a(f'v_min_u32 v{VZ}, {4*NCH[w]-1}, v{VZ}'); a(f'v_lshlrev_b32 v{VZ}, 8, v{VZ}')
    else: a(f'v_mov_b32 v{VZ}, 0')
    a('s_waitcnt lgkmcnt(0)')
    ool = gather(a, NCH[w], VTMP, {k: v for k, v in opt.items() if k != 'stamps'} if opt.get('diag') else opt, (0, 6, 7), opt.get('qrs', 0), VQF if opt.get('qj', 1) else None, VZ if opt.get('qj', 1) else None)
    a(f'{lent}:')
    lg.reset(); lg.issue('GW')
    merge(a, lg, items, sd.side)
    stamp(a, opt, 2)
    EA, EB = VB, VB + 4
    U, LM, F0, F1, LS = VB + 8, VB + 9, VB + 10, VB + 11, VB + 12
    if w < 2:
        lg.wait('KW'); a('s_barrier')
        if w == 0:
            a(f'ds_read_b128 v[{EA}:{EA+3}], v{V11}'); lg.issue('E'); a(f'ds_read_b128 v[{EB}:{EB+3}], v{V11} offset:1024'); lg.issue('E')
            for r in dense_reads(VKX, 0, 'K', range(4)): a(r[1]); lg.issue(r[2])
    for s_ in post(VACC1 + 8, VACC1 + 8): a(s_)
    a(wr(VACC1 + 8, 2, 0, '')[1]); lg.issue('KW')
    redl = [f'v_add_f32_dpp v{LS}, v{LS}, v{LS} {DPP8}', f'v_mov_b32 v{T}, v{LS}', f'v_permlane16_swap_b32 v{LS}, v{T}', f'v_add_f32 v{LS}, v{LS}, v{T}',
            f'v_mov_b32 v{T}, v{LS}', f'v_permlane32_swap_b32 v{LS}, v{T}', f'v_add_f32 v{LS}, v{LS}, v{T}', f'v_mul_f32 v{LS}, s78, v{LS}']
    if w == 0:
        lg.wait('E')
        sh = [f'v_add_f32 v{LS}, v{EA+3}, v{EB+3}', f'v_max_f32 v{U}, |v{EA+2}|, |v{EB+2}|', redl[0], redl[1], f'v_mul_f32 v{U}, 0x71800000, v{U}', redl[2], redl[3], redl[4]]
        for kk in range(4):
            lg.wait(f'K{kk}'); a(mf(SM, VKX + 4*kk, VQF + 4*kk, kk == 0))
            a(sh.pop(0)); a(sh.pop(0))
    lg.all(); a('s_barrier')
    if opt.get('diag'): stamp(a, opt, 6)
    ool3 = None
    if w == 0:
        lslow, lback = a.label('Lsm'), a.label('Lsb')
        for r in dense_reads(VKX, 0, 'K', range(4, 6)): a(r[1]); lg.issue(r[2])
        for s_ in redl[5:]: a(s_)
        for kk in range(4, 6):
            lg.wait(f'K{kk}'); a(mf(SM, VKX + 4*kk, VQF + 4*kk, False))
        stamp(a, opt, 3)
        a(f'v_cndmask_b32 v{SM}, v{SM}, v{SM+2}, {SMASK8}'); a(f'v_cndmask_b32 v{SM+1}, v{SM+1}, v{SM+3}, {SMASK8}')
        a(f'v_mul_f32 v{SM}, s83, v{SM}'); a(f'v_mul_f32 v{SM+1}, s83, v{SM+1}')
        a(f'v_exp_f32 v{SM+2}, v{SM}'); a(f'v_exp_f32 v{SM+3}, v{SM+1}')
        a(f'v_max3_f32 v{U}, |v{SM}|, |v{SM+1}|, v{U}')
        a(f'v_add_f32 v{LM}, v{SM+2}, v{SM+3}')
        a(f'v_cmp_lt_f32 vcc, s79, v{U}')
        a(f's_cbranch_vccnz {lslow}')
        a(f'{lback}:')
        a(f'v_add_f32_dpp v{LM}, v{LM}, v{LM} {DPP8}')
        a(f'v_mov_b32 v{T}, v{LM}')
        a(f'v_permlane16_swap_b32 v{LM}, v{T}'); a(f'v_add_f32 v{LM}, v{LM}, v{T}')
        a(f'v_fma_f32 v{LM}, v{LM}, s78, v{LS}')
        a(f'v_rcp_f32 v{LM}, v{LM}')
        a(f'v_mul_f32 v{EA}, v{EA}, v{LM}'); a(f'v_mul_f32 v{EA+1}, v{EA+1}, v{LM}')
        a(f'v_mul_f32 v{EB}, v{EB}, v{LM}'); a(f'v_mul_f32 v{EB+1}, v{EB+1}, v{LM}')
        a(f'v_cvt_pk_bf16_f32 v{EA}, v{EA}, v{EA+1}'); a(f'v_cvt_pk_bf16_f32 v{EA+1}, v{EB}, v{EB+1}')
        a(f'buffer_store_dwordx2 v[{EA}:{EA+1}], v{V9}, {S_WS}, s76 offen {sc}')
        a(f'v_mul_f32 v{SM+2}, v{SM+2}, v{LM}'); a(f'v_mul_f32 v{SM+3}, v{SM+3}, v{LM}')
        a(f'v_cvt_pk_bf16_f32 v{SM}, v{SM+2}, v{SM+3}')
        a(f'buffer_store_dword v{SM}, v{V10}, {S_WS}, s77 offen {sc}')
        stamp(a, opt, 4)
        lkm, lkb = a.label('Lkm'), a.label('Lkb')
        a(f's_cmp_ge_u32 {SSTEP}, {4*NMB}'); a(f's_cbranch_scc1 {lkm}')
        a(f'{lkb}:')
        def ool3():
            a(f'{lkm}:')
            a(f's_mul_i32 s72, {SH}, 12288'); a(f's_bfe_u32 s67, {SSTEP}, 0x10001'); a('s_mul_i32 s67, s67, 6144'); a('s_add_u32 s72, s72, s67')
            a(f's_add_u32 s72, s72, {KF_OFF + (64 + NMB)*32*12288}'); a('s_add_u32 s73, s72, 4096')
            a(f's_bitcmp1_b32 {SSTEP}, 0'); a('s_cselect_b32 s74, 8, 0'); a('s_lshl_b32 s74, 0x00ff00ff, s74'); a('s_mov_b32 exec_lo, s74'); a('s_mov_b32 exec_hi, s74')
            for kk in range(6): a(f'buffer_store_dwordx4 v[{VKX+4*kk}:{VKX+4*kk+3}], v{VL16}, {S_WS}, s{72 + (kk >> 2)} offen offset:{(kk & 3)*1024} sc1')
            a('s_mov_b64 exec, -1')
            cprog(a)
            a(f's_branch {lkb}')
            a(f'{lslow}:')
            a(f'v_max_f32 v{U}, v{SM}, v{SM+1}'); a(f'v_max_f32_dpp v{U}, v{U}, v{U} {DPP8}')
            for s_ in allred('v_max_f32', U, T, (16,)): a(s_)
            a(f'v_max3_f32 v{U}, v{U}, v{EA+2}, v{EB+2}')
            a(f'v_sub_f32 v{SM}, v{SM}, v{U}'); a(f'v_sub_f32 v{SM+1}, v{SM+1}, v{U}'); a(f'v_sub_f32 v{F0}, v{EA+2}, v{U}'); a(f'v_sub_f32 v{F1}, v{EB+2}, v{U}')
            a(f'v_exp_f32 v{SM+2}, v{SM}'); a(f'v_exp_f32 v{SM+3}, v{SM+1}'); a(f'v_exp_f32 v{F0}, v{F0}'); a(f'v_exp_f32 v{F1}, v{F1}')
            a(f'v_mul_f32 v{LS}, v{EA+3}, v{F0}'); a(f'v_fmac_f32 v{LS}, v{EB+3}, v{F1}')
            for s_ in redl: a(s_)
            for i in range(2): a(f'v_mul_f32 v{EA+i}, v{EA+i}, v{F0}'); a(f'v_mul_f32 v{EB+i}, v{EB+i}, v{F1}')
            a(f'v_add_f32 v{LM}, v{SM+2}, v{SM+3}')
            a(f's_branch {lback}')
    elif w == 1:
        a(f's_add_u32 s82, {SSTEP}, {opt.get("tahead", 2)}'); prefetch()
    else:
        a(f's_add_u32 s82, {SSTEP}, 1'); prefetch()
    stamp(a, opt, 5)
    stamp_flush(a, opt, 8)
    a(f's_add_u32 {SSTEP}, {SSTEP}, 1'); a(f's_cmp_lt_u32 {SSTEP}, 64'); a(f's_cbranch_scc1 {ltop}')
    a('s_waitcnt vmcnt(0)'); a('s_endpgm')
    ool()
    if ool3: ool3()
    if ool4: ool4()

def vo_setup(a, opt):
    common_addr(a)
    T = VTMP
    lanefn(a, VXW, lambda l: LDS_EX + tile_pat(l), T, 256)
    a(f'v_and_b32 v{T}, 1, v0'); a(f'v_cmp_ne_u32 vcc, 0, v{T}'); a(f'v_mov_b32 v{T}, 0x05040100'); a(f'v_mov_b32 v{T+1}, 0x03020706')
    a(f'v_cndmask_b32 v{VXS}, v{T}, v{T+1}, vcc')
    lanefn(a, V9, lambda l: ((l >> 4) & 1)*1024 + (l & 15)*16 + (l >> 5)*8, T, 256)
    lanefn(a, V10, lambda l: (l >> 4)*10240 + (l & 15)*16, T)
    lanefn(a, V11, lambda l: (l >> 4)*1024 + (l & 15)*16, T, 256)
    lanefn(a, V12, tile_pat, T)
    a(f's_and_b32 {SDT}, {SH}, 15'); a(f's_lshl_b32 s67, {SWV}, 4'); a(f's_add_u32 {SDT}, {SDT}, s67')
    a(f's_lshl_b32 s81, {SX}, 11'); a(f's_bfe_u32 s67, {SDT}, 0x20002'); a(f's_mul_i32 s67, s67, {40*128}'); a('s_add_u32 s81, s81, s67'); a(f's_add_u32 s81, s81, {PRGY_OFF}')
    a(f's_mul_i32 s44, {SH}, 10240'); a(f's_add_u32 s44, s44, {VOMR_OFF}'); a('s_add_u32 s45, s44, 4096'); a('s_add_u32 s46, s44, 8192')
    a(f's_mul_i32 s72, {SX}, {16*10240}'); a(f's_lshl_b32 s68, {SDT}, 8'); a('s_add_u32 s72, s72, s68'); a(f's_add_u32 s72, s72, {VOMR_OFF}')
    a('s_add_u32 s73, s72, 40960'); a('s_add_u32 s74, s73, 40960'); a('s_add_u32 s75, s74, 40960')
    a(f's_mul_i32 s49, {SX}, 12288'); a(f's_add_u32 s49, s49, {PA_OFF}'); a(f's_add_u32 s76, s49, {SCHK}'); a('s_add_u32 s49, s49, 10240')
    a(f's_lshl_b32 s48, {SDT}, 4'); a('s_add_u32 s48, s48, s49')
    a(f's_mul_i32 s47, {SDT}, 40960'); a(f's_lshl_b32 s67, {SX}, 14'); a('s_add_u32 s47, s47, s67'); a(f's_add_u32 s47, s47, {VOF_OFF}')

def vom_store1(src, k, base, sc):
    if k < 2: return f'buffer_store_dwordx4 v[{src}:{src+3}], v{V11}, {S_WS}, {base[k]} offen {sc}'
    return f'buffer_store_dwordx2 v[{src}:{src+1}], v{V9}, {S_WS}, {base[2]} offen {sc}'
def memp_off(a, dst, add, dt=SDT):
    a(f's_add_u32 s67, {SSTEP}, {add}'); a('s_and_b32 s67, s67, 3'); a('s_lshl_b32 s67, s67, 1'); a(f's_add_u32 s67, s67, {SX}')
    a(f's_mul_i32 s{dst}, s67, 10240'); a(f's_lshl_b32 s{dst+1}, s67, 15'); a(f's_lshl_b32 s67, {dt}, 8')
    a(f's_add_u32 s{dst}, s{dst}, s67'); a(f's_add_u32 s{dst+1}, s{dst+1}, s67'); a(f's_add_u32 s{dst}, s{dst}, {MEML_OFF}')
    a(f's_add_u32 s{dst+1}, s{dst+1}, {SMR}'); a(f's_cmp_ge_u32 {dt}, 24'); a('s_cselect_b32 s67, 10240, 0'); a(f's_add_u32 s{dst+1}, s{dst+1}, s67')

def vo_init_clear(a):
    a(f'v_mov_b32 v{VA+16}, -1'); a(f'v_mov_b32 v{VA+17}, 0')
    ls = a.label('Lnc')
    a(f'buffer_store_dword v{VA+17}, v{VA+17}, {S_WS}, s48 offen sc1')
    a(f's_cmp_ge_u32 {SDT}, 40'); a(f's_cbranch_scc1 {ls}')
    for sl in range(4):
        memp_off(a, 32, sl)
        a(f'buffer_store_dword v{VA+16}, v{V12}, {S_WS}, s32 offen sc1')
        a(f'buffer_store_dword v{VA+16}, v{V12}, {S_WS}, s33 offen sc1')
        a('s_add_u32 s33, s33, 8192')
        a(f'buffer_store_dword v{VA+16}, v{V12}, {S_WS}, s33 offen sc1')
    a(f'{ls}:')

VORD = [[0, 1, 2, 3, 4, 5, 6, 7, 9, 8], [3, 4, 5, 0, 1, 2, 6, 7, 9, 8], [6, 7, 2, 0, 1, 5, 3, 4, 9, 8], [8, 9, 0, 1, 3, 2, 4, 6, 5, 7]]
OORD = [0, 1, 2, 3, 4, 5, 6, 7, 8, 9]
OORD0 = [0, 2, 1, 3, 4, 6, 5, 7, 8, 9]
def pairup(acc, tmp):
    return [f'v_mov_b32_dpp v{tmp}, v{acc} quad_perm:[1,0,3,2] row_mask:0xf bank_mask:0xf', f'v_perm_b32 v{acc}, v{tmp}, v{acc}, v{VXS}']

def vo_loop(a, w, duty, sc, opt):
    n = NCH[w]; VO = VORD[w]
    lg = Trk(a, 'lgkmcnt', 15)
    ltop, lent = a.label('Lvo'), a.label('Lvoent')
    VV = VACC1; PK = VACC0
    EXO = LDS_EX - LDS_MEM
    AP = apos(w, VO)
    OA = {t: (VOX + 44 + 4*i if i < 5 else AP[VO[i - 5]]) for i, t in enumerate(OORD)}
    seq = [(kb, t) for kb in VO[:3] for t in range(3)] + [(kb, t) for t in range(3) for kb in VO[3:]]
    first = [(xfrag(kb, t, 0)[0], VACC0 + 4*t, AP[kb], xfrag(kb, t, 0)[1], [f'A{kb}']) for kb, t in seq]
    oseq = [(t, 0) for t in OORD0] + [(t, 1) for t in OORD[:3]]
    for i in range(10): oseq += [(OORD[i], 2)] + ([(OORD[i+3], 1)] if i + 3 < 10 else [])
    second = [(yfrag(tile, kb)[0], OA[tile], VV + 4*kb, yfrag(tile, kb)[1], [f'V{kb}']) for tile, kb in oseq]
    fin = {t: 30 + oseq.index((t, 2)) for t in OORD}
    items, ldsq, k2 = build_stream(first, second)
    sd = Sides()
    stream_head(sd, w, VO, AP, opt, None)
    sd.put(opt.get('gb1', 3), lambda: stamp(a, opt, 1))
    vox = lambda hh: f'buffer_load_dwordx4 v[{VOX+4*hh}:{VOX+4*hh+3}], v{VL16}, {S_WS}, s83 offen offset:{(hh & 3)*1024} {STREAM[0]}'
    vsp = opt.get('vsp', 3)
    NIN = opt.get('nin', 16)
    NE = opt.get('ne', 0)
    if duty:
        for hh in range(NE, min(NIN, 11)):
            g = opt.get('vs0', 1) + (hh - NE) * vsp
            sd.put(g, vox(hh))
            if hh & 3 == 3: sd.put(g + 1, 's_add_u32 s83, s83, 4096')
    zer = [f'v_mov_b64 v[{AP[VO[r >> 1]] + 2*(r & 1)}:{AP[VO[r >> 1]] + 2*(r & 1) + 1}], 0' for r in range(10)]
    for r in range(6): sd.valu(3*(r >> 1) + 3 + (r & 1), [zer[r]])
    wr = lambda acc, t: ('lds', f'ds_write_b32 v{VXW}, v{acc} offset:{t*1024}', f'VW{t}')
    vpost = lambda t: post(VACC0 + 4*t, VACC0 + 4*t) + [None] + pairup(VACC0 + 4*t, VACC0 + 4*t + 1) + [wr(VACC0 + 4*t, t)]
    vrd = lambda kb: ('lds', f'ds_read_b128 v[{VV+4*kb}:{VV+4*kb+3}], v{VAR} offset:{EXO + kb*1024}', f'V{kb}')
    for t, g0, per in ((0, 17, 1), (1, 24, 1), (2, 31, 2)):
        g = sd.valu(g0, vpost(t), per) + 2
        sd.put(g, ('wait', f'VW{t}')); sd.put(g, 's_barrier'); sd.lds(g, vrd(t), True)
    sd.valu(27, zer[6:])
    if opt.get('diag'): sd.put(g, lambda: stamp(a, opt, 0)); sd.put(29, lambda: stamp(a, opt, 5)); sd.put(42, lambda: stamp(a, opt, 7))
    base = ('s44', 's45', 's46')
    tail = []; gfree = 40; carry = []
    done = set()
    for i, t in enumerate(OORD):
        ins = post(OA[t], PK + t); sw = []
        if duty and 11 + i < min(NIN, 16):
            if i == 1: ins.append('s_add_u32 s83, s83, 4096')
            ins.append(vox(11 + i))
        done.add(t)
        q = t >> 2
        if q < 2 and all(4*q + j in done for j in range(4)):
            b = PK + 4*q
            sw = [f'v_permlane16_swap_b32 v{b}, v{b+1}', f'v_permlane16_swap_b32 v{b+2}, v{b+3}',
                  f'v_permlane32_swap_b32 v{b}, v{b+2}', f'v_permlane32_swap_b32 v{b+1}, v{b+3}', vom_store1(b, q, base, sc)]
        if q == 2 and 8 in done and 9 in done:
            sw = [f'v_permlane16_swap_b32 v{PK+8}, v{PK+9}', vom_store1(PK + 8, 2, base, sc)]
        c = list(carry); carry = sw if i < 9 else []
        if c: ins = [c[0], ins[0], c[1], ins[1], ins[2]] + c[2:] + ins[3:]
        if i == 9: ins += sw
        g = max(fin[t] + 2, gfree)
        if g < len(items) and not tail: sd.valu(g, ins, 2); gfree = sd.nxt
        else: tail += ins
    ex = []
    for g in sorted(g for g in sd.side if g >= len(items)): ex += sd.side.pop(g)
    tail = ex + tail
    sd.refills(ldsq)

    def top():
        preload_b(a, lg, ldsq)
        a(f's_add_u32 s51, {SSTEP}, 1')
        a(f's_bitcmp1_b32 {SSTEP}, 0'); a('s_cselect_b32 s50, 0x80008000, 0')
        if duty:
            memp_off(a, 77, 1)
            if opt.get('nopf'): a('s_mov_b32 s82, 0')
            else: a(f's_mov_b32 s82, {SSTEP}')
            a(f's_mul_i32 s83, s82, {40*40960}'); a('s_add_u32 s83, s83, s47'); a(f's_cmp_eq_u32 {SSTEP}, 63'); a(f's_cselect_b32 s83, {OOB}, s83')
        for r in range(0, 12, 2): a(f'v_mov_b64 v[{VACC0+r}:{VACC0+r+1}], 0')
        for r in range(0, 20, 2): a(f'v_mov_b64 v[{VOX+44+r}:{VOX+45+r}], 0')
        if duty:
            lk = a.label('Lk')
            a(f's_cmp_ge_u32 {SSTEP}, {64 if opt.get("notouch") else TFIRST}'); a(f's_cbranch_scc1 {lk}')
            check_flags(a, opt, 'Y16')
            a(f'{lk}:')
            for hh in range(NE):
                a(vox(hh))
                if hh & 3 == 3: a('s_add_u32 s83, s83, 4096')
    a(f's_mov_b32 {SSTEP}, 0')
    top()
    for kb in OWN[w]: a(a_read(kb, AP[kb])[1])
    a('s_waitcnt lgkmcnt(0)')
    a(f's_branch {lent}')
    a(f'{ltop}:')
    lg.reset()
    a('s_barrier')
    top()
    if opt.get('vsleep', 0): a(f's_sleep {opt.get("vsleep", 0)}')
    a('s_waitcnt lgkmcnt(0)')
    ool = gather(a, n, VACC1, {k: v for k, v in opt.items() if k != 'stamps'} if opt.get('diag') else opt, (0, 0 if opt.get('diag2') else 5, 7), opt.get('vrs', 0), VA + 24 if opt.get('vj', 1) else None)
    a(f'{lent}:')
    lg.reset(); lg.issue('GW')
    merge(a, lg, items, sd.side)
    for s_ in tail:
        a(s_)
    stamp(a, opt, 3)
    lcp, lcb, lcf, lce = [a.label('Lc') for _ in range(4)]
    a(f's_cmp_ge_u32 {SSTEP}, {4*NMB}'); a(f's_cbranch_scc1 {lcp}')
    a(f'{lcb}:')
    def ool5():
        a(f'{lcp}:')
        a(f's_lshl_b32 s52, {SSTEP}, 5'); a(f's_add_u32 s52, s52, {SH}'); a('s_mul_i32 s52, s52, 10240'); a(f's_add_u32 s52, s52, {VOM_OFF}')
        a('s_add_u32 s53, s52, 4096'); a('s_add_u32 s54, s52, 8192')
        for k in range(3): a(vom_store1(PK + 4*k, k, ('s52', 's53', 's54'), 'sc1'))
        a(f's_cmp_lt_u32 {SSTEP}, 63'); a(f's_cbranch_scc1 {lcb}')
        a('s_waitcnt vmcnt(0)'); a('s_barrier')
        if w == 3: cprog(a)
        a('s_waitcnt vmcnt(0)'); a('s_endpgm')
    ACC = VB + 28
    R, TG = VB + 16, VACC0 + 10
    def ldp():
        for c in range(n): a(f'buffer_load_dwordx4 v[{R+4*c}:{R+4*c+3}], v{VL16}, {S_WS}, s76 offen offset:{c*1024} sc1')
    lt, ltd, lp, ld = [a.label('Lp') for _ in range(4)]
    def pcheck(extra):
        for c in range(n):
            a(f's_waitcnt vmcnt({n - 1 - c + extra})')
            a(f'ds_write_b128 v{VGW}, v[{R+4*c}:{R+4*c+3}] offset:{c*1024}')
            b = R + 4*c
            if c == 0: a(f'v_bitop3_b32 v{VT0}, v{b}, v{b+2}, s50 bitop3:0x7e')
            else: a(f'v_bitop3_b32 v{VT1}, v{b}, v{b+2}, s50 bitop3:0x7e'); a(f'v_or_b32 v{VT0}, v{VT0}, v{VT1}')
            if n == 2: a(f'v_bitop3_b32 v{VT1}, v{b+1}, v{b+3}, s50 bitop3:0x7e'); a(f'v_or_b32 v{VT0}, v{VT0}, v{VT1}')
        a(f'v_cmp_gt_i32 vcc, 0, v{VT0}')
    a(f'v_mov_b32 v{ACC}, s51'); a(f'v_mov_b32 v{ACC+1}, 0')
    gather_setup(a, 1)
    a('s_waitcnt vmcnt(0)')
    if opt.get('diag2'): stamp(a, opt, 5)
    a('s_mov_b64 exec, 1')
    a(f'buffer_store_dword v{ACC}, v{ACC+1}, {S_WS}, s48 offen {sc}')
    a('s_mov_b64 exec, -1')
    if opt.get('tsleep', 3): a(f's_sleep {opt.get("tsleep", 3)}')
    if duty:
        for hh in range(NIN, 16):
            if hh & 3 == 0 and hh and not (hh == NIN and hh <= 11): a('s_add_u32 s83, s83, 4096')
            a(vox(hh))
        a(f'{lt}:')
        a(f'buffer_load_dword v{TG}, v{VL16}, {S_WS}, s49 offen sc1')
        ldp()
        a(f's_waitcnt vmcnt({n})')
        a(f'v_cmp_gt_u32 vcc, s51, v{TG}')
        poll_tail(a, lt, ltd)
        for q in range(4): a(f'buffer_load_dwordx4 v[{VB+4*q}:{VB+4*q+3}], v{V10}, {S_WS}, s{72+q} offen sc1')
        if not opt.get('diag'): stamp(a, opt, 2)
        for r in range(4): a(f'v_mov_b32 v{ACC+r}, 0')
        pcheck(4)
    else:
        ldp(); pcheck(0)
    a(f's_cbranch_vccnz {lp}')
    a(f'{ld}:')
    stamp(a, opt, 4)
    def ool2():
        a(f'{lp}:')
        ldp(); pcheck(0)
        a(f's_cbranch_vccz {ld}')
        budget_loop(a, lp, ld)
    if not duty: a('s_waitcnt lgkmcnt(0)'); a('s_barrier')
    if duty:
        bop = lambda pp: f'v[{VOX+8*pp}:{VOX+8*pp+7}]' if pp < 8 else f'v[{VB+8*(pp-8)}:{VB+8*(pp-8)+7}]'
        rest = [c for c in range(10) if c not in OWN[w]]
        a(smf(ACC, R, bop(OWN[w][0])))
        a('s_waitcnt lgkmcnt(0)'); a('s_barrier')
        for c in rest[:3]: a(f'ds_read_b128 v[{VA+4*c}:{VA+4*c+3}], v{VAR} offset:{c*1024}')
        k = 3
        for j in range(1, n):
            a(smf(ACC, R + 4*j, bop(OWN[w][j])))
            for c in rest[k:k+2]: a(f'ds_read_b128 v[{VA+4*c}:{VA+4*c+3}], v{VAR} offset:{c*1024}')
            k += 2
        for c in rest[k:]: a(f'ds_read_b128 v[{VA+4*c}:{VA+4*c+3}], v{VAR} offset:{c*1024}')
        for j, pp in enumerate(rest):
            a(f's_waitcnt lgkmcnt({len(rest)-1-j})' if pp != 8 else 's_waitcnt vmcnt(0) lgkmcnt(1)')
            a(smf(ACC, VA + 4*pp, bop(pp)))
        for s_ in post(ACC, ACC): a(s_)
        a(f'v_xor_b32 v{ACC}, s50, v{ACC}')
        for s_ in pairup(ACC, ACC + 1): a(s_)
        for so, fl in ([('s78', 'sc1'), ('s77', sc)] if opt.get('rfirst') else [('s77', sc), ('s78', 'sc1')]):
            a(f'buffer_store_dword v{ACC}, v{V12}, {S_WS}, {so} offen {fl}')
        stamp(a, opt, 6)
    elif w == 3:
        lnext, lnc = a.label('Lnx'), a.label('Lnx')
        a(f's_cmp_lt_u32 {SSTEP}, {4*NMB}'); a(f's_cbranch_scc1 {lnc}')
        cprog(a)
        a(f'{lnc}:')
        a(f'v_mov_b32 v{VT2}, -1')
        a(f's_and_b32 s35, {SH}, 15')
        for i in range(3):
            if i == 2: a('s_cmp_ge_u32 s35, 40'); a(f's_cbranch_scc1 {lnext}')
            memp_off(a, 55, 3, 's35')
            a(f'buffer_store_dword v{VT2}, v{V12}, {S_WS}, s56 offen sc1')
            a(f'buffer_store_dword v{VT2}, v{V12}, {S_WS}, s55 offen {sc}')
            if i < 2: a('s_add_u32 s35, s35, 16')
        a(f'{lnext}:')
    stamp_flush(a, opt, 8)
    a(f's_add_u32 {SSTEP}, {SSTEP}, 1'); a(f's_branch {ltop}')
    ool(); ool2(); ool5()

def chain_main(a, opt):
    lvo = a.label('Lrole_vo')
    tstamp(a, opt, 0, (14, 15))
    STREAM[0] = opt.get('stream', 'sc1')
    a(f's_lshr_b32 {SX}, {SSLOT}, 5'); a(f's_and_b32 s67, {SSLOT}, 15'); a(f's_lshl_b32 {SH}, {SX}, 4'); a(f's_add_u32 {SH}, {SH}, s67')
    a(f's_mov_b32 {STMO}, {opt.get("tmo", 1 << 21)}'); a(f's_mov_b32 {SSTEP}, 0')
    srd(a, S_AUX, 's[38:39]', 8*640*2)
    a(f's_add_u32 {SMR}, s60, {MEMR_OFF + 0x7ffff}'); a(f's_and_b32 {SMR}, {SMR}, 0xfff80000'); a(f's_sub_u32 {SMR}, {SMR}, s60')
    a(f's_mul_i32 s58, {SWV}, 3072'); a(f's_lshl_b32 s67, {SWV}, 11'); a('s_add_u32 s67, s67, 12288'); a(f's_cmp_ge_u32 {SWV}, 2'); a('s_cselect_b32 s58, s67, s58')
    a(f's_mov_b32 {S_ONE0}, 0x00003f80'); a(f's_mov_b32 {S_ONE1}, 0x3f800000')
    a(f's_bitcmp1_b32 {SSLOT}, 4'); a(f's_cbranch_scc1 {lvo}')
    for role in ('qk', 'vo'):
        if role == 'vo': a(f'{lvo}:')
        if role == 'qk':
            srd(a, S_WA, 's[40:41]', 640*6144*2); srd(a, S_WB, 's[42:43]', 640*6144*2); qk_setup(a, opt)
        else:
            srd(a, S_WA, 's[44:45]', 640*6144*2); srd(a, S_WB, 's[46:47]', 640*6144*2); vo_setup(a, opt)
        l1, l2, l3 = a.label('Ls'), a.label('Ls'), a.label('Ls')
        a(f's_mov_b32 {SPC}, 0')
        if role == 'vo': vo_init_clear(a)
        a(f's_cmp_lg_u32 {SWV}, 0'); a(f's_cbranch_scc1 {l2}')
        if role == 'qk': qk_init_clear(a)
        a(f's_lshl_b32 s67, 1, {SXCC}'); a(f'v_mov_b32 v{VT0}, s67'); a(f's_lshl_b32 s67, {SX}, 2'); a(f'v_mov_b32 v{VT1}, s67')
        a('s_mov_b64 exec, 1')
        a(f'buffer_atomic_or v{VT0}, v{VT1}, {S_DBG}, 0 offen sc1')
        a('s_mov_b64 exec, -1')
        mem0_load(a)
        a(f'{l2}:')
        def after_first():
            a(f's_cmp_lg_u32 {SWV}, 0'); a(f's_cbranch_scc1 {l3}')
            a(f'v_mov_b32 v{VT0}, 1'); a(f'v_mov_b32 v{VT1}, {DBG_READY*4}')
            a('s_mov_b64 exec, 1')
            a(f'buffer_atomic_add v{VT0}, v{VT1}, {S_DBG}, 0 offen sc1')
            a('s_mov_b64 exec, -1')
            mem0_write(a)
            a(f'{l3}:')
        loader(a, role, after_first)
        tstamp(a, opt, 1, (14, 15))
        lp, ld, lslow = a.label('Lr'), a.label('Lrd'), a.label('Lslow')
        a(f'v_lshlrev_b32 v{VT1}, 2, v0')
        a(f'{lp}:')
        a(f'buffer_load_dword v{VT0}, v{VT1}, {S_DBG}, 0 offen sc1'); a('s_waitcnt vmcnt(0)')
        a(f'v_readlane_b32 s67, v{VT0}, {DBG_READY}')
        a(f'v_readlane_b32 s68, v{VT0}, {DBG_VOTE}'); a(f's_cmp_lt_u32 s68, {NAREA*256}'); a('s_cselect_b32 s67, 0, s67')
        if not opt.get('noflags'):
            a(f'v_readlane_b32 s68, v{VT0}, {DBG_AREA}'); a(f's_cmp_lt_u32 s68, {NAREA}'); a('s_cselect_b32 s67, 0, s67')
        a(f's_cmp_eq_u32 {STMO}, 0'); a(f's_cbranch_scc1 {ld}')
        a(f's_sub_u32 {STMO}, {STMO}, 1')
        a('s_cmp_lt_u32 s67, 64'); a(f's_cbranch_scc1 {lp}')
        a(f'{ld}:')
        a(f'v_readlane_b32 s67, v{VT0}, {DBG_VOTE}'); a('s_and_b32 s67, s67, 255'); a(f's_cmp_gt_u32 s67, {NAREA//2}'); a('s_cselect_b32 s67, 1, 0')
        a(f'v_readlane_b32 s68, v{VT0}, 0'); a('s_cmp_gt_u32 s68, 15'); a('s_cselect_b32 s68, 1, 0'); a('s_xor_b32 s67, s67, s68'); a('s_lshl_b32 s67, s67, 13')
        if 'par' in opt: a(f's_mov_b32 s67, {opt["par"]*8192}')
        a(f's_add_u32 {SMR}, {SMR}, s67')
        a(f'v_readlane_b32 s67, v{VT0}, 0'); a(f'v_readlane_b32 s68, v{VT0}, 1')
        a('s_bcnt1_i32_b32 s67, s67'); a('s_bcnt1_i32_b32 s68, s68'); a('s_max_u32 s67, s67, s68')
        if opt.get('force_slow'): a('s_mov_b32 s67, 2')
        a('s_cmp_lg_u32 s67, 1'); a(f's_cbranch_scc1 {lslow}')
        for sc in ('', 'sc1'):
            if sc: a(f'{lslow}:')
            if role == 'qk':
                labs = [a.label('Lw') for _ in range(4)]
                for w in range(1, 4): a(f's_cmp_eq_u32 {SWV}, {w}'); a(f's_cbranch_scc1 {labs[w]}')
                for w in range(4):
                    a(f'{labs[w]}:'); qk_loop(a, w, sc, opt)
            else:
                labs = [a.label('Lw') for _ in range(5)]
                a(f's_cmp_eq_u32 {SWV}, 1'); a(f's_cbranch_scc1 {labs[1]}'); a(f's_cmp_eq_u32 {SWV}, 3'); a(f's_cbranch_scc1 {labs[4]}')
                a(f's_cmp_ge_u32 {SDT}, 40'); a(f's_cbranch_scc1 {labs[3]}'); a(f's_cmp_eq_u32 {SWV}, 2'); a(f's_cbranch_scc1 {labs[2]}')
                for i, (w, duty) in enumerate([(0, True), (1, True), (2, True), (2, False), (3, False)]):
                    a(f'{labs[i]}:'); vo_loop(a, w, duty, sc, opt)
```

```python
from common import *

SG, SU = 's62', 's63'
SSEG = 's66'
S_X = 's[20:23]'
VL16, VD, VFLG, VONE, VT0, VT1, VRD, VPV, VMAX = 1, 2, 3, 4, 5, 6, 7, 8, 9
VR0 = 10
WRING = 81920

def mfma(d, A, B, first): return f'v_mfma_f32_16x16x32_bf16 v[{d}:{d+3}], {A}, {B}, ' + ('0' if first else f'v[{d}:{d+3}]')
def allred(op, v, t):
    r = []
    for st in (16, 32): r += [f'v_mov_b32 v{t}, v{v}', f'v_permlane{st}_swap_b32 v{v}, v{t}', f'{op} v{v}, v{v}, v{t}']
    return r
def wreg(f, vbase):
    return ('a', 4*f) if f < 64 else ('v', vbase + 4*(f - 64))
def wstr(f, vbase):
    k, b = wreg(f, vbase); return f'{k}[{b}:{b+3}]'

def area_wait(a):
    lp, ld = a.label('Lgp'), a.label('Lgd')
    a(f's_mov_b32 s92, {DBG_AREA*4}')
    a(f'{lp}:')
    a(f'buffer_load_dword v{VT0}, v{VFLG}, {S_DBG}, s92 offen sc1'); a('s_waitcnt vmcnt(0)')
    a(f'v_readfirstlane_b32 s93, v{VT0}')
    a(f's_cmp_ge_u32 s93, {NAREA}'); a(f's_cbranch_scc1 {ld}')
    a('s_sleep 8')
    budget_loop(a, lp, ld)
    a(f'{ld}:')
def ln_wait(a):
    lp, ld = a.label('Lgp'), a.label('Lgd')
    a(f'v_lshlrev_b32 v{VT1}, 7, v0'); a(f's_mov_b32 s92, {LNF_OFF}')
    a(f'{lp}:')
    a(f'buffer_load_dword v{VT0}, v{VT1}, {S_WS}, s92 offen sc1'); a('s_waitcnt vmcnt(0)')
    a(f'v_cmp_ne_u32 vcc, 1, v{VT0}')
    a(f's_cbranch_vccz {ld}')
    a('s_sleep 4')
    budget_loop(a, lp, ld)
    a(f'{ld}:')

def late_start(a, opt):
    if opt.get('nolate'): return
    lp, ld = a.label('Lls'), a.label('Lld')
    area_wait(a)
    a(f's_mov_b32 s92, {PRGX_OFF + 200*128}')
    a(f'{lp}:')
    a(f'buffer_load_dword v{VT0}, v{VFLG}, {S_WS}, s92 offen sc1'); a('s_waitcnt vmcnt(0)')
    a(f'v_readfirstlane_b32 s93, v{VT0}')
    a('s_cmp_ge_u32 s93, 1'); a(f's_cbranch_scc1 {ld}')
    a('s_sleep 32')
    budget_loop(a, lp, ld)
    a(f'{ld}:')

def wloader(a, nsl, soff, dest, stride, hook):
    vm = Trk(a, 'vmcnt', 63)
    a(f'v_lshrrev_b32 v20, 3, v0'); a('v_and_b32 v21, 6, v20'); a(f'v_and_b32 v{VD}, 7, v0')
    a(f'v_xor_b32 v{VD}, v{VD}, v21'); a(f'v_lshlrev_b32 v{VD}, 4, v{VD}'); a(f'v_mad_u32_u24 v{VD}, v20, {stride}, v{VD}')
    a(f's_lshl_b32 s71, {stride}, 3')
    a(f's_mul_i32 s72, {SWV}, 20480'); a(f's_add_u32 s72, s72, {WRING}')
    def dma(n):
        for s_ in soff(n): a(s_)
        for rb in range(4):
            a(f's_add_u32 m0, s72, {(n % 5)*4096 + rb*1024}')
            if rb: a('s_add_u32 s73, s73, s71')
            else: a('s_nop 0')
            a(f'buffer_load_dwordx4 v{VD}, {S_WA}, s73 offen lds'); vm.issue(n)
    for n in range(5): dma(n)
    row = lambda l: 4*((l >> 4) & 1) + ((l >> 2) & 3)
    lanefn(a, 20, lambda l: (row(l) & 6) | ((l >> 1) & 1), 21)
    lanefn(a, VR0, lambda l: (l >> 5)*1024 + row(l)*128 + (l & 1)*8, 21)
    a(f'v_lshl_add_u32 v{VR0}, v20, 4, v{VR0}'); a(f'v_add_u32 v{VR0}, s72, v{VR0}')
    for tt in range(1, 4): a(f'v_xor_b32 v{VR0+tt}, {tt*32}, v{VR0}')
    for n in range(nsl):
        vm.wait(n)
        for tt in range(4):
            k, b = dest(n, tt)
            for x in range(2): a(f'ds_read_b64_tr_b16 {k}[{b+2*x}:{b+2*x+1}], v{VR0+tt} offset:{(n % 5)*4096 + x*2048}')
        hook(n, vm)
        a('s_waitcnt lgkmcnt(0)')
        if n + 5 < nsl: dma(n + 5)

def spread(lst, n, total):
    return (lst * (n + 1) + total - 1) // total - (lst * n + total - 1) // total

def x_unit(a, opt):
    ACC, XB, STG, WV = 64, 128, 160, 192
    SSTR, SPRG, SOB, SOS, SXD, SXL = 's74', 's75', 's76', 's77', 's78', 's79'
    a(f's_mul_i32 s67, {SU}, 43'); a('s_lshr_b32 s67, s67, 10')
    a('s_mul_i32 s68, s67, 24'); a(f's_sub_u32 s68, {SU}, s68')
    a('s_lshl_b32 s68, s68, 2'); a(f's_add_u32 s68, s68, {SWV}')
    a('s_lshl_b32 s70, s68, 7')
    a('s_mov_b32 s16, s40'); a('s_mov_b32 s17, s41')
    for m, p in ((1, 42), (2, 44), (3, 52)):
        a(f's_cmp_eq_u32 s67, {m}'); a(f's_cselect_b32 s16, s{p}, s16'); a(f's_cselect_b32 s17, s{p+1}, s17')
    a(f's_cselect_b32 {SSTR}, 3, 12'); a(f's_cselect_b32 s69, 0, 0x80008000'); a(f'v_mov_b32 v{VMAX}, s69')
    a(f's_mul_i32 {SSTR}, {SSTR}, 1024'); a(f's_mul_i32 s18, {SSTR}, 640')
    a(f's_lshl_b32 {SPRG}, {SU}, 9'); a(f's_lshl_b32 s69, {SWV}, 7'); a(f's_add_u32 {SPRG}, {SPRG}, s69'); a(f's_add_u32 {SPRG}, {SPRG}, {PRGX_OFF}')
    a('s_mul_i32 s69, s68, 171'); a('s_lshr_b32 s69, s69, 9')
    a('s_mul_i32 s80, s69, 3'); a('s_sub_u32 s80, s68, s80'); a('s_lshl_b32 s80, s80, 11')
    a(f's_mul_i32 {SOB}, s69, 12288'); a(f's_add_u32 {SOB}, {SOB}, s80')
    a(f's_mov_b32 s69, {QF_OFF}')
    a('s_cmp_eq_u32 s67, 1'); a(f's_cselect_b32 s69, {KF_OFF}, s69')
    a('s_cmp_eq_u32 s67, 2'); a(f's_cselect_b32 s69, {VF_OFF}, s69')
    a('s_cmp_eq_u32 s67, 3'); a(f's_cselect_b32 s69, {VF_OFF + 32*12288}, s69')
    a(f's_add_u32 {SOB}, {SOB}, s69')
    a('s_cmp_ge_u32 s67, 2'); a(f's_cselect_b32 {SOS}, 40, 32'); a(f's_mul_i32 {SOS}, {SOS}, 12288')
    a(f's_lshl_b32 s81, {SSTR}, 5')
    SNX, SNM, SCNT, SNJ = 's85', 's86', 's87', 's88'
    J = ['s89', 's90', 's91', 's94']
    a('s_sub_u32 s69, s67, 1'); a('s_cmp_lt_u32 s69, 2'); a(f's_cselect_b32 {SCNT}, {LEAD}, 0xffff'); a(f's_cselect_b32 {SNJ}, {64 + NPM}, 64')
    a(f's_mov_b32 {SNX}, 0'); a(f's_mov_b32 {SNM}, 0')
    lu = a.label('Lu')
    a(f's_cmp_lg_u32 {SNJ}, 64'); a(f's_cbranch_scc1 {lu}')
    late_start(a, opt)
    a(f'{lu}:')
    a(f's_mul_i32 s95, {SWV}, 10240'); a(f's_mov_b32 {SXL}, s95')
    ools = []
    def mwait():
        lp, ld = a.label('Lmp'), a.label('Lmd')
        a(f'v_min_u32 v{VT1}, 9, v0'); a(f'v_lshlrev_b32 v{VT1}, 7, v{VT1}'); a(f's_lshl_b32 s92, {SNM}, 2'); a('s_add_u32 s92, s92, 4'); a(f's_mov_b32 s93, {MPRG_OFF}')
        a(f'{lp}:')
        a(f'buffer_load_dword v{VT0}, v{VT1}, {S_WS}, s93 offen sc1'); a('s_waitcnt vmcnt(0)')
        a(f'v_cmp_gt_u32 vcc, s92, v{VT0}')
        a(f's_cbranch_vccz {ld}')
        a(f's_sleep {opt.get("msleep", 2)}')
        budget_loop(a, lp, ld)
        a(f'{ld}:')
    def nextjob(dst):
        lm, lb = a.label('Lnm'), a.label('Lnb')
        def br(): a(f's_cbranch_scc1 {lm}'); a(f's_mov_b32 {dst}, {SNX}'); a(f's_add_u32 {SNX}, {SNX}, 1'); a(f's_sub_u32 {SCNT}, {SCNT}, 1'); a(f'{lb}:')
        def ool():
            a(f'{lm}:'); mwait()
            a(f's_add_u32 {dst}, {SNM}, 64'); a(f's_add_u32 {SNM}, {SNM}, 1'); a(f's_cmp_lt_u32 {SNM}, {NPM}'); a(f's_cselect_b32 {SCNT}, 4, 0xffff')
            a(f's_branch {lb}')
        ools.append(ool)
        return [f's_cmp_eq_u32 {SCNT}, 0', br, f's_mul_i32 {SXD}, {dst}, 40960', f's_add_u32 {SXD}, {SXD}, s95']
    def xdma():
        r = []
        for j in range(10):
            if j % 4 == 0: r += [f's_add_u32 m0, {SXL}, {j*1024}', f's_add_u32 s73, {SXD}, {XN_OFF + j*1024}']
            r.append(f'buffer_load_dwordx4 v{VL16}, {S_WS}, s73 offen offset:{(j&3)*1024} sc1 lds')
        return r
    def xadv(): return [f's_add_u32 {SXL}, {SXL}, 40960', f's_cmp_ge_u32 {SXL}, 163840', 's_cselect_b32 s73, 163840, 0', f's_sub_u32 {SXL}, {SXL}, s73']
    def em(lst):
        for s_ in lst:
            if callable(s_): s_()
            elif s_: a(s_)
    def hook(n, vm):
        if n == opt.get('lnat', 19):
            lw = a.label('Lxw')
            a(f's_cmp_lg_u32 {SWV}, 0'); a(f's_cbranch_scc1 {lw}')
            area_wait(a); ln_wait(a)
            a(f'{lw}:'); a('s_barrier')
            for j in range(2):
                em(nextjob(J[1 + j]) + xdma() + xadv())
                for _ in range(10): vm.issue('x')
    wloader(a, 20, lambda n: [f's_mul_i32 s73, s81, {n}', 's_add_u32 s73, s73, s70'], lambda n, tt: wreg(n*4 + tt, WV), SSTR, hook)
    a('s_waitcnt vmcnt(0)'); a('s_barrier')
    tstamp(a, opt, 1, (14, 15))
    em(nextjob(J[3]) + xdma())
    LA = 4
    def xread(f):
        kk, ct = f >> 1, f & 1; b = XB + (f % 8)*4
        return f'ds_read_b128 v[{b}:{b+3}], v{VRD} offset:{ct*20480 + kk*1024}'
    a(f'v_mov_b32 v{VRD}, v{VL16}'); a('s_mov_b32 s82, 0')
    for f in range(LA): a(xread(f))
    def epi(par):
        r = [f's_mul_i32 s84, {J[0]}, {SOS}', f's_add_u32 s84, s84, {SOB}', 's_add_u32 s83, s84, 6144',
             f's_sub_u32 s93, {J[0]}, {LEAD-4}', 's_max_i32 s93, s93, 0', 's_lshr_b32 s93, s93, 2', f's_add_u32 s93, s93, {J[0]}',
             f's_mul_i32 s92, {J[0]}, 5', f's_sub_u32 s92, s92, {320 - LEAD}', f's_min_u32 s92, s92, {J[0]}',
             f's_cmp_lt_u32 {J[0]}, 64', 's_cselect_b32 s93, s93, s92', 's_add_u32 s93, s93, 1', f'v_mov_b32 v{VPV}, s93']
        for ct in range(2):
            for j in range(2):
                o = STG + (ct*2 + j)*4
                for x in range(4):
                    b = ACC + par*32 + ((2*j + (x >> 1))*2 + ct)*4 + (x & 1)*2
                    r.append(f'v_cvt_pk_bf16_f32 v{o+x}, v{b}, v{b+1}')
                for x in range(4): r.append(f'v_pk_max_i16 v{o+x}, v{o+x}, v{VMAX}')
                r.append(f'buffer_store_dwordx4 v[{o}:{o+3}], v{VL16}, {S_WS}, {"s84" if ct == 0 else "s83"} offen offset:{j*1024} sc1')
        return r
    def prg(): return ['s_waitcnt vmcnt(0)', f'buffer_store_dword v{VPV}, v{VFLG}, {S_WS}, {SPRG} offen sc1']
    def stream(par, early, mid, late, cont):
        ne, nl = len(early), len(late)
        for n in range(160):
            f, tt = n >> 2, n & 3
            kk, ct = f >> 1, f & 1
            if tt == 0: a(f's_waitcnt lgkmcnt({LA-1 if (cont or f + LA <= 40) else 39 - f})')
            d = ACC + par*32 + (tt*2 + ct)*4; b = XB + (f % 8)*4
            a(mfma(d, wstr(kk*4 + tt, WV), f'v[{b}:{b+3}]', kk == 0))
            if n == 143 and cont: a('s_barrier'); a(f'v_add_u32 v{VRD}, s82, v{VL16}')
            if tt == 0 and (cont or f + LA < 40): a(xread((f + LA) % 40))
            if n < 70: em([early.pop(0) for _ in range(spread(ne, n, 70))])
            if n == opt.get('xpg', 90): em(mid)
            if n >= 144: em([late.pop(0) for _ in range(spread(nl, n - 144, 16))])
        assert not early and not late
    a(f's_mov_b32 {SSEG}, 0'); a(f's_mov_b32 s64, {SOB}'); a(f's_mov_b32 {SOB}, {OOB}'); a(f's_mov_b32 s7, {SPRG}'); a(f's_mov_b32 {SPRG}, {OOB}'); a(f's_mov_b32 {J[0]}, 0')
    lt, lx0, lx1, lx2, ltail = [a.label('Lx') for _ in range(5)]
    a(f'{lt}:')
    for par in range(2):
        early = [None, None, None] + epi(par ^ 1) + xadv() + ['s_add_u32 s82, s82, 40960', 's_cmp_ge_u32 s82, 163840', 's_cselect_b32 s82, 0, s82']
        mid = prg() + [f's_mov_b32 {SOB}, s64', f's_mov_b32 {SPRG}, s7', f's_mov_b32 {J[0]}, {J[1]}', f's_mov_b32 {J[1]}, {J[2]}', f's_mov_b32 {J[2]}, {J[3]}'] + nextjob(J[3])
        stream(par, early, mid, xdma(), True)
        tstamp(a, opt, (SSEG, 8), (14, 15))
        a(f's_add_u32 {SSEG}, {SSEG}, 1'); a(f's_cmp_ge_u32 {SSEG}, {SNJ}'); a(f's_cbranch_scc1 {lx0 if par == 0 else lx1}')
    a(f's_branch {lt}')
    a(f'{lx1}:')
    em(epi(1) + prg())
    a(f's_branch {lx2}')
    a(f'{lx0}:')
    em(epi(0) + prg())
    a(f'{lx2}:')
    a(f's_cmp_lt_u32 {SU}, 24'); a('s_cselect_b32 s68, 0, 48'); a(f's_sub_u32 s68, {SU}, s68')
    a(f's_cmp_eq_u32 {SNJ}, 64'); a('s_cbranch_scc1 L_f2')
    a(f'{ltail}:')
    mwait()
    a(f's_add_u32 {J[0]}, {SNM}, 64'); a(f's_mul_i32 {SXD}, {J[0]}, 40960'); a(f's_add_u32 {SXD}, {SXD}, s95'); a(f's_mov_b32 {SXL}, s95')
    a('s_waitcnt lgkmcnt(0)'); a('s_barrier')
    em(xdma())
    a(f'v_mov_b32 v{VRD}, v{VL16}')
    a('s_waitcnt vmcnt(0)'); a('s_barrier')
    for f in range(LA): a(xread(f))
    stream(0, [], [], [], False)
    em(epi(0) + prg())
    tstamp(a, opt, (SSEG, 8), (14, 15))
    a(f's_add_u32 {SSEG}, {SSEG}, 1')
    a(f's_add_u32 {SNM}, {SNM}, 1'); a(f's_cmp_lt_u32 {SNM}, {NMB}'); a(f's_cbranch_scc1 {ltail}')
    a('s_waitcnt vmcnt(0)'); a('s_endpgm')
    for o in ools: o()

def y_unit(a, opt):
    VF, ACC, STG, WV = 64, 112, 128, 224
    SPRG, SOB, SVB, SPX, SPA = 's75', 's76', 's77', 's78', 's79'
    a(f's_cmp_ge_u32 {SU}, 32'); a('s_cselect_b32 s16, s54, s46'); a('s_cselect_b32 s17, s55, s47')
    a('s_cselect_b32 s18, 1, 4'); a(f's_mul_i32 s18, s18, {1536*1280}')
    a(f's_and_b32 s67, {SU}, 31'); a(f's_mul_i32 s70, s67, {192*1280}'); a(f's_lshl_b32 s67, {SWV}, 7'); a('s_add_u32 s70, s70, s67')
    a(f's_mul_i32 {SPRG}, {SWV}, 40'); a(f's_add_u32 {SPRG}, {SPRG}, {SU}'); a(f's_lshl_b32 {SPRG}, {SPRG}, 7'); a(f's_add_u32 {SPRG}, {SPRG}, {PRGY_OFF}')
    SJOB, SNX, SNM, SCNT, SPOS, SMB = 's84', 's85', 's86', 's87', 's88', 's89'
    VMJ = 16
    a(f's_lshl_b32 {SOB}, {SU}, 10'); a(f's_mul_i32 s67, {SWV}, {4*40960}'); a(f's_add_u32 {SOB}, {SOB}, s67'); a(f's_add_u32 {SOB}, {SOB}, {VOF_OFF}')
    a(f's_mul_i32 {SMB}, {SU}, 10240'); a(f's_lshl_b32 s67, {SWV}, 10'); a(f's_add_u32 {SMB}, {SMB}, s67'); a(f's_add_u32 {SMB}, {SMB}, {VOM_OFF}')
    a(f's_mul_i32 {SVB}, {SU}, 12288'); a(f's_and_b32 s67, {SWV}, 1'); a('s_mul_i32 s80, s67, 6144'); a(f's_add_u32 {SVB}, {SVB}, s80'); a(f's_add_u32 {SVB}, {SVB}, {VF_OFF}')
    a(f's_mul_i32 {SPA}, {SU}, 384'); a(f's_add_u32 {SPA}, {SPA}, {PRGX_OFF + 192*128}'); a(f's_mov_b32 {SPX}, 0')
    lanefn(a, VMJ, lambda l: (l >> 5)*327680 + (l & 15)*16 + ((l >> 4) & 1)*8, 17)
    a('s_mov_b32 s74, 1280')
    lu = a.label('Lu')
    a(f's_cmp_lt_u32 {SU}, 32'); a(f's_cbranch_scc1 {lu}')
    late_start(a, opt)
    a(f'{lu}:')
    l2 = a.label('Ly2')
    a(f's_cmp_ge_u32 {SWV}, 2'); a(f's_cbranch_scc1 {l2}')
    for ng in (3, 2):
        if ng == 2: a(f'{l2}:')
        def hook(n, vm): pass
        wloader(a, 6*ng, lambda n: [f's_add_u32 s73, s70, {(n // 6)*512 + (n % 6)*32*1280}'],
                lambda n, tt: wreg(((n // 6)*4 + tt)*6 + n % 6, WV), 's74', hook)
        tstamp(a, opt, 1, (14, 15))
        SJ2, SP2, SPF = 's94', 's95', 's64'
        def poll():
            a(f'buffer_load_dword v{VT0}, v{VT1}, {S_WS}, {SPA} offen sc1')
        def take():
            for j in range(3): a(f'v_readlane_b32 s{81+j}, v{VT0}, {j}')
            a('s_min_u32 s81, s81, s82'); a(f's_min_u32 {SPX}, s81, s83')
        def dma():
            a(f's_andn2_b32 s81, 1, {SSEG}'); a('s_mul_i32 s81, s81, 12288'); a('s_add_u32 s81, s81, s80')
            a(f's_mul_i32 s82, {SJ2}, {40*12288}'); a(f's_add_u32 s82, s82, {SVB}')
            for j in range(6):
                if j % 4 == 0: a(f's_add_u32 m0, s81, {j*1024}'); a(f's_add_u32 s73, s82, {j*1024}')
                a(f'buffer_load_dwordx4 v{VL16}, {S_WS}, s73 offen offset:{(j&3)*1024} sc1 lds')
        def fetch():
            lp, ld = a.label('Lyp'), a.label('Lyd')
            a(f's_cmp_gt_u32 {SPX}, {SP2}'); a(f's_cbranch_scc1 {ld}')
            a(f'{lp}:')
            poll(); a('s_waitcnt vmcnt(0)'); take()
            a(f's_cmp_gt_u32 {SPX}, {SP2}'); a(f's_cbranch_scc1 {ld}')
            a('s_sleep 2')
            budget_loop(a, lp, ld)
            a(f'{ld}:')
            dma()
        def nextjob():
            lnx, lgo = a.label('Lyn'), a.label('Lyg')
            a(f's_add_u32 {SP2}, {SPOS}, 1')
            a(f's_cmp_lg_u32 {SCNT}, 0'); a(f's_cbranch_scc1 {lnx}')
            a(f's_add_u32 {SJ2}, {SNM}, 64'); a(f's_add_u32 {SNM}, {SNM}, 1'); a(f's_cmp_lt_u32 {SNX}, 64'); a(f's_cselect_b32 {SCNT}, 4, 0')
            a(f's_cmp_lt_u32 {SU}, 32'); a(f's_cbranch_scc1 {lgo}')
            a(f's_mov_b32 {SJ2}, 80'); a(f's_cmp_ge_u32 {SNX}, 64'); a(f's_cbranch_scc1 {lgo}')
            a(f's_add_u32 {SP2}, {SP2}, 1')
            a(f'{lnx}:')
            a(f's_mov_b32 {SJ2}, {SNX}'); a(f's_add_u32 {SNX}, {SNX}, 1'); a(f's_sub_u32 {SCNT}, {SCNT}, 1')
            a(f'{lgo}:')
        a(f's_mov_b32 {SSEG}, -1'); a(f's_mov_b32 {SJ2}, 0'); a(f's_mov_b32 {SP2}, 0'); a(f's_mov_b32 {SNX}, 1'); a(f's_mov_b32 {SNM}, 0'); a(f's_mov_b32 {SCNT}, {LEAD-1}')
        a(f'v_mov_b32 v{VPV}, 0'); a('v_mov_b32 v17, 24576')
        a(f'v_min_u32 v{VT1}, 2, v0'); a(f'v_lshlrev_b32 v{VT1}, 7, v{VT1}')
        if ng == 2:
            area_wait(a)
            fetch(); a('s_waitcnt vmcnt(0)')
        lt, lm, lj, le, lnp, lpf = [a.label('Ly') for _ in range(6)]
        a(f'{lt}:')
        a(f's_add_u32 {SSEG}, {SSEG}, 1'); a(f's_mov_b32 {SJOB}, {SJ2}'); a(f's_mov_b32 {SPOS}, {SP2}')
        a(f's_and_b32 s81, {SSEG}, 1'); a('s_mul_i32 s81, s81, 12288'); a(f'v_add_u32 v{VRD}, s81, v{VL16}')
        a(f's_mul_i32 s90, {SJOB}, {40*40960}'); a(f's_add_u32 s90, s90, {SOB}')
        a(f's_sub_u32 s91, {SJOB}, 64'); a(f's_mul_i32 s91, s91, {4*327680}'); a(f's_add_u32 s91, s91, {SMB}')
        a('s_barrier')
        for ks in range(6):
            for ct in range(2):
                b = VF + (ct*6 + ks)*4
                a(f'ds_read_b128 v[{b}:{b+3}], v{VRD} offset:{(ct*6 + ks)*1024}')
        nextjob()
        if ng == 2:
            pass
        a(f's_cmp_ge_u32 {SJOB}, 64'); a(f's_cbranch_scc1 {lm}')
        for mj in (0, 1):
            if mj: a(f'{lm}:')
            def out(i):
                gi, tt = i >> 2, i & 3
                o = STG + (i & 3)*4
                if mj: r = [f's_add_u32 s82, s91, {gi*4096}', f's_add_u32 s83, s91, {gi*4096 + 2*327680}'] if tt == 0 else []
                else: r = [f's_add_u32 s83, s90, {(16*gi + tt)*40960}']
                for ct in range(2):
                    b = ACC + (i & 1)*8 + ct*4
                    for x in range(2): r.append(f'v_cvt_pk_bf16_f32 v{o+2*ct+x}, v{b+2*x}, v{b+2*x+1}')
                if mj: r += [f'buffer_store_dwordx2 v[{o+2*ct}:{o+2*ct+1}], v{VMJ}, {S_WS}, s{82+ct} offen offset:{tt*256} sc1' for ct in range(2)]
                else: r.append(f'buffer_store_dwordx4 v[{o}:{o+3}], v{VL16}, {S_WS}, s83 offen sc1')
                return r
            for i in range(4*ng):
                side = [None]*4 + out(i - 1) if i else []
                if ng == 3 and i == 7:
                    side[0:2] = [f's_waitcnt vmcnt({12 if mj else 6})', f'buffer_store_dword v{VPV}, v{VFLG}, {S_WS}, {SPRG} offen sc1']
                if ng == 3 and i == 11: side[0:1] = ['ds_read_b32 v18, v17']
                if ng == 2 and i == 2: side[0:1] = [poll]
                if ng == 2 and i == 6:
                    def pref(k=(8 if mj else 4)):
                        lnp = a.label('Lyf')
                        a(f's_waitcnt vmcnt({k})'); take()
                        a(f's_mov_b32 {SPF}, 0')
                        a(f's_cmp_le_u32 {SPX}, {SP2}'); a(f's_cbranch_scc1 {lnp}'); a(f's_cmp_ge_u32 {SJ2}, {64 + NMB}'); a(f's_cbranch_scc1 {lnp}')
                        dma(); a(f's_mov_b32 {SPF}, 1')
                        a(f'{lnp}:')
                        a(f'v_mov_b32 v18, {SPF}'); a('ds_write_b32 v17, v18')
                        if mj: a('s_add_u32 s82, s91, 4096'); a(f's_add_u32 s83, s91, {4096 + 2*327680}')
                    side[0:1] = [pref]
                for n in range(12):
                    ks, ct = n >> 1, n & 1
                    if i == 0: a(f's_waitcnt lgkmcnt({11 - n})')
                    b = VF + (ct*6 + ks)*4
                    a(mfma(ACC + (i & 1)*8 + ct*4, f'v[{b}:{b+3}]', wstr(i*6 + ks, WV), ks == 0))
                    if side:
                        s_ = side.pop(0)
                        if callable(s_): s_()
                        elif s_: a(s_)
                assert not side, side
            for s_ in out(4*ng - 1): a(s_)
            if not mj: a(f's_branch {lj}')
        a(f'{lj}:')
        tstamp(a, opt, (SSEG, 8), (14, 15))
        a(f's_add_u32 s81, {SPOS}, 1'); a(f'v_mov_b32 v{VPV}, s81')
        a(f's_cmp_ge_u32 {SJ2}, {64 + NMB}'); a(f's_cbranch_scc1 {le}')
        if ng == 2:
            a('s_waitcnt vmcnt(0)')
            a(f'buffer_store_dword v{VPV}, v{VFLG}, {S_WS}, {SPRG} offen sc1')
            a(f's_cmp_lg_u32 {SPF}, 0'); a(f's_cbranch_scc1 {lt}')
            fetch()
            a('s_waitcnt vmcnt(0)')
        else:
            a('s_waitcnt lgkmcnt(0)'); a('v_readfirstlane_b32 s81, v18')
            a('s_cmp_lg_u32 s81, 0'); a(f's_cbranch_scc1 {lt}')
            a('s_waitcnt vmcnt(0)'); a(f'buffer_store_dword v{VPV}, v{VFLG}, {S_WS}, {SPRG} offen sc1')
        a(f's_branch {lt}')
        a(f'{le}:')
        a('s_waitcnt vmcnt(0)')
        a(f'buffer_store_dword v{VPV}, v{VFLG}, {S_WS}, {SPRG} offen sc1')
        a(f's_sub_u32 s68, {SU}, 2'); a(f's_cmp_ge_u32 {SU}, 32'); a('s_cbranch_scc1 L_f2')
        a('s_waitcnt vmcnt(0)'); a('s_endpgm')

def layer_norm(a):
    L, F, G, T = 16, 64, 144, 224
    lanefn(a, VT0, lambda l: (l & 15)*1280 + (l >> 4)*8, VT1, 5*64)
    a(f's_mul_i32 s68, {SU}, {32*1280}'); a(f's_add_u32 s69, s68, {16*1280}')
    for c in range(2):
        for k in range(5):
            for x in range(2): a(f'buffer_load_dwordx2 v[{L+20*c+4*k+2*x}:{L+20*c+4*k+2*x+1}], v{VT0}, {S_X}, s{68+c} offen offset:{k*64 + x*32}')
    AW, AR, TT = T + 16, T + 17, T + 18
    lanefn(a, AR, lambda l: (l & 15)*16, TT)
    a(f's_lshl_b32 s67, {SWV}, 2'); a(f'v_add_u32 v{AW}, s67, v{AR}')
    def unpack(c):
        for j in range(20):
            a(f'v_lshlrev_b32 v{F+40*c+2*j}, 16, v{L+20*c+j}'); a(f'v_and_b32 v{F+40*c+2*j+1}, 0xffff0000, v{L+20*c+j}')
    def xchg(off, reg):
        for c in range(2):
            v = T + 8*c + reg
            a(f'v_add_f32 v{v}, v{v}, v{v+1}')
            for s_ in allred('v_add_f32', v, TT): a(s_)
            a(f'ds_write_b32 v{AW}, v{v} offset:{off + c*256}')
        a('s_waitcnt lgkmcnt(0)'); a('s_barrier')
        for c in range(2): a(f'ds_read_b128 v[{T+8*c+4}:{T+8*c+7}], v{AR} offset:{off + c*256}')
        a('s_waitcnt lgkmcnt(0)')
        for c in range(2):
            q = T + 8*c + 4
            a(f'v_add_f32 v{q}, v{q}, v{q+1}'); a(f'v_add_f32 v{q+2}, v{q+2}, v{q+3}'); a(f'v_add_f32 v{T+8*c+reg}, v{q}, v{q+2}')
    pr = lambda r: f'v[{r}:{r+1}]'
    for c in range(2):
        a(f's_waitcnt vmcnt({10*(1-c)})'); unpack(c)
        f, t = F + 40*c, T + 8*c
        a(f'v_pk_add_f32 {pr(t)}, {pr(f)}, {pr(f+2)}')
        for j in range(2, 20): a(f'v_pk_add_f32 {pr(t)}, {pr(t)}, {pr(f+2*j)}')
    xchg(0, 0)
    a(f's_mov_b32 s67, {f2u(-1.0/640):#x}')
    for c in range(2):
        f, g, t = F + 40*c, G + 40*c, T + 8*c
        a(f'v_mul_f32 v{t}, s67, v{t}'); a(f'v_mov_b32 v{t+1}, v{t}')
        for j in range(20): a(f'v_pk_add_f32 {pr(g+2*j)}, {pr(f+2*j)}, {pr(t)}')
        a(f'v_pk_mul_f32 {pr(t+2)}, {pr(g)}, {pr(g)}')
        for j in range(1, 20): a(f'v_pk_fma_f32 {pr(t+2)}, {pr(g+2*j)}, {pr(g+2*j)}, {pr(t+2)}')
    xchg(512, 2)
    def rnd(v): a(f'v_cvt_pk_bf16_f32 v{v}, v{v}, v{v}'); a(f'v_lshlrev_b32 v{v}, 16, v{v}')
    a(f's_mov_b32 s67, {f2u(1.0/640):#x}')
    a(f's_mul_i32 s68, {SU}, 40960'); a(f's_mul_i32 s69, {SWV}, 5120'); a('s_add_u32 s68, s68, s69')
    if XN_OFF: a(f's_add_u32 s68, s68, {XN_OFF}')
    for c in range(2):
        f, t, l = F + 40*c, T + 8*c, L + 20*c
        a(f'v_mul_f32 v{t+2}, s67, v{t+2}'); rnd(t + 2)
        a(f'v_add_f32 v{t+2}, {f2u(1e-5):#x}, v{t+2}'); rnd(t + 2)
        a(f'v_sqrt_f32 v{t+2}, v{t+2}'); rnd(t + 2)
        a(f'v_rcp_f32 v{t+2}, v{t+2}'); rnd(t); a(f'v_mov_b32 v{t+3}, v{t+2}'); a(f'v_mov_b32 v{t+1}, v{t}')
        for j in range(20): a(f'v_pk_add_f32 {pr(f+2*j)}, {pr(f+2*j)}, {pr(t)}')
        for j in range(20): a(f'v_cvt_pk_bf16_f32 v{l+j}, v{f+2*j}, v{f+2*j+1}')
        unpack(c)
        for j in range(20): a(f'v_pk_mul_f32 {pr(f+2*j)}, {pr(f+2*j)}, {pr(t+2)}')
        for j in range(20): a(f'v_cvt_pk_bf16_f32 v{l+j}, v{f+2*j}, v{f+2*j+1}')
        a('s_add_u32 s69, s68, 4096')
        for k in range(5):
            a(f'buffer_store_dwordx4 v[{l+4*k}:{l+4*k+3}], v{VL16}, {S_WS}, {"s68" if k < 4 else "s69"} offen offset:{(k&3)*1024} sc1')
        a('s_add_u32 s68, s68, 20480')
    area_wait(a)
    a('s_barrier')
    a(f's_lshl_b32 s68, {SU}, 7'); a(f's_add_u32 s68, s68, {LNF_OFF}')
    a(f'buffer_store_dword v{VONE}, v{VFLG}, {S_WS}, s68 offen sc1')

SC = 0.07216878364870322 * 1.4426950408889634
def posx(a, dst, seg): a(f's_sub_u32 {dst}, {seg}, {LEAD-4}'); a(f's_max_i32 {dst}, {dst}, 0'); a(f's_lshr_b32 {dst}, {dst}, 2'); a(f's_add_u32 {dst}, {dst}, {seg}')
def posm(a, dst, b, t): a(f's_mul_i32 {dst}, {b}, 5'); a(f's_add_u32 {dst}, {dst}, {LEAD}'); a(f's_add_u32 {t}, {b}, 64'); a(f's_min_u32 {dst}, {dst}, {t}')
def poll_gt(a, opt, voff, soff, thr, T, sleep):
    lp, ld = a.label('Lq'), a.label('Lqd')
    a(f'{lp}:')
    a(f'buffer_load_dword v{T}, v{voff}, {S_WS}, {soff} offen sc1'); a('s_waitcnt vmcnt(0)')
    a(f'v_cmp_ge_u32 vcc, {thr}, v{T}')
    a(f's_cbranch_vccz {ld}')
    a(f's_sleep {sleep}')
    budget_loop(a, lp, ld)
    a(f'{ld}:')

def f_class(a, opt):
    lnl, lz, lz2, lf = a.label('Lnoln'), a.label('Lz'), a.label('Lz'), a.label('Lfu')
    a(f's_cmp_ge_u32 {SU}, 64'); a(f's_cbranch_scc1 {lz}')
    layer_norm(a)
    a(f's_branch {lnl}')
    a(f'{lz}:')
    for r in range(4): a(f'v_mov_b32 v{16+r}, 0')
    a(f's_sub_u32 s69, {SU}, 64'); a('s_mul_i32 s68, s69, 12288'); a(f's_mul_i32 s67, {SWV}, 3072'); a('s_add_u32 s68, s68, s67'); a(f's_add_u32 s68, s68, {FLAG_OFF}')
    for x in range(3): a(f'buffer_store_dwordx4 v[16:19], v{VL16}, {S_WS}, s68 offen offset:{x*1024} sc1')
    a('s_waitcnt vmcnt(0)'); a('s_barrier')
    a(f's_cmp_lg_u32 {SWV}, 0'); a(f's_cbranch_scc1 {lz2}')
    a(f's_mov_b32 s68, {DBG_AREA*4}')
    a(f'buffer_atomic_add v{VONE}, v{VFLG}, {S_DBG}, s68 offen sc1')
    a(f'{lz2}:')
    calibrate(a, 's69', opt.get('caldbg'))
    a('s_barrier')
    area_wait(a)
    a(f'{lnl}:')
    tstamp(a, opt, 1, (14, 15))
    a(f's_sub_u32 s68, {SU}, 34'); a(f's_cmp_ge_u32 {SU}, 72'); a('s_cbranch_scc1 L_f2')
    if opt.get('no3b'): a('s_branch L_wend'); return
    a(f's_cmp_ge_u32 {SU}, 32'); a(f's_cbranch_scc1 {lf}')
    p_unit(a, opt)
    a(f'{lf}:')
    f_unit(a, opt)

def p_unit(a, opt):
    QF, KF, KM, X00, X01, X11, M0, M1 = 16, 64, 112, 136, 140, 144, 148, 152
    VQO, VMO, T0, M, L, T = 156, 157, 158, 159, 160, 161
    SB, SHD, SPR, SVAL = 's70', 's71', 's72', 's[74:75]'
    SCM = [f's[{76+2*r}:{77+2*r}]' for r in range(4)]
    a(f's_and_b32 {SHD}, {SU}, 7'); a(f's_lshl_b32 {SHD}, {SHD}, 2'); a(f's_add_u32 {SHD}, {SHD}, {SWV}')
    a(f's_lshl_b32 {SPR}, {SU}, 9'); a(f's_lshl_b32 s67, {SWV}, 7'); a(f's_add_u32 {SPR}, {SPR}, s67'); a(f's_add_u32 {SPR}, {SPR}, {PRGP_OFF}')
    a(f'v_min_u32 v{VQO}, 5, v0'); a(f'v_cmp_lt_u32 vcc, 2, v{VQO}'); a(f'v_add_u32 v{T0}, 93, v{VQO}'); a(f'v_cndmask_b32 v{VQO}, v{VQO}, v{T0}, vcc'); a(f'v_lshlrev_b32 v{VQO}, 7, v{VQO}')
    a(f'v_min_u32 v{VT1}, 2, v0'); a(f'v_lshlrev_b32 v{VT1}, 7, v{VT1}')
    lanefn(a, VMO, lambda l: (l & 15)*16 + ((l >> 4) & 1)*8, T0)
    a(f'v_and_b32 v{T}, 15, v0')
    for r in range(4):
        lanefn(a, M, lambda l: (l >> 4)*4 + r, T0); a(f'v_cmp_le_u32 {SCM[r]}, v{M}, v{T}')
    a(f's_bitcmp1_b32 {SU}, 3'); a('s_cselect_b32 s74, 0, -1'); a('s_cselect_b32 s75, -1, 0')
    a(f's_mul_i32 s73, {SHD}, 384'); a(f's_add_u32 s73, s73, {PRGX_OFF}'); a(f's_add_u32 s88, s73, {96*128}')
    a(f's_mov_b32 s84, {f2u(SC):#x}'); a(f's_mov_b32 {SB}, 0')
    lt = a.label('Lp')
    a(f'{lt}:')
    a(f's_lshl_b32 {SSEG}, {SB}, 2'); a(f's_lshr_b32 s67, {SU}, 3'); a(f's_add_u32 {SSEG}, {SSEG}, s67')
    posx(a, 's85', SSEG)
    poll_gt(a, opt, VQO, 's73', 's85', T0, 16)
    def frags(dst, n, base):
        for j in range(n):
            if j % 4 == 0: a(f's_add_u32 s87, s86, {base + j*1024}')
            a(f'buffer_load_dwordx4 v[{dst+4*j}:{dst+4*j+3}], v{VL16}, {S_WS}, s87 offen offset:{(j&3)*1024} sc1')
    a(f's_lshl_b32 s86, {SSEG}, 5'); a(f's_add_u32 s86, s86, {SHD}'); a('s_mul_i32 s86, s86, 12288')
    frags(QF, 12, QF_OFF); frags(KF, 12, KF_OFF)
    vr = lambda b: f'v[{b}:{b+3}]'
    a('s_waitcnt vmcnt(6)')
    for kk in range(6): a(mfma(X00, vr(KF + 4*kk), vr(QF + 4*kk), kk == 0)); a(mfma(X01, vr(KF + 4*kk), vr(QF + 24 + 4*kk), kk == 0))
    a('s_waitcnt vmcnt(0)')
    for kk in range(6): a(mfma(X11, vr(KF + 24 + 4*kk), vr(QF + 24 + 4*kk), kk == 0))
    a(f'v_mov_b32 v{T}, 0xff7fffff')
    for D in (X00, X11):
        for r in range(4): a(f'v_cndmask_b32 v{D+r}, v{T}, v{D+r}, {SCM[r]}')
    posm(a, 's85', SB, 's67')
    lk = a.label('Lpk')
    a(f's_cmp_lt_u32 {SB}, {NMB}'); a(f's_cbranch_scc1 {lk}')
    a(f's_lshr_b32 s88, {SHD}, 4'); a('s_lshl_b32 s88, s88, 4'); a(f's_add_u32 s88, s88, {SHD}'); a('s_lshl_b32 s88, s88, 7'); a(f's_add_u32 s88, s88, {CPRG_OFF}')
    a(f'v_mov_b32 v{VT1}, 0'); a(f's_mov_b32 s85, {SSEG}')
    a(f'{lk}:')
    poll_gt(a, opt, VT1, 's88', 's85', T0, opt.get('psleep', 1))
    a(f's_add_u32 s86, {SB}, 64'); a('s_lshl_b32 s86, s86, 5'); a(f's_add_u32 s86, s86, {SHD}'); a('s_mul_i32 s86, s86, 12288')
    a(f's_bitcmp1_b32 {SU}, 4'); a('s_cselect_b32 s67, 6144, 0'); a('s_add_u32 s86, s86, s67')
    frags(KM, 6, KF_OFF)
    for kk in range(6):
        a(f's_waitcnt vmcnt({5-kk})')
        a(mfma(M0, vr(KM + 4*kk), vr(QF + 4*kk), kk == 0)); a(mfma(M1, vr(KM + 4*kk), vr(QF + 24 + 4*kk), kk == 0))
    a(f's_lshl_b32 s86, {SSEG}, 5'); a(f's_add_u32 s86, s86, {SHD}'); a('s_lshl_b32 s86, s86, 11'); a(f's_add_u32 s86, s86, {P3X_OFF}')
    a(f's_lshl_b32 s87, {SSEG}, 3'); a(f's_lshr_b32 s67, {SHD}, 2'); a('s_add_u32 s87, s87, s67'); a('s_lshl_b32 s87, s87, 11')
    a(f's_and_b32 s67, {SHD}, 3'); a('s_lshl_b32 s67, s67, 8'); a('s_add_u32 s87, s87, s67'); a(f's_add_u32 s87, s87, {P3M_OFF}')
    a(f'v_mov_b32 v{T}, 0xff7fffff')
    for D in (M0, M1):
        for r in range(4): a(f'v_cndmask_b32 v{D+r}, v{T}, v{D+r}, {SVAL}')
    for qt, tiles in ((0, [X00, M0]), (1, [X01, X11, M1])):
        allv = [D + r for D in tiles for r in range(4)]
        a(f'v_max3_f32 v{M}, v{allv[0]}, v{allv[1]}, v{allv[2]}')
        rest = allv[3:]
        while rest:
            if len(rest) >= 2: a(f'v_max3_f32 v{M}, v{M}, v{rest[0]}, v{rest[1]}'); rest = rest[2:]
            else: a(f'v_max_f32 v{M}, v{M}, v{rest[0]}'); rest = []
        for s_ in allred('v_max_f32', M, T): a(s_)
        a(f'v_mul_f32 v{M}, s84, v{M}')
        for v in allv: a(f'v_fma_f32 v{v}, v{v}, s84, -v{M}')
        for v in allv: a(f'v_exp_f32 v{v}, v{v}')
        a(f'v_add_f32 v{L}, v{allv[0]}, v{allv[1]}')
        for v in allv[2:]: a(f'v_add_f32 v{L}, v{L}, v{v}')
        for s_ in allred('v_add_f32', L, T): a(s_)
        a(f'v_rcp_f32 v{L}, v{L}')
        for v in allv: a(f'v_mul_f32 v{v}, v{v}, v{L}')
        o = tiles[0]; m = tiles[-1]
        a(f'v_cvt_pk_bf16_f32 v{o}, v{o}, v{o+1}'); a(f'v_cvt_pk_bf16_f32 v{o+1}, v{o+2}, v{o+3}')
        if qt: a(f'v_cvt_pk_bf16_f32 v{o+2}, v{X11}, v{X11+1}'); a(f'v_cvt_pk_bf16_f32 v{o+3}, v{X11+2}, v{X11+3}')
        else: a(f'v_mov_b32 v{o+2}, 0'); a(f'v_mov_b32 v{o+3}, 0')
        a(f'v_cvt_pk_bf16_f32 v{m}, v{m}, v{m+1}'); a(f'v_cvt_pk_bf16_f32 v{m+1}, v{m+2}, v{m+3}')
        a(f'buffer_store_dwordx4 v[{o}:{o+3}], v{VL16}, {S_WS}, s86 offen offset:{qt*1024} sc1')
        a(f's_mov_b64 exec, {SVAL}')
        a(f'buffer_store_dwordx2 v[{m}:{m+1}], v{VMO}, {S_WS}, s87 offen offset:{qt*1024} sc1')
        a('s_mov_b64 exec, -1')
    a(f's_add_u32 {SB}, {SB}, 1'); a(f'v_mov_b32 v{VPV}, {SB}'); a('s_waitcnt vmcnt(0)')
    a(f'buffer_store_dword v{VPV}, v{VFLG}, {S_WS}, {SPR} offen sc1')
    tstamp(a, opt, (SB, 7), (14, 15))
    a(f's_cmp_lt_u32 {SB}, 16'); a(f's_cbranch_scc1 {lt}')
    a('s_waitcnt vmcnt(0)'); a('s_endpgm')

def f_unit(a, opt):
    SB, SDT, SSG = 's70', 's72', 's71'
    VM, A0, G0, PB, ID, XR, GV = 16, 48, 56, 64, 128, 136, 140
    VMO, VXO, VPR, VFO, VPO, VTH = 150, 151, 152, 153, 154, 155
    T0, T1 = 156, 157
    lgo = a.label('Lfg')
    a(f's_sub_u32 s68, {SU}, 32'); a(f's_mov_b32 {SB}, 0'); a(f's_mov_b32 s82, {NMB}')
    a(f's_branch {lgo}')
    a('L_f2:')
    a('s_waitcnt vmcnt(0) lgkmcnt(0)'); a('s_barrier')
    a(f's_mov_b32 {SB}, {NMB}'); a('s_mov_b32 s82, 16')
    a(f'{lgo}:')
    a('s_mov_b32 s83, s68')
    a(f'v_and_b32 v{T0}, 15, v0'); a(f'v_lshrrev_b32 v{T1}, 4, v0'); a(f'v_lshlrev_b32 v{T1}, 2, v{T1}'); a(f'v_sub_u32 v{T0}, v{T0}, v{T1}')
    for r in (0, 1, 4, 5): a(f'v_mov_b32 v{ID+r}, 0')
    a(f'v_mov_b32 v{T1}, 0x3f80'); a(f'v_mov_b32 v{GV}, 0x3f800000')
    for d in range(2):
        a(f'v_cmp_eq_u32 vcc, {2*d}, v{T0}'); a(f'v_cndmask_b32 v{ID+2+d}, 0, v{T1}, vcc')
        a(f'v_cmp_eq_u32 vcc, {2*d+1}, v{T0}'); a(f'v_cndmask_b32 v{ID+2+d}, v{ID+2+d}, v{GV}, vcc')
    lanefn(a, VMO, lambda l: (l >> 4)*10240 + (l & 15)*16, T0)
    lanefn(a, VXO, lambda l: (l & 15)*1280 + (l >> 4)*8, T0)
    a('s_mov_b32 s68, s83'); a(f's_mul_i32 {SSG}, s68, 205'); a(f's_lshr_b32 {SSG}, {SSG}, 11'); a(f's_mul_i32 s67, {SSG}, 10'); a(f's_sub_u32 {SDT}, s68, s67')
    a(f's_and_b32 s79, {SDT}, 3'); a(f's_mul_i32 s79, s79, {40*128}'); a(f's_add_u32 s79, s79, {PRGY_OFF}')
    a(f's_lshl_b32 {SDT}, {SDT}, 2'); a(f's_add_u32 {SDT}, {SDT}, {SWV}')
    a(f'v_min_u32 v{VFO}, 39, v0'); a(f'v_lshlrev_b32 v{VFO}, 7, v{VFO}')
    a(f'v_lshlrev_b32 v{VPO}, 7, v0'); a(f's_lshl_b32 s67, {SSG}, 12'); a(f's_add_u32 s67, s67, {PRGP_OFF - 32*128}'); a('s_sub_u32 s67, s67, s79')
    a(f'v_add_u32 v{T0}, s67, v{VPO}'); a('s_mov_b32 s80, 0'); a('s_mov_b32 s81, -1'); a(f'v_cndmask_b32 v{VPO}, v{VPO}, v{T0}, s[80:81]')
    ltop, ld, lw = [a.label('Lfb') for _ in range(3)]
    a(f'{ltop}:')
    a(f's_lshl_b32 {SSEG}, {SB}, 2'); a(f's_add_u32 {SSEG}, {SSEG}, {SSG}')
    a(f's_cmp_lg_u32 {SWV}, 0'); a(f's_cbranch_scc1 {ld}')
    posx(a, 's73', SSEG)
    poll_gt(a, opt, VFO, 's79', 's73', T0, opt.get('ysleep', 16))
    a(f'{ld}:')
    a('s_barrier')
    a(f's_mul_i32 s73, {SSEG}, 40'); a(f's_add_u32 s73, s73, {SDT}'); a('s_mul_i32 s73, s73, 40960'); a(f's_add_u32 s73, s73, {VOF_OFF}')
    def vo(hh):
        if hh % 4 == 0: a(f's_add_u32 s74, s73, {hh*1024}')
        a(f'buffer_load_dwordx4 a[{4*hh}:{4*hh+3}], v{VL16}, {S_WS}, s74 offen offset:{(hh&3)*1024} sc1')
    for hh in range(32, 40): vo(hh)
    a(f's_mul_i32 s75, {SSEG}, {32*1280}'); a(f's_lshl_b32 s67, {SDT}, 5'); a('s_add_u32 s75, s75, s67'); a(f's_add_u32 s76, s75, {16*1280}')
    for qt in range(2): a(f'buffer_load_dwordx2 v[{XR+2*qt}:{XR+2*qt+1}], v{VXO}, {S_X}, s{75+qt} offen')
    for hh in range(32): vo(hh)
    for hh in range(32, 40):
        a(f's_waitcnt vmcnt({34 + 39 - hh})')
        for qt in range(2):
            b = ID + 2 - 2*qt
            a(mfma(G0 + 4*qt, f'a[{4*hh}:{4*hh+3}]', f'v[{b}:{b+3}]', hh == 32))
    def rnd8(src, dst):
        for j in range(4): a(f'v_cvt_pk_bf16_f32 v{PB+j}, v{src+2*j}, v{src+2*j+1}')
        for j in range(4): a(f'v_lshlrev_b32 v{dst+2*j}, 16, v{PB+j}'); a(f'v_and_b32 v{dst+2*j+1}, 0xffff0000, v{PB+j}')
    rnd8(G0, G0)
    a(f's_mov_b32 s67, {f2u(-1.4426950408889634):#x}')
    for j in range(8): a(f'v_mul_f32 v{GV+j}, s67, v{G0+j}')
    for j in range(8): a(f'v_exp_f32 v{GV+j}, v{GV+j}')
    for j in range(8): a(f'v_add_f32 v{GV+j}, 1.0, v{GV+j}')
    for j in range(8): a(f'v_rcp_f32 v{GV+j}, v{GV+j}')
    for j in range(8): a(f'v_mul_f32 v{GV+j}, v{GV+j}, v{G0+j}')
    rnd8(GV, GV)
    a(f's_cmp_lg_u32 {SWV}, 0'); a(f's_cbranch_scc1 {lw}')
    posm(a, 's73', SB, 's67')
    lk = a.label('Lfk')
    a(f's_cmp_lt_u32 {SB}, {NMB}'); a(f's_cbranch_scc1 {lk}')
    a(f'v_and_b32 v{T0}, 16, v0'); a(f'v_add_u32 v{T0}, v{T0}, v0'); a(f'v_lshlrev_b32 v{T0}, 7, v{T0}'); a(f's_sub_u32 s73, {CPRG_OFF + 16*128}, s79'); a(f'v_add_u32 v{T0}, s73, v{T0}')
    a(f'v_cndmask_b32 v{VPO}, v{T0}, v{VPO}, s[80:81]'); a(f's_mov_b32 s73, {SSEG}')
    a(f'{lk}:')
    a(f'v_mov_b32 v{VTH}, s73'); a(f'v_mov_b32 v{T0}, {SB}'); a(f'v_cndmask_b32 v{VTH}, v{VTH}, v{T0}, s[80:81]')
    poll_gt(a, opt, VPO, 's79', f'v{VTH}', PB, opt.get('psleep', 1))
    a(f'{lw}:')
    a('s_barrier')
    a(f's_mul_i32 s73, {SSEG}, {32*10240}'); a(f's_lshl_b32 s67, {SDT}, 8'); a('s_add_u32 s73, s73, s67'); a(f's_add_u32 s73, s73, {VOM_OFF}')
    a(f's_lshl_b32 s74, {SWV}, 10'); a(f's_lshl_b32 s77, {SSEG}, 16'); a('s_add_u32 s77, s77, s74'); a(f's_add_u32 s77, s77, {P3X_OFF}')
    a(f's_lshl_b32 s78, {SSEG}, 14'); a('s_add_u32 s78, s78, s74'); a(f's_add_u32 s78, s78, {P3M_OFF}')
    for n in range(20):
        sr = "s77" if n < 16 else "s78"
        a(f's_add_u32 m0, s74, {n*4096}')
        if n not in (0, 16): a(f's_add_u32 {sr}, {sr}, 4096')
        a(f'buffer_load_dwordx4 v{VL16}, {S_WS}, {sr} offen sc1 lds')
        if n == 4:
            for m in range(8):
                a(f'buffer_load_dwordx4 v[{VM+4*m}:{VM+4*m+3}], v{VMO}, {S_WS}, s73 offen sc1'); a('s_add_u32 s73, s73, 40960')
    a(f'v_add_u32 v{VPR}, 32768, v{VL16}')
    for st in range(4):
        a(f's_waitcnt vmcnt({[23, 10, 5, 0][st]})'); a('s_barrier')
        def rd(c):
            base, off = (VL16, c*1024) if c < 32 else (VPR, c*1024 - 32768)
            b = PB + (c % 16) * 4
            a(f'ds_read_b128 v[{b}:{b+3}], v{base} offset:{off}')
        for c in range(20*st, 20*st + 8): rd(c)
        for c in range(20*st, 20*st + 20):
            left = min(20*st + 20, c + 8) - c - 1
            a(f's_waitcnt lgkmcnt({left})')
            h2, qt = c >> 1, c & 1
            A = f'a[{4*h2}:{4*h2+3}]' if c < 64 else f'v[{VM+4*(h2-32)}:{VM+4*(h2-32)+3}]'
            b = PB + (c % 16) * 4
            a(mfma(A0 + 4*qt, A, f'v[{b}:{b+3}]', c < 2))
            if c + 8 < 20*st + 20: rd(c + 8)
    rnd8(A0, A0)
    for j in range(8): a(f'v_mul_f32 v{A0+j}, v{A0+j}, v{GV+j}')
    rnd8(A0, A0)
    for j in range(4): a(f'v_lshlrev_b32 v{G0+2*j}, 16, v{XR+j}'); a(f'v_and_b32 v{G0+2*j+1}, 0xffff0000, v{XR+j}')
    for j in range(8): a(f'v_add_f32 v{A0+j}, v{A0+j}, v{G0+j}')
    for j in range(4): a(f'v_cvt_pk_bf16_f32 v{A0+j}, v{A0+2*j}, v{A0+2*j+1}')
    for qt in range(2): a(f'buffer_store_dwordx2 v[{A0+2*qt}:{A0+2*qt+1}], v{VXO}, {S_OUT}, s{75+qt} offen')
    tstamp(a, opt, (SB, 100), (14, 15))
    a(f's_add_u32 {SB}, {SB}, 1'); a(f's_cmp_lt_u32 {SB}, s82'); a(f's_cbranch_scc1 {ltop}')
    a('s_waitcnt vmcnt(0)'); a('s_endpgm')

def gemm_main(a, opt):
    tstamp(a, opt, 0, (14, 15))
    a(f's_sub_u32 {SG}, {SSLOT}, 64')
    a(f's_mov_b32 {STMO}, {opt.get("tmo", 1 << 21)}')
    srd(a, S_X, 's[36:37]', 2048*640*2); srd(a, S_OUT, 's[56:57]', 2048*640*2); srd(a, S_WA, 's[40:41]', 0)
    a(f'v_lshlrev_b32 v{VL16}, 4, v0')
    a(f'v_mov_b32 v{VONE}, 1'); a(f'v_cmp_eq_u32 vcc, 0, v0'); a(f'v_mov_b32 v{VT0}, 0x40000000'); a(f'v_cndmask_b32 v{VFLG}, v{VT0}, 0, vcc')
    ly, lf = a.label('Lyu'), a.label('Lfu')
    a(f's_lshr_b32 s67, {SG}, 5'); a(f's_and_b32 s68, {SG}, 31')
    a(f's_mul_i32 {SU}, s67, 13'); a(f's_add_u32 {SU}, {SU}, s68')
    a('s_cmp_ge_u32 s68, 13'); a(f's_cbranch_scc1 {ly}')
    x_unit(a, opt)
    a(f'{ly}:')
    a('s_sub_u32 s68, s68, 13'); a('s_min_u32 s69, s67, 4')
    a('s_cmp_lt_u32 s67, 4'); a('s_cselect_b32 s70, 7, 6')
    a(f's_mul_i32 {SU}, s67, 6'); a(f's_add_u32 {SU}, {SU}, s69'); a(f's_add_u32 {SU}, {SU}, s68')
    a('s_cmp_ge_u32 s68, s70'); a(f's_cbranch_scc1 {lf}')
    y_unit(a, opt)
    a(f'{lf}:')
    a(f's_mul_i32 {SU}, s67, 13'); a(f's_sub_u32 {SU}, {SU}, s69'); a(f's_add_u32 {SU}, {SU}, s68'); a(f's_sub_u32 {SU}, {SU}, s70')
    f_class(a, opt)
    a('L_wend:'); a('s_waitcnt vmcnt(0)')
```

```python
S_TOK, DM, NH, DH, MM, SEG, NSEG, DFF = 2048, 640, 32, 192, 8, 32, 64, 1536
WS_BYTES = 268435456
XN_OFF   = 0x00000000
QF_OFF   = 0x00400000
KF_OFF   = 0x01C00000
VOF_OFF  = 0x03A00000
VOM_OFF  = 0x09E00000
P3X_OFF  = 0x0B200000
P3M_OFF  = 0x0B600000
RING_OFF = 0x0B700000
MEML_OFF = RING_OFF + 0
MEMR_OFF = 0x0E200000
PA_OFF   = RING_OFF + 0x28000
VOMR_OFF = RING_OFF + 0x40000
FLAG_OFF = 0x0B800000
PRGX_OFF = FLAG_OFF
PRGY_OFF = FLAG_OFF + 320*128
PRGP_OFF = FLAG_OFF + 480*128
LNF_OFF  = FLAG_OFF + 608*128
MPRG_OFF = FLAG_OFF + 672*128
CPRG_OFF = FLAG_OFF + 688*128
STAMP_OFF = 0x0B900000
VF_OFF   = 0x0BC00000
DBG_READY = 9
DBG_VOTE = 10
DBG_ROT = 44
DBG_AREA = 40
NAREA = 10
LDS_RING = 0
LDS_SLAB = 12288
LDS_MEM = 147456
LDS_EX = LDS_MEM + 12736
LDS_TOTAL = 163840
OOB = 0x20000000
LEAD = 16
NPM = (64 - LEAD) // 4
import os
NMB = int(os.environ.get('NMB', 12))
```

```python
from asmdsl import Asm
from layout import *
import struct
def f2u(x): return struct.unpack('<I', struct.pack('<f', x))[0]

class Trk:
    def __init__(self, a, name, maxn):
        self.a, self.name, self.maxn = a, name, maxn
        self.q = []; self.done = 0
    def reset(self): self.q = []; self.done = 0
    def issue(self, tag): self.q.append(tag)
    def wait(self, *tags):
        idx = -1
        for i in range(len(self.q) - 1, self.done - 1, -1):
            if self.q[i] in tags: idx = i; break
        if idx < self.done: return False
        n = min(len(self.q) - 1 - idx, self.maxn)
        self.a(f's_waitcnt {self.name}({n})')
        self.done = len(self.q) - n
        return True
    def all(self):
        self.a(f's_waitcnt {self.name}(0)'); self.done = len(self.q)

S_WS, S_DBG, S_WA, S_WB, S_AUX, S_OUT = 's[8:11]', 's[12:15]', 's[16:19]', 's[20:23]', 's[24:27]', 's[28:31]'
SWV, SXCC, SSLOT = 's3', 's4', 's5'
STMO = 's65'
SROT = 's34'
STAMP0 = 84

def srd(a, dst, ptr, nbytes):
    b = int(dst[2:dst.index(':')]); p = int(ptr[2:ptr.index(':')])
    a(f's_mov_b32 s{b}, s{p}'); a(f's_mov_b32 s{b+1}, s{p+1}')
    a(f's_mov_b32 s{b+2}, {nbytes}'); a(f's_mov_b32 s{b+3}, 0x20000')

def lanefn(a, dst, f, tmp, wave_mul=0):
    c = f(0); w = [f(1 << i) - c for i in range(6)]
    for l in range(64): assert f(l) == c + sum(w[i] for i in range(6) if l >> i & 1), ('not bit-affine', l)
    if wave_mul:
        a(f's_mul_i32 s67, {SWV}, {wave_mul}'); a(f's_add_u32 s67, s67, {c & 0xffffffff}'); a(f'v_mov_b32 v{dst}, s67')
    else: a(f'v_mov_b32 v{dst}, {c & 0xffffffff}')
    i = 0
    while i < 6:
        if w[i] == 0: i += 1; continue
        n = 1
        while i + n < 6 and w[i + n] == w[i] << n: n += 1
        a(f'v_bfe_u32 v{tmp}, v0, {i}, {n}'); a(f's_mov_b32 s67, {w[i] & 0xffffffff}')
        a(f'v_mad_i32_i24 v{dst}, v{tmp}, s67, v{dst}')
        i += n

def budget_loop(a, lp, lout):
    a(f's_cmp_eq_u32 {STMO}, 0'); a(f's_cbranch_scc1 {lout}')
    a(f's_sub_u32 {STMO}, {STMO}, 1'); a(f's_branch {lp}')

def poll_tail(a, lpoll, ldone):
    a(f's_cbranch_vccz {ldone}')
    budget_loop(a, lpoll, ldone)
    a(f'{ldone}:')

def stamp(a, opt, i):
    if opt.get('stamps'): a(f's_mem{"" if opt.get("cyc") else "real"}time s[{STAMP0+2*i}:{STAMP0+2*i+1}]')

def merge(a, lg, items, side):
    from asmdsl import Ins
    txt = lambda s: s if isinstance(s, str) else (s[1] if not callable(s) and s[0] == 'lds' else None)
    isv = lambda s: isinstance(s, str) and s.startswith('v_')
    def emit(s):
        if isinstance(s, str): a(s)
        elif callable(s): s()
        elif s[0] == 'lds': a(s[1]); lg.issue(s[2])
        elif s[0] == 'wait': lg.wait(*s[1:])
    def run(lst, nxt):
        head, tail = [], []
        for s in lst:
            if isv(s): tail.append(s); continue
            dep = False
            if txt(s) and tail:
                x = Ins(txt(s))
                for v in tail:
                    if txt(v) is None: dep = True; continue
                    y = Ins(txt(v))
                    if (x.rd | x.wr) & y.wr or x.wr & y.rd: dep = True
            if dep: tail.append(s); merge.late += 1
            else: head.append(s)
        for s in head: emit(s)
        if nxt and all(isv(s) for s in tail): lg.wait(*nxt)
        for s in tail: emit(s)
    run(side.get(-1, []), None)
    for i, (t, needs) in enumerate(items):
        if needs: lg.wait(*needs)
        a(t)
        run(side.get(i, []), items[i+1][1] if i + 1 < len(items) else None)
merge.late = 0

def dma_voff(a, dst, stride, t0, t1):
    a(f'v_lshrrev_b32 v{t0}, 3, v0'); a(f'v_and_b32 v{t1}, 6, v{t0}'); a(f'v_and_b32 v{dst}, 7, v0')
    a(f'v_xor_b32 v{dst}, v{dst}, v{t1}'); a(f'v_lshlrev_b32 v{dst}, 4, v{dst}')
    a(f's_mov_b32 s67, {stride}'); a(f'v_mad_u32_u24 v{dst}, v{t0}, s67, v{dst}')

def tstamp(a, opt, idx, vt=(250, 251)):
    if not opt.get('gstamps'): return
    a('s_memrealtime s[96:97]'); a('s_waitcnt lgkmcnt(0)')
    a(f's_lshl_b32 s98, {SSLOT}, 10')
    if isinstance(idx, int): a(f's_add_u32 s98, s98, {idx*4}')
    else: a(f's_lshl_b32 s99, {idx[0]}, 2'); a('s_add_u32 s98, s98, s99'); a(f's_add_u32 s98, s98, {idx[1]*4}')
    a(f's_add_u32 s98, s98, {STAMP_OFF + 0x100000}')
    a(f'v_mov_b32 v{vt[0]}, s96'); a(f'v_mov_b32 v{vt[1]}, 0')
    a(f'buffer_store_dword v{vt[0]}, v{vt[1]}, {S_WS}, s98 offen')

def calibrate(a, idx, dbg=False):
    lc = a.label('Lcal')
    a(f's_cmp_lg_u32 {SWV}, 0'); a(f's_cbranch_scc1 {lc}')
    a(f's_add_u32 s70, s60, {MEMR_OFF + 0x7ffff}'); a('s_and_b32 s70, s70, 0xfff80000'); a('s_sub_u32 s70, s70, s60')
    a(f's_lshl_b32 s71, {idx}, 7'); a('s_add_u32 s70, s70, s71'); a('s_add_u32 s70, s70, 6144'); a('s_add_u32 s71, s70, 8192')
    a('v_mov_b32 v16, 0'); a('s_mov_b64 exec, 1'); a('s_mov_b32 s72, -1'); a('s_mov_b32 s73, -1')
    a('s_waitcnt vmcnt(0)')
    for r in range(8):
        for p in range(2):
            a('s_memtime s[74:75]'); a(f'buffer_store_dword v16, v16, {S_WS}, s{70+p} offen sc1'); a('s_waitcnt vmcnt(0)')
            a('s_memtime s[76:77]'); a('s_waitcnt lgkmcnt(0)'); a('s_sub_u32 s76, s76, s74'); a(f's_min_u32 s{72+p}, s{72+p}, s76')
        a('s_add_u32 s70, s70, 32768'); a('s_add_u32 s71, s71, 32768')
    if dbg:
        a('v_mov_b32 v18, s72'); a('v_mov_b32 v19, s73'); a(f's_lshl_b32 s74, {idx}, 3'); a('s_add_u32 s74, s74, 48')
        a(f'buffer_store_dwordx2 v[18:19], v16, {S_DBG}, s74 offen')
    a('s_cmp_lt_u32 s73, s72'); a('s_cselect_b32 s72, 1, 0'); a(f's_lshr_b32 s73, {SXCC}, 2'); a('s_xor_b32 s72, s72, s73'); a('s_add_u32 s72, s72, 256')
    a('v_mov_b32 v17, s72'); a(f'v_mov_b32 v16, {DBG_VOTE*4}')
    a(f'buffer_atomic_add v17, v16, {S_DBG}, 0 offen sc1')
    a('s_mov_b64 exec, -1')
    a(f'{lc}:')

def rot_load(a, v, t):
    a(f'v_mov_b32 v{t}, {DBG_ROT*4}'); a(f'buffer_load_dword v{v}, v{t}, {S_DBG}, 0 offen sc1')
def rot_check(a, v, t, loaded=False):
    lp, lc, lok = a.label('Lrp'), a.label('Lrc'), a.label('Lro')
    if loaded: a(f's_branch {lc}')
    a(f'{lp}:')
    rot_load(a, v, t); a('s_waitcnt vmcnt(0)')
    a(f'{lc}:')
    a(f'v_readfirstlane_b32 s67, v{v}')
    a('s_sub_u32 s67, s67, 1'); a(f's_cmp_eq_u32 s67, {SROT}'); a(f's_cbranch_scc1 {lok}')
    a(f's_sub_u32 {STMO}, {STMO}, 1'); a(f's_cmp_eq_u32 {STMO}, 0'); a(f's_cbranch_scc1 {lok}')
    a('s_cmp_gt_u32 s67, 7'); a(f's_cbranch_scc1 {lp}')
    a(f's_mov_b32 {SROT}, s67')
    a('s_waitcnt vmcnt(0) lgkmcnt(0)'); a('s_barrier')
    a('s_branch L_restart')
    a(f'{lok}:')
```

```python
from common import *

SC = 0.07216878364870322 * 1.4426950408889634

def wfrag(f, half=None):
    if f < 32: k, b = 'a', f * 8
    else: k, b = 'v', 176 + (f - 32) * 8
    if half is None: return f'{k}[{b}:{b+7}]'
    return k, b + 4 * half

VL16, VGW, VAR, VFR, VXW, VXS, VDR, VIDX, V9, V10, V11, V12, VT0, VT1, VT2 = range(1, 16)
VA = 16
VACC0 = 56
VACC1 = 68
VB = 80
VKX = 112
VQF = 136
VTMP = 160
VOX = 112
SSTEP, SH, SX, SDT = 's62', 's63', 's64', 's66'
SMASK8 = 's[70:71]'
SCM = [f's[{72+2*r}:{73+2*r}]' for r in range(4)]
SCHK = 's80'
S_ONE0, S_ONE1 = 's100', 's101'
NCH = [3, 3, 2, 2]
OWN = [[0, 1, 2], [3, 4, 5], [6, 7], [8, 9]]
REGKB = [0, 1, 3, 4, 6, 7, 8]; LDSKB = [2, 5, 9]
REGT = [0, 2, 3, 4, 6, 7, 8]; LDST = [1, 5, 9]
def yfrag(tile, kb):
    if tile in REGT: return 'reg', 21 + REGT.index(tile)*3 + kb
    return 'lds', 9 + LDST.index(tile)*3 + kb
def xfrag(kb, t, second):
    if kb in REGKB: return 'reg', t*7 + REGKB.index(kb) + (21 if second else 0)
    return 'lds', LDSKB.index(kb)*3 + t + (9 if second else 0)
def apos(w, order):
    ap = {kb: VA + 8*c for c, kb in enumerate(OWN[w])}
    free = [VA + 4*i for i in range(10) if VA + 4*i not in ap.values()]
    for kb in order:
        if kb not in ap: ap[kb] = free.pop(0)
    return ap
STREAM = ['sc1 nt']

def tile_pat(l):
    g, c = l >> 4, l & 15
    return (4*g + 2*(c & 1) + (c >> 3))*16 + ((c >> 1) & 3)*4

def common_addr(a):
    T = VTMP
    a(f'v_lshlrev_b32 v{VL16}, 4, v0')
    a(f's_mul_i32 s6, {SWV}, 3'); a(f's_lshl_b32 s7, {SWV}, 1'); a('s_add_u32 s7, s7, 2'); a('s_min_u32 s6, s6, s7')
    a(f's_lshl_b32 {SCHK}, s6, 10')
    a(f'v_add_u32 v{VAR}, {LDS_MEM}, v{VL16}'); a(f'v_add_u32 v{VGW}, {SCHK}, v{VAR}')
    lanefn(a, VFR, lambda l: l*16, T, 36864)
    lanefn(a, VIDX, lambda l: 0x4444 + (l & 1)*0xaaaa, T)
    a(f'v_and_b32 v{T}, 8, v0'); a(f'v_cmp_ne_u32 {SMASK8}, 0, v{T}')

def loader(a, role, after_first=None):
    vm = Trk(a, 'vmcnt', 63)
    T = 160
    VD0, VD1, VR0 = T, T + 1, T + 2
    dma_voff(a, VD0, 12288, T + 8, T + 9); dma_voff(a, VD1, 1280, T + 8, T + 9)
    for aa in range(2):
        R = VR0 + 3*aa
        row = lambda l: 4*((l >> 4) & 1) + 2*aa + ((l >> 2) & 1)
        lanefn(a, T + 8, lambda l: row(l) & 6, T + 10); lanefn(a, T + 9, lambda l: (l >> 1) & 1, T + 10, 2)
        a(f'v_xor_b32 v{T+9}, v{T+9}, v{T+8}')
        lanefn(a, R, lambda l: (l >> 5)*2048 + ((l >> 3) & 1)*1024 + row(l)*128 + (l & 1)*8, T + 10)
        a(f'v_lshl_add_u32 v{R}, v{T+9}, 4, v{R}')
        a(f'v_add_u32 v{R+1}, 49152, v{R}'); a(f'v_add_u32 v{R+2}, 98304, v{R}')
    a(f's_mul_i32 s68, {SH}, 384'); a(f's_mul_i32 s67, {SWV}, {8*12288}'); a('s_add_u32 s68, s68, s67')
    a(f's_mul_i32 s69, {SH}, {192*1280}'); a(f's_mul_i32 s67, {SWV}, {8*1280}'); a('s_add_u32 s69, s69, s67')
    a(f's_lshl_b32 s7, {SWV}, 10')
    k2 = 'X' if role == 'qk' else 'Y'
    slabs = [('X', S_WA, i) for i in range(14)] + [(k2, S_WB, i) for i in range(14)] + \
            [('X', S_WA, i) for i in range(14, 20)] + [(k2, S_WB, i) for i in range(14, 20)]
    def dma(n):
        kind, sr, i = slabs[n]
        for c in range(3):
            a(f's_add_u32 m0, s7, {(n % 12)*LDS_SLAB + c*4096}')
            if kind == 'X': a(f's_add_u32 s67, s68, {(2*(REGKB + LDSKB)[i >> 1] + (i & 1))*32*12288 + c*128}')
            else: a(f's_add_u32 s67, s69, {((i&1)*96 + c*32)*1280 + (REGT + LDST)[i >> 1]*128}')
            a(f'buffer_load_dwordx4 v{VD0 if kind=="X" else VD1}, {sr}, s67 offen lds')
            vm.issue(n)
    def dest(n, c):
        kind, sr, i = slabs[n]
        second = (n >= 14) if n < 28 else (n >= 34)
        if kind == 'X': t, kb, half = c, i >> 1, i & 1; f = t * 7 + kb; lf = (kb - 7) * 3 + t
        else:
            ks = (i & 1) * 3 + c; kb, half = ks >> 1, ks & 1; tile = i >> 1
            f = tile * 3 + kb; lf = (tile - 7) * 3 + kb
        if second: f += 21; lf += 9
        return f, lf, half
    def reads(n):
        slot = n % 12
        base = VR0 + slot // 4; off0 = (slot % 4) * LDS_SLAB
        for c in range(3):
            f, lf, half = dest(n, c)
            if n < 28: k, b = wfrag(f, half)
            else: k, b = 'v', 16 + lf * 8 + half * 4
            for aa in range(2):
                a(f'ds_read_b64_tr_b16 {k}[{b+2*aa}:{b+2*aa+1}], v{base + 3*aa} offset:{off0 + c*4096}')
    for n in range(11): dma(n)
    for n in range(40):
        vm.wait(n)
        a('s_waitcnt lgkmcnt(0)')
        a('s_barrier')
        if n + 11 < 40: dma(n + 11)
        reads(n)
        after_first(n, vm)
    a('s_waitcnt lgkmcnt(0)'); a('s_barrier')
    for lf in range(18):
        for half in range(2):
            b = 16 + lf * 8 + half * 4
            a(f'ds_write_b128 v{VFR}, v[{b}:{b+3}] offset:{lf*2048 + half*1024}')
    a('s_waitcnt lgkmcnt(0)')

def mem0_load(a):
    lanefn(a, 18, lambda l: (l & 7)*1280 + (l >> 3)*16, 16)
    lanefn(a, 19, lambda l: LDS_MEM + (l >> 4)*256 + (2*(l & 7) + ((l >> 3) & 1))*16, 16)
    for n in range(10): a(f'buffer_load_dwordx4 v[{24+4*n}:{27+4*n}], v18, {S_AUX}, 0 offen offset:{n*128}')
def mem0_write(a):
    for n in range(10): a(f'ds_write_b128 v19, v[{24+4*n}:{27+4*n}] offset:{n*1024}')

def maxchk(a, regs, first=True):
    regs = list(regs)
    if first:
        a(f'v_max3_u32 v{VT0}, v{regs[0]}, v{regs[1]}, v{regs[2]}'); regs = regs[3:]
    while regs:
        if len(regs) >= 2: a(f'v_max3_u32 v{VT0}, v{VT0}, v{regs[0]}, v{regs[1]}'); regs = regs[2:]
        else: a(f'v_max_u32 v{VT0}, v{VT0}, v{regs[0]}'); regs = []


def gather_setup(a, step_add=0):
    a(f's_add_u32 s67, {SSTEP}, {step_add}'); a('s_and_b32 s67, s67, 3'); a('s_lshl_b32 s67, s67, 1')
    a(f's_add_u32 s68, s67, 1'); a(f's_sub_u32 s68, s68, {SX}'); a(f's_add_u32 s67, s67, {SX}')
    a('s_mul_i32 s67, s67, 10240'); a('s_lshl_b32 s68, s68, 15')
    a(f's_add_u32 s33, s68, {SMR}'); a('s_add_u32 s33, s33, s58')
    a(f's_add_u32 s32, s67, {SCHK}'); a(f's_add_u32 s32, s32, {MEML_OFF}')

def gather(a, n, R, opt, st, rsleep=0, R2=None, det=None):
    ld = lambda r, so: [a(f'buffer_load_dwordx4 v[{r+4*c}:{r+4*c+3}], v{VL16}, {S_WS}, {so} offen offset:{c*1024} sc1') for c in range(n)]
    def chk(r, k=0): a(f's_waitcnt vmcnt({k})'); maxchk(a, range(r, r + 4*n)); a(f'v_cmp_eq_u32 vcc, -1, v{VT0}')
    l1, l1ok, l2, l2ok = [a.label('Lg') for _ in range(4)]
    if det is not None:
        l0, l0d = a.label('Lg'), a.label('Lg')
        a(f'{l0}:')
        a(f'buffer_load_dword v{R}, v{det}, {S_WS}, s32 offen sc1'); a('s_waitcnt vmcnt(0)'); a(f'v_cmp_eq_u32 vcc, -1, v{R}')
        poll_tail(a, l0, l0d)
    stamp(a, opt, st[0])
    if R2 is None:
        a(f'{l1}:')
        ld(R, 's32'); chk(R)
        poll_tail(a, l1, l1ok)
    else:
        ld(R, 's32'); ld(R2, 's33'); chk(R, n)
        a(f's_cbranch_vccnz {l1}')
        a(f'{l1ok}:')
    stamp(a, opt, st[1])
    for c in range(n):
        for i in range(4):
            a(f'v_lshlrev_b32 v{VA+8*c+2*i}, 16, v{R+4*c+i}'); a(f'v_and_b32 v{VA+8*c+2*i+1}, 0xffff0000, v{R+4*c+i}')
    Q = R if R2 is None else R2
    if R2 is None:
        if rsleep: a(f's_sleep {rsleep}')
        ld(Q, 's33')
    chk(Q)
    a(f's_cbranch_vccnz {l2}')
    a(f'{l2ok}:')
    stamp(a, opt, st[2])
    for c in range(n):
        b = VA + 8*c
        for i in range(4):
            a(f'v_dot2c_f32_bf16 v{b+2*i}, {S_ONE0}, v{Q+4*c+i}'); a(f'v_dot2c_f32_bf16 v{b+2*i+1}, {S_ONE1}, v{Q+4*c+i}')
        for i in range(4): a(f'v_cvt_pk_bf16_f32 v{b+i}, v{b+2*i}, v{b+2*i+1}')
        a(f'ds_write_b128 v{VGW}, v[{b}:{b+3}] offset:{c*1024}')
    def outofline():
        if R2 is not None:
            a(f'{l1}:')
            ld(R, 's32'); ld(R2, 's33'); chk(R, n)
            a(f's_cbranch_vccz {l1ok}')
            budget_loop(a, l1, l1ok)
        a(f'{l2}:')
        ld(Q, 's33'); chk(Q)
        a(f's_cbranch_vccz {l2ok}')
        budget_loop(a, l2, l2ok)
    return outofline

def a_read(kb, reg):
    return ('lds', f'ds_read_b128 v[{reg}:{reg+3}], v{VAR} offset:{kb*1024}', f'A{kb}')
def frag_reads(lf, slot):
    return [('lds', f'ds_read_b128 v[{VB+8*slot+4*x}:{VB+8*slot+4*x+3}], v{VFR} offset:{lf*2048 + x*1024}', f'F{lf}') for x in range(2)]
def smf(acc, A, B): return f'v_smfmac_f32_16x16x64_bf16 v[{acc}:{acc+3}], v[{A}:{A+3}], {B}, v{VIDX}'
def post(acc, out):
    return [f'v_add_f32 v{acc}, v{acc}, v{acc+1}', f'v_add_f32 v{acc+2}, v{acc+2}, v{acc+3}', f'v_cvt_pk_bf16_f32 v{out}, v{acc}, v{acc+2}']

def allred(op, v, t, stages=(16, 32)):
    r = []
    for st in stages: r += [f'v_mov_b32 v{t}, v{v}', f'v_permlane{st}_swap_b32 v{v}, v{t}', f'{op} v{v}, v{v}, v{t}']
    return r

def stamp_flush(a, opt, n):
    if not opt.get('stamps'): return
    a('s_waitcnt lgkmcnt(0)')
    a(f's_lshl_b32 s67, {SSLOT}, 2'); a(f's_add_u32 s67, s67, {SWV}'); a('s_lshl_b32 s67, s67, 6'); a(f's_add_u32 s67, s67, {SSTEP}')
    a('s_lshl_b32 s67, s67, 6'); a(f's_add_u32 s67, s67, {STAMP_OFF}')
    a(f'v_lshlrev_b32 v{VT1}, 2, v0')
    for i in range(n): a(f'v_writelane_b32 v{VT0}, s{STAMP0+2*i}, {i}')
    a('s_mov_b64 exec, 0xffff')
    a(f'buffer_store_dword v{VT0}, v{VT1}, {S_WS}, s67 offen')
    a('s_mov_b64 exec, -1')

SPC = 's60'
SMR = 's59'
TFIRST = 3
def check_flags(a, opt, kind):
    if opt.get('noflags'): return
    lp, ld = a.label('Lf'), a.label('Lfd')
    a(f's_sub_u32 s61, s82, {LEAD-4}'); a('s_max_i32 s61, s61, 0'); a('s_lshr_b32 s61, s61, 2'); a('s_add_u32 s61, s61, s82')
    a(f's_cmp_gt_u32 {SPC}, s61'); a(f's_cbranch_scc1 {ld}')
    if kind == 'K': a(f'v_and_b32 v{VT1}, 15, v0'); a(f'v_min_u32 v{VT1}, 2, v{VT1}'); a(f'v_lshlrev_b32 v{VT1}, 7, v{VT1}')
    elif kind == 'Y16': a(f'v_and_b32 v{VT1}, 15, v0'); a(f'v_lshlrev_b32 v{VT1}, 7, v{VT1}')
    else: a(f'v_and_b32 v{VT1}, 3, v0'); a(f'v_mul_u32_u24 v{VT1}, {40*128}, v{VT1}')
    a(f'{lp}:')
    a(f'buffer_load_dword v{VT0}, v{VT1}, {S_WS}, s81 offen sc1'); a('s_waitcnt vmcnt(0)')
    for r in (8, 4, 2, 1): a(f'v_min_u32_dpp v{VT0}, v{VT0}, v{VT0} row_ror:{r} row_mask:0xf bank_mask:0xf')
    a(f'v_readfirstlane_b32 {SPC}, v{VT0}')
    a(f's_cmp_gt_u32 {SPC}, s61'); a(f's_cbranch_scc1 {ld}')
    budget_loop(a, lp, ld)
    a(f'{ld}:')

def cprog(a):
    a('s_waitcnt vmcnt(0)')
    a(f's_lshl_b32 s67, {SSLOT}, 7'); a(f's_add_u32 s67, s67, {CPRG_OFF}'); a(f's_add_u32 s68, {SSTEP}, 1'); a(f'v_mov_b32 v{VT0}, s68'); a(f'v_mov_b32 v{VT1}, 0')
    a('s_mov_b64 exec, 1')
    a(f'buffer_store_dword v{VT0}, v{VT1}, {S_WS}, s67 offen sc1')
    a('s_mov_b64 exec, -1')

def load_frags6(a, dst, base_off, ct, seg='s82'):
    a(f's_lshl_b32 s67, {seg}, 5'); a(f's_add_u32 s67, s67, {SH}'); a('s_mul_i32 s67, s67, 12288')
    a(f's_add_u32 s67, s67, {base_off + ct*6144}'); a('s_add_u32 s68, s67, 4096')
    for kk in range(6):
        a(f'buffer_load_dwordx4 v[{dst+4*kk}:{dst+4*kk+3}], v{VL16}, {S_WS}, {"s67" if kk < 4 else "s68"} offen offset:{(kk&3)*1024} {STREAM[0]}')

def build_stream(first_items, second_items):
    items = []; ldsq = []; idx2 = {}
    def add(it):
        kind, acc, A, ref, needs = it
        if kind == 'reg': items.append((smf(acc, A, wfrag(ref)), needs))
        elif kind == 'lds':
            sl = len(ldsq) % 4; ldsq.append((len(items), ref, sl))
            items.append((smf(acc, A, f'v[{VB+8*sl}:{VB+8*sl+7}]'), needs + [f'F{ref}']))
        else: items.append((ref, needs))
    for it in first_items: add(it)
    n = 0
    for it in second_items:
        if it[0] != 'raw': idx2[n] = len(items); n += 1
        add(it)
    return items, ldsq, idx2

class Sides:
    def __init__(self): self.side = {}; self.busy = set(); self.vbusy = {}
    def put(self, g, r): self.side.setdefault(g, []).append(r)
    def lds(self, g, r, force=False):
        if not force:
            while g in self.busy: g += 1
        self.put(g, r); self.busy.add(g); return g
    def valu(self, g, instrs, per=1):
        last = g - 1; end = g
        for s in instrs:
            if s is None: g = last + 2; continue
            if isinstance(s, tuple): self.lds(last + 1, s, True); end = max(end, last + 2); continue
            if not s.startswith('v_'): self.put(last + 1, s); end = max(end, last + 2); continue
            while self.vbusy.get(g, 0) >= per: g += 1
            self.put(g, s); self.vbusy[g] = self.vbusy.get(g, 0) + 1; last = g; end = max(end, g + 1)
        self.nxt = g
        return end
    def refills(self, ldsq):
        for n in range(len(ldsq) - 4):
            g = ldsq[n][0]
            lim = ldsq[n+4][0] - 6
            for r in frag_reads(ldsq[n+4][1], ldsq[n][2]):
                g2 = g
                while g2 in self.busy: g2 += 1
                if g2 <= lim: g = self.lds(g2, r)
                else: g = self.lds(max(g, min(lim, g + 1)), r, True)
                assert g < ldsq[n+4][0] - 1, (n, g, ldsq[n+4])

DPP8 = 'row_ror:8 row_mask:0xf bank_mask:0xf'
def dense_reads(dst, off, tagp, kks=range(6)):
    return [('lds', f'ds_read_b64_tr_b16 v[{dst+4*kk+2*x}:{dst+4*kk+2*x+1}], v{VDR} offset:{off + (2*kk+x)*256}', f'{tagp}{kk}')
            for kk in kks for x in range(2)]

def preload_b(a, lg, ldsq):
    for n in range(4):
        for r in frag_reads(ldsq[n][1], ldsq[n][2]): a(r[1]); lg.issue(r[2])

QORD = [[0, 1, 2, 3, 4, 5, 6, 7, 9, 8], [3, 4, 5, 0, 1, 2, 6, 7, 9, 8], [6, 7, 2, 0, 1, 5, 3, 4, 9, 8], [8, 9, 0, 1, 2, 3, 4, 6, 5, 7]]
KORD = [0, 2, 1, 3, 5, 4, 6, 9, 7, 8]

def qk_setup(a, opt):
    common_addr(a)
    T = VTMP
    rho = lambda l: 2*(l & 7) + ((l >> 3) & 1)
    lanefn(a, VXW, lambda l: LDS_MEM + (l & 15)*16 + (l >> 4)*4, T, 256)
    lanefn(a, VDR, lambda l: LDS_MEM + (l >> 2)*16 + (l & 1)*8, T)
    lanefn(a, V9, lambda l: (l >> 5)*256 + rho(l)*16 + ((l >> 4) & 1)*8, T)
    lanefn(a, V10, lambda l: rho(l)*16 + ((l >> 4) & 1)*4, T)
    lanefn(a, V11, lambda l: LDS_MEM + 3072 + l*16, T)
    lanefn(a, V12, lambda l: LDS_MEM + ((l >> 3) & 1)*512 + (2*(l & 7) + (l >> 5))*16 + ((l >> 4) & 1)*8, T)
    a(f's_and_b32 s68, {SH}, 15'); a('s_min_u32 s68, s68, 9'); a('s_lshl_b32 s68, s68, 10'); a(f'v_add_u32 v{V12}, s68, v{V12}')
    lanefn(a, VXS, lambda l: ((l >> 3) & 1)*1024 + (l >> 4)*256 + (l & 7)*16, T)
    a(f's_mul_i32 s67, {SX}, 12288'); a(f's_add_u32 s67, s67, {PA_OFF}')
    a(f's_and_b32 s68, {SH}, 15'); a('s_lshl_b32 s76, s68, 9'); a('s_add_u32 s76, s76, s67')
    a('s_lshr_b32 s77, s68, 1'); a('s_lshl_b32 s77, s77, 8'); a('s_add_u32 s77, s77, s67')
    a('s_and_b32 s68, s68, 1'); a('s_lshl_b32 s68, s68, 3'); a('s_add_u32 s77, s77, s68'); a('s_add_u32 s77, s77, 8192')

def qk_init_clear(a):
    a(f'v_mov_b32 v{VA+16}, -1'); a(f'v_mov_b32 v{VA+17}, -1')
    a(f'buffer_store_dwordx2 v[{VA+16}:{VA+17}], v{V9}, {S_WS}, s76 offen sc1')
    a(f'buffer_store_dword v{VA+16}, v{V10}, {S_WS}, s77 offen sc1')

def mf(D, A, B, first): return f'v_mfma_f32_16x16x32_bf16 v[{D}:{D+3}], v[{A}:{A+3}], v[{B}:{B+3}], ' + ('0' if first else f'v[{D}:{D+3}]')

def stream_head(sd, w, order, AP, opt, rest):
    g = opt.get('gb1', 3)
    sd.put(g, ('wait', 'GW')); sd.put(g, 's_barrier')
    for kb in order:
        if kb not in OWN[w]:
            sd.lds(g, a_read(kb, AP[kb]), True); g += 1
    return g

def qk_loop(a, w, sc, opt):
    VZ = VTMP + 15
    lg = Trk(a, 'lgkmcnt', 15)
    ltop, lent, lfin = a.label('Lqk'), a.label('Lqkent'), a.label('Lqkfin')
    QEX = LDS_EX - LDS_MEM
    SACC, SM = VTMP, VTMP + 4
    QO = QORD[w]
    AP = apos(w, QO)
    seq = [(kb, t) for kb in QO[:6] for t in range(3)] + [(kb, t) for t in range(3) for kb in QO[6:]]
    first = [(xfrag(kb, t, 0)[0], VACC0 + 4*t, AP[kb], xfrag(kb, t, 0)[1], [f'A{kb}']) for kb, t in seq]
    second = []
    n = 0
    SX0 = opt.get('sx0', 8)
    for t in range(3):
        for kb in KORD:
            second.append((xfrag(kb, t, 1)[0], VACC1 + 4*t, AP[kb], xfrag(kb, t, 1)[1], []))
            if w >= 2 and n == SX0:
                for kk in range(6): second.append(('raw', 0, 0, mf(SACC, VKX + 4*kk, VQF + 4*kk, kk == 0), [f'Q{kk}']))
            n += 1
    items, ldsq, k2 = build_stream(first, second)
    sd = Sides()
    stream_head(sd, w, QO, AP, opt, None)
    sd.put(opt.get('gb1', 3), lambda: stamp(a, opt, 1))
    pub_rd = [('lds', f'ds_read_b64 v[{VKX+2*x}:{VKX+2*x+1}], v{V12} offset:{x*256}', 'PUB') for x in range(2)]
    pub_st = f'buffer_store_dwordx4 v[{VKX}:{VKX+3}], v{VXS}, {S_WS}, s44 offen sc1'
    if w == 1:
        sd.put(0, f'buffer_store_dword v{VT1}, v{VT2}, {S_WS}, s46 offen sc1')
        for r in pub_rd: sd.lds(18, r)
        sd.put(25, ('wait', 'PUB')); sd.put(25, pub_st)
        for j in range(6):
            sd.put(1 + 3*j, f'buffer_load_dword v{VKX+4+j}, v{V9}, {S_WS}, s{[45, 48, 49][j >> 1]} offen sc1')
            if j % 2 == 0: sd.put(2 + 3*j, f's_add_u32 s{[45, 48, 49][j >> 1]}, s{[45, 48, 49][j >> 1]}, 8192')
    wr = lambda acc, t, off, tag: ('lds', f'ds_write_b32 v{VXW}, v{acc} offset:{off + t*1024}', tag)
    for t in range(3): gq = sd.valu([23, 27, 31][t], post(VACC0 + 4*t, VACC0 + 4*t) + [wr(VACC0 + 4*t, t, QEX, 'QW')], 2 if t == 2 else 1)
    gb = gq + opt.get('gba', 2)
    sd.put(gb, ('wait', 'QW')); sd.put(gb, 's_barrier')
    if opt.get('diag'): sd.put(gb, lambda: stamp(a, opt, 0))
    if w != 1:
        rr = dense_reads(VQF, QEX, 'Q')
        span = (k2[SX0] + 3 - gb) if w >= 2 else 14
        for i, r in enumerate(rr): sd.lds(gb + (i * span) // 12, r, w >= 2)
    gk = 0
    for t in range(2): gk = sd.valu(k2[10*t + 11], post(VACC1 + 4*t, VACC1 + 4*t) + [wr(VACC1 + 4*t, t, 0, 'KW')])
    E0, T, X0 = VTMP + 8, VTMP + 12, VTMP + 4
    ool4 = None
    if w >= 2:
        lsx, lsxb = a.label('Lsx'), a.label('Lsxb')
        p0 = [f'v_cndmask_b32 v{X0}, v{SACC}, v{SACC+2}, {SMASK8}', f'v_cndmask_b32 v{X0+1}, v{SACC+1}, v{SACC+3}, {SMASK8}',
              f'v_mul_f32 v{X0}, s83, v{X0}', f'v_mul_f32 v{X0+1}, s83, v{X0+1}', f'v_exp_f32 v{E0}, v{X0}', f'v_exp_f32 v{E0+1}, v{X0+1}',
              f'v_max_f32 v{T}, |v{X0}|, |v{X0+1}|', f'v_add_f32 v{E0+3}, v{E0}, v{E0+1}', f'v_cmp_lt_f32 vcc, s79, v{T}']
        g = sd.valu(k2[SX0 + 2], p0)
        sd.put(g, lambda: (a(f's_cbranch_vccnz {lsx}'), a(f'{lsxb}:')))
        sd.lds(g, ('lds', f'ds_write_b128 v{V11}, v[{E0}:{E0+3}] offset:{(w-2)*1024}', 'KW'), True)
        g = max(g + 3, gk + 2)
        sd.put(g, ('wait', 'KW')); sd.put(g, 's_barrier')
        def ool4():
            m = E0 + 2
            a(f'{lsx}:')
            a(f'v_max_f32 v{m}, v{X0}, v{X0+1}'); a(f'v_max_f32_dpp v{m}, v{m}, v{m} {DPP8}')
            for s_ in allred('v_max_f32', m, T): a(s_)
            for i in range(2): a(f'v_sub_f32 v{E0+i}, v{X0+i}, v{m}')
            for i in range(2): a(f'v_exp_f32 v{E0+i}, v{E0+i}')
            a(f'v_add_f32 v{E0+3}, v{E0}, v{E0+1}')
            a(f's_branch {lsxb}')
        sd.valu(5, [f'v_mov_b32 v{E0+2}, 0'])
    sd.refills(ldsq)

    def top():
        preload_b(a, lg, ldsq)
        for r in range(0, 24, 2): a(f'v_mov_b64 v[{VACC0+r}:{VACC0+r+1}], 0')
        if w == 0: a(f's_bitcmp1_b32 {SSTEP}, 0'); a('s_cselect_b32 s78, -1.0, 1.0')
        if w == 1:
            a(f'v_mov_b32 v{VT1}, {SSTEP}')
            a(f's_lshr_b32 s67, {SSTEP}, 2'); a('s_mul_i32 s44, s67, 40960'); a(f's_bfe_u32 s67, {SSTEP}, 0x10001'); a('s_mul_i32 s67, s67, 20480')
            a('s_add_u32 s44, s44, s67'); a(f's_and_b32 s67, {SSTEP}, 1'); a('s_lshl_b32 s67, s67, 7'); a('s_add_u32 s44, s44, s67'); a('s_add_u32 s44, s44, s47')
    def prefetch():
        ls = a.label('Lnp')
        if w == 1: a(f's_mov_b32 s45, {OOB}')
        a(f's_cmp_ge_u32 s82, {1 if opt.get("nopf") else 63}'); a(f's_cbranch_scc1 {ls}')
        if w >= 2:
            check_flags(a, opt, 'K'); load_frags6(a, VKX, KF_OFF, w - 2)
        elif not opt.get('notouch'):
            a(f's_cmp_lt_u32 s82, {TFIRST}'); a(f's_cbranch_scc1 {ls}')
            check_flags(a, opt, 'Y16')
            a(f's_mul_i32 s45, s82, {40*40960}'); a('s_add_u32 s45, s45, s50')
        a(f'{ls}:')
        if w == 1:
            a(f's_add_u32 s48, s45, {16*40960}'); a(f's_add_u32 s49, s45, {32*40960}'); a(f's_bitcmp1_b32 {SH}, 3'); a(f's_cselect_b32 s49, {OOB}, s49')
    a(f's_mov_b32 {SSTEP}, 0'); a(f's_mov_b32 s83, {f2u(SC):#x}'); a(f's_mov_b32 s79, {f2u(opt.get("safe", 60.0)):#x}')
    if w >= 2: a('s_mov_b32 s82, 0'); a(f's_mul_i32 s81, {SH}, 384'); a(f's_add_u32 s81, s81, {PRGX_OFF + 96*128}'); prefetch()
    if w == 1:
        a(f'v_lshlrev_b32 v{V9}, 7, v0')
        a(f'v_cmp_eq_u32 vcc, 0, v0'); a(f'v_mov_b32 v{VT2}, 0x40000000'); a(f'v_cndmask_b32 v{VT2}, v{VT2}, 0, vcc')
        a(f's_lshl_b32 s81, {SX}, 11'); a(f's_bfe_u32 s67, {SH}, 0x20002'); a(f's_mul_i32 s67, s67, {40*128}'); a('s_add_u32 s81, s81, s67'); a(f's_add_u32 s81, s81, {PRGY_OFF}')
        a(f's_and_b32 s50, {SH}, 15'); a('s_mul_i32 s50, s50, 40960'); a(f's_lshl_b32 s67, {SX}, 14'); a('s_add_u32 s50, s50, s67'); a(f's_add_u32 s50, s50, {VOF_OFF}')
        a(f's_lshl_b32 s46, {SH}, 7'); a(f's_add_u32 s46, s46, {MPRG_OFF}'); a(f's_lshl_b32 s47, {SH}, 11'); a(f's_add_u32 s47, s47, {XN_OFF + 64*40960}')
        a(f's_cmp_ge_u32 {SH}, 10'); a(f's_cselect_b32 s46, {OOB}, s46'); a(f's_cselect_b32 s47, {OOB}, s47')
        for r in (45, 48, 49): a(f's_mov_b32 s{r}, {OOB}')
    top()
    for kb in OWN[w]: a(a_read(kb, AP[kb])[1])
    a('s_waitcnt vmcnt(0) lgkmcnt(0)')
    a(f's_branch {lent}')
    a(f'{ltop}:')
    lg.reset()
    a('s_barrier')
    top()
    gather_setup(a)
    if opt.get('qsleep', 12): a(f's_sleep {opt.get("qsleep", 12)}')
    if opt.get('qdet', 0): a(f'v_and_b32 v{VZ}, {(8 if NCH[w] == 2 else 16) - 1}, v0'); a(f'v_min_u32 v{VZ}, {4*NCH[w]-1}, v{VZ}'); a(f'v_lshlrev_b32 v{VZ}, 8, v{VZ}')
    else: a(f'v_mov_b32 v{VZ}, 0')
    a('s_waitcnt lgkmcnt(0)')
    ool = gather(a, NCH[w], VTMP, {k: v for k, v in opt.items() if k != 'stamps'} if opt.get('diag') else opt, (0, 6, 7), opt.get('qrs', 0), VQF if opt.get('qj', 1) else None, VZ if opt.get('qj', 1) else None)
    a(f'{lent}:')
    lg.reset(); lg.issue('GW')
    merge(a, lg, items, sd.side)
    stamp(a, opt, 2)
    EA, EB = VB, VB + 4
    U, LM, F0, F1, LS = VB + 8, VB + 9, VB + 10, VB + 11, VB + 12
    if w < 2:
        lg.wait('KW'); a('s_barrier')
        if w == 0:
            a(f'ds_read_b128 v[{EA}:{EA+3}], v{V11}'); lg.issue('E'); a(f'ds_read_b128 v[{EB}:{EB+3}], v{V11} offset:1024'); lg.issue('E')
            for r in dense_reads(VKX, 0, 'K', range(4)): a(r[1]); lg.issue(r[2])
    for s_ in post(VACC1 + 8, VACC1 + 8): a(s_)
    a(wr(VACC1 + 8, 2, 0, '')[1]); lg.issue('KW')
    redl = [f'v_add_f32_dpp v{LS}, v{LS}, v{LS} {DPP8}', f'v_mov_b32 v{T}, v{LS}', f'v_permlane16_swap_b32 v{LS}, v{T}', f'v_add_f32 v{LS}, v{LS}, v{T}',
            f'v_mov_b32 v{T}, v{LS}', f'v_permlane32_swap_b32 v{LS}, v{T}', f'v_add_f32 v{LS}, v{LS}, v{T}', f'v_mul_f32 v{LS}, s78, v{LS}']
    if w == 0:
        lg.wait('E')
        sh = [f'v_add_f32 v{LS}, v{EA+3}, v{EB+3}', f'v_max_f32 v{U}, |v{EA+2}|, |v{EB+2}|', redl[0], redl[1], f'v_mul_f32 v{U}, 0x71800000, v{U}', redl[2], redl[3], redl[4]]
        for kk in range(4):
            lg.wait(f'K{kk}'); a(mf(SM, VKX + 4*kk, VQF + 4*kk, kk == 0))
            a(sh.pop(0)); a(sh.pop(0))
    lg.all(); a('s_barrier')
    if opt.get('diag'): stamp(a, opt, 6)
    ool3 = None
    if w == 0:
        lslow, lback = a.label('Lsm'), a.label('Lsb')
        for r in dense_reads(VKX, 0, 'K', range(4, 6)): a(r[1]); lg.issue(r[2])
        for s_ in redl[5:]: a(s_)
        for kk in range(4, 6):
            lg.wait(f'K{kk}'); a(mf(SM, VKX + 4*kk, VQF + 4*kk, False))
        stamp(a, opt, 3)
        a(f'v_cndmask_b32 v{SM}, v{SM}, v{SM+2}, {SMASK8}'); a(f'v_cndmask_b32 v{SM+1}, v{SM+1}, v{SM+3}, {SMASK8}')
        a(f'v_mul_f32 v{SM}, s83, v{SM}'); a(f'v_mul_f32 v{SM+1}, s83, v{SM+1}')
        a(f'v_exp_f32 v{SM+2}, v{SM}'); a(f'v_exp_f32 v{SM+3}, v{SM+1}')
        a(f'v_max3_f32 v{U}, |v{SM}|, |v{SM+1}|, v{U}')
        a(f'v_add_f32 v{LM}, v{SM+2}, v{SM+3}')
        a(f'v_cmp_lt_f32 vcc, s79, v{U}')
        a(f's_cbranch_vccnz {lslow}')
        a(f'{lback}:')
        a(f'v_add_f32_dpp v{LM}, v{LM}, v{LM} {DPP8}')
        a(f'v_mov_b32 v{T}, v{LM}')
        a(f'v_permlane16_swap_b32 v{LM}, v{T}'); a(f'v_add_f32 v{LM}, v{LM}, v{T}')
        a(f'v_fma_f32 v{LM}, v{LM}, s78, v{LS}')
        a(f'v_rcp_f32 v{LM}, v{LM}')
        a(f'v_mul_f32 v{EA}, v{EA}, v{LM}'); a(f'v_mul_f32 v{EA+1}, v{EA+1}, v{LM}')
        a(f'v_mul_f32 v{EB}, v{EB}, v{LM}'); a(f'v_mul_f32 v{EB+1}, v{EB+1}, v{LM}')
        a(f'v_cvt_pk_bf16_f32 v{EA}, v{EA}, v{EA+1}'); a(f'v_cvt_pk_bf16_f32 v{EA+1}, v{EB}, v{EB+1}')
        a(f'buffer_store_dwordx2 v[{EA}:{EA+1}], v{V9}, {S_WS}, s76 offen {sc}')
        a(f'v_mul_f32 v{SM+2}, v{SM+2}, v{LM}'); a(f'v_mul_f32 v{SM+3}, v{SM+3}, v{LM}')
        a(f'v_cvt_pk_bf16_f32 v{SM}, v{SM+2}, v{SM+3}')
        a(f'buffer_store_dword v{SM}, v{V10}, {S_WS}, s77 offen {sc}')
        stamp(a, opt, 4)
        lkm, lkb = a.label('Lkm'), a.label('Lkb')
        a(f's_cmp_ge_u32 {SSTEP}, {4*NMB}'); a(f's_cbranch_scc1 {lkm}')
        a(f'{lkb}:')
        def ool3():
            a(f'{lkm}:')
            a(f's_mul_i32 s72, {SH}, 12288'); a(f's_bfe_u32 s67, {SSTEP}, 0x10001'); a('s_mul_i32 s67, s67, 6144'); a('s_add_u32 s72, s72, s67')
            a(f's_add_u32 s72, s72, {KF_OFF + (64 + NMB)*32*12288}'); a('s_add_u32 s73, s72, 4096')
            a(f's_bitcmp1_b32 {SSTEP}, 0'); a('s_cselect_b32 s74, 8, 0'); a('s_lshl_b32 s74, 0x00ff00ff, s74'); a('s_mov_b32 exec_lo, s74'); a('s_mov_b32 exec_hi, s74')
            for kk in range(6): a(f'buffer_store_dwordx4 v[{VKX+4*kk}:{VKX+4*kk+3}], v{VL16}, {S_WS}, s{72 + (kk >> 2)} offen offset:{(kk & 3)*1024} sc1')
            a('s_mov_b64 exec, -1')
            cprog(a)
            a(f's_branch {lkb}')
            a(f'{lslow}:')
            a(f'v_max_f32 v{U}, v{SM}, v{SM+1}'); a(f'v_max_f32_dpp v{U}, v{U}, v{U} {DPP8}')
            for s_ in allred('v_max_f32', U, T, (16,)): a(s_)
            a(f'v_max3_f32 v{U}, v{U}, v{EA+2}, v{EB+2}')
            a(f'v_sub_f32 v{SM}, v{SM}, v{U}'); a(f'v_sub_f32 v{SM+1}, v{SM+1}, v{U}'); a(f'v_sub_f32 v{F0}, v{EA+2}, v{U}'); a(f'v_sub_f32 v{F1}, v{EB+2}, v{U}')
            a(f'v_exp_f32 v{SM+2}, v{SM}'); a(f'v_exp_f32 v{SM+3}, v{SM+1}'); a(f'v_exp_f32 v{F0}, v{F0}'); a(f'v_exp_f32 v{F1}, v{F1}')
            a(f'v_mul_f32 v{LS}, v{EA+3}, v{F0}'); a(f'v_fmac_f32 v{LS}, v{EB+3}, v{F1}')
            for s_ in redl: a(s_)
            for i in range(2): a(f'v_mul_f32 v{EA+i}, v{EA+i}, v{F0}'); a(f'v_mul_f32 v{EB+i}, v{EB+i}, v{F1}')
            a(f'v_add_f32 v{LM}, v{SM+2}, v{SM+3}')
            a(f's_branch {lback}')
    elif w == 1:
        a(f's_add_u32 s82, {SSTEP}, {opt.get("tahead", 2)}'); prefetch()
    else:
        a(f's_add_u32 s82, {SSTEP}, 1'); prefetch()
    stamp(a, opt, 5)
    stamp_flush(a, opt, 8)
    a(f's_add_u32 {SSTEP}, {SSTEP}, 1'); a(f's_cmp_lt_u32 {SSTEP}, 64'); a(f's_cbranch_scc1 {ltop}')
    a('s_waitcnt vmcnt(0)'); a('s_endpgm')
    ool()
    if ool3: ool3()
    if ool4: ool4()

def vo_setup(a, opt):
    common_addr(a)
    T = VTMP
    lanefn(a, VXW, lambda l: LDS_EX + tile_pat(l), T, 256)
    a(f'v_and_b32 v{T}, 1, v0'); a(f'v_cmp_ne_u32 vcc, 0, v{T}'); a(f'v_mov_b32 v{T}, 0x05040100'); a(f'v_mov_b32 v{T+1}, 0x03020706')
    a(f'v_cndmask_b32 v{VXS}, v{T}, v{T+1}, vcc')
    lanefn(a, V9, lambda l: ((l >> 4) & 1)*1024 + (l & 15)*16 + (l >> 5)*8, T, 256)
    lanefn(a, V10, lambda l: (l >> 4)*10240 + (l & 15)*16, T)
    lanefn(a, V11, lambda l: (l >> 4)*1024 + (l & 15)*16, T, 256)
    lanefn(a, V12, tile_pat, T)
    a(f's_and_b32 {SDT}, {SH}, 15'); a(f's_lshl_b32 s67, {SWV}, 4'); a(f's_add_u32 {SDT}, {SDT}, s67')
    a(f's_lshl_b32 s81, {SX}, 11'); a(f's_bfe_u32 s67, {SDT}, 0x20002'); a(f's_mul_i32 s67, s67, {40*128}'); a('s_add_u32 s81, s81, s67'); a(f's_add_u32 s81, s81, {PRGY_OFF}')
    a(f's_mul_i32 s44, {SH}, 10240'); a(f's_add_u32 s44, s44, {VOMR_OFF}'); a('s_add_u32 s45, s44, 4096'); a('s_add_u32 s46, s44, 8192')
    a(f's_mul_i32 s72, {SX}, {16*10240}'); a(f's_lshl_b32 s68, {SDT}, 8'); a('s_add_u32 s72, s72, s68'); a(f's_add_u32 s72, s72, {VOMR_OFF}')
    a('s_add_u32 s73, s72, 40960'); a('s_add_u32 s74, s73, 40960'); a('s_add_u32 s75, s74, 40960')
    a(f's_mul_i32 s49, {SX}, 12288'); a(f's_add_u32 s49, s49, {PA_OFF}'); a(f's_add_u32 s76, s49, {SCHK}'); a('s_add_u32 s49, s49, 10240')
    a(f's_lshl_b32 s48, {SDT}, 4'); a('s_add_u32 s48, s48, s49')
    a(f's_mul_i32 s47, {SDT}, 40960'); a(f's_lshl_b32 s67, {SX}, 14'); a('s_add_u32 s47, s47, s67'); a(f's_add_u32 s47, s47, {VOF_OFF}')

def vom_store1(src, k, base, sc):
    if k < 2: return f'buffer_store_dwordx4 v[{src}:{src+3}], v{V11}, {S_WS}, {base[k]} offen {sc}'
    return f'buffer_store_dwordx2 v[{src}:{src+1}], v{V9}, {S_WS}, {base[2]} offen {sc}'
def memp_off(a, dst, add, dt=SDT):
    a(f's_add_u32 s67, {SSTEP}, {add}'); a('s_and_b32 s67, s67, 3'); a('s_lshl_b32 s67, s67, 1'); a(f's_add_u32 s67, s67, {SX}')
    a(f's_mul_i32 s{dst}, s67, 10240'); a(f's_lshl_b32 s{dst+1}, s67, 15'); a(f's_lshl_b32 s67, {dt}, 8')
    a(f's_add_u32 s{dst}, s{dst}, s67'); a(f's_add_u32 s{dst+1}, s{dst+1}, s67'); a(f's_add_u32 s{dst}, s{dst}, {MEML_OFF}')
    a(f's_add_u32 s{dst+1}, s{dst+1}, {SMR}'); a(f's_cmp_ge_u32 {dt}, 24'); a('s_cselect_b32 s67, 10240, 0'); a(f's_add_u32 s{dst+1}, s{dst+1}, s67')

def vo_init_clear(a):
    a(f'v_mov_b32 v{VA+16}, -1'); a(f'v_mov_b32 v{VA+17}, 0')
    a(f'buffer_store_dword v{VA+17}, v{VA+17}, {S_WS}, s48 offen sc1')
    for sl in range(4):
        memp_off(a, 32, sl)
        a(f's_cmp_ge_u32 {SDT}, 40'); a(f's_cselect_b32 s32, {OOB}, s32'); a(f's_cselect_b32 s33, {OOB}, s33')
        a(f'buffer_store_dword v{VA+16}, v{V12}, {S_WS}, s32 offen sc1')
        a(f'buffer_store_dword v{VA+16}, v{V12}, {S_WS}, s33 offen sc1')
        a('s_add_u32 s33, s33, 8192')
        a(f'buffer_store_dword v{VA+16}, v{V12}, {S_WS}, s33 offen sc1')

VORD = [[0, 1, 2, 3, 4, 5, 6, 7, 9, 8], [3, 4, 5, 0, 1, 2, 6, 7, 9, 8], [6, 7, 2, 0, 1, 5, 3, 4, 9, 8], [8, 9, 0, 1, 3, 2, 4, 6, 5, 7]]
OORD = [0, 1, 2, 3, 4, 5, 6, 7, 8, 9]
OORD0 = [0, 2, 1, 3, 4, 6, 5, 7, 8, 9]
def pairup(acc, tmp):
    return [f'v_mov_b32_dpp v{tmp}, v{acc} quad_perm:[1,0,3,2] row_mask:0xf bank_mask:0xf', f'v_perm_b32 v{acc}, v{tmp}, v{acc}, v{VXS}']

def vo_loop(a, w, duty, sc, opt):
    n = NCH[w]; VO = VORD[w]
    lg = Trk(a, 'lgkmcnt', 15)
    ltop, lent = a.label('Lvo'), a.label('Lvoent')
    VV = VACC1; PK = VACC0
    EXO = LDS_EX - LDS_MEM
    AP = apos(w, VO)
    OA = {t: (VOX + 44 + 4*i if i < 5 else AP[VO[i - 5]]) for i, t in enumerate(OORD)}
    seq = [(kb, t) for kb in VO[:3] for t in range(3)] + [(kb, t) for t in range(3) for kb in VO[3:]]
    first = [(xfrag(kb, t, 0)[0], VACC0 + 4*t, AP[kb], xfrag(kb, t, 0)[1], [f'A{kb}']) for kb, t in seq]
    oseq = [(t, 0) for t in OORD0] + [(t, 1) for t in OORD[:3]]
    for i in range(10): oseq += [(OORD[i], 2)] + ([(OORD[i+3], 1)] if i + 3 < 10 else [])
    second = [(yfrag(tile, kb)[0], OA[tile], VV + 4*kb, yfrag(tile, kb)[1], [f'V{kb}']) for tile, kb in oseq]
    fin = {t: 30 + oseq.index((t, 2)) for t in OORD}
    items, ldsq, k2 = build_stream(first, second)
    sd = Sides()
    stream_head(sd, w, VO, AP, opt, None)
    sd.put(opt.get('gb1', 3), lambda: stamp(a, opt, 1))
    vox = lambda hh: f'buffer_load_dwordx4 v[{VOX+4*hh}:{VOX+4*hh+3}], v{VL16}, {S_WS}, s83 offen offset:{(hh & 3)*1024} {STREAM[0]}'
    vsp = opt.get('vsp', 3)
    NIN = opt.get('nin', 16)
    NE = opt.get('ne', 0)
    if duty:
        for hh in range(NE, min(NIN, 11)):
            g = opt.get('vs0', 1) + (hh - NE) * vsp
            sd.put(g, vox(hh))
            if hh & 3 == 3: sd.put(g + 1, 's_add_u32 s83, s83, 4096')
    zer = [f'v_mov_b64 v[{AP[VO[r >> 1]] + 2*(r & 1)}:{AP[VO[r >> 1]] + 2*(r & 1) + 1}], 0' for r in range(10)]
    for r in range(6): sd.valu(3*(r >> 1) + 3 + (r & 1), [zer[r]])
    wr = lambda acc, t: ('lds', f'ds_write_b32 v{VXW}, v{acc} offset:{t*1024}', f'VW{t}')
    vpost = lambda t: post(VACC0 + 4*t, VACC0 + 4*t) + [None] + pairup(VACC0 + 4*t, VACC0 + 4*t + 1) + [wr(VACC0 + 4*t, t)]
    vrd = lambda kb: ('lds', f'ds_read_b128 v[{VV+4*kb}:{VV+4*kb+3}], v{VAR} offset:{EXO + kb*1024}', f'V{kb}')
    for t, g0, per in ((0, 17, 1), (1, 24, 1), (2, 31, 2)):
        g = sd.valu(g0, vpost(t), per) + 2
        sd.put(g, ('wait', f'VW{t}')); sd.put(g, 's_barrier'); sd.lds(g, vrd(t), True)
    sd.valu(27, zer[6:])
    if opt.get('diag'): sd.put(g, lambda: stamp(a, opt, 0)); sd.put(29, lambda: stamp(a, opt, 5)); sd.put(42, lambda: stamp(a, opt, 7))
    base = ('s44', 's45', 's46')
    tail = []; gfree = 40; carry = []
    done = set()
    for i, t in enumerate(OORD):
        ins = post(OA[t], PK + t); sw = []
        if duty and 11 + i < min(NIN, 16):
            if i == 1: ins.append('s_add_u32 s83, s83, 4096')
            ins.append(vox(11 + i))
        done.add(t)
        q = t >> 2
        if q < 2 and all(4*q + j in done for j in range(4)):
            b = PK + 4*q
            sw = [f'v_permlane16_swap_b32 v{b}, v{b+1}', f'v_permlane16_swap_b32 v{b+2}, v{b+3}',
                  f'v_permlane32_swap_b32 v{b}, v{b+2}', f'v_permlane32_swap_b32 v{b+1}, v{b+3}', vom_store1(b, q, base, sc)]
        if q == 2 and 8 in done and 9 in done:
            sw = [f'v_permlane16_swap_b32 v{PK+8}, v{PK+9}', vom_store1(PK + 8, 2, base, sc)]
        c = list(carry); carry = sw if i < 9 else []
        if c: ins = [c[0], ins[0], c[1], ins[1], ins[2]] + c[2:] + ins[3:]
        if i == 9: ins += sw
        g = max(fin[t] + 2, gfree)
        if g < len(items) and not tail: sd.valu(g, ins, 2); gfree = sd.nxt
        else: tail += ins
    ex = []
    for g in sorted(g for g in sd.side if g >= len(items)): ex += sd.side.pop(g)
    tail = ex + tail
    sd.refills(ldsq)

    def top():
        preload_b(a, lg, ldsq)
        a(f's_add_u32 s51, {SSTEP}, 1')
        a(f's_bitcmp1_b32 {SSTEP}, 0'); a('s_cselect_b32 s50, 0x80008000, 0')
        if duty:
            memp_off(a, 77, 1)
            if opt.get('nopf'): a('s_mov_b32 s82, 0')
            else: a(f's_mov_b32 s82, {SSTEP}')
            a(f's_mul_i32 s83, s82, {40*40960}'); a('s_add_u32 s83, s83, s47'); a(f's_cmp_eq_u32 {SSTEP}, 63'); a(f's_cselect_b32 s83, {OOB}, s83')
        for r in range(0, 12, 2): a(f'v_mov_b64 v[{VACC0+r}:{VACC0+r+1}], 0')
        for r in range(0, 20, 2): a(f'v_mov_b64 v[{VOX+44+r}:{VOX+45+r}], 0')
        if duty:
            lk = a.label('Lk')
            a(f's_cmp_ge_u32 {SSTEP}, {64 if opt.get("notouch") else TFIRST}'); a(f's_cbranch_scc1 {lk}')
            check_flags(a, opt, 'Y16')
            a(f'{lk}:')
            for hh in range(NE):
                a(vox(hh))
                if hh & 3 == 3: a('s_add_u32 s83, s83, 4096')
    a(f's_mov_b32 {SSTEP}, 0')
    top()
    for kb in OWN[w]: a(a_read(kb, AP[kb])[1])
    a('s_waitcnt lgkmcnt(0)')
    a(f's_branch {lent}')
    a(f'{ltop}:')
    lg.reset()
    a('s_barrier')
    top()
    if opt.get('vsleep', 0): a(f's_sleep {opt.get("vsleep", 0)}')
    a('s_waitcnt lgkmcnt(0)')
    ool = gather(a, n, VACC1, {k: v for k, v in opt.items() if k != 'stamps'} if opt.get('diag') else opt, (0, 0 if opt.get('diag2') else 5, 7), opt.get('vrs', 0), VA + 24 if opt.get('vj', 1) else None)
    a(f'{lent}:')
    lg.reset(); lg.issue('GW')
    merge(a, lg, items, sd.side)
    for s_ in tail:
        a(s_)
    stamp(a, opt, 3)
    lcp, lcb, lcf, lce = [a.label('Lc') for _ in range(4)]
    a(f's_cmp_ge_u32 {SSTEP}, {4*NMB}'); a(f's_cbranch_scc1 {lcp}')
    a(f'{lcb}:')
    def ool5():
        a(f'{lcp}:')
        a(f's_lshl_b32 s52, {SSTEP}, 5'); a(f's_add_u32 s52, s52, {SH}'); a('s_mul_i32 s52, s52, 10240'); a(f's_add_u32 s52, s52, {VOM_OFF}')
        a('s_add_u32 s53, s52, 4096'); a('s_add_u32 s54, s52, 8192')
        for k in range(3): a(vom_store1(PK + 4*k, k, ('s52', 's53', 's54'), 'sc1'))
        a(f's_cmp_lt_u32 {SSTEP}, 63'); a(f's_cbranch_scc1 {lcb}')
        a('s_waitcnt vmcnt(0)'); a('s_barrier')
        if w == 3: cprog(a)
        a('s_waitcnt vmcnt(0)'); a('s_endpgm')
    ACC = VB + 28
    R, TG = VB + 16, VACC0 + 10
    def ldp():
        for c in range(n): a(f'buffer_load_dwordx4 v[{R+4*c}:{R+4*c+3}], v{VL16}, {S_WS}, s76 offen offset:{c*1024} sc1')
    lt, ltd, lp, ld = [a.label('Lp') for _ in range(4)]
    def pcheck(extra):
        for c in range(n):
            a(f's_waitcnt vmcnt({n - 1 - c + extra})')
            a(f'ds_write_b128 v{VGW}, v[{R+4*c}:{R+4*c+3}] offset:{c*1024}')
            b = R + 4*c
            if c == 0: a(f'v_bitop3_b32 v{VT0}, v{b}, v{b+2}, s50 bitop3:0x7e')
            else: a(f'v_bitop3_b32 v{VT1}, v{b}, v{b+2}, s50 bitop3:0x7e'); a(f'v_or_b32 v{VT0}, v{VT0}, v{VT1}')
            if n == 2: a(f'v_bitop3_b32 v{VT1}, v{b+1}, v{b+3}, s50 bitop3:0x7e'); a(f'v_or_b32 v{VT0}, v{VT0}, v{VT1}')
        a(f'v_cmp_gt_i32 vcc, 0, v{VT0}')
    a(f'v_mov_b32 v{ACC}, s51'); a(f'v_mov_b32 v{ACC+1}, 0')
    gather_setup(a, 1)
    a('s_waitcnt vmcnt(0)')
    if opt.get('diag2'): stamp(a, opt, 5)
    a('s_mov_b64 exec, 1')
    a(f'buffer_store_dword v{ACC}, v{ACC+1}, {S_WS}, s48 offen {sc}')
    a('s_mov_b64 exec, -1')
    if opt.get('tsleep', 3): a(f's_sleep {opt.get("tsleep", 3)}')
    if duty:
        for hh in range(NIN, 16):
            if hh & 3 == 0 and hh and not (hh == NIN and hh <= 11): a('s_add_u32 s83, s83, 4096')
            a(vox(hh))
        a(f'{lt}:')
        a(f'buffer_load_dword v{TG}, v{VL16}, {S_WS}, s49 offen sc1')
        ldp()
        a(f's_waitcnt vmcnt({n})')
        a(f'v_cmp_gt_u32 vcc, s51, v{TG}')
        poll_tail(a, lt, ltd)
        for q in range(4): a(f'buffer_load_dwordx4 v[{VB+4*q}:{VB+4*q+3}], v{V10}, {S_WS}, s{72+q} offen sc1')
        if not opt.get('diag'): stamp(a, opt, 2)
        for r in range(4): a(f'v_mov_b32 v{ACC+r}, 0')
        pcheck(4)
    else:
        ldp(); pcheck(0)
    a(f's_cbranch_vccnz {lp}')
    a(f'{ld}:')
    stamp(a, opt, 4)
    def ool2():
        a(f'{lp}:')
        ldp(); pcheck(0)
        a(f's_cbranch_vccz {ld}')
        budget_loop(a, lp, ld)
    if not duty: a('s_waitcnt lgkmcnt(0)'); a('s_barrier')
    if duty:
        bop = lambda pp: f'v[{VOX+8*pp}:{VOX+8*pp+7}]' if pp < 8 else f'v[{VB+8*(pp-8)}:{VB+8*(pp-8)+7}]'
        rest = [c for c in range(10) if c not in OWN[w]]
        a(smf(ACC, R, bop(OWN[w][0])))
        a('s_waitcnt lgkmcnt(0)'); a('s_barrier')
        for c in rest[:3]: a(f'ds_read_b128 v[{VA+4*c}:{VA+4*c+3}], v{VAR} offset:{c*1024}')
        k = 3
        for j in range(1, n):
            a(smf(ACC, R + 4*j, bop(OWN[w][j])))
            for c in rest[k:k+2]: a(f'ds_read_b128 v[{VA+4*c}:{VA+4*c+3}], v{VAR} offset:{c*1024}')
            k += 2
        for c in rest[k:]: a(f'ds_read_b128 v[{VA+4*c}:{VA+4*c+3}], v{VAR} offset:{c*1024}')
        for j, pp in enumerate(rest):
            a(f's_waitcnt lgkmcnt({len(rest)-1-j})' if pp != 8 else 's_waitcnt vmcnt(0) lgkmcnt(1)')
            a(smf(ACC, VA + 4*pp, bop(pp)))
        for s_ in post(ACC, ACC): a(s_)
        a(f'v_xor_b32 v{ACC}, s50, v{ACC}')
        for s_ in pairup(ACC, ACC + 1): a(s_)
        for so, fl in ([('s78', 'sc1'), ('s77', sc)] if opt.get('rfirst') else [('s77', sc), ('s78', 'sc1')]):
            a(f'buffer_store_dword v{ACC}, v{V12}, {S_WS}, {so} offen {fl}')
        stamp(a, opt, 6)
    elif w == 3:
        lnext, lnc = a.label('Lnx'), a.label('Lnx')
        a(f's_cmp_lt_u32 {SSTEP}, {4*NMB}'); a(f's_cbranch_scc1 {lnc}')
        cprog(a)
        a(f'{lnc}:')
        a(f'v_mov_b32 v{VT2}, -1')
        a(f's_and_b32 s35, {SH}, 15')
        for i in range(3):
            if i == 2: a('s_cmp_ge_u32 s35, 40'); a(f's_cbranch_scc1 {lnext}')
            memp_off(a, 55, 3, 's35')
            a(f'buffer_store_dword v{VT2}, v{V12}, {S_WS}, s56 offen sc1')
            a(f'buffer_store_dword v{VT2}, v{V12}, {S_WS}, s55 offen {sc}')
            if i < 2: a('s_add_u32 s35, s35, 16')
        a(f'{lnext}:')
    stamp_flush(a, opt, 8)
    a(f's_add_u32 {SSTEP}, {SSTEP}, 1'); a(f's_branch {ltop}')
    ool(); ool2(); ool5()

def chain_main(a, opt):
    lvo = a.label('Lrole_vo')
    tstamp(a, opt, 0, (14, 15))
    STREAM[0] = opt.get('stream', 'sc1')
    a(f's_lshr_b32 {SX}, {SSLOT}, 5'); a(f's_and_b32 s67, {SSLOT}, 15'); a(f's_lshl_b32 {SH}, {SX}, 4'); a(f's_add_u32 {SH}, {SH}, s67')
    a(f's_mov_b32 {STMO}, {opt.get("tmo", 1 << 21)}'); a(f's_mov_b32 {SSTEP}, 0')
    srd(a, S_AUX, 's[38:39]', 8*640*2)
    a(f's_add_u32 {SMR}, s60, {MEMR_OFF + 0x7ffff}'); a(f's_and_b32 {SMR}, {SMR}, 0xfff80000'); a(f's_sub_u32 {SMR}, {SMR}, s60')
    a(f's_mul_i32 s58, {SWV}, 3072'); a(f's_lshl_b32 s67, {SWV}, 11'); a('s_add_u32 s67, s67, 12288'); a(f's_cmp_ge_u32 {SWV}, 2'); a('s_cselect_b32 s58, s67, s58')
    a(f's_mov_b32 {S_ONE0}, 0x00003f80'); a(f's_mov_b32 {S_ONE1}, 0x3f800000')
    a(f's_bitcmp1_b32 {SSLOT}, 4'); a(f's_cbranch_scc1 {lvo}')
    for role in ('qk', 'vo'):
        if role == 'vo': a(f'{lvo}:')
        if role == 'qk':
            srd(a, S_WA, 's[40:41]', 640*6144*2); srd(a, S_WB, 's[42:43]', 640*6144*2); qk_setup(a, opt)
        else:
            srd(a, S_WA, 's[44:45]', 640*6144*2); srd(a, S_WB, 's[46:47]', 640*6144*2); vo_setup(a, opt)
        l1, l2, l3 = a.label('Ls'), a.label('Ls'), a.label('Ls')
        a(f's_mov_b32 {SPC}, 0')
        a(f's_cmp_lg_u32 {SWV}, 0'); a(f's_cbranch_scc1 {l2}')
        mem0_load(a)
        a(f'{l2}:')
        def after_first(n, vm):
            if n == 0:
                a(f's_cmp_lg_u32 {SWV}, 0'); a(f's_cbranch_scc1 {l3}')
                mem0_write(a)
                a(f'{l3}:')
            if n == 1: rot_load(a, 172, 173); vm.issue('rot')
            if n == 13:
                rot_check(a, 172, 173, True)
                if role == 'vo':
                    vo_init_clear(a)
                    for _ in range(13): vm.issue('init')
                a(f's_cmp_lg_u32 {SWV}, 0'); a(f's_cbranch_scc1 {l1}')
                if role == 'qk': qk_init_clear(a)
                a(f's_lshl_b32 s67, 1, {SXCC}'); a(f'v_mov_b32 v{VT0}, s67'); a(f's_lshl_b32 s67, {SX}, 2'); a(f'v_mov_b32 v{VT1}, s67')
                a('s_mov_b64 exec, 1')
                a(f'buffer_atomic_or v{VT0}, v{VT1}, {S_DBG}, 0 offen sc1')
                a('s_mov_b64 exec, -1')
                a(f'{l1}:')
            if n == 25:
                l4 = a.label('Ls')
                a(f's_cmp_lg_u32 {SWV}, 0'); a(f's_cbranch_scc1 {l4}')
                a(f'v_mov_b32 v{VT0}, 1'); a(f'v_mov_b32 v{VT1}, {DBG_READY*4}')
                a('s_mov_b64 exec, 1')
                a(f'buffer_atomic_add v{VT0}, v{VT1}, {S_DBG}, 0 offen sc1')
                a('s_mov_b64 exec, -1')
                a(f'{l4}:')
        loader(a, role, after_first)
        tstamp(a, opt, 1, (14, 15))
        lp, ld, lslow = a.label('Lr'), a.label('Lrd'), a.label('Lslow')
        a(f'v_lshlrev_b32 v{VT1}, 2, v0')
        a(f'{lp}:')
        a(f'buffer_load_dword v{VT0}, v{VT1}, {S_DBG}, 0 offen sc1'); a('s_waitcnt vmcnt(0)')
        a(f'v_readlane_b32 s67, v{VT0}, {DBG_READY}')
        a(f'v_readlane_b32 s68, v{VT0}, {DBG_VOTE}'); a(f's_cmp_lt_u32 s68, {NAREA*256}'); a('s_cselect_b32 s67, 0, s67')
        if not opt.get('noflags'):
            a(f'v_readlane_b32 s68, v{VT0}, {DBG_AREA}'); a(f's_cmp_lt_u32 s68, {NAREA}'); a('s_cselect_b32 s67, 0, s67')
        a(f's_cmp_eq_u32 {STMO}, 0'); a(f's_cbranch_scc1 {ld}')
        a(f's_sub_u32 {STMO}, {STMO}, 1')
        a('s_cmp_lt_u32 s67, 64'); a(f's_cbranch_scc1 {lp}')
        a(f'{ld}:')
        a(f'v_readlane_b32 s67, v{VT0}, {DBG_VOTE}'); a('s_and_b32 s67, s67, 255'); a(f's_cmp_gt_u32 s67, {NAREA//2}'); a('s_cselect_b32 s67, 1, 0')
        a(f'v_readlane_b32 s68, v{VT0}, 0'); a('s_cmp_gt_u32 s68, 15'); a('s_cselect_b32 s68, 1, 0'); a('s_xor_b32 s67, s67, s68'); a('s_lshl_b32 s67, s67, 13')
        if 'par' in opt: a(f's_mov_b32 s67, {opt["par"]*8192}')
        a(f's_add_u32 {SMR}, {SMR}, s67')
        a(f'v_readlane_b32 s67, v{VT0}, 0'); a(f'v_readlane_b32 s68, v{VT0}, 1')
        a('s_bcnt1_i32_b32 s67, s67'); a('s_bcnt1_i32_b32 s68, s68'); a('s_max_u32 s67, s67, s68')
        if opt.get('force_slow'): a('s_mov_b32 s67, 2')
        a('s_cmp_lg_u32 s67, 1'); a(f's_cbranch_scc1 {lslow}')
        for sc in ('', 'sc1'):
            if sc: a(f'{lslow}:')
            if role == 'qk':
                labs = [a.label('Lw') for _ in range(4)]
                for w in range(1, 4): a(f's_cmp_eq_u32 {SWV}, {w}'); a(f's_cbranch_scc1 {labs[w]}')
                for w in range(4):
                    a(f'{labs[w]}:'); qk_loop(a, w, sc, opt)
            else:
                labs = [a.label('Lw') for _ in range(5)]
                a(f's_cmp_eq_u32 {SWV}, 1'); a(f's_cbranch_scc1 {labs[1]}'); a(f's_cmp_eq_u32 {SWV}, 3'); a(f's_cbranch_scc1 {labs[4]}')
                a(f's_cmp_ge_u32 {SDT}, 40'); a(f's_cbranch_scc1 {labs[3]}'); a(f's_cmp_eq_u32 {SWV}, 2'); a(f's_cbranch_scc1 {labs[2]}')
                for i, (w, duty) in enumerate([(0, True), (1, True), (2, True), (2, False), (3, False)]):
                    a(f'{labs[i]}:'); vo_loop(a, w, duty, sc, opt)
```

```python
from common import *

SG, SU = 's62', 's63'
SSEG = 's66'
S_X = 's[20:23]'
VL16, VD, VFLG, VONE, VT0, VT1, VRD, VPV, VMAX = 1, 2, 3, 4, 5, 6, 7, 8, 9
VR0 = 10
WRING = 81920

def mfma(d, A, B, first): return f'v_mfma_f32_16x16x32_bf16 v[{d}:{d+3}], {A}, {B}, ' + ('0' if first else f'v[{d}:{d+3}]')
def allred(op, v, t):
    r = []
    for st in (16, 32): r += [f'v_mov_b32 v{t}, v{v}', f'v_permlane{st}_swap_b32 v{v}, v{t}', f'{op} v{v}, v{v}, v{t}']
    return r
def wreg(f, vbase):
    return ('a', 4*f) if f < 64 else ('v', vbase + 4*(f - 64))
def wstr(f, vbase):
    k, b = wreg(f, vbase); return f'{k}[{b}:{b+3}]'

def area_wait(a):
    lp, ld = a.label('Lgp'), a.label('Lgd')
    a(f's_mov_b32 s92, {DBG_AREA*4}')
    a(f'{lp}:')
    a(f'buffer_load_dword v{VT0}, v{VFLG}, {S_DBG}, s92 offen sc1'); a('s_waitcnt vmcnt(0)')
    a(f'v_readfirstlane_b32 s93, v{VT0}')
    a(f's_cmp_ge_u32 s93, {NAREA}'); a(f's_cbranch_scc1 {ld}')
    a('s_sleep 8')
    budget_loop(a, lp, ld)
    a(f'{ld}:')
def ln_wait(a):
    lp, ld = a.label('Lgp'), a.label('Lgd')
    a(f'v_lshlrev_b32 v{VT1}, 7, v0'); a(f's_mov_b32 s92, {LNF_OFF}')
    a(f'{lp}:')
    a(f'buffer_load_dword v{VT0}, v{VT1}, {S_WS}, s92 offen sc1'); a('s_waitcnt vmcnt(0)')
    a(f'v_cmp_ne_u32 vcc, 1, v{VT0}')
    a(f's_cbranch_vccz {ld}')
    a('s_sleep 4')
    budget_loop(a, lp, ld)
    a(f'{ld}:')

def late_start(a, opt):
    if opt.get('nolate'): return
    lp, ld = a.label('Lls'), a.label('Lld')
    rot_check(a, VT0, VT1)
    area_wait(a)
    a(f's_mov_b32 s92, {PRGX_OFF + 200*128}')
    a(f'{lp}:')
    a(f'buffer_load_dword v{VT0}, v{VFLG}, {S_WS}, s92 offen sc1'); a('s_waitcnt vmcnt(0)')
    a(f'v_readfirstlane_b32 s93, v{VT0}')
    a('s_cmp_ge_u32 s93, 1'); a(f's_cbranch_scc1 {ld}')
    a('s_sleep 32')
    budget_loop(a, lp, ld)
    a(f'{ld}:')

def wloader(a, nsl, soff, dest, stride, hook):
    vm = Trk(a, 'vmcnt', 63)
    a(f'v_lshrrev_b32 v20, 3, v0'); a('v_and_b32 v21, 6, v20'); a(f'v_and_b32 v{VD}, 7, v0')
    a(f'v_xor_b32 v{VD}, v{VD}, v21'); a(f'v_lshlrev_b32 v{VD}, 4, v{VD}'); a(f'v_mad_u32_u24 v{VD}, v20, {stride}, v{VD}')
    a(f's_lshl_b32 s71, {stride}, 3')
    a(f's_mul_i32 s72, {SWV}, 20480'); a(f's_add_u32 s72, s72, {WRING}')
    def dma(n):
        for s_ in soff(n): a(s_)
        for rb in range(4):
            a(f's_add_u32 m0, s72, {(n % 5)*4096 + rb*1024}')
            if rb: a('s_add_u32 s73, s73, s71')
            else: a('s_nop 0')
            a(f'buffer_load_dwordx4 v{VD}, {S_WA}, s73 offen lds'); vm.issue(n)
    for n in range(5): dma(n)
    row = lambda l: 4*((l >> 4) & 1) + ((l >> 2) & 3)
    lanefn(a, 20, lambda l: (row(l) & 6) | ((l >> 1) & 1), 21)
    lanefn(a, VR0, lambda l: (l >> 5)*1024 + row(l)*128 + (l & 1)*8, 21)
    a(f'v_lshl_add_u32 v{VR0}, v20, 4, v{VR0}'); a(f'v_add_u32 v{VR0}, s72, v{VR0}')
    for tt in range(1, 4): a(f'v_xor_b32 v{VR0+tt}, {tt*32}, v{VR0}')
    for n in range(nsl):
        vm.wait(n)
        for tt in range(4):
            k, b = dest(n, tt)
            for x in range(2): a(f'ds_read_b64_tr_b16 {k}[{b+2*x}:{b+2*x+1}], v{VR0+tt} offset:{(n % 5)*4096 + x*2048}')
        hook(n, vm)
        a('s_waitcnt lgkmcnt(0)')
        if n + 5 < nsl: dma(n + 5)

def spread(lst, n, total):
    return (lst * (n + 1) + total - 1) // total - (lst * n + total - 1) // total

def x_unit(a, opt):
    ACC, XB, STG, WV = 64, 128, 160, 192
    SSTR, SPRG, SOB, SOS, SXD, SXL = 's74', 's75', 's76', 's77', 's78', 's79'
    a(f's_mul_i32 s67, {SU}, 43'); a('s_lshr_b32 s67, s67, 10')
    a('s_mul_i32 s68, s67, 24'); a(f's_sub_u32 s68, {SU}, s68')
    a('s_lshl_b32 s68, s68, 2'); a(f's_add_u32 s68, s68, {SWV}')
    a('s_lshl_b32 s70, s68, 7')
    a('s_mov_b32 s16, s40'); a('s_mov_b32 s17, s41')
    for m, p in ((1, 42), (2, 44), (3, 52)):
        a(f's_cmp_eq_u32 s67, {m}'); a(f's_cselect_b32 s16, s{p}, s16'); a(f's_cselect_b32 s17, s{p+1}, s17')
    a(f's_cselect_b32 {SSTR}, 3, 12'); a(f's_cselect_b32 s69, 0, 0x80008000'); a(f'v_mov_b32 v{VMAX}, s69')
    a(f's_mul_i32 {SSTR}, {SSTR}, 1024'); a(f's_mul_i32 s18, {SSTR}, 640')
    a(f's_lshl_b32 {SPRG}, {SU}, 9'); a(f's_lshl_b32 s69, {SWV}, 7'); a(f's_add_u32 {SPRG}, {SPRG}, s69'); a(f's_add_u32 {SPRG}, {SPRG}, {PRGX_OFF}')
    a('s_mul_i32 s69, s68, 171'); a('s_lshr_b32 s69, s69, 9')
    a('s_mul_i32 s80, s69, 3'); a('s_sub_u32 s80, s68, s80'); a('s_lshl_b32 s80, s80, 11')
    a(f's_mul_i32 {SOB}, s69, 12288'); a(f's_add_u32 {SOB}, {SOB}, s80')
    a(f's_mov_b32 s69, {QF_OFF}')
    a('s_cmp_eq_u32 s67, 1'); a(f's_cselect_b32 s69, {KF_OFF}, s69')
    a('s_cmp_eq_u32 s67, 2'); a(f's_cselect_b32 s69, {VF_OFF}, s69')
    a('s_cmp_eq_u32 s67, 3'); a(f's_cselect_b32 s69, {VF_OFF + 32*12288}, s69')
    a(f's_add_u32 {SOB}, {SOB}, s69')
    a('s_cmp_ge_u32 s67, 2'); a(f's_cselect_b32 {SOS}, 40, 32'); a(f's_mul_i32 {SOS}, {SOS}, 12288')
    a(f's_lshl_b32 s81, {SSTR}, 5')
    SNX, SNM, SCNT, SNJ = 's85', 's86', 's87', 's88'
    J = ['s89', 's90', 's91', 's94']
    a('s_sub_u32 s69, s67, 1'); a('s_cmp_lt_u32 s69, 2'); a(f's_cselect_b32 {SCNT}, {LEAD}, 0xffff'); a(f's_cselect_b32 {SNJ}, {64 + NPM}, 64')
    a(f's_mov_b32 {SNX}, 0'); a(f's_mov_b32 {SNM}, 0')
    lu = a.label('Lu')
    a(f's_cmp_lg_u32 {SNJ}, 64'); a(f's_cbranch_scc1 {lu}')
    late_start(a, opt)
    a(f'{lu}:')
    a(f's_mul_i32 s95, {SWV}, 10240'); a(f's_mov_b32 {SXL}, s95')
    ools = []
    def mwait():
        lp, ld = a.label('Lmp'), a.label('Lmd')
        a(f'v_min_u32 v{VT1}, 9, v0'); a(f'v_lshlrev_b32 v{VT1}, 7, v{VT1}'); a(f's_lshl_b32 s92, {SNM}, 2'); a('s_add_u32 s92, s92, 4'); a(f's_mov_b32 s93, {MPRG_OFF}')
        a(f'{lp}:')
        a(f'buffer_load_dword v{VT0}, v{VT1}, {S_WS}, s93 offen sc1'); a('s_waitcnt vmcnt(0)')
        a(f'v_cmp_gt_u32 vcc, s92, v{VT0}')
        a(f's_cbranch_vccz {ld}')
        a(f's_sleep {opt.get("msleep", 2)}')
        budget_loop(a, lp, ld)
        a(f'{ld}:')
    def nextjob(dst):
        lm, lb = a.label('Lnm'), a.label('Lnb')
        def br(): a(f's_cbranch_scc1 {lm}'); a(f's_mov_b32 {dst}, {SNX}'); a(f's_add_u32 {SNX}, {SNX}, 1'); a(f's_sub_u32 {SCNT}, {SCNT}, 1'); a(f'{lb}:')
        def ool():
            a(f'{lm}:'); mwait()
            a(f's_add_u32 {dst}, {SNM}, 64'); a(f's_add_u32 {SNM}, {SNM}, 1'); a(f's_cmp_lt_u32 {SNM}, {NPM}'); a(f's_cselect_b32 {SCNT}, 4, 0xffff')
            a(f's_branch {lb}')
        ools.append(ool)
        return [f's_cmp_eq_u32 {SCNT}, 0', br, f's_mul_i32 {SXD}, {dst}, 40960', f's_add_u32 {SXD}, {SXD}, s95']
    def xdma():
        r = []
        for j in range(10):
            if j % 4 == 0: r += [f's_add_u32 m0, {SXL}, {j*1024}', f's_add_u32 s73, {SXD}, {XN_OFF + j*1024}']
            r.append(f'buffer_load_dwordx4 v{VL16}, {S_WS}, s73 offen offset:{(j&3)*1024} sc1 lds')
        return r
    def xadv(): return [f's_add_u32 {SXL}, {SXL}, 40960', f's_cmp_ge_u32 {SXL}, 163840', 's_cselect_b32 s73, 163840, 0', f's_sub_u32 {SXL}, {SXL}, s73']
    def em(lst):
        for s_ in lst:
            if callable(s_): s_()
            elif s_: a(s_)
    def hook(n, vm):
        if n == opt.get('lnat', 19):
            lw = a.label('Lxw')
            rot_check(a, VT0, VT1)
            a(f's_cmp_lg_u32 {SWV}, 0'); a(f's_cbranch_scc1 {lw}')
            area_wait(a); ln_wait(a)
            a(f'{lw}:'); a('s_barrier')
            for j in range(2):
                em(nextjob(J[1 + j]) + xdma() + xadv())
                for _ in range(10): vm.issue('x')
    wloader(a, 20, lambda n: [f's_mul_i32 s73, s81, {n}', 's_add_u32 s73, s73, s70'], lambda n, tt: wreg(n*4 + tt, WV), SSTR, hook)
    a('s_waitcnt vmcnt(0)'); a('s_barrier')
    tstamp(a, opt, 1, (14, 15))
    em(nextjob(J[3]) + xdma())
    LA = 4
    def xread(f):
        kk, ct = f >> 1, f & 1; b = XB + (f % 8)*4
        return f'ds_read_b128 v[{b}:{b+3}], v{VRD} offset:{ct*20480 + kk*1024}'
    a(f'v_mov_b32 v{VRD}, v{VL16}'); a('s_mov_b32 s82, 0')
    for f in range(LA): a(xread(f))
    def epi(par):
        r = [f's_mul_i32 s84, {J[0]}, {SOS}', f's_add_u32 s84, s84, {SOB}', 's_add_u32 s83, s84, 6144',
             f's_sub_u32 s93, {J[0]}, {LEAD-4}', 's_max_i32 s93, s93, 0', 's_lshr_b32 s93, s93, 2', f's_add_u32 s93, s93, {J[0]}',
             f's_mul_i32 s92, {J[0]}, 5', f's_sub_u32 s92, s92, {320 - LEAD}', f's_min_u32 s92, s92, {J[0]}',
             f's_cmp_lt_u32 {J[0]}, 64', 's_cselect_b32 s93, s93, s92', 's_add_u32 s93, s93, 1', f'v_mov_b32 v{VPV}, s93']
        for ct in range(2):
            for j in range(2):
                o = STG + (ct*2 + j)*4
                for x in range(4):
                    b = ACC + par*32 + ((2*j + (x >> 1))*2 + ct)*4 + (x & 1)*2
                    r.append(f'v_cvt_pk_bf16_f32 v{o+x}, v{b}, v{b+1}')
                for x in range(4): r.append(f'v_pk_max_i16 v{o+x}, v{o+x}, v{VMAX}')
                r.append(f'buffer_store_dwordx4 v[{o}:{o+3}], v{VL16}, {S_WS}, {"s84" if ct == 0 else "s83"} offen offset:{j*1024} sc1')
        return r
    def prg(): return ['s_waitcnt vmcnt(0)', f'buffer_store_dword v{VPV}, v{VFLG}, {S_WS}, {SPRG} offen sc1']
    def stream(par, early, mid, late, cont):
        ne, nl = len(early), len(late)
        for n in range(160):
            f, tt = n >> 2, n & 3
            kk, ct = f >> 1, f & 1
            if tt == 0: a(f's_waitcnt lgkmcnt({LA-1 if (cont or f + LA <= 40) else 39 - f})')
            d = ACC + par*32 + (tt*2 + ct)*4; b = XB + (f % 8)*4
            a(mfma(d, wstr(kk*4 + tt, WV), f'v[{b}:{b+3}]', kk == 0))
            if n == 143 and cont: a('s_barrier'); a(f'v_add_u32 v{VRD}, s82, v{VL16}')
            if tt == 0 and (cont or f + LA < 40): a(xread((f + LA) % 40))
            if n < 70: em([early.pop(0) for _ in range(spread(ne, n, 70))])
            if n == opt.get('xpg', 90): em(mid)
            if n >= 144: em([late.pop(0) for _ in range(spread(nl, n - 144, 16))])
        assert not early and not late
    a(f's_mov_b32 {SSEG}, 0'); a(f's_mov_b32 s64, {SOB}'); a(f's_mov_b32 {SOB}, {OOB}'); a(f's_mov_b32 s7, {SPRG}'); a(f's_mov_b32 {SPRG}, {OOB}'); a(f's_mov_b32 {J[0]}, 0')
    lt, lx0, lx1, lx2, ltail = [a.label('Lx') for _ in range(5)]
    a(f'{lt}:')
    for par in range(2):
        early = [None, None, None] + epi(par ^ 1) + xadv() + ['s_add_u32 s82, s82, 40960', 's_cmp_ge_u32 s82, 163840', 's_cselect_b32 s82, 0, s82']
        mid = prg() + [f's_mov_b32 {SOB}, s64', f's_mov_b32 {SPRG}, s7', f's_mov_b32 {J[0]}, {J[1]}', f's_mov_b32 {J[1]}, {J[2]}', f's_mov_b32 {J[2]}, {J[3]}'] + nextjob(J[3])
        stream(par, early, mid, xdma(), True)
        tstamp(a, opt, (SSEG, 8), (14, 15))
        a(f's_add_u32 {SSEG}, {SSEG}, 1'); a(f's_cmp_ge_u32 {SSEG}, {SNJ}'); a(f's_cbranch_scc1 {lx0 if par == 0 else lx1}')
    a(f's_branch {lt}')
    a(f'{lx1}:')
    em(epi(1) + prg())
    a(f's_branch {lx2}')
    a(f'{lx0}:')
    em(epi(0) + prg())
    a(f'{lx2}:')
    a(f's_cmp_lt_u32 {SU}, 24'); a('s_cselect_b32 s68, 0, 48'); a(f's_sub_u32 s68, {SU}, s68')
    a(f's_cmp_eq_u32 {SNJ}, 64'); a('s_cbranch_scc1 L_f2')
    a(f'{ltail}:')
    mwait()
    a(f's_add_u32 {J[0]}, {SNM}, 64'); a(f's_mul_i32 {SXD}, {J[0]}, 40960'); a(f's_add_u32 {SXD}, {SXD}, s95'); a(f's_mov_b32 {SXL}, s95')
    a('s_waitcnt lgkmcnt(0)'); a('s_barrier')
    em(xdma())
    a(f'v_mov_b32 v{VRD}, v{VL16}')
    a('s_waitcnt vmcnt(0)'); a('s_barrier')
    for f in range(LA): a(xread(f))
    stream(0, [], [], [], False)
    em(epi(0) + prg())
    tstamp(a, opt, (SSEG, 8), (14, 15))
    a(f's_add_u32 {SSEG}, {SSEG}, 1')
    a(f's_add_u32 {SNM}, {SNM}, 1'); a(f's_cmp_lt_u32 {SNM}, {NMB}'); a(f's_cbranch_scc1 {ltail}')
    a('s_waitcnt vmcnt(0)'); a('s_endpgm')
    for o in ools: o()

def y_unit(a, opt):
    VF, ACC, STG, WV = 64, 112, 128, 224
    SPRG, SOB, SVB, SPX, SPA = 's75', 's76', 's77', 's78', 's79'
    a(f's_cmp_ge_u32 {SU}, 32'); a('s_cselect_b32 s16, s54, s46'); a('s_cselect_b32 s17, s55, s47')
    a('s_cselect_b32 s18, 1, 4'); a(f's_mul_i32 s18, s18, {1536*1280}')
    a(f's_and_b32 s67, {SU}, 31'); a(f's_mul_i32 s70, s67, {192*1280}'); a(f's_lshl_b32 s67, {SWV}, 7'); a('s_add_u32 s70, s70, s67')
    a(f's_mul_i32 {SPRG}, {SWV}, 40'); a(f's_add_u32 {SPRG}, {SPRG}, {SU}'); a(f's_lshl_b32 {SPRG}, {SPRG}, 7'); a(f's_add_u32 {SPRG}, {SPRG}, {PRGY_OFF}')
    SJOB, SNX, SNM, SCNT, SPOS, SMB = 's84', 's85', 's86', 's87', 's88', 's89'
    VMJ = 16
    a(f's_lshl_b32 {SOB}, {SU}, 10'); a(f's_mul_i32 s67, {SWV}, {4*40960}'); a(f's_add_u32 {SOB}, {SOB}, s67'); a(f's_add_u32 {SOB}, {SOB}, {VOF_OFF}')
    a(f's_mul_i32 {SMB}, {SU}, 10240'); a(f's_lshl_b32 s67, {SWV}, 10'); a(f's_add_u32 {SMB}, {SMB}, s67'); a(f's_add_u32 {SMB}, {SMB}, {VOM_OFF}')
    a(f's_mul_i32 {SVB}, {SU}, 12288'); a(f's_and_b32 s67, {SWV}, 1'); a('s_mul_i32 s80, s67, 6144'); a(f's_add_u32 {SVB}, {SVB}, s80'); a(f's_add_u32 {SVB}, {SVB}, {VF_OFF}')
    a(f's_mul_i32 {SPA}, {SU}, 384'); a(f's_add_u32 {SPA}, {SPA}, {PRGX_OFF + 192*128}'); a(f's_mov_b32 {SPX}, 0')
    lanefn(a, VMJ, lambda l: (l >> 5)*327680 + (l & 15)*16 + ((l >> 4) & 1)*8, 17)
    a('s_mov_b32 s74, 1280')
    lu = a.label('Lu')
    a(f's_cmp_lt_u32 {SU}, 32'); a(f's_cbranch_scc1 {lu}')
    late_start(a, opt)
    a(f'{lu}:')
    l2 = a.label('Ly2')
    a(f's_cmp_ge_u32 {SWV}, 2'); a(f's_cbranch_scc1 {l2}')
    for ng in (3, 2):
        if ng == 2: a(f'{l2}:')
        def hook(n, vm): pass
        wloader(a, 6*ng, lambda n: [f's_add_u32 s73, s70, {(n // 6)*512 + (n % 6)*32*1280}'],
                lambda n, tt: wreg(((n // 6)*4 + tt)*6 + n % 6, WV), 's74', hook)
        rot_check(a, VT0, VT1)
        tstamp(a, opt, 1, (14, 15))
        SJ2, SP2, SPF = 's94', 's95', 's64'
        def poll():
            a(f'buffer_load_dword v{VT0}, v{VT1}, {S_WS}, {SPA} offen sc1')
        def take():
            for j in range(3): a(f'v_readlane_b32 s{81+j}, v{VT0}, {j}')
            a('s_min_u32 s81, s81, s82'); a(f's_min_u32 {SPX}, s81, s83')
        def dma():
            a(f's_andn2_b32 s81, 1, {SSEG}'); a('s_mul_i32 s81, s81, 12288'); a('s_add_u32 s81, s81, s80')
            a(f's_mul_i32 s82, {SJ2}, {40*12288}'); a(f's_add_u32 s82, s82, {SVB}')
            for j in range(6):
                if j % 4 == 0: a(f's_add_u32 m0, s81, {j*1024}'); a(f's_add_u32 s73, s82, {j*1024}')
                a(f'buffer_load_dwordx4 v{VL16}, {S_WS}, s73 offen offset:{(j&3)*1024} sc1 lds')
        def fetch():
            lp, ld = a.label('Lyp'), a.label('Lyd')
            a(f's_cmp_gt_u32 {SPX}, {SP2}'); a(f's_cbranch_scc1 {ld}')
            a(f'{lp}:')
            poll(); a('s_waitcnt vmcnt(0)'); take()
            a(f's_cmp_gt_u32 {SPX}, {SP2}'); a(f's_cbranch_scc1 {ld}')
            a('s_sleep 2')
            budget_loop(a, lp, ld)
            a(f'{ld}:')
            dma()
        def nextjob():
            lnx, lgo = a.label('Lyn'), a.label('Lyg')
            a(f's_add_u32 {SP2}, {SPOS}, 1')
            a(f's_cmp_lg_u32 {SCNT}, 0'); a(f's_cbranch_scc1 {lnx}')
            a(f's_add_u32 {SJ2}, {SNM}, 64'); a(f's_add_u32 {SNM}, {SNM}, 1'); a(f's_cmp_lt_u32 {SNX}, 64'); a(f's_cselect_b32 {SCNT}, 4, 0')
            a(f's_cmp_lt_u32 {SU}, 32'); a(f's_cbranch_scc1 {lgo}')
            a(f's_mov_b32 {SJ2}, 80'); a(f's_cmp_ge_u32 {SNX}, 64'); a(f's_cbranch_scc1 {lgo}')
            a(f's_add_u32 {SP2}, {SP2}, 1')
            a(f'{lnx}:')
            a(f's_mov_b32 {SJ2}, {SNX}'); a(f's_add_u32 {SNX}, {SNX}, 1'); a(f's_sub_u32 {SCNT}, {SCNT}, 1')
            a(f'{lgo}:')
        a(f's_mov_b32 {SSEG}, -1'); a(f's_mov_b32 {SJ2}, 0'); a(f's_mov_b32 {SP2}, 0'); a(f's_mov_b32 {SNX}, 1'); a(f's_mov_b32 {SNM}, 0'); a(f's_mov_b32 {SCNT}, {LEAD-1}')
        a(f'v_mov_b32 v{VPV}, 0'); a('v_mov_b32 v17, 24576')
        a(f'v_min_u32 v{VT1}, 2, v0'); a(f'v_lshlrev_b32 v{VT1}, 7, v{VT1}')
        if ng == 2:
            area_wait(a)
            fetch(); a('s_waitcnt vmcnt(0)')
        lt, lm, lj, le, lnp, lpf = [a.label('Ly') for _ in range(6)]
        a(f'{lt}:')
        a(f's_add_u32 {SSEG}, {SSEG}, 1'); a(f's_mov_b32 {SJOB}, {SJ2}'); a(f's_mov_b32 {SPOS}, {SP2}')
        a(f's_and_b32 s81, {SSEG}, 1'); a('s_mul_i32 s81, s81, 12288'); a(f'v_add_u32 v{VRD}, s81, v{VL16}')
        a(f's_mul_i32 s90, {SJOB}, {40*40960}'); a(f's_add_u32 s90, s90, {SOB}')
        a(f's_sub_u32 s91, {SJOB}, 64'); a(f's_mul_i32 s91, s91, {4*327680}'); a(f's_add_u32 s91, s91, {SMB}')
        a('s_barrier')
        for ks in range(6):
            for ct in range(2):
                b = VF + (ct*6 + ks)*4
                a(f'ds_read_b128 v[{b}:{b+3}], v{VRD} offset:{(ct*6 + ks)*1024}')
        nextjob()
        if ng == 2:
            pass
        a(f's_cmp_ge_u32 {SJOB}, 64'); a(f's_cbranch_scc1 {lm}')
        for mj in (0, 1):
            if mj: a(f'{lm}:')
            def out(i):
                gi, tt = i >> 2, i & 3
                o = STG + (i & 3)*4
                if mj: r = [f's_add_u32 s82, s91, {gi*4096}', f's_add_u32 s83, s91, {gi*4096 + 2*327680}'] if tt == 0 else []
                else: r = [f's_add_u32 s83, s90, {(16*gi + tt)*40960}']
                for ct in range(2):
                    b = ACC + (i & 1)*8 + ct*4
                    for x in range(2): r.append(f'v_cvt_pk_bf16_f32 v{o+2*ct+x}, v{b+2*x}, v{b+2*x+1}')
                if mj: r += [f'buffer_store_dwordx2 v[{o+2*ct}:{o+2*ct+1}], v{VMJ}, {S_WS}, s{82+ct} offen offset:{tt*256} sc1' for ct in range(2)]
                else: r.append(f'buffer_store_dwordx4 v[{o}:{o+3}], v{VL16}, {S_WS}, s83 offen sc1')
                return r
            for i in range(4*ng):
                side = [None]*4 + out(i - 1) if i else []
                if ng == 3 and i == 7:
                    side[0:2] = [f's_waitcnt vmcnt({12 if mj else 6})', f'buffer_store_dword v{VPV}, v{VFLG}, {S_WS}, {SPRG} offen sc1']
                if ng == 3 and i == 11: side[0:1] = ['ds_read_b32 v18, v17']
                if ng == 2 and i == 2: side[0:1] = [poll]
                if ng == 2 and i == 6:
                    def pref(k=(8 if mj else 4)):
                        lnp = a.label('Lyf')
                        a(f's_waitcnt vmcnt({k})'); take()
                        a(f's_mov_b32 {SPF}, 0')
                        a(f's_cmp_le_u32 {SPX}, {SP2}'); a(f's_cbranch_scc1 {lnp}'); a(f's_cmp_ge_u32 {SJ2}, {64 + NMB}'); a(f's_cbranch_scc1 {lnp}')
                        dma(); a(f's_mov_b32 {SPF}, 1')
                        a(f'{lnp}:')
                        a(f'v_mov_b32 v18, {SPF}'); a('ds_write_b32 v17, v18')
                        if mj: a('s_add_u32 s82, s91, 4096'); a(f's_add_u32 s83, s91, {4096 + 2*327680}')
                    side[0:1] = [pref]
                for n in range(12):
                    ks, ct = n >> 1, n & 1
                    if i == 0: a(f's_waitcnt lgkmcnt({11 - n})')
                    b = VF + (ct*6 + ks)*4
                    a(mfma(ACC + (i & 1)*8 + ct*4, f'v[{b}:{b+3}]', wstr(i*6 + ks, WV), ks == 0))
                    if side:
                        s_ = side.pop(0)
                        if callable(s_): s_()
                        elif s_: a(s_)
                assert not side, side
            for s_ in out(4*ng - 1): a(s_)
            if not mj: a(f's_branch {lj}')
        a(f'{lj}:')
        tstamp(a, opt, (SSEG, 8), (14, 15))
        a(f's_add_u32 s81, {SPOS}, 1'); a(f'v_mov_b32 v{VPV}, s81')
        a(f's_cmp_ge_u32 {SJ2}, {64 + NMB}'); a(f's_cbranch_scc1 {le}')
        if ng == 2:
            a('s_waitcnt vmcnt(0)')
            a(f'buffer_store_dword v{VPV}, v{VFLG}, {S_WS}, {SPRG} offen sc1')
            a(f's_cmp_lg_u32 {SPF}, 0'); a(f's_cbranch_scc1 {lt}')
            fetch()
            a('s_waitcnt vmcnt(0)')
        else:
            a('s_waitcnt lgkmcnt(0)'); a('v_readfirstlane_b32 s81, v18')
            a('s_cmp_lg_u32 s81, 0'); a(f's_cbranch_scc1 {lt}')
            a('s_waitcnt vmcnt(0)'); a(f'buffer_store_dword v{VPV}, v{VFLG}, {S_WS}, {SPRG} offen sc1')
        a(f's_branch {lt}')
        a(f'{le}:')
        a('s_waitcnt vmcnt(0)')
        a(f'buffer_store_dword v{VPV}, v{VFLG}, {S_WS}, {SPRG} offen sc1')
        a(f's_sub_u32 s68, {SU}, 2'); a(f's_cmp_ge_u32 {SU}, 32'); a('s_cbranch_scc1 L_f2')
        a('s_waitcnt vmcnt(0)'); a('s_endpgm')

def layer_norm(a):
    L, F, G, T = 16, 64, 144, 224
    lanefn(a, VT0, lambda l: (l & 15)*1280 + (l >> 4)*8, VT1, 5*64)
    a(f's_mul_i32 s68, {SU}, {32*1280}'); a(f's_add_u32 s69, s68, {16*1280}')
    for c in range(2):
        for k in range(5):
            for x in range(2): a(f'buffer_load_dwordx2 v[{L+20*c+4*k+2*x}:{L+20*c+4*k+2*x+1}], v{VT0}, {S_X}, s{68+c} offen offset:{k*64 + x*32}')
    AW, AR, TT = T + 16, T + 17, T + 18
    lanefn(a, AR, lambda l: (l & 15)*16, TT)
    a(f's_lshl_b32 s67, {SWV}, 2'); a(f'v_add_u32 v{AW}, s67, v{AR}')
    def unpack(c):
        for j in range(20):
            a(f'v_lshlrev_b32 v{F+40*c+2*j}, 16, v{L+20*c+j}'); a(f'v_and_b32 v{F+40*c+2*j+1}, 0xffff0000, v{L+20*c+j}')
    def xchg(off, reg):
        for c in range(2):
            v = T + 8*c + reg
            a(f'v_add_f32 v{v}, v{v}, v{v+1}')
            for s_ in allred('v_add_f32', v, TT): a(s_)
            a(f'ds_write_b32 v{AW}, v{v} offset:{off + c*256}')
        a('s_waitcnt lgkmcnt(0)'); a('s_barrier')
        for c in range(2): a(f'ds_read_b128 v[{T+8*c+4}:{T+8*c+7}], v{AR} offset:{off + c*256}')
        a('s_waitcnt lgkmcnt(0)')
        for c in range(2):
            q = T + 8*c + 4
            a(f'v_add_f32 v{q}, v{q}, v{q+1}'); a(f'v_add_f32 v{q+2}, v{q+2}, v{q+3}'); a(f'v_add_f32 v{T+8*c+reg}, v{q}, v{q+2}')
    pr = lambda r: f'v[{r}:{r+1}]'
    for c in range(2):
        a(f's_waitcnt vmcnt({10*(1-c)})'); unpack(c)
        f, t = F + 40*c, T + 8*c
        a(f'v_pk_add_f32 {pr(t)}, {pr(f)}, {pr(f+2)}')
        for j in range(2, 20): a(f'v_pk_add_f32 {pr(t)}, {pr(t)}, {pr(f+2*j)}')
    xchg(0, 0)
    a(f's_mov_b32 s67, {f2u(-1.0/640):#x}')
    for c in range(2):
        f, g, t = F + 40*c, G + 40*c, T + 8*c
        a(f'v_mul_f32 v{t}, s67, v{t}'); a(f'v_mov_b32 v{t+1}, v{t}')
        for j in range(20): a(f'v_pk_add_f32 {pr(g+2*j)}, {pr(f+2*j)}, {pr(t)}')
        a(f'v_pk_mul_f32 {pr(t+2)}, {pr(g)}, {pr(g)}')
        for j in range(1, 20): a(f'v_pk_fma_f32 {pr(t+2)}, {pr(g+2*j)}, {pr(g+2*j)}, {pr(t+2)}')
    xchg(512, 2)
    def rnd(v): a(f'v_cvt_pk_bf16_f32 v{v}, v{v}, v{v}'); a(f'v_lshlrev_b32 v{v}, 16, v{v}')
    rot_check(a, VT0, VT1)
    a(f's_mov_b32 s67, {f2u(1.0/640):#x}')
    a(f's_mul_i32 s68, {SU}, 40960'); a(f's_mul_i32 s69, {SWV}, 5120'); a('s_add_u32 s68, s68, s69')
    if XN_OFF: a(f's_add_u32 s68, s68, {XN_OFF}')
    for c in range(2):
        f, t, l = F + 40*c, T + 8*c, L + 20*c
        a(f'v_mul_f32 v{t+2}, s67, v{t+2}'); rnd(t + 2)
        a(f'v_add_f32 v{t+2}, {f2u(1e-5):#x}, v{t+2}'); rnd(t + 2)
        a(f'v_sqrt_f32 v{t+2}, v{t+2}'); rnd(t + 2)
        a(f'v_rcp_f32 v{t+2}, v{t+2}'); rnd(t); a(f'v_mov_b32 v{t+3}, v{t+2}'); a(f'v_mov_b32 v{t+1}, v{t}')
        for j in range(20): a(f'v_pk_add_f32 {pr(f+2*j)}, {pr(f+2*j)}, {pr(t)}')
        for j in range(20): a(f'v_cvt_pk_bf16_f32 v{l+j}, v{f+2*j}, v{f+2*j+1}')
        unpack(c)
        for j in range(20): a(f'v_pk_mul_f32 {pr(f+2*j)}, {pr(f+2*j)}, {pr(t+2)}')
        for j in range(20): a(f'v_cvt_pk_bf16_f32 v{l+j}, v{f+2*j}, v{f+2*j+1}')
        a('s_add_u32 s69, s68, 4096')
        for k in range(5):
            a(f'buffer_store_dwordx4 v[{l+4*k}:{l+4*k+3}], v{VL16}, {S_WS}, {"s68" if k < 4 else "s69"} offen offset:{(k&3)*1024} sc1')
        a('s_add_u32 s68, s68, 20480')
    area_wait(a)
    a('s_barrier')
    a(f's_lshl_b32 s68, {SU}, 7'); a(f's_add_u32 s68, s68, {LNF_OFF}')
    a(f'buffer_store_dword v{VONE}, v{VFLG}, {S_WS}, s68 offen sc1')

SC = 0.07216878364870322 * 1.4426950408889634
def posx(a, dst, seg): a(f's_sub_u32 {dst}, {seg}, {LEAD-4}'); a(f's_max_i32 {dst}, {dst}, 0'); a(f's_lshr_b32 {dst}, {dst}, 2'); a(f's_add_u32 {dst}, {dst}, {seg}')
def posm(a, dst, b, t): a(f's_mul_i32 {dst}, {b}, 5'); a(f's_add_u32 {dst}, {dst}, {LEAD}'); a(f's_add_u32 {t}, {b}, 64'); a(f's_min_u32 {dst}, {dst}, {t}')
def poll_gt(a, opt, voff, soff, thr, T, sleep):
    lp, ld = a.label('Lq'), a.label('Lqd')
    a(f'{lp}:')
    a(f'buffer_load_dword v{T}, v{voff}, {S_WS}, {soff} offen sc1'); a('s_waitcnt vmcnt(0)')
    a(f'v_cmp_ge_u32 vcc, {thr}, v{T}')
    a(f's_cbranch_vccz {ld}')
    a(f's_sleep {sleep}')
    budget_loop(a, lp, ld)
    a(f'{ld}:')

def f_class(a, opt):
    lnl, lz, lz2, lf = a.label('Lnoln'), a.label('Lz'), a.label('Lz'), a.label('Lfu')
    a(f's_cmp_ge_u32 {SU}, 64'); a(f's_cbranch_scc1 {lz}')
    layer_norm(a)
    a(f's_branch {lnl}')
    a(f'{lz}:')
    rot_check(a, VT0, VT1)
    for r in range(4): a(f'v_mov_b32 v{16+r}, 0')
    a(f's_sub_u32 s69, {SU}, 64'); a('s_mul_i32 s68, s69, 12288'); a(f's_mul_i32 s67, {SWV}, 3072'); a('s_add_u32 s68, s68, s67'); a(f's_add_u32 s68, s68, {FLAG_OFF}')
    for x in range(3): a(f'buffer_store_dwordx4 v[16:19], v{VL16}, {S_WS}, s68 offen offset:{x*1024} sc1')
    a('s_waitcnt vmcnt(0)'); a('s_barrier')
    a(f's_cmp_lg_u32 {SWV}, 0'); a(f's_cbranch_scc1 {lz2}')
    a(f's_mov_b32 s68, {DBG_AREA*4}')
    a(f'buffer_atomic_add v{VONE}, v{VFLG}, {S_DBG}, s68 offen sc1')
    a(f'{lz2}:')
    calibrate(a, 's69', opt.get('caldbg'))
    a('s_barrier')
    area_wait(a)
    a(f'{lnl}:')
    tstamp(a, opt, 1, (14, 15))
    a(f's_sub_u32 s68, {SU}, 34'); a(f's_cmp_ge_u32 {SU}, 72'); a('s_cbranch_scc1 L_f2')
    if opt.get('no3b'): a('s_branch L_wend'); return
    a(f's_cmp_ge_u32 {SU}, 32'); a(f's_cbranch_scc1 {lf}')
    p_unit(a, opt)
    a(f'{lf}:')
    f_unit(a, opt)

def p_unit(a, opt):
    QF, KF, KM, X00, X01, X11, M0, M1 = 16, 64, 112, 136, 140, 144, 148, 152
    VQO, VMO, T0, M, L, T = 156, 157, 158, 159, 160, 161
    SB, SHD, SPR, SVAL = 's70', 's71', 's72', 's[74:75]'
    SCM = [f's[{76+2*r}:{77+2*r}]' for r in range(4)]
    a(f's_and_b32 {SHD}, {SU}, 7'); a(f's_lshl_b32 {SHD}, {SHD}, 2'); a(f's_add_u32 {SHD}, {SHD}, {SWV}')
    a(f's_lshl_b32 {SPR}, {SU}, 9'); a(f's_lshl_b32 s67, {SWV}, 7'); a(f's_add_u32 {SPR}, {SPR}, s67'); a(f's_add_u32 {SPR}, {SPR}, {PRGP_OFF}')
    a(f'v_min_u32 v{VQO}, 5, v0'); a(f'v_cmp_lt_u32 vcc, 2, v{VQO}'); a(f'v_add_u32 v{T0}, 93, v{VQO}'); a(f'v_cndmask_b32 v{VQO}, v{VQO}, v{T0}, vcc'); a(f'v_lshlrev_b32 v{VQO}, 7, v{VQO}')
    a(f'v_min_u32 v{VT1}, 2, v0'); a(f'v_lshlrev_b32 v{VT1}, 7, v{VT1}')
    lanefn(a, VMO, lambda l: (l & 15)*16 + ((l >> 4) & 1)*8, T0)
    a(f'v_and_b32 v{T}, 15, v0')
    for r in range(4):
        lanefn(a, M, lambda l: (l >> 4)*4 + r, T0); a(f'v_cmp_le_u32 {SCM[r]}, v{M}, v{T}')
    a(f's_bitcmp1_b32 {SU}, 3'); a('s_cselect_b32 s74, 0, -1'); a('s_cselect_b32 s75, -1, 0')
    a(f's_mul_i32 s73, {SHD}, 384'); a(f's_add_u32 s73, s73, {PRGX_OFF}'); a(f's_add_u32 s88, s73, {96*128}')
    a(f's_mov_b32 s84, {f2u(SC):#x}'); a(f's_mov_b32 {SB}, 0')
    lt = a.label('Lp')
    a(f'{lt}:')
    a(f's_lshl_b32 {SSEG}, {SB}, 2'); a(f's_lshr_b32 s67, {SU}, 3'); a(f's_add_u32 {SSEG}, {SSEG}, s67')
    posx(a, 's85', SSEG)
    poll_gt(a, opt, VQO, 's73', 's85', T0, 16)
    def frags(dst, n, base):
        for j in range(n):
            if j % 4 == 0: a(f's_add_u32 s87, s86, {base + j*1024}')
            a(f'buffer_load_dwordx4 v[{dst+4*j}:{dst+4*j+3}], v{VL16}, {S_WS}, s87 offen offset:{(j&3)*1024} sc1')
    a(f's_lshl_b32 s86, {SSEG}, 5'); a(f's_add_u32 s86, s86, {SHD}'); a('s_mul_i32 s86, s86, 12288')
    frags(QF, 12, QF_OFF); frags(KF, 12, KF_OFF)
    vr = lambda b: f'v[{b}:{b+3}]'
    a('s_waitcnt vmcnt(6)')
    for kk in range(6): a(mfma(X00, vr(KF + 4*kk), vr(QF + 4*kk), kk == 0)); a(mfma(X01, vr(KF + 4*kk), vr(QF + 24 + 4*kk), kk == 0))
    a('s_waitcnt vmcnt(0)')
    for kk in range(6): a(mfma(X11, vr(KF + 24 + 4*kk), vr(QF + 24 + 4*kk), kk == 0))
    a(f'v_mov_b32 v{T}, 0xff7fffff')
    for D in (X00, X11):
        for r in range(4): a(f'v_cndmask_b32 v{D+r}, v{T}, v{D+r}, {SCM[r]}')
    posm(a, 's85', SB, 's67')
    lk = a.label('Lpk')
    a(f's_cmp_lt_u32 {SB}, {NMB}'); a(f's_cbranch_scc1 {lk}')
    a(f's_lshr_b32 s88, {SHD}, 4'); a('s_lshl_b32 s88, s88, 4'); a(f's_add_u32 s88, s88, {SHD}'); a('s_lshl_b32 s88, s88, 7'); a(f's_add_u32 s88, s88, {CPRG_OFF}')
    a(f'v_mov_b32 v{VT1}, 0'); a(f's_mov_b32 s85, {SSEG}')
    a(f'{lk}:')
    poll_gt(a, opt, VT1, 's88', 's85', T0, opt.get('psleep', 1))
    a(f's_add_u32 s86, {SB}, 64'); a('s_lshl_b32 s86, s86, 5'); a(f's_add_u32 s86, s86, {SHD}'); a('s_mul_i32 s86, s86, 12288')
    a(f's_bitcmp1_b32 {SU}, 4'); a('s_cselect_b32 s67, 6144, 0'); a('s_add_u32 s86, s86, s67')
    frags(KM, 6, KF_OFF)
    for kk in range(6):
        a(f's_waitcnt vmcnt({5-kk})')
        a(mfma(M0, vr(KM + 4*kk), vr(QF + 4*kk), kk == 0)); a(mfma(M1, vr(KM + 4*kk), vr(QF + 24 + 4*kk), kk == 0))
    a(f's_lshl_b32 s86, {SSEG}, 5'); a(f's_add_u32 s86, s86, {SHD}'); a('s_lshl_b32 s86, s86, 11'); a(f's_add_u32 s86, s86, {P3X_OFF}')
    a(f's_lshl_b32 s87, {SSEG}, 3'); a(f's_lshr_b32 s67, {SHD}, 2'); a('s_add_u32 s87, s87, s67'); a('s_lshl_b32 s87, s87, 11')
    a(f's_and_b32 s67, {SHD}, 3'); a('s_lshl_b32 s67, s67, 8'); a('s_add_u32 s87, s87, s67'); a(f's_add_u32 s87, s87, {P3M_OFF}')
    a(f'v_mov_b32 v{T}, 0xff7fffff')
    for D in (M0, M1):
        for r in range(4): a(f'v_cndmask_b32 v{D+r}, v{T}, v{D+r}, {SVAL}')
    for qt, tiles in ((0, [X00, M0]), (1, [X01, X11, M1])):
        allv = [D + r for D in tiles for r in range(4)]
        a(f'v_max3_f32 v{M}, v{allv[0]}, v{allv[1]}, v{allv[2]}')
        rest = allv[3:]
        while rest:
            if len(rest) >= 2: a(f'v_max3_f32 v{M}, v{M}, v{rest[0]}, v{rest[1]}'); rest = rest[2:]
            else: a(f'v_max_f32 v{M}, v{M}, v{rest[0]}'); rest = []
        for s_ in allred('v_max_f32', M, T): a(s_)
        a(f'v_mul_f32 v{M}, s84, v{M}')
        for v in allv: a(f'v_fma_f32 v{v}, v{v}, s84, -v{M}')
        for v in allv: a(f'v_exp_f32 v{v}, v{v}')
        a(f'v_add_f32 v{L}, v{allv[0]}, v{allv[1]}')
        for v in allv[2:]: a(f'v_add_f32 v{L}, v{L}, v{v}')
        for s_ in allred('v_add_f32', L, T): a(s_)
        a(f'v_rcp_f32 v{L}, v{L}')
        for v in allv: a(f'v_mul_f32 v{v}, v{v}, v{L}')
        o = tiles[0]; m = tiles[-1]
        a(f'v_cvt_pk_bf16_f32 v{o}, v{o}, v{o+1}'); a(f'v_cvt_pk_bf16_f32 v{o+1}, v{o+2}, v{o+3}')
        if qt: a(f'v_cvt_pk_bf16_f32 v{o+2}, v{X11}, v{X11+1}'); a(f'v_cvt_pk_bf16_f32 v{o+3}, v{X11+2}, v{X11+3}')
        else: a(f'v_mov_b32 v{o+2}, 0'); a(f'v_mov_b32 v{o+3}, 0')
        a(f'v_cvt_pk_bf16_f32 v{m}, v{m}, v{m+1}'); a(f'v_cvt_pk_bf16_f32 v{m+1}, v{m+2}, v{m+3}')
        a(f'buffer_store_dwordx4 v[{o}:{o+3}], v{VL16}, {S_WS}, s86 offen offset:{qt*1024} sc1')
        a(f's_mov_b64 exec, {SVAL}')
        a(f'buffer_store_dwordx2 v[{m}:{m+1}], v{VMO}, {S_WS}, s87 offen offset:{qt*1024} sc1')
        a('s_mov_b64 exec, -1')
    a(f's_add_u32 {SB}, {SB}, 1'); a(f'v_mov_b32 v{VPV}, {SB}'); a('s_waitcnt vmcnt(0)')
    a(f'buffer_store_dword v{VPV}, v{VFLG}, {S_WS}, {SPR} offen sc1')
    tstamp(a, opt, (SB, 7), (14, 15))
    a(f's_cmp_lt_u32 {SB}, 16'); a(f's_cbranch_scc1 {lt}')
    a('s_waitcnt vmcnt(0)'); a('s_endpgm')

def f_unit(a, opt):
    SB, SDT, SSG = 's70', 's72', 's71'
    VM, A0, G0, PB, ID, XR, GV = 16, 48, 56, 64, 128, 136, 140
    VMO, VXO, VPR, VFO, VPO, VTH = 150, 151, 152, 153, 154, 155
    T0, T1 = 156, 157
    lgo = a.label('Lfg')
    a(f's_sub_u32 s68, {SU}, 32'); a(f's_mov_b32 {SB}, 0'); a(f's_mov_b32 s82, {NMB}')
    a(f's_branch {lgo}')
    a('L_f2:')
    a('s_waitcnt vmcnt(0) lgkmcnt(0)'); a('s_barrier')
    a(f's_mov_b32 {SB}, {NMB}'); a('s_mov_b32 s82, 16')
    a(f'{lgo}:')
    a('s_mov_b32 s83, s68')
    a(f'v_and_b32 v{T0}, 15, v0'); a(f'v_lshrrev_b32 v{T1}, 4, v0'); a(f'v_lshlrev_b32 v{T1}, 2, v{T1}'); a(f'v_sub_u32 v{T0}, v{T0}, v{T1}')
    for r in (0, 1, 4, 5): a(f'v_mov_b32 v{ID+r}, 0')
    a(f'v_mov_b32 v{T1}, 0x3f80'); a(f'v_mov_b32 v{GV}, 0x3f800000')
    for d in range(2):
        a(f'v_cmp_eq_u32 vcc, {2*d}, v{T0}'); a(f'v_cndmask_b32 v{ID+2+d}, 0, v{T1}, vcc')
        a(f'v_cmp_eq_u32 vcc, {2*d+1}, v{T0}'); a(f'v_cndmask_b32 v{ID+2+d}, v{ID+2+d}, v{GV}, vcc')
    lanefn(a, VMO, lambda l: (l >> 4)*10240 + (l & 15)*16, T0)
    lanefn(a, VXO, lambda l: (l & 15)*1280 + (l >> 4)*8, T0)
    a('s_mov_b32 s68, s83'); a(f's_mul_i32 {SSG}, s68, 205'); a(f's_lshr_b32 {SSG}, {SSG}, 11'); a(f's_mul_i32 s67, {SSG}, 10'); a(f's_sub_u32 {SDT}, s68, s67')
    a(f's_and_b32 s79, {SDT}, 3'); a(f's_mul_i32 s79, s79, {40*128}'); a(f's_add_u32 s79, s79, {PRGY_OFF}')
    a(f's_lshl_b32 {SDT}, {SDT}, 2'); a(f's_add_u32 {SDT}, {SDT}, {SWV}')
    a(f'v_min_u32 v{VFO}, 39, v0'); a(f'v_lshlrev_b32 v{VFO}, 7, v{VFO}')
    a(f'v_lshlrev_b32 v{VPO}, 7, v0'); a(f's_lshl_b32 s67, {SSG}, 12'); a(f's_add_u32 s67, s67, {PRGP_OFF - 32*128}'); a('s_sub_u32 s67, s67, s79')
    a(f'v_add_u32 v{T0}, s67, v{VPO}'); a('s_mov_b32 s80, 0'); a('s_mov_b32 s81, -1'); a(f'v_cndmask_b32 v{VPO}, v{VPO}, v{T0}, s[80:81]')
    ltop, ld, lw = [a.label('Lfb') for _ in range(3)]
    a(f'{ltop}:')
    a(f's_lshl_b32 {SSEG}, {SB}, 2'); a(f's_add_u32 {SSEG}, {SSEG}, {SSG}')
    a(f's_cmp_lg_u32 {SWV}, 0'); a(f's_cbranch_scc1 {ld}')
    posx(a, 's73', SSEG)
    poll_gt(a, opt, VFO, 's79', 's73', T0, opt.get('ysleep', 16))
    a(f'{ld}:')
    a('s_barrier')
    a(f's_mul_i32 s73, {SSEG}, 40'); a(f's_add_u32 s73, s73, {SDT}'); a('s_mul_i32 s73, s73, 40960'); a(f's_add_u32 s73, s73, {VOF_OFF}')
    def vo(hh):
        if hh % 4 == 0: a(f's_add_u32 s74, s73, {hh*1024}')
        a(f'buffer_load_dwordx4 a[{4*hh}:{4*hh+3}], v{VL16}, {S_WS}, s74 offen offset:{(hh&3)*1024} sc1')
    for hh in range(32, 40): vo(hh)
    a(f's_mul_i32 s75, {SSEG}, {32*1280}'); a(f's_lshl_b32 s67, {SDT}, 5'); a('s_add_u32 s75, s75, s67'); a(f's_add_u32 s76, s75, {16*1280}')
    for qt in range(2): a(f'buffer_load_dwordx2 v[{XR+2*qt}:{XR+2*qt+1}], v{VXO}, {S_X}, s{75+qt} offen')
    for hh in range(32): vo(hh)
    for hh in range(32, 40):
        a(f's_waitcnt vmcnt({34 + 39 - hh})')
        for qt in range(2):
            b = ID + 2 - 2*qt
            a(mfma(G0 + 4*qt, f'a[{4*hh}:{4*hh+3}]', f'v[{b}:{b+3}]', hh == 32))
    def rnd8(src, dst):
        for j in range(4): a(f'v_cvt_pk_bf16_f32 v{PB+j}, v{src+2*j}, v{src+2*j+1}')
        for j in range(4): a(f'v_lshlrev_b32 v{dst+2*j}, 16, v{PB+j}'); a(f'v_and_b32 v{dst+2*j+1}, 0xffff0000, v{PB+j}')
    rnd8(G0, G0)
    a(f's_mov_b32 s67, {f2u(-1.4426950408889634):#x}')
    for j in range(8): a(f'v_mul_f32 v{GV+j}, s67, v{G0+j}')
    for j in range(8): a(f'v_exp_f32 v{GV+j}, v{GV+j}')
    for j in range(8): a(f'v_add_f32 v{GV+j}, 1.0, v{GV+j}')
    for j in range(8): a(f'v_rcp_f32 v{GV+j}, v{GV+j}')
    for j in range(8): a(f'v_mul_f32 v{GV+j}, v{GV+j}, v{G0+j}')
    rnd8(GV, GV)
    a(f's_cmp_lg_u32 {SWV}, 0'); a(f's_cbranch_scc1 {lw}')
    posm(a, 's73', SB, 's67')
    lk = a.label('Lfk')
    a(f's_cmp_lt_u32 {SB}, {NMB}'); a(f's_cbranch_scc1 {lk}')
    a(f'v_and_b32 v{T0}, 16, v0'); a(f'v_add_u32 v{T0}, v{T0}, v0'); a(f'v_lshlrev_b32 v{T0}, 7, v{T0}'); a(f's_sub_u32 s73, {CPRG_OFF + 16*128}, s79'); a(f'v_add_u32 v{T0}, s73, v{T0}')
    a(f'v_cndmask_b32 v{VPO}, v{T0}, v{VPO}, s[80:81]'); a(f's_mov_b32 s73, {SSEG}')
    a(f'{lk}:')
    a(f'v_mov_b32 v{VTH}, s73'); a(f'v_mov_b32 v{T0}, {SB}'); a(f'v_cndmask_b32 v{VTH}, v{VTH}, v{T0}, s[80:81]')
    poll_gt(a, opt, VPO, 's79', f'v{VTH}', PB, opt.get('psleep', 1))
    a(f'{lw}:')
    a('s_barrier')
    a(f's_mul_i32 s73, {SSEG}, {32*10240}'); a(f's_lshl_b32 s67, {SDT}, 8'); a('s_add_u32 s73, s73, s67'); a(f's_add_u32 s73, s73, {VOM_OFF}')
    a(f's_lshl_b32 s74, {SWV}, 10'); a(f's_lshl_b32 s77, {SSEG}, 16'); a('s_add_u32 s77, s77, s74'); a(f's_add_u32 s77, s77, {P3X_OFF}')
    a(f's_lshl_b32 s78, {SSEG}, 14'); a('s_add_u32 s78, s78, s74'); a(f's_add_u32 s78, s78, {P3M_OFF}')
    for n in range(20):
        sr = "s77" if n < 16 else "s78"
        a(f's_add_u32 m0, s74, {n*4096}')
        if n not in (0, 16): a(f's_add_u32 {sr}, {sr}, 4096')
        a(f'buffer_load_dwordx4 v{VL16}, {S_WS}, {sr} offen sc1 lds')
        if n == 4:
            for m in range(8):
                a(f'buffer_load_dwordx4 v[{VM+4*m}:{VM+4*m+3}], v{VMO}, {S_WS}, s73 offen sc1'); a('s_add_u32 s73, s73, 40960')
    a(f'v_add_u32 v{VPR}, 32768, v{VL16}')
    for st in range(4):
        a(f's_waitcnt vmcnt({[23, 10, 5, 0][st]})'); a('s_barrier')
        def rd(c):
            base, off = (VL16, c*1024) if c < 32 else (VPR, c*1024 - 32768)
            b = PB + (c % 16) * 4
            a(f'ds_read_b128 v[{b}:{b+3}], v{base} offset:{off}')
        for c in range(20*st, 20*st + 8): rd(c)
        for c in range(20*st, 20*st + 20):
            left = min(20*st + 20, c + 8) - c - 1
            a(f's_waitcnt lgkmcnt({left})')
            h2, qt = c >> 1, c & 1
            A = f'a[{4*h2}:{4*h2+3}]' if c < 64 else f'v[{VM+4*(h2-32)}:{VM+4*(h2-32)+3}]'
            b = PB + (c % 16) * 4
            a(mfma(A0 + 4*qt, A, f'v[{b}:{b+3}]', c < 2))
            if c + 8 < 20*st + 20: rd(c + 8)
    rnd8(A0, A0)
    for j in range(8): a(f'v_mul_f32 v{A0+j}, v{A0+j}, v{GV+j}')
    rnd8(A0, A0)
    for j in range(4): a(f'v_lshlrev_b32 v{G0+2*j}, 16, v{XR+j}'); a(f'v_and_b32 v{G0+2*j+1}, 0xffff0000, v{XR+j}')
    for j in range(8): a(f'v_add_f32 v{A0+j}, v{A0+j}, v{G0+j}')
    for j in range(4): a(f'v_cvt_pk_bf16_f32 v{A0+j}, v{A0+2*j}, v{A0+2*j+1}')
    for qt in range(2): a(f'buffer_store_dwordx2 v[{A0+2*qt}:{A0+2*qt+1}], v{VXO}, {S_OUT}, s{75+qt} offen')
    tstamp(a, opt, (SB, 100), (14, 15))
    a(f's_add_u32 {SB}, {SB}, 1'); a(f's_cmp_lt_u32 {SB}, s82'); a(f's_cbranch_scc1 {ltop}')
    a('s_waitcnt vmcnt(0)'); a('s_endpgm')

def gemm_main(a, opt):
    tstamp(a, opt, 0, (14, 15))
    a(f's_sub_u32 {SG}, {SSLOT}, 64')
    a(f's_mov_b32 {STMO}, {opt.get("tmo", 1 << 21)}')
    srd(a, S_X, 's[36:37]', 2048*640*2); srd(a, S_OUT, 's[56:57]', 2048*640*2); srd(a, S_WA, 's[40:41]', 0)
    a(f'v_lshlrev_b32 v{VL16}, 4, v0')
    a(f'v_mov_b32 v{VONE}, 1'); a(f'v_cmp_eq_u32 vcc, 0, v0'); a(f'v_mov_b32 v{VT0}, 0x40000000'); a(f'v_cndmask_b32 v{VFLG}, v{VT0}, 0, vcc')
    ly, lf = a.label('Lyu'), a.label('Lfu')
    a(f's_lshr_b32 s67, {SG}, 5'); a(f's_and_b32 s68, {SG}, 31')
    a(f's_mul_i32 {SU}, s67, 13'); a(f's_add_u32 {SU}, {SU}, s68')
    a('s_cmp_ge_u32 s68, 13'); a(f's_cbranch_scc1 {ly}')
    x_unit(a, opt)
    a(f'{ly}:')
    a('s_sub_u32 s68, s68, 13'); a('s_min_u32 s69, s67, 4')
    a('s_cmp_lt_u32 s67, 4'); a('s_cselect_b32 s70, 7, 6')
    a(f's_mul_i32 {SU}, s67, 6'); a(f's_add_u32 {SU}, {SU}, s69'); a(f's_add_u32 {SU}, {SU}, s68')
    a('s_cmp_ge_u32 s68, s70'); a(f's_cbranch_scc1 {lf}')
    y_unit(a, opt)
    a(f'{lf}:')
    a(f's_mul_i32 {SU}, s67, 13'); a(f's_sub_u32 {SU}, {SU}, s69'); a(f's_add_u32 {SU}, {SU}, s68'); a(f's_sub_u32 {SU}, {SU}, s70')
    f_class(a, opt)
    a('L_wend:'); a('s_waitcnt vmcnt(0)')
```

```python
import sys
sys.path.insert(0, "dev")
from asmdsl import Asm
from layout import *
from gen_chain import *

NAME = "recurrent_scan__memory_aug_recurrent_mem_tr__dense_activation_relu__prompt"

def prologue(a, opt):
    a('s_cmp_ge_u32 s2, 256'); a('s_cbranch_scc1 L_end')
    a('v_lshrrev_b32 v1, 6, v0'); a('v_and_b32 v0, 63, v0'); a(f'v_readfirstlane_b32 {SWV}, v1')
    a(f's_getreg_b32 {SXCC}, hwreg(HW_REG_XCC_ID)'); a(f's_and_b32 {SXCC}, {SXCC}, 7')
    a(f's_sub_u32 {SROT}, {SXCC}, s2'); a(f's_and_b32 {SROT}, {SROT}, 7')
    if opt.get('fake_rot') == 2: a(f's_mul_i32 {SROT}, s2, 5'); a(f's_lshr_b32 {SROT}, {SROT}, 2'); a(f's_and_b32 {SROT}, {SROT}, 7')
    if opt.get('norot'): a(f's_mov_b32 {SROT}, {opt["norot"] - 1}')
    a('L_restart:')
    a('s_load_dwordx16 s[36:51], s[0:1], 0'); a('s_load_dwordx8 s[52:59], s[0:1], 64'); a('s_load_dwordx2 s[60:61], s[0:1], 96')
    if opt.get('perm_slot'): a(f's_mov_b32 {SSLOT}, s2')
    else: a(f's_add_u32 {SSLOT}, s2, {SROT}'); a(f's_and_b32 {SSLOT}, {SSLOT}, 7'); a(f's_lshl_b32 {SSLOT}, {SSLOT}, 5'); a('s_lshr_b32 s6, s2, 3'); a(f's_add_u32 {SSLOT}, {SSLOT}, s6')
    a('s_waitcnt lgkmcnt(0)')
    srd(a, S_WS, 's[60:61]', WS_BYTES); srd(a, S_DBG, 's[58:59]', 256)
    lz = a.label('Lz')
    a(f's_or_b32 s6, s2, {SWV}'); a('s_cmp_lg_u32 s6, 0'); a(f's_cbranch_scc1 {lz}')
    a(f's_add_u32 s6, {SROT}, 1')
    a('v_mov_b32 v1, s6'); a(f'v_mov_b32 v2, {DBG_ROT*4}')
    a(f'buffer_store_dword v1, v2, {S_DBG}, 0 offen sc1')
    a(f'{lz}:')

def generate(opt):
    a = Asm()
    prologue(a, opt)
    a(f's_cmp_ge_u32 {SSLOT}, 64'); a('s_cbranch_scc1 L_gemm')
    if opt.get('no_chain'): a('s_endpgm')
    else: chain_main(a, opt)
    a('L_gemm:')
    if opt.get('chain_only'):
        a(f's_cmp_lt_u32 {SSLOT}, 246'); a('s_cbranch_scc1 L_end')
        a(f's_sub_u32 s62, {SSLOT}, 246'); a(f's_mov_b32 {STMO}, 100000'); rot_check(a, 20, 21); calibrate(a, 's62'); a('s_waitcnt vmcnt(0)')
        a('s_endpgm')
    else:
        from gen_gemm import gemm_main
        gemm_main(a, opt)
    a('L_end:')
    n = a.fix_hazards(opt.get('verbose'))
    body = a.text()
    hdr = open(f'cdna_kernels/{NAME}.s.ref').read().split('; Override launch geometry')[0]
    kn = NAME + '_kernel'
    out = hdr + f"""; @launch grid=(256,1,1) block=(256,1,1) lds={LDS_TOTAL}
.amdgcn_target "amdgcn-amd-amdhsa--gfx950"
.text
.globl {kn}
.p2align 8
.type {kn},@function
{kn}:
{body}s_endpgm
.section .rodata,"a"
.p2align 6
.amdhsa_kernel {kn}
  .amdhsa_next_free_vgpr 512
  .amdhsa_next_free_sgpr 102
  .amdhsa_accum_offset 256
  .amdhsa_group_segment_fixed_size 0
  .amdhsa_kernarg_size 104
  .amdhsa_user_sgpr_count 2
  .amdhsa_user_sgpr_kernarg_segment_ptr 1
  .amdhsa_system_sgpr_workgroup_id_x 1
.end_amdhsa_kernel
"""
    return out, n, len(a.lines)

if __name__ == '__main__':
    import json
    opt = json.loads(sys.argv[2]) if len(sys.argv) > 2 else {}
    out, n, nl = generate(opt)
    open(sys.argv[1], 'w').write(out)
    import common; print(f'wrote {sys.argv[1]}: {nl} lines, {n} hazard pads, {len(out)} bytes, late {common.merge.late}')
```

```python
import sys
sys.path.insert(0, "dev")
from asmdsl import Asm
from layout import *
from gen_chain import *

NAME = "recurrent_scan__memory_aug_recurrent_mem_tr__dense_activation_relu__prompt"

def prologue(a, opt):
    a('s_cmp_ge_u32 s2, 256'); a('s_cbranch_scc1 L_end')
    a('v_lshrrev_b32 v1, 6, v0'); a('v_and_b32 v0, 63, v0'); a(f'v_readfirstlane_b32 {SWV}, v1')
    a(f's_getreg_b32 {SXCC}, hwreg(HW_REG_XCC_ID)'); a(f's_and_b32 {SXCC}, {SXCC}, 7')
    a(f's_sub_u32 {SROT}, {SXCC}, s2'); a(f's_and_b32 {SROT}, {SROT}, 7')
    if opt.get('fake_rot') == 2: a(f's_mul_i32 {SROT}, s2, 5'); a(f's_lshr_b32 {SROT}, {SROT}, 2'); a(f's_and_b32 {SROT}, {SROT}, 7')
    if opt.get('norot'): a(f's_mov_b32 {SROT}, {opt["norot"] - 1}')
    if opt.get('cwarm', 1):
        lw = a.label('Lcw')
        a(f's_cmp_lg_u32 {SWV}, 1'); a(f's_cbranch_scc1 {lw}')
        a('s_getpc_b64 s[6:7]')
        a('L_pc:')
        a('s_lshr_b32 s8, s2, 3'); a('s_lshl_b32 s8, s8, 13'); a('v_lshlrev_b32 v1, 7, v0'); a('v_add_u32 v1, s8, v1')
        a('v_min_u32 v1, L_end-L_pc, v1')
        a('v_mov_b32 v3, s7'); a('v_add_co_u32 v2, vcc, s6, v1'); a('v_addc_co_u32 v3, vcc, 0, v3, vcc')
        a('global_load_dword v255, v[2:3], off')
        a(f'{lw}:')
    a('L_restart:')
    a('s_load_dwordx16 s[36:51], s[0:1], 0'); a('s_load_dwordx8 s[52:59], s[0:1], 64'); a('s_load_dwordx2 s[60:61], s[0:1], 96')
    if opt.get('perm_slot'): a(f's_mov_b32 {SSLOT}, s2')
    else: a(f's_add_u32 {SSLOT}, s2, {SROT}'); a(f's_and_b32 {SSLOT}, {SSLOT}, 7'); a(f's_lshl_b32 {SSLOT}, {SSLOT}, 5'); a('s_lshr_b32 s6, s2, 3'); a(f's_add_u32 {SSLOT}, {SSLOT}, s6')
    a('s_waitcnt lgkmcnt(0)')
    srd(a, S_WS, 's[60:61]', WS_BYTES); srd(a, S_DBG, 's[58:59]', 256)
    lz = a.label('Lz')
    a(f's_or_b32 s6, s2, {SWV}'); a('s_cmp_lg_u32 s6, 0'); a(f's_cbranch_scc1 {lz}')
    a(f's_add_u32 s6, {SROT}, 1')
    a('v_mov_b32 v1, s6'); a(f'v_mov_b32 v2, {DBG_ROT*4}')
    a(f'buffer_store_dword v1, v2, {S_DBG}, 0 offen sc1')
    a(f'{lz}:')

def generate(opt):
    a = Asm()
    prologue(a, opt)
    a(f's_cmp_ge_u32 {SSLOT}, 64'); a('s_cbranch_scc1 L_gemm')
    if opt.get('no_chain'): a('s_endpgm')
    else: chain_main(a, opt)
    a('L_gemm:')
    if opt.get('chain_only'):
        a(f's_cmp_lt_u32 {SSLOT}, 246'); a('s_cbranch_scc1 L_end')
        a(f's_sub_u32 s62, {SSLOT}, 246'); a(f's_mov_b32 {STMO}, 100000'); rot_check(a, 20, 21); calibrate(a, 's62'); a('s_waitcnt vmcnt(0)')
        a('s_endpgm')
    else:
        from gen_gemm import gemm_main
        gemm_main(a, opt)
    a('L_end:')
    n = a.fix_hazards(opt.get('verbose'))
    body = a.text()
    hdr = open(f'cdna_kernels/{NAME}.s.ref').read().split('; Override launch geometry')[0]
    kn = NAME + '_kernel'
    out = hdr + f"""; @launch grid=(256,1,1) block=(256,1,1) lds={LDS_TOTAL}
.amdgcn_target "amdgcn-amd-amdhsa--gfx950"
.text
.globl {kn}
.p2align 8
.type {kn},@function
{kn}:
{body}s_endpgm
.section .rodata,"a"
.p2align 6
.amdhsa_kernel {kn}
  .amdhsa_next_free_vgpr 512
  .amdhsa_next_free_sgpr 102
  .amdhsa_accum_offset 256
  .amdhsa_group_segment_fixed_size 0
  .amdhsa_kernarg_size 104
  .amdhsa_user_sgpr_count 2
  .amdhsa_user_sgpr_kernarg_segment_ptr 1
  .amdhsa_system_sgpr_workgroup_id_x 1
.end_amdhsa_kernel
"""
    return out, n, len(a.lines)

if __name__ == '__main__':
    import json
    opt = json.loads(sys.argv[2]) if len(sys.argv) > 2 else {}
    out, n, nl = generate(opt)
    open(sys.argv[1], 'w').write(out)
    import common; print(f'wrote {sys.argv[1]}: {nl} lines, {n} hazard pads, {len(out)} bytes, late {common.merge.late}')
```

```python
from common import *

SC = 0.07216878364870322 * 1.4426950408889634

def wfrag(f, half=None):
    if f < 32: k, b = 'a', f * 8
    else: k, b = 'v', 176 + (f - 32) * 8
    if half is None: return f'{k}[{b}:{b+7}]'
    return k, b + 4 * half

VL16, VGW, VAR, VFR, VXW, VXS, VDR, VIDX, V9, V10, V11, V12, VT0, VT1, VT2 = range(1, 16)
VA = 16
VACC0 = 56
VACC1 = 68
VB = 80
VKX = 112
VQF = 136
VTMP = 160
VOX = 112
SSTEP, SH, SX, SDT = 's62', 's63', 's64', 's66'
SMASK8 = 's[70:71]'
SCM = [f's[{72+2*r}:{73+2*r}]' for r in range(4)]
SCHK = 's80'
S_ONE0, S_ONE1 = 's100', 's101'
NCH = [3, 3, 2, 2]
OWN = [[0, 1, 2], [3, 4, 5], [6, 7], [8, 9]]
REGKB = [0, 1, 3, 4, 6, 7, 8]; LDSKB = [2, 5, 9]
REGT = [0, 2, 3, 4, 6, 7, 8]; LDST = [1, 5, 9]
def yfrag(tile, kb):
    if tile in REGT: return 'reg', 21 + REGT.index(tile)*3 + kb
    return 'lds', 9 + LDST.index(tile)*3 + kb
def xfrag(kb, t, second):
    if kb in REGKB: return 'reg', t*7 + REGKB.index(kb) + (21 if second else 0)
    return 'lds', LDSKB.index(kb)*3 + t + (9 if second else 0)
def apos(w, order):
    ap = {kb: VA + 8*c for c, kb in enumerate(OWN[w])}
    free = [VA + 4*i for i in range(10) if VA + 4*i not in ap.values()]
    for kb in order:
        if kb not in ap: ap[kb] = free.pop(0)
    return ap
STREAM = ['sc1 nt']

def tile_pat(l):
    g, c = l >> 4, l & 15
    return (4*g + 2*(c & 1) + (c >> 3))*16 + ((c >> 1) & 3)*4

def common_addr(a):
    T = VTMP
    a(f'v_lshlrev_b32 v{VL16}, 4, v0')
    a(f's_mul_i32 s6, {SWV}, 3'); a(f's_lshl_b32 s7, {SWV}, 1'); a('s_add_u32 s7, s7, 2'); a('s_min_u32 s6, s6, s7')
    a(f's_lshl_b32 {SCHK}, s6, 10')
    a(f'v_add_u32 v{VAR}, {LDS_MEM}, v{VL16}'); a(f'v_add_u32 v{VGW}, {SCHK}, v{VAR}')
    lanefn(a, VFR, lambda l: l*16, T, 36864)
    lanefn(a, VIDX, lambda l: 0x4444 + (l & 1)*0xaaaa, T)
    a(f'v_and_b32 v{T}, 8, v0'); a(f'v_cmp_ne_u32 {SMASK8}, 0, v{T}')

def loader(a, role, after_first=None):
    vm = Trk(a, 'vmcnt', 63)
    T = 160
    VD0, VD1, VR0 = T, T + 1, T + 2
    dma_voff(a, VD0, 12288, T + 8, T + 9); dma_voff(a, VD1, 1280, T + 8, T + 9)
    for aa in range(2):
        R = VR0 + 3*aa
        row = lambda l: 4*((l >> 4) & 1) + 2*aa + ((l >> 2) & 1)
        lanefn(a, T + 8, lambda l: row(l) & 6, T + 10); lanefn(a, T + 9, lambda l: (l >> 1) & 1, T + 10, 2)
        a(f'v_xor_b32 v{T+9}, v{T+9}, v{T+8}')
        lanefn(a, R, lambda l: (l >> 5)*2048 + ((l >> 3) & 1)*1024 + row(l)*128 + (l & 1)*8, T + 10)
        a(f'v_lshl_add_u32 v{R}, v{T+9}, 4, v{R}')
        a(f'v_add_u32 v{R+1}, 49152, v{R}'); a(f'v_add_u32 v{R+2}, 98304, v{R}')
    a(f's_mul_i32 s68, {SH}, 384'); a(f's_mul_i32 s67, {SWV}, {8*12288}'); a('s_add_u32 s68, s68, s67')
    a(f's_mul_i32 s69, {SH}, {192*1280}'); a(f's_mul_i32 s67, {SWV}, {8*1280}'); a('s_add_u32 s69, s69, s67')
    a(f's_lshl_b32 s7, {SWV}, 10')
    k2 = 'X' if role == 'qk' else 'Y'
    slabs = [('X', S_WA, i) for i in range(14)] + [(k2, S_WB, i) for i in range(14)] + \
            [('X', S_WA, i) for i in range(14, 20)] + [(k2, S_WB, i) for i in range(14, 20)]
    def dma(n):
        kind, sr, i = slabs[n]
        for c in range(3):
            a(f's_add_u32 m0, s7, {(n % 12)*LDS_SLAB + c*4096}')
            if kind == 'X': a(f's_add_u32 s67, s68, {(2*(REGKB + LDSKB)[i >> 1] + (i & 1))*32*12288 + c*128}')
            else: a(f's_add_u32 s67, s69, {((i&1)*96 + c*32)*1280 + (REGT + LDST)[i >> 1]*128}')
            a(f'buffer_load_dwordx4 v{VD0 if kind=="X" else VD1}, {sr}, s67 offen lds')
            vm.issue(n)
    def dest(n, c):
        kind, sr, i = slabs[n]
        second = (n >= 14) if n < 28 else (n >= 34)
        if kind == 'X': t, kb, half = c, i >> 1, i & 1; f = t * 7 + kb; lf = (kb - 7) * 3 + t
        else:
            ks = (i & 1) * 3 + c; kb, half = ks >> 1, ks & 1; tile = i >> 1
            f = tile * 3 + kb; lf = (tile - 7) * 3 + kb
        if second: f += 21; lf += 9
        return f, lf, half
    def reads(n):
        slot = n % 12
        base = VR0 + slot // 4; off0 = (slot % 4) * LDS_SLAB
        for c in range(3):
            f, lf, half = dest(n, c)
            if n < 28: k, b = wfrag(f, half)
            else: k, b = 'v', 16 + lf * 8 + half * 4
            for aa in range(2):
                a(f'ds_read_b64_tr_b16 {k}[{b+2*aa}:{b+2*aa+1}], v{base + 3*aa} offset:{off0 + c*4096}')
    for n in range(11): dma(n)
    for n in range(40):
        vm.wait(n)
        a('s_waitcnt lgkmcnt(0)')
        a('s_barrier')
        if n + 11 < 40: dma(n + 11)
        reads(n)
        after_first(n, vm)
    a('s_waitcnt lgkmcnt(0)'); a('s_barrier')
    for lf in range(18):
        for half in range(2):
            b = 16 + lf * 8 + half * 4
            a(f'ds_write_b128 v{VFR}, v[{b}:{b+3}] offset:{lf*2048 + half*1024}')
    a('s_waitcnt lgkmcnt(0)')

def mem0_load(a):
    lanefn(a, 18, lambda l: (l & 7)*1280 + (l >> 3)*16, 16)
    lanefn(a, 19, lambda l: LDS_MEM + (l >> 4)*256 + (2*(l & 7) + ((l >> 3) & 1))*16, 16)
    for n in range(10): a(f'buffer_load_dwordx4 v[{24+4*n}:{27+4*n}], v18, {S_AUX}, 0 offen offset:{n*128}')
def mem0_write(a):
    for n in range(10): a(f'ds_write_b128 v19, v[{24+4*n}:{27+4*n}] offset:{n*1024}')

def maxchk(a, regs, first=True):
    regs = list(regs)
    if first:
        a(f'v_max3_u32 v{VT0}, v{regs[0]}, v{regs[1]}, v{regs[2]}'); regs = regs[3:]
    while regs:
        if len(regs) >= 2: a(f'v_max3_u32 v{VT0}, v{VT0}, v{regs[0]}, v{regs[1]}'); regs = regs[2:]
        else: a(f'v_max_u32 v{VT0}, v{VT0}, v{regs[0]}'); regs = []


def gather_setup(a, step_add=0):
    a(f's_add_u32 s67, {SSTEP}, {step_add}'); a('s_and_b32 s67, s67, 3'); a('s_lshl_b32 s67, s67, 1')
    a(f's_add_u32 s68, s67, 1'); a(f's_sub_u32 s68, s68, {SX}'); a(f's_add_u32 s67, s67, {SX}')
    a('s_mul_i32 s67, s67, 10240'); a('s_lshl_b32 s68, s68, 15')
    a(f's_add_u32 s33, s68, {SMR}'); a('s_add_u32 s33, s33, s58')
    a(f's_add_u32 s32, s67, {SCHK}'); a(f's_add_u32 s32, s32, {MEML_OFF}')

def gather(a, n, R, opt, st, rsleep=0, R2=None, det=None):
    ld = lambda r, so: [a(f'buffer_load_dwordx4 v[{r+4*c}:{r+4*c+3}], v{VL16}, {S_WS}, {so} offen offset:{c*1024} sc1') for c in range(n)]
    def chk(r, k=0): a(f's_waitcnt vmcnt({k})'); maxchk(a, range(r, r + 4*n)); a(f'v_cmp_eq_u32 vcc, -1, v{VT0}')
    l1, l1ok, l2, l2ok = [a.label('Lg') for _ in range(4)]
    if det is not None:
        l0, l0d = a.label('Lg'), a.label('Lg')
        a(f'{l0}:')
        a(f'buffer_load_dword v{R}, v{det}, {S_WS}, s32 offen sc1'); a('s_waitcnt vmcnt(0)'); a(f'v_cmp_eq_u32 vcc, -1, v{R}')
        poll_tail(a, l0, l0d)
    stamp(a, opt, st[0])
    if R2 is None:
        a(f'{l1}:')
        ld(R, 's32'); chk(R)
        poll_tail(a, l1, l1ok)
    else:
        ld(R, 's32'); ld(R2, 's33'); chk(R, n)
        a(f's_cbranch_vccnz {l1}')
        a(f'{l1ok}:')
    stamp(a, opt, st[1])
    for c in range(n):
        for i in range(4):
            a(f'v_lshlrev_b32 v{VA+8*c+2*i}, 16, v{R+4*c+i}'); a(f'v_and_b32 v{VA+8*c+2*i+1}, 0xffff0000, v{R+4*c+i}')
    Q = R if R2 is None else R2
    if R2 is None:
        if rsleep: a(f's_sleep {rsleep}')
        ld(Q, 's33')
    chk(Q)
    a(f's_cbranch_vccnz {l2}')
    a(f'{l2ok}:')
    stamp(a, opt, st[2])
    for c in range(n):
        b = VA + 8*c
        for i in range(4):
            a(f'v_dot2c_f32_bf16 v{b+2*i}, {S_ONE0}, v{Q+4*c+i}'); a(f'v_dot2c_f32_bf16 v{b+2*i+1}, {S_ONE1}, v{Q+4*c+i}')
        for i in range(4): a(f'v_cvt_pk_bf16_f32 v{b+i}, v{b+2*i}, v{b+2*i+1}')
        a(f'ds_write_b128 v{VGW}, v[{b}:{b+3}] offset:{c*1024}')
    def outofline():
        if R2 is not None:
            a(f'{l1}:')
            ld(R, 's32'); ld(R2, 's33'); chk(R, n)
            a(f's_cbranch_vccz {l1ok}')
            budget_loop(a, l1, l1ok)
        a(f'{l2}:')
        ld(Q, 's33'); chk(Q)
        a(f's_cbranch_vccz {l2ok}')
        budget_loop(a, l2, l2ok)
    return outofline

ML = ['s[16:17]', 's[18:19]', 's[20:21]']; MR = ['s[22:23]', 's[24:25]', 's[26:27]']; MOR = 's[28:29]'
def mask_or(a, ms):
    a(f's_or_b64 {MOR}, {ms[0]}, {ms[1]}')
    for m in ms[2:]: a(f's_or_b64 {MOR}, {MOR}, {m}')
def ld_masked(a, n, r, so, ms=None):
    for c in range(n):
        if ms: a(f's_mov_b64 exec, {ms[c]}')
        a(f'buffer_load_dwordx4 v[{r+4*c}:{r+4*c+3}], v{VL16}, {S_WS}, {so} offen offset:{c*1024} sc1')
    if ms: a('s_mov_b64 exec, -1')

def gather_m(a, n, R, Q, T, opt, st, det, dep, gap):
    def chk(r, ms, k):
        a(f's_waitcnt vmcnt({k})')
        for c in range(n): a(f'v_max3_u32 v{T+c}, v{r+4*c}, v{r+4*c+1}, v{r+4*c+2}')
        for c in range(n): a(f'v_max_u32 v{T+c}, v{T+c}, v{r+4*c+3}')
        for c in range(n): a(f'v_cmp_eq_u32 {ms[c]}, -1, v{T+c}')
        mask_or(a, ms[:n])
    l1, l1ok, l2, l2b, l2ok = [a.label('Lg') for _ in range(5)]
    if det is not None:
        l0, l0d = a.label('Lg'), a.label('Lg')
        a(f'{l0}:')
        a(f'buffer_load_dword v{R}, v{det}, {S_WS}, s32 offen sc1'); a('s_waitcnt vmcnt(0)'); a(f'v_cmp_eq_u32 vcc, -1, v{R}')
        poll_tail(a, l0, l0d)
    stamp(a, opt, st[0])
    ld_masked(a, n, R, 's32'); ld_masked(a, n, Q, 's33'); chk(R, ML, n)
    a(f's_cbranch_scc1 {l1}')
    a(f'{l1ok}:')
    stamp(a, opt, st[1])
    for c in range(n):
        for i in range(4):
            a(f'v_lshlrev_b32 v{VA+8*c+2*i}, 16, v{R+4*c+i}'); a(f'v_and_b32 v{VA+8*c+2*i+1}, 0xffff0000, v{R+4*c+i}')
    chk(Q, MR, 0)
    a(f's_cbranch_scc1 {l2}')
    a(f'{l2ok}:')
    stamp(a, opt, st[2])
    for c in range(n):
        b = VA + 8*c
        for i in range(4):
            a(f'v_dot2c_f32_bf16 v{b+2*i}, {S_ONE0}, v{Q+4*c+i}'); a(f'v_dot2c_f32_bf16 v{b+2*i+1}, {S_ONE1}, v{Q+4*c+i}')
        for i in range(4): a(f'v_cvt_pk_bf16_f32 v{b+i}, v{b+2*i}, v{b+2*i+1}')
        a(f'ds_write_b128 v{VGW}, v[{b}:{b+3}] offset:{c*1024}')
    def outofline():
        a(f'{l1}:')
        ld_masked(a, n, R, 's32', ML); chk(Q, MR, n)
        ld_masked(a, n, Q, 's33', MR); chk(R, ML, n)
        a(f's_cbranch_scc0 {l1ok}')
        budget_loop(a, l1, l1ok)
        a(f'{l2}:')
        for _ in range(dep - 1):
            ld_masked(a, n, Q, 's33', MR); a(f's_sleep {gap}')
        a(f'{l2b}:')
        ld_masked(a, n, Q, 's33', MR); chk(Q, MR, n*(dep - 1))
        a(f's_cbranch_scc0 {l2ok}')
        budget_loop(a, l2b, l2ok)
    return outofline

def a_read(kb, reg):
    return ('lds', f'ds_read_b128 v[{reg}:{reg+3}], v{VAR} offset:{kb*1024}', f'A{kb}')
def frag_reads(lf, slot):
    return [('lds', f'ds_read_b128 v[{VB+8*slot+4*x}:{VB+8*slot+4*x+3}], v{VFR} offset:{lf*2048 + x*1024}', f'F{lf}') for x in range(2)]
def smf(acc, A, B): return f'v_smfmac_f32_16x16x64_bf16 v[{acc}:{acc+3}], v[{A}:{A+3}], {B}, v{VIDX}'
def post(acc, out):
    return [f'v_add_f32 v{acc}, v{acc}, v{acc+1}', f'v_add_f32 v{acc+2}, v{acc+2}, v{acc+3}', f'v_cvt_pk_bf16_f32 v{out}, v{acc}, v{acc+2}']

def allred(op, v, t, stages=(16, 32)):
    r = []
    for st in stages: r += [f'v_mov_b32 v{t}, v{v}', f'v_permlane{st}_swap_b32 v{v}, v{t}', f'{op} v{v}, v{v}, v{t}']
    return r

def stamp_flush(a, opt, n):
    if not opt.get('stamps'): return
    a('s_waitcnt lgkmcnt(0)')
    a(f's_lshl_b32 s67, {SSLOT}, 2'); a(f's_add_u32 s67, s67, {SWV}'); a('s_lshl_b32 s67, s67, 6'); a(f's_add_u32 s67, s67, {SSTEP}')
    a('s_lshl_b32 s67, s67, 6'); a(f's_add_u32 s67, s67, {STAMP_OFF}')
    a(f'v_lshlrev_b32 v{VT1}, 2, v0')
    for i in range(n): a(f'v_writelane_b32 v{VT0}, s{STAMP0+2*i}, {i}')
    a('s_mov_b64 exec, 0xffff')
    a(f'buffer_store_dword v{VT0}, v{VT1}, {S_WS}, s67 offen')
    a('s_mov_b64 exec, -1')

SPC = 's60'
SMR = 's59'
KFIRST = 2
TFIRST = 3
def check_flags(a, opt, kind):
    if opt.get('noflags'): return
    lp, ld = a.label('Lf'), a.label('Lfd')
    a(f's_sub_u32 s61, s82, {LEAD-4}'); a('s_max_i32 s61, s61, 0'); a('s_lshr_b32 s61, s61, 2'); a('s_add_u32 s61, s61, s82')
    a(f's_cmp_gt_u32 {SPC}, s61'); a(f's_cbranch_scc1 {ld}')
    if kind == 'K': a(f'v_and_b32 v{VT1}, 15, v0'); a(f'v_min_u32 v{VT1}, 2, v{VT1}'); a(f'v_lshlrev_b32 v{VT1}, 7, v{VT1}')
    elif kind == 'Y16': a(f'v_and_b32 v{VT1}, 15, v0'); a(f'v_lshlrev_b32 v{VT1}, 7, v{VT1}')
    else: a(f'v_and_b32 v{VT1}, 3, v0'); a(f'v_mul_u32_u24 v{VT1}, {40*128}, v{VT1}')
    a(f'{lp}:')
    a(f'buffer_load_dword v{VT0}, v{VT1}, {S_WS}, s81 offen sc1'); a('s_waitcnt vmcnt(0)')
    for r in (8, 4, 2, 1): a(f'v_min_u32_dpp v{VT0}, v{VT0}, v{VT0} row_ror:{r} row_mask:0xf bank_mask:0xf')
    a(f'v_readfirstlane_b32 {SPC}, v{VT0}')
    a(f's_cmp_gt_u32 {SPC}, s61'); a(f's_cbranch_scc1 {ld}')
    budget_loop(a, lp, ld)
    a(f'{ld}:')

def cprog(a):
    a('s_waitcnt vmcnt(0)')
    a(f's_lshl_b32 s67, {SSLOT}, 7'); a(f's_add_u32 s67, s67, {CPRG_OFF}'); a(f's_add_u32 s68, {SSTEP}, 1'); a(f'v_mov_b32 v{VT0}, s68'); a(f'v_mov_b32 v{VT1}, 0')
    a('s_mov_b64 exec, 1')
    a(f'buffer_store_dword v{VT0}, v{VT1}, {S_WS}, s67 offen sc1')
    a('s_mov_b64 exec, -1')

def load_frags6(a, dst, base_off, ct, seg='s82'):
    a(f's_lshl_b32 s67, {seg}, 5'); a(f's_add_u32 s67, s67, {SH}'); a('s_mul_i32 s67, s67, 12288')
    a(f's_add_u32 s67, s67, {base_off + ct*6144}'); a('s_add_u32 s68, s67, 4096')
    for kk in range(6):
        a(f'buffer_load_dwordx4 v[{dst+4*kk}:{dst+4*kk+3}], v{VL16}, {S_WS}, {"s67" if kk < 4 else "s68"} offen offset:{(kk&3)*1024} {STREAM[0]}')

def build_stream(first_items, second_items):
    items = []; ldsq = []; idx2 = {}
    def add(it):
        kind, acc, A, ref, needs = it
        if kind == 'reg': items.append((smf(acc, A, wfrag(ref)), needs))
        elif kind == 'lds':
            sl = len(ldsq) % 4; ldsq.append((len(items), ref, sl))
            items.append((smf(acc, A, f'v[{VB+8*sl}:{VB+8*sl+7}]'), needs + [f'F{ref}']))
        else: items.append((ref, needs))
    for it in first_items: add(it)
    n = 0
    for it in second_items:
        if it[0] != 'raw': idx2[n] = len(items); n += 1
        add(it)
    return items, ldsq, idx2

class Sides:
    def __init__(self): self.side = {}; self.busy = set(); self.vbusy = {}
    def put(self, g, r): self.side.setdefault(g, []).append(r)
    def lds(self, g, r, force=False):
        if not force:
            while g in self.busy: g += 1
        self.put(g, r); self.busy.add(g); return g
    def valu(self, g, instrs, per=1):
        last = g - 1; end = g
        for s in instrs:
            if s is None: g = last + 2; continue
            if isinstance(s, tuple): self.lds(last + 1, s, True); end = max(end, last + 2); continue
            if not s.startswith('v_'): self.put(last + 1, s); end = max(end, last + 2); continue
            while self.vbusy.get(g, 0) >= per: g += 1
            self.put(g, s); self.vbusy[g] = self.vbusy.get(g, 0) + 1; last = g; end = max(end, g + 1)
        self.nxt = g
        return end
    def refills(self, ldsq):
        for n in range(len(ldsq) - 4):
            g = ldsq[n][0]
            lim = ldsq[n+4][0] - 6
            for r in frag_reads(ldsq[n+4][1], ldsq[n][2]):
                g2 = g
                while g2 in self.busy: g2 += 1
                if g2 <= lim: g = self.lds(g2, r)
                else: g = self.lds(max(g, min(lim, g + 1)), r, True)
                assert g < ldsq[n+4][0] - 1, (n, g, ldsq[n+4])

DPP8 = 'row_ror:8 row_mask:0xf bank_mask:0xf'
def dense_reads(dst, off, tagp, kks=range(6)):
    return [('lds', f'ds_read_b64_tr_b16 v[{dst+4*kk+2*x}:{dst+4*kk+2*x+1}], v{VDR} offset:{off + (2*kk+x)*256}', f'{tagp}{kk}')
            for kk in kks for x in range(2)]

def preload_b(a, lg, ldsq):
    for n in range(4):
        for r in frag_reads(ldsq[n][1], ldsq[n][2]): a(r[1]); lg.issue(r[2])

QORD = [[0, 1, 2, 3, 4, 5, 6, 7, 9, 8], [3, 4, 5, 0, 1, 2, 6, 7, 9, 8], [6, 7, 2, 0, 1, 5, 3, 4, 9, 8], [8, 9, 0, 1, 2, 3, 4, 6, 5, 7]]
KORD = [0, 2, 1, 3, 5, 4, 6, 9, 7, 8]

def qk_setup(a, opt):
    common_addr(a)
    T = VTMP
    rho = lambda l: 2*(l & 7) + ((l >> 3) & 1)
    lanefn(a, VXW, lambda l: LDS_MEM + (l & 15)*16 + (l >> 4)*4, T, 256)
    lanefn(a, VDR, lambda l: LDS_MEM + (l >> 2)*16 + (l & 1)*8, T)
    lanefn(a, V9, lambda l: (l >> 5)*256 + rho(l)*16 + ((l >> 4) & 1)*8, T)
    lanefn(a, V10, lambda l: rho(l)*16 + ((l >> 4) & 1)*4, T)
    lanefn(a, V11, lambda l: LDS_MEM + 3072 + l*16, T)
    lanefn(a, V12, lambda l: LDS_MEM + ((l >> 3) & 1)*512 + (2*(l & 7) + (l >> 5))*16 + ((l >> 4) & 1)*8, T)
    a(f's_and_b32 s68, {SH}, 15'); a('s_min_u32 s68, s68, 9'); a('s_lshl_b32 s68, s68, 10'); a(f'v_add_u32 v{V12}, s68, v{V12}')
    lanefn(a, VXS, lambda l: ((l >> 3) & 1)*1024 + (l >> 4)*256 + (l & 7)*16, T)
    a(f's_mul_i32 s67, {SX}, 12288'); a(f's_add_u32 s67, s67, {PA_OFF}')
    a(f's_and_b32 s68, {SH}, 15'); a('s_lshl_b32 s76, s68, 9'); a('s_add_u32 s76, s76, s67')
    a('s_lshr_b32 s77, s68, 1'); a('s_lshl_b32 s77, s77, 8'); a('s_add_u32 s77, s77, s67')
    a('s_and_b32 s68, s68, 1'); a('s_lshl_b32 s68, s68, 3'); a('s_add_u32 s77, s77, s68'); a('s_add_u32 s77, s77, 8192')

def qk_init_clear(a):
    a(f'v_mov_b32 v{VA+16}, -1'); a(f'v_mov_b32 v{VA+17}, -1')
    a(f'buffer_store_dwordx2 v[{VA+16}:{VA+17}], v{V9}, {S_WS}, s76 offen sc1')
    a(f'buffer_store_dword v{VA+16}, v{V10}, {S_WS}, s77 offen sc1')

def mf(D, A, B, first): return f'v_mfma_f32_16x16x32_bf16 v[{D}:{D+3}], v[{A}:{A+3}], v[{B}:{B+3}], ' + ('0' if first else f'v[{D}:{D+3}]')

def stream_head(sd, w, order, AP, opt, rest):
    g = opt.get('gb1', 3)
    sd.put(g, ('wait', 'GW')); sd.put(g, 's_barrier')
    for kb in order:
        if kb not in OWN[w]:
            sd.lds(g, a_read(kb, AP[kb]), True); g += 1
    return g

def qk_loop(a, w, sc, opt):
    VZ = VTMP + 15
    lg = Trk(a, 'lgkmcnt', 15)
    ltop, lent, lfin = a.label('Lqk'), a.label('Lqkent'), a.label('Lqkfin')
    QEX = LDS_EX - LDS_MEM
    SACC, SM = VTMP, VTMP + 4
    QO = QORD[w]
    AP = apos(w, QO)
    seq = [(kb, t) for kb in QO[:6] for t in range(3)] + [(kb, t) for t in range(3) for kb in QO[6:]]
    first = [(xfrag(kb, t, 0)[0], VACC0 + 4*t, AP[kb], xfrag(kb, t, 0)[1], [f'A{kb}']) for kb, t in seq]
    second = []
    n = 0
    SX0 = opt.get('sx0', 8)
    for t in range(3):
        for kb in KORD:
            second.append((xfrag(kb, t, 1)[0], VACC1 + 4*t, AP[kb], xfrag(kb, t, 1)[1], []))
            if w >= 2 and n == SX0:
                for kk in range(6): second.append(('raw', 0, 0, mf(SACC, VKX + 4*kk, VQF + 4*kk, kk == 0), [f'Q{kk}']))
            n += 1
    items, ldsq, k2 = build_stream(first, second)
    sd = Sides()
    stream_head(sd, w, QO, AP, opt, None)
    sd.put(opt.get('gb1', 3), lambda: stamp(a, opt, 1))
    pub_rd = [('lds', f'ds_read_b64 v[{VKX+2*x}:{VKX+2*x+1}], v{V12} offset:{x*256}', 'PUB') for x in range(2)]
    pub_st = f'buffer_store_dwordx4 v[{VKX}:{VKX+3}], v{VXS}, {S_WS}, s44 offen sc1'
    if w == 1:
        sd.put(0, f'buffer_store_dword v{VT1}, v{VT2}, {S_WS}, s46 offen sc1')
        for r in pub_rd: sd.lds(18, r)
        sd.put(25, ('wait', 'PUB')); sd.put(25, pub_st)
        for j in range(6):
            sd.put(1 + 3*j, f'buffer_load_dword v{VKX+4+j}, v{V9}, {S_WS}, s{[45, 48, 49][j >> 1]} offen sc1')
            if j % 2 == 0: sd.put(2 + 3*j, f's_add_u32 s{[45, 48, 49][j >> 1]}, s{[45, 48, 49][j >> 1]}, 8192')
    if w == 0:
        sd.put(opt.get('kt0', 1), f'buffer_load_dword v{VTMP+13}, v{V12}, {S_WS}, s45 offen sc1')
        sd.put(opt.get('kt0', 1) + 4, f'buffer_load_dword v{VTMP+13}, v{VXS}, {S_WS}, s45 offen sc1')
    wr = lambda acc, t, off, tag: ('lds', f'ds_write_b32 v{VXW}, v{acc} offset:{off + t*1024}', tag)
    for t in range(3): gq = sd.valu([23, 27, 31][t], post(VACC0 + 4*t, VACC0 + 4*t) + [wr(VACC0 + 4*t, t, QEX, 'QW')], 2 if t == 2 else 1)
    gb = gq + opt.get('gba', 2)
    sd.put(gb, ('wait', 'QW')); sd.put(gb, 's_barrier')
    if opt.get('diag'): sd.put(gb, lambda: stamp(a, opt, 0))
    if w != 1:
        rr = dense_reads(VQF, QEX, 'Q')
        span = (k2[SX0] + 3 - gb) if w >= 2 else 14
        for i, r in enumerate(rr): sd.lds(gb + (i * span) // 12, r, w >= 2)
    gk = 0
    for t in range(2): gk = sd.valu(k2[10*t + 11], post(VACC1 + 4*t, VACC1 + 4*t) + [wr(VACC1 + 4*t, t, 0, 'KW')])
    E0, T, X0 = VTMP + 8, VTMP + 12, VTMP + 4
    ool4 = None
    if w >= 2:
        lsx, lsxb = a.label('Lsx'), a.label('Lsxb')
        p0 = [f'v_cndmask_b32 v{X0}, v{SACC}, v{SACC+2}, {SMASK8}', f'v_cndmask_b32 v{X0+1}, v{SACC+1}, v{SACC+3}, {SMASK8}',
              f'v_mul_f32 v{X0}, s83, v{X0}', f'v_mul_f32 v{X0+1}, s83, v{X0+1}', f'v_exp_f32 v{E0}, v{X0}', f'v_exp_f32 v{E0+1}, v{X0+1}',
              f'v_max_f32 v{T}, |v{X0}|, |v{X0+1}|', f'v_add_f32 v{E0+3}, v{E0}, v{E0+1}', f'v_cmp_lt_f32 vcc, s79, v{T}']
        g = sd.valu(k2[SX0 + 2], p0)
        sd.put(g, lambda: (a(f's_cbranch_vccnz {lsx}'), a(f'{lsxb}:')))
        sd.lds(g, ('lds', f'ds_write_b128 v{V11}, v[{E0}:{E0+3}] offset:{(w-2)*1024}', 'KW'), True)
        g = max(g + 3, gk + 2)
        sd.put(g, ('wait', 'KW')); sd.put(g, 's_barrier')
        def ool4():
            m = E0 + 2
            a(f'{lsx}:')
            a(f'v_max_f32 v{m}, v{X0}, v{X0+1}'); a(f'v_max_f32_dpp v{m}, v{m}, v{m} {DPP8}')
            for s_ in allred('v_max_f32', m, T): a(s_)
            for i in range(2): a(f'v_sub_f32 v{E0+i}, v{X0+i}, v{m}')
            for i in range(2): a(f'v_exp_f32 v{E0+i}, v{E0+i}')
            a(f'v_add_f32 v{E0+3}, v{E0}, v{E0+1}')
            a(f's_branch {lsxb}')
        sd.valu(5, [f'v_mov_b32 v{E0+2}, 0'])
    sd.refills(ldsq)

    def top():
        preload_b(a, lg, ldsq)
        for r in range(0, 24, 2): a(f'v_mov_b64 v[{VACC0+r}:{VACC0+r+1}], 0')
        if w == 0: a(f's_bitcmp1_b32 {SSTEP}, 0'); a('s_cselect_b32 s78, -1.0, 1.0')
        if w == 1:
            a(f'v_mov_b32 v{VT1}, {SSTEP}')
            a(f's_lshr_b32 s67, {SSTEP}, 2'); a('s_mul_i32 s44, s67, 40960'); a(f's_bfe_u32 s67, {SSTEP}, 0x10001'); a('s_mul_i32 s67, s67, 20480')
            a('s_add_u32 s44, s44, s67'); a(f's_and_b32 s67, {SSTEP}, 1'); a('s_lshl_b32 s67, s67, 7'); a('s_add_u32 s44, s44, s67'); a('s_add_u32 s44, s44, s47')
    def prefetch():
        ls = a.label('Lnp')
        if w <= 1: a(f's_mov_b32 s45, {OOB}')
        a(f's_cmp_ge_u32 s82, {1 if opt.get("nopf") else 63}'); a(f's_cbranch_scc1 {ls}')
        if w >= 2:
            lk = a.label('Lk')
            a(f's_cmp_ge_u32 s82, {KFIRST}'); a(f's_cbranch_scc1 {lk}')
            check_flags(a, opt, 'K')
            a(f'{lk}:')
            load_frags6(a, VKX, KF_OFF, w - 2)
        elif w == 0:
            a(f's_cmp_lt_u32 s82, {KFIRST}'); a(f's_cbranch_scc1 {ls}')
            check_flags(a, opt, 'K')
            a(f's_lshl_b32 s45, s82, 5'); a(f's_add_u32 s45, s45, {SH}'); a('s_mul_i32 s45, s45, 12288'); a(f's_add_u32 s45, s45, {KF_OFF}')
        elif not opt.get('notouch'):
            a(f's_cmp_lt_u32 s82, {TFIRST}'); a(f's_cbranch_scc1 {ls}')
            check_flags(a, opt, 'Y16')
            a(f's_mul_i32 s45, s82, {40*40960}'); a('s_add_u32 s45, s45, s50')
        a(f'{ls}:')
        if w == 1:
            a(f's_add_u32 s48, s45, {16*40960}'); a(f's_add_u32 s49, s45, {32*40960}'); a(f's_bitcmp1_b32 {SH}, 3'); a(f's_cselect_b32 s49, {OOB}, s49')
    a(f's_mov_b32 {SSTEP}, 0'); a(f's_mov_b32 s83, {f2u(SC):#x}'); a(f's_mov_b32 s79, {f2u(opt.get("safe", 60.0)):#x}')
    if w != 1: a(f's_mul_i32 s81, {SH}, 384'); a(f's_add_u32 s81, s81, {PRGX_OFF + 96*128}')
    if w >= 2: a('s_mov_b32 s82, 0'); prefetch()
    if w == 0:
        a(f's_mov_b32 s45, {OOB}'); a(f'v_lshlrev_b32 v{V12}, 7, v0'); a(f'v_add_u32 v{VXS}, 8192, v{V12}'); a(f'v_min_u32 v{VXS}, 12160, v{VXS}')
    if w == 1:
        a(f'v_lshlrev_b32 v{V9}, 7, v0')
        a(f'v_cmp_eq_u32 vcc, 0, v0'); a(f'v_mov_b32 v{VT2}, 0x40000000'); a(f'v_cndmask_b32 v{VT2}, v{VT2}, 0, vcc')
        a(f's_lshl_b32 s81, {SX}, 11'); a(f's_bfe_u32 s67, {SH}, 0x20002'); a(f's_mul_i32 s67, s67, {40*128}'); a('s_add_u32 s81, s81, s67'); a(f's_add_u32 s81, s81, {PRGY_OFF}')
        a(f's_and_b32 s50, {SH}, 15'); a('s_mul_i32 s50, s50, 40960'); a(f's_lshl_b32 s67, {SX}, 14'); a('s_add_u32 s50, s50, s67'); a(f's_add_u32 s50, s50, {VOF_OFF}')
        a(f's_lshl_b32 s46, {SH}, 7'); a(f's_add_u32 s46, s46, {MPRG_OFF}'); a(f's_lshl_b32 s47, {SH}, 11'); a(f's_add_u32 s47, s47, {XN_OFF + 64*40960}')
        a(f's_cmp_ge_u32 {SH}, 10'); a(f's_cselect_b32 s46, {OOB}, s46'); a(f's_cselect_b32 s47, {OOB}, s47')
        for r in (45, 48, 49): a(f's_mov_b32 s{r}, {OOB}')
    top()
    for kb in OWN[w]: a(a_read(kb, AP[kb])[1])
    a('s_waitcnt vmcnt(0) lgkmcnt(0)')
    a(f's_branch {lent}')
    a(f'{ltop}:')
    lg.reset()
    a('s_barrier')
    a(f's_add_u32 s82, {SSTEP}, {[1, opt.get("tahead", 2) - 1, 0, 0][w]}'); prefetch()
    top()
    gather_setup(a)
    qs = opt.get('qsleep', 8) - (opt.get('qsk', 2) if w >= 2 else 0)
    if qs > 0: a(f's_sleep {qs}')
    if opt.get('qdet', 0): a(f'v_and_b32 v{VZ}, {(8 if NCH[w] == 2 else 16) - 1}, v0'); a(f'v_min_u32 v{VZ}, {4*NCH[w]-1}, v{VZ}'); a(f'v_lshlrev_b32 v{VZ}, 8, v{VZ}')
    else: a(f'v_mov_b32 v{VZ}, 0')
    a('s_waitcnt lgkmcnt(0)')
    if opt.get('mg', 1): ool = gather_m(a, NCH[w], VTMP, VQF, VTMP + 12, opt, (0, 6, 7), VZ if opt.get('qd', 1) else None, opt.get('rdep', 1), opt.get('rgap', 4))
    else: ool = gather(a, NCH[w], VTMP, {k: v for k, v in opt.items() if k != 'stamps'} if opt.get('diag') else opt, (0, 6, 7), opt.get('qrs', 0), VQF if opt.get('qj', 1) else None, VZ if opt.get('qj', 1) else None)
    a(f'{lent}:')
    lg.reset(); lg.issue('GW')
    merge(a, lg, items, sd.side)
    stamp(a, opt, 2)
    EA, EB = VB, VB + 4
    U, LM, F0, F1, LS = VB + 8, VB + 9, VB + 10, VB + 11, VB + 12
    if w < 2:
        lg.wait('KW'); a('s_barrier')
        if w == 0:
            a(f'ds_read_b128 v[{EA}:{EA+3}], v{V11}'); lg.issue('E'); a(f'ds_read_b128 v[{EB}:{EB+3}], v{V11} offset:1024'); lg.issue('E')
            for r in dense_reads(VKX, 0, 'K', range(4)): a(r[1]); lg.issue(r[2])
    for s_ in post(VACC1 + 8, VACC1 + 8): a(s_)
    a(wr(VACC1 + 8, 2, 0, '')[1]); lg.issue('KW')
    redl = [f'v_add_f32_dpp v{LS}, v{LS}, v{LS} {DPP8}', f'v_mov_b32 v{T}, v{LS}', f'v_permlane16_swap_b32 v{LS}, v{T}', f'v_add_f32 v{LS}, v{LS}, v{T}',
            f'v_mov_b32 v{T}, v{LS}', f'v_permlane32_swap_b32 v{LS}, v{T}', f'v_add_f32 v{LS}, v{LS}, v{T}', f'v_mul_f32 v{LS}, s78, v{LS}']
    if w == 0:
        lg.wait('E')
        sh = [f'v_add_f32 v{LS}, v{EA+3}, v{EB+3}', f'v_max_f32 v{U}, |v{EA+2}|, |v{EB+2}|', redl[0], redl[1], f'v_mul_f32 v{U}, 0x71800000, v{U}', redl[2], redl[3], redl[4]]
        for kk in range(4):
            lg.wait(f'K{kk}'); a(mf(SM, VKX + 4*kk, VQF + 4*kk, kk == 0))
            a(sh.pop(0)); a(sh.pop(0))
    lg.all(); a('s_barrier')
    if opt.get('diag'): stamp(a, opt, 6)
    ool3 = None
    if w == 0:
        lslow, lback = a.label('Lsm'), a.label('Lsb')
        for r in dense_reads(VKX, 0, 'K', range(4, 6)): a(r[1]); lg.issue(r[2])
        for s_ in redl[5:]: a(s_)
        for kk in range(4, 6):
            lg.wait(f'K{kk}'); a(mf(SM, VKX + 4*kk, VQF + 4*kk, False))
        stamp(a, opt, 3)
        a(f'v_cndmask_b32 v{SM}, v{SM}, v{SM+2}, {SMASK8}'); a(f'v_cndmask_b32 v{SM+1}, v{SM+1}, v{SM+3}, {SMASK8}')
        a(f'v_mul_f32 v{SM}, s83, v{SM}'); a(f'v_mul_f32 v{SM+1}, s83, v{SM+1}')
        a(f'v_exp_f32 v{SM+2}, v{SM}'); a(f'v_exp_f32 v{SM+3}, v{SM+1}')
        a(f'v_max3_f32 v{U}, |v{SM}|, |v{SM+1}|, v{U}')
        a(f'v_add_f32 v{LM}, v{SM+2}, v{SM+3}')
        a(f'v_cmp_lt_f32 vcc, s79, v{U}')
        a(f's_cbranch_vccnz {lslow}')
        a(f'{lback}:')
        a(f'v_add_f32_dpp v{LM}, v{LM}, v{LM} {DPP8}')
        a(f'v_mov_b32 v{T}, v{LM}')
        a(f'v_permlane16_swap_b32 v{LM}, v{T}'); a(f'v_add_f32 v{LM}, v{LM}, v{T}')
        a(f'v_fma_f32 v{LM}, v{LM}, s78, v{LS}')
        a(f'v_rcp_f32 v{LM}, v{LM}')
        a(f'v_mul_f32 v{EA}, v{EA}, v{LM}'); a(f'v_mul_f32 v{EA+1}, v{EA+1}, v{LM}')
        a(f'v_mul_f32 v{EB}, v{EB}, v{LM}'); a(f'v_mul_f32 v{EB+1}, v{EB+1}, v{LM}')
        a(f'v_cvt_pk_bf16_f32 v{EA}, v{EA}, v{EA+1}'); a(f'v_cvt_pk_bf16_f32 v{EA+1}, v{EB}, v{EB+1}')
        a(f'buffer_store_dwordx2 v[{EA}:{EA+1}], v{V9}, {S_WS}, s76 offen {sc}')
        a(f'v_mul_f32 v{SM+2}, v{SM+2}, v{LM}'); a(f'v_mul_f32 v{SM+3}, v{SM+3}, v{LM}')
        a(f'v_cvt_pk_bf16_f32 v{SM}, v{SM+2}, v{SM+3}')
        a(f'buffer_store_dword v{SM}, v{V10}, {S_WS}, s77 offen {sc}')
        stamp(a, opt, 4)
        if opt.get('diagp'): a('s_waitcnt vmcnt(0)')
        lkm, lkb = a.label('Lkm'), a.label('Lkb')
        a(f's_cmp_ge_u32 {SSTEP}, {4*NMB}'); a(f's_cbranch_scc1 {lkm}')
        a(f'{lkb}:')
        def ool3():
            a(f'{lkm}:')
            a(f's_mul_i32 s72, {SH}, 12288'); a(f's_bfe_u32 s67, {SSTEP}, 0x10001'); a('s_mul_i32 s67, s67, 6144'); a('s_add_u32 s72, s72, s67')
            a(f's_add_u32 s72, s72, {KF_OFF + (64 + NMB)*32*12288}'); a('s_add_u32 s73, s72, 4096')
            a(f's_bitcmp1_b32 {SSTEP}, 0'); a('s_cselect_b32 s74, 8, 0'); a('s_lshl_b32 s74, 0x00ff00ff, s74'); a('s_mov_b32 exec_lo, s74'); a('s_mov_b32 exec_hi, s74')
            for kk in range(6): a(f'buffer_store_dwordx4 v[{VKX+4*kk}:{VKX+4*kk+3}], v{VL16}, {S_WS}, s{72 + (kk >> 2)} offen offset:{(kk & 3)*1024} sc1')
            a('s_mov_b64 exec, -1')
            cprog(a)
            a(f's_branch {lkb}')
            a(f'{lslow}:')
            a(f'v_max_f32 v{U}, v{SM}, v{SM+1}'); a(f'v_max_f32_dpp v{U}, v{U}, v{U} {DPP8}')
            for s_ in allred('v_max_f32', U, T, (16,)): a(s_)
            a(f'v_max3_f32 v{U}, v{U}, v{EA+2}, v{EB+2}')
            a(f'v_sub_f32 v{SM}, v{SM}, v{U}'); a(f'v_sub_f32 v{SM+1}, v{SM+1}, v{U}'); a(f'v_sub_f32 v{F0}, v{EA+2}, v{U}'); a(f'v_sub_f32 v{F1}, v{EB+2}, v{U}')
            a(f'v_exp_f32 v{SM+2}, v{SM}'); a(f'v_exp_f32 v{SM+3}, v{SM+1}'); a(f'v_exp_f32 v{F0}, v{F0}'); a(f'v_exp_f32 v{F1}, v{F1}')
            a(f'v_mul_f32 v{LS}, v{EA+3}, v{F0}'); a(f'v_fmac_f32 v{LS}, v{EB+3}, v{F1}')
            for s_ in redl: a(s_)
            for i in range(2): a(f'v_mul_f32 v{EA+i}, v{EA+i}, v{F0}'); a(f'v_mul_f32 v{EB+i}, v{EB+i}, v{F1}')
            a(f'v_add_f32 v{LM}, v{SM+2}, v{SM+3}')
            a(f's_branch {lback}')
    stamp(a, opt, 5)
    stamp_flush(a, opt, 8)
    a(f's_add_u32 {SSTEP}, {SSTEP}, 1'); a(f's_cmp_lt_u32 {SSTEP}, 64'); a(f's_cbranch_scc1 {ltop}')
    a('s_waitcnt vmcnt(0)'); a('s_endpgm')
    ool()
    if ool3: ool3()
    if ool4: ool4()

def vo_setup(a, opt):
    common_addr(a)
    T = VTMP
    lanefn(a, VXW, lambda l: LDS_EX + tile_pat(l), T, 256)
    a(f'v_and_b32 v{T}, 1, v0'); a(f'v_cmp_ne_u32 vcc, 0, v{T}'); a(f'v_mov_b32 v{T}, 0x05040100'); a(f'v_mov_b32 v{T+1}, 0x03020706')
    a(f'v_cndmask_b32 v{VXS}, v{T}, v{T+1}, vcc')
    lanefn(a, V9, lambda l: ((l >> 4) & 1)*1024 + (l & 15)*16 + (l >> 5)*8, T, 256)
    lanefn(a, V10, lambda l: (l >> 4)*10240 + (l & 15)*16, T)
    lanefn(a, V11, lambda l: (l >> 4)*1024 + (l & 15)*16, T, 256)
    lanefn(a, V12, tile_pat, T)
    a(f's_and_b32 {SDT}, {SH}, 15'); a(f's_lshl_b32 s67, {SWV}, 4'); a(f's_add_u32 {SDT}, {SDT}, s67')
    a(f's_lshl_b32 s81, {SX}, 11'); a(f's_bfe_u32 s67, {SDT}, 0x20002'); a(f's_mul_i32 s67, s67, {40*128}'); a('s_add_u32 s81, s81, s67'); a(f's_add_u32 s81, s81, {PRGY_OFF}')
    a(f's_mul_i32 s44, {SH}, 10240'); a(f's_add_u32 s44, s44, {VOMR_OFF}'); a('s_add_u32 s45, s44, 4096'); a('s_add_u32 s46, s44, 8192')
    a(f's_mul_i32 s72, {SX}, {16*10240}'); a(f's_lshl_b32 s68, {SDT}, 8'); a('s_add_u32 s72, s72, s68'); a(f's_add_u32 s72, s72, {VOMR_OFF}')
    a('s_add_u32 s73, s72, 40960'); a('s_add_u32 s74, s73, 40960'); a('s_add_u32 s75, s74, 40960')
    a(f's_mul_i32 s49, {SX}, 12288'); a(f's_add_u32 s49, s49, {PA_OFF}'); a(f's_add_u32 s76, s49, {SCHK}')
    a(f's_mul_i32 s47, {SDT}, 40960'); a(f's_lshl_b32 s67, {SX}, 14'); a('s_add_u32 s47, s47, s67'); a(f's_add_u32 s47, s47, {VOF_OFF}')

def vom_store1(src, k, base, sc):
    if k < 2: return f'buffer_store_dwordx4 v[{src}:{src+3}], v{V11}, {S_WS}, {base[k]} offen {sc}'
    return f'buffer_store_dwordx2 v[{src}:{src+1}], v{V9}, {S_WS}, {base[2]} offen {sc}'
def memp_off(a, dst, add, dt=SDT):
    a(f's_add_u32 s67, {SSTEP}, {add}'); a('s_and_b32 s67, s67, 3'); a('s_lshl_b32 s67, s67, 1'); a(f's_add_u32 s67, s67, {SX}')
    a(f's_mul_i32 s{dst}, s67, 10240'); a(f's_lshl_b32 s{dst+1}, s67, 15'); a(f's_lshl_b32 s67, {dt}, 8')
    a(f's_add_u32 s{dst}, s{dst}, s67'); a(f's_add_u32 s{dst+1}, s{dst+1}, s67'); a(f's_add_u32 s{dst}, s{dst}, {MEML_OFF}')
    a(f's_add_u32 s{dst+1}, s{dst+1}, {SMR}'); a(f's_cmp_ge_u32 {dt}, 24'); a('s_cselect_b32 s67, 10240, 0'); a(f's_add_u32 s{dst+1}, s{dst+1}, s67')

def vo_init_clear(a):
    for r in range(4): a(f'v_mov_b32 v{VA+16+r}, -1')
    for k in range(3): a(vom_store1(VA + 16, k, ('s44', 's45', 's46'), 'sc1'))
    for sl in range(4):
        memp_off(a, 32, sl)
        a(f's_cmp_ge_u32 {SDT}, 40'); a(f's_cselect_b32 s32, {OOB}, s32'); a(f's_cselect_b32 s33, {OOB}, s33')
        a(f'buffer_store_dword v{VA+16}, v{V12}, {S_WS}, s32 offen sc1')
        a(f'buffer_store_dword v{VA+16}, v{V12}, {S_WS}, s33 offen sc1')
        a('s_add_u32 s33, s33, 8192')
        a(f'buffer_store_dword v{VA+16}, v{V12}, {S_WS}, s33 offen sc1')

VORD = [[0, 1, 2, 3, 4, 5, 6, 7, 9, 8], [3, 4, 5, 0, 1, 2, 6, 7, 9, 8], [6, 7, 2, 0, 1, 5, 3, 4, 9, 8], [8, 9, 0, 1, 3, 2, 4, 6, 5, 7]]
OORD = [0, 1, 2, 3, 4, 5, 6, 7, 8, 9]
OORD0 = [0, 2, 1, 3, 4, 6, 5, 7, 8, 9]
def pairup(acc, tmp):
    return [f'v_mov_b32_dpp v{tmp}, v{acc} quad_perm:[1,0,3,2] row_mask:0xf bank_mask:0xf', f'v_perm_b32 v{acc}, v{tmp}, v{acc}, v{VXS}']

def vo_loop(a, w, duty, sc, opt):
    n = NCH[w]; VO = VORD[w]
    lg = Trk(a, 'lgkmcnt', 15)
    ltop, lent = a.label('Lvo'), a.label('Lvoent')
    VV = VACC1; PK = VACC0
    EXO = LDS_EX - LDS_MEM
    AP = apos(w, VO)
    OA = {t: (VOX + 44 + 4*i if i < 5 else AP[VO[i - 5]]) for i, t in enumerate(OORD)}
    seq = [(kb, t) for kb in VO[:3] for t in range(3)] + [(kb, t) for t in range(3) for kb in VO[3:]]
    first = [(xfrag(kb, t, 0)[0], VACC0 + 4*t, AP[kb], xfrag(kb, t, 0)[1], [f'A{kb}']) for kb, t in seq]
    oseq = [(t, 0) for t in OORD0] + [(t, 1) for t in OORD[:3]]
    for i in range(10): oseq += [(OORD[i], 2)] + ([(OORD[i+3], 1)] if i + 3 < 10 else [])
    second = [(yfrag(tile, kb)[0], OA[tile], VV + 4*kb, yfrag(tile, kb)[1], [f'V{kb}']) for tile, kb in oseq]
    fin = {t: 30 + oseq.index((t, 2)) for t in OORD}
    items, ldsq, k2 = build_stream(first, second)
    sd = Sides()
    stream_head(sd, w, VO, AP, opt, None)
    sd.put(opt.get('gb1', 3), lambda: stamp(a, opt, 1))
    vox = lambda hh: f'buffer_load_dwordx4 v[{VOX+4*hh}:{VOX+4*hh+3}], v{VL16}, {S_WS}, s83 offen offset:{(hh & 3)*1024} {STREAM[0]}'
    vsp = opt.get('vsp', 3)
    NIN = opt.get('nin', 16)
    NE = opt.get('ne', 0)
    if duty:
        for hh in range(NE, min(NIN, 11)):
            g = opt.get('vs0', 1) + (hh - NE) * vsp
            sd.put(g, vox(hh))
            if hh & 3 == 3: sd.put(g + 1, 's_add_u32 s83, s83, 4096')
    if w == 3:
        for i in range(6): sd.put(opt.get('cl0', 1) + 4*i, f'buffer_store_dword v{VT2}, v{V12}, {S_WS}, s{52 + i} offen {"sc1" if i & 1 else sc}')
    zer = [f'v_mov_b64 v[{AP[VO[r >> 1]] + 2*(r & 1)}:{AP[VO[r >> 1]] + 2*(r & 1) + 1}], 0' for r in range(10)]
    for r in range(6): sd.valu(3*(r >> 1) + 3 + (r & 1), [zer[r]])
    wr = lambda acc, t: ('lds', f'ds_write_b32 v{VXW}, v{acc} offset:{t*1024}', f'VW{t}')
    vpost = lambda t: post(VACC0 + 4*t, VACC0 + 4*t) + [None] + pairup(VACC0 + 4*t, VACC0 + 4*t + 1) + [wr(VACC0 + 4*t, t)]
    vrd = lambda kb: ('lds', f'ds_read_b128 v[{VV+4*kb}:{VV+4*kb+3}], v{VAR} offset:{EXO + kb*1024}', f'V{kb}')
    for t, g0, per in ((0, 17, 1), (1, 24, 1), (2, 31, 2)):
        g = sd.valu(g0, vpost(t), per) + 2
        sd.put(g, ('wait', f'VW{t}')); sd.put(g, 's_barrier'); sd.lds(g, vrd(t), True)
    sd.valu(27, zer[6:])
    if opt.get('diag'): sd.put(g, lambda: stamp(a, opt, 0)); sd.put(29, lambda: stamp(a, opt, 5)); sd.put(42, lambda: stamp(a, opt, 7))
    base = ('s44', 's45', 's46')
    tail = []; gfree = 40; carry = []
    done = set()
    for i, t in enumerate(OORD):
        ins = post(OA[t], PK + t); sw = []
        if duty and 11 + i < min(NIN, 16):
            if i == 1: ins.append('s_add_u32 s83, s83, 4096')
            ins.append(vox(11 + i))
        done.add(t)
        q = t >> 2
        if q < 2 and all(4*q + j in done for j in range(4)):
            b = PK + 4*q
            sw = [f'v_permlane16_swap_b32 v{b}, v{b+1}', f'v_permlane16_swap_b32 v{b+2}, v{b+3}',
                  f'v_permlane32_swap_b32 v{b}, v{b+2}', f'v_permlane32_swap_b32 v{b+1}, v{b+3}', f'v_bfi_b32 v{b}, 1, {SSTEP}, v{b}', vom_store1(b, q, base, sc)]
        if q == 2 and 8 in done and 9 in done:
            sw = [f'v_permlane16_swap_b32 v{PK+8}, v{PK+9}', f'v_bfi_b32 v{PK+8}, 1, {SSTEP}, v{PK+8}', vom_store1(PK + 8, 2, base, sc)]
        c = list(carry); carry = sw if i < 9 else []
        if c: ins = [c[0], ins[0], c[1], ins[1], ins[2]] + c[2:] + ins[3:]
        if i == 9: ins += sw
        g = max(fin[t] + 2, gfree)
        if g < len(items) and not tail: sd.valu(g, ins, 2); gfree = sd.nxt
        else: tail += ins
    ex = []
    for g in sorted(g for g in sd.side if g >= len(items)): ex += sd.side.pop(g)
    tail = ex + tail
    sd.refills(ldsq)

    def top():
        preload_b(a, lg, ldsq)
        a(f's_bitcmp1_b32 {SSTEP}, 0'); a('s_cselect_b32 s50, 0x80008000, 0')
        if w == 3:
            a(f'v_mov_b32 v{VT2}, -1'); a(f's_and_b32 s35, {SH}, 15')
            for i in range(3):
                memp_off(a, 52 + 2*i, 2, 's35')
                if i < 2: a('s_add_u32 s35, s35, 16')
            a('s_cmp_ge_u32 s35, 40'); a(f's_cselect_b32 s56, {OOB}, s56'); a(f's_cselect_b32 s57, {OOB}, s57')
        if duty:
            memp_off(a, 77, 1)
            if opt.get('nopf'): a('s_mov_b32 s82, 0')
            else: a(f's_mov_b32 s82, {SSTEP}')
            a(f's_mul_i32 s83, s82, {40*40960}'); a('s_add_u32 s83, s83, s47'); a(f's_cmp_eq_u32 {SSTEP}, 63'); a(f's_cselect_b32 s83, {OOB}, s83')
        for r in range(0, 12, 2): a(f'v_mov_b64 v[{VACC0+r}:{VACC0+r+1}], 0')
        for r in range(0, 20, 2): a(f'v_mov_b64 v[{VOX+44+r}:{VOX+45+r}], 0')
        if duty:
            lk = a.label('Lk')
            a(f's_cmp_ge_u32 {SSTEP}, {64 if opt.get("notouch") else TFIRST}'); a(f's_cbranch_scc1 {lk}')
            check_flags(a, opt, 'Y16')
            a(f'{lk}:')
            for hh in range(NE):
                a(vox(hh))
                if hh & 3 == 3: a('s_add_u32 s83, s83, 4096')
    a(f's_mov_b32 {SSTEP}, 0')
    top()
    for kb in OWN[w]: a(a_read(kb, AP[kb])[1])
    a('s_waitcnt lgkmcnt(0)')
    a(f's_branch {lent}')
    a(f'{ltop}:')
    lg.reset()
    a('s_barrier')
    top()
    if opt.get('vsleep', 0): a(f's_sleep {opt.get("vsleep", 0)}')
    a('s_waitcnt lgkmcnt(0)')
    if opt.get('mg', 1): ool = gather_m(a, n, VACC1, VOX, VA + 36, opt, (0, 5, 7), None, opt.get('rdep', 1), opt.get('rgap', 4))
    else: ool = gather(a, n, VACC1, {k: v for k, v in opt.items() if k != 'stamps'} if opt.get('diag') else opt, (0, 0 if opt.get('diag2') else 5, 7), opt.get('vrs', 0), VA + 24 if opt.get('vj', 1) else None)
    a(f'{lent}:')
    lg.reset(); lg.issue('GW')
    merge(a, lg, items, sd.side)
    for s_ in tail:
        a(s_)
    stamp(a, opt, 3)
    lcp, lcb, lcf, lce = [a.label('Lc') for _ in range(4)]
    a(f's_cmp_ge_u32 {SSTEP}, {4*NMB}'); a(f's_cbranch_scc1 {lcp}')
    a(f'{lcb}:')
    def ool5():
        a(f'{lcp}:')
        a(f's_lshl_b32 s52, {SSTEP}, 5'); a(f's_add_u32 s52, s52, {SH}'); a('s_mul_i32 s52, s52, 10240'); a(f's_add_u32 s52, s52, {VOM_OFF}')
        a('s_add_u32 s53, s52, 4096'); a('s_add_u32 s54, s52, 8192')
        for k in range(3): a(vom_store1(PK + 4*k, k, ('s52', 's53', 's54'), 'sc1'))
        a(f's_cmp_lt_u32 {SSTEP}, 63'); a(f's_cbranch_scc1 {lcb}')
        a('s_waitcnt vmcnt(0)'); a('s_barrier')
        if w == 3: cprog(a)
        a('s_waitcnt vmcnt(0)'); a('s_endpgm')
    ACC = VB + 28
    R = VB + 16
    def ldp():
        for c in range(n): a(f'buffer_load_dwordx4 v[{R+4*c}:{R+4*c+3}], v{VL16}, {S_WS}, s76 offen offset:{c*1024} sc1')
    lt, ltd, lp, ld = [a.label('Lp') for _ in range(4)]
    PT = VA
    def pcheck_m(extra, wr=True):
        for c in range(n):
            a(f's_waitcnt vmcnt({n - 1 - c + extra})')
            b = R + 4*c
            if wr: a(f'ds_write_b128 v{VGW}, v[{b}:{b+3}] offset:{c*1024}')
            a(f'v_bitop3_b32 v{PT+c}, v{b}, v{b+2}, s50 bitop3:0x7e')
            if w == 3: a(f'v_bitop3_b32 v{PT+3}, v{b+1}, v{b+3}, s50 bitop3:0x7e'); a(f'v_or_b32 v{PT+c}, v{PT+c}, v{PT+3}')
            a(f'v_cmp_gt_i32 {ML[c]}, 0, v{PT+c}')
        mask_or(a, ML[:n])
    MV = MR + ['s[30:31]']
    def ldv(ms=None):
        for q in range(4):
            if ms: a(f's_mov_b64 exec, {ms[q]}')
            a(f'buffer_load_dwordx4 v[{VB+4*q}:{VB+4*q+3}], v{V10}, {S_WS}, s{72+q} offen sc1')
        if ms: a('s_mov_b64 exec, -1')
    def vcheck():
        a(f's_waitcnt vmcnt({n})')
        for q in range(4):
            if w < 2: a(f'v_bitop3_b32 v{PT+4+q}, v{VB+4*q}, {SSTEP}, 1 bitop3:0x28')
            else: a(f'v_bitop3_b32 v{PT+4+q}, v{VB+4*q}, v{VB+4*q+2}, {SSTEP} bitop3:0x7e'); a(f'v_and_b32 v{PT+4+q}, 1, v{PT+4+q}')
        for q in range(4): a(f'v_cmp_ne_u32 {MV[q]}, 0, v{PT+4+q}')
        mask_or(a, MV)
    gather_setup(a, 1)
    ts = opt.get('tsleep', 2) if duty else opt.get('nsleep', 5)
    if ts: a(f's_sleep {ts}')
    if duty:
        ldv(); ldp()
        for r in range(4): a(f'v_mov_b32 v{ACC+r}, 0')
        vcheck()
        a(f's_cbranch_scc1 {lt}')
        a(f'{ltd}:')
        stamp(a, opt, 2)
    else: ldp()
    pcheck_m(0)
    a(f's_cbranch_scc1 {lp}')
    a(f'{ld}:')
    stamp(a, opt, 4)
    def ool2():
        if duty:
            a(f'{lt}:')
            pcheck_m(0, False)
            ldv(MV); ld_masked(a, n, R, 's76', ML)
            vcheck()
            a(f's_cbranch_scc0 {ltd}')
            budget_loop(a, lt, ltd)
        a(f'{lp}:')
        ld_masked(a, n, R, 's76', ML); pcheck_m(0)
        a(f's_cbranch_scc0 {ld}')
        budget_loop(a, lp, ld)
    if not duty: a('s_waitcnt lgkmcnt(0)'); a('s_barrier')
    if duty:
        bop = lambda pp: f'v[{VOX+8*pp}:{VOX+8*pp+7}]' if pp < 8 else f'v[{VB+8*(pp-8)}:{VB+8*(pp-8)+7}]'
        rest = [c for c in range(10) if c not in OWN[w]]
        a(smf(ACC, R, bop(OWN[w][0])))
        a('s_waitcnt lgkmcnt(0)'); a('s_barrier')
        for c in rest[:3]: a(f'ds_read_b128 v[{VA+4*c}:{VA+4*c+3}], v{VAR} offset:{c*1024}')
        k = 3
        for j in range(1, n):
            a(smf(ACC, R + 4*j, bop(OWN[w][j])))
            for c in rest[k:k+2]: a(f'ds_read_b128 v[{VA+4*c}:{VA+4*c+3}], v{VAR} offset:{c*1024}')
            k += 2
        for c in rest[k:]: a(f'ds_read_b128 v[{VA+4*c}:{VA+4*c+3}], v{VAR} offset:{c*1024}')
        for j, pp in enumerate(rest):
            a(f's_waitcnt lgkmcnt({len(rest)-1-j})')
            a(smf(ACC, VA + 4*pp, bop(pp)))
        for s_ in post(ACC, ACC): a(s_)
        a(f'v_xor_b32 v{ACC}, s50, v{ACC}')
        for s_ in pairup(ACC, ACC + 1): a(s_)
        for so, fl in ([('s78', 'sc1'), ('s77', sc)] if opt.get('rfirst') else [('s77', sc), ('s78', 'sc1')]):
            a(f'buffer_store_dword v{ACC}, v{V12}, {S_WS}, {so} offen {fl}')
        stamp(a, opt, 6)
        if opt.get('diagp'): a('s_waitcnt vmcnt(1)'); stamp(a, opt, 2); a('s_waitcnt vmcnt(0)'); stamp(a, opt, 3)
    elif w == 3:
        lnc = a.label('Lnx')
        a(f's_cmp_lt_u32 {SSTEP}, {4*NMB}'); a(f's_cbranch_scc1 {lnc}')
        cprog(a)
        a(f'{lnc}:')
    stamp_flush(a, opt, 8)
    a(f's_add_u32 {SSTEP}, {SSTEP}, 1'); a(f's_branch {ltop}')
    ool(); ool2(); ool5()

def chain_main(a, opt):
    lvo = a.label('Lrole_vo')
    tstamp(a, opt, 0, (14, 15))
    STREAM[0] = opt.get('stream', 'sc1')
    a(f's_lshr_b32 {SX}, {SSLOT}, 5'); a(f's_and_b32 s67, {SSLOT}, 15'); a(f's_lshl_b32 {SH}, {SX}, 4'); a(f's_add_u32 {SH}, {SH}, s67')
    a(f's_mov_b32 {STMO}, {opt.get("tmo", 1 << 21)}'); a(f's_mov_b32 {SSTEP}, 0')
    srd(a, S_AUX, 's[38:39]', 8*640*2)
    a(f's_add_u32 {SMR}, s60, {MEMR_OFF + 0x7ffff}'); a(f's_and_b32 {SMR}, {SMR}, 0xfff80000'); a(f's_sub_u32 {SMR}, {SMR}, s60')
    a(f's_mul_i32 s58, {SWV}, 3072'); a(f's_lshl_b32 s67, {SWV}, 11'); a('s_add_u32 s67, s67, 12288'); a(f's_cmp_ge_u32 {SWV}, 2'); a('s_cselect_b32 s58, s67, s58')
    a(f's_mov_b32 {S_ONE0}, 0x00003f80'); a(f's_mov_b32 {S_ONE1}, 0x3f800000')
    a(f's_bitcmp1_b32 {SSLOT}, 4'); a(f's_cbranch_scc1 {lvo}')
    for role in ('qk', 'vo'):
        if role == 'vo': a(f'{lvo}:')
        if role == 'qk':
            srd(a, S_WA, 's[40:41]', 640*6144*2); srd(a, S_WB, 's[42:43]', 640*6144*2); qk_setup(a, opt)
        else:
            srd(a, S_WA, 's[44:45]', 640*6144*2); srd(a, S_WB, 's[46:47]', 640*6144*2); vo_setup(a, opt)
        l1, l2, l3 = a.label('Ls'), a.label('Ls'), a.label('Ls')
        a(f's_mov_b32 {SPC}, 0')
        a(f's_cmp_lg_u32 {SWV}, 0'); a(f's_cbranch_scc1 {l2}')
        mem0_load(a)
        a(f'{l2}:')
        def after_first(n, vm):
            if n == 0:
                a(f's_cmp_lg_u32 {SWV}, 0'); a(f's_cbranch_scc1 {l3}')
                mem0_write(a)
                a(f'{l3}:')
            if n == 1: rot_load(a, 172, 173); vm.issue('rot')
            if n == 13:
                rot_check(a, 172, 173, True)
                if role == 'vo':
                    vo_init_clear(a)
                    for _ in range(15): vm.issue('init')
                a(f's_cmp_lg_u32 {SWV}, 0'); a(f's_cbranch_scc1 {l1}')
                if role == 'qk': qk_init_clear(a)
                a(f's_lshl_b32 s67, 1, {SXCC}'); a(f'v_mov_b32 v{VT0}, s67'); a(f's_lshl_b32 s67, {SX}, 2'); a(f'v_mov_b32 v{VT1}, s67')
                a('s_mov_b64 exec, 1')
                a(f'buffer_atomic_or v{VT0}, v{VT1}, {S_DBG}, 0 offen sc1')
                a('s_mov_b64 exec, -1')
                a(f'{l1}:')
            if n == 25:
                l4 = a.label('Ls')
                a(f's_cmp_lg_u32 {SWV}, 0'); a(f's_cbranch_scc1 {l4}')
                a(f'v_mov_b32 v{VT0}, 1'); a(f'v_mov_b32 v{VT1}, {DBG_READY*4}')
                a('s_mov_b64 exec, 1')
                a(f'buffer_atomic_add v{VT0}, v{VT1}, {S_DBG}, 0 offen sc1')
                a('s_mov_b64 exec, -1')
                a(f'{l4}:')
        loader(a, role, after_first)
        tstamp(a, opt, 1, (14, 15))
        lp, ld, lslow = a.label('Lr'), a.label('Lrd'), a.label('Lslow')
        a(f'v_lshlrev_b32 v{VT1}, 2, v0')
        a(f'{lp}:')
        a(f'buffer_load_dword v{VT0}, v{VT1}, {S_DBG}, 0 offen sc1'); a('s_waitcnt vmcnt(0)')
        a(f'v_readlane_b32 s67, v{VT0}, {DBG_READY}')
        a(f'v_readlane_b32 s68, v{VT0}, {DBG_VOTE}'); a(f's_cmp_lt_u32 s68, {NAREA*256}'); a('s_cselect_b32 s67, 0, s67')
        if not opt.get('noflags'):
            a(f'v_readlane_b32 s68, v{VT0}, {DBG_AREA}'); a(f's_cmp_lt_u32 s68, {NAREA}'); a('s_cselect_b32 s67, 0, s67')
        a(f's_cmp_eq_u32 {STMO}, 0'); a(f's_cbranch_scc1 {ld}')
        a(f's_sub_u32 {STMO}, {STMO}, 1')
        a('s_cmp_lt_u32 s67, 64'); a(f's_cbranch_scc1 {lp}')
        a(f'{ld}:')
        a(f'v_readlane_b32 s67, v{VT0}, {DBG_VOTE}'); a('s_and_b32 s67, s67, 255'); a(f's_cmp_gt_u32 s67, {NAREA//2}'); a('s_cselect_b32 s67, 1, 0')
        a(f'v_readlane_b32 s68, v{VT0}, 0'); a('s_cmp_gt_u32 s68, 15'); a('s_cselect_b32 s68, 1, 0'); a('s_xor_b32 s67, s67, s68'); a('s_lshl_b32 s67, s67, 13')
        if 'par' in opt: a(f's_mov_b32 s67, {opt["par"]*8192}')
        a(f's_add_u32 {SMR}, {SMR}, s67')
        a(f'v_readlane_b32 s67, v{VT0}, 0'); a(f'v_readlane_b32 s68, v{VT0}, 1')
        a('s_bcnt1_i32_b32 s67, s67'); a('s_bcnt1_i32_b32 s68, s68'); a('s_max_u32 s67, s67, s68')
        if opt.get('force_slow'): a('s_mov_b32 s67, 2')
        a('s_cmp_lg_u32 s67, 1'); a(f's_cbranch_scc1 {lslow}')
        for sc in ('', 'sc1'):
            if sc: a(f'{lslow}:')
            if role == 'qk':
                labs = [a.label('Lw') for _ in range(4)]
                for w in range(1, 4): a(f's_cmp_eq_u32 {SWV}, {w}'); a(f's_cbranch_scc1 {labs[w]}')
                for w in range(4):
                    a(f'{labs[w]}:'); qk_loop(a, w, sc, opt)
            else:
                labs = [a.label('Lw') for _ in range(5)]
                a(f's_cmp_eq_u32 {SWV}, 1'); a(f's_cbranch_scc1 {labs[1]}'); a(f's_cmp_eq_u32 {SWV}, 3'); a(f's_cbranch_scc1 {labs[4]}')
                a(f's_cmp_ge_u32 {SDT}, 40'); a(f's_cbranch_scc1 {labs[3]}'); a(f's_cmp_eq_u32 {SWV}, 2'); a(f's_cbranch_scc1 {labs[2]}')
                for i, (w, duty) in enumerate([(0, True), (1, True), (2, True), (2, False), (3, False)]):
                    a(f'{labs[i]}:'); vo_loop(a, w, duty, sc, opt)
```

```python
from common import *

SC = 0.07216878364870322 * 1.4426950408889634

def wfrag(f, half=None):
    if f < 32: k, b = 'a', f * 8
    else: k, b = 'v', 176 + (f - 32) * 8
    if half is None: return f'{k}[{b}:{b+7}]'
    return k, b + 4 * half

VL16, VGW, VAR, VFR, VXW, VXS, VDR, VIDX, V9, V10, V11, V12, VT0, VT1, VT2 = range(1, 16)
VA = 16
VACC0 = 56
VACC1 = 68
VB = 80
VKX = 112
VQF = 136
VTMP = 160
VOX = 112
SSTEP, SH, SX, SDT = 's62', 's63', 's64', 's66'
SMASK8 = 's[70:71]'
SCM = [f's[{72+2*r}:{73+2*r}]' for r in range(4)]
SCHK = 's80'
S_ONE0, S_ONE1 = 's100', 's101'
NCH = [3, 3, 2, 2]
OWN = [[0, 1, 2], [3, 4, 5], [6, 7], [8, 9]]
REGKB = [0, 1, 3, 4, 6, 7, 8]; LDSKB = [2, 5, 9]
REGT = [0, 2, 3, 4, 6, 7, 8]; LDST = [1, 5, 9]
def yfrag(tile, kb):
    if tile in REGT: return 'reg', 21 + REGT.index(tile)*3 + kb
    return 'lds', 9 + LDST.index(tile)*3 + kb
def xfrag(kb, t, second):
    if kb in REGKB: return 'reg', t*7 + REGKB.index(kb) + (21 if second else 0)
    return 'lds', LDSKB.index(kb)*3 + t + (9 if second else 0)
def apos(w, order):
    ap = {kb: VA + 8*c for c, kb in enumerate(OWN[w])}
    free = [VA + 4*i for i in range(10) if VA + 4*i not in ap.values()]
    for kb in order:
        if kb not in ap: ap[kb] = free.pop(0)
    return ap
STREAM = ['sc1 nt']

def tile_pat(l):
    g, c = l >> 4, l & 15
    return (4*g + 2*(c & 1) + (c >> 3))*16 + ((c >> 1) & 3)*4

def common_addr(a):
    T = VTMP
    a(f'v_lshlrev_b32 v{VL16}, 4, v0')
    a(f's_mul_i32 s6, {SWV}, 3'); a(f's_lshl_b32 s7, {SWV}, 1'); a('s_add_u32 s7, s7, 2'); a('s_min_u32 s6, s6, s7')
    a(f's_lshl_b32 {SCHK}, s6, 10')
    a(f'v_add_u32 v{VAR}, {LDS_MEM}, v{VL16}'); a(f'v_add_u32 v{VGW}, {SCHK}, v{VAR}')
    lanefn(a, VFR, lambda l: l*16, T, 36864)
    lanefn(a, VIDX, lambda l: 0x4444 + (l & 1)*0xaaaa, T)
    a(f'v_and_b32 v{T}, 8, v0'); a(f'v_cmp_ne_u32 {SMASK8}, 0, v{T}')

def loader(a, role, after_first=None, dep=11):
    vm = Trk(a, 'vmcnt', 63)
    T = 160
    VD0, VD1, VR0 = T, T + 1, T + 2
    dma_voff(a, VD0, 12288, T + 8, T + 9); dma_voff(a, VD1, 1280, T + 8, T + 9)
    for aa in range(2):
        R = VR0 + 3*aa
        row = lambda l: 4*((l >> 4) & 1) + 2*aa + ((l >> 2) & 1)
        lanefn(a, T + 8, lambda l: row(l) & 6, T + 10); lanefn(a, T + 9, lambda l: (l >> 1) & 1, T + 10, 2)
        a(f'v_xor_b32 v{T+9}, v{T+9}, v{T+8}')
        lanefn(a, R, lambda l: (l >> 5)*2048 + ((l >> 3) & 1)*1024 + row(l)*128 + (l & 1)*8, T + 10)
        a(f'v_lshl_add_u32 v{R}, v{T+9}, 4, v{R}')
        a(f'v_add_u32 v{R+1}, 49152, v{R}'); a(f'v_add_u32 v{R+2}, 98304, v{R}')
    a(f's_mul_i32 s68, {SH}, 384'); a(f's_mul_i32 s67, {SWV}, {8*12288}'); a('s_add_u32 s68, s68, s67')
    a(f's_mul_i32 s69, {SH}, {192*1280}'); a(f's_mul_i32 s67, {SWV}, {8*1280}'); a('s_add_u32 s69, s69, s67')
    a(f's_lshl_b32 s7, {SWV}, 10')
    k2 = 'X' if role == 'qk' else 'Y'
    slabs = [('X', S_WA, i) for i in range(14)] + [(k2, S_WB, i) for i in range(14)] + \
            [('X', S_WA, i) for i in range(14, 20)] + [(k2, S_WB, i) for i in range(14, 20)]
    def dma(n):
        kind, sr, i = slabs[n]
        for c in range(3):
            a(f's_add_u32 m0, s7, {(n % 12)*LDS_SLAB + c*4096}')
            if kind == 'X': a(f's_add_u32 s67, s68, {(2*(REGKB + LDSKB)[i >> 1] + (i & 1))*32*12288 + c*128}')
            else: a(f's_add_u32 s67, s69, {((i&1)*96 + c*32)*1280 + (REGT + LDST)[i >> 1]*128}')
            a(f'buffer_load_dwordx4 v{VD0 if kind=="X" else VD1}, {sr}, s67 offen lds')
            vm.issue(n)
    def dest(n, c):
        kind, sr, i = slabs[n]
        second = (n >= 14) if n < 28 else (n >= 34)
        if kind == 'X': t, kb, half = c, i >> 1, i & 1; f = t * 7 + kb; lf = (kb - 7) * 3 + t
        else:
            ks = (i & 1) * 3 + c; kb, half = ks >> 1, ks & 1; tile = i >> 1
            f = tile * 3 + kb; lf = (tile - 7) * 3 + kb
        if second: f += 21; lf += 9
        return f, lf, half
    def reads(n):
        slot = n % 12
        base = VR0 + slot // 4; off0 = (slot % 4) * LDS_SLAB
        for c in range(3):
            f, lf, half = dest(n, c)
            if n < 28: k, b = wfrag(f, half)
            else: k, b = 'v', 16 + lf * 8 + half * 4
            for aa in range(2):
                a(f'ds_read_b64_tr_b16 {k}[{b+2*aa}:{b+2*aa+1}], v{base + 3*aa} offset:{off0 + c*4096}')
    for n in range(dep): dma(n)
    for n in range(40):
        vm.wait(n)
        a('s_waitcnt lgkmcnt(0)')
        a('s_barrier')
        if n + dep < 40: dma(n + dep)
        reads(n)
        after_first(n, vm)
    a('s_waitcnt lgkmcnt(0)'); a('s_barrier')
    for lf in range(18):
        for half in range(2):
            b = 16 + lf * 8 + half * 4
            a(f'ds_write_b128 v{VFR}, v[{b}:{b+3}] offset:{lf*2048 + half*1024}')
    a('s_waitcnt lgkmcnt(0)')

def mem0_load(a):
    lanefn(a, 18, lambda l: (l & 7)*1280 + (l >> 3)*16, 16)
    lanefn(a, 19, lambda l: LDS_MEM + (l >> 4)*256 + (2*(l & 7) + ((l >> 3) & 1))*16, 16)
    for n in range(10): a(f'buffer_load_dwordx4 v[{24+4*n}:{27+4*n}], v18, {S_AUX}, 0 offen offset:{n*128}')
def mem0_write(a):
    for n in range(10): a(f'ds_write_b128 v19, v[{24+4*n}:{27+4*n}] offset:{n*1024}')

def maxchk(a, regs, first=True):
    regs = list(regs)
    if first:
        a(f'v_max3_u32 v{VT0}, v{regs[0]}, v{regs[1]}, v{regs[2]}'); regs = regs[3:]
    while regs:
        if len(regs) >= 2: a(f'v_max3_u32 v{VT0}, v{VT0}, v{regs[0]}, v{regs[1]}'); regs = regs[2:]
        else: a(f'v_max_u32 v{VT0}, v{VT0}, v{regs[0]}'); regs = []


def gather_setup(a, step_add=0):
    a(f's_add_u32 s67, {SSTEP}, {step_add}'); a('s_and_b32 s67, s67, 3'); a('s_lshl_b32 s67, s67, 1')
    a(f's_add_u32 s68, s67, 1'); a(f's_sub_u32 s68, s68, {SX}'); a(f's_add_u32 s67, s67, {SX}')
    a('s_mul_i32 s67, s67, 10240'); a('s_lshl_b32 s68, s68, 15')
    a(f's_add_u32 s33, s68, {SMR}'); a('s_add_u32 s33, s33, s58')
    a(f's_add_u32 s32, s67, {SCHK}'); a(f's_add_u32 s32, s32, {MEML_OFF}')

def gather(a, n, R, opt, st, rsleep=0, R2=None, det=None):
    ld = lambda r, so: [a(f'buffer_load_dwordx4 v[{r+4*c}:{r+4*c+3}], v{VL16}, {S_WS}, {so} offen offset:{c*1024} sc1') for c in range(n)]
    def chk(r, k=0): a(f's_waitcnt vmcnt({k})'); maxchk(a, range(r, r + 4*n)); a(f'v_cmp_eq_u32 vcc, -1, v{VT0}')
    l1, l1ok, l2, l2ok = [a.label('Lg') for _ in range(4)]
    if det is not None:
        l0, l0d = a.label('Lg'), a.label('Lg')
        a(f'{l0}:')
        a(f'buffer_load_dword v{R}, v{det}, {S_WS}, s32 offen sc1'); a('s_waitcnt vmcnt(0)'); a(f'v_cmp_eq_u32 vcc, -1, v{R}')
        poll_tail(a, l0, l0d)
    stamp(a, opt, st[0])
    if R2 is None:
        a(f'{l1}:')
        ld(R, 's32'); chk(R)
        poll_tail(a, l1, l1ok)
    else:
        ld(R, 's32'); ld(R2, 's33'); chk(R, n)
        a(f's_cbranch_vccnz {l1}')
        a(f'{l1ok}:')
    stamp(a, opt, st[1])
    for c in range(n):
        for i in range(4):
            a(f'v_lshlrev_b32 v{VA+8*c+2*i}, 16, v{R+4*c+i}'); a(f'v_and_b32 v{VA+8*c+2*i+1}, 0xffff0000, v{R+4*c+i}')
    Q = R if R2 is None else R2
    if R2 is None:
        if rsleep: a(f's_sleep {rsleep}')
        ld(Q, 's33')
    chk(Q)
    a(f's_cbranch_vccnz {l2}')
    a(f'{l2ok}:')
    stamp(a, opt, st[2])
    for c in range(n):
        b = VA + 8*c
        for i in range(4):
            a(f'v_dot2c_f32_bf16 v{b+2*i}, {S_ONE0}, v{Q+4*c+i}'); a(f'v_dot2c_f32_bf16 v{b+2*i+1}, {S_ONE1}, v{Q+4*c+i}')
        for i in range(4): a(f'v_cvt_pk_bf16_f32 v{b+i}, v{b+2*i}, v{b+2*i+1}')
        a(f'ds_write_b128 v{VGW}, v[{b}:{b+3}] offset:{c*1024}')
    def outofline():
        if R2 is not None:
            a(f'{l1}:')
            ld(R, 's32'); ld(R2, 's33'); chk(R, n)
            a(f's_cbranch_vccz {l1ok}')
            budget_loop(a, l1, l1ok)
        a(f'{l2}:')
        ld(Q, 's33'); chk(Q)
        a(f's_cbranch_vccz {l2ok}')
        budget_loop(a, l2, l2ok)
    return outofline

ML = ['s[16:17]', 's[18:19]', 's[20:21]']; MR = ['s[22:23]', 's[24:25]', 's[26:27]']; MOR = 's[28:29]'
def mask_or(a, ms):
    a(f's_or_b64 {MOR}, {ms[0]}, {ms[1]}')
    for m in ms[2:]: a(f's_or_b64 {MOR}, {MOR}, {m}')
def ld_masked(a, n, r, so, ms=None):
    for c in range(n):
        if ms: a(f's_mov_b64 exec, {ms[c]}')
        a(f'buffer_load_dwordx4 v[{r+4*c}:{r+4*c+3}], v{VL16}, {S_WS}, {so} offen offset:{c*1024} sc1')
    if ms: a('s_mov_b64 exec, -1')

def gather_m(a, n, R, Q, T, opt, st, det, dep, gap):
    def chk(r, ms, k):
        a(f's_waitcnt vmcnt({k})')
        for c in range(n): a(f'v_max3_u32 v{T+c}, v{r+4*c}, v{r+4*c+1}, v{r+4*c+2}')
        for c in range(n): a(f'v_max_u32 v{T+c}, v{T+c}, v{r+4*c+3}')
        for c in range(n): a(f'v_cmp_eq_u32 {ms[c]}, -1, v{T+c}')
        mask_or(a, ms[:n])
    l1, l1ok, l2, l2b, l2ok = [a.label('Lg') for _ in range(5)]
    if det is not None:
        l0, l0d = a.label('Lg'), a.label('Lg')
        a(f'{l0}:')
        a(f'buffer_load_dword v{R}, v{det}, {S_WS}, s32 offen sc1'); a('s_waitcnt vmcnt(0)'); a(f'v_cmp_eq_u32 vcc, -1, v{R}')
        poll_tail(a, l0, l0d)
    stamp(a, opt, st[0])
    ld_masked(a, n, R, 's32'); ld_masked(a, n, Q, 's33'); chk(R, ML, n)
    a(f's_cbranch_scc1 {l1}')
    a(f'{l1ok}:')
    stamp(a, opt, st[1])
    for c in range(n):
        for i in range(4):
            a(f'v_lshlrev_b32 v{VA+8*c+2*i}, 16, v{R+4*c+i}'); a(f'v_and_b32 v{VA+8*c+2*i+1}, 0xffff0000, v{R+4*c+i}')
    chk(Q, MR, 0)
    a(f's_cbranch_scc1 {l2}')
    a(f'{l2ok}:')
    stamp(a, opt, st[2])
    for c in range(n):
        b = VA + 8*c
        for i in range(4):
            a(f'v_dot2c_f32_bf16 v{b+2*i}, {S_ONE0}, v{Q+4*c+i}'); a(f'v_dot2c_f32_bf16 v{b+2*i+1}, {S_ONE1}, v{Q+4*c+i}')
        for i in range(4): a(f'v_cvt_pk_bf16_f32 v{b+i}, v{b+2*i}, v{b+2*i+1}')
        a(f'ds_write_b128 v{VGW}, v[{b}:{b+3}] offset:{c*1024}')
    def outofline():
        a(f'{l1}:')
        ld_masked(a, n, R, 's32', ML); chk(Q, MR, n)
        ld_masked(a, n, Q, 's33', MR); chk(R, ML, n)
        a(f's_cbranch_scc0 {l1ok}')
        budget_loop(a, l1, l1ok)
        a(f'{l2}:')
        for _ in range(dep - 1):
            ld_masked(a, n, Q, 's33', MR); a(f's_sleep {gap}')
        a(f'{l2b}:')
        ld_masked(a, n, Q, 's33', MR); chk(Q, MR, n*(dep - 1))
        a(f's_cbranch_scc0 {l2ok}')
        budget_loop(a, l2b, l2ok)
    return outofline

def a_read(kb, reg):
    return ('lds', f'ds_read_b128 v[{reg}:{reg+3}], v{VAR} offset:{kb*1024}', f'A{kb}')
def frag_reads(lf, slot):
    return [('lds', f'ds_read_b128 v[{VB+8*slot+4*x}:{VB+8*slot+4*x+3}], v{VFR} offset:{lf*2048 + x*1024}', f'F{lf}') for x in range(2)]
def smf(acc, A, B): return f'v_smfmac_f32_16x16x64_bf16 v[{acc}:{acc+3}], v[{A}:{A+3}], {B}, v{VIDX}'
def post(acc, out):
    return [f'v_add_f32 v{acc}, v{acc}, v{acc+1}', f'v_add_f32 v{acc+2}, v{acc+2}, v{acc+3}', f'v_cvt_pk_bf16_f32 v{out}, v{acc}, v{acc+2}']

def allred(op, v, t, stages=(16, 32)):
    r = []
    for st in stages: r += [f'v_mov_b32 v{t}, v{v}', f'v_permlane{st}_swap_b32 v{v}, v{t}', f'{op} v{v}, v{v}, v{t}']
    return r

def stamp_flush(a, opt, n):
    if not opt.get('stamps'): return
    a('s_waitcnt lgkmcnt(0)')
    a(f's_lshl_b32 s67, {SSLOT}, 2'); a(f's_add_u32 s67, s67, {SWV}'); a('s_lshl_b32 s67, s67, 6'); a(f's_add_u32 s67, s67, {SSTEP}')
    a('s_lshl_b32 s67, s67, 6'); a(f's_add_u32 s67, s67, {STAMP_OFF}')
    a(f'v_lshlrev_b32 v{VT1}, 2, v0')
    for i in range(n): a(f'v_writelane_b32 v{VT0}, s{STAMP0+2*i}, {i}')
    a('s_mov_b64 exec, 0xffff')
    a(f'buffer_store_dword v{VT0}, v{VT1}, {S_WS}, s67 offen')
    a('s_mov_b64 exec, -1')

SPC = 's60'
SMR = 's59'
SELF = 8
def check_flags(a, opt, kind, skip=None):
    if opt.get('noflags'): return
    lp, ld = a.label('Lf'), a.label('Lfd')
    a(f's_sub_u32 s61, s82, {LEAD-4}'); a('s_max_i32 s61, s61, 0'); a('s_lshr_b32 s61, s61, 2'); a('s_add_u32 s61, s61, s82')
    a(f's_cmp_gt_u32 {SPC}, s61'); a(f's_cbranch_scc1 {ld}')
    if kind == 'K': a(f'v_and_b32 v{VT1}, 15, v0'); a(f'v_min_u32 v{VT1}, 2, v{VT1}'); a(f'v_lshlrev_b32 v{VT1}, 7, v{VT1}')
    elif kind == 'Y16': a(f'v_and_b32 v{VT1}, 15, v0'); a(f'v_lshlrev_b32 v{VT1}, 7, v{VT1}')
    else: a(f'v_and_b32 v{VT1}, 3, v0'); a(f'v_mul_u32_u24 v{VT1}, {40*128}, v{VT1}')
    a(f'{lp}:')
    a(f'buffer_load_dword v{VT0}, v{VT1}, {S_WS}, s81 offen sc1'); a('s_waitcnt vmcnt(0)')
    for r in (8, 4, 2, 1): a(f'v_min_u32_dpp v{VT0}, v{VT0}, v{VT0} row_ror:{r} row_mask:0xf bank_mask:0xf')
    a(f'v_readfirstlane_b32 {SPC}, v{VT0}')
    a(f's_cmp_gt_u32 {SPC}, s61'); a(f's_cbranch_scc1 {ld}')
    if skip: a(f's_cmp_lt_u32 s82, {opt.get("self", SELF)}'); a(f's_cbranch_scc1 {skip}')
    budget_loop(a, lp, ld)
    a(f'{ld}:')

def cprog(a):
    a('s_waitcnt vmcnt(0)')
    a(f's_lshl_b32 s67, {SSLOT}, 7'); a(f's_add_u32 s67, s67, {CPRG_OFF}'); a(f's_add_u32 s68, {SSTEP}, 1'); a(f'v_mov_b32 v{VT0}, s68'); a(f'v_mov_b32 v{VT1}, 0')
    a('s_mov_b64 exec, 1')
    a(f'buffer_store_dword v{VT0}, v{VT1}, {S_WS}, s67 offen sc1')
    a('s_mov_b64 exec, -1')

def load_frags6(a, dst, base_off, ct, seg='s82'):
    a(f's_lshl_b32 s67, {seg}, 5'); a(f's_add_u32 s67, s67, {SH}'); a('s_mul_i32 s67, s67, 12288')
    a(f's_add_u32 s67, s67, {base_off + ct*6144}'); a('s_add_u32 s68, s67, 4096')
    for kk in range(6):
        a(f'buffer_load_dwordx4 v[{dst+4*kk}:{dst+4*kk+3}], v{VL16}, {S_WS}, {"s67" if kk < 4 else "s68"} offen offset:{(kk&3)*1024} {STREAM[0]}')

def build_stream(first_items, second_items):
    items = []; ldsq = []; idx2 = {}
    def add(it):
        kind, acc, A, ref, needs = it
        if kind == 'reg': items.append((smf(acc, A, wfrag(ref)), needs))
        elif kind == 'lds':
            sl = len(ldsq) % 4; ldsq.append((len(items), ref, sl))
            items.append((smf(acc, A, f'v[{VB+8*sl}:{VB+8*sl+7}]'), needs + [f'F{ref}']))
        else: items.append((ref, needs))
    for it in first_items: add(it)
    n = 0
    for it in second_items:
        if it[0] != 'raw': idx2[n] = len(items); n += 1
        add(it)
    return items, ldsq, idx2

class Sides:
    def __init__(self): self.side = {}; self.busy = set(); self.vbusy = {}
    def put(self, g, r): self.side.setdefault(g, []).append(r)
    def lds(self, g, r, force=False):
        if not force:
            while g in self.busy: g += 1
        self.put(g, r); self.busy.add(g); return g
    def valu(self, g, instrs, per=1):
        last = g - 1; end = g
        for s in instrs:
            if s is None: g = last + 2; continue
            if isinstance(s, tuple): self.lds(last + 1, s, True); end = max(end, last + 2); continue
            if not s.startswith('v_'): self.put(last + 1, s); end = max(end, last + 2); continue
            while self.vbusy.get(g, 0) >= per: g += 1
            self.put(g, s); self.vbusy[g] = self.vbusy.get(g, 0) + 1; last = g; end = max(end, g + 1)
        self.nxt = g
        return end
    def refills(self, ldsq):
        for n in range(len(ldsq) - 4):
            g = ldsq[n][0]
            lim = ldsq[n+4][0] - 6
            for r in frag_reads(ldsq[n+4][1], ldsq[n][2]):
                g2 = g
                while g2 in self.busy: g2 += 1
                if g2 <= lim: g = self.lds(g2, r)
                else: g = self.lds(max(g, min(lim, g + 1)), r, True)
                assert g < ldsq[n+4][0] - 1, (n, g, ldsq[n+4])

DPP8 = 'row_ror:8 row_mask:0xf bank_mask:0xf'
def dense_reads(dst, off, tagp, kks=range(6)):
    return [('lds', f'ds_read_b64_tr_b16 v[{dst+4*kk+2*x}:{dst+4*kk+2*x+1}], v{VDR} offset:{off + (2*kk+x)*256}', f'{tagp}{kk}')
            for kk in kks for x in range(2)]

def preload_b(a, lg, ldsq):
    for n in range(4):
        for r in frag_reads(ldsq[n][1], ldsq[n][2]): a(r[1]); lg.issue(r[2])

QORD = [[0, 1, 2, 3, 4, 5, 6, 7, 9, 8], [3, 4, 5, 0, 1, 2, 6, 7, 9, 8], [6, 7, 2, 0, 1, 5, 3, 4, 9, 8], [8, 9, 0, 1, 2, 3, 4, 6, 5, 7]]
KORD = [0, 2, 1, 3, 5, 4, 6, 9, 7, 8]

def qk_setup(a, opt):
    common_addr(a)
    T = VTMP
    rho = lambda l: 2*(l & 7) + ((l >> 3) & 1)
    lanefn(a, VXW, lambda l: LDS_MEM + (l & 15)*16 + (l >> 4)*4, T, 256)
    lanefn(a, VDR, lambda l: LDS_MEM + (l >> 2)*16 + (l & 1)*8, T)
    lanefn(a, V9, lambda l: (l >> 5)*256 + rho(l)*16 + ((l >> 4) & 1)*8, T)
    lanefn(a, V10, lambda l: rho(l)*16 + ((l >> 4) & 1)*4, T)
    lanefn(a, V11, lambda l: LDS_MEM + 3072 + l*16, T)
    lanefn(a, V12, lambda l: LDS_MEM + ((l >> 3) & 1)*512 + (2*(l & 7) + (l >> 5))*16 + ((l >> 4) & 1)*8, T)
    a(f's_and_b32 s68, {SH}, 15'); a('s_min_u32 s68, s68, 9'); a('s_lshl_b32 s68, s68, 10'); a(f'v_add_u32 v{V12}, s68, v{V12}')
    lanefn(a, VXS, lambda l: ((l >> 3) & 1)*1024 + (l >> 4)*256 + (l & 7)*16, T)
    a(f's_mul_i32 s67, {SX}, 12288'); a(f's_add_u32 s67, s67, {PA_OFF}')
    a(f's_and_b32 s68, {SH}, 15'); a('s_lshl_b32 s76, s68, 9'); a('s_add_u32 s76, s76, s67')
    a('s_lshr_b32 s77, s68, 1'); a('s_lshl_b32 s77, s77, 8'); a('s_add_u32 s77, s77, s67')
    a('s_and_b32 s68, s68, 1'); a('s_lshl_b32 s68, s68, 3'); a('s_add_u32 s77, s77, s68'); a('s_add_u32 s77, s77, 8192')

def qk_init_clear(a):
    a(f'v_mov_b32 v{VA+16}, -1'); a(f'v_mov_b32 v{VA+17}, -1')
    a(f'buffer_store_dwordx2 v[{VA+16}:{VA+17}], v{V9}, {S_WS}, s76 offen sc1')
    a(f'buffer_store_dword v{VA+16}, v{V10}, {S_WS}, s77 offen sc1')

def mf(D, A, B, first): return f'v_mfma_f32_16x16x32_bf16 v[{D}:{D+3}], v[{A}:{A+3}], v[{B}:{B+3}], ' + ('0' if first else f'v[{D}:{D+3}]')

def stream_head(sd, w, order, AP, opt, rest):
    g = opt.get('gb1', 3)
    sd.put(g, ('wait', 'GW')); sd.put(g, 's_barrier')
    for kb in order:
        if kb not in OWN[w]:
            sd.lds(g, a_read(kb, AP[kb]), True); g += 1
    return g

def qk_loop(a, w, sc, opt):
    VZ = VTMP + 15
    lg = Trk(a, 'lgkmcnt', 15)
    ltop, lent, lfin = a.label('Lqk'), a.label('Lqkent'), a.label('Lqkfin')
    QEX = LDS_EX - LDS_MEM
    SACC, SM = VTMP, VTMP + 4
    QO = QORD[w]
    AP = apos(w, QO)
    seq = [(kb, t) for kb in QO[:6] for t in range(3)] + [(kb, t) for t in range(3) for kb in QO[6:]]
    first = [(xfrag(kb, t, 0)[0], VACC0 + 4*t, AP[kb], xfrag(kb, t, 0)[1], [f'A{kb}']) for kb, t in seq]
    second = []
    n = 0
    SX0 = opt.get('sx0', 19)
    for t in range(3):
        for kb in KORD:
            second.append((xfrag(kb, t, 1)[0], VACC1 + 4*t, AP[kb], xfrag(kb, t, 1)[1], []))
            if w >= 2 and n == SX0:
                for kk in range(6): second.append(('raw', 0, 0, mf(SACC, VKX + 4*kk, VQF + 4*kk, kk == 0), [f'Q{kk}']))
            if w == 0 and n == 29:
                for kk in range(4): second.append(('raw', 0, 0, mf(SM, VKX + 4*kk, VQF + 4*kk, kk == 0), [f'K{kk}', f'Q{kk}']))
            n += 1
    items, ldsq, k2 = build_stream(first, second)
    sd = Sides()
    stream_head(sd, w, QO, AP, opt, None)
    sd.put(opt.get('gb1', 3), lambda o_=opt: stamp(a, o_, 1))
    pub_rd = [('lds', f'ds_read_b64 v[{VKX+2*x}:{VKX+2*x+1}], v{V12} offset:{x*256}', 'PUB') for x in range(2)]
    pub_st = f'buffer_store_dwordx4 v[{VKX}:{VKX+3}], v{VXS}, {S_WS}, s44 offen sc1'
    if w == 1:
        sd.put(0, f'buffer_store_dword v{VT1}, v{VT2}, {S_WS}, s46 offen sc1')
        for r in pub_rd: sd.lds(18, r)
        sd.put(25, ('wait', 'PUB')); sd.put(25, pub_st)
        for j in range(6):
            sd.put(1 + 3*j, f'buffer_load_dword v{VKX+4+j}, v{V9}, {S_WS}, s{[45, 48, 49][j >> 1]} offen sc1')
            if j % 2 == 0: sd.put(2 + 3*j, f's_add_u32 s{[45, 48, 49][j >> 1]}, s{[45, 48, 49][j >> 1]}, 8192')
    if w == 0:
        sd.put(opt.get('kt0', 1), f'buffer_load_dword v{VTMP+13}, v{V12}, {S_WS}, s45 offen sc1')
        sd.put(opt.get('kt0', 1) + 4, f'buffer_load_dword v{VTMP+13}, v{VXS}, {S_WS}, s45 offen sc1')
    wr = lambda acc, t, off, tag: ('lds', f'ds_write_b32 v{VXW}, v{acc} offset:{off + t*1024}', tag)
    for t in range(3): gq = sd.valu([23, 27, 31][t], post(VACC0 + 4*t, VACC0 + 4*t) + [wr(VACC0 + 4*t, t, QEX, 'QW')], 2 if t == 2 else 1)
    gb = gq + opt.get('gba', [3, 1, 4, 4])[w]
    if w != 1: sd.put(gb, f's_waitcnt vmcnt({0 if w else 2})')
    sd.put(gb, ('wait', 'QW')); sd.put(gb, 's_barrier')
    if opt.get('diag'): sd.put(gb, lambda: stamp(a, opt, 0))
    if w >= 2:
        for i, r in enumerate(dense_reads(VQF, QEX, 'Q')): sd.lds(gb + (i * opt.get('qspan', 10)) // 12, r, True)
    gk = 0
    for t in range(2): gk = sd.valu(k2[10*t + 9] + 2, post(VACC1 + 4*t, VACC1 + 4*t) + [wr(VACC1 + 4*t, t, 0, 'KW')])
    gB = gk + opt.get('gbb', [1, 1, 3, 3])[w]
    sd.put(gB, ('wait', 'KW')); sd.put(gB, 's_barrier')
    assert gB < len(items)
    if w == 0:
        for i, r in enumerate(dense_reads(VKX, 0, 'K', range(4))): sd.lds(gB + i // opt.get('krd', 3), r, True)
    sd.valu(k2[29] + 2, post(VACC1 + 8, VACC1 + 8) + [wr(VACC1 + 8, 2, 0, 'KW')])
    E0, T, X0 = VTMP + 8, VTMP + 12, VTMP + 4
    ool4 = None
    if w >= 2:
        lsx, lsxb = a.label('Lsx'), a.label('Lsxb')
        p0 = [f'v_cndmask_b32 v{X0}, v{SACC}, v{SACC+2}, {SMASK8}', f'v_cndmask_b32 v{X0+1}, v{SACC+1}, v{SACC+3}, {SMASK8}',
              f'v_mul_f32 v{X0}, s83, v{X0}', f'v_mul_f32 v{X0+1}, s83, v{X0+1}', f'v_exp_f32 v{E0}, v{X0}', f'v_exp_f32 v{E0+1}, v{X0+1}',
              f'v_max_f32 v{T}, |v{X0}|, |v{X0+1}|', f'v_add_f32 v{E0+3}, v{E0}, v{E0+1}', f'v_cmp_lt_f32 vcc, s79, v{T}']
        np2 = opt.get('np2', 4)
        sd.valu(k2[SX0 + 2], p0[:np2], 2)
        g = sd.valu(sd.nxt + 1, p0[np2:])
        sd.put(g, lambda: (a(f's_cbranch_vccnz {lsx}'), a(f'{lsxb}:')))
        sd.lds(g, ('lds', f'ds_write_b128 v{V11}, v[{E0}:{E0+3}] offset:{(w-2)*1024}', 'EW'), True)
        def ool4():
            m = E0 + 2
            a(f'{lsx}:')
            a(f'v_max_f32 v{m}, v{X0}, v{X0+1}'); a(f'v_max_f32_dpp v{m}, v{m}, v{m} {DPP8}')
            for s_ in allred('v_max_f32', m, T): a(s_)
            for i in range(2): a(f'v_sub_f32 v{E0+i}, v{X0+i}, v{m}')
            for i in range(2): a(f'v_exp_f32 v{E0+i}, v{E0+i}')
            a(f'v_add_f32 v{E0+3}, v{E0}, v{E0+1}')
            a(f's_branch {lsxb}')
        sd.valu(5, [f'v_mov_b32 v{E0+2}, 0'])
    sd.refills(ldsq)
    if w == 0:
        for i, r in enumerate(dense_reads(VQF, QEX, 'Q')):
            g = gb
            while g in sd.busy and g < gB - 1: g += 1
            sd.lds(g if g < gB - 1 else gB - 2 - (i & 3), r, True)
    if opt.get('dq'):
        for i_, g_ in zip((0, 6, 7, 3, 4), opt['dq']): sd.put(g_, lambda i_=i_: stamp(a, dict(stamps=1, cyc=1), i_))
        opt = {k_: v_ for k_, v_ in opt.items() if k_ != 'stamps'}; opt['dq1'] = 1

    def top():
        preload_b(a, lg, ldsq)
        for r in range(0, 24, 2): a(f'v_mov_b64 v[{VACC0+r}:{VACC0+r+1}], 0')
        if w == 0: a(f's_bitcmp1_b32 {SSTEP}, 0'); a('s_cselect_b32 s78, -1.0, 1.0')
        if w == 1:
            a(f'v_mov_b32 v{VT1}, {SSTEP}')
            a(f's_lshr_b32 s67, {SSTEP}, 2'); a('s_mul_i32 s44, s67, 40960'); a(f's_bfe_u32 s67, {SSTEP}, 0x10001'); a('s_mul_i32 s67, s67, 20480')
            a('s_add_u32 s44, s44, s67'); a(f's_and_b32 s67, {SSTEP}, 1'); a('s_lshl_b32 s67, s67, 7'); a('s_add_u32 s44, s44, s67'); a('s_add_u32 s44, s44, s47')
    def prefetch():
        ls = a.label('Lnp')
        if w <= 1: a(f's_mov_b32 s45, {OOB}')
        a(f's_cmp_ge_u32 s82, {1 if opt.get("nopf") else 63}'); a(f's_cbranch_scc1 {ls}')
        if w >= 2:
            lk = a.label('Lk')
            a(f's_cmp_ge_u32 s82, {opt.get("self", SELF)}'); a(f's_cbranch_scc1 {lk}')
            check_flags(a, opt, 'K')
            a(f'{lk}:')
            load_frags6(a, VKX, KF_OFF, w - 2)
        elif w == 0:
            check_flags(a, opt, 'K', ls)
            a(f's_lshl_b32 s45, s82, 5'); a(f's_add_u32 s45, s45, {SH}'); a('s_mul_i32 s45, s45, 12288'); a(f's_add_u32 s45, s45, {KF_OFF}')
        elif not opt.get('notouch'):
            check_flags(a, opt, 'Y16', ls)
            a(f's_mul_i32 s45, s82, {40*40960}'); a('s_add_u32 s45, s45, s50')
        a(f'{ls}:')
        if w == 1:
            a(f's_add_u32 s48, s45, {16*40960}'); a(f's_add_u32 s49, s45, {32*40960}'); a(f's_bitcmp1_b32 {SH}, 3'); a(f's_cselect_b32 s49, {OOB}, s49')
    a(f's_mov_b32 {SSTEP}, 0'); a(f's_mov_b32 s83, {f2u(SC):#x}'); a(f's_mov_b32 s79, {f2u(opt.get("safe", 60.0)):#x}')
    if w != 1: a(f's_mul_i32 s81, {SH}, 384'); a(f's_add_u32 s81, s81, {PRGX_OFF + 96*128}')
    if w >= 2: a('s_mov_b32 s82, 0'); prefetch()
    if w == 0:
        a(f's_mov_b32 s45, {OOB}'); a(f'v_lshlrev_b32 v{V12}, 7, v0'); a(f'v_add_u32 v{VXS}, 8192, v{V12}'); a(f'v_min_u32 v{VXS}, 12160, v{VXS}')
    if w == 1:
        a(f'v_lshlrev_b32 v{V9}, 7, v0')
        a(f'v_cmp_eq_u32 vcc, 0, v0'); a(f'v_mov_b32 v{VT2}, 0x40000000'); a(f'v_cndmask_b32 v{VT2}, v{VT2}, 0, vcc')
        a(f's_lshl_b32 s81, {SX}, 11'); a(f's_bfe_u32 s67, {SH}, 0x20002'); a(f's_mul_i32 s67, s67, {40*128}'); a('s_add_u32 s81, s81, s67'); a(f's_add_u32 s81, s81, {PRGY_OFF}')
        a(f's_and_b32 s50, {SH}, 15'); a('s_mul_i32 s50, s50, 40960'); a(f's_lshl_b32 s67, {SX}, 14'); a('s_add_u32 s50, s50, s67'); a(f's_add_u32 s50, s50, {VOF_OFF}')
        a(f's_lshl_b32 s46, {SH}, 7'); a(f's_add_u32 s46, s46, {MPRG_OFF}'); a(f's_lshl_b32 s47, {SH}, 11'); a(f's_add_u32 s47, s47, {XN_OFF + 64*40960}')
        a(f's_cmp_ge_u32 {SH}, 10'); a(f's_cselect_b32 s46, {OOB}, s46'); a(f's_cselect_b32 s47, {OOB}, s47')
        for r in (45, 48, 49): a(f's_mov_b32 s{r}, {OOB}')
    top()
    for kb in OWN[w]: a(a_read(kb, AP[kb])[1])
    a('s_waitcnt lgkmcnt(0)')
    a(f's_branch {lent}')
    a(f'{ltop}:')
    lg.reset()
    a('s_barrier')
    a(f's_add_u32 s82, {SSTEP}, {[1, opt.get("tahead", 2) - 1, 0, 0][w]}'); prefetch()
    top()
    gather_setup(a)
    qs = opt.get('qsleep', 8) - (opt.get('qsk', 2) if w >= 2 else 0)
    if qs > 0: a(f's_sleep {qs}')
    if opt.get('qdet', 0): a(f'v_and_b32 v{VZ}, {(8 if NCH[w] == 2 else 16) - 1}, v0'); a(f'v_min_u32 v{VZ}, {4*NCH[w]-1}, v{VZ}'); a(f'v_lshlrev_b32 v{VZ}, 8, v{VZ}')
    else: a(f'v_mov_b32 v{VZ}, 0')
    a('s_waitcnt lgkmcnt(0)')
    if opt.get('mg', 1): ool = gather_m(a, NCH[w], VTMP, VQF, VTMP + 12, opt, (0, 6, 7), VZ if opt.get('qd', 1) else None, opt.get('rdep', 1), opt.get('rgap', 4))
    else: ool = gather(a, NCH[w], VTMP, {k: v for k, v in opt.items() if k != 'stamps'} if opt.get('diag') else opt, (0, 6, 7), opt.get('qrs', 0), VQF if opt.get('qj', 1) else None, VZ if opt.get('qj', 1) else None)
    a(f'{lent}:')
    lg.reset(); lg.issue('GW')
    left = [x_ for g_ in sorted(sd.side) if g_ >= len(items) for x_ in sd.side[g_]]
    merge(a, lg, items, sd.side)
    for x_ in left: merge(a, lg, [], {-1: [x_]})
    if opt.get('dq1'): stamp(a, dict(stamps=1, cyc=1), 2)
    stamp(a, opt, 2)
    EA, EB = VB, VB + 4
    U, LM, F0, F1, LS = VB + 8, VB + 9, VB + 10, VB + 11, VB + 12
    redl = [f'v_add_f32_dpp v{LS}, v{LS}, v{LS} {DPP8}', f'v_mov_b32 v{T}, v{LS}', f'v_permlane16_swap_b32 v{LS}, v{T}', f'v_add_f32 v{LS}, v{LS}, v{T}',
            f'v_mov_b32 v{T}, v{LS}', f'v_permlane32_swap_b32 v{LS}, v{T}', f'v_add_f32 v{LS}, v{LS}, v{T}', f'v_mul_f32 v{LS}, s78, v{LS}']
    lg.all(); a('s_barrier')
    if opt.get('diag'): stamp(a, opt, 6)
    ool3 = None
    if w == 0:
        lslow, lback = a.label('Lsm'), a.label('Lsb')
        for r in dense_reads(VKX, 0, 'K', range(4, 6)): a(r[1]); lg.issue(r[2])
        a(f'ds_read_b128 v[{EA}:{EA+3}], v{V11}'); lg.issue('E'); a(f'ds_read_b128 v[{EB}:{EB+3}], v{V11} offset:1024'); lg.issue('E')
        for kk in range(4, 6):
            lg.wait(f'K{kk}'); a(mf(SM, VKX + 4*kk, VQF + 4*kk, False))
        lg.wait('E')
        for s_ in [f'v_add_f32 v{LS}, v{EA+3}, v{EB+3}', f'v_max_f32 v{U}, |v{EA+2}|, |v{EB+2}|', f'v_mul_f32 v{U}, 0x71800000, v{U}', redl[0], redl[1]]: a(s_)
        stamp(a, opt, 3)
        T2, PO = VB + 13, VB + 16
        a(f'v_cndmask_b32 v{SM}, v{SM}, v{SM+2}, {SMASK8}'); a(f'v_cndmask_b32 v{SM+1}, v{SM+1}, v{SM+3}, {SMASK8}')
        a(f'v_mul_f32 v{SM}, s83, v{SM}'); a(f'v_mul_f32 v{SM+1}, s83, v{SM+1}')
        a(f'v_exp_f32 v{SM+2}, v{SM}'); a(f'v_exp_f32 v{SM+3}, v{SM+1}')
        a(redl[2]); a(f'v_max3_f32 v{U}, |v{SM}|, |v{SM+1}|, v{U}'); a(redl[3])
        a(f'v_add_f32 v{LM}, v{SM+2}, v{SM+3}')
        a(redl[4])
        a(f'v_cmp_lt_f32 vcc, s79, v{U}')
        def fin(first):
            a(f'v_add_f32_dpp v{LM}, v{LM}, v{LM} {DPP8}')
            if first: a(redl[5])
            a(f'v_mov_b32 v{T2}, v{LM}')
            if first: a(redl[6]); a(redl[7])
            a(f'v_permlane16_swap_b32 v{LM}, v{T2}'); a(f'v_add_f32 v{LM}, v{LM}, v{T2}')
            a(f'v_fma_f32 v{LM}, v{LM}, s78, v{LS}')
            a(f'v_rcp_f32 v{LM}, v{LM}')
            a(f'v_mul_f32 v{PO}, v{EA}, v{LM}'); a(f'v_mul_f32 v{PO+1}, v{EA+1}, v{LM}')
            a(f'v_mul_f32 v{PO+2}, v{EB}, v{LM}'); a(f'v_mul_f32 v{PO+3}, v{EB+1}, v{LM}')
            a(f'v_cvt_pk_bf16_f32 v{PO}, v{PO}, v{PO+1}'); a(f'v_cvt_pk_bf16_f32 v{PO+1}, v{PO+2}, v{PO+3}')
        fin(True)
        a(f's_cbranch_vccnz {lslow}')
        a(f'{lback}:')
        a(f'buffer_store_dwordx2 v[{PO}:{PO+1}], v{V9}, {S_WS}, s76 offen {sc}')
        a(f'v_mul_f32 v{SM+2}, v{SM+2}, v{LM}'); a(f'v_mul_f32 v{SM+3}, v{SM+3}, v{LM}')
        a(f'v_cvt_pk_bf16_f32 v{SM}, v{SM+2}, v{SM+3}')
        a(f'buffer_store_dword v{SM}, v{V10}, {S_WS}, s77 offen {sc}')
        stamp(a, opt, 4)
        if opt.get('diagp'): a('s_waitcnt vmcnt(0)')
        lkm, lkb = a.label('Lkm'), a.label('Lkb')
        a(f's_cmp_ge_u32 {SSTEP}, {4*NMB}'); a(f's_cbranch_scc1 {lkm}')
        a(f'{lkb}:')
        def ool3():
            a(f'{lkm}:')
            a(f's_mul_i32 s72, {SH}, 12288'); a(f's_bfe_u32 s67, {SSTEP}, 0x10001'); a('s_mul_i32 s67, s67, 6144'); a('s_add_u32 s72, s72, s67')
            a(f's_add_u32 s72, s72, {KF_OFF + (64 + NMB)*32*12288}'); a('s_add_u32 s73, s72, 4096')
            a(f's_bitcmp1_b32 {SSTEP}, 0'); a('s_cselect_b32 s74, 8, 0'); a('s_lshl_b32 s74, 0x00ff00ff, s74'); a('s_mov_b32 exec_lo, s74'); a('s_mov_b32 exec_hi, s74')
            for kk in range(6): a(f'buffer_store_dwordx4 v[{VKX+4*kk}:{VKX+4*kk+3}], v{VL16}, {S_WS}, s{72 + (kk >> 2)} offen offset:{(kk & 3)*1024} sc1')
            a('s_mov_b64 exec, -1')
            cprog(a)
            a(f's_branch {lkb}')
            a(f'{lslow}:')
            a(f'v_max_f32 v{U}, v{SM}, v{SM+1}'); a(f'v_max_f32_dpp v{U}, v{U}, v{U} {DPP8}')
            for s_ in allred('v_max_f32', U, T, (16,)): a(s_)
            a(f'v_max3_f32 v{U}, v{U}, v{EA+2}, v{EB+2}')
            a(f'v_sub_f32 v{SM}, v{SM}, v{U}'); a(f'v_sub_f32 v{SM+1}, v{SM+1}, v{U}'); a(f'v_sub_f32 v{F0}, v{EA+2}, v{U}'); a(f'v_sub_f32 v{F1}, v{EB+2}, v{U}')
            a(f'v_exp_f32 v{SM+2}, v{SM}'); a(f'v_exp_f32 v{SM+3}, v{SM+1}'); a(f'v_exp_f32 v{F0}, v{F0}'); a(f'v_exp_f32 v{F1}, v{F1}')
            a(f'v_mul_f32 v{LS}, v{EA+3}, v{F0}'); a(f'v_fmac_f32 v{LS}, v{EB+3}, v{F1}')
            for s_ in redl: a(s_)
            for i in range(2): a(f'v_mul_f32 v{EA+i}, v{EA+i}, v{F0}'); a(f'v_mul_f32 v{EB+i}, v{EB+i}, v{F1}')
            a(f'v_add_f32 v{LM}, v{SM+2}, v{SM+3}')
            fin(False)
            a(f's_branch {lback}')
    if opt.get('dq1'): opt = dict(opt, stamps=1)
    stamp(a, opt, 5)
    stamp_flush(a, opt, 8)
    a(f's_add_u32 {SSTEP}, {SSTEP}, 1'); a(f's_cmp_lt_u32 {SSTEP}, 64'); a(f's_cbranch_scc1 {ltop}')
    a('s_waitcnt vmcnt(0)'); a('s_endpgm')
    ool()
    if ool3: ool3()
    if ool4: ool4()

def vo_setup(a, opt):
    common_addr(a)
    T = VTMP
    lanefn(a, VXW, lambda l: LDS_EX + tile_pat(l), T, 256)
    a(f'v_and_b32 v{T}, 1, v0'); a(f'v_cmp_ne_u32 vcc, 0, v{T}'); a(f'v_mov_b32 v{T}, 0x05040100'); a(f'v_mov_b32 v{T+1}, 0x03020706')
    a(f'v_cndmask_b32 v{VXS}, v{T}, v{T+1}, vcc')
    lanefn(a, V9, lambda l: ((l >> 4) & 1)*1024 + (l & 15)*16 + (l >> 5)*8, T, 256)
    lanefn(a, V10, lambda l: (l >> 4)*10240 + (l & 15)*16, T)
    lanefn(a, V11, lambda l: (l >> 4)*1024 + (l & 15)*16, T, 256)
    lanefn(a, V12, tile_pat, T)
    a(f's_and_b32 {SDT}, {SH}, 15'); a(f's_lshl_b32 s67, {SWV}, 4'); a(f's_add_u32 {SDT}, {SDT}, s67')
    a(f's_lshl_b32 s81, {SX}, 11'); a(f's_bfe_u32 s67, {SDT}, 0x20002'); a(f's_mul_i32 s67, s67, {40*128}'); a('s_add_u32 s81, s81, s67'); a(f's_add_u32 s81, s81, {PRGY_OFF}')
    a(f's_mul_i32 s44, {SH}, 10240'); a(f's_add_u32 s44, s44, {VOMR_OFF}'); a('s_add_u32 s45, s44, 4096'); a('s_add_u32 s46, s44, 8192')
    a(f's_mul_i32 s72, {SX}, {16*10240}'); a(f's_lshl_b32 s68, {SDT}, 8'); a('s_add_u32 s72, s72, s68'); a(f's_add_u32 s72, s72, {VOMR_OFF}')
    a('s_add_u32 s73, s72, 40960'); a('s_add_u32 s74, s73, 40960'); a('s_add_u32 s75, s74, 40960')
    a(f's_mul_i32 s49, {SX}, 12288'); a(f's_add_u32 s49, s49, {PA_OFF}'); a(f's_add_u32 s76, s49, {SCHK}')
    a(f's_mul_i32 s47, {SDT}, 40960'); a(f's_lshl_b32 s67, {SX}, 14'); a('s_add_u32 s47, s47, s67'); a(f's_add_u32 s47, s47, {VOF_OFF}')

def vom_store1(src, k, base, sc):
    if k < 2: return f'buffer_store_dwordx4 v[{src}:{src+3}], v{V11}, {S_WS}, {base[k]} offen {sc}'
    return f'buffer_store_dwordx2 v[{src}:{src+1}], v{V9}, {S_WS}, {base[2]} offen {sc}'
def memp_off(a, dst, add, dt=SDT):
    a(f's_add_u32 s67, {SSTEP}, {add}'); a('s_and_b32 s67, s67, 3'); a('s_lshl_b32 s67, s67, 1'); a(f's_add_u32 s67, s67, {SX}')
    a(f's_mul_i32 s{dst}, s67, 10240'); a(f's_lshl_b32 s{dst+1}, s67, 15'); a(f's_lshl_b32 s67, {dt}, 8')
    a(f's_add_u32 s{dst}, s{dst}, s67'); a(f's_add_u32 s{dst+1}, s{dst+1}, s67'); a(f's_add_u32 s{dst}, s{dst}, {MEML_OFF}')
    a(f's_add_u32 s{dst+1}, s{dst+1}, {SMR}'); a(f's_cmp_ge_u32 {dt}, 24'); a('s_cselect_b32 s67, 10240, 0'); a(f's_add_u32 s{dst+1}, s{dst+1}, s67')

def vo_init_clear(a):
    for r in range(4): a(f'v_mov_b32 v{VA+16+r}, -1')
    for k in range(3): a(vom_store1(VA + 16, k, ('s44', 's45', 's46'), 'sc1'))
    for sl in range(4):
        memp_off(a, 32, sl)
        a(f's_cmp_ge_u32 {SDT}, 40'); a(f's_cselect_b32 s32, {OOB}, s32'); a(f's_cselect_b32 s33, {OOB}, s33')
        a(f'buffer_store_dword v{VA+16}, v{V12}, {S_WS}, s32 offen sc1')
        a(f'buffer_store_dword v{VA+16}, v{V12}, {S_WS}, s33 offen sc1')
        a('s_add_u32 s33, s33, 8192')
        a(f'buffer_store_dword v{VA+16}, v{V12}, {S_WS}, s33 offen sc1')

VORD = [[0, 1, 2, 3, 4, 5, 6, 7, 9, 8], [3, 4, 5, 0, 1, 2, 6, 7, 9, 8], [6, 7, 2, 0, 1, 5, 3, 4, 9, 8], [8, 9, 0, 1, 3, 2, 4, 6, 5, 7]]
OORD = [0, 1, 2, 3, 4, 5, 6, 7, 8, 9]
OORD0 = [0, 2, 1, 3, 4, 6, 5, 7, 8, 9]
def pairup(acc, tmp):
    return [f'v_mov_b32_dpp v{tmp}, v{acc} quad_perm:[1,0,3,2] row_mask:0xf bank_mask:0xf', f'v_perm_b32 v{acc}, v{tmp}, v{acc}, v{VXS}']

def vo_loop(a, w, duty, sc, opt):
    n = NCH[w]; VO = VORD[w]
    lg = Trk(a, 'lgkmcnt', 15)
    ltop, lent = a.label('Lvo'), a.label('Lvoent')
    VV = VACC1; PK = VACC0
    EXO = LDS_EX - LDS_MEM
    AP = apos(w, VO)
    OA = {t: (VOX + 44 + 4*i if i < 5 else AP[VO[i - 5]]) for i, t in enumerate(OORD)}
    seq = [(kb, t) for kb in VO[:3] for t in range(3)] + [(kb, t) for t in range(3) for kb in VO[3:]]
    first = [(xfrag(kb, t, 0)[0], VACC0 + 4*t, AP[kb], xfrag(kb, t, 0)[1], [f'A{kb}']) for kb, t in seq]
    oseq = [(t, 0) for t in OORD0] + [(t, 1) for t in OORD[:3]]
    for i in range(10): oseq += [(OORD[i], 2)] + ([(OORD[i+3], 1)] if i + 3 < 10 else [])
    second = [(yfrag(tile, kb)[0], OA[tile], VV + 4*kb, yfrag(tile, kb)[1], [f'V{kb}']) for tile, kb in oseq]
    fin = {t: 30 + oseq.index((t, 2)) for t in OORD}
    items, ldsq, k2 = build_stream(first, second)
    sd = Sides()
    stream_head(sd, w, VO, AP, opt, None)
    sd.put(opt.get('gb1', 3), lambda: stamp(a, opt, 1))
    vox = lambda hh: f'buffer_load_dwordx4 v[{VOX+4*hh}:{VOX+4*hh+3}], v{VL16}, {S_WS}, s83 offen offset:{(hh & 3)*1024} {STREAM[0]}'
    vsp = opt.get('vsp', 3)
    NIN = opt.get('nin', 16)
    NE = opt.get('ne', 0)
    if duty:
        for hh in range(NE, min(NIN, 11)):
            g = opt.get('vs0', 1) + (hh - NE) * vsp
            sd.put(g, vox(hh))
            if hh & 3 == 3: sd.put(g + 1, 's_add_u32 s83, s83, 4096')
    if w == 3:
        for i in range(6): sd.put(opt.get('cl0', 1) + 4*i, f'buffer_store_dword v{VT2}, v{V12}, {S_WS}, s{52 + i} offen {"sc1" if i & 1 else sc}')
    zer = [f'v_mov_b64 v[{AP[VO[r >> 1]] + 2*(r & 1)}:{AP[VO[r >> 1]] + 2*(r & 1) + 1}], 0' for r in range(10)]
    for r in range(6): sd.valu(3*(r >> 1) + 3 + (r & 1), [zer[r]])
    wr = lambda acc, t: ('lds', f'ds_write_b32 v{VXW}, v{acc} offset:{t*1024}', f'VW{t}')
    vpost = lambda t: post(VACC0 + 4*t, VACC0 + 4*t) + [None] + pairup(VACC0 + 4*t, VACC0 + 4*t + 1) + [wr(VACC0 + 4*t, t)]
    vrd = lambda kb: ('lds', f'ds_read_b128 v[{VV+4*kb}:{VV+4*kb+3}], v{VAR} offset:{EXO + kb*1024}', f'V{kb}')
    for t, g0, per in ((0, 17, 1), (1, 24, 1), (2, 31, 2)):
        g = sd.valu(g0, vpost(t), per) + 2
        sd.put(g, ('wait', f'VW{t}')); sd.put(g, 's_barrier'); sd.lds(g, vrd(t), True)
    sd.valu(27, zer[6:])
    if opt.get('diag'): sd.put(g, lambda: stamp(a, opt, 0)); sd.put(29, lambda: stamp(a, opt, 5)); sd.put(42, lambda: stamp(a, opt, 7))
    base = ('s44', 's45', 's46')
    tail = []; gfree = 40; carry = []
    done = set()
    for i, t in enumerate(OORD):
        ins = post(OA[t], PK + t); sw = []
        if duty and 11 + i < min(NIN, 16):
            if i == 1: ins.append('s_add_u32 s83, s83, 4096')
            ins.append(vox(11 + i))
        done.add(t)
        q = t >> 2
        if q < 2 and all(4*q + j in done for j in range(4)):
            b = PK + 4*q
            sw = [f'v_permlane16_swap_b32 v{b}, v{b+1}', f'v_permlane16_swap_b32 v{b+2}, v{b+3}',
                  f'v_permlane32_swap_b32 v{b}, v{b+2}', f'v_permlane32_swap_b32 v{b+1}, v{b+3}', f'v_bfi_b32 v{b}, 1, {SSTEP}, v{b}', vom_store1(b, q, base, sc)]
        if q == 2 and 8 in done and 9 in done:
            sw = [f'v_permlane16_swap_b32 v{PK+8}, v{PK+9}', f'v_bfi_b32 v{PK+8}, 1, {SSTEP}, v{PK+8}', vom_store1(PK + 8, 2, base, sc)]
        c = list(carry); carry = sw if i < 9 else []
        if c: ins = [c[0], ins[0], c[1], ins[1], ins[2]] + c[2:] + ins[3:]
        if i == 9: ins += sw
        g = max(fin[t] + 2, gfree)
        if g < len(items) and not tail: sd.valu(g, ins, 2); gfree = sd.nxt
        else: tail += ins
    ex = []
    for g in sorted(g for g in sd.side if g >= len(items)): ex += sd.side.pop(g)
    tail = ex + tail
    sd.refills(ldsq)

    def top():
        preload_b(a, lg, ldsq)
        a(f's_bitcmp1_b32 {SSTEP}, 0'); a('s_cselect_b32 s50, 0x80008000, 0')
        if w == 3:
            a(f'v_mov_b32 v{VT2}, -1'); a(f's_and_b32 s35, {SH}, 15')
            for i in range(3):
                memp_off(a, 52 + 2*i, 2, 's35')
                if i < 2: a('s_add_u32 s35, s35, 16')
            a('s_cmp_ge_u32 s35, 40'); a(f's_cselect_b32 s56, {OOB}, s56'); a(f's_cselect_b32 s57, {OOB}, s57')
        if duty:
            memp_off(a, 77, 1)
            if opt.get('nopf'): a('s_mov_b32 s82, 0')
            else: a(f's_mov_b32 s82, {SSTEP}')
            a(f's_mul_i32 s83, s82, {40*40960}'); a('s_add_u32 s83, s83, s47'); a(f's_cmp_eq_u32 {SSTEP}, 63'); a(f's_cselect_b32 s83, {OOB}, s83')
        for r in range(0, 12, 2): a(f'v_mov_b64 v[{VACC0+r}:{VACC0+r+1}], 0')
        for r in range(0, 20, 2): a(f'v_mov_b64 v[{VOX+44+r}:{VOX+45+r}], 0')
        if duty:
            lk = a.label('Lk')
            a(f's_cmp_ge_u32 {SSTEP}, {64 if opt.get("notouch") else opt.get("self", SELF)}'); a(f's_cbranch_scc1 {lk}')
            check_flags(a, opt, 'Y16')
            a(f'{lk}:')
            for hh in range(NE):
                a(vox(hh))
                if hh & 3 == 3: a('s_add_u32 s83, s83, 4096')
    a(f's_mov_b32 {SSTEP}, 0')
    top()
    for kb in OWN[w]: a(a_read(kb, AP[kb])[1])
    a('s_waitcnt lgkmcnt(0)')
    a(f's_branch {lent}')
    a(f'{ltop}:')
    lg.reset()
    a('s_barrier')
    top()
    if opt.get('vsleep', 0): a(f's_sleep {opt.get("vsleep", 0)}')
    a('s_waitcnt lgkmcnt(0)')
    if opt.get('mg', 1): ool = gather_m(a, n, VACC1, VOX, VA + 36, opt, (0, 5, 7), None, opt.get('rdep', 1), opt.get('rgap', 4))
    else: ool = gather(a, n, VACC1, {k: v for k, v in opt.items() if k != 'stamps'} if opt.get('diag') else opt, (0, 0 if opt.get('diag2') else 5, 7), opt.get('vrs', 0), VA + 24 if opt.get('vj', 1) else None)
    a(f'{lent}:')
    lg.reset(); lg.issue('GW')
    merge(a, lg, items, sd.side)
    for s_ in tail:
        a(s_)
    stamp(a, opt, 3)
    lcp, lcb, lcf, lce = [a.label('Lc') for _ in range(4)]
    a(f's_cmp_ge_u32 {SSTEP}, {4*NMB}'); a(f's_cbranch_scc1 {lcp}')
    a(f'{lcb}:')
    def ool5():
        a(f'{lcp}:')
        a(f's_lshl_b32 s52, {SSTEP}, 5'); a(f's_add_u32 s52, s52, {SH}'); a('s_mul_i32 s52, s52, 10240'); a(f's_add_u32 s52, s52, {VOM_OFF}')
        a('s_add_u32 s53, s52, 4096'); a('s_add_u32 s54, s52, 8192')
        for k in range(3): a(vom_store1(PK + 4*k, k, ('s52', 's53', 's54'), 'sc1'))
        a(f's_cmp_lt_u32 {SSTEP}, 63'); a(f's_cbranch_scc1 {lcb}')
        a('s_waitcnt vmcnt(0)'); a('s_barrier')
        if w == 3: cprog(a)
        a('s_waitcnt vmcnt(0)'); a('s_endpgm')
    ACC = VB + 28
    R = VB + 16
    def ldp():
        for c in range(n): a(f'buffer_load_dwordx4 v[{R+4*c}:{R+4*c+3}], v{VL16}, {S_WS}, s76 offen offset:{c*1024} sc1')
    lt, ltd, lp, ld = [a.label('Lp') for _ in range(4)]
    PT = VA
    def pwrite(c): a(f'ds_write_b128 v{VGW}, v[{R+4*c}:{R+4*c+3}] offset:{c*1024}')
    def pcheck_m(first):
        for c in range(n):
            b = R + 4*c
            if first: a(f's_waitcnt vmcnt({n - 1 - c})'); pwrite(c)
            a(f'v_bitop3_b32 v{PT+c}, v{b}, v{b+2}, s50 bitop3:0x7e')
            if w == 3 or not first: a(f'v_bitop3_b32 v{PT+3}, v{b+1}, v{b+3}, s50 bitop3:0x7e'); a(f'v_or_b32 v{PT+c}, v{PT+c}, v{PT+3}')
            a(f'v_cmp_gt_i32 {ML[c]}, 0, v{PT+c}')
        mask_or(a, ML[:n])
    MV = MR + ['s[30:31]']
    def ldv(ms=None):
        for q in range(4):
            if ms: a(f's_mov_b64 exec, {ms[q]}')
            a(f'buffer_load_dwordx4 v[{VB+4*q}:{VB+4*q+3}], v{V10}, {S_WS}, s{72+q} offen sc1')
        if ms: a('s_mov_b64 exec, -1')
    def vcheck():
        for q in range(4):
            if w < 2: a(f'v_bitop3_b32 v{PT+4+q}, v{VB+4*q}, {SSTEP}, 1 bitop3:0x28')
            else: a(f'v_bitop3_b32 v{PT+4+q}, v{VB+4*q}, v{VB+4*q+2}, {SSTEP} bitop3:0x7e'); a(f'v_and_b32 v{PT+4+q}, 1, v{PT+4+q}')
        for q in range(4): a(f'v_cmp_ne_u32 {MV[q]}, 0, v{PT+4+q}')
        mask_or(a, MV)
    gather_setup(a, 1)
    ts = opt.get('tsleep', 2) if duty else opt.get('nsleep', 5)
    if ts: a(f's_sleep {ts}')
    SEP = opt.get('sep', 0)
    if duty and SEP:
        lv, lvd = a.label('Lp'), a.label('Lp')
        ldv()
        for r in range(4): a(f'v_mov_b32 v{ACC+r}, 0')
        a('s_waitcnt vmcnt(0)'); vcheck()
        a(f's_cbranch_scc0 {lvd}')
        a(f'{lv}:')
        ldv(MV); a('s_waitcnt vmcnt(0)'); vcheck()
        a(f's_cbranch_scc0 {lvd}')
        budget_loop(a, lv, lvd)
        a(f'{lvd}:')
        stamp(a, opt, 2)
        if opt.get('psl'): a(f's_sleep {opt["psl"]}')
        ldp()
    elif duty:
        ldv(); ldp()
        for r in range(4): a(f'v_mov_b32 v{ACC+r}, 0')
        a(f's_waitcnt vmcnt({n})'); vcheck()
        if not opt.get('novc'): a(f's_cbranch_scc1 {lt}')
        stamp(a, opt, 2)
    else: ldp()
    pcheck_m(True)
    a(f's_cbranch_scc1 {lp}')
    a(f'{ld}:')
    stamp(a, opt, 4)
    def ool2():
        PD = opt.get('pdep', 1) - 1; gap = opt.get('pgap', 2)
        ltb, lpb, lwr = [a.label('Lp') for _ in range(3)]
        if duty:
            a(f'{lt}:')
            a('s_waitcnt vmcnt(0)'); pcheck_m(False)
            for _ in range(PD): ldv(MV); ld_masked(a, n, R, 's76', ML); a(f's_sleep {gap}')
            a(f'{ltb}:')
            ldv(MV); ld_masked(a, n, R, 's76', ML)
            a(f's_waitcnt vmcnt({(4 + n)*PD})'); pcheck_m(False); a('s_cselect_b32 s51, 1, 0'); vcheck()
            a(f's_cbranch_scc0 {ltd}')
            budget_loop(a, ltb, ltd)
            a(f'{ltd}:')
            stamp(a, opt, 2)
            a('s_cmp_eq_u32 s51, 0'); a(f's_cbranch_scc1 {lwr}')
            if PD: a(f's_branch {lpb}')
        a(f'{lp}:')
        for _ in range(PD): ld_masked(a, n, R, 's76', ML); a(f's_sleep {gap}')
        a(f'{lpb}:')
        ld_masked(a, n, R, 's76', ML); a(f's_waitcnt vmcnt({n*PD})'); pcheck_m(False)
        a(f's_cbranch_scc0 {lwr}')
        budget_loop(a, lpb, lwr)
        a(f'{lwr}:')
        for c in range(n): pwrite(c)
        a(f's_branch {ld}')
    if not duty: a('s_waitcnt lgkmcnt(0)'); a('s_barrier'); a('s_waitcnt vmcnt(0)')
    if duty:
        bop = lambda pp: f'v[{VOX+8*pp}:{VOX+8*pp+7}]' if pp < 8 else f'v[{VB+8*(pp-8)}:{VB+8*(pp-8)+7}]'
        rest = [c for c in range(10) if c not in OWN[w]]
        a(smf(ACC, R, bop(OWN[w][0])))
        a('s_waitcnt lgkmcnt(0)'); a('s_barrier')
        for c in rest[:3]: a(f'ds_read_b128 v[{VA+4*c}:{VA+4*c+3}], v{VAR} offset:{c*1024}')
        k = 3
        for j in range(1, n):
            a(smf(ACC, R + 4*j, bop(OWN[w][j])))
            for c in rest[k:k+2]: a(f'ds_read_b128 v[{VA+4*c}:{VA+4*c+3}], v{VAR} offset:{c*1024}')
            k += 2
        for c in rest[k:]: a(f'ds_read_b128 v[{VA+4*c}:{VA+4*c+3}], v{VAR} offset:{c*1024}')
        for j, pp in enumerate(rest):
            a(f's_waitcnt lgkmcnt({len(rest)-1-j})' if pp != 8 else 's_waitcnt vmcnt(0) lgkmcnt(1)')
            a(smf(ACC, VA + 4*pp, bop(pp)))
        for s_ in post(ACC, ACC): a(s_)
        a(f'v_xor_b32 v{ACC}, s50, v{ACC}')
        for s_ in pairup(ACC, ACC + 1): a(s_)
        for so, fl in ([('s78', 'sc1'), ('s77', sc)] if opt.get('rfirst') else [('s77', sc), ('s78', 'sc1')]):
            a(f'buffer_store_dword v{ACC}, v{V12}, {S_WS}, {so} offen {fl}')
        stamp(a, opt, 6)
        if opt.get('diagp'): a('s_waitcnt vmcnt(1)'); stamp(a, opt, 2); a('s_waitcnt vmcnt(0)'); stamp(a, opt, 3)
    elif w == 3:
        lnc = a.label('Lnx')
        a(f's_cmp_lt_u32 {SSTEP}, {4*NMB}'); a(f's_cbranch_scc1 {lnc}')
        cprog(a)
        a(f'{lnc}:')
    stamp_flush(a, opt, 8)
    a(f's_add_u32 {SSTEP}, {SSTEP}, 1'); a(f's_branch {ltop}')
    ool(); ool2(); ool5()

def chain_main(a, opt):
    lvo = a.label('Lrole_vo')
    tstamp(a, opt, 0, (14, 15))
    STREAM[0] = opt.get('stream', 'sc1')
    a(f's_lshr_b32 {SX}, {SSLOT}, 5'); a(f's_and_b32 s67, {SSLOT}, 15'); a(f's_lshl_b32 {SH}, {SX}, 4'); a(f's_add_u32 {SH}, {SH}, s67')
    a(f's_mov_b32 {STMO}, {opt.get("tmo", 1 << 21)}'); a(f's_mov_b32 {SSTEP}, 0')
    srd(a, S_AUX, 's[38:39]', 8*640*2)
    a(f's_add_u32 {SMR}, s60, {MEMR_OFF + 0x7ffff}'); a(f's_and_b32 {SMR}, {SMR}, 0xfff80000'); a(f's_sub_u32 {SMR}, {SMR}, s60')
    a(f's_mul_i32 s58, {SWV}, 3072'); a(f's_lshl_b32 s67, {SWV}, 11'); a('s_add_u32 s67, s67, 12288'); a(f's_cmp_ge_u32 {SWV}, 2'); a('s_cselect_b32 s58, s67, s58')
    a(f's_mov_b32 {S_ONE0}, 0x00003f80'); a(f's_mov_b32 {S_ONE1}, 0x3f800000')
    a(f's_bitcmp1_b32 {SSLOT}, 4'); a(f's_cbranch_scc1 {lvo}')
    for role in ('qk', 'vo'):
        if role == 'vo': a(f'{lvo}:')
        if role == 'qk':
            srd(a, S_WA, 's[40:41]', 640*6144*2); srd(a, S_WB, 's[42:43]', 640*6144*2); qk_setup(a, opt)
        else:
            srd(a, S_WA, 's[44:45]', 640*6144*2); srd(a, S_WB, 's[46:47]', 640*6144*2); vo_setup(a, opt)
        l1, l2, l3 = a.label('Ls'), a.label('Ls'), a.label('Ls')
        a(f's_mov_b32 {SPC}, 0')
        a(f's_cmp_lg_u32 {SWV}, 0'); a(f's_cbranch_scc1 {l2}')
        mem0_load(a)
        a(f'{l2}:')
        def after_first(n, vm):
            if n == 0:
                a(f's_cmp_lg_u32 {SWV}, 0'); a(f's_cbranch_scc1 {l3}')
                mem0_write(a)
                a(f'{l3}:')
            if n == 1: rot_load(a, 172, 173); vm.issue('rot')
            if n == 13:
                rot_check(a, 172, 173, True)
                if role == 'vo':
                    vo_init_clear(a)
                    for _ in range(15): vm.issue('init')
                a(f's_cmp_lg_u32 {SWV}, 0'); a(f's_cbranch_scc1 {l1}')
                if role == 'qk': qk_init_clear(a)
                a(f's_lshl_b32 s67, 1, {SXCC}'); a(f'v_mov_b32 v{VT0}, s67'); a(f's_lshl_b32 s67, {SX}, 2'); a(f'v_mov_b32 v{VT1}, s67')
                a('s_mov_b64 exec, 1')
                a(f'buffer_atomic_or v{VT0}, v{VT1}, {S_DBG}, 0 offen sc1')
                a('s_mov_b64 exec, -1')
                a(f'{l1}:')
            if n == 32: a(f'v_lshlrev_b32 v173, 2, v0'); a(f'buffer_load_dword v172, v173, {S_DBG}, 0 offen sc1'); vm.issue('rdy')
            if n == 14 + opt.get('ldep', 6):
                l4 = a.label('Ls')
                a(f's_cmp_lg_u32 {SWV}, 0'); a(f's_cbranch_scc1 {l4}')
                a(f'v_mov_b32 v{VT0}, 1'); a(f'v_mov_b32 v{VT1}, {DBG_READY*4}')
                a('s_mov_b64 exec, 1')
                a(f'buffer_atomic_add v{VT0}, v{VT1}, {S_DBG}, 0 offen sc1')
                a('s_mov_b64 exec, -1')
                a(f'{l4}:')
        loader(a, role, after_first, opt.get('ldep', 6))
        tstamp(a, opt, 1, (14, 15))
        lp, ld, lslow = a.label('Lr'), a.label('Lrd'), a.label('Lslow')
        lc = a.label('Lrc')
        a(f'v_lshlrev_b32 v{VT1}, 2, v0'); a(f'v_mov_b32 v{VT0}, v172')
        a(f's_branch {lc}')
        a(f'{lp}:')
        a(f'buffer_load_dword v{VT0}, v{VT1}, {S_DBG}, 0 offen sc1'); a('s_waitcnt vmcnt(0)')
        a(f'{lc}:')
        a(f'v_readlane_b32 s67, v{VT0}, {DBG_READY}')
        a(f'v_readlane_b32 s68, v{VT0}, {DBG_VOTE}'); a(f's_cmp_lt_u32 s68, {NAREA*256}'); a('s_cselect_b32 s67, 0, s67')
        if not opt.get('noflags'):
            a(f'v_readlane_b32 s68, v{VT0}, {DBG_AREA}'); a(f's_cmp_lt_u32 s68, {NAREA}'); a('s_cselect_b32 s67, 0, s67')
        a(f's_cmp_eq_u32 {STMO}, 0'); a(f's_cbranch_scc1 {ld}')
        a(f's_sub_u32 {STMO}, {STMO}, 1')
        a('s_cmp_lt_u32 s67, 64'); a(f's_cbranch_scc1 {lp}')
        a(f'{ld}:')
        a(f'v_readlane_b32 s67, v{VT0}, {DBG_VOTE}'); a('s_and_b32 s67, s67, 255'); a(f's_cmp_gt_u32 s67, {NAREA//2}'); a('s_cselect_b32 s67, 1, 0')
        a(f'v_readlane_b32 s68, v{VT0}, 0'); a('s_cmp_gt_u32 s68, 15'); a('s_cselect_b32 s68, 1, 0'); a('s_xor_b32 s67, s67, s68'); a('s_lshl_b32 s67, s67, 13')
        if 'par' in opt: a(f's_mov_b32 s67, {opt["par"]*8192}')
        a(f's_add_u32 {SMR}, {SMR}, s67')
        a(f'v_readlane_b32 s67, v{VT0}, 0'); a(f'v_readlane_b32 s68, v{VT0}, 1')
        a('s_bcnt1_i32_b32 s67, s67'); a('s_bcnt1_i32_b32 s68, s68'); a('s_max_u32 s67, s67, s68')
        if opt.get('force_slow'): a('s_mov_b32 s67, 2')
        a('s_cmp_lg_u32 s67, 1'); a(f's_cbranch_scc1 {lslow}')
        for sc in ('', 'sc1'):
            if sc: a(f'{lslow}:')
            if role == 'qk':
                labs = [a.label('Lw') for _ in range(4)]
                for w in range(1, 4): a(f's_cmp_eq_u32 {SWV}, {w}'); a(f's_cbranch_scc1 {labs[w]}')
                for w in range(4):
                    a(f'{labs[w]}:'); qk_loop(a, w, sc, opt)
            else:
                labs = [a.label('Lw') for _ in range(5)]
                a(f's_cmp_eq_u32 {SWV}, 1'); a(f's_cbranch_scc1 {labs[1]}'); a(f's_cmp_eq_u32 {SWV}, 3'); a(f's_cbranch_scc1 {labs[4]}')
                a(f's_cmp_ge_u32 {SDT}, 40'); a(f's_cbranch_scc1 {labs[3]}'); a(f's_cmp_eq_u32 {SWV}, 2'); a(f's_cbranch_scc1 {labs[2]}')
                for i, (w, duty) in enumerate([(0, True), (1, True), (2, True), (2, False), (3, False)]):
                    a(f'{labs[i]}:'); vo_loop(a, w, duty, sc, opt)
```

```python
from common import *

SG, SU = 's62', 's63'
SSEG = 's66'
S_X = 's[20:23]'
VL16, VD, VFLG, VONE, VT0, VT1, VRD, VPV, VMAX = 1, 2, 3, 4, 5, 6, 7, 8, 9
VR0 = 10
WRING = 81920

def mfma(d, A, B, first): return f'v_mfma_f32_16x16x32_bf16 v[{d}:{d+3}], {A}, {B}, ' + ('0' if first else f'v[{d}:{d+3}]')
def allred(op, v, t):
    r = []
    for st in (16, 32): r += [f'v_mov_b32 v{t}, v{v}', f'v_permlane{st}_swap_b32 v{v}, v{t}', f'{op} v{v}, v{v}, v{t}']
    return r
def wreg(f, vbase):
    return ('a', 4*f) if f < 64 else ('v', vbase + 4*(f - 64))
def wstr(f, vbase):
    k, b = wreg(f, vbase); return f'{k}[{b}:{b+3}]'

def area_wait(a):
    lp, ld = a.label('Lgp'), a.label('Lgd')
    a(f's_mov_b32 s92, {DBG_AREA*4}')
    a(f'{lp}:')
    a(f'buffer_load_dword v{VT0}, v{VFLG}, {S_DBG}, s92 offen sc1'); a('s_waitcnt vmcnt(0)')
    a(f'v_readfirstlane_b32 s93, v{VT0}')
    a(f's_cmp_ge_u32 s93, {NAREA}'); a(f's_cbranch_scc1 {ld}')
    a('s_sleep 8')
    budget_loop(a, lp, ld)
    a(f'{ld}:')
def ln_wait(a):
    lp, ld = a.label('Lgp'), a.label('Lgd')
    a(f'v_lshlrev_b32 v{VT1}, 7, v0'); a(f's_mov_b32 s92, {LNF_OFF}')
    a(f'{lp}:')
    a(f'buffer_load_dword v{VT0}, v{VT1}, {S_WS}, s92 offen sc1'); a('s_waitcnt vmcnt(0)')
    a(f'v_cmp_ne_u32 vcc, 1, v{VT0}')
    a(f's_cbranch_vccz {ld}')
    a('s_sleep 4')
    budget_loop(a, lp, ld)
    a(f'{ld}:')

def late_start(a, opt):
    if opt.get('nolate'): return
    lp, ld = a.label('Lls'), a.label('Lld')
    rot_check(a, VT0, VT1)
    area_wait(a)
    a(f's_mov_b32 s92, {PRGX_OFF + 200*128}')
    a(f'{lp}:')
    a(f'buffer_load_dword v{VT0}, v{VFLG}, {S_WS}, s92 offen sc1'); a('s_waitcnt vmcnt(0)')
    a(f'v_readfirstlane_b32 s93, v{VT0}')
    a('s_cmp_ge_u32 s93, 1'); a(f's_cbranch_scc1 {ld}')
    a('s_sleep 32')
    budget_loop(a, lp, ld)
    a(f'{ld}:')

def wloader(a, nsl, soff, dest, stride, hook, NS=5, ring=WRING):
    vm = Trk(a, 'vmcnt', 63)
    a(f'v_lshrrev_b32 v20, 3, v0'); a('v_and_b32 v21, 6, v20'); a(f'v_and_b32 v{VD}, 7, v0')
    a(f'v_xor_b32 v{VD}, v{VD}, v21'); a(f'v_lshlrev_b32 v{VD}, 4, v{VD}'); a(f'v_mad_u32_u24 v{VD}, v20, {stride}, v{VD}')
    a(f's_lshl_b32 s71, {stride}, 3')
    a(f's_mul_i32 s72, {SWV}, {NS*4096}'); a(f's_add_u32 s72, s72, {ring}')
    def dma(n):
        for s_ in soff(n): a(s_)
        for rb in range(4):
            a(f's_add_u32 m0, s72, {(n % NS)*4096 + rb*1024}')
            if rb: a('s_add_u32 s73, s73, s71')
            else: a('s_nop 0')
            a(f'buffer_load_dwordx4 v{VD}, {S_WA}, s73 offen lds'); vm.issue(n)
    for n in range(NS): dma(n)
    row = lambda l: 4*((l >> 4) & 1) + ((l >> 2) & 3)
    lanefn(a, 20, lambda l: (row(l) & 6) | ((l >> 1) & 1), 21)
    lanefn(a, VR0, lambda l: (l >> 5)*1024 + row(l)*128 + (l & 1)*8, 21)
    a(f'v_lshl_add_u32 v{VR0}, v20, 4, v{VR0}'); a(f'v_add_u32 v{VR0}, s72, v{VR0}')
    for tt in range(1, 4): a(f'v_xor_b32 v{VR0+tt}, {tt*32}, v{VR0}')
    for n in range(nsl):
        vm.wait(n)
        for tt in range(4):
            k, b = dest(n, tt)
            for x in range(2): a(f'ds_read_b64_tr_b16 {k}[{b+2*x}:{b+2*x+1}], v{VR0+tt} offset:{(n % NS)*4096 + x*2048}')
        hook(n, vm)
        a('s_waitcnt lgkmcnt(0)')
        if n + NS < nsl: dma(n + NS)

def spread(lst, n, total):
    return (lst * (n + 1) + total - 1) // total - (lst * n + total - 1) // total

def x_unit(a, opt):
    ACC, XB, STG, WV = 64, 128, 160, 192
    SSTR, SPRG, SOB, SOS, SXD, SXL = 's74', 's75', 's76', 's77', 's78', 's79'
    a(f's_mul_i32 s67, {SU}, 43'); a('s_lshr_b32 s67, s67, 10')
    a('s_mul_i32 s68, s67, 24'); a(f's_sub_u32 s68, {SU}, s68')
    a('s_lshl_b32 s68, s68, 2'); a(f's_add_u32 s68, s68, {SWV}')
    a('s_lshl_b32 s70, s68, 7')
    a('s_mov_b32 s16, s40'); a('s_mov_b32 s17, s41')
    for m, p in ((1, 42), (2, 44), (3, 52)):
        a(f's_cmp_eq_u32 s67, {m}'); a(f's_cselect_b32 s16, s{p}, s16'); a(f's_cselect_b32 s17, s{p+1}, s17')
    a(f's_cselect_b32 {SSTR}, 3, 12'); a(f's_cselect_b32 s69, 0, 0x80008000'); a(f'v_mov_b32 v{VMAX}, s69')
    a(f's_mul_i32 {SSTR}, {SSTR}, 1024'); a(f's_mul_i32 s18, {SSTR}, 640')
    a(f's_lshl_b32 {SPRG}, {SU}, 9'); a(f's_lshl_b32 s69, {SWV}, 7'); a(f's_add_u32 {SPRG}, {SPRG}, s69'); a(f's_add_u32 {SPRG}, {SPRG}, {PRGX_OFF}')
    a('s_mul_i32 s69, s68, 171'); a('s_lshr_b32 s69, s69, 9')
    a('s_mul_i32 s80, s69, 3'); a('s_sub_u32 s80, s68, s80'); a('s_lshl_b32 s80, s80, 11')
    a(f's_mul_i32 {SOB}, s69, 12288'); a(f's_add_u32 {SOB}, {SOB}, s80')
    a(f's_mov_b32 s69, {QF_OFF}')
    a('s_cmp_eq_u32 s67, 1'); a(f's_cselect_b32 s69, {KF_OFF}, s69')
    a('s_cmp_eq_u32 s67, 2'); a(f's_cselect_b32 s69, {VF_OFF}, s69')
    a('s_cmp_eq_u32 s67, 3'); a(f's_cselect_b32 s69, {VF_OFF + 32*12288}, s69')
    a(f's_add_u32 {SOB}, {SOB}, s69')
    a('s_cmp_ge_u32 s67, 2'); a(f's_cselect_b32 {SOS}, 40, 32'); a(f's_mul_i32 {SOS}, {SOS}, 12288')
    a(f's_lshl_b32 s81, {SSTR}, 5')
    SNX, SNM, SCNT, SNJ = 's85', 's86', 's87', 's88'
    J = ['s89', 's90', 's91', 's94']
    a('s_sub_u32 s69, s67, 1'); a('s_cmp_lt_u32 s69, 2'); a(f's_cselect_b32 {SCNT}, {LEAD}, 0xffff'); a(f's_cselect_b32 {SNJ}, {64 + NPM}, 64')
    a(f's_mov_b32 {SNX}, 0'); a(f's_mov_b32 {SNM}, 0')
    lu = a.label('Lu')
    a(f's_cmp_lg_u32 {SNJ}, 64'); a(f's_cbranch_scc1 {lu}')
    late_start(a, opt)
    a(f'{lu}:')
    a(f's_mul_i32 s95, {SWV}, 10240'); a(f's_mov_b32 {SXL}, s95')
    ools = []
    def mwait():
        lp, ld = a.label('Lmp'), a.label('Lmd')
        a(f'v_min_u32 v{VT1}, 9, v0'); a(f'v_lshlrev_b32 v{VT1}, 7, v{VT1}'); a(f's_lshl_b32 s92, {SNM}, 2'); a('s_add_u32 s92, s92, 4'); a(f's_mov_b32 s93, {MPRG_OFF}')
        a(f'{lp}:')
        a(f'buffer_load_dword v{VT0}, v{VT1}, {S_WS}, s93 offen sc1'); a('s_waitcnt vmcnt(0)')
        a(f'v_cmp_gt_u32 vcc, s92, v{VT0}')
        a(f's_cbranch_vccz {ld}')
        a(f's_sleep {opt.get("msleep", 2)}')
        budget_loop(a, lp, ld)
        a(f'{ld}:')
    def nextjob(dst):
        lm, lb = a.label('Lnm'), a.label('Lnb')
        def br(): a(f's_cbranch_scc1 {lm}'); a(f's_mov_b32 {dst}, {SNX}'); a(f's_add_u32 {SNX}, {SNX}, 1'); a(f's_sub_u32 {SCNT}, {SCNT}, 1'); a(f'{lb}:')
        def ool():
            a(f'{lm}:'); mwait()
            a(f's_add_u32 {dst}, {SNM}, 64'); a(f's_add_u32 {SNM}, {SNM}, 1'); a(f's_cmp_lt_u32 {SNM}, {NPM}'); a(f's_cselect_b32 {SCNT}, 4, 0xffff')
            a(f's_branch {lb}')
        ools.append(ool)
        return [f's_cmp_eq_u32 {SCNT}, 0', br, f's_mul_i32 {SXD}, {dst}, 40960', f's_add_u32 {SXD}, {SXD}, s95']
    def xdma():
        r = []
        for j in range(10):
            if j % 4 == 0: r += [f's_add_u32 m0, {SXL}, {j*1024}', f's_add_u32 s73, {SXD}, {XN_OFF + j*1024}']
            r.append(f'buffer_load_dwordx4 v{VL16}, {S_WS}, s73 offen offset:{(j&3)*1024} sc1 lds')
        return r
    def xadv(): return [f's_add_u32 {SXL}, {SXL}, 40960', f's_cmp_ge_u32 {SXL}, 163840', 's_cselect_b32 s73, 163840, 0', f's_sub_u32 {SXL}, {SXL}, s73']
    def em(lst):
        for s_ in lst:
            if callable(s_): s_()
            elif s_: a(s_)
    def hook(n, vm):
        if n == 19:
            lw = a.label('Lxw')
            rot_check(a, VT0, VT1)
            a(f's_cmp_lg_u32 {SWV}, 0'); a(f's_cbranch_scc1 {lw}')
            area_wait(a); ln_wait(a)
            a(f'{lw}:'); a('s_waitcnt lgkmcnt(0)'); a('s_barrier')
            for j in range(2):
                em(nextjob(J[1 + j]) + xdma() + xadv())
                for _ in range(10): vm.issue('x')
    wloader(a, 20, lambda n: [f's_mul_i32 s73, s81, {n}', 's_add_u32 s73, s73, s70'], lambda n, tt: wreg(n*4 + tt, WV), SSTR, hook, *((10, 0) if opt.get('deepw', 0) else ()))
    a('s_waitcnt vmcnt(0)'); a('s_barrier')
    tstamp(a, opt, 1, (14, 15))
    em(nextjob(J[3]) + xdma())
    LA = 4
    def xread(f):
        kk, ct = f >> 1, f & 1; b = XB + (f % 8)*4
        return f'ds_read_b128 v[{b}:{b+3}], v{VRD} offset:{ct*20480 + kk*1024}'
    a(f'v_mov_b32 v{VRD}, v{VL16}'); a('s_mov_b32 s82, 0')
    for f in range(LA): a(xread(f))
    def epi(par):
        r = [f's_mul_i32 s84, {J[0]}, {SOS}', f's_add_u32 s84, s84, {SOB}', 's_add_u32 s83, s84, 6144',
             f's_sub_u32 s93, {J[0]}, {LEAD-4}', 's_max_i32 s93, s93, 0', 's_lshr_b32 s93, s93, 2', f's_add_u32 s93, s93, {J[0]}',
             f's_mul_i32 s92, {J[0]}, 5', f's_sub_u32 s92, s92, {320 - LEAD}', f's_min_u32 s92, s92, {J[0]}',
             f's_cmp_lt_u32 {J[0]}, 64', 's_cselect_b32 s93, s93, s92', 's_add_u32 s93, s93, 1', f'v_mov_b32 v{VPV}, s93']
        for ct in range(2):
            for j in range(2):
                o = STG + (ct*2 + j)*4
                for x in range(4):
                    b = ACC + par*32 + ((2*j + (x >> 1))*2 + ct)*4 + (x & 1)*2
                    r.append(f'v_cvt_pk_bf16_f32 v{o+x}, v{b}, v{b+1}')
                for x in range(4): r.append(f'v_pk_max_i16 v{o+x}, v{o+x}, v{VMAX}')
                r.append(f'buffer_store_dwordx4 v[{o}:{o+3}], v{VL16}, {S_WS}, {"s84" if ct == 0 else "s83"} offen offset:{j*1024} sc1')
        return r
    def prg(): return ['s_waitcnt vmcnt(0)', f'buffer_store_dword v{VPV}, v{VFLG}, {S_WS}, {SPRG} offen sc1']
    def stream(par, early, mid, late, cont):
        ne, nl = len(early), len(late)
        for n in range(160):
            f, tt = n >> 2, n & 3
            kk, ct = f >> 1, f & 1
            if tt == 0: a(f's_waitcnt lgkmcnt({LA-1 if (cont or f + LA <= 40) else 39 - f})')
            d = ACC + par*32 + (tt*2 + ct)*4; b = XB + (f % 8)*4
            a(mfma(d, wstr(kk*4 + tt, WV), f'v[{b}:{b+3}]', kk == 0))
            if n == 143 and cont: a('s_barrier'); a(f'v_add_u32 v{VRD}, s82, v{VL16}')
            if tt == 0 and (cont or f + LA < 40): a(xread((f + LA) % 40))
            if n < 70: em([early.pop(0) for _ in range(spread(ne, n, 70))])
            if n == opt.get('xpg', 90): em(mid)
            if n >= 144: em([late.pop(0) for _ in range(spread(nl, n - 144, 16))])
        assert not early and not late
    a(f's_mov_b32 {SSEG}, 0'); a(f's_mov_b32 s64, {SOB}'); a(f's_mov_b32 {SOB}, {OOB}'); a(f's_mov_b32 s7, {SPRG}'); a(f's_mov_b32 {SPRG}, {OOB}'); a(f's_mov_b32 {J[0]}, 0')
    lt, lx0, lx1, lx2, ltail = [a.label('Lx') for _ in range(5)]
    a(f'{lt}:')
    for par in range(2):
        early = [None, None, None] + epi(par ^ 1) + xadv() + ['s_add_u32 s82, s82, 40960', 's_cmp_ge_u32 s82, 163840', 's_cselect_b32 s82, 0, s82']
        mid = prg() + [f's_mov_b32 {SOB}, s64', f's_mov_b32 {SPRG}, s7', f's_mov_b32 {J[0]}, {J[1]}', f's_mov_b32 {J[1]}, {J[2]}', f's_mov_b32 {J[2]}, {J[3]}'] + nextjob(J[3])
        stream(par, early, mid, xdma(), True)
        tstamp(a, opt, (SSEG, 8), (14, 15))
        a(f's_add_u32 {SSEG}, {SSEG}, 1'); a(f's_cmp_ge_u32 {SSEG}, {SNJ}'); a(f's_cbranch_scc1 {lx0 if par == 0 else lx1}')
    a(f's_branch {lt}')
    a(f'{lx1}:')
    em(epi(1) + prg())
    a(f's_branch {lx2}')
    a(f'{lx0}:')
    em(epi(0) + prg())
    a(f'{lx2}:')
    a(f's_cmp_lt_u32 {SU}, 24'); a('s_cselect_b32 s68, 0, 48'); a(f's_sub_u32 s68, {SU}, s68')
    a(f's_cmp_eq_u32 {SNJ}, 64'); a('s_cbranch_scc1 L_f2')
    a(f'{ltail}:')
    mwait()
    a(f's_add_u32 {J[0]}, {SNM}, 64'); a(f's_mul_i32 {SXD}, {J[0]}, 40960'); a(f's_add_u32 {SXD}, {SXD}, s95'); a(f's_mov_b32 {SXL}, s95')
    a('s_waitcnt lgkmcnt(0)'); a('s_barrier')
    em(xdma())
    a(f'v_mov_b32 v{VRD}, v{VL16}')
    a('s_waitcnt vmcnt(0)'); a('s_barrier')
    for f in range(LA): a(xread(f))
    stream(0, [], [], [], False)
    em(epi(0) + prg())
    tstamp(a, opt, (SSEG, 8), (14, 15))
    a(f's_add_u32 {SSEG}, {SSEG}, 1')
    a(f's_add_u32 {SNM}, {SNM}, 1'); a(f's_cmp_lt_u32 {SNM}, {NMB}'); a(f's_cbranch_scc1 {ltail}')
    a('s_waitcnt vmcnt(0)'); a('s_endpgm')
    for o in ools: o()

def y_unit(a, opt):
    VF, ACC, STG, WV = 64, 112, 128, 224
    SPRG, SOB, SVB, SPX, SPA = 's75', 's76', 's77', 's78', 's79'
    a(f's_cmp_ge_u32 {SU}, 32'); a('s_cselect_b32 s16, s54, s46'); a('s_cselect_b32 s17, s55, s47')
    a('s_cselect_b32 s18, 1, 4'); a(f's_mul_i32 s18, s18, {1536*1280}')
    a(f's_and_b32 s67, {SU}, 31'); a(f's_mul_i32 s70, s67, {192*1280}'); a(f's_lshl_b32 s67, {SWV}, 7'); a('s_add_u32 s70, s70, s67')
    a(f's_mul_i32 {SPRG}, {SWV}, 40'); a(f's_add_u32 {SPRG}, {SPRG}, {SU}'); a(f's_lshl_b32 {SPRG}, {SPRG}, 7'); a(f's_add_u32 {SPRG}, {SPRG}, {PRGY_OFF}')
    SJOB, SNX, SNM, SCNT, SPOS, SMB = 's84', 's85', 's86', 's87', 's88', 's89'
    VMJ = 16
    a(f's_lshl_b32 {SOB}, {SU}, 10'); a(f's_mul_i32 s67, {SWV}, {4*40960}'); a(f's_add_u32 {SOB}, {SOB}, s67'); a(f's_add_u32 {SOB}, {SOB}, {VOF_OFF}')
    a(f's_mul_i32 {SMB}, {SU}, 10240'); a(f's_lshl_b32 s67, {SWV}, 10'); a(f's_add_u32 {SMB}, {SMB}, s67'); a(f's_add_u32 {SMB}, {SMB}, {VOM_OFF}')
    a(f's_mul_i32 {SVB}, {SU}, 12288'); a(f's_and_b32 s67, {SWV}, 1'); a('s_mul_i32 s80, s67, 6144'); a(f's_add_u32 {SVB}, {SVB}, s80'); a(f's_add_u32 {SVB}, {SVB}, {VF_OFF}')
    a(f's_mul_i32 {SPA}, {SU}, 384'); a(f's_add_u32 {SPA}, {SPA}, {PRGX_OFF + 192*128}'); a(f's_mov_b32 {SPX}, 0')
    lanefn(a, VMJ, lambda l: (l >> 5)*327680 + (l & 15)*16 + ((l >> 4) & 1)*8, 17)
    a('s_mov_b32 s74, 1280')
    lu = a.label('Lu')
    a(f's_cmp_lt_u32 {SU}, 32'); a(f's_cbranch_scc1 {lu}')
    late_start(a, opt)
    a(f'{lu}:')
    l2 = a.label('Ly2')
    a(f's_cmp_ge_u32 {SWV}, 2'); a(f's_cbranch_scc1 {l2}')
    for ng in (3, 2):
        if ng == 2: a(f'{l2}:')
        def hook(n, vm): pass
        wloader(a, 6*ng, lambda n: [f's_add_u32 s73, s70, {(n // 6)*512 + (n % 6)*32*1280}'],
                lambda n, tt: wreg(((n // 6)*4 + tt)*6 + n % 6, WV), 's74', hook, *((8, 32768) if opt.get('deepw', 0) else ()))
        rot_check(a, VT0, VT1)
        tstamp(a, opt, 1, (14, 15))
        SJ2, SP2, SPF = 's94', 's95', 's64'
        def poll():
            a(f'buffer_load_dword v{VT0}, v{VT1}, {S_WS}, {SPA} offen sc1')
        def take():
            for j in range(3): a(f'v_readlane_b32 s{81+j}, v{VT0}, {j}')
            a('s_min_u32 s81, s81, s82'); a(f's_min_u32 {SPX}, s81, s83')
        def dma():
            a(f's_andn2_b32 s81, 1, {SSEG}'); a('s_mul_i32 s81, s81, 12288'); a('s_add_u32 s81, s81, s80')
            a(f's_mul_i32 s82, {SJ2}, {40*12288}'); a(f's_add_u32 s82, s82, {SVB}')
            for j in range(6):
                if j % 4 == 0: a(f's_add_u32 m0, s81, {j*1024}'); a(f's_add_u32 s73, s82, {j*1024}')
                a(f'buffer_load_dwordx4 v{VL16}, {S_WS}, s73 offen offset:{(j&3)*1024} sc1 lds')
        def fetch():
            lp, ld = a.label('Lyp'), a.label('Lyd')
            a(f's_cmp_gt_u32 {SPX}, {SP2}'); a(f's_cbranch_scc1 {ld}')
            a(f'{lp}:')
            poll(); a('s_waitcnt vmcnt(0)'); take()
            a(f's_cmp_gt_u32 {SPX}, {SP2}'); a(f's_cbranch_scc1 {ld}')
            a('s_sleep 2')
            budget_loop(a, lp, ld)
            a(f'{ld}:')
            dma()
        def nextjob():
            lnx, lgo = a.label('Lyn'), a.label('Lyg')
            a(f's_add_u32 {SP2}, {SPOS}, 1')
            a(f's_cmp_lg_u32 {SCNT}, 0'); a(f's_cbranch_scc1 {lnx}')
            a(f's_add_u32 {SJ2}, {SNM}, 64'); a(f's_add_u32 {SNM}, {SNM}, 1'); a(f's_cmp_lt_u32 {SNX}, 64'); a(f's_cselect_b32 {SCNT}, 4, 0')
            a(f's_cmp_lt_u32 {SU}, 32'); a(f's_cbranch_scc1 {lgo}')
            a(f's_mov_b32 {SJ2}, 80'); a(f's_cmp_ge_u32 {SNX}, 64'); a(f's_cbranch_scc1 {lgo}')
            a(f's_add_u32 {SP2}, {SP2}, 1')
            a(f'{lnx}:')
            a(f's_mov_b32 {SJ2}, {SNX}'); a(f's_add_u32 {SNX}, {SNX}, 1'); a(f's_sub_u32 {SCNT}, {SCNT}, 1')
            a(f'{lgo}:')
        a(f's_mov_b32 {SSEG}, -1'); a(f's_mov_b32 {SJ2}, 0'); a(f's_mov_b32 {SP2}, 0'); a(f's_mov_b32 {SNX}, 1'); a(f's_mov_b32 {SNM}, 0'); a(f's_mov_b32 {SCNT}, {LEAD-1}')
        a(f'v_mov_b32 v{VPV}, 0'); a('v_mov_b32 v17, 24576')
        a(f'v_min_u32 v{VT1}, 2, v0'); a(f'v_lshlrev_b32 v{VT1}, 7, v{VT1}')
        if ng == 2:
            area_wait(a)
            fetch(); a('s_waitcnt vmcnt(0)')
        lt, lm, lj, le, lnp, lpf = [a.label('Ly') for _ in range(6)]
        a(f'{lt}:')
        a(f's_add_u32 {SSEG}, {SSEG}, 1'); a(f's_mov_b32 {SJOB}, {SJ2}'); a(f's_mov_b32 {SPOS}, {SP2}')
        a(f's_and_b32 s81, {SSEG}, 1'); a('s_mul_i32 s81, s81, 12288'); a(f'v_add_u32 v{VRD}, s81, v{VL16}')
        a(f's_mul_i32 s90, {SJOB}, {40*40960}'); a(f's_add_u32 s90, s90, {SOB}')
        a(f's_sub_u32 s91, {SJOB}, 64'); a(f's_mul_i32 s91, s91, {4*327680}'); a(f's_add_u32 s91, s91, {SMB}')
        a('s_barrier')
        for ks in range(6):
            for ct in range(2):
                b = VF + (ct*6 + ks)*4
                a(f'ds_read_b128 v[{b}:{b+3}], v{VRD} offset:{(ct*6 + ks)*1024}')
        nextjob()
        if ng == 2:
            pass
        a(f's_cmp_ge_u32 {SJOB}, 64'); a(f's_cbranch_scc1 {lm}')
        for mj in (0, 1):
            if mj: a(f'{lm}:')
            def out(i):
                gi, tt = i >> 2, i & 3
                o = STG + (i & 3)*4
                if mj: r = [f's_add_u32 s82, s91, {gi*4096}', f's_add_u32 s83, s91, {gi*4096 + 2*327680}'] if tt == 0 else []
                else: r = [f's_add_u32 s83, s90, {(16*gi + tt)*40960}']
                for ct in range(2):
                    b = ACC + (i & 1)*8 + ct*4
                    for x in range(2): r.append(f'v_cvt_pk_bf16_f32 v{o+2*ct+x}, v{b+2*x}, v{b+2*x+1}')
                if mj: r += [f'buffer_store_dwordx2 v[{o+2*ct}:{o+2*ct+1}], v{VMJ}, {S_WS}, s{82+ct} offen offset:{tt*256} sc1' for ct in range(2)]
                else: r.append(f'buffer_store_dwordx4 v[{o}:{o+3}], v{VL16}, {S_WS}, s83 offen sc1')
                return r
            for i in range(4*ng):
                side = [None]*4 + out(i - 1) if i else []
                if ng == 3 and i == 7:
                    side[0:2] = [f's_waitcnt vmcnt({12 if mj else 6})', f'buffer_store_dword v{VPV}, v{VFLG}, {S_WS}, {SPRG} offen sc1']
                if ng == 3 and i == 11: side[0:1] = ['ds_read_b32 v18, v17']
                if ng == 2 and i == 2: side[0:1] = [poll]
                if ng == 2 and i == 6:
                    def pref(k=(8 if mj else 4)):
                        lnp = a.label('Lyf')
                        a(f's_waitcnt vmcnt({k})'); take()
                        a(f's_mov_b32 {SPF}, 0')
                        a(f's_cmp_le_u32 {SPX}, {SP2}'); a(f's_cbranch_scc1 {lnp}'); a(f's_cmp_ge_u32 {SJ2}, {64 + NMB}'); a(f's_cbranch_scc1 {lnp}')
                        dma(); a(f's_mov_b32 {SPF}, 1')
                        a(f'{lnp}:')
                        a(f'v_mov_b32 v18, {SPF}'); a('ds_write_b32 v17, v18')
                        if mj: a('s_add_u32 s82, s91, 4096'); a(f's_add_u32 s83, s91, {4096 + 2*327680}')
                    side[0:1] = [pref]
                for n in range(12):
                    ks, ct = n >> 1, n & 1
                    if i == 0: a(f's_waitcnt lgkmcnt({11 - n})')
                    b = VF + (ct*6 + ks)*4
                    a(mfma(ACC + (i & 1)*8 + ct*4, f'v[{b}:{b+3}]', wstr(i*6 + ks, WV), ks == 0))
                    if side:
                        s_ = side.pop(0)
                        if callable(s_): s_()
                        elif s_: a(s_)
                assert not side, side
            for s_ in out(4*ng - 1): a(s_)
            if not mj: a(f's_branch {lj}')
        a(f'{lj}:')
        tstamp(a, opt, (SSEG, 8), (14, 15))
        a(f's_add_u32 s81, {SPOS}, 1'); a(f'v_mov_b32 v{VPV}, s81')
        a(f's_cmp_ge_u32 {SJ2}, {64 + NMB}'); a(f's_cbranch_scc1 {le}')
        if ng == 2:
            a('s_waitcnt vmcnt(0)')
            a(f'buffer_store_dword v{VPV}, v{VFLG}, {S_WS}, {SPRG} offen sc1')
            a(f's_cmp_lg_u32 {SPF}, 0'); a(f's_cbranch_scc1 {lt}')
            fetch()
            a('s_waitcnt vmcnt(0)')
        else:
            a('s_waitcnt lgkmcnt(0)'); a('v_readfirstlane_b32 s81, v18')
            a('s_cmp_lg_u32 s81, 0'); a(f's_cbranch_scc1 {lt}')
            a('s_waitcnt vmcnt(0)'); a(f'buffer_store_dword v{VPV}, v{VFLG}, {S_WS}, {SPRG} offen sc1')
        a(f's_branch {lt}')
        a(f'{le}:')
        a('s_waitcnt vmcnt(0)')
        a(f'buffer_store_dword v{VPV}, v{VFLG}, {S_WS}, {SPRG} offen sc1')
        a(f's_sub_u32 s68, {SU}, 2'); a(f's_cmp_ge_u32 {SU}, 32'); a('s_cbranch_scc1 L_f2')
        a('s_waitcnt vmcnt(0)'); a('s_endpgm')

def layer_norm(a):
    L, F, G, T = 16, 64, 144, 224
    lanefn(a, VT0, lambda l: (l & 15)*1280 + (l >> 4)*8, VT1, 5*64)
    a(f's_mul_i32 s68, {SU}, {32*1280}'); a(f's_add_u32 s69, s68, {16*1280}')
    for c in range(2):
        for k in range(5):
            for x in range(2): a(f'buffer_load_dwordx2 v[{L+20*c+4*k+2*x}:{L+20*c+4*k+2*x+1}], v{VT0}, {S_X}, s{68+c} offen offset:{k*64 + x*32}')
    AW, AR, TT = T + 16, T + 17, T + 18
    lanefn(a, AR, lambda l: (l & 15)*16, TT)
    a(f's_lshl_b32 s67, {SWV}, 2'); a(f'v_add_u32 v{AW}, s67, v{AR}')
    def unpack(c):
        for j in range(20):
            a(f'v_lshlrev_b32 v{F+40*c+2*j}, 16, v{L+20*c+j}'); a(f'v_and_b32 v{F+40*c+2*j+1}, 0xffff0000, v{L+20*c+j}')
    def xchg(off, reg):
        for c in range(2):
            v = T + 8*c + reg
            a(f'v_add_f32 v{v}, v{v}, v{v+1}')
            for s_ in allred('v_add_f32', v, TT): a(s_)
            a(f'ds_write_b32 v{AW}, v{v} offset:{off + c*256}')
        a('s_waitcnt lgkmcnt(0)'); a('s_barrier')
        for c in range(2): a(f'ds_read_b128 v[{T+8*c+4}:{T+8*c+7}], v{AR} offset:{off + c*256}')
        a('s_waitcnt lgkmcnt(0)')
        for c in range(2):
            q = T + 8*c + 4
            a(f'v_add_f32 v{q}, v{q}, v{q+1}'); a(f'v_add_f32 v{q+2}, v{q+2}, v{q+3}'); a(f'v_add_f32 v{T+8*c+reg}, v{q}, v{q+2}')
    pr = lambda r: f'v[{r}:{r+1}]'
    for c in range(2):
        a(f's_waitcnt vmcnt({10*(1-c)})'); unpack(c)
        f, t = F + 40*c, T + 8*c
        a(f'v_pk_add_f32 {pr(t)}, {pr(f)}, {pr(f+2)}')
        for j in range(2, 20): a(f'v_pk_add_f32 {pr(t)}, {pr(t)}, {pr(f+2*j)}')
    xchg(0, 0)
    a(f's_mov_b32 s67, {f2u(-1.0/640):#x}')
    for c in range(2):
        f, g, t = F + 40*c, G + 40*c, T + 8*c
        a(f'v_mul_f32 v{t}, s67, v{t}'); a(f'v_mov_b32 v{t+1}, v{t}')
        for j in range(20): a(f'v_pk_add_f32 {pr(g+2*j)}, {pr(f+2*j)}, {pr(t)}')
        a(f'v_pk_mul_f32 {pr(t+2)}, {pr(g)}, {pr(g)}')
        for j in range(1, 20): a(f'v_pk_fma_f32 {pr(t+2)}, {pr(g+2*j)}, {pr(g+2*j)}, {pr(t+2)}')
    xchg(512, 2)
    def rnd(v): a(f'v_cvt_pk_bf16_f32 v{v}, v{v}, v{v}'); a(f'v_lshlrev_b32 v{v}, 16, v{v}')
    rot_check(a, VT0, VT1)
    a(f's_mov_b32 s67, {f2u(1.0/640):#x}')
    a(f's_mul_i32 s68, {SU}, 40960'); a(f's_mul_i32 s69, {SWV}, 5120'); a('s_add_u32 s68, s68, s69')
    if XN_OFF: a(f's_add_u32 s68, s68, {XN_OFF}')
    for c in range(2):
        f, t, l = F + 40*c, T + 8*c, L + 20*c
        a(f'v_mul_f32 v{t+2}, s67, v{t+2}'); rnd(t + 2)
        a(f'v_add_f32 v{t+2}, {f2u(1e-5):#x}, v{t+2}'); rnd(t + 2)
        a(f'v_sqrt_f32 v{t+2}, v{t+2}'); rnd(t + 2)
        a(f'v_rcp_f32 v{t+2}, v{t+2}'); rnd(t); a(f'v_mov_b32 v{t+3}, v{t+2}'); a(f'v_mov_b32 v{t+1}, v{t}')
        for j in range(20): a(f'v_pk_add_f32 {pr(f+2*j)}, {pr(f+2*j)}, {pr(t)}')
        for j in range(20): a(f'v_cvt_pk_bf16_f32 v{l+j}, v{f+2*j}, v{f+2*j+1}')
        unpack(c)
        for j in range(20): a(f'v_pk_mul_f32 {pr(f+2*j)}, {pr(f+2*j)}, {pr(t+2)}')
        for j in range(20): a(f'v_cvt_pk_bf16_f32 v{l+j}, v{f+2*j}, v{f+2*j+1}')
        a('s_add_u32 s69, s68, 4096')
        for k in range(5):
            a(f'buffer_store_dwordx4 v[{l+4*k}:{l+4*k+3}], v{VL16}, {S_WS}, {"s68" if k < 4 else "s69"} offen offset:{(k&3)*1024} sc1')
        a('s_add_u32 s68, s68, 20480')
    area_wait(a)
    a('s_barrier')
    a(f's_lshl_b32 s68, {SU}, 7'); a(f's_add_u32 s68, s68, {LNF_OFF}')
    a(f'buffer_store_dword v{VONE}, v{VFLG}, {S_WS}, s68 offen sc1')

SC = 0.07216878364870322 * 1.4426950408889634
def posx(a, dst, seg): a(f's_sub_u32 {dst}, {seg}, {LEAD-4}'); a(f's_max_i32 {dst}, {dst}, 0'); a(f's_lshr_b32 {dst}, {dst}, 2'); a(f's_add_u32 {dst}, {dst}, {seg}')
def posm(a, dst, b, t): a(f's_mul_i32 {dst}, {b}, 5'); a(f's_add_u32 {dst}, {dst}, {LEAD}'); a(f's_add_u32 {t}, {b}, 64'); a(f's_min_u32 {dst}, {dst}, {t}')
def poll_gt(a, opt, voff, soff, thr, T, sleep):
    lp, ld = a.label('Lq'), a.label('Lqd')
    a(f'{lp}:')
    a(f'buffer_load_dword v{T}, v{voff}, {S_WS}, {soff} offen sc1'); a('s_waitcnt vmcnt(0)')
    a(f'v_cmp_ge_u32 vcc, {thr}, v{T}')
    a(f's_cbranch_vccz {ld}')
    a(f's_sleep {sleep}')
    budget_loop(a, lp, ld)
    a(f'{ld}:')

def f_class(a, opt):
    lnl, lz, lz2, lf = a.label('Lnoln'), a.label('Lz'), a.label('Lz'), a.label('Lfu')
    a(f's_cmp_ge_u32 {SU}, 64'); a(f's_cbranch_scc1 {lz}')
    layer_norm(a)
    a(f's_branch {lnl}')
    a(f'{lz}:')
    rot_check(a, VT0, VT1)
    for r in range(4): a(f'v_mov_b32 v{16+r}, 0')
    a(f's_sub_u32 s69, {SU}, 64'); a('s_mul_i32 s68, s69, 12288'); a(f's_mul_i32 s67, {SWV}, 3072'); a('s_add_u32 s68, s68, s67'); a(f's_add_u32 s68, s68, {FLAG_OFF}')
    for x in range(3): a(f'buffer_store_dwordx4 v[16:19], v{VL16}, {S_WS}, s68 offen offset:{x*1024} sc1')
    a('s_waitcnt vmcnt(0)'); a('s_barrier')
    a(f's_cmp_lg_u32 {SWV}, 0'); a(f's_cbranch_scc1 {lz2}')
    a(f's_mov_b32 s68, {DBG_AREA*4}')
    a(f'buffer_atomic_add v{VONE}, v{VFLG}, {S_DBG}, s68 offen sc1')
    a(f'{lz2}:')
    calibrate(a, 's69', opt.get('caldbg'))
    a('s_barrier')
    area_wait(a)
    a(f'{lnl}:')
    tstamp(a, opt, 1, (14, 15))
    a(f's_sub_u32 s68, {SU}, 34'); a(f's_cmp_ge_u32 {SU}, 72'); a('s_cbranch_scc1 L_f2')
    if opt.get('no3b'): a('s_branch L_wend'); return
    a(f's_cmp_ge_u32 {SU}, 32'); a(f's_cbranch_scc1 {lf}')
    p_unit(a, opt)
    a(f'{lf}:')
    f_unit(a, opt)

def p_unit(a, opt):
    QF, KF, KM, X00, X01, X11, M0, M1 = 16, 64, 112, 136, 140, 144, 148, 152
    VQO, VMO, T0, M, L, T = 156, 157, 158, 159, 160, 161
    SB, SHD, SPR, SVAL = 's70', 's71', 's72', 's[74:75]'
    SCM = [f's[{76+2*r}:{77+2*r}]' for r in range(4)]
    a(f's_and_b32 {SHD}, {SU}, 7'); a(f's_lshl_b32 {SHD}, {SHD}, 2'); a(f's_add_u32 {SHD}, {SHD}, {SWV}')
    a(f's_lshl_b32 {SPR}, {SU}, 9'); a(f's_lshl_b32 s67, {SWV}, 7'); a(f's_add_u32 {SPR}, {SPR}, s67'); a(f's_add_u32 {SPR}, {SPR}, {PRGP_OFF}')
    a(f'v_min_u32 v{VQO}, 5, v0'); a(f'v_cmp_lt_u32 vcc, 2, v{VQO}'); a(f'v_add_u32 v{T0}, 93, v{VQO}'); a(f'v_cndmask_b32 v{VQO}, v{VQO}, v{T0}, vcc'); a(f'v_lshlrev_b32 v{VQO}, 7, v{VQO}')
    a(f'v_min_u32 v{VT1}, 2, v0'); a(f'v_lshlrev_b32 v{VT1}, 7, v{VT1}')
    lanefn(a, VMO, lambda l: (l & 15)*16 + ((l >> 4) & 1)*8, T0)
    a(f'v_and_b32 v{T}, 15, v0')
    for r in range(4):
        lanefn(a, M, lambda l: (l >> 4)*4 + r, T0); a(f'v_cmp_le_u32 {SCM[r]}, v{M}, v{T}')
    a(f's_bitcmp1_b32 {SU}, 3'); a('s_cselect_b32 s74, 0, -1'); a('s_cselect_b32 s75, -1, 0')
    a(f's_mul_i32 s73, {SHD}, 384'); a(f's_add_u32 s73, s73, {PRGX_OFF}'); a(f's_add_u32 s88, s73, {96*128}')
    a(f's_mov_b32 s84, {f2u(SC):#x}'); a(f's_mov_b32 {SB}, 0')
    lt = a.label('Lp')
    a(f'{lt}:')
    a(f's_lshl_b32 {SSEG}, {SB}, 2'); a(f's_lshr_b32 s67, {SU}, 3'); a(f's_add_u32 {SSEG}, {SSEG}, s67')
    posx(a, 's85', SSEG)
    poll_gt(a, opt, VQO, 's73', 's85', T0, 16)
    def frags(dst, n, base):
        for j in range(n):
            if j % 4 == 0: a(f's_add_u32 s87, s86, {base + j*1024}')
            a(f'buffer_load_dwordx4 v[{dst+4*j}:{dst+4*j+3}], v{VL16}, {S_WS}, s87 offen offset:{(j&3)*1024} sc1')
    a(f's_lshl_b32 s86, {SSEG}, 5'); a(f's_add_u32 s86, s86, {SHD}'); a('s_mul_i32 s86, s86, 12288')
    frags(QF, 12, QF_OFF); frags(KF, 12, KF_OFF)
    vr = lambda b: f'v[{b}:{b+3}]'
    a('s_waitcnt vmcnt(6)')
    for kk in range(6): a(mfma(X00, vr(KF + 4*kk), vr(QF + 4*kk), kk == 0)); a(mfma(X01, vr(KF + 4*kk), vr(QF + 24 + 4*kk), kk == 0))
    a('s_waitcnt vmcnt(0)')
    for kk in range(6): a(mfma(X11, vr(KF + 24 + 4*kk), vr(QF + 24 + 4*kk), kk == 0))
    a(f'v_mov_b32 v{T}, 0xff7fffff')
    for D in (X00, X11):
        for r in range(4): a(f'v_cndmask_b32 v{D+r}, v{T}, v{D+r}, {SCM[r]}')
    posm(a, 's85', SB, 's67')
    lk = a.label('Lpk')
    a(f's_cmp_lt_u32 {SB}, {NMB}'); a(f's_cbranch_scc1 {lk}')
    a(f's_lshr_b32 s88, {SHD}, 4'); a('s_lshl_b32 s88, s88, 4'); a(f's_add_u32 s88, s88, {SHD}'); a('s_lshl_b32 s88, s88, 7'); a(f's_add_u32 s88, s88, {CPRG_OFF}')
    a(f'v_mov_b32 v{VT1}, 0'); a(f's_mov_b32 s85, {SSEG}')
    a(f'{lk}:')
    poll_gt(a, opt, VT1, 's88', 's85', T0, opt.get('psleep', 1))
    a(f's_add_u32 s86, {SB}, 64'); a('s_lshl_b32 s86, s86, 5'); a(f's_add_u32 s86, s86, {SHD}'); a('s_mul_i32 s86, s86, 12288')
    a(f's_bitcmp1_b32 {SU}, 4'); a('s_cselect_b32 s67, 6144, 0'); a('s_add_u32 s86, s86, s67')
    frags(KM, 6, KF_OFF)
    for kk in range(6):
        a(f's_waitcnt vmcnt({5-kk})')
        a(mfma(M0, vr(KM + 4*kk), vr(QF + 4*kk), kk == 0)); a(mfma(M1, vr(KM + 4*kk), vr(QF + 24 + 4*kk), kk == 0))
    a(f's_lshl_b32 s86, {SSEG}, 5'); a(f's_add_u32 s86, s86, {SHD}'); a('s_lshl_b32 s86, s86, 11'); a(f's_add_u32 s86, s86, {P3X_OFF}')
    a(f's_lshl_b32 s87, {SSEG}, 3'); a(f's_lshr_b32 s67, {SHD}, 2'); a('s_add_u32 s87, s87, s67'); a('s_lshl_b32 s87, s87, 11')
    a(f's_and_b32 s67, {SHD}, 3'); a('s_lshl_b32 s67, s67, 8'); a('s_add_u32 s87, s87, s67'); a(f's_add_u32 s87, s87, {P3M_OFF}')
    a(f'v_mov_b32 v{T}, 0xff7fffff')
    for D in (M0, M1):
        for r in range(4): a(f'v_cndmask_b32 v{D+r}, v{T}, v{D+r}, {SVAL}')
    for qt, tiles in ((0, [X00, M0]), (1, [X01, X11, M1])):
        allv = [D + r for D in tiles for r in range(4)]
        a(f'v_max3_f32 v{M}, v{allv[0]}, v{allv[1]}, v{allv[2]}')
        rest = allv[3:]
        while rest:
            if len(rest) >= 2: a(f'v_max3_f32 v{M}, v{M}, v{rest[0]}, v{rest[1]}'); rest = rest[2:]
            else: a(f'v_max_f32 v{M}, v{M}, v{rest[0]}'); rest = []
        for s_ in allred('v_max_f32', M, T): a(s_)
        a(f'v_mul_f32 v{M}, s84, v{M}')
        for v in allv: a(f'v_fma_f32 v{v}, v{v}, s84, -v{M}')
        for v in allv: a(f'v_exp_f32 v{v}, v{v}')
        a(f'v_add_f32 v{L}, v{allv[0]}, v{allv[1]}')
        for v in allv[2:]: a(f'v_add_f32 v{L}, v{L}, v{v}')
        for s_ in allred('v_add_f32', L, T): a(s_)
        a(f'v_rcp_f32 v{L}, v{L}')
        for v in allv: a(f'v_mul_f32 v{v}, v{v}, v{L}')
        o = tiles[0]; m = tiles[-1]
        a(f'v_cvt_pk_bf16_f32 v{o}, v{o}, v{o+1}'); a(f'v_cvt_pk_bf16_f32 v{o+1}, v{o+2}, v{o+3}')
        if qt: a(f'v_cvt_pk_bf16_f32 v{o+2}, v{X11}, v{X11+1}'); a(f'v_cvt_pk_bf16_f32 v{o+3}, v{X11+2}, v{X11+3}')
        else: a(f'v_mov_b32 v{o+2}, 0'); a(f'v_mov_b32 v{o+3}, 0')
        a(f'v_cvt_pk_bf16_f32 v{m}, v{m}, v{m+1}'); a(f'v_cvt_pk_bf16_f32 v{m+1}, v{m+2}, v{m+3}')
        a(f'buffer_store_dwordx4 v[{o}:{o+3}], v{VL16}, {S_WS}, s86 offen offset:{qt*1024} sc1')
        a(f's_mov_b64 exec, {SVAL}')
        a(f'buffer_store_dwordx2 v[{m}:{m+1}], v{VMO}, {S_WS}, s87 offen offset:{qt*1024} sc1')
        a('s_mov_b64 exec, -1')
    a(f's_add_u32 {SB}, {SB}, 1'); a(f'v_mov_b32 v{VPV}, {SB}'); a('s_waitcnt vmcnt(0)')
    a(f'buffer_store_dword v{VPV}, v{VFLG}, {S_WS}, {SPR} offen sc1')
    tstamp(a, opt, (SB, 7), (14, 15))
    a(f's_cmp_lt_u32 {SB}, 16'); a(f's_cbranch_scc1 {lt}')
    a('s_waitcnt vmcnt(0)'); a('s_endpgm')

def f_unit(a, opt):
    SB, SDT, SSG = 's70', 's72', 's71'
    VM, A0, G0, PB, ID, XR, GV = 16, 48, 56, 64, 128, 136, 140
    VMO, VXO, VPR, VFO, VPO, VTH = 150, 151, 152, 153, 154, 155
    T0, T1 = 156, 157
    lgo = a.label('Lfg')
    a(f's_sub_u32 s68, {SU}, 32'); a(f's_mov_b32 {SB}, 0'); a('s_mov_b32 s82, 15')
    a(f's_branch {lgo}')
    a('L_f2:')
    a('s_waitcnt vmcnt(0) lgkmcnt(0)'); a('s_barrier')
    a(f's_mov_b32 {SB}, 15'); a('s_mov_b32 s82, 16')
    a(f'{lgo}:')
    a('s_mov_b32 s83, s68')
    a(f'v_and_b32 v{T0}, 15, v0'); a(f'v_lshrrev_b32 v{T1}, 4, v0'); a(f'v_lshlrev_b32 v{T1}, 2, v{T1}'); a(f'v_sub_u32 v{T0}, v{T0}, v{T1}')
    for r in (0, 1, 4, 5): a(f'v_mov_b32 v{ID+r}, 0')
    a(f'v_mov_b32 v{T1}, 0x3f80'); a(f'v_mov_b32 v{GV}, 0x3f800000')
    for d in range(2):
        a(f'v_cmp_eq_u32 vcc, {2*d}, v{T0}'); a(f'v_cndmask_b32 v{ID+2+d}, 0, v{T1}, vcc')
        a(f'v_cmp_eq_u32 vcc, {2*d+1}, v{T0}'); a(f'v_cndmask_b32 v{ID+2+d}, v{ID+2+d}, v{GV}, vcc')
    lanefn(a, VMO, lambda l: (l >> 4)*10240 + (l & 15)*16, T0)
    lanefn(a, VXO, lambda l: (l & 15)*1280 + (l >> 4)*8, T0)
    a('s_mov_b32 s68, s83'); a(f's_mul_i32 {SSG}, s68, 205'); a(f's_lshr_b32 {SSG}, {SSG}, 11'); a(f's_mul_i32 s67, {SSG}, 10'); a(f's_sub_u32 {SDT}, s68, s67')
    a(f's_and_b32 s79, {SDT}, 3'); a(f's_mul_i32 s79, s79, {40*128}'); a(f's_add_u32 s79, s79, {PRGY_OFF}')
    a(f's_lshl_b32 {SDT}, {SDT}, 2'); a(f's_add_u32 {SDT}, {SDT}, {SWV}')
    a(f'v_min_u32 v{VFO}, 39, v0'); a(f'v_lshlrev_b32 v{VFO}, 7, v{VFO}')
    a(f'v_lshlrev_b32 v{VPO}, 7, v0'); a(f's_lshl_b32 s67, {SSG}, 12'); a(f's_add_u32 s67, s67, {PRGP_OFF - 32*128}'); a('s_sub_u32 s67, s67, s79')
    a(f'v_add_u32 v{T0}, s67, v{VPO}'); a('s_mov_b32 s80, 0'); a('s_mov_b32 s81, -1'); a(f'v_cndmask_b32 v{VPO}, v{VPO}, v{T0}, s[80:81]')
    ltop, ld, lw = [a.label('Lfb') for _ in range(3)]
    a(f'{ltop}:')
    a(f's_lshl_b32 {SSEG}, {SB}, 2'); a(f's_add_u32 {SSEG}, {SSEG}, {SSG}')
    a(f's_cmp_lg_u32 {SWV}, 0'); a(f's_cbranch_scc1 {ld}')
    posx(a, 's73', SSEG)
    poll_gt(a, opt, VFO, 's79', 's73', T0, opt.get('ysleep', 16))
    a(f'{ld}:')
    a('s_barrier')
    a(f's_mul_i32 s73, {SSEG}, 40'); a(f's_add_u32 s73, s73, {SDT}'); a('s_mul_i32 s73, s73, 40960'); a(f's_add_u32 s73, s73, {VOF_OFF}')
    def vo(hh):
        if hh % 4 == 0: a(f's_add_u32 s74, s73, {hh*1024}')
        a(f'buffer_load_dwordx4 a[{4*hh}:{4*hh+3}], v{VL16}, {S_WS}, s74 offen offset:{(hh&3)*1024} sc1')
    for hh in range(32, 40): vo(hh)
    a(f's_mul_i32 s75, {SSEG}, {32*1280}'); a(f's_lshl_b32 s67, {SDT}, 5'); a('s_add_u32 s75, s75, s67'); a(f's_add_u32 s76, s75, {16*1280}')
    for qt in range(2): a(f'buffer_load_dwordx2 v[{XR+2*qt}:{XR+2*qt+1}], v{VXO}, {S_X}, s{75+qt} offen')
    for hh in range(32): vo(hh)
    for hh in range(32, 40):
        a(f's_waitcnt vmcnt({34 + 39 - hh})')
        for qt in range(2):
            b = ID + 2 - 2*qt
            a(mfma(G0 + 4*qt, f'a[{4*hh}:{4*hh+3}]', f'v[{b}:{b+3}]', hh == 32))
    def rnd8(src, dst):
        for j in range(4): a(f'v_cvt_pk_bf16_f32 v{PB+j}, v{src+2*j}, v{src+2*j+1}')
        for j in range(4): a(f'v_lshlrev_b32 v{dst+2*j}, 16, v{PB+j}'); a(f'v_and_b32 v{dst+2*j+1}, 0xffff0000, v{PB+j}')
    rnd8(G0, G0)
    a(f's_mov_b32 s67, {f2u(-1.4426950408889634):#x}')
    for j in range(8): a(f'v_mul_f32 v{GV+j}, s67, v{G0+j}')
    for j in range(8): a(f'v_exp_f32 v{GV+j}, v{GV+j}')
    for j in range(8): a(f'v_add_f32 v{GV+j}, 1.0, v{GV+j}')
    for j in range(8): a(f'v_rcp_f32 v{GV+j}, v{GV+j}')
    for j in range(8): a(f'v_mul_f32 v{GV+j}, v{GV+j}, v{G0+j}')
    rnd8(GV, GV)
    a(f's_cmp_lg_u32 {SWV}, 0'); a(f's_cbranch_scc1 {lw}')
    posm(a, 's73', SB, 's67')
    lk = a.label('Lfk')
    a(f's_cmp_lt_u32 {SB}, {NMB}'); a(f's_cbranch_scc1 {lk}')
    a(f'v_and_b32 v{T0}, 16, v0'); a(f'v_add_u32 v{T0}, v{T0}, v0'); a(f'v_lshlrev_b32 v{T0}, 7, v{T0}'); a(f's_sub_u32 s73, {CPRG_OFF + 16*128}, s79'); a(f'v_add_u32 v{T0}, s73, v{T0}')
    a(f'v_cndmask_b32 v{VPO}, v{T0}, v{VPO}, s[80:81]'); a(f's_mov_b32 s73, {SSEG}')
    a(f'{lk}:')
    a(f'v_mov_b32 v{VTH}, s73'); a(f'v_mov_b32 v{T0}, {SB}'); a(f'v_cndmask_b32 v{VTH}, v{VTH}, v{T0}, s[80:81]')
    poll_gt(a, opt, VPO, 's79', f'v{VTH}', PB, opt.get('psleep', 1))
    a(f'{lw}:')
    a('s_barrier')
    a(f's_mul_i32 s73, {SSEG}, {32*10240}'); a(f's_lshl_b32 s67, {SDT}, 8'); a('s_add_u32 s73, s73, s67'); a(f's_add_u32 s73, s73, {VOM_OFF}')
    a(f's_lshl_b32 s74, {SWV}, 10'); a(f's_lshl_b32 s77, {SSEG}, 16'); a('s_add_u32 s77, s77, s74'); a(f's_add_u32 s77, s77, {P3X_OFF}')
    a(f's_lshl_b32 s78, {SSEG}, 14'); a('s_add_u32 s78, s78, s74'); a(f's_add_u32 s78, s78, {P3M_OFF}')
    for n in range(20):
        sr = "s77" if n < 16 else "s78"
        a(f's_add_u32 m0, s74, {n*4096}')
        if n not in (0, 16): a(f's_add_u32 {sr}, {sr}, 4096')
        a(f'buffer_load_dwordx4 v{VL16}, {S_WS}, {sr} offen sc1 lds')
        if n == 4:
            for m in range(8):
                a(f'buffer_load_dwordx4 v[{VM+4*m}:{VM+4*m+3}], v{VMO}, {S_WS}, s73 offen sc1'); a('s_add_u32 s73, s73, 40960')
    a(f'v_add_u32 v{VPR}, 32768, v{VL16}')
    for st in range(4):
        a(f's_waitcnt vmcnt({[23, 10, 5, 0][st]})'); a('s_barrier')
        def rd(c):
            base, off = (VL16, c*1024) if c < 32 else (VPR, c*1024 - 32768)
            b = PB + (c % 16) * 4
            a(f'ds_read_b128 v[{b}:{b+3}], v{base} offset:{off}')
        for c in range(20*st, 20*st + 8): rd(c)
        for c in range(20*st, 20*st + 20):
            left = min(20*st + 20, c + 8) - c - 1
            a(f's_waitcnt lgkmcnt({left})')
            h2, qt = c >> 1, c & 1
            A = f'a[{4*h2}:{4*h2+3}]' if c < 64 else f'v[{VM+4*(h2-32)}:{VM+4*(h2-32)+3}]'
            b = PB + (c % 16) * 4
            a(mfma(A0 + 4*qt, A, f'v[{b}:{b+3}]', c < 2))
            if c + 8 < 20*st + 20: rd(c + 8)
    rnd8(A0, A0)
    for j in range(8): a(f'v_mul_f32 v{A0+j}, v{A0+j}, v{GV+j}')
    rnd8(A0, A0)
    for j in range(4): a(f'v_lshlrev_b32 v{G0+2*j}, 16, v{XR+j}'); a(f'v_and_b32 v{G0+2*j+1}, 0xffff0000, v{XR+j}')
    for j in range(8): a(f'v_add_f32 v{A0+j}, v{A0+j}, v{G0+j}')
    for j in range(4): a(f'v_cvt_pk_bf16_f32 v{A0+j}, v{A0+2*j}, v{A0+2*j+1}')
    for qt in range(2): a(f'buffer_store_dwordx2 v[{A0+2*qt}:{A0+2*qt+1}], v{VXO}, {S_OUT}, s{75+qt} offen')
    tstamp(a, opt, (SB, 100), (14, 15))
    a(f's_add_u32 {SB}, {SB}, 1'); a(f's_cmp_lt_u32 {SB}, s82'); a(f's_cbranch_scc1 {ltop}')
    a('s_waitcnt vmcnt(0)'); a('s_endpgm')

def gemm_main(a, opt):
    tstamp(a, opt, 0, (14, 15))
    a(f's_sub_u32 {SG}, {SSLOT}, 64')
    a(f's_mov_b32 {STMO}, {opt.get("tmo", 1 << 21)}')
    srd(a, S_X, 's[36:37]', 2048*640*2); srd(a, S_OUT, 's[56:57]', 2048*640*2); srd(a, S_WA, 's[40:41]', 0)
    a(f'v_lshlrev_b32 v{VL16}, 4, v0')
    a(f'v_mov_b32 v{VONE}, 1'); a(f'v_cmp_eq_u32 vcc, 0, v0'); a(f'v_mov_b32 v{VT0}, 0x40000000'); a(f'v_cndmask_b32 v{VFLG}, v{VT0}, 0, vcc')
    ly, lf = a.label('Lyu'), a.label('Lfu')
    a(f's_lshr_b32 s67, {SG}, 5'); a(f's_and_b32 s68, {SG}, 31')
    a(f's_mul_i32 {SU}, s67, 13'); a(f's_add_u32 {SU}, {SU}, s68')
    a('s_cmp_ge_u32 s68, 13'); a(f's_cbranch_scc1 {ly}')
    x_unit(a, opt)
    a(f'{ly}:')
    a('s_sub_u32 s68, s68, 13'); a('s_min_u32 s69, s67, 4')
    a('s_cmp_lt_u32 s67, 4'); a('s_cselect_b32 s70, 7, 6')
    a(f's_mul_i32 {SU}, s67, 6'); a(f's_add_u32 {SU}, {SU}, s69'); a(f's_add_u32 {SU}, {SU}, s68')
    a('s_cmp_ge_u32 s68, s70'); a(f's_cbranch_scc1 {lf}')
    y_unit(a, opt)
    a(f'{lf}:')
    a(f's_mul_i32 {SU}, s67, 13'); a(f's_sub_u32 {SU}, {SU}, s69'); a(f's_add_u32 {SU}, {SU}, s68'); a(f's_sub_u32 {SU}, {SU}, s70')
    f_class(a, opt)
    a('L_wend:'); a('s_waitcnt vmcnt(0)')
```

```python
from common import *

SC = 0.07216878364870322 * 1.4426950408889634

def wfrag(f, half=None):
    if f < 32: k, b = 'a', f * 8
    else: k, b = 'v', 176 + (f - 32) * 8
    if half is None: return f'{k}[{b}:{b+7}]'
    return k, b + 4 * half

VL16, VGW, VAR, VFR, VXW, VXS, VDR, VIDX, V9, V10, V11, V12, VT0, VT1, VT2 = range(1, 16)
VA = 16
VACC0 = 56
VACC1 = 68
VB = 80
VKX = 112
VQF = 136
VTMP = 160
VOX = 112
SSTEP, SH, SX, SDT = 's62', 's63', 's64', 's66'
SMASK8 = 's[70:71]'
SCM = [f's[{72+2*r}:{73+2*r}]' for r in range(4)]
SCHK = 's80'
S_ONE0, S_ONE1 = 's100', 's101'
NCH = [3, 3, 2, 2]
OWN = [[0, 1, 2], [3, 4, 5], [6, 7], [8, 9]]
REGKB = [0, 1, 3, 4, 6, 7, 8]; LDSKB = [2, 5, 9]
REGT = [0, 2, 3, 4, 6, 7, 8]; LDST = [1, 5, 9]
def yfrag(tile, kb):
    if tile in REGT: return 'reg', 21 + REGT.index(tile)*3 + kb
    return 'lds', 9 + LDST.index(tile)*3 + kb
def xfrag(kb, t, second):
    if kb in REGKB: return 'reg', t*7 + REGKB.index(kb) + (21 if second else 0)
    return 'lds', LDSKB.index(kb)*3 + t + (9 if second else 0)
def apos(w, order):
    ap = {kb: VA + 8*c for c, kb in enumerate(OWN[w])}
    free = [VA + 4*i for i in range(10) if VA + 4*i not in ap.values()]
    for kb in order:
        if kb not in ap: ap[kb] = free.pop(0)
    return ap
STREAM = ['sc1 nt']

def tile_pat(l):
    g, c = l >> 4, l & 15
    return (4*g + 2*(c >> 3) + (c & 1))*16 + ((c >> 1) & 3)*4
def arow(i, h): return 4*(i >> 1) + 2*h + (i & 1)

def common_addr(a):
    T = VTMP
    a(f'v_lshlrev_b32 v{VL16}, 4, v0')
    a(f's_mul_i32 s6, {SWV}, 3'); a(f's_lshl_b32 s7, {SWV}, 1'); a('s_add_u32 s7, s7, 2'); a('s_min_u32 s6, s6, s7')
    a(f's_lshl_b32 {SCHK}, s6, 10')
    a(f'v_add_u32 v{VAR}, {LDS_MEM}, v{VL16}'); a(f'v_add_u32 v{VGW}, {SCHK}, v{VAR}')
    lanefn(a, VFR, lambda l: l*16, T, 36864)
    lanefn(a, VIDX, lambda l: 0x4444 + ((l >> 1) & 1)*0xaaaa, T)
    a(f'v_and_b32 v{T}, 8, v0'); a(f'v_cmp_ne_u32 {SMASK8}, 0, v{T}')

def loader(a, role, after_first=None, dep=11):
    vm = Trk(a, 'vmcnt', 63)
    T = 160
    VD0, VD1, VR0 = T, T + 1, T + 2
    dma_voff(a, VD0, 12288, T + 8, T + 9); dma_voff(a, VD1, 1280, T + 8, T + 9)
    for aa in range(2):
        R = VR0 + 3*aa
        row = lambda l: 4*((l >> 4) & 1) + 2*aa + ((l >> 2) & 1)
        lanefn(a, T + 8, lambda l: row(l) & 6, T + 10); lanefn(a, T + 9, lambda l: (l >> 1) & 1, T + 10, 2)
        a(f'v_xor_b32 v{T+9}, v{T+9}, v{T+8}')
        lanefn(a, R, lambda l: (l >> 5)*2048 + ((l >> 3) & 1)*1024 + row(l)*128 + (l & 1)*8, T + 10)
        a(f'v_lshl_add_u32 v{R}, v{T+9}, 4, v{R}')
        a(f'v_add_u32 v{R+1}, 49152, v{R}'); a(f'v_add_u32 v{R+2}, 98304, v{R}')
    a(f's_mul_i32 s68, {SH}, 384'); a(f's_mul_i32 s67, {SWV}, {8*12288}'); a('s_add_u32 s68, s68, s67')
    a(f's_mul_i32 s69, {SH}, {192*1280}'); a(f's_mul_i32 s67, {SWV}, {8*1280}'); a('s_add_u32 s69, s69, s67')
    a(f's_lshl_b32 s7, {SWV}, 10')
    k2 = 'X' if role == 'qk' else 'Y'
    slabs = [('X', S_WA, i) for i in range(14)] + [(k2, S_WB, i) for i in range(14)] + \
            [('X', S_WA, i) for i in range(14, 20)] + [(k2, S_WB, i) for i in range(14, 20)]
    def dma(n):
        kind, sr, i = slabs[n]
        for c in range(3):
            a(f's_add_u32 m0, s7, {(n % 12)*LDS_SLAB + c*4096}')
            if kind == 'X': a(f's_add_u32 s67, s68, {(2*(REGKB + LDSKB)[i >> 1] + (i & 1))*32*12288 + c*128}')
            else: a(f's_add_u32 s67, s69, {((i&1)*96 + c*32)*1280 + (REGT + LDST)[i >> 1]*128}')
            a(f'buffer_load_dwordx4 v{VD0 if kind=="X" else VD1}, {sr}, s67 offen lds')
            vm.issue(n)
    def dest(n, c):
        kind, sr, i = slabs[n]
        second = (n >= 14) if n < 28 else (n >= 34)
        if kind == 'X': t, kb, half = c, i >> 1, i & 1; f = t * 7 + kb; lf = (kb - 7) * 3 + t
        else:
            ks = (i & 1) * 3 + c; kb, half = ks >> 1, ks & 1; tile = i >> 1
            f = tile * 3 + kb; lf = (tile - 7) * 3 + kb
        if second: f += 21; lf += 9
        return f, lf, half
    def reads(n):
        slot = n % 12
        base = VR0 + slot // 4; off0 = (slot % 4) * LDS_SLAB
        for c in range(3):
            f, lf, half = dest(n, c)
            if n < 28: k, b = wfrag(f, half)
            else: k, b = 'v', 16 + lf * 8 + half * 4
            for aa in range(2):
                a(f'ds_read_b64_tr_b16 {k}[{b+2*aa}:{b+2*aa+1}], v{base + 3*aa} offset:{off0 + c*4096}')
    for n in range(dep): dma(n)
    for n in range(40):
        vm.wait(n)
        a('s_waitcnt lgkmcnt(0)')
        a('s_barrier')
        if n + dep < 40: dma(n + dep)
        reads(n)
        after_first(n, vm)
    a('s_waitcnt lgkmcnt(0)'); a('s_barrier')
    for lf in range(18):
        for half in range(2):
            b = 16 + lf * 8 + half * 4
            a(f'ds_write_b128 v{VFR}, v[{b}:{b+3}] offset:{lf*2048 + half*1024}')
    a('s_waitcnt lgkmcnt(0)')

def mem0_load(a):
    lanefn(a, 18, lambda l: (l & 7)*1280 + (l >> 3)*16, 16)
    lanefn(a, 19, lambda l: LDS_MEM + (l >> 4)*256 + arow(l & 7, (l >> 3) & 1)*16, 16)
    for n in range(10): a(f'buffer_load_dwordx4 v[{24+4*n}:{27+4*n}], v18, {S_AUX}, 0 offen offset:{n*128}')
def mem0_write(a):
    for n in range(10): a(f'ds_write_b128 v19, v[{24+4*n}:{27+4*n}] offset:{n*1024}')

def maxchk(a, regs, first=True):
    regs = list(regs)
    if first:
        a(f'v_max3_u32 v{VT0}, v{regs[0]}, v{regs[1]}, v{regs[2]}'); regs = regs[3:]
    while regs:
        if len(regs) >= 2: a(f'v_max3_u32 v{VT0}, v{VT0}, v{regs[0]}, v{regs[1]}'); regs = regs[2:]
        else: a(f'v_max_u32 v{VT0}, v{VT0}, v{regs[0]}'); regs = []


def gather_setup(a, step_add=0):
    a(f's_add_u32 s67, {SSTEP}, {step_add}'); a('s_and_b32 s67, s67, 3'); a('s_lshl_b32 s67, s67, 1')
    a(f's_add_u32 s68, s67, 1'); a(f's_sub_u32 s68, s68, {SX}'); a(f's_add_u32 s67, s67, {SX}')
    a('s_mul_i32 s67, s67, 10240'); a('s_lshl_b32 s68, s68, 15')
    a(f's_add_u32 s33, s68, {SMR}'); a('s_add_u32 s33, s33, s58')
    a(f's_add_u32 s32, s67, {SCHK}'); a(f's_add_u32 s32, s32, {MEML_OFF}')

def gather(a, n, R, opt, st, rsleep=0, R2=None, det=None):
    ld = lambda r, so: [a(f'buffer_load_dwordx4 v[{r+4*c}:{r+4*c+3}], v{VL16}, {S_WS}, {so} offen offset:{c*1024} sc1') for c in range(n)]
    def chk(r, k=0): a(f's_waitcnt vmcnt({k})'); maxchk(a, range(r, r + 4*n)); a(f'v_cmp_eq_u32 vcc, -1, v{VT0}')
    l1, l1ok, l2, l2ok = [a.label('Lg') for _ in range(4)]
    if det is not None:
        l0, l0d = a.label('Lg'), a.label('Lg')
        a(f'{l0}:')
        a(f'buffer_load_dword v{R}, v{det}, {S_WS}, s32 offen sc1'); a('s_waitcnt vmcnt(0)'); a(f'v_cmp_eq_u32 vcc, -1, v{R}')
        poll_tail(a, l0, l0d)
    stamp(a, opt, st[0])
    if R2 is None:
        a(f'{l1}:')
        ld(R, 's32'); chk(R)
        poll_tail(a, l1, l1ok)
    else:
        ld(R, 's32'); ld(R2, 's33'); chk(R, n)
        a(f's_cbranch_vccnz {l1}')
        a(f'{l1ok}:')
    stamp(a, opt, st[1])
    for c in range(n):
        for i in range(4):
            a(f'v_lshlrev_b32 v{VA+8*c+2*i}, 16, v{R+4*c+i}'); a(f'v_and_b32 v{VA+8*c+2*i+1}, 0xffff0000, v{R+4*c+i}')
    Q = R if R2 is None else R2
    if R2 is None:
        if rsleep: a(f's_sleep {rsleep}')
        ld(Q, 's33')
    chk(Q)
    a(f's_cbranch_vccnz {l2}')
    a(f'{l2ok}:')
    stamp(a, opt, st[2])
    for c in range(n):
        b = VA + 8*c
        for i in range(4):
            a(f'v_dot2c_f32_bf16 v{b+2*i}, {S_ONE0}, v{Q+4*c+i}'); a(f'v_dot2c_f32_bf16 v{b+2*i+1}, {S_ONE1}, v{Q+4*c+i}')
        for i in range(4): a(f'v_cvt_pk_bf16_f32 v{b+i}, v{b+2*i}, v{b+2*i+1}')
        a(f'ds_write_b128 v{VGW}, v[{b}:{b+3}] offset:{c*1024}')
    def outofline():
        if R2 is not None:
            a(f'{l1}:')
            ld(R, 's32'); ld(R2, 's33'); chk(R, n)
            a(f's_cbranch_vccz {l1ok}')
            budget_loop(a, l1, l1ok)
        a(f'{l2}:')
        ld(Q, 's33'); chk(Q)
        a(f's_cbranch_vccz {l2ok}')
        budget_loop(a, l2, l2ok)
    return outofline

ML = ['s[16:17]', 's[18:19]', 's[20:21]']; MR = ['s[22:23]', 's[24:25]', 's[26:27]']; MOR = 's[28:29]'
def mask_or(a, ms):
    a(f's_or_b64 {MOR}, {ms[0]}, {ms[1]}')
    for m in ms[2:]: a(f's_or_b64 {MOR}, {MOR}, {m}')
def ld_masked(a, n, r, so, ms=None):
    for c in range(n):
        if ms: a(f's_mov_b64 exec, {ms[c]}')
        a(f'buffer_load_dwordx4 v[{r+4*c}:{r+4*c+3}], v{VL16}, {S_WS}, {so} offen offset:{c*1024} sc1')
    if ms: a('s_mov_b64 exec, -1')

def gather_m(a, n, R, Q, T, opt, st, det, dep, gap):
    def chk(r, ms, k):
        a(f's_waitcnt vmcnt({k})')
        for c in range(n): a(f'v_max3_u32 v{T+c}, v{r+4*c}, v{r+4*c+1}, v{r+4*c+2}')
        for c in range(n): a(f'v_max_u32 v{T+c}, v{T+c}, v{r+4*c+3}')
        for c in range(n): a(f'v_cmp_eq_u32 {ms[c]}, -1, v{T+c}')
        mask_or(a, ms[:n])
    l1, l1ok, l2, l2b, l2ok = [a.label('Lg') for _ in range(5)]
    if det is not None:
        l0, l0d = a.label('Lg'), a.label('Lg')
        a(f'{l0}:')
        a(f'buffer_load_dword v{R}, v{det}, {S_WS}, s32 offen sc1'); a('s_waitcnt vmcnt(0)'); a(f'v_cmp_eq_u32 vcc, -1, v{R}')
        poll_tail(a, l0, l0d)
    stamp(a, opt, st[0])
    ld_masked(a, n, R, 's32'); ld_masked(a, n, Q, 's33'); chk(R, ML, n)
    a(f's_cbranch_scc1 {l1}')
    a(f'{l1ok}:')
    stamp(a, opt, st[1])
    for c in range(n):
        for i in range(4):
            a(f'v_lshlrev_b32 v{VA+8*c+2*i}, 16, v{R+4*c+i}'); a(f'v_and_b32 v{VA+8*c+2*i+1}, 0xffff0000, v{R+4*c+i}')
    chk(Q, MR, 0)
    a(f's_cbranch_scc1 {l2}')
    a(f'{l2ok}:')
    stamp(a, opt, st[2])
    for c in range(n):
        b = VA + 8*c
        for i in range(4):
            a(f'v_dot2c_f32_bf16 v{b+2*i}, {S_ONE0}, v{Q+4*c+i}'); a(f'v_dot2c_f32_bf16 v{b+2*i+1}, {S_ONE1}, v{Q+4*c+i}')
        for i in range(4): a(f'v_cvt_pk_bf16_f32 v{b+i}, v{b+2*i}, v{b+2*i+1}')
        a(f'ds_write_b128 v{VGW}, v[{b}:{b+3}] offset:{c*1024}')
    def outofline():
        a(f'{l1}:')
        ld_masked(a, n, R, 's32', ML); chk(Q, MR, n)
        ld_masked(a, n, Q, 's33', MR); chk(R, ML, n)
        a(f's_cbranch_scc0 {l1ok}')
        budget_loop(a, l1, l1ok)
        a(f'{l2}:')
        for _ in range(dep - 1):
            ld_masked(a, n, Q, 's33', MR); a(f's_sleep {gap}')
        a(f'{l2b}:')
        ld_masked(a, n, Q, 's33', MR); chk(Q, MR, n*(dep - 1))
        a(f's_cbranch_scc0 {l2ok}')
        budget_loop(a, l2b, l2ok)
    return outofline

def a_read(kb, reg):
    return ('lds', f'ds_read_b128 v[{reg}:{reg+3}], v{VAR} offset:{kb*1024}', f'A{kb}')
def frag_reads(lf, slot):
    return [('lds', f'ds_read_b128 v[{VB+8*slot+4*x}:{VB+8*slot+4*x+3}], v{VFR} offset:{lf*2048 + x*1024}', f'F{lf}') for x in range(2)]
def smf(acc, A, B): return f'v_smfmac_f32_16x16x64_bf16 v[{acc}:{acc+3}], v[{A}:{A+3}], {B}, v{VIDX}'
def post(acc, out, scale=None, pk=False):
    if pk: r = [f'v_pk_add_f32 v[{acc}:{acc+1}], v[{acc}:{acc+1}], v[{acc+2}:{acc+3}]']
    else: r = [f'v_add_f32 v{acc+i}, v{acc+i}, v{acc+2+i}' for i in range(2)]
    if scale: r += [f'v_mul_f32 v{acc+i}, {scale}, v{acc+i}' for i in range(2)]
    return r + [f'v_cvt_pk_bf16_f32 v{out}, v{acc}, v{acc+1}']

def allred(op, v, t, stages=(16, 32)):
    r = []
    for st in stages: r += [f'v_mov_b32 v{t}, v{v}', f'v_permlane{st}_swap_b32 v{v}, v{t}', f'{op} v{v}, v{v}, v{t}']
    return r

def stamp_flush(a, opt, n):
    if not opt.get('stamps'): return
    a('s_waitcnt lgkmcnt(0)')
    a(f's_lshl_b32 s67, {SSLOT}, 2'); a(f's_add_u32 s67, s67, {SWV}'); a('s_lshl_b32 s67, s67, 6'); a(f's_add_u32 s67, s67, {SSTEP}')
    a('s_lshl_b32 s67, s67, 6'); a(f's_add_u32 s67, s67, {STAMP_OFF}')
    a(f'v_lshlrev_b32 v{VT1}, 2, v0')
    for i in range(n): a(f'v_writelane_b32 v{VT0}, s{STAMP0+2*i}, {i}')
    a('s_mov_b64 exec, 0xffff')
    a(f'buffer_store_dword v{VT0}, v{VT1}, {S_WS}, s67 offen')
    a('s_mov_b64 exec, -1')

SPC = 's60'
SMR = 's59'
SELF = 8
def check_flags(a, opt, kind, skip=None):
    if opt.get('noflags'): return
    lp, ld = a.label('Lf'), a.label('Lfd')
    a(f's_sub_u32 s61, s82, {LEAD-4}'); a('s_max_i32 s61, s61, 0'); a('s_lshr_b32 s61, s61, 2'); a('s_add_u32 s61, s61, s82')
    a(f's_cmp_gt_u32 {SPC}, s61'); a(f's_cbranch_scc1 {ld}')
    if kind == 'K': a(f'v_and_b32 v{VT1}, 15, v0'); a(f'v_min_u32 v{VT1}, 2, v{VT1}'); a(f'v_lshlrev_b32 v{VT1}, 7, v{VT1}')
    elif kind == 'Y16': a(f'v_and_b32 v{VT1}, 15, v0'); a(f'v_lshlrev_b32 v{VT1}, 7, v{VT1}')
    else: a(f'v_and_b32 v{VT1}, 3, v0'); a(f'v_mul_u32_u24 v{VT1}, {40*128}, v{VT1}')
    a(f'{lp}:')
    a(f'buffer_load_dword v{VT0}, v{VT1}, {S_WS}, s81 offen sc1'); a('s_waitcnt vmcnt(0)')
    for r in (8, 4, 2, 1): a(f'v_min_u32_dpp v{VT0}, v{VT0}, v{VT0} row_ror:{r} row_mask:0xf bank_mask:0xf')
    a(f'v_readfirstlane_b32 {SPC}, v{VT0}')
    a(f's_cmp_gt_u32 {SPC}, s61'); a(f's_cbranch_scc1 {ld}')
    if skip: a(f's_cmp_lt_u32 s82, {opt.get("self", SELF)}'); a(f's_cbranch_scc1 {skip}')
    budget_loop(a, lp, ld)
    a(f'{ld}:')

def cprog(a):
    a('s_waitcnt vmcnt(0)')
    a(f's_lshl_b32 s67, {SSLOT}, 7'); a(f's_add_u32 s67, s67, {CPRG_OFF}'); a(f's_add_u32 s68, {SSTEP}, 1'); a(f'v_mov_b32 v{VT0}, s68'); a(f'v_mov_b32 v{VT1}, 0')
    a('s_mov_b64 exec, 1')
    a(f'buffer_store_dword v{VT0}, v{VT1}, {S_WS}, s67 offen sc1')
    a('s_mov_b64 exec, -1')

def load_frags6(a, dst, base_off, ct, seg='s82'):
    a(f's_lshl_b32 s67, {seg}, 5'); a(f's_add_u32 s67, s67, {SH}'); a('s_mul_i32 s67, s67, 12288')
    a(f's_add_u32 s67, s67, {base_off + ct*6144}'); a('s_add_u32 s68, s67, 4096')
    for kk in range(6):
        a(f'buffer_load_dwordx4 v[{dst+4*kk}:{dst+4*kk+3}], v{VL16}, {S_WS}, {"s67" if kk < 4 else "s68"} offen offset:{(kk&3)*1024} {STREAM[0]}')

def build_stream(first_items, second_items):
    items = []; ldsq = []; idx2 = {}
    def add(it):
        kind, acc, A, ref, needs = it
        if kind == 'reg': items.append((smf(acc, A, wfrag(ref)), needs))
        elif kind == 'lds':
            sl = len(ldsq) % 4; ldsq.append((len(items), ref, sl))
            items.append((smf(acc, A, f'v[{VB+8*sl}:{VB+8*sl+7}]'), needs + [f'F{ref}']))
        else: items.append((ref, needs))
    for it in first_items: add(it)
    n = 0
    for it in second_items:
        if it[0] != 'raw': idx2[n] = len(items); n += 1
        add(it)
    return items, ldsq, idx2

class Sides:
    def __init__(self): self.side = {}; self.busy = set(); self.vbusy = {}
    def put(self, g, r): self.side.setdefault(g, []).append(r)
    def lds(self, g, r, force=False):
        if not force:
            while g in self.busy: g += 1
        self.put(g, r); self.busy.add(g); return g
    def valu(self, g, instrs, per=1):
        last = g - 1; end = g
        for s in instrs:
            if s is None: g = last + 2; continue
            if isinstance(s, tuple): self.lds(last + 1, s, True); end = max(end, last + 2); continue
            if not s.startswith('v_'): self.put(last + 1, s); end = max(end, last + 2); continue
            while self.vbusy.get(g, 0) >= per: g += 1
            self.put(g, s); self.vbusy[g] = self.vbusy.get(g, 0) + 1; last = g; end = max(end, g + 1)
        self.nxt = g
        return end
    def refills(self, ldsq):
        for n in range(len(ldsq) - 4):
            g = ldsq[n][0]
            lim = ldsq[n+4][0] - 6
            for r in frag_reads(ldsq[n+4][1], ldsq[n][2]):
                g2 = g
                while g2 in self.busy: g2 += 1
                if g2 <= lim: g = self.lds(g2, r)
                else: g = self.lds(max(g, min(lim, g + 1)), r, True)
                assert g < ldsq[n+4][0] - 1, (n, g, ldsq[n+4])

DPP8 = 'row_ror:8 row_mask:0xf bank_mask:0xf'
def dense_reads(dst, off, tagp, kks=range(6)):
    return [('lds', f'ds_read_b64_tr_b16 v[{dst+4*kk+2*x}:{dst+4*kk+2*x+1}], v{VDR} offset:{off + (2*kk+x)*256}', f'{tagp}{kk}')
            for kk in kks for x in range(2)]

def preload_b(a, lg, ldsq):
    for n in range(4):
        for r in frag_reads(ldsq[n][1], ldsq[n][2]): a(r[1]); lg.issue(r[2])

QORD = [[0, 1, 2, 3, 4, 5, 6, 7, 9, 8], [3, 4, 5, 0, 1, 2, 6, 7, 9, 8], [6, 7, 2, 0, 1, 5, 3, 4, 9, 8], [8, 9, 0, 1, 2, 3, 4, 6, 5, 7]]
KORD = [0, 2, 1, 3, 5, 4, 6, 9, 7, 8]

def qk_setup(a, opt):
    common_addr(a)
    T = VTMP
    rho = lambda l: arow(l & 7, (l >> 3) & 1)
    lanefn(a, VXW, lambda l: LDS_MEM + (l & 15)*16 + (l >> 4)*4, T, 256)
    lanefn(a, VDR, lambda l: LDS_MEM + (l >> 2)*16 + (l & 1)*8, T)
    lanefn(a, V9, lambda l: (l >> 5)*256 + rho(l)*16 + ((l >> 4) & 1)*8, T)
    lanefn(a, V10, lambda l: rho(l)*16 + ((l >> 4) & 1)*4, T)
    lanefn(a, V11, lambda l: LDS_MEM + 3072 + l*16, T)
    lanefn(a, V12, lambda l: LDS_MEM + ((l >> 3) & 1)*512 + arow(l & 7, l >> 5)*16 + ((l >> 4) & 1)*8, T)
    a(f's_and_b32 s68, {SH}, 15'); a('s_min_u32 s68, s68, 9'); a('s_lshl_b32 s68, s68, 10'); a(f'v_add_u32 v{V12}, s68, v{V12}')
    lanefn(a, VXS, lambda l: ((l >> 3) & 1)*1024 + (l >> 4)*256 + (l & 7)*16, T)
    a(f's_mul_i32 s67, {SX}, 12288'); a(f's_add_u32 s67, s67, {PA_OFF}')
    a(f's_and_b32 s68, {SH}, 15'); a('s_lshl_b32 s76, s68, 9'); a('s_add_u32 s76, s76, s67')
    a('s_lshr_b32 s77, s68, 1'); a('s_lshl_b32 s77, s77, 8'); a('s_add_u32 s77, s77, s67')
    a('s_and_b32 s68, s68, 1'); a('s_lshl_b32 s68, s68, 3'); a('s_add_u32 s77, s77, s68'); a('s_add_u32 s77, s77, 8192')

def qk_init_clear(a):
    a(f'v_mov_b32 v{VA+16}, -1'); a(f'v_mov_b32 v{VA+17}, -1')
    a(f'buffer_store_dwordx2 v[{VA+16}:{VA+17}], v{V9}, {S_WS}, s76 offen sc1')
    a(f'buffer_store_dword v{VA+16}, v{V10}, {S_WS}, s77 offen sc1')

def mf(D, A, B, first): return f'v_mfma_f32_16x16x32_bf16 v[{D}:{D+3}], v[{A}:{A+3}], v[{B}:{B+3}], ' + ('0' if first else f'v[{D}:{D+3}]')

def stream_head(sd, w, order, AP, opt, rest):
    g = opt.get('gb1', 3)
    sd.put(g, ('wait', 'GW')); sd.put(g, 's_barrier')
    for kb in order:
        if kb not in OWN[w]:
            sd.lds(g, a_read(kb, AP[kb]), True); g += 1
    return g

def qk_loop(a, w, sc, opt):
    VZ = VTMP + 15
    lg = Trk(a, 'lgkmcnt', 15)
    ltop, lent, lfin = a.label('Lqk'), a.label('Lqkent'), a.label('Lqkfin')
    QEX = LDS_EX - LDS_MEM
    SACC, SM = VTMP, VTMP + 4
    QO = QORD[w]
    AP = apos(w, QO)
    seq = [(kb, t) for kb in QO[:6] for t in range(3)] + [(kb, t) for t in range(3) for kb in QO[6:]]
    first = [(xfrag(kb, t, 0)[0], VACC0 + 4*t, AP[kb], xfrag(kb, t, 0)[1], [f'A{kb}']) for kb, t in seq]
    second = []
    n = 0
    SX0 = opt.get('sx0', 19); QS = opt.get('qscale', 1)
    for t in range(3):
        for kb in KORD:
            second.append((xfrag(kb, t, 1)[0], VACC1 + 4*t, AP[kb], xfrag(kb, t, 1)[1], []))
            if w >= 2 and n == SX0:
                for kk in range(6): second.append(('raw', 0, 0, mf(SACC, VKX + 4*kk, VQF + 4*kk, kk == 0), [f'Q{kk}']))
            if w == 0 and n == 29:
                for kk in range(4): second.append(('raw', 0, 0, mf(SM, VKX + 4*kk, VQF + 4*kk, kk == 0), [f'K{kk}', f'Q{kk}']))
            n += 1
    items, ldsq, k2 = build_stream(first, second)
    sd = Sides()
    stream_head(sd, w, QO, AP, opt, None)
    sd.put(opt.get('gb1', 3), lambda o_=opt: stamp(a, o_, 1))
    pub_rd = [('lds', f'ds_read_b64 v[{VKX+2*x}:{VKX+2*x+1}], v{V12} offset:{x*256}', 'PUB') for x in range(2)]
    pub_st = f'buffer_store_dwordx4 v[{VKX}:{VKX+3}], v{VXS}, {S_WS}, s44 offen sc1'
    if w == 1:
        sd.put(0, f'buffer_store_dword v{VT1}, v{VT2}, {S_WS}, s46 offen sc1')
        for r in pub_rd: sd.lds(18, r)
        sd.put(25, ('wait', 'PUB')); sd.put(25, pub_st)
        for j in range(6):
            sd.put(1 + 3*j, f'buffer_load_dword v{VKX+4+j}, v{V9}, {S_WS}, s{[45, 48, 49][j >> 1]} offen sc1')
            if j % 2 == 0: sd.put(2 + 3*j, f's_add_u32 s{[45, 48, 49][j >> 1]}, s{[45, 48, 49][j >> 1]}, 8192')
    if w == 0:
        sd.put(opt.get('kt0', 1), f'buffer_load_dword v{VTMP+13}, v{V12}, {S_WS}, s45 offen sc1')
        sd.put(opt.get('kt0', 1) + 4, f'buffer_load_dword v{VTMP+13}, v{VXS}, {S_WS}, s45 offen sc1')
    wr = lambda acc, t, off, tag: ('lds', f'ds_write_b32 v{VXW}, v{acc} offset:{off + t*1024}', tag)
    for t in range(3): gq = sd.valu([23, 27, 31][t], post(VACC0 + 4*t, VACC0 + 4*t, 's52' if QS else None) + [wr(VACC0 + 4*t, t, QEX, 'QW')], opt.get('qper', [1, 1, 2])[t])
    gb = gq + opt.get('gba', [3, 1, 4, 4])[w]
    if w != 1: sd.put(gb, f's_waitcnt vmcnt({0 if w else 2})')
    sd.put(gb, ('wait', 'QW')); sd.put(gb, 's_barrier')
    if opt.get('diag'): sd.put(gb, lambda: stamp(a, opt, 0))
    if w >= 2:
        for i, r in enumerate(dense_reads(VQF, QEX, 'Q')): sd.lds(gb + (i * opt.get('qspan', 10)) // 12, r, True)
    gk = 0
    for t in range(2): gk = sd.valu(k2[10*t + 9] + 2, post(VACC1 + 4*t, VACC1 + 4*t) + [wr(VACC1 + 4*t, t, 0, 'KW')])
    gB = gk + opt.get('gbb', [1, 1, 3, 3])[w]
    sd.put(gB, ('wait', 'KW')); sd.put(gB, 's_barrier')
    assert gB < len(items)
    if w == 0:
        for i, r in enumerate(dense_reads(VKX, 0, 'K', range(4))): sd.lds(gB + i // opt.get('krd', 3), r, True)
    sd.valu(k2[29] + 2, post(VACC1 + 8, VACC1 + 8, None, w > 0) + [wr(VACC1 + 8, 2, 0, 'KW')])
    E0, T, X0 = VTMP + 8, VTMP + 12, VTMP + 4
    ool4 = None
    if w >= 2:
        lsx, lsxb = a.label('Lsx'), a.label('Lsxb')
        p0 = [f'v_cndmask_b32 v{X0}, v{SACC}, v{SACC+2}, {SMASK8}', f'v_cndmask_b32 v{X0+1}, v{SACC+1}, v{SACC+3}, {SMASK8}',
              f'v_exp_f32 v{E0}, v{X0}', f'v_exp_f32 v{E0+1}, v{X0+1}',
              f'v_max_f32 v{T}, |v{X0}|, |v{X0+1}|', f'v_add_f32 v{E0+3}, v{E0}, v{E0+1}', f'v_cmp_lt_f32 vcc, s79, v{T}']
        if not QS: p0[2:2] = [f'v_mul_f32 v{X0}, s52, v{X0}', f'v_mul_f32 v{X0+1}, s52, v{X0+1}']
        np2 = opt.get('np2', 2 if QS else 4)
        sd.valu(k2[SX0 + 2], p0[:np2], 2)
        g = sd.valu(sd.nxt + 1, p0[np2:])
        sd.put(g, lambda: (a(f's_cbranch_vccnz {lsx}'), a(f'{lsxb}:')))
        sd.lds(g, ('lds', f'ds_write_b128 v{V11}, v[{E0}:{E0+3}] offset:{(w-2)*1024}', 'EW'), True)
        def ool4():
            m = E0 + 2
            a(f'{lsx}:')
            a(f'v_max_f32 v{m}, v{X0}, v{X0+1}'); a(f'v_max_f32_dpp v{m}, v{m}, v{m} {DPP8}')
            for s_ in allred('v_max_f32', m, T): a(s_)
            for i in range(2): a(f'v_sub_f32 v{E0+i}, v{X0+i}, v{m}')
            for i in range(2): a(f'v_exp_f32 v{E0+i}, v{E0+i}')
            a(f'v_add_f32 v{E0+3}, v{E0}, v{E0+1}')
            a(f's_branch {lsxb}')
        sd.valu(5, [f'v_mov_b32 v{E0+2}, 0'])
    sd.refills(ldsq)
    if w == 0:
        for i, r in enumerate(dense_reads(VQF, QEX, 'Q')):
            g = gb
            while g in sd.busy and g < gB - 1: g += 1
            sd.lds(g if g < gB - 1 else gB - 2 - (i & 3), r, True)
    if opt.get('dq'):
        for i_, g_ in zip((0, 6, 7, 3, 4), opt['dq']): sd.put(g_, lambda i_=i_: stamp(a, dict(stamps=1, cyc=1), i_))
        opt = {k_: v_ for k_, v_ in opt.items() if k_ != 'stamps'}; opt['dq1'] = 1

    def top():
        preload_b(a, lg, ldsq)
        for r in range(0, 24, 2): a(f'v_mov_b64 v[{VACC0+r}:{VACC0+r+1}], 0')
        if w == 0: a(f's_bitcmp1_b32 {SSTEP}, 0'); a('s_cselect_b32 s78, -1.0, 1.0')
        if w == 1:
            a(f'v_mov_b32 v{VT1}, {SSTEP}')
            a(f's_lshr_b32 s67, {SSTEP}, 2'); a('s_mul_i32 s44, s67, 40960'); a(f's_bfe_u32 s67, {SSTEP}, 0x10001'); a('s_mul_i32 s67, s67, 20480')
            a('s_add_u32 s44, s44, s67'); a(f's_and_b32 s67, {SSTEP}, 1'); a('s_lshl_b32 s67, s67, 7'); a('s_add_u32 s44, s44, s67'); a('s_add_u32 s44, s44, s47')
    def prefetch():
        ls = a.label('Lnp')
        if w <= 1: a(f's_mov_b32 s45, {OOB}')
        a(f's_cmp_ge_u32 s82, {1 if opt.get("nopf") else 63}'); a(f's_cbranch_scc1 {ls}')
        if w >= 2:
            lk = a.label('Lk')
            a(f's_cmp_ge_u32 s82, {opt.get("self", SELF)}'); a(f's_cbranch_scc1 {lk}')
            check_flags(a, opt, 'K')
            a(f'{lk}:')
            load_frags6(a, VKX, KF_OFF, w - 2)
        elif w == 0:
            check_flags(a, opt, 'K', ls)
            a(f's_lshl_b32 s45, s82, 5'); a(f's_add_u32 s45, s45, {SH}'); a('s_mul_i32 s45, s45, 12288'); a(f's_add_u32 s45, s45, {KF_OFF}')
        elif not opt.get('notouch'):
            check_flags(a, opt, 'Y16', ls)
            a(f's_mul_i32 s45, s82, {40*40960}'); a('s_add_u32 s45, s45, s50')
        a(f'{ls}:')
        if w == 1:
            a(f's_add_u32 s48, s45, {16*40960}'); a(f's_add_u32 s49, s45, {32*40960}'); a(f's_bitcmp1_b32 {SH}, 3'); a(f's_cselect_b32 s49, {OOB}, s49')
    a(f's_mov_b32 {SSTEP}, 0'); a(f's_mov_b32 s52, {f2u(SC):#x}'); a('s_mov_b32 s53, s52'); a(f's_mov_b32 s79, {f2u(opt.get("safe", 60.0)):#x}')
    if w != 1: a(f's_mul_i32 s81, {SH}, 384'); a(f's_add_u32 s81, s81, {PRGX_OFF + 96*128}')
    if w >= 2: a('s_mov_b32 s82, 0'); prefetch()
    if w == 0:
        a(f's_mov_b32 s45, {OOB}'); a(f'v_lshlrev_b32 v{V12}, 7, v0'); a(f'v_add_u32 v{VXS}, 8192, v{V12}'); a(f'v_min_u32 v{VXS}, 12160, v{VXS}')
    if w == 1:
        a(f'v_lshlrev_b32 v{V9}, 7, v0')
        a(f'v_cmp_eq_u32 vcc, 0, v0'); a(f'v_mov_b32 v{VT2}, 0x40000000'); a(f'v_cndmask_b32 v{VT2}, v{VT2}, 0, vcc')
        a(f's_lshl_b32 s81, {SX}, 11'); a(f's_bfe_u32 s67, {SH}, 0x20002'); a(f's_mul_i32 s67, s67, {40*128}'); a('s_add_u32 s81, s81, s67'); a(f's_add_u32 s81, s81, {PRGY_OFF}')
        a(f's_and_b32 s50, {SH}, 15'); a('s_mul_i32 s50, s50, 40960'); a(f's_lshl_b32 s67, {SX}, 14'); a('s_add_u32 s50, s50, s67'); a(f's_add_u32 s50, s50, {VOF_OFF}')
        a(f's_lshl_b32 s46, {SH}, 7'); a(f's_add_u32 s46, s46, {MPRG_OFF}'); a(f's_lshl_b32 s47, {SH}, 11'); a(f's_add_u32 s47, s47, {XN_OFF + 64*40960}')
        a(f's_cmp_ge_u32 {SH}, 10'); a(f's_cselect_b32 s46, {OOB}, s46'); a(f's_cselect_b32 s47, {OOB}, s47')
        for r in (45, 48, 49): a(f's_mov_b32 s{r}, {OOB}')
    top()
    for kb in OWN[w]: a(a_read(kb, AP[kb])[1])
    a('s_waitcnt lgkmcnt(0)')
    a(f's_branch {lent}')
    a(f'{ltop}:')
    lg.reset()
    a('s_barrier')
    a(f's_add_u32 s82, {SSTEP}, {[1, opt.get("tahead", 2) - 1, 0, 0][w]}'); prefetch()
    top()
    gather_setup(a)
    qs = opt.get('qsleep', 8) - (opt.get('qsk', 2) if w >= 2 else 0)
    if qs > 0: a(f's_sleep {qs}')
    if opt.get('qdet', 0): a(f'v_and_b32 v{VZ}, {(8 if NCH[w] == 2 else 16) - 1}, v0'); a(f'v_min_u32 v{VZ}, {4*NCH[w]-1}, v{VZ}'); a(f'v_lshlrev_b32 v{VZ}, 8, v{VZ}')
    else: a(f'v_mov_b32 v{VZ}, 0')
    a('s_waitcnt lgkmcnt(0)')
    if opt.get('mg', 1): ool = gather_m(a, NCH[w], VTMP, VQF, VTMP + 12, opt, (0, 6, 7), VZ if opt.get('qd', 1) else None, opt.get('rdep', 1), opt.get('rgap', 4))
    else: ool = gather(a, NCH[w], VTMP, {k: v for k, v in opt.items() if k != 'stamps'} if opt.get('diag') else opt, (0, 6, 7), opt.get('qrs', 0), VQF if opt.get('qj', 1) else None, VZ if opt.get('qj', 1) else None)
    a(f'{lent}:')
    lg.reset(); lg.issue('GW')
    left = [x_ for g_ in sorted(sd.side) if g_ >= len(items) for x_ in sd.side[g_]]
    merge(a, lg, items, sd.side)
    for x_ in left: merge(a, lg, [], {-1: [x_]})
    if opt.get('dq1'): stamp(a, dict(stamps=1, cyc=1), 2)
    stamp(a, opt, 2)
    EA, EB = VB, VB + 4
    U, LM, F0, F1, LS = VB + 8, VB + 9, VB + 10, VB + 11, VB + 12
    redl = [f'v_add_f32_dpp v{LS}, v{LS}, v{LS} {DPP8}', f'v_mov_b32 v{T}, v{LS}', f'v_permlane16_swap_b32 v{LS}, v{T}', f'v_add_f32 v{LS}, v{LS}, v{T}',
            f'v_mov_b32 v{T}, v{LS}', f'v_permlane32_swap_b32 v{LS}, v{T}', f'v_add_f32 v{LS}, v{LS}, v{T}', f'v_mul_f32 v{LS}, s78, v{LS}']
    lg.all(); a('s_barrier')
    if opt.get('diag'): stamp(a, opt, 6)
    ool3 = None
    if w == 0:
        lslow, lback = a.label('Lsm'), a.label('Lsb')
        for r in dense_reads(VKX, 0, 'K', range(4, 6)): a(r[1]); lg.issue(r[2])
        a(f'ds_read_b128 v[{EA}:{EA+3}], v{V11}'); lg.issue('E'); a(f'ds_read_b128 v[{EB}:{EB+3}], v{V11} offset:1024'); lg.issue('E')
        for kk in range(4, 6):
            lg.wait(f'K{kk}'); a(mf(SM, VKX + 4*kk, VQF + 4*kk, False))
        lg.wait('E')
        for s_ in [f'v_add_f32 v{LS}, v{EA+3}, v{EB+3}', f'v_max_f32 v{U}, |v{EA+2}|, |v{EB+2}|', f'v_mul_f32 v{U}, 0x71800000, v{U}', redl[0], redl[1]]: a(s_)
        stamp(a, opt, 3)
        T2, PO = VB + 13, VB + 16
        a(f'v_cndmask_b32 v{SM}, v{SM}, v{SM+2}, {SMASK8}'); a(f'v_cndmask_b32 v{SM+1}, v{SM+1}, v{SM+3}, {SMASK8}')
        if not QS: a(f'v_mul_f32 v{SM}, s52, v{SM}'); a(f'v_mul_f32 v{SM+1}, s52, v{SM+1}')
        a(f'v_exp_f32 v{SM+2}, v{SM}'); a(f'v_exp_f32 v{SM+3}, v{SM+1}')
        a(redl[2]); a(f'v_max3_f32 v{U}, |v{SM}|, |v{SM+1}|, v{U}'); a(redl[3])
        a(f'v_add_f32 v{LM}, v{SM+2}, v{SM+3}')
        a(redl[4])
        a(f'v_cmp_lt_f32 vcc, s79, v{U}')
        def fin(first):
            a(f'v_add_f32_dpp v{LM}, v{LM}, v{LM} {DPP8}')
            if first: a(redl[5])
            a(f'v_mov_b32 v{T2}, v{LM}')
            if first: a(redl[6]); a(redl[7])
            a(f'v_permlane16_swap_b32 v{LM}, v{T2}'); a(f'v_add_f32 v{LM}, v{LM}, v{T2}')
            a(f'v_fma_f32 v{LM}, v{LM}, s78, v{LS}')
            a(f'v_rcp_f32 v{LM}, v{LM}')
            a(f'v_pk_mul_f32 v[{PO}:{PO+1}], v[{EA}:{EA+1}], v[{LM-1}:{LM}] op_sel:[0,1]'); a(f'v_pk_mul_f32 v[{PO+2}:{PO+3}], v[{EB}:{EB+1}], v[{LM-1}:{LM}] op_sel:[0,1]')
            a(f'v_cvt_pk_bf16_f32 v{PO}, v{PO}, v{PO+1}'); a(f'v_cvt_pk_bf16_f32 v{PO+1}, v{PO+2}, v{PO+3}')
        fin(True)
        a(f's_cbranch_vccnz {lslow}')
        a(f'{lback}:')
        a(f'buffer_store_dwordx2 v[{PO}:{PO+1}], v{V9}, {S_WS}, s76 offen {sc}')
        a(f'v_pk_mul_f32 v[{SM+2}:{SM+3}], v[{SM+2}:{SM+3}], v[{LM-1}:{LM}] op_sel:[0,1]')
        a(f'v_cvt_pk_bf16_f32 v{SM}, v{SM+2}, v{SM+3}')
        a(f'buffer_store_dword v{SM}, v{V10}, {S_WS}, s77 offen {sc}')
        stamp(a, opt, 4)
        if opt.get('diagp'): a('s_waitcnt vmcnt(0)')
        lkm, lkb = a.label('Lkm'), a.label('Lkb')
        a(f's_cmp_ge_u32 {SSTEP}, {4*NMB}'); a(f's_cbranch_scc1 {lkm}')
        a(f'{lkb}:')
        def ool3():
            a(f'{lkm}:')
            a(f's_mul_i32 s72, {SH}, 12288'); a(f's_bfe_u32 s67, {SSTEP}, 0x10001'); a('s_mul_i32 s67, s67, 6144'); a('s_add_u32 s72, s72, s67')
            a(f's_add_u32 s72, s72, {KF_OFF + (64 + NMB)*32*12288}'); a('s_add_u32 s73, s72, 4096')
            a(f's_bitcmp1_b32 {SSTEP}, 0'); a('s_cselect_b32 s74, 8, 0'); a('s_lshl_b32 s74, 0x00ff00ff, s74'); a('s_mov_b32 exec_lo, s74'); a('s_mov_b32 exec_hi, s74')
            for kk in range(6): a(f'buffer_store_dwordx4 v[{VKX+4*kk}:{VKX+4*kk+3}], v{VL16}, {S_WS}, s{72 + (kk >> 2)} offen offset:{(kk & 3)*1024} sc1')
            a('s_mov_b64 exec, -1')
            cprog(a)
            a(f's_branch {lkb}')
            a(f'{lslow}:')
            a(f'v_max_f32 v{U}, v{SM}, v{SM+1}'); a(f'v_max_f32_dpp v{U}, v{U}, v{U} {DPP8}')
            for s_ in allred('v_max_f32', U, T, (16,)): a(s_)
            a(f'v_max3_f32 v{U}, v{U}, v{EA+2}, v{EB+2}')
            a(f'v_sub_f32 v{SM}, v{SM}, v{U}'); a(f'v_sub_f32 v{SM+1}, v{SM+1}, v{U}'); a(f'v_sub_f32 v{F0}, v{EA+2}, v{U}'); a(f'v_sub_f32 v{F1}, v{EB+2}, v{U}')
            a(f'v_exp_f32 v{SM+2}, v{SM}'); a(f'v_exp_f32 v{SM+3}, v{SM+1}'); a(f'v_exp_f32 v{F0}, v{F0}'); a(f'v_exp_f32 v{F1}, v{F1}')
            a(f'v_mul_f32 v{LS}, v{EA+3}, v{F0}'); a(f'v_fmac_f32 v{LS}, v{EB+3}, v{F1}')
            for s_ in redl: a(s_)
            for i in range(2): a(f'v_mul_f32 v{EA+i}, v{EA+i}, v{F0}'); a(f'v_mul_f32 v{EB+i}, v{EB+i}, v{F1}')
            a(f'v_add_f32 v{LM}, v{SM+2}, v{SM+3}')
            fin(False)
            a(f's_branch {lback}')
    if opt.get('dq1'): opt = dict(opt, stamps=1)
    stamp(a, opt, 5)
    stamp_flush(a, opt, 8)
    a(f's_add_u32 {SSTEP}, {SSTEP}, 1'); a(f's_cmp_lt_u32 {SSTEP}, 64'); a(f's_cbranch_scc1 {ltop}')
    a('s_waitcnt vmcnt(0)'); a('s_endpgm')
    ool()
    if ool3: ool3()
    if ool4: ool4()

def vo_setup(a, opt):
    common_addr(a)
    T = VTMP
    lanefn(a, VXW, lambda l: LDS_EX + tile_pat(l), T, 256)
    a(f'v_and_b32 v{T}, 1, v0'); a(f'v_cmp_ne_u32 vcc, 0, v{T}'); a(f'v_mov_b32 v{T}, 0x05040100'); a(f'v_mov_b32 v{T+1}, 0x03020706')
    a(f'v_cndmask_b32 v{VXS}, v{T}, v{T+1}, vcc')
    lanefn(a, V9, lambda l: ((l >> 4) & 1)*1024 + (l & 15)*16 + (l >> 5)*8, T, 256)
    lanefn(a, V10, lambda l: (l >> 4)*10240 + (l & 15)*16, T)
    lanefn(a, V11, lambda l: (l >> 4)*1024 + (l & 15)*16, T, 256)
    lanefn(a, V12, tile_pat, T)
    a(f's_and_b32 {SDT}, {SH}, 15'); a(f's_lshl_b32 s67, {SWV}, 4'); a(f's_add_u32 {SDT}, {SDT}, s67')
    a(f's_lshl_b32 s81, {SX}, 11'); a(f's_bfe_u32 s67, {SDT}, 0x20002'); a(f's_mul_i32 s67, s67, {40*128}'); a('s_add_u32 s81, s81, s67'); a(f's_add_u32 s81, s81, {PRGY_OFF}')
    a(f's_mul_i32 s44, {SH}, 10240'); a(f's_add_u32 s44, s44, {VOMR_OFF}'); a('s_add_u32 s45, s44, 4096'); a('s_add_u32 s46, s44, 8192')
    a(f's_mul_i32 s72, {SX}, {16*10240}'); a(f's_lshl_b32 s68, {SDT}, 8'); a('s_add_u32 s72, s72, s68'); a(f's_add_u32 s72, s72, {VOMR_OFF}')
    a('s_add_u32 s73, s72, 40960'); a('s_add_u32 s74, s73, 40960'); a('s_add_u32 s75, s74, 40960')
    a(f's_mul_i32 s49, {SX}, 12288'); a(f's_add_u32 s49, s49, {PA_OFF}'); a(f's_add_u32 s76, s49, {SCHK}')
    a(f's_mul_i32 s47, {SDT}, 40960'); a(f's_lshl_b32 s67, {SX}, 14'); a('s_add_u32 s47, s47, s67'); a(f's_add_u32 s47, s47, {VOF_OFF}')

def vom_store1(src, k, base, sc):
    if k < 2: return f'buffer_store_dwordx4 v[{src}:{src+3}], v{V11}, {S_WS}, {base[k]} offen {sc}'
    return f'buffer_store_dwordx2 v[{src}:{src+1}], v{V9}, {S_WS}, {base[2]} offen {sc}'
def memp_off(a, dst, add, dt=SDT):
    a(f's_add_u32 s67, {SSTEP}, {add}'); a('s_and_b32 s67, s67, 3'); a('s_lshl_b32 s67, s67, 1'); a(f's_add_u32 s67, s67, {SX}')
    a(f's_mul_i32 s{dst}, s67, 10240'); a(f's_lshl_b32 s{dst+1}, s67, 15'); a(f's_lshl_b32 s67, {dt}, 8')
    a(f's_add_u32 s{dst}, s{dst}, s67'); a(f's_add_u32 s{dst+1}, s{dst+1}, s67'); a(f's_add_u32 s{dst}, s{dst}, {MEML_OFF}')
    a(f's_add_u32 s{dst+1}, s{dst+1}, {SMR}'); a(f's_cmp_ge_u32 {dt}, 24'); a('s_cselect_b32 s67, 10240, 0'); a(f's_add_u32 s{dst+1}, s{dst+1}, s67')

def vo_init_clear(a):
    for r in range(4): a(f'v_mov_b32 v{VA+16+r}, -1')
    for k in range(3): a(vom_store1(VA + 16, k, ('s44', 's45', 's46'), 'sc1'))
    for sl in range(4):
        memp_off(a, 32, sl)
        a(f's_cmp_ge_u32 {SDT}, 40'); a(f's_cselect_b32 s32, {OOB}, s32'); a(f's_cselect_b32 s33, {OOB}, s33')
        a(f'buffer_store_dword v{VA+16}, v{V12}, {S_WS}, s32 offen sc1')
        a(f'buffer_store_dword v{VA+16}, v{V12}, {S_WS}, s33 offen sc1')
        a('s_add_u32 s33, s33, 8192')
        a(f'buffer_store_dword v{VA+16}, v{V12}, {S_WS}, s33 offen sc1')

VORD = [[0, 1, 2, 3, 4, 5, 6, 7, 9, 8], [3, 4, 5, 0, 1, 2, 6, 7, 9, 8], [6, 7, 2, 0, 1, 5, 3, 4, 9, 8], [8, 9, 0, 1, 3, 2, 4, 6, 5, 7]]
OORD = [0, 1, 2, 3, 4, 5, 6, 7, 8, 9]
OORD0 = [0, 2, 1, 3, 4, 6, 5, 7, 8, 9]
def pairup(acc, tmp):
    return [f'v_mov_b32_dpp v{tmp}, v{acc} quad_perm:[1,0,3,2] row_mask:0xf bank_mask:0xf', f'v_perm_b32 v{acc}, v{tmp}, v{acc}, v{VXS}']

def vo_loop(a, w, duty, sc, opt):
    n = NCH[w]; VO = VORD[w]
    lg = Trk(a, 'lgkmcnt', 15)
    ltop, lent = a.label('Lvo'), a.label('Lvoent')
    VV = VACC1; PK = VACC0
    EXO = LDS_EX - LDS_MEM
    AP = apos(w, VO)
    OA = {t: (VOX + 44 + 4*i if i < 5 else AP[VO[i - 5]]) for i, t in enumerate(OORD)}
    seq = [(kb, t) for kb in VO[:3] for t in range(3)] + [(kb, t) for t in range(3) for kb in VO[3:]]
    first = [(xfrag(kb, t, 0)[0], VACC0 + 4*t, AP[kb], xfrag(kb, t, 0)[1], [f'A{kb}']) for kb, t in seq]
    oseq = [(t, 0) for t in OORD0] + [(t, 1) for t in OORD[:3]]
    for i in range(10): oseq += [(OORD[i], 2)] + ([(OORD[i+3], 1)] if i + 3 < 10 else [])
    if opt.get('oseq', 1):
        oseq = [(0, 0), (2, 0), (1, 0), (3, 0), (4, 0), (6, 0), (0, 1), (2, 1), (1, 1), (3, 1), (5, 0), (7, 0), (0, 2), (1, 2), (2, 2), (3, 2),
                (4, 1), (5, 1), (4, 2), (6, 1), (5, 2), (7, 1), (6, 2), (8, 0), (7, 2), (9, 0), (8, 1), (9, 1), (8, 2), (9, 2)]
    second = [(yfrag(tile, kb)[0], OA[tile], VV + 4*kb, yfrag(tile, kb)[1], [f'V{kb}']) for tile, kb in oseq]
    fin = {t: 30 + oseq.index((t, 2)) for t in OORD}
    items, ldsq, k2 = build_stream(first, second)
    sd = Sides()
    stream_head(sd, w, VO, AP, opt, None)
    sd.put(opt.get('gb1', 3), lambda: stamp(a, opt, 1))
    vox = lambda hh: f'buffer_load_dwordx4 v[{VOX+4*hh}:{VOX+4*hh+3}], v{VL16}, {S_WS}, s83 offen offset:{(hh & 3)*1024} {STREAM[0]}'
    vsp = opt.get('vsp', 3)
    NIN = opt.get('nin', 16)
    NE = opt.get('ne', 0)
    if duty:
        for hh in range(NE, min(NIN, 11)):
            g = opt.get('vs0', 1) + (hh - NE) * vsp
            sd.put(g, vox(hh))
            if hh & 3 == 3: sd.put(g + 1, 's_add_u32 s83, s83, 4096')
    if w == 3:
        for i in range(6): sd.put(opt.get('cl0', 1) + 4*i, f'buffer_store_dword v{VT2}, v{V12}, {S_WS}, s{52 + i} offen {"sc1" if i & 1 else sc}')
    zer = [f'v_mov_b64 v[{AP[VO[r >> 1]] + 2*(r & 1)}:{AP[VO[r >> 1]] + 2*(r & 1) + 1}], 0' for r in range(10)]
    for r in range(6): sd.valu(3*(r >> 1) + 3 + (r & 1), [zer[r]])
    wr = lambda acc, t: ('lds', f'ds_write_b32 v{VXW}, v{acc} offset:{t*1024}', f'VW{t}')
    vpost = lambda t: post(VACC0 + 4*t, VACC0 + 4*t) + [None] + pairup(VACC0 + 4*t, VACC0 + 4*t + 1) + [wr(VACC0 + 4*t, t)]
    vrd = lambda kb: ('lds', f'ds_read_b128 v[{VV+4*kb}:{VV+4*kb+3}], v{VAR} offset:{EXO + kb*1024}', f'V{kb}')
    for t, g0, per in ((0, 17, 1), (1, 24, 1), (2, 31, 2)):
        g = sd.valu(g0, vpost(t), per) + 2
        sd.put(g, ('wait', f'VW{t}')); sd.put(g, 's_barrier'); sd.lds(g, vrd(t), True)
    sd.valu(27, zer[6:])
    if opt.get('diag'): sd.put(g, lambda: stamp(a, opt, 0)); sd.put(29, lambda: stamp(a, opt, 5)); sd.put(42, lambda: stamp(a, opt, 7))
    base = ('s44', 's45', 's46')
    tail = []
    ops = []
    for q in range(3):
        b = PK + 4*q; ts_ = list(range(4*q, min(4*q + 4, 10)))
        for t in ts_:
            p_ = post(OA[t], PK + t, None, t >= 8)
            ops += [(f'a{t}{j}', x_, [], fin[t] + 2) for j, x_ in enumerate(p_[:-1])] + [(f'c{t}', p_[-1], [f'a{t}{j}' for j in range(len(p_) - 1)], 0)]
            if duty and t < 5:
                if t == 1: ops.append(('s', 's_add_u32 s83, s83, 4096', ['x0'], 0))
                ops.append((f'x{t}', vox(11 + t), [f'c{t}'] + ([f'x{t-1}'] if t else []) + (['s'] if t == 1 else []), 0))
        ops.append((f'p{q}', f'v_permlane16_swap_b32 v{b}, v{b+1}', [f'c{ts_[0]}', f'c{ts_[1]}'], 0))
        last = [f'p{q}']
        if q < 2:
            ops += [(f'r{q}', f'v_permlane16_swap_b32 v{b+2}, v{b+3}', [f'c{ts_[2]}', f'c{ts_[3]}'], 0),
                    (f'u{q}', f'v_permlane32_swap_b32 v{b}, v{b+2}', [f'p{q}', f'r{q}'], 0), (f'w{q}', f'v_permlane32_swap_b32 v{b+1}, v{b+3}', [f'p{q}', f'r{q}'], 0)]
            last = [f'u{q}', f'w{q}']
        ops += [(f'b{q}', f'v_bfi_b32 v{b}, 1, {SSTEP}, v{b}', last[:1], 0), (f'st{q}', vom_store1(b, q, base, sc), last + [f'b{q}'], 0)]
    at = {}
    g = min(o[3] for o in ops if o[3])
    mem_at = set()
    while len(at) < len(ops):
        for nm, tx, dep, e in ops:
            if nm in at or g < e: continue
            sal = tx.startswith('s_')
            if not all(d in at and (at[d] < g or (at[d] == g and (sal or d == 's'))) for d in dep): continue
            if tx.startswith('v_'):
                if g < len(items) and sd.vbusy.get(g, 0) >= 2: continue
                sd.vbusy[g] = sd.vbusy.get(g, 0) + 1
            elif not sal:
                if g < len(items) and g in mem_at: continue
                mem_at.add(g)
            at[nm] = g; sd.put(g, tx)
        g += 1
    ex = []
    for g in sorted(g for g in sd.side if g >= len(items)): ex += sd.side.pop(g)
    tail = ex + tail
    sd.refills(ldsq)

    def top():
        preload_b(a, lg, ldsq)
        a(f's_bitcmp1_b32 {SSTEP}, 0'); a('s_cselect_b32 s50, 0x80008000, 0')
        if w == 3:
            a(f'v_mov_b32 v{VT2}, -1'); a(f's_and_b32 s35, {SH}, 15')
            for i in range(3):
                memp_off(a, 52 + 2*i, 2, 's35')
                if i < 2: a('s_add_u32 s35, s35, 16')
            a('s_cmp_ge_u32 s35, 40'); a(f's_cselect_b32 s56, {OOB}, s56'); a(f's_cselect_b32 s57, {OOB}, s57')
        if duty:
            memp_off(a, 77, 1)
            if opt.get('nopf'): a('s_mov_b32 s82, 0')
            else: a(f's_mov_b32 s82, {SSTEP}')
            a(f's_mul_i32 s83, s82, {40*40960}'); a('s_add_u32 s83, s83, s47'); a(f's_cmp_eq_u32 {SSTEP}, 63'); a(f's_cselect_b32 s83, {OOB}, s83')
        for r in range(0, 12, 2): a(f'v_mov_b64 v[{VACC0+r}:{VACC0+r+1}], 0')
        for r in range(0, 20, 2): a(f'v_mov_b64 v[{VOX+44+r}:{VOX+45+r}], 0')
        if duty:
            lk = a.label('Lk')
            a(f's_cmp_ge_u32 {SSTEP}, {64 if opt.get("notouch") else opt.get("self", SELF)}'); a(f's_cbranch_scc1 {lk}')
            check_flags(a, opt, 'Y16')
            a(f'{lk}:')
            for hh in range(NE):
                a(vox(hh))
                if hh & 3 == 3: a('s_add_u32 s83, s83, 4096')
    a(f's_mov_b32 {SSTEP}, 0')
    top()
    for kb in OWN[w]: a(a_read(kb, AP[kb])[1])
    a('s_waitcnt lgkmcnt(0)')
    a(f's_branch {lent}')
    a(f'{ltop}:')
    lg.reset()
    a('s_barrier')
    top()
    if opt.get('vsleep', 0): a(f's_sleep {opt.get("vsleep", 0)}')
    a('s_waitcnt lgkmcnt(0)')
    if opt.get('mg', 1): ool = gather_m(a, n, VACC1, VA + 24, VA + 36, opt, (0, 5, 7), None, 1, 0)
    else: ool = gather(a, n, VACC1, {k: v for k, v in opt.items() if k != 'stamps'} if opt.get('diag') else opt, (0, 0 if opt.get('diag2') else 5, 7), opt.get('vrs', 0), VA + 24 if opt.get('vj', 1) else None)
    a(f'{lent}:')
    lg.reset(); lg.issue('GW')
    merge(a, lg, items, sd.side)
    for s_ in tail:
        a(s_)
    stamp(a, opt, 3)
    lcp, lcb, lcf, lce = [a.label('Lc') for _ in range(4)]
    a(f's_cmp_ge_u32 {SSTEP}, {4*NMB}'); a(f's_cbranch_scc1 {lcp}')
    a(f'{lcb}:')
    def ool5():
        a(f'{lcp}:')
        a(f's_lshl_b32 s52, {SSTEP}, 5'); a(f's_add_u32 s52, s52, {SH}'); a('s_mul_i32 s52, s52, 10240'); a(f's_add_u32 s52, s52, {VOM_OFF}')
        a('s_add_u32 s53, s52, 4096'); a('s_add_u32 s54, s52, 8192')
        for k in range(3): a(vom_store1(PK + 4*k, k, ('s52', 's53', 's54'), 'sc1'))
        a(f's_cmp_lt_u32 {SSTEP}, 63'); a(f's_cbranch_scc1 {lcb}')
        a('s_waitcnt vmcnt(0)'); a('s_barrier')
        if w == 3: cprog(a)
        a('s_waitcnt vmcnt(0)'); a('s_endpgm')
    ACC = VB + 28
    R = VB + 16
    def ldp():
        for c in range(n): a(f'buffer_load_dwordx4 v[{R+4*c}:{R+4*c+3}], v{VL16}, {S_WS}, s76 offen offset:{c*1024} sc1')
    lt, ltd, lp, ld = [a.label('Lp') for _ in range(4)]
    PT = VA
    def pwrite(c): a(f'ds_write_b128 v{VGW}, v[{R+4*c}:{R+4*c+3}] offset:{c*1024}')
    def pcheck_m(first):
        for c in range(n):
            b = R + 4*c
            if first: a(f's_waitcnt vmcnt({n - 1 - c})'); pwrite(c)
            a(f'v_bitop3_b32 v{PT+c}, v{b}, v{b+2}, s50 bitop3:0x7e')
            if w == 3 or not first: a(f'v_bitop3_b32 v{PT+3}, v{b+1}, v{b+3}, s50 bitop3:0x7e'); a(f'v_or_b32 v{PT+c}, v{PT+c}, v{PT+3}')
            a(f'v_cmp_gt_i32 {ML[c]}, 0, v{PT+c}')
        mask_or(a, ML[:n])
    MV = MR + ['s[30:31]']
    def ldv(ms=None):
        for q in range(4):
            if ms: a(f's_mov_b64 exec, {ms[q]}')
            a(f'buffer_load_dwordx4 v[{VB+4*q}:{VB+4*q+3}], v{V10}, {S_WS}, s{72+q} offen sc1')
        if ms: a('s_mov_b64 exec, -1')
    def vcheck():
        for q in range(4):
            if w < 2: a(f'v_bitop3_b32 v{PT+4+q}, v{VB+4*q}, {SSTEP}, 1 bitop3:0x28')
            else: a(f'v_bitop3_b32 v{PT+4+q}, v{VB+4*q}, v{VB+4*q+2}, {SSTEP} bitop3:0x7e'); a(f'v_and_b32 v{PT+4+q}, 1, v{PT+4+q}')
        for q in range(4): a(f'v_cmp_ne_u32 {MV[q]}, 0, v{PT+4+q}')
        mask_or(a, MV)
    gather_setup(a, 1)
    ts = opt.get('tsleep', 3) if duty else opt.get('nsleep', 7)
    if ts: a(f's_sleep {ts}')
    SEP = opt.get('sep', 1)
    if duty and SEP:
        lv, lvd = a.label('Lp'), a.label('Lp')
        ldv()
        for r in range(4): a(f'v_mov_b32 v{ACC+r}, 0')
        a('s_waitcnt vmcnt(0)'); vcheck()
        a(f's_cbranch_scc0 {lvd}')
        a(f'{lv}:')
        ldv(MV); a('s_waitcnt vmcnt(0)'); vcheck()
        a(f's_cbranch_scc0 {lvd}')
        budget_loop(a, lv, lvd)
        a(f'{lvd}:')
        stamp(a, opt, 2)
        if opt.get('psl'): a(f's_sleep {opt["psl"]}')
        ldp()
    elif duty:
        ldv(); ldp()
        for r in range(4): a(f'v_mov_b32 v{ACC+r}, 0')
        a(f's_waitcnt vmcnt({n})'); vcheck()
        if not opt.get('novc'): a(f's_cbranch_scc1 {lt}')
        stamp(a, opt, 2)
    else: ldp()
    pcheck_m(True)
    a(f's_cbranch_scc1 {lp}')
    a(f'{ld}:')
    stamp(a, opt, 4)
    def ool2():
        PD = opt.get('pdep', 1) - 1; gap = opt.get('pgap', 2)
        ltb, lpb, lwr = [a.label('Lp') for _ in range(3)]
        if duty:
            a(f'{lt}:')
            a('s_waitcnt vmcnt(0)'); pcheck_m(False)
            for _ in range(PD): ldv(MV); ld_masked(a, n, R, 's76', ML); a(f's_sleep {gap}')
            a(f'{ltb}:')
            ldv(MV); ld_masked(a, n, R, 's76', ML)
            a(f's_waitcnt vmcnt({(4 + n)*PD})'); pcheck_m(False); a('s_cselect_b32 s51, 1, 0'); vcheck()
            a(f's_cbranch_scc0 {ltd}')
            budget_loop(a, ltb, ltd)
            a(f'{ltd}:')
            stamp(a, opt, 2)
            a('s_cmp_eq_u32 s51, 0'); a(f's_cbranch_scc1 {lwr}')
            if PD: a(f's_branch {lpb}')
        a(f'{lp}:')
        for _ in range(PD): ld_masked(a, n, R, 's76', ML); a(f's_sleep {gap}')
        a(f'{lpb}:')
        ld_masked(a, n, R, 's76', ML); a(f's_waitcnt vmcnt({n*PD})'); pcheck_m(False)
        a(f's_cbranch_scc0 {lwr}')
        budget_loop(a, lpb, lwr)
        a(f'{lwr}:')
        for c in range(n): pwrite(c)
        a(f's_branch {ld}')
    if not duty: a('s_waitcnt lgkmcnt(0)'); a('s_barrier'); a('s_waitcnt vmcnt(0)')
    if duty:
        bop = lambda pp: f'v[{VOX+8*pp}:{VOX+8*pp+7}]' if pp < 8 else f'v[{VB+8*(pp-8)}:{VB+8*(pp-8)+7}]'
        rest = [c for c in range(10) if c not in OWN[w]]
        a(smf(ACC, R, bop(OWN[w][0])))
        a('s_waitcnt lgkmcnt(0)'); a('s_barrier')
        for c in rest[:3]: a(f'ds_read_b128 v[{VA+4*c}:{VA+4*c+3}], v{VAR} offset:{c*1024}')
        k = 3
        for j in range(1, n):
            a(smf(ACC, R + 4*j, bop(OWN[w][j])))
            for c in rest[k:k+2]: a(f'ds_read_b128 v[{VA+4*c}:{VA+4*c+3}], v{VAR} offset:{c*1024}')
            k += 2
        for c in rest[k:]: a(f'ds_read_b128 v[{VA+4*c}:{VA+4*c+3}], v{VAR} offset:{c*1024}')
        for j, pp in enumerate(rest):
            a(f's_waitcnt lgkmcnt({len(rest)-1-j})' if pp != 8 else 's_waitcnt vmcnt(0) lgkmcnt(1)')
            a(smf(ACC, VA + 4*pp, bop(pp)))
        for s_ in post(ACC, ACC, None, True): a(s_)
        a(f'v_xor_b32 v{ACC}, s50, v{ACC}')
        for s_ in pairup(ACC, ACC + 1): a(s_)
        for so, fl in ([('s78', 'sc1'), ('s77', sc)] if opt.get('rfirst') else [('s77', sc), ('s78', 'sc1')]):
            a(f'buffer_store_dword v{ACC}, v{V12}, {S_WS}, {so} offen {fl}')
        stamp(a, opt, 6)
        if opt.get('diagp'): a('s_waitcnt vmcnt(1)'); stamp(a, opt, 2); a('s_waitcnt vmcnt(0)'); stamp(a, opt, 3)
    elif w == 3:
        lnc = a.label('Lnx')
        a(f's_cmp_lt_u32 {SSTEP}, {4*NMB}'); a(f's_cbranch_scc1 {lnc}')
        cprog(a)
        a(f'{lnc}:')
    stamp_flush(a, opt, 8)
    a(f's_add_u32 {SSTEP}, {SSTEP}, 1'); a(f's_branch {ltop}')
    ool(); ool2(); ool5()

def chain_main(a, opt):
    lvo = a.label('Lrole_vo')
    tstamp(a, opt, 0, (14, 15))
    STREAM[0] = opt.get('stream', 'sc1')
    a(f's_lshr_b32 {SX}, {SSLOT}, 5'); a(f's_and_b32 s67, {SSLOT}, 15'); a(f's_lshl_b32 {SH}, {SX}, 4'); a(f's_add_u32 {SH}, {SH}, s67')
    a(f's_mov_b32 {STMO}, {opt.get("tmo", 1 << 21)}'); a(f's_mov_b32 {SSTEP}, 0')
    srd(a, S_AUX, 's[38:39]', 8*640*2)
    a(f's_add_u32 {SMR}, s60, {MEMR_OFF + 0x7ffff}'); a(f's_and_b32 {SMR}, {SMR}, 0xfff80000'); a(f's_sub_u32 {SMR}, {SMR}, s60')
    a(f's_mul_i32 s58, {SWV}, 3072'); a(f's_lshl_b32 s67, {SWV}, 11'); a('s_add_u32 s67, s67, 12288'); a(f's_cmp_ge_u32 {SWV}, 2'); a('s_cselect_b32 s58, s67, s58')
    a(f's_mov_b32 {S_ONE0}, 0x00003f80'); a(f's_mov_b32 {S_ONE1}, 0x3f800000')
    a(f's_bitcmp1_b32 {SSLOT}, 4'); a(f's_cbranch_scc1 {lvo}')
    for role in ('qk', 'vo'):
        if role == 'vo': a(f'{lvo}:')
        if role == 'qk':
            srd(a, S_WA, 's[40:41]', 640*6144*2); srd(a, S_WB, 's[42:43]', 640*6144*2); qk_setup(a, opt)
        else:
            srd(a, S_WA, 's[44:45]', 640*6144*2); srd(a, S_WB, 's[46:47]', 640*6144*2); vo_setup(a, opt)
        l1, l2, l3 = a.label('Ls'), a.label('Ls'), a.label('Ls')
        a(f's_mov_b32 {SPC}, 0')
        a(f's_cmp_lg_u32 {SWV}, 0'); a(f's_cbranch_scc1 {l2}')
        mem0_load(a)
        a(f'{l2}:')
        def after_first(n, vm):
            if n == 0:
                a(f's_cmp_lg_u32 {SWV}, 0'); a(f's_cbranch_scc1 {l3}')
                mem0_write(a)
                a(f'{l3}:')
            if n == 1: rot_load(a, 172, 173); vm.issue('rot')
            if n == 13:
                rot_check(a, 172, 173, True)
                if role == 'vo':
                    vo_init_clear(a)
                    for _ in range(15): vm.issue('init')
                a(f's_cmp_lg_u32 {SWV}, 0'); a(f's_cbranch_scc1 {l1}')
                if role == 'qk': qk_init_clear(a)
                a(f's_lshl_b32 s67, 1, {SXCC}'); a(f'v_mov_b32 v{VT0}, s67'); a(f's_lshl_b32 s67, {SX}, 2'); a(f'v_mov_b32 v{VT1}, s67')
                a('s_mov_b64 exec, 1')
                a(f'buffer_atomic_or v{VT0}, v{VT1}, {S_DBG}, 0 offen sc1')
                a('s_mov_b64 exec, -1')
                a(f'{l1}:')
            assert 32 + opt.get('ldep', 6) + 1 <= 39
            if n == 32: a(f'v_lshlrev_b32 v173, 2, v0'); a(f'buffer_load_dword v172, v173, {S_DBG}, 0 offen sc1'); vm.issue('rdy')
            if n == 14 + opt.get('ldep', 6):
                l4 = a.label('Ls')
                a(f's_cmp_lg_u32 {SWV}, 0'); a(f's_cbranch_scc1 {l4}')
                a(f'v_mov_b32 v{VT0}, 1'); a(f'v_mov_b32 v{VT1}, {DBG_READY*4}')
                a('s_mov_b64 exec, 1')
                a(f'buffer_atomic_add v{VT0}, v{VT1}, {S_DBG}, 0 offen sc1')
                a('s_mov_b64 exec, -1')
                a(f'{l4}:')
        loader(a, role, after_first, opt.get('ldep', 6))
        tstamp(a, opt, 1, (14, 15))
        lp, ld, lslow = a.label('Lr'), a.label('Lrd'), a.label('Lslow')
        lc = a.label('Lrc')
        a(f'v_lshlrev_b32 v{VT1}, 2, v0'); a(f'v_mov_b32 v{VT0}, v172')
        a(f's_branch {lc}')
        a(f'{lp}:')
        a(f'buffer_load_dword v{VT0}, v{VT1}, {S_DBG}, 0 offen sc1'); a('s_waitcnt vmcnt(0)')
        a(f'{lc}:')
        a(f'v_readlane_b32 s67, v{VT0}, {DBG_READY}')
        a(f'v_readlane_b32 s68, v{VT0}, {DBG_VOTE}'); a(f's_cmp_lt_u32 s68, {NAREA*256}'); a('s_cselect_b32 s67, 0, s67')
        if not opt.get('noflags'):
            a(f'v_readlane_b32 s68, v{VT0}, {DBG_AREA}'); a(f's_cmp_lt_u32 s68, {NAREA}'); a('s_cselect_b32 s67, 0, s67')
        a(f's_cmp_eq_u32 {STMO}, 0'); a(f's_cbranch_scc1 {ld}')
        a(f's_sub_u32 {STMO}, {STMO}, 1')
        a('s_cmp_lt_u32 s67, 64'); a(f's_cbranch_scc1 {lp}')
        a(f'{ld}:')
        a(f'v_readlane_b32 s67, v{VT0}, {DBG_VOTE}'); a('s_and_b32 s67, s67, 255'); a(f's_cmp_gt_u32 s67, {NAREA//2}'); a('s_cselect_b32 s67, 1, 0')
        a(f'v_readlane_b32 s68, v{VT0}, 0'); a('s_cmp_gt_u32 s68, 15'); a('s_cselect_b32 s68, 1, 0'); a('s_xor_b32 s67, s67, s68'); a('s_lshl_b32 s67, s67, 13')
        if 'par' in opt: a(f's_mov_b32 s67, {opt["par"]*8192}')
        a(f's_add_u32 {SMR}, {SMR}, s67')
        a(f'v_readlane_b32 s67, v{VT0}, 0'); a(f'v_readlane_b32 s68, v{VT0}, 1')
        a('s_bcnt1_i32_b32 s67, s67'); a('s_bcnt1_i32_b32 s68, s68'); a('s_max_u32 s67, s67, s68')
        if opt.get('force_slow'): a('s_mov_b32 s67, 2')
        a('s_cmp_lg_u32 s67, 1'); a(f's_cbranch_scc1 {lslow}')
        for sc in ('', 'sc1'):
            if sc: a(f'{lslow}:')
            if role == 'qk':
                labs = [a.label('Lw') for _ in range(4)]
                for w in range(1, 4): a(f's_cmp_eq_u32 {SWV}, {w}'); a(f's_cbranch_scc1 {labs[w]}')
                for w in range(4):
                    a(f'{labs[w]}:'); qk_loop(a, w, sc, opt)
            else:
                labs = [a.label('Lw') for _ in range(5)]
                a(f's_cmp_eq_u32 {SWV}, 1'); a(f's_cbranch_scc1 {labs[1]}'); a(f's_cmp_eq_u32 {SWV}, 3'); a(f's_cbranch_scc1 {labs[4]}')
                a(f's_cmp_ge_u32 {SDT}, 40'); a(f's_cbranch_scc1 {labs[3]}'); a(f's_cmp_eq_u32 {SWV}, 2'); a(f's_cbranch_scc1 {labs[2]}')
                for i, (w, duty) in enumerate([(0, True), (1, True), (2, True), (2, False), (3, False)]):
                    a(f'{labs[i]}:'); vo_loop(a, w, duty, sc, opt)
```

```python
from common import *

SC = 0.07216878364870322 * 1.4426950408889634

def wfrag(f, half=None):
    if f < 32: k, b = 'a', f * 8
    else: k, b = 'v', 176 + (f - 32) * 8
    if half is None: return f'{k}[{b}:{b+7}]'
    return k, b + 4 * half

VL16, VGW, VAR, VFR, VXW, VXS, VDR, VIDX, V9, V10, V11, V12, VT0, VT1, VT2 = range(1, 16)
VA = 16
VACC0 = 56
VACC1 = 68
VB = 80
VKX = 112
VQF = 136
VTMP = 160
VOX = 112
SSTEP, SH, SX, SDT = 's62', 's63', 's64', 's66'
SMASK8 = 's[70:71]'
SCM = [f's[{72+2*r}:{73+2*r}]' for r in range(4)]
SCHK = 's80'
S_ONE0, S_ONE1 = 's100', 's101'
NCH = [3, 3, 2, 2]
OWN = [[0, 1, 2], [3, 4, 5], [6, 7], [8, 9]]
REGKB = [0, 1, 3, 4, 6, 7, 8]; LDSKB = [2, 5, 9]
REGT = [0, 2, 3, 4, 6, 7, 8]; LDST = [1, 5, 9]
def yfrag(tile, kb):
    if tile in REGT: return 'reg', 21 + REGT.index(tile)*3 + kb
    return 'lds', 9 + LDST.index(tile)*3 + kb
def xfrag(kb, t, second):
    if kb in REGKB: return 'reg', t*7 + REGKB.index(kb) + (21 if second else 0)
    return 'lds', LDSKB.index(kb)*3 + t + (9 if second else 0)
def apos(w, order):
    ap = {kb: VA + 8*c for c, kb in enumerate(OWN[w])}
    free = [VA + 4*i for i in range(10) if VA + 4*i not in ap.values()]
    for kb in order:
        if kb not in ap: ap[kb] = free.pop(0)
    return ap
STREAM = ['sc1 nt']

def tile_pat(l):
    g, c = l >> 4, l & 15
    return (4*g + 2*(c >> 3) + (c & 1))*16 + ((c >> 1) & 3)*4
def arow(i, h): return 4*(i >> 1) + 2*h + (i & 1)

def common_addr(a):
    T = VTMP
    a(f'v_lshlrev_b32 v{VL16}, 4, v0')
    a(f's_mul_i32 s6, {SWV}, 3'); a(f's_lshl_b32 s7, {SWV}, 1'); a('s_add_u32 s7, s7, 2'); a('s_min_u32 s6, s6, s7')
    a(f's_lshl_b32 {SCHK}, s6, 10')
    a(f'v_add_u32 v{VAR}, {LDS_MEM}, v{VL16}'); a(f'v_add_u32 v{VGW}, {SCHK}, v{VAR}')
    lanefn(a, VFR, lambda l: l*16, T, 36864)
    lanefn(a, VIDX, lambda l: 0x4444 + ((l >> 1) & 1)*0xaaaa, T)
    a(f'v_and_b32 v{T}, 8, v0'); a(f'v_cmp_ne_u32 {SMASK8}, 0, v{T}')

def loader(a, role, after_first=None, dep=11):
    vm = Trk(a, 'vmcnt', 63)
    T = 160
    VD0, VD1, VR0 = T, T + 1, T + 2
    dma_voff(a, VD0, 12288, T + 8, T + 9); dma_voff(a, VD1, 1280, T + 8, T + 9)
    for aa in range(2):
        R = VR0 + 3*aa
        row = lambda l: 4*((l >> 4) & 1) + 2*aa + ((l >> 2) & 1)
        lanefn(a, T + 8, lambda l: row(l) & 6, T + 10); lanefn(a, T + 9, lambda l: (l >> 1) & 1, T + 10, 2)
        a(f'v_xor_b32 v{T+9}, v{T+9}, v{T+8}')
        lanefn(a, R, lambda l: (l >> 5)*2048 + ((l >> 3) & 1)*1024 + row(l)*128 + (l & 1)*8, T + 10)
        a(f'v_lshl_add_u32 v{R}, v{T+9}, 4, v{R}')
        a(f'v_add_u32 v{R+1}, 49152, v{R}'); a(f'v_add_u32 v{R+2}, 98304, v{R}')
    a(f's_mul_i32 s68, {SH}, 384'); a(f's_mul_i32 s67, {SWV}, {8*12288}'); a('s_add_u32 s68, s68, s67')
    a(f's_mul_i32 s69, {SH}, {192*1280}'); a(f's_mul_i32 s67, {SWV}, {8*1280}'); a('s_add_u32 s69, s69, s67')
    a(f's_lshl_b32 s7, {SWV}, 10')
    k2 = 'X' if role == 'qk' else 'Y'
    slabs = [('X', S_WA, i) for i in range(14)] + [(k2, S_WB, i) for i in range(14)] + \
            [('X', S_WA, i) for i in range(14, 20)] + [(k2, S_WB, i) for i in range(14, 20)]
    def dma(n):
        kind, sr, i = slabs[n]
        for c in range(3):
            a(f's_add_u32 m0, s7, {(n % 12)*LDS_SLAB + c*4096}')
            if kind == 'X': a(f's_add_u32 s67, s68, {(2*(REGKB + LDSKB)[i >> 1] + (i & 1))*32*12288 + c*128}')
            else: a(f's_add_u32 s67, s69, {((i&1)*96 + c*32)*1280 + (REGT + LDST)[i >> 1]*128}')
            a(f'buffer_load_dwordx4 v{VD0 if kind=="X" else VD1}, {sr}, s67 offen lds')
            vm.issue(n)
    def dest(n, c):
        kind, sr, i = slabs[n]
        second = (n >= 14) if n < 28 else (n >= 34)
        if kind == 'X': t, kb, half = c, i >> 1, i & 1; f = t * 7 + kb; lf = (kb - 7) * 3 + t
        else:
            ks = (i & 1) * 3 + c; kb, half = ks >> 1, ks & 1; tile = i >> 1
            f = tile * 3 + kb; lf = (tile - 7) * 3 + kb
        if second: f += 21; lf += 9
        return f, lf, half
    def reads(n):
        slot = n % 12
        base = VR0 + slot // 4; off0 = (slot % 4) * LDS_SLAB
        for c in range(3):
            f, lf, half = dest(n, c)
            if n < 28: k, b = wfrag(f, half)
            else: k, b = 'v', 16 + lf * 8 + half * 4
            for aa in range(2):
                a(f'ds_read_b64_tr_b16 {k}[{b+2*aa}:{b+2*aa+1}], v{base + 3*aa} offset:{off0 + c*4096}')
    for n in range(dep): dma(n)
    for n in range(40):
        vm.wait(n)
        a('s_waitcnt lgkmcnt(0)')
        a('s_barrier')
        if n + dep < 40: dma(n + dep)
        reads(n)
        after_first(n, vm)
    a('s_waitcnt lgkmcnt(0)'); a('s_barrier')
    for lf in range(18):
        for half in range(2):
            b = 16 + lf * 8 + half * 4
            a(f'ds_write_b128 v{VFR}, v[{b}:{b+3}] offset:{lf*2048 + half*1024}')
    a('s_waitcnt lgkmcnt(0)')

def mem0_load(a):
    lanefn(a, 18, lambda l: (l & 7)*1280 + (l >> 3)*16, 16)
    lanefn(a, 19, lambda l: LDS_MEM + (l >> 4)*256 + arow(l & 7, (l >> 3) & 1)*16, 16)
    for n in range(10): a(f'buffer_load_dwordx4 v[{24+4*n}:{27+4*n}], v18, {S_AUX}, 0 offen offset:{n*128}')
def mem0_write(a):
    for n in range(10): a(f'ds_write_b128 v19, v[{24+4*n}:{27+4*n}] offset:{n*1024}')

def maxchk(a, regs, first=True):
    regs = list(regs)
    if first:
        a(f'v_max3_u32 v{VT0}, v{regs[0]}, v{regs[1]}, v{regs[2]}'); regs = regs[3:]
    while regs:
        if len(regs) >= 2: a(f'v_max3_u32 v{VT0}, v{VT0}, v{regs[0]}, v{regs[1]}'); regs = regs[2:]
        else: a(f'v_max_u32 v{VT0}, v{VT0}, v{regs[0]}'); regs = []


def gather_setup(a, step_add=0):
    a(f's_add_u32 s67, {SSTEP}, {step_add}'); a('s_and_b32 s67, s67, 3'); a('s_lshl_b32 s67, s67, 1')
    a(f's_add_u32 s68, s67, 1'); a(f's_sub_u32 s68, s68, {SX}'); a(f's_add_u32 s67, s67, {SX}')
    a('s_mul_i32 s67, s67, 10240'); a('s_lshl_b32 s68, s68, 15')
    a(f's_add_u32 s33, s68, {SMR}'); a('s_add_u32 s33, s33, s58')
    a(f's_add_u32 s32, s67, {SCHK}'); a(f's_add_u32 s32, s32, {MEML_OFF}')

def gather(a, n, R, opt, st, rsleep=0, R2=None, det=None):
    ld = lambda r, so: [a(f'buffer_load_dwordx4 v[{r+4*c}:{r+4*c+3}], v{VL16}, {S_WS}, {so} offen offset:{c*1024} sc1') for c in range(n)]
    def chk(r, k=0): a(f's_waitcnt vmcnt({k})'); maxchk(a, range(r, r + 4*n)); a(f'v_cmp_eq_u32 vcc, -1, v{VT0}')
    l1, l1ok, l2, l2ok = [a.label('Lg') for _ in range(4)]
    if det is not None:
        l0, l0d = a.label('Lg'), a.label('Lg')
        a(f'{l0}:')
        a(f'buffer_load_dword v{R}, v{det}, {S_WS}, s32 offen sc1'); a('s_waitcnt vmcnt(0)'); a(f'v_cmp_eq_u32 vcc, -1, v{R}')
        poll_tail(a, l0, l0d)
    stamp(a, opt, st[0])
    if R2 is None:
        a(f'{l1}:')
        ld(R, 's32'); chk(R)
        poll_tail(a, l1, l1ok)
    else:
        ld(R, 's32'); ld(R2, 's33'); chk(R, n)
        a(f's_cbranch_vccnz {l1}')
        a(f'{l1ok}:')
    stamp(a, opt, st[1])
    for c in range(n):
        for i in range(4):
            a(f'v_lshlrev_b32 v{VA+8*c+2*i}, 16, v{R+4*c+i}'); a(f'v_and_b32 v{VA+8*c+2*i+1}, 0xffff0000, v{R+4*c+i}')
    Q = R if R2 is None else R2
    if R2 is None:
        if rsleep: a(f's_sleep {rsleep}')
        ld(Q, 's33')
    chk(Q)
    a(f's_cbranch_vccnz {l2}')
    a(f'{l2ok}:')
    stamp(a, opt, st[2])
    for c in range(n):
        b = VA + 8*c
        for i in range(4):
            a(f'v_dot2c_f32_bf16 v{b+2*i}, {S_ONE0}, v{Q+4*c+i}'); a(f'v_dot2c_f32_bf16 v{b+2*i+1}, {S_ONE1}, v{Q+4*c+i}')
        for i in range(4): a(f'v_cvt_pk_bf16_f32 v{b+i}, v{b+2*i}, v{b+2*i+1}')
        a(f'ds_write_b128 v{VGW}, v[{b}:{b+3}] offset:{c*1024}')
    def outofline():
        if R2 is not None:
            a(f'{l1}:')
            ld(R, 's32'); ld(R2, 's33'); chk(R, n)
            a(f's_cbranch_vccz {l1ok}')
            budget_loop(a, l1, l1ok)
        a(f'{l2}:')
        ld(Q, 's33'); chk(Q)
        a(f's_cbranch_vccz {l2ok}')
        budget_loop(a, l2, l2ok)
    return outofline

ML = ['s[16:17]', 's[18:19]', 's[20:21]']; MR = ['s[22:23]', 's[24:25]', 's[26:27]']; MOR = 's[28:29]'
def mask_or(a, ms):
    a(f's_or_b64 {MOR}, {ms[0]}, {ms[1]}')
    for m in ms[2:]: a(f's_or_b64 {MOR}, {MOR}, {m}')
def ld_masked(a, n, r, so, ms=None):
    for c in range(n):
        if ms: a(f's_mov_b64 exec, {ms[c]}')
        a(f'buffer_load_dwordx4 v[{r+4*c}:{r+4*c+3}], v{VL16}, {S_WS}, {so} offen offset:{c*1024} sc1')
    if ms: a('s_mov_b64 exec, -1')

def gather_m(a, n, R, Q, T, opt, st, det, dep, gap):
    def chk(r, ms, k):
        a(f's_waitcnt vmcnt({k})')
        for c in range(n): a(f'v_max3_u32 v{T+c}, v{r+4*c}, v{r+4*c+1}, v{r+4*c+2}')
        for c in range(n): a(f'v_max_u32 v{T+c}, v{T+c}, v{r+4*c+3}')
        for c in range(n): a(f'v_cmp_eq_u32 {ms[c]}, -1, v{T+c}')
        mask_or(a, ms[:n])
    l1, l1ok, l2, l2b, l2ok = [a.label('Lg') for _ in range(5)]
    if det is not None:
        l0, l0d = a.label('Lg'), a.label('Lg')
        a(f'{l0}:')
        a(f'buffer_load_dword v{R}, v{det}, {S_WS}, s32 offen sc1'); a('s_waitcnt vmcnt(0)'); a(f'v_cmp_eq_u32 vcc, -1, v{R}')
        poll_tail(a, l0, l0d)
    stamp(a, opt, st[0])
    ld_masked(a, n, R, 's32'); ld_masked(a, n, Q, 's33'); chk(R, ML, n)
    a(f's_cbranch_scc1 {l1}')
    a(f'{l1ok}:')
    stamp(a, opt, st[1])
    for c in range(n):
        for i in range(4):
            a(f'v_lshlrev_b32 v{VA+8*c+2*i}, 16, v{R+4*c+i}'); a(f'v_and_b32 v{VA+8*c+2*i+1}, 0xffff0000, v{R+4*c+i}')
    chk(Q, MR, 0)
    a(f's_cbranch_scc1 {l2}')
    a(f'{l2ok}:')
    stamp(a, opt, st[2])
    for c in range(n):
        b = VA + 8*c
        for i in range(4):
            a(f'v_dot2c_f32_bf16 v{b+2*i}, {S_ONE0}, v{Q+4*c+i}'); a(f'v_dot2c_f32_bf16 v{b+2*i+1}, {S_ONE1}, v{Q+4*c+i}')
        for i in range(4): a(f'v_cvt_pk_bf16_f32 v{b+i}, v{b+2*i}, v{b+2*i+1}')
        a(f'ds_write_b128 v{VGW}, v[{b}:{b+3}] offset:{c*1024}')
    def outofline():
        a(f'{l1}:')
        ld_masked(a, n, R, 's32', ML); chk(Q, MR, n)
        ld_masked(a, n, Q, 's33', MR); chk(R, ML, n)
        a(f's_cbranch_scc0 {l1ok}')
        budget_loop(a, l1, l1ok)
        a(f'{l2}:')
        for _ in range(dep - 1):
            ld_masked(a, n, Q, 's33', MR); a(f's_sleep {gap}')
        a(f'{l2b}:')
        ld_masked(a, n, Q, 's33', MR); chk(Q, MR, n*(dep - 1))
        a(f's_cbranch_scc0 {l2ok}')
        budget_loop(a, l2b, l2ok)
    return outofline

def a_read(kb, reg):
    return ('lds', f'ds_read_b128 v[{reg}:{reg+3}], v{VAR} offset:{kb*1024}', f'A{kb}')
def frag_reads(lf, slot):
    return [('lds', f'ds_read_b128 v[{VB+8*slot+4*x}:{VB+8*slot+4*x+3}], v{VFR} offset:{lf*2048 + x*1024}', f'F{lf}') for x in range(2)]
def smf(acc, A, B): return f'v_smfmac_f32_16x16x64_bf16 v[{acc}:{acc+3}], v[{A}:{A+3}], {B}, v{VIDX}'
def post(acc, out, scale=None, pk=False):
    if pk: r = [f'v_pk_add_f32 v[{acc}:{acc+1}], v[{acc}:{acc+1}], v[{acc+2}:{acc+3}]']
    else: r = [f'v_add_f32 v{acc+i}, v{acc+i}, v{acc+2+i}' for i in range(2)]
    if scale: r += [f'v_mul_f32 v{acc+i}, {scale}, v{acc+i}' for i in range(2)]
    return r + [f'v_cvt_pk_bf16_f32 v{out}, v{acc}, v{acc+1}']

def allred(op, v, t, stages=(16, 32)):
    r = []
    for st in stages: r += [f'v_mov_b32 v{t}, v{v}', f'v_permlane{st}_swap_b32 v{v}, v{t}', f'{op} v{v}, v{v}, v{t}']
    return r

def stamp_flush(a, opt, n):
    if not opt.get('stamps'): return
    a('s_waitcnt lgkmcnt(0)')
    a(f's_lshl_b32 s67, {SSLOT}, 2'); a(f's_add_u32 s67, s67, {SWV}'); a('s_lshl_b32 s67, s67, 6'); a(f's_add_u32 s67, s67, {SSTEP}')
    a('s_lshl_b32 s67, s67, 6'); a(f's_add_u32 s67, s67, {STAMP_OFF}')
    a(f'v_lshlrev_b32 v{VT1}, 2, v0')
    for i in range(n): a(f'v_writelane_b32 v{VT0}, s{STAMP0+2*i}, {i}')
    a('s_mov_b64 exec, 0xffff')
    a(f'buffer_store_dword v{VT0}, v{VT1}, {S_WS}, s67 offen')
    a('s_mov_b64 exec, -1')

SPC = 's60'
SMR = 's59'
SELF = 3
def check_flags(a, opt, kind, skip=None, early=None):
    if opt.get('noflags'): return
    lp, ld = a.label('Lf'), a.label('Lfd')
    a(f's_sub_u32 s61, s82, {LEAD-4}'); a('s_max_i32 s61, s61, 0'); a('s_lshr_b32 s61, s61, 2'); a('s_add_u32 s61, s61, s82')
    a(f's_cmp_gt_u32 {SPC}, s61'); a(f's_cbranch_scc1 {ld}')
    if early:
        a(f's_waitcnt vmcnt({early[1]})')
        for r in (8, 4, 2, 1): a(f'v_min_u32_dpp v{early[0]}, v{early[0]}, v{early[0]} row_ror:{r} row_mask:0xf bank_mask:0xf')
        a(f'v_readfirstlane_b32 {SPC}, v{early[0]}')
        a(f's_cmp_gt_u32 {SPC}, s61'); a(f's_cbranch_scc1 {ld}')
    if kind == 'K': a(f'v_and_b32 v{VT1}, 15, v0'); a(f'v_min_u32 v{VT1}, 2, v{VT1}'); a(f'v_lshlrev_b32 v{VT1}, 7, v{VT1}')
    elif kind == 'Y16': a(f'v_and_b32 v{VT1}, 15, v0'); a(f'v_lshlrev_b32 v{VT1}, 7, v{VT1}')
    else: a(f'v_and_b32 v{VT1}, 3, v0'); a(f'v_mul_u32_u24 v{VT1}, {40*128}, v{VT1}')
    a(f'{lp}:')
    a(f'buffer_load_dword v{VT0}, v{VT1}, {S_WS}, s81 offen sc1'); a('s_waitcnt vmcnt(0)')
    for r in (8, 4, 2, 1): a(f'v_min_u32_dpp v{VT0}, v{VT0}, v{VT0} row_ror:{r} row_mask:0xf bank_mask:0xf')
    a(f'v_readfirstlane_b32 {SPC}, v{VT0}')
    a(f's_cmp_gt_u32 {SPC}, s61'); a(f's_cbranch_scc1 {ld}')
    if skip: a(f's_cmp_lt_u32 s82, {opt.get("self", SELF)}'); a(f's_cbranch_scc1 {skip}')
    budget_loop(a, lp, ld)
    a(f'{ld}:')

def cprog(a):
    a('s_waitcnt vmcnt(0)')
    a(f's_lshl_b32 s67, {SSLOT}, 7'); a(f's_add_u32 s67, s67, {CPRG_OFF}'); a(f's_add_u32 s68, {SSTEP}, 1'); a(f'v_mov_b32 v{VT0}, s68'); a(f'v_mov_b32 v{VT1}, 0')
    a('s_mov_b64 exec, 1')
    a(f'buffer_store_dword v{VT0}, v{VT1}, {S_WS}, s67 offen sc1')
    a('s_mov_b64 exec, -1')

def load_frags6(a, dst, base_off, ct, seg='s82'):
    a(f's_lshl_b32 s67, {seg}, 5'); a(f's_add_u32 s67, s67, {SH}'); a('s_mul_i32 s67, s67, 12288')
    a(f's_add_u32 s67, s67, {base_off + ct*6144}'); a('s_add_u32 s68, s67, 4096')
    for kk in range(6):
        a(f'buffer_load_dwordx4 v[{dst+4*kk}:{dst+4*kk+3}], v{VL16}, {S_WS}, {"s67" if kk < 4 else "s68"} offen offset:{(kk&3)*1024} {STREAM[0]}')

def build_stream(first_items, second_items):
    items = []; ldsq = []; idx2 = {}
    def add(it):
        kind, acc, A, ref, needs = it
        if kind == 'reg': items.append((smf(acc, A, wfrag(ref)), needs))
        elif kind == 'lds':
            sl = len(ldsq) % 4; ldsq.append((len(items), ref, sl))
            items.append((smf(acc, A, f'v[{VB+8*sl}:{VB+8*sl+7}]'), needs + [f'F{ref}']))
        else: items.append((ref, needs))
    for it in first_items: add(it)
    n = 0
    for it in second_items:
        if it[0] != 'raw': idx2[n] = len(items); n += 1
        add(it)
    return items, ldsq, idx2

class Sides:
    def __init__(self): self.side = {}; self.busy = set(); self.vbusy = {}
    def put(self, g, r): self.side.setdefault(g, []).append(r)
    def lds(self, g, r, force=False):
        if not force:
            while g in self.busy: g += 1
        self.put(g, r); self.busy.add(g); return g
    def valu(self, g, instrs, per=1):
        last = g - 1; end = g
        for s in instrs:
            if s is None: g = last + 2; continue
            if isinstance(s, tuple): self.lds(last + 1, s, True); end = max(end, last + 2); continue
            if not s.startswith('v_'): self.put(last + 1, s); end = max(end, last + 2); continue
            while self.vbusy.get(g, 0) >= per: g += 1
            self.put(g, s); self.vbusy[g] = self.vbusy.get(g, 0) + 1; last = g; end = max(end, g + 1)
        self.nxt = g
        return end
    def refills(self, ldsq):
        for n in range(len(ldsq) - 4):
            g = ldsq[n][0]
            lim = ldsq[n+4][0] - 6
            for r in frag_reads(ldsq[n+4][1], ldsq[n][2]):
                g2 = g
                while g2 in self.busy: g2 += 1
                if g2 <= lim: g = self.lds(g2, r)
                else: g = self.lds(max(g, min(lim, g + 1)), r, True)
                assert g < ldsq[n+4][0] - 1, (n, g, ldsq[n+4])

DPP8 = 'row_ror:8 row_mask:0xf bank_mask:0xf'
def dense_reads(dst, off, tagp, kks=range(6)):
    return [('lds', f'ds_read_b64_tr_b16 v[{dst+4*kk+2*x}:{dst+4*kk+2*x+1}], v{VDR} offset:{off + (2*kk+x)*256}', f'{tagp}{kk}')
            for kk in kks for x in range(2)]

def preload_b(a, lg, ldsq):
    for n in range(4):
        for r in frag_reads(ldsq[n][1], ldsq[n][2]): a(r[1]); lg.issue(r[2])

QORD = [[0, 1, 2, 3, 4, 5, 6, 7, 9, 8], [3, 4, 5, 0, 1, 2, 6, 7, 9, 8], [6, 7, 2, 0, 1, 5, 3, 4, 9, 8], [8, 9, 0, 1, 2, 3, 4, 6, 5, 7]]
KORD = [0, 2, 1, 3, 5, 4, 6, 9, 7, 8]

def qk_setup(a, opt):
    common_addr(a)
    T = VTMP
    rho = lambda l: arow(l & 7, (l >> 3) & 1)
    lanefn(a, VXW, lambda l: LDS_MEM + (l & 15)*16 + (l >> 4)*4, T, 256)
    lanefn(a, VDR, lambda l: LDS_MEM + (l >> 2)*16 + (l & 1)*8, T)
    lanefn(a, V9, lambda l: (l >> 5)*256 + rho(l)*16 + ((l >> 4) & 1)*8, T)
    lanefn(a, V10, lambda l: rho(l)*16 + ((l >> 4) & 1)*4, T)
    lanefn(a, V11, lambda l: LDS_MEM + 3072 + l*16, T)
    lanefn(a, V12, lambda l: LDS_MEM + ((l >> 3) & 1)*512 + arow(l & 7, l >> 5)*16 + ((l >> 4) & 1)*8, T)
    a(f's_and_b32 s68, {SH}, 15'); a('s_min_u32 s68, s68, 9'); a('s_lshl_b32 s68, s68, 10'); a(f'v_add_u32 v{V12}, s68, v{V12}')
    lanefn(a, VXS, lambda l: ((l >> 3) & 1)*1024 + (l >> 4)*256 + (l & 7)*16, T)
    a(f's_mul_i32 s67, {SX}, 12288'); a(f's_add_u32 s67, s67, {PA_OFF}')
    a(f's_and_b32 s68, {SH}, 15'); a('s_lshl_b32 s76, s68, 9'); a('s_add_u32 s76, s76, s67')
    a('s_lshr_b32 s77, s68, 1'); a('s_lshl_b32 s77, s77, 8'); a('s_add_u32 s77, s77, s67')
    a('s_and_b32 s68, s68, 1'); a('s_lshl_b32 s68, s68, 3'); a('s_add_u32 s77, s77, s68'); a('s_add_u32 s77, s77, 8192')

def qk_init_clear(a):
    a(f'v_mov_b32 v{VA+16}, -1'); a(f'v_mov_b32 v{VA+17}, -1')
    a(f'buffer_store_dwordx2 v[{VA+16}:{VA+17}], v{V9}, {S_WS}, s76 offen sc1')
    a(f'buffer_store_dword v{VA+16}, v{V10}, {S_WS}, s77 offen sc1')

def mf(D, A, B, first): return f'v_mfma_f32_16x16x32_bf16 v[{D}:{D+3}], v[{A}:{A+3}], v[{B}:{B+3}], ' + ('0' if first else f'v[{D}:{D+3}]')

def stream_head(sd, w, order, AP, opt, rest):
    g = opt.get('gb1', 3)
    sd.put(g, ('wait', 'GW')); sd.put(g, 's_barrier')
    for kb in order:
        if kb not in OWN[w]:
            sd.lds(g, a_read(kb, AP[kb]), True); g += 1
    return g

def qk_loop(a, w, sc, opt):
    VZ = VTMP + 15
    lg = Trk(a, 'lgkmcnt', 15)
    ltop, lent, lfin = a.label('Lqk'), a.label('Lqkent'), a.label('Lqkfin')
    QEX = LDS_EX - LDS_MEM
    SACC, SM = VTMP, VTMP + 4
    QO = QORD[w]
    AP = apos(w, QO)
    seq = [(kb, t) for kb in QO[:6] for t in range(3)] + [(kb, t) for t in range(3) for kb in QO[6:]]
    first = [(xfrag(kb, t, 0)[0], VACC0 + 4*t, AP[kb], xfrag(kb, t, 0)[1], [f'A{kb}']) for kb, t in seq]
    second = []
    n = 0
    SX0 = opt.get('sx0', 19); QS = opt.get('qscale', 0)
    for t in range(3):
        for kb in KORD:
            second.append((xfrag(kb, t, 1)[0], VACC1 + 4*t, AP[kb], xfrag(kb, t, 1)[1], []))
            if w >= 2 and n == SX0:
                for kk in range(6): second.append(('raw', 0, 0, mf(SACC, VKX + 4*kk, VQF + 4*kk, kk == 0), [f'Q{kk}']))
            if w == 0 and n == 29:
                for kk in range(4): second.append(('raw', 0, 0, mf(SM, VKX + 4*kk, VQF + 4*kk, kk == 0), [f'K{kk}', f'Q{kk}']))
            n += 1
    items, ldsq, k2 = build_stream(first, second)
    sd = Sides()
    stream_head(sd, w, QO, AP, opt, None)
    sd.put(opt.get('gb1', 3), lambda o_=opt: stamp(a, o_, 1))
    pub_rd = [('lds', f'ds_read_b64 v[{VKX+2*x}:{VKX+2*x+1}], v{V12} offset:{x*256}', 'PUB') for x in range(2)]
    pub_st = f'buffer_store_dwordx4 v[{VKX}:{VKX+3}], v{VXS}, {S_WS}, s44 offen sc1'
    if w == 1:
        sd.put(0, f'buffer_store_dword v{VT1}, v{VT2}, {S_WS}, s46 offen sc1')
        for r in pub_rd: sd.lds(18, r)
        sd.put(25, ('wait', 'PUB')); sd.put(opt.get('pubg', 25), pub_st)
        for j in range(6):
            sd.put(1 + 3*j, f'buffer_load_dword v{VKX+4+j}, v{V9}, {S_WS}, s{[45, 48, 49][j >> 1]} offen sc1')
            if j % 2 == 0: sd.put(2 + 3*j, f's_add_u32 s{[45, 48, 49][j >> 1]}, s{[45, 48, 49][j >> 1]}, 8192')
    if w == 0:
        sd.put(opt.get('kt0', 1), f'buffer_load_dword v{VTMP+13}, v{V12}, {S_WS}, s45 offen sc1')
        sd.put(opt.get('kt0', 1) + 4, f'buffer_load_dword v{VTMP+13}, v{VXS}, {S_WS}, s45 offen sc1')
        if opt.get('async', 1): sd.put(19, f'buffer_load_dword v{VTMP+14}, v{VT2}, {S_WS}, s81 offen sc1')
    if w == 1 and opt.get('async', 1): sd.put(opt.get('w1p', 21), f'buffer_load_dword v{V11}, v{V10}, {S_WS}, s81 offen sc1')
    wr = lambda acc, t, off, tag: ('lds', f'ds_write_b32 v{VXW}, v{acc} offset:{off + t*1024}', tag)
    for t in range(3): gq = sd.valu([23, 27, 31][t], post(VACC0 + 4*t, VACC0 + 4*t, 's52' if QS else None) + [wr(VACC0 + 4*t, t, QEX, 'QW')], opt.get('qper', [1, 1, 2])[t])
    gb = gq + opt.get('gba', [3, 1, 4, 4])[w]
    if w != 1: sd.put(gb, f's_waitcnt vmcnt({0 if w else 3})')
    sd.put(gb, ('wait', 'QW')); sd.put(gb, 's_barrier')
    if opt.get('diag'): sd.put(gb, lambda: stamp(a, opt, 0))
    if w >= 2:
        for i, r in enumerate(dense_reads(VQF, QEX, 'Q')): sd.lds(gb + (i * opt.get('qspan', 10)) // 12, r, True)
    gk = 0
    for t in range(2): gk = sd.valu(k2[10*t + 9] + 2, post(VACC1 + 4*t, VACC1 + 4*t) + [wr(VACC1 + 4*t, t, 0, 'KW')])
    gB = gk + opt.get('gbb', [1, 1, 3, 3])[w]
    sd.put(gB, ('wait', 'KW')); sd.put(gB, 's_barrier')
    assert gB < len(items)
    if w == 0:
        for i, r in enumerate(dense_reads(VKX, 0, 'K', range(4))): sd.lds(gB + i // opt.get('krd', 3), r, True)
    sd.valu(k2[29] + 2, post(VACC1 + 8, VACC1 + 8, None, w > 0) + [wr(VACC1 + 8, 2, 0, 'KW')])
    E0, T, X0 = VTMP + 8, VTMP + 12, VTMP + 4
    ool4 = None
    if w >= 2:
        lsx, lsxb = a.label('Lsx'), a.label('Lsxb')
        p0 = [f'v_cndmask_b32 v{X0}, v{SACC}, v{SACC+2}, {SMASK8}', f'v_cndmask_b32 v{X0+1}, v{SACC+1}, v{SACC+3}, {SMASK8}',
              f'v_exp_f32 v{E0}, v{X0}', f'v_exp_f32 v{E0+1}, v{X0+1}',
              f'v_max_f32 v{T}, |v{X0}|, |v{X0+1}|', f'v_add_f32 v{E0+3}, v{E0}, v{E0+1}', f'v_cmp_lt_f32 vcc, s79, v{T}']
        if not QS: p0[2:2] = [f'v_mul_f32 v{X0}, s52, v{X0}', f'v_mul_f32 v{X0+1}, s52, v{X0+1}']
        np2 = opt.get('np2', 2 if QS else 4)
        sd.valu(k2[SX0 + 2], p0[:np2], 2)
        g = sd.valu(sd.nxt + 1, p0[np2:])
        sd.put(g, lambda: (a(f's_cbranch_vccnz {lsx}'), a(f'{lsxb}:')))
        sd.lds(g, ('lds', f'ds_write_b128 v{V11}, v[{E0}:{E0+3}] offset:{(w-2)*1024}', 'EW'), True)
        def ool4():
            m = E0 + 2
            a(f'{lsx}:')
            a(f'v_max_f32 v{m}, v{X0}, v{X0+1}'); a(f'v_max_f32_dpp v{m}, v{m}, v{m} {DPP8}')
            for s_ in allred('v_max_f32', m, T): a(s_)
            for i in range(2): a(f'v_sub_f32 v{E0+i}, v{X0+i}, v{m}')
            for i in range(2): a(f'v_exp_f32 v{E0+i}, v{E0+i}')
            a(f'v_add_f32 v{E0+3}, v{E0}, v{E0+1}')
            a(f's_branch {lsxb}')
        sd.valu(5, [f'v_mov_b32 v{E0+2}, 0'])
    sd.refills(ldsq)
    if w == 0:
        for i, r in enumerate(dense_reads(VQF, QEX, 'Q')):
            g = gb
            while g in sd.busy and g < gB - 1: g += 1
            sd.lds(g if g < gB - 1 else gB - 2 - (i & 3), r, True)
    if opt.get('dq'):
        for i_, g_ in zip((0, 6, 7, 3, 4), opt['dq']): sd.put(g_, lambda i_=i_: stamp(a, dict(stamps=1, cyc=1), i_))
        opt = {k_: v_ for k_, v_ in opt.items() if k_ != 'stamps'}; opt['dq1'] = 1

    def top():
        preload_b(a, lg, ldsq)
        for r in range(0, 24, 2): a(f'v_mov_b64 v[{VACC0+r}:{VACC0+r+1}], 0')
        if w == 0: a(f's_bitcmp1_b32 {SSTEP}, 0'); a('s_cselect_b32 s78, -1.0, 1.0')
        if w == 1:
            a(f'v_mov_b32 v{VT1}, {SSTEP}')
            a(f's_lshr_b32 s67, {SSTEP}, 2'); a('s_mul_i32 s44, s67, 40960'); a(f's_bfe_u32 s67, {SSTEP}, 0x10001'); a('s_mul_i32 s67, s67, 20480')
            a('s_add_u32 s44, s44, s67'); a(f's_and_b32 s67, {SSTEP}, 1'); a('s_lshl_b32 s67, s67, 7'); a('s_add_u32 s44, s44, s67'); a('s_add_u32 s44, s44, s47')
    def prefetch():
        ls = a.label('Lnp')
        if w <= 1: a(f's_mov_b32 s45, {OOB}')
        a(f's_cmp_ge_u32 s82, {1 if opt.get("nopf") else 63}'); a(f's_cbranch_scc1 {ls}')
        if w >= 2:
            lk = a.label('Lk')
            a(f's_cmp_ge_u32 s82, {opt.get("self", SELF)}'); a(f's_cbranch_scc1 {lk}')
            check_flags(a, opt, 'K')
            a(f'{lk}:')
            load_frags6(a, VKX, KF_OFF, w - 2)
        elif w == 0:
            check_flags(a, opt, 'K', ls, (VTMP + 14, 2) if opt.get('async', 1) else None)
            a(f's_lshl_b32 s45, s82, 5'); a(f's_add_u32 s45, s45, {SH}'); a('s_mul_i32 s45, s45, 12288'); a(f's_add_u32 s45, s45, {KF_OFF}')
        elif not opt.get('notouch'):
            check_flags(a, opt, 'Y16', ls, (V11, 1 if opt.get('w1p', 21) < opt.get('pubg', 25) else 0) if opt.get('async', 1) else None)
            a(f's_mul_i32 s45, s82, {40*40960}'); a('s_add_u32 s45, s45, s50')
        a(f'{ls}:')
        if w == 1:
            a(f's_add_u32 s48, s45, {16*40960}'); a(f's_add_u32 s49, s45, {32*40960}'); a(f's_bitcmp1_b32 {SH}, 3'); a(f's_cselect_b32 s49, {OOB}, s49')
    a(f's_mov_b32 {SSTEP}, 0'); a(f's_mov_b32 s52, {f2u(SC):#x}'); a('s_mov_b32 s53, s52'); a(f's_mov_b32 s79, {f2u(opt.get("safe", 60.0)):#x}')
    if w != 1: a(f's_mul_i32 s81, {SH}, 384'); a(f's_add_u32 s81, s81, {PRGX_OFF + 96*128}')
    if w >= 2: a('s_mov_b32 s82, 0'); prefetch()
    if w == 0:
        a(f's_mov_b32 s45, {OOB}'); a(f'v_lshlrev_b32 v{V12}, 7, v0'); a(f'v_add_u32 v{VXS}, 8192, v{V12}'); a(f'v_min_u32 v{VXS}, 12160, v{VXS}')
        a(f'v_and_b32 v{VT2}, 15, v0'); a(f'v_min_u32 v{VT2}, 2, v{VT2}'); a(f'v_lshlrev_b32 v{VT2}, 7, v{VT2}')
    if w == 1:
        a(f'v_lshlrev_b32 v{V9}, 7, v0'); a(f'v_and_b32 v{V10}, 15, v0'); a(f'v_lshlrev_b32 v{V10}, 7, v{V10}')
        a(f'v_cmp_eq_u32 vcc, 0, v0'); a(f'v_mov_b32 v{VT2}, 0x40000000'); a(f'v_cndmask_b32 v{VT2}, v{VT2}, 0, vcc')
        a(f's_lshl_b32 s81, {SX}, 11'); a(f's_bfe_u32 s67, {SH}, 0x20002'); a(f's_mul_i32 s67, s67, {40*128}'); a('s_add_u32 s81, s81, s67'); a(f's_add_u32 s81, s81, {PRGY_OFF}')
        a(f's_and_b32 s50, {SH}, 15'); a('s_mul_i32 s50, s50, 40960'); a(f's_lshl_b32 s67, {SX}, 14'); a('s_add_u32 s50, s50, s67'); a(f's_add_u32 s50, s50, {VOF_OFF}')
        a(f's_lshl_b32 s46, {SH}, 7'); a(f's_add_u32 s46, s46, {MPRG_OFF}'); a(f's_lshl_b32 s47, {SH}, 11'); a(f's_add_u32 s47, s47, {XN_OFF + 64*40960}')
        a(f's_cmp_ge_u32 {SH}, 10'); a(f's_cselect_b32 s46, {OOB}, s46'); a(f's_cselect_b32 s47, {OOB}, s47')
        for r in (45, 48, 49): a(f's_mov_b32 s{r}, {OOB}')
    top()
    for kb in OWN[w]: a(a_read(kb, AP[kb])[1])
    a('s_waitcnt lgkmcnt(0)')
    a(f's_branch {lent}')
    a(f'{ltop}:')
    lg.reset()
    a('s_barrier')
    a(f's_add_u32 s82, {SSTEP}, {[1, opt.get("tahead", 2) - 1, 0, 0][w]}'); prefetch()
    top()
    gather_setup(a)
    qs = opt.get('qsleep', 8) - (opt.get('qsk', 2) if w >= 2 else 0)
    if qs > 0: a(f's_sleep {qs}')
    if opt.get('qdet', 0): a(f'v_and_b32 v{VZ}, {(8 if NCH[w] == 2 else 16) - 1}, v0'); a(f'v_min_u32 v{VZ}, {4*NCH[w]-1}, v{VZ}'); a(f'v_lshlrev_b32 v{VZ}, 8, v{VZ}')
    else: a(f'v_mov_b32 v{VZ}, 0')
    a('s_waitcnt lgkmcnt(0)')
    if opt.get('mg', 1): ool = gather_m(a, NCH[w], VTMP, VQF, VTMP + 12, opt, (0, 6, 7), VZ if opt.get('qd', 1) else None, opt.get('rdep', 1), opt.get('rgap', 4))
    else: ool = gather(a, NCH[w], VTMP, {k: v for k, v in opt.items() if k != 'stamps'} if opt.get('diag') else opt, (0, 6, 7), opt.get('qrs', 0), VQF if opt.get('qj', 1) else None, VZ if opt.get('qj', 1) else None)
    a(f'{lent}:')
    lg.reset(); lg.issue('GW')
    left = [x_ for g_ in sorted(sd.side) if g_ >= len(items) for x_ in sd.side[g_]]
    merge(a, lg, items, sd.side)
    for x_ in left: merge(a, lg, [], {-1: [x_]})
    if opt.get('dq1'): stamp(a, dict(stamps=1, cyc=1), 2)
    stamp(a, opt, 2)
    EA, EB = VB, VB + 4
    U, LM, F0, F1, LS = VB + 8, VB + 9, VB + 10, VB + 11, VB + 12
    redl = [f'v_add_f32_dpp v{LS}, v{LS}, v{LS} {DPP8}', f'v_mov_b32 v{T}, v{LS}', f'v_permlane16_swap_b32 v{LS}, v{T}', f'v_add_f32 v{LS}, v{LS}, v{T}',
            f'v_mov_b32 v{T}, v{LS}', f'v_permlane32_swap_b32 v{LS}, v{T}', f'v_add_f32 v{LS}, v{LS}, v{T}', f'v_mul_f32 v{LS}, s78, v{LS}']
    lg.all(); a('s_barrier')
    if opt.get('diag'): stamp(a, opt, 6)
    ool3 = None
    if w == 0:
        lslow, lback = a.label('Lsm'), a.label('Lsb')
        for r in dense_reads(VKX, 0, 'K', range(4, 6)): a(r[1]); lg.issue(r[2])
        a(f'ds_read_b128 v[{EA}:{EA+3}], v{V11}'); lg.issue('E'); a(f'ds_read_b128 v[{EB}:{EB+3}], v{V11} offset:1024'); lg.issue('E')
        for kk in range(4, 6):
            lg.wait(f'K{kk}'); a(mf(SM, VKX + 4*kk, VQF + 4*kk, False))
        lg.wait('E')
        for s_ in [f'v_add_f32 v{LS}, v{EA+3}, v{EB+3}', f'v_max_f32 v{U}, |v{EA+2}|, |v{EB+2}|', f'v_mul_f32 v{U}, 0x71800000, v{U}', redl[0], redl[1]]: a(s_)
        stamp(a, opt, 3)
        T2, PO = VB + 13, VB + 16
        a(f'v_cndmask_b32 v{SM}, v{SM}, v{SM+2}, {SMASK8}'); a(f'v_cndmask_b32 v{SM+1}, v{SM+1}, v{SM+3}, {SMASK8}')
        if not QS: a(f'v_mul_f32 v{SM}, s52, v{SM}'); a(f'v_mul_f32 v{SM+1}, s52, v{SM+1}')
        a(f'v_exp_f32 v{SM+2}, v{SM}'); a(f'v_exp_f32 v{SM+3}, v{SM+1}')
        a(redl[2]); a(f'v_max3_f32 v{U}, |v{SM}|, |v{SM+1}|, v{U}'); a(redl[3])
        a(f'v_add_f32 v{LM}, v{SM+2}, v{SM+3}')
        a(redl[4])
        a(f'v_cmp_lt_f32 vcc, s79, v{U}')
        def fin(first):
            a(f'v_add_f32_dpp v{LM}, v{LM}, v{LM} {DPP8}')
            if first: a(redl[5])
            a(f'v_mov_b32 v{T2}, v{LM}')
            if first: a(redl[6]); a(redl[7])
            a(f'v_permlane16_swap_b32 v{LM}, v{T2}'); a(f'v_add_f32 v{LM}, v{LM}, v{T2}')
            a(f'v_fma_f32 v{LM}, v{LM}, s78, v{LS}')
            a(f'v_rcp_f32 v{LM}, v{LM}')
            a(f'v_pk_mul_f32 v[{PO}:{PO+1}], v[{EA}:{EA+1}], v[{LM-1}:{LM}] op_sel:[0,1]'); a(f'v_pk_mul_f32 v[{PO+2}:{PO+3}], v[{EB}:{EB+1}], v[{LM-1}:{LM}] op_sel:[0,1]')
            a(f'v_cvt_pk_bf16_f32 v{PO}, v{PO}, v{PO+1}'); a(f'v_cvt_pk_bf16_f32 v{PO+1}, v{PO+2}, v{PO+3}')
        fin(True)
        a(f's_cbranch_vccnz {lslow}')
        a(f'{lback}:')
        a(f'buffer_store_dwordx2 v[{PO}:{PO+1}], v{V9}, {S_WS}, s76 offen {sc}')
        a(f'v_pk_mul_f32 v[{SM+2}:{SM+3}], v[{SM+2}:{SM+3}], v[{LM-1}:{LM}] op_sel:[0,1]')
        a(f'v_cvt_pk_bf16_f32 v{SM}, v{SM+2}, v{SM+3}')
        a(f'buffer_store_dword v{SM}, v{V10}, {S_WS}, s77 offen {sc}')
        stamp(a, opt, 4)
        if opt.get('diagp'): a('s_waitcnt vmcnt(0)')
        lkm, lkb = a.label('Lkm'), a.label('Lkb')
        a(f's_cmp_ge_u32 {SSTEP}, {4*NMB}'); a(f's_cbranch_scc1 {lkm}')
        a(f'{lkb}:')
        def ool3():
            a(f'{lkm}:')
            a(f's_mul_i32 s72, {SH}, 12288'); a(f's_bfe_u32 s67, {SSTEP}, 0x10001'); a('s_mul_i32 s67, s67, 6144'); a('s_add_u32 s72, s72, s67')
            a(f's_add_u32 s72, s72, {KF_OFF + (64 + NMB)*32*12288}'); a('s_add_u32 s73, s72, 4096')
            a(f's_bitcmp1_b32 {SSTEP}, 0'); a('s_cselect_b32 s74, 8, 0'); a('s_lshl_b32 s74, 0x00ff00ff, s74'); a('s_mov_b32 exec_lo, s74'); a('s_mov_b32 exec_hi, s74')
            for kk in range(6): a(f'buffer_store_dwordx4 v[{VKX+4*kk}:{VKX+4*kk+3}], v{VL16}, {S_WS}, s{72 + (kk >> 2)} offen offset:{(kk & 3)*1024} sc1')
            a('s_mov_b64 exec, -1')
            cprog(a)
            a(f's_branch {lkb}')
            a(f'{lslow}:')
            a(f'v_max_f32 v{U}, v{SM}, v{SM+1}'); a(f'v_max_f32_dpp v{U}, v{U}, v{U} {DPP8}')
            for s_ in allred('v_max_f32', U, T, (16,)): a(s_)
            a(f'v_max3_f32 v{U}, v{U}, v{EA+2}, v{EB+2}')
            a(f'v_sub_f32 v{SM}, v{SM}, v{U}'); a(f'v_sub_f32 v{SM+1}, v{SM+1}, v{U}'); a(f'v_sub_f32 v{F0}, v{EA+2}, v{U}'); a(f'v_sub_f32 v{F1}, v{EB+2}, v{U}')
            a(f'v_exp_f32 v{SM+2}, v{SM}'); a(f'v_exp_f32 v{SM+3}, v{SM+1}'); a(f'v_exp_f32 v{F0}, v{F0}'); a(f'v_exp_f32 v{F1}, v{F1}')
            a(f'v_mul_f32 v{LS}, v{EA+3}, v{F0}'); a(f'v_fmac_f32 v{LS}, v{EB+3}, v{F1}')
            for s_ in redl: a(s_)
            for i in range(2): a(f'v_mul_f32 v{EA+i}, v{EA+i}, v{F0}'); a(f'v_mul_f32 v{EB+i}, v{EB+i}, v{F1}')
            a(f'v_add_f32 v{LM}, v{SM+2}, v{SM+3}')
            fin(False)
            a(f's_branch {lback}')
    if opt.get('dq1'): opt = dict(opt, stamps=1)
    stamp(a, opt, 5)
    stamp_flush(a, opt, 8)
    a(f's_add_u32 {SSTEP}, {SSTEP}, 1'); a(f's_cmp_lt_u32 {SSTEP}, 64'); a(f's_cbranch_scc1 {ltop}')
    a('s_waitcnt vmcnt(0)'); a('s_endpgm')
    ool()
    if ool3: ool3()
    if ool4: ool4()

def vo_setup(a, opt):
    common_addr(a)
    T = VTMP
    lanefn(a, VXW, lambda l: LDS_EX + tile_pat(l), T, 256)
    a(f'v_and_b32 v{T}, 1, v0'); a(f'v_cmp_ne_u32 vcc, 0, v{T}'); a(f'v_mov_b32 v{T}, 0x05040100'); a(f'v_mov_b32 v{T+1}, 0x03020706')
    a(f'v_cndmask_b32 v{VXS}, v{T}, v{T+1}, vcc')
    lanefn(a, V9, lambda l: ((l >> 4) & 1)*1024 + (l & 15)*16 + (l >> 5)*8, T, 256)
    lanefn(a, V10, lambda l: (l >> 4)*10240 + (l & 15)*16, T)
    lanefn(a, V11, lambda l: (l >> 4)*1024 + (l & 15)*16, T, 256)
    lanefn(a, V12, tile_pat, T)
    a(f's_and_b32 {SDT}, {SH}, 15'); a(f's_lshl_b32 s67, {SWV}, 4'); a(f's_add_u32 {SDT}, {SDT}, s67')
    a(f's_lshl_b32 s81, {SX}, 11'); a(f's_bfe_u32 s67, {SDT}, 0x20002'); a(f's_mul_i32 s67, s67, {40*128}'); a('s_add_u32 s81, s81, s67'); a(f's_add_u32 s81, s81, {PRGY_OFF}')
    a(f's_mul_i32 s44, {SH}, 10240'); a(f's_add_u32 s44, s44, {VOMR_OFF}'); a('s_add_u32 s45, s44, 4096'); a('s_add_u32 s46, s44, 8192')
    a(f's_mul_i32 s72, {SX}, {16*10240}'); a(f's_lshl_b32 s68, {SDT}, 8'); a('s_add_u32 s72, s72, s68'); a(f's_add_u32 s72, s72, {VOMR_OFF}')
    a('s_add_u32 s73, s72, 40960'); a('s_add_u32 s74, s73, 40960'); a('s_add_u32 s75, s74, 40960')
    a(f's_mul_i32 s49, {SX}, 12288'); a(f's_add_u32 s49, s49, {PA_OFF}'); a(f's_add_u32 s76, s49, {SCHK}')
    a(f's_mul_i32 s47, {SDT}, 40960'); a(f's_lshl_b32 s67, {SX}, 14'); a('s_add_u32 s47, s47, s67'); a(f's_add_u32 s47, s47, {VOF_OFF}')

def vom_store1(src, k, base, sc):
    if k < 2: return f'buffer_store_dwordx4 v[{src}:{src+3}], v{V11}, {S_WS}, {base[k]} offen {sc}'
    return f'buffer_store_dwordx2 v[{src}:{src+1}], v{V9}, {S_WS}, {base[2]} offen {sc}'
def memp_off(a, dst, add, dt=SDT):
    a(f's_add_u32 s67, {SSTEP}, {add}'); a('s_and_b32 s67, s67, 3'); a('s_lshl_b32 s67, s67, 1'); a(f's_add_u32 s67, s67, {SX}')
    a(f's_mul_i32 s{dst}, s67, 10240'); a(f's_lshl_b32 s{dst+1}, s67, 15'); a(f's_lshl_b32 s67, {dt}, 8')
    a(f's_add_u32 s{dst}, s{dst}, s67'); a(f's_add_u32 s{dst+1}, s{dst+1}, s67'); a(f's_add_u32 s{dst}, s{dst}, {MEML_OFF}')
    a(f's_add_u32 s{dst+1}, s{dst+1}, {SMR}'); a(f's_cmp_ge_u32 {dt}, 24'); a('s_cselect_b32 s67, 10240, 0'); a(f's_add_u32 s{dst+1}, s{dst+1}, s67')

def vo_init_clear(a):
    for r in range(4): a(f'v_mov_b32 v{VA+16+r}, -1')
    for k in range(3): a(vom_store1(VA + 16, k, ('s44', 's45', 's46'), 'sc1'))
    for sl in range(4):
        memp_off(a, 32, sl)
        a(f's_cmp_ge_u32 {SDT}, 40'); a(f's_cselect_b32 s32, {OOB}, s32'); a(f's_cselect_b32 s33, {OOB}, s33')
        a(f'buffer_store_dword v{VA+16}, v{V12}, {S_WS}, s32 offen sc1')
        a(f'buffer_store_dword v{VA+16}, v{V12}, {S_WS}, s33 offen sc1')
        a('s_add_u32 s33, s33, 8192')
        a(f'buffer_store_dword v{VA+16}, v{V12}, {S_WS}, s33 offen sc1')

VORD = [[0, 1, 2, 3, 4, 5, 6, 7, 9, 8], [3, 4, 5, 0, 1, 2, 6, 7, 9, 8], [6, 7, 2, 0, 1, 5, 3, 4, 9, 8], [8, 9, 0, 1, 3, 2, 4, 6, 5, 7]]
OORD = [0, 1, 2, 3, 4, 5, 6, 7, 8, 9]
OORD0 = [0, 2, 1, 3, 4, 6, 5, 7, 8, 9]
def pairup(acc, tmp):
    return [f'v_mov_b32_dpp v{tmp}, v{acc} quad_perm:[1,0,3,2] row_mask:0xf bank_mask:0xf', f'v_perm_b32 v{acc}, v{tmp}, v{acc}, v{VXS}']

def vo_loop(a, w, duty, sc, opt):
    n = NCH[w]; VO = VORD[w]
    lg = Trk(a, 'lgkmcnt', 15)
    ltop, lent = a.label('Lvo'), a.label('Lvoent')
    VV = VACC1; PK = VACC0
    EXO = LDS_EX - LDS_MEM
    AP = apos(w, VO)
    OA = {t: (VOX + 44 + 4*i if i < 5 else AP[VO[i - 5]]) for i, t in enumerate(OORD)}
    seq = [(kb, t) for kb in VO[:3] for t in range(3)] + [(kb, t) for t in range(3) for kb in VO[3:]]
    first = [(xfrag(kb, t, 0)[0], VACC0 + 4*t, AP[kb], xfrag(kb, t, 0)[1], [f'A{kb}']) for kb, t in seq]
    oseq = [(t, 0) for t in OORD0] + [(t, 1) for t in OORD[:3]]
    for i in range(10): oseq += [(OORD[i], 2)] + ([(OORD[i+3], 1)] if i + 3 < 10 else [])
    if opt.get('oseq', 1):
        oseq = [(0, 0), (2, 0), (1, 0), (3, 0), (4, 0), (6, 0), (0, 1), (2, 1), (1, 1), (3, 1), (5, 0), (7, 0), (0, 2), (1, 2), (2, 2), (3, 2),
                (4, 1), (5, 1), (4, 2), (6, 1), (5, 2), (7, 1), (6, 2), (8, 0), (7, 2), (9, 0), (8, 1), (9, 1), (8, 2), (9, 2)]
    second = [(yfrag(tile, kb)[0], OA[tile], VV + 4*kb, yfrag(tile, kb)[1], [f'V{kb}']) for tile, kb in oseq]
    fin = {t: 30 + oseq.index((t, 2)) for t in OORD}
    items, ldsq, k2 = build_stream(first, second)
    sd = Sides()
    stream_head(sd, w, VO, AP, opt, None)
    sd.put(opt.get('gb1', 3), lambda: stamp(a, opt, 1))
    vox = lambda hh: f'buffer_load_dwordx4 v[{VOX+4*hh}:{VOX+4*hh+3}], v{VL16}, {S_WS}, s83 offen offset:{(hh & 3)*1024} {STREAM[0]}'
    vsp = opt.get('vsp', 3)
    NIN = opt.get('nin', 16)
    NE = opt.get('ne', 0)
    if duty:
        for hh in range(NE, min(NIN, 11)):
            g = opt.get('vs0', 1) + (hh - NE) * vsp
            sd.put(g, vox(hh))
            if hh & 3 == 3: sd.put(g + 1, 's_add_u32 s83, s83, 4096')
    if w == 3:
        for i in range(6): sd.put(opt.get('cl0', 1) + 4*i, f'buffer_store_dword v{VT2}, v{V12}, {S_WS}, s{52 + i} offen {"sc1" if i & 1 else sc}')
    zer = [f'v_mov_b64 v[{AP[VO[r >> 1]] + 2*(r & 1)}:{AP[VO[r >> 1]] + 2*(r & 1) + 1}], 0' for r in range(10)]
    for r in range(6): sd.valu(3*(r >> 1) + 3 + (r & 1), [zer[r]])
    wr = lambda acc, t: ('lds', f'ds_write_b32 v{VXW}, v{acc} offset:{t*1024}', f'VW{t}')
    vpost = lambda t: post(VACC0 + 4*t, VACC0 + 4*t) + [None] + pairup(VACC0 + 4*t, VACC0 + 4*t + 1) + [wr(VACC0 + 4*t, t)]
    vrd = lambda kb: ('lds', f'ds_read_b128 v[{VV+4*kb}:{VV+4*kb+3}], v{VAR} offset:{EXO + kb*1024}', f'V{kb}')
    for t, g0, per in ((0, 17, 1), (1, 24, 1), (2, 31, 2)):
        g = sd.valu(g0, vpost(t), per) + 2
        sd.put(g, ('wait', f'VW{t}')); sd.put(g, 's_barrier'); sd.lds(g, vrd(t), True)
    sd.valu(27, zer[6:])
    if opt.get('diag'): sd.put(g, lambda: stamp(a, opt, 0)); sd.put(29, lambda: stamp(a, opt, 5)); sd.put(42, lambda: stamp(a, opt, 7))
    base = ('s44', 's45', 's46')
    tail = []
    ops = []
    for q in range(3):
        b = PK + 4*q; ts_ = list(range(4*q, min(4*q + 4, 10)))
        for t in ts_:
            p_ = post(OA[t], PK + t, None, t >= 8)
            ops += [(f'a{t}{j}', x_, [], fin[t] + 2) for j, x_ in enumerate(p_[:-1])] + [(f'c{t}', p_[-1], [f'a{t}{j}' for j in range(len(p_) - 1)], 0)]
            if duty and 11 + t < NIN:
                if t == 1: ops.append(('s', 's_add_u32 s83, s83, 4096', ['x0'], 0))
                ops.append((f'x{t}', vox(11 + t), [f'c{t}'] + ([f'x{t-1}'] if t else []) + (['s'] if t == 1 else []), 0))
        ops.append((f'p{q}', f'v_permlane16_swap_b32 v{b}, v{b+1}', [f'c{ts_[0]}', f'c{ts_[1]}'], 0))
        last = [f'p{q}']
        if q < 2:
            ops += [(f'r{q}', f'v_permlane16_swap_b32 v{b+2}, v{b+3}', [f'c{ts_[2]}', f'c{ts_[3]}'], 0),
                    (f'u{q}', f'v_permlane32_swap_b32 v{b}, v{b+2}', [f'p{q}', f'r{q}'], 0), (f'w{q}', f'v_permlane32_swap_b32 v{b+1}, v{b+3}', [f'p{q}', f'r{q}'], 0)]
            last = [f'u{q}', f'w{q}']
        ops += [(f'b{q}', f'v_bfi_b32 v{b}, 1, {SSTEP}, v{b}', last[:1], 0), (f'st{q}', vom_store1(b, q, base, sc), last + [f'b{q}'], 0)]
    at = {}
    g = min(o[3] for o in ops if o[3])
    mem_at = set()
    while len(at) < len(ops):
        for nm, tx, dep, e in ops:
            if nm in at or g < e: continue
            sal = tx.startswith('s_')
            if not all(d in at and (at[d] < g or (at[d] == g and (sal or d == 's'))) for d in dep): continue
            if tx.startswith('v_'):
                if g < len(items) and sd.vbusy.get(g, 0) >= 2: continue
                sd.vbusy[g] = sd.vbusy.get(g, 0) + 1
            elif not sal:
                if g < len(items) and g in mem_at: continue
                mem_at.add(g)
            at[nm] = g; sd.put(g, tx)
        g += 1
    ex = []
    for g in sorted(g for g in sd.side if g >= len(items)): ex += sd.side.pop(g)
    tail = ex + tail
    sd.refills(ldsq)

    def top():
        preload_b(a, lg, ldsq)
        a(f's_bitcmp1_b32 {SSTEP}, 0'); a('s_cselect_b32 s50, 0x80008000, 0')
        if w == 3:
            a(f'v_mov_b32 v{VT2}, -1'); a(f's_and_b32 s35, {SH}, 15')
            for i in range(3):
                memp_off(a, 52 + 2*i, 2, 's35')
                if i < 2: a('s_add_u32 s35, s35, 16')
            a('s_cmp_ge_u32 s35, 40'); a(f's_cselect_b32 s56, {OOB}, s56'); a(f's_cselect_b32 s57, {OOB}, s57')
        if duty:
            memp_off(a, 77, 1)
            if opt.get('nopf'): a('s_mov_b32 s82, 0')
            else: a(f's_mov_b32 s82, {SSTEP}')
            a(f's_mul_i32 s83, s82, {40*40960}'); a('s_add_u32 s83, s83, s47'); a(f's_cmp_eq_u32 {SSTEP}, 63'); a(f's_cselect_b32 s83, {OOB}, s83')
        for r in range(0, 12, 2): a(f'v_mov_b64 v[{VACC0+r}:{VACC0+r+1}], 0')
        for r in range(0, 20, 2): a(f'v_mov_b64 v[{VOX+44+r}:{VOX+45+r}], 0')
        if duty:
            lk = a.label('Lk')
            a(f's_cmp_ge_u32 {SSTEP}, {64 if opt.get("notouch") else opt.get("self", SELF)}'); a(f's_cbranch_scc1 {lk}')
            check_flags(a, opt, 'Y16')
            a(f'{lk}:')
            for hh in range(NE):
                a(vox(hh))
                if hh & 3 == 3: a('s_add_u32 s83, s83, 4096')
    a(f's_mov_b32 {SSTEP}, 0')
    top()
    for kb in OWN[w]: a(a_read(kb, AP[kb])[1])
    a('s_waitcnt lgkmcnt(0)')
    a(f's_branch {lent}')
    a(f'{ltop}:')
    lg.reset()
    a('s_barrier')
    top()
    if opt.get('vsleep', 0): a(f's_sleep {opt.get("vsleep", 0)}')
    a('s_waitcnt lgkmcnt(0)')
    if opt.get('mg', 1): ool = gather_m(a, n, VACC1, VA + 24, VA + 36, {} if opt.get('diagv') else opt, (0, 5, 7), None, 1, 0)
    else: ool = gather(a, n, VACC1, {k: v for k, v in opt.items() if k != 'stamps'} if opt.get('diag') else opt, (0, 0 if opt.get('diag2') else 5, 7), opt.get('vrs', 0), VA + 24 if opt.get('vj', 1) else None)
    a(f'{lent}:')
    lg.reset(); lg.issue('GW')
    merge(a, lg, items, sd.side)
    for s_ in tail:
        a(s_)
    stamp(a, opt, 3)
    lcp, lcb, lcf, lce = [a.label('Lc') for _ in range(4)]
    a(f's_cmp_ge_u32 {SSTEP}, {4*NMB}'); a(f's_cbranch_scc1 {lcp}')
    a(f'{lcb}:')
    def ool5():
        a(f'{lcp}:')
        a(f's_lshl_b32 s52, {SSTEP}, 5'); a(f's_add_u32 s52, s52, {SH}'); a('s_mul_i32 s52, s52, 10240'); a(f's_add_u32 s52, s52, {VOM_OFF}')
        a('s_add_u32 s53, s52, 4096'); a('s_add_u32 s54, s52, 8192')
        for k in range(3): a(vom_store1(PK + 4*k, k, ('s52', 's53', 's54'), 'sc1'))
        a(f's_cmp_lt_u32 {SSTEP}, 63'); a(f's_cbranch_scc1 {lcb}')
        a('s_waitcnt vmcnt(0)'); a('s_barrier')
        if w == 3: cprog(a)
        a('s_waitcnt vmcnt(0)'); a('s_endpgm')
    ACC = VB + 28
    R = VB + 16
    def ldp():
        for c in range(n): a(f'buffer_load_dwordx4 v[{R+4*c}:{R+4*c+3}], v{VL16}, {S_WS}, s76 offen offset:{c*1024} sc1')
    lt, ltd, lp, ld = [a.label('Lp') for _ in range(4)]
    PT = VA
    def pwrite(c): a(f'ds_write_b128 v{VGW}, v[{R+4*c}:{R+4*c+3}] offset:{c*1024}')
    def pcheck_m(first):
        for c in range(n):
            b = R + 4*c
            if first: a(f's_waitcnt vmcnt({n - 1 - c})'); pwrite(c)
            a(f'v_bitop3_b32 v{PT+c}, v{b}, v{b+2}, s50 bitop3:0x7e')
            if w == 3 or not first: a(f'v_bitop3_b32 v{PT+3}, v{b+1}, v{b+3}, s50 bitop3:0x7e'); a(f'v_or_b32 v{PT+c}, v{PT+c}, v{PT+3}')
            a(f'v_cmp_gt_i32 {ML[c]}, 0, v{PT+c}')
        mask_or(a, ML[:n])
    MV = MR + ['s[30:31]']
    def ldv(ms=None):
        for q in range(4):
            if ms: a(f's_mov_b64 exec, {ms[q]}')
            a(f'buffer_load_dwordx4 v[{VB+4*q}:{VB+4*q+3}], v{V10}, {S_WS}, s{72+q} offen sc1')
        if ms: a('s_mov_b64 exec, -1')
    def vcheck():
        for q in range(4):
            if w < 2: a(f'v_bitop3_b32 v{PT+4+q}, v{VB+4*q}, {SSTEP}, 1 bitop3:0x28')
            else: a(f'v_bitop3_b32 v{PT+4+q}, v{VB+4*q}, v{VB+4*q+2}, {SSTEP} bitop3:0x7e'); a(f'v_and_b32 v{PT+4+q}, 1, v{PT+4+q}')
        for q in range(4): a(f'v_cmp_ne_u32 {MV[q]}, 0, v{PT+4+q}')
        mask_or(a, MV)
    if duty:
        for hh in range(NIN, 16):
            a(vox(hh))
            if hh & 3 == 3 and hh < 15: a('s_add_u32 s83, s83, 4096')
    if opt.get('diagv'): a('s_waitcnt vmcnt(0)'); stamp(a, opt, 5)
    gather_setup(a, 1)
    ts = opt.get('tsleep', 3) if duty else opt.get('nsleep', 7)
    if isinstance(ts, list): ts = ts[w]
    if ts: a(f's_sleep {ts}')
    SEP = opt.get('sep', 1)
    if duty and SEP:
        lv2 = a.label('Lp')
        if opt.get('diagv'): stamp(a, opt, 0)
        ldv()
        for r in range(4): a(f'v_mov_b32 v{ACC+r}, 0')
        a('s_waitcnt vmcnt(0)')
        if opt.get('diagv'): stamp(a, opt, 7)
        vcheck()
        a(f's_cbranch_scc1 {lv2}')
        stamp(a, opt, 2)
        if opt.get('psl'): a(f's_sleep {opt["psl"]}')
        ldp()
        a(f'{lv2}x:')
    elif duty:
        ldv()
        if opt.get('pat'): a(f's_sleep {opt["pat"] - ts - 1}')
        ldp()
        for r in range(4): a(f'v_mov_b32 v{ACC+r}, 0')
        a(f's_waitcnt vmcnt({n})'); vcheck()
        if not opt.get('novc'): a(f's_cbranch_scc1 {lt}')
        stamp(a, opt, 2)
    else: ldp()
    pcheck_m(True)
    a(f's_cbranch_scc1 {lp}')
    a(f'{ld}:')
    stamp(a, opt, 4)
    def ool2():
        PD = opt.get('pdep', 1) - 1; gap = opt.get('pgap', 2)
        ltb, lpb, lwr = [a.label('Lp') for _ in range(3)]
        if duty and SEP:
            a(f'{lv2}:')
            ldv(MV); ldp()
            a(f's_waitcnt vmcnt({n})'); vcheck()
            a(f's_cbranch_scc1 {lt}')
            stamp(a, opt, 2)
            a(f's_branch {lv2}x')
        if duty:
            a(f'{lt}:')
            a('s_waitcnt vmcnt(0)'); pcheck_m(False)
            for _ in range(PD): ldv(MV); ld_masked(a, n, R, 's76', ML); a(f's_sleep {gap}')
            a(f'{ltb}:')
            ldv(MV); ld_masked(a, n, R, 's76', ML)
            a(f's_waitcnt vmcnt({(4 + n)*PD})'); pcheck_m(False); a('s_cselect_b32 s51, 1, 0'); vcheck()
            a(f's_cbranch_scc0 {ltd}')
            budget_loop(a, ltb, ltd)
            a(f'{ltd}:')
            stamp(a, opt, 2)
            a('s_cmp_eq_u32 s51, 0'); a(f's_cbranch_scc1 {lwr}')
            if PD: a(f's_branch {lpb}')
        a(f'{lp}:')
        for _ in range(PD): ld_masked(a, n, R, 's76', ML); a(f's_sleep {gap}')
        a(f'{lpb}:')
        ld_masked(a, n, R, 's76', ML); a(f's_waitcnt vmcnt({n*PD})'); pcheck_m(False)
        a(f's_cbranch_scc0 {lwr}')
        budget_loop(a, lpb, lwr)
        a(f'{lwr}:')
        for c in range(n): pwrite(c)
        a(f's_branch {ld}')
    if not duty: a('s_waitcnt lgkmcnt(0)'); a('s_barrier'); a('s_waitcnt vmcnt(0)')
    if duty:
        bop = lambda pp: f'v[{VOX+8*pp}:{VOX+8*pp+7}]' if pp < 8 else f'v[{VB+8*(pp-8)}:{VB+8*(pp-8)+7}]'
        rest = [c for c in range(10) if c not in OWN[w]]
        a(smf(ACC, R, bop(OWN[w][0])))
        a('s_waitcnt lgkmcnt(0)'); a('s_barrier')
        for c in rest[:3]: a(f'ds_read_b128 v[{VA+4*c}:{VA+4*c+3}], v{VAR} offset:{c*1024}')
        k = 3
        for j in range(1, n):
            a(smf(ACC, R + 4*j, bop(OWN[w][j])))
            for c in rest[k:k+2]: a(f'ds_read_b128 v[{VA+4*c}:{VA+4*c+3}], v{VAR} offset:{c*1024}')
            k += 2
        for c in rest[k:]: a(f'ds_read_b128 v[{VA+4*c}:{VA+4*c+3}], v{VAR} offset:{c*1024}')
        for j, pp in enumerate(rest):
            a(f's_waitcnt lgkmcnt({len(rest)-1-j})' if pp != 8 else 's_waitcnt vmcnt(0) lgkmcnt(1)')
            a(smf(ACC, VA + 4*pp, bop(pp)))
        for s_ in post(ACC, ACC, None, True): a(s_)
        a(f'v_xor_b32 v{ACC}, s50, v{ACC}')
        for s_ in pairup(ACC, ACC + 1): a(s_)
        for so, fl in ([('s78', 'sc1'), ('s77', sc)] if opt.get('rfirst') else [('s77', sc), ('s78', 'sc1')]):
            a(f'buffer_store_dword v{ACC}, v{V12}, {S_WS}, {so} offen {fl}')
        stamp(a, opt, 6)
        if opt.get('diagp'): a('s_waitcnt vmcnt(1)'); stamp(a, opt, 2); a('s_waitcnt vmcnt(0)'); stamp(a, opt, 3)
    elif w == 3:
        lnc = a.label('Lnx')
        a(f's_cmp_lt_u32 {SSTEP}, {4*NMB}'); a(f's_cbranch_scc1 {lnc}')
        cprog(a)
        a(f'{lnc}:')
    stamp_flush(a, opt, 8)
    a(f's_add_u32 {SSTEP}, {SSTEP}, 1'); a(f's_branch {ltop}')
    ool(); ool2(); ool5()

def chain_main(a, opt):
    lvo = a.label('Lrole_vo')
    tstamp(a, opt, 0, (14, 15))
    STREAM[0] = opt.get('stream', 'sc1')
    a(f's_lshr_b32 {SX}, {SSLOT}, 5'); a(f's_and_b32 s67, {SSLOT}, 15'); a(f's_lshl_b32 {SH}, {SX}, 4'); a(f's_add_u32 {SH}, {SH}, s67')
    a(f's_mov_b32 {STMO}, {opt.get("tmo", 1 << 21)}'); a(f's_mov_b32 {SSTEP}, 0')
    srd(a, S_AUX, 's[38:39]', 8*640*2)
    a(f's_add_u32 {SMR}, s60, {MEMR_OFF + 0x7ffff}'); a(f's_and_b32 {SMR}, {SMR}, 0xfff80000'); a(f's_sub_u32 {SMR}, {SMR}, s60')
    a(f's_mul_i32 s58, {SWV}, 3072'); a(f's_lshl_b32 s67, {SWV}, 11'); a('s_add_u32 s67, s67, 12288'); a(f's_cmp_ge_u32 {SWV}, 2'); a('s_cselect_b32 s58, s67, s58')
    a(f's_mov_b32 {S_ONE0}, 0x00003f80'); a(f's_mov_b32 {S_ONE1}, 0x3f800000')
    a(f's_bitcmp1_b32 {SSLOT}, 4'); a(f's_cbranch_scc1 {lvo}')
    for role in ('qk', 'vo'):
        if role == 'vo': a(f'{lvo}:')
        if role == 'qk':
            srd(a, S_WA, 's[40:41]', 640*6144*2); srd(a, S_WB, 's[42:43]', 640*6144*2); qk_setup(a, opt)
        else:
            srd(a, S_WA, 's[44:45]', 640*6144*2); srd(a, S_WB, 's[46:47]', 640*6144*2); vo_setup(a, opt)
        l1, l2, l3 = a.label('Ls'), a.label('Ls'), a.label('Ls')
        a(f's_mov_b32 {SPC}, 0')
        a(f's_cmp_lg_u32 {SWV}, 0'); a(f's_cbranch_scc1 {l2}')
        mem0_load(a)
        a(f'{l2}:')
        def after_first(n, vm):
            if n == 0:
                a(f's_cmp_lg_u32 {SWV}, 0'); a(f's_cbranch_scc1 {l3}')
                mem0_write(a)
                a(f'{l3}:')
            if n == 1: rot_load(a, 172, 173); vm.issue('rot')
            if n == 13:
                rot_check(a, 172, 173, True)
                if role == 'vo':
                    vo_init_clear(a)
                    for _ in range(15): vm.issue('init')
                a(f's_cmp_lg_u32 {SWV}, 0'); a(f's_cbranch_scc1 {l1}')
                if role == 'qk': qk_init_clear(a)
                a(f's_lshl_b32 s67, 1, {SXCC}'); a(f'v_mov_b32 v{VT0}, s67'); a(f's_lshl_b32 s67, {SX}, 2'); a(f'v_mov_b32 v{VT1}, s67')
                a('s_mov_b64 exec, 1')
                a(f'buffer_atomic_or v{VT0}, v{VT1}, {S_DBG}, 0 offen sc1')
                a('s_mov_b64 exec, -1')
                a(f'{l1}:')
            assert 32 + opt.get('ldep', 6) + 1 <= 39
            if n == 32: a(f'v_lshlrev_b32 v173, 2, v0'); a(f'buffer_load_dword v172, v173, {S_DBG}, 0 offen sc1'); vm.issue('rdy')
            if n == 14 + opt.get('ldep', 6):
                l4 = a.label('Ls')
                a(f's_cmp_lg_u32 {SWV}, 0'); a(f's_cbranch_scc1 {l4}')
                a(f'v_mov_b32 v{VT0}, 1'); a(f'v_mov_b32 v{VT1}, {DBG_READY*4}')
                a('s_mov_b64 exec, 1')
                a(f'buffer_atomic_add v{VT0}, v{VT1}, {S_DBG}, 0 offen sc1')
                a('s_mov_b64 exec, -1')
                a(f'{l4}:')
        loader(a, role, after_first, opt.get('ldep', 6))
        tstamp(a, opt, 1, (14, 15))
        lp, ld, lslow = a.label('Lr'), a.label('Lrd'), a.label('Lslow')
        lc = a.label('Lrc')
        a(f'v_lshlrev_b32 v{VT1}, 2, v0'); a(f'v_mov_b32 v{VT0}, v172')
        a(f's_branch {lc}')
        a(f'{lp}:')
        a(f'buffer_load_dword v{VT0}, v{VT1}, {S_DBG}, 0 offen sc1'); a('s_waitcnt vmcnt(0)')
        a(f'{lc}:')
        a(f'v_readlane_b32 s67, v{VT0}, {DBG_READY}')
        a(f'v_readlane_b32 s68, v{VT0}, {DBG_VOTE}'); a(f's_cmp_lt_u32 s68, {NAREA*256}'); a('s_cselect_b32 s67, 0, s67')
        if not opt.get('noflags'):
            a(f'v_readlane_b32 s68, v{VT0}, {DBG_AREA}'); a(f's_cmp_lt_u32 s68, {NAREA}'); a('s_cselect_b32 s67, 0, s67')
        a(f's_cmp_eq_u32 {STMO}, 0'); a(f's_cbranch_scc1 {ld}')
        a(f's_sub_u32 {STMO}, {STMO}, 1')
        a('s_cmp_lt_u32 s67, 64'); a(f's_cbranch_scc1 {lp}')
        a(f'{ld}:')
        a(f'v_readlane_b32 s67, v{VT0}, {DBG_VOTE}'); a('s_and_b32 s67, s67, 255'); a(f's_cmp_gt_u32 s67, {NAREA//2}'); a('s_cselect_b32 s67, 1, 0')
        a(f'v_readlane_b32 s68, v{VT0}, 0'); a('s_cmp_gt_u32 s68, 15'); a('s_cselect_b32 s68, 1, 0'); a('s_xor_b32 s67, s67, s68'); a('s_lshl_b32 s67, s67, 13')
        if 'par' in opt: a(f's_mov_b32 s67, {opt["par"]*8192}')
        a(f's_add_u32 {SMR}, {SMR}, s67')
        a(f'v_readlane_b32 s67, v{VT0}, 0'); a(f'v_readlane_b32 s68, v{VT0}, 1')
        a('s_bcnt1_i32_b32 s67, s67'); a('s_bcnt1_i32_b32 s68, s68'); a('s_max_u32 s67, s67, s68')
        if opt.get('force_slow'): a('s_mov_b32 s67, 2')
        a('s_cmp_lg_u32 s67, 1'); a(f's_cbranch_scc1 {lslow}')
        for sc in ('', 'sc1'):
            if sc: a(f'{lslow}:')
            if role == 'qk':
                labs = [a.label('Lw') for _ in range(4)]
                for w in range(1, 4): a(f's_cmp_eq_u32 {SWV}, {w}'); a(f's_cbranch_scc1 {labs[w]}')
                for w in range(4):
                    a(f'{labs[w]}:'); qk_loop(a, w, sc, opt)
            else:
                labs = [a.label('Lw') for _ in range(5)]
                a(f's_cmp_eq_u32 {SWV}, 1'); a(f's_cbranch_scc1 {labs[1]}'); a(f's_cmp_eq_u32 {SWV}, 3'); a(f's_cbranch_scc1 {labs[4]}')
                a(f's_cmp_ge_u32 {SDT}, 40'); a(f's_cbranch_scc1 {labs[3]}'); a(f's_cmp_eq_u32 {SWV}, 2'); a(f's_cbranch_scc1 {labs[2]}')
                for i, (w, duty) in enumerate([(0, True), (1, True), (2, True), (2, False), (3, False)]):
                    a(f'{labs[i]}:'); vo_loop(a, w, duty, sc, opt)
```

```python
from common import *

SC = 0.07216878364870322 * 1.4426950408889634

def wfrag(f, half=None):
    if f < 32: k, b = 'a', f * 8
    else: k, b = 'v', 176 + (f - 32) * 8
    if half is None: return f'{k}[{b}:{b+7}]'
    return k, b + 4 * half

VL16, VGW, VAR, VFR, VXW, VXS, VDR, VIDX, V9, V10, V11, V12, VT0, VT1, VT2 = range(1, 16)
VA = 16
VACC0 = 56
VACC1 = 68
VB = 80
VKX = 112
VQF = 136
VTMP = 160
VOX = 112
SSTEP, SH, SX, SDT = 's62', 's63', 's64', 's66'
SMASK8 = 's[70:71]'
SCM = [f's[{72+2*r}:{73+2*r}]' for r in range(4)]
SCHK = 's80'
S_ONE0, S_ONE1 = 's100', 's101'
NCH = [3, 3, 2, 2]
OWN = [[0, 1, 2], [3, 4, 5], [6, 7], [8, 9]]
REGKB = [0, 1, 3, 4, 6, 7, 8]; LDSKB = [2, 5, 9]
REGT = [0, 2, 3, 4, 6, 7, 8]; LDST = [1, 5, 9]
def yfrag(tile, kb):
    if tile in REGT: return 'reg', 21 + REGT.index(tile)*3 + kb
    return 'lds', 9 + LDST.index(tile)*3 + kb
def xfrag(kb, t, second):
    if kb in REGKB: return 'reg', t*7 + REGKB.index(kb) + (21 if second else 0)
    return 'lds', LDSKB.index(kb)*3 + t + (9 if second else 0)
def apos(w, order):
    ap = {kb: VA + 8*c for c, kb in enumerate(OWN[w])}
    free = [VA + 4*i for i in range(10) if VA + 4*i not in ap.values()]
    for kb in order:
        if kb not in ap: ap[kb] = free.pop(0)
    return ap
STREAM = ['sc1 nt']

def tile_pat(l):
    g, c = l >> 4, l & 15
    return (4*g + 2*(c >> 3) + (c & 1))*16 + ((c >> 1) & 3)*4
def arow(i, h): return 4*(i >> 1) + 2*h + (i & 1)

def common_addr(a):
    T = VTMP
    a(f'v_lshlrev_b32 v{VL16}, 4, v0')
    a(f's_mul_i32 s6, {SWV}, 3'); a(f's_lshl_b32 s7, {SWV}, 1'); a('s_add_u32 s7, s7, 2'); a('s_min_u32 s6, s6, s7')
    a(f's_lshl_b32 {SCHK}, s6, 10')
    a(f'v_add_u32 v{VAR}, {LDS_MEM}, v{VL16}'); a(f'v_add_u32 v{VGW}, {SCHK}, v{VAR}')
    lanefn(a, VFR, lambda l: l*16, T, 36864)
    lanefn(a, VIDX, lambda l: 0x4444 + ((l >> 1) & 1)*0xaaaa, T)
    a(f'v_and_b32 v{T}, 8, v0'); a(f'v_cmp_ne_u32 {SMASK8}, 0, v{T}')

def loader(a, role, after_first=None, dep=11):
    vm = Trk(a, 'vmcnt', 63)
    T = 160
    VD0, VD1, VR0 = T, T + 1, T + 2
    dma_voff(a, VD0, 12288, T + 8, T + 9); dma_voff(a, VD1, 1280, T + 8, T + 9)
    for aa in range(2):
        R = VR0 + 3*aa
        row = lambda l: 4*((l >> 4) & 1) + 2*aa + ((l >> 2) & 1)
        lanefn(a, T + 8, lambda l: row(l) & 6, T + 10); lanefn(a, T + 9, lambda l: (l >> 1) & 1, T + 10, 2)
        a(f'v_xor_b32 v{T+9}, v{T+9}, v{T+8}')
        lanefn(a, R, lambda l: (l >> 5)*2048 + ((l >> 3) & 1)*1024 + row(l)*128 + (l & 1)*8, T + 10)
        a(f'v_lshl_add_u32 v{R}, v{T+9}, 4, v{R}')
        a(f'v_add_u32 v{R+1}, 49152, v{R}'); a(f'v_add_u32 v{R+2}, 98304, v{R}')
    a(f's_mul_i32 s68, {SH}, 384'); a(f's_mul_i32 s67, {SWV}, {8*12288}'); a('s_add_u32 s68, s68, s67')
    a(f's_mul_i32 s69, {SH}, {192*1280}'); a(f's_mul_i32 s67, {SWV}, {8*1280}'); a('s_add_u32 s69, s69, s67')
    a(f's_lshl_b32 s7, {SWV}, 10')
    k2 = 'X' if role == 'qk' else 'Y'
    slabs = [('X', S_WA, i) for i in range(14)] + [(k2, S_WB, i) for i in range(14)] + \
            [('X', S_WA, i) for i in range(14, 20)] + [(k2, S_WB, i) for i in range(14, 20)]
    def dma(n):
        kind, sr, i = slabs[n]
        for c in range(3):
            a(f's_add_u32 m0, s7, {(n % 12)*LDS_SLAB + c*4096}')
            if kind == 'X': a(f's_add_u32 s67, s68, {(2*(REGKB + LDSKB)[i >> 1] + (i & 1))*32*12288 + c*128}')
            else: a(f's_add_u32 s67, s69, {((i&1)*96 + c*32)*1280 + (REGT + LDST)[i >> 1]*128}')
            a(f'buffer_load_dwordx4 v{VD0 if kind=="X" else VD1}, {sr}, s67 offen lds')
            vm.issue(n)
    def dest(n, c):
        kind, sr, i = slabs[n]
        second = (n >= 14) if n < 28 else (n >= 34)
        if kind == 'X': t, kb, half = c, i >> 1, i & 1; f = t * 7 + kb; lf = (kb - 7) * 3 + t
        else:
            ks = (i & 1) * 3 + c; kb, half = ks >> 1, ks & 1; tile = i >> 1
            f = tile * 3 + kb; lf = (tile - 7) * 3 + kb
        if second: f += 21; lf += 9
        return f, lf, half
    def reads(n):
        slot = n % 12
        base = VR0 + slot // 4; off0 = (slot % 4) * LDS_SLAB
        for c in range(3):
            f, lf, half = dest(n, c)
            if n < 28: k, b = wfrag(f, half)
            else: k, b = 'v', 16 + lf * 8 + half * 4
            for aa in range(2):
                a(f'ds_read_b64_tr_b16 {k}[{b+2*aa}:{b+2*aa+1}], v{base + 3*aa} offset:{off0 + c*4096}')
    for n in range(dep): dma(n)
    for n in range(40):
        vm.wait(n)
        a('s_waitcnt lgkmcnt(0)')
        a('s_barrier')
        if n + dep < 40: dma(n + dep)
        reads(n)
        after_first(n, vm)
    a('s_waitcnt lgkmcnt(0)'); a('s_barrier')
    for lf in range(18):
        for half in range(2):
            b = 16 + lf * 8 + half * 4
            a(f'ds_write_b128 v{VFR}, v[{b}:{b+3}] offset:{lf*2048 + half*1024}')
    a('s_waitcnt lgkmcnt(0)')

def mem0_load(a):
    lanefn(a, 18, lambda l: (l & 7)*1280 + (l >> 3)*16, 16)
    lanefn(a, 19, lambda l: LDS_MEM + (l >> 4)*256 + arow(l & 7, (l >> 3) & 1)*16, 16)
    for n in range(10): a(f'buffer_load_dwordx4 v[{24+4*n}:{27+4*n}], v18, {S_AUX}, 0 offen offset:{n*128}')
def mem0_write(a):
    for n in range(10): a(f'ds_write_b128 v19, v[{24+4*n}:{27+4*n}] offset:{n*1024}')

def maxchk(a, regs, first=True):
    regs = list(regs)
    if first:
        a(f'v_max3_u32 v{VT0}, v{regs[0]}, v{regs[1]}, v{regs[2]}'); regs = regs[3:]
    while regs:
        if len(regs) >= 2: a(f'v_max3_u32 v{VT0}, v{VT0}, v{regs[0]}, v{regs[1]}'); regs = regs[2:]
        else: a(f'v_max_u32 v{VT0}, v{VT0}, v{regs[0]}'); regs = []


def gather_setup(a, step_add=0):
    a(f's_add_u32 s67, {SSTEP}, {step_add}'); a('s_and_b32 s67, s67, 3'); a('s_lshl_b32 s67, s67, 1')
    a(f's_add_u32 s68, s67, 1'); a(f's_sub_u32 s68, s68, {SX}'); a(f's_add_u32 s67, s67, {SX}')
    a('s_mul_i32 s67, s67, 10240'); a('s_lshl_b32 s68, s68, 15')
    a(f's_add_u32 s33, s68, {SMR}'); a('s_add_u32 s33, s33, s58')
    a(f's_add_u32 s32, s67, {SCHK}'); a(f's_add_u32 s32, s32, {MEML_OFF}')

def gather(a, n, R, opt, st, rsleep=0, R2=None, det=None):
    ld = lambda r, so: [a(f'buffer_load_dwordx4 v[{r+4*c}:{r+4*c+3}], v{VL16}, {S_WS}, {so} offen offset:{c*1024} sc1') for c in range(n)]
    def chk(r, k=0): a(f's_waitcnt vmcnt({k})'); maxchk(a, range(r, r + 4*n)); a(f'v_cmp_eq_u32 vcc, -1, v{VT0}')
    l1, l1ok, l2, l2ok = [a.label('Lg') for _ in range(4)]
    if det is not None:
        l0, l0d = a.label('Lg'), a.label('Lg')
        a(f'{l0}:')
        a(f'buffer_load_dword v{R}, v{det}, {S_WS}, s32 offen sc1'); a('s_waitcnt vmcnt(0)'); a(f'v_cmp_eq_u32 vcc, -1, v{R}')
        poll_tail(a, l0, l0d)
    stamp(a, opt, st[0])
    if R2 is None:
        a(f'{l1}:')
        ld(R, 's32'); chk(R)
        poll_tail(a, l1, l1ok)
    else:
        ld(R, 's32'); ld(R2, 's33'); chk(R, n)
        a(f's_cbranch_vccnz {l1}')
        a(f'{l1ok}:')
    stamp(a, opt, st[1])
    for c in range(n):
        for i in range(4):
            a(f'v_lshlrev_b32 v{VA+8*c+2*i}, 16, v{R+4*c+i}'); a(f'v_and_b32 v{VA+8*c+2*i+1}, 0xffff0000, v{R+4*c+i}')
    Q = R if R2 is None else R2
    if R2 is None:
        if rsleep: a(f's_sleep {rsleep}')
        ld(Q, 's33')
    chk(Q)
    a(f's_cbranch_vccnz {l2}')
    a(f'{l2ok}:')
    stamp(a, opt, st[2])
    for c in range(n):
        b = VA + 8*c
        for i in range(4):
            a(f'v_dot2c_f32_bf16 v{b+2*i}, {S_ONE0}, v{Q+4*c+i}'); a(f'v_dot2c_f32_bf16 v{b+2*i+1}, {S_ONE1}, v{Q+4*c+i}')
        for i in range(4): a(f'v_cvt_pk_bf16_f32 v{b+i}, v{b+2*i}, v{b+2*i+1}')
        a(f'ds_write_b128 v{VGW}, v[{b}:{b+3}] offset:{c*1024}')
    def outofline():
        if R2 is not None:
            a(f'{l1}:')
            ld(R, 's32'); ld(R2, 's33'); chk(R, n)
            a(f's_cbranch_vccz {l1ok}')
            budget_loop(a, l1, l1ok)
        a(f'{l2}:')
        ld(Q, 's33'); chk(Q)
        a(f's_cbranch_vccz {l2ok}')
        budget_loop(a, l2, l2ok)
    return outofline

ML = ['s[16:17]', 's[18:19]', 's[20:21]']; MR = ['s[22:23]', 's[24:25]', 's[26:27]']; MOR = 's[28:29]'
def mask_or(a, ms):
    a(f's_or_b64 {MOR}, {ms[0]}, {ms[1]}')
    for m in ms[2:]: a(f's_or_b64 {MOR}, {MOR}, {m}')
def ld_masked(a, n, r, so, ms=None):
    for c in range(n):
        if ms: a(f's_mov_b64 exec, {ms[c]}')
        a(f'buffer_load_dwordx4 v[{r+4*c}:{r+4*c+3}], v{VL16}, {S_WS}, {so} offen offset:{c*1024} sc1')
    if ms: a('s_mov_b64 exec, -1')

def gather_m(a, n, R, Q, T, opt, st, det, dep, gap):
    def chk(r, ms, k):
        a(f's_waitcnt vmcnt({k})')
        for c in range(n): a(f'v_max3_u32 v{T+c}, v{r+4*c}, v{r+4*c+1}, v{r+4*c+2}')
        for c in range(n): a(f'v_max_u32 v{T+c}, v{T+c}, v{r+4*c+3}')
        for c in range(n): a(f'v_cmp_eq_u32 {ms[c]}, -1, v{T+c}')
        mask_or(a, ms[:n])
    l1, l1ok, l2, l2b, l2ok = [a.label('Lg') for _ in range(5)]
    if det is not None:
        l0, l0d = a.label('Lg'), a.label('Lg')
        a(f'{l0}:')
        a(f'buffer_load_dword v{R}, v{det}, {S_WS}, s32 offen sc1'); a('s_waitcnt vmcnt(0)'); a(f'v_cmp_eq_u32 vcc, -1, v{R}')
        poll_tail(a, l0, l0d)
    stamp(a, opt, st[0])
    ld_masked(a, n, R, 's32'); ld_masked(a, n, Q, 's33'); chk(R, ML, n)
    a(f's_cbranch_scc1 {l1}')
    a(f'{l1ok}:')
    stamp(a, opt, st[1])
    for c in range(n):
        for i in range(4):
            a(f'v_lshlrev_b32 v{VA+8*c+2*i}, 16, v{R+4*c+i}'); a(f'v_and_b32 v{VA+8*c+2*i+1}, 0xffff0000, v{R+4*c+i}')
    chk(Q, MR, 0)
    a(f's_cbranch_scc1 {l2}')
    a(f'{l2ok}:')
    stamp(a, opt, st[2])
    for c in range(n):
        b = VA + 8*c
        for i in range(4):
            a(f'v_dot2c_f32_bf16 v{b+2*i}, {S_ONE0}, v{Q+4*c+i}'); a(f'v_dot2c_f32_bf16 v{b+2*i+1}, {S_ONE1}, v{Q+4*c+i}')
        for i in range(4): a(f'v_cvt_pk_bf16_f32 v{b+i}, v{b+2*i}, v{b+2*i+1}')
        a(f'ds_write_b128 v{VGW}, v[{b}:{b+3}] offset:{c*1024}')
    def outofline():
        a(f'{l1}:')
        ld_masked(a, n, R, 's32', ML); chk(Q, MR, n)
        ld_masked(a, n, Q, 's33', MR); chk(R, ML, n)
        a(f's_cbranch_scc0 {l1ok}')
        budget_loop(a, l1, l1ok)
        a(f'{l2}:')
        for _ in range(dep - 1):
            ld_masked(a, n, Q, 's33', MR); a(f's_sleep {gap}')
        a(f'{l2b}:')
        ld_masked(a, n, Q, 's33', MR); chk(Q, MR, n*(dep - 1))
        a(f's_cbranch_scc0 {l2ok}')
        budget_loop(a, l2b, l2ok)
    return outofline

def a_read(kb, reg):
    return ('lds', f'ds_read_b128 v[{reg}:{reg+3}], v{VAR} offset:{kb*1024}', f'A{kb}')
def frag_reads(lf, slot):
    return [('lds', f'ds_read_b128 v[{VB+8*slot+4*x}:{VB+8*slot+4*x+3}], v{VFR} offset:{lf*2048 + x*1024}', f'F{lf}') for x in range(2)]
def smf(acc, A, B): return f'v_smfmac_f32_16x16x64_bf16 v[{acc}:{acc+3}], v[{A}:{A+3}], {B}, v{VIDX}'
def post(acc, out, scale=None, pk=False):
    if pk: r = [f'v_pk_add_f32 v[{acc}:{acc+1}], v[{acc}:{acc+1}], v[{acc+2}:{acc+3}]']
    else: r = [f'v_add_f32 v{acc+i}, v{acc+i}, v{acc+2+i}' for i in range(2)]
    if scale: r += [f'v_mul_f32 v{acc+i}, {scale}, v{acc+i}' for i in range(2)]
    return r + [f'v_cvt_pk_bf16_f32 v{out}, v{acc}, v{acc+1}']

def allred(op, v, t, stages=(16, 32)):
    r = []
    for st in stages: r += [f'v_mov_b32 v{t}, v{v}', f'v_permlane{st}_swap_b32 v{v}, v{t}', f'{op} v{v}, v{v}, v{t}']
    return r

def stamp_flush(a, opt, n):
    if not opt.get('stamps'): return
    a('s_waitcnt lgkmcnt(0)')
    a(f's_lshl_b32 s67, {SSLOT}, 2'); a(f's_add_u32 s67, s67, {SWV}'); a('s_lshl_b32 s67, s67, 6'); a(f's_add_u32 s67, s67, {SSTEP}')
    a('s_lshl_b32 s67, s67, 6'); a(f's_add_u32 s67, s67, {STAMP_OFF}')
    a(f'v_lshlrev_b32 v{VT1}, 2, v0')
    for i in range(n): a(f'v_writelane_b32 v{VT0}, s{STAMP0+2*i}, {i}')
    a('s_mov_b64 exec, 0xffff')
    a(f'buffer_store_dword v{VT0}, v{VT1}, {S_WS}, s67 offen')
    a('s_mov_b64 exec, -1')

SPC = 's60'
SMR = 's59'
SELF = 3
def check_flags(a, opt, kind, skip=None, early=None):
    if opt.get('noflags'): return
    lp, ld = a.label('Lf'), a.label('Lfd')
    a(f's_sub_u32 s61, s82, {LEAD-4}'); a('s_max_i32 s61, s61, 0'); a('s_lshr_b32 s61, s61, 2'); a('s_add_u32 s61, s61, s82')
    a(f's_cmp_gt_u32 {SPC}, s61'); a(f's_cbranch_scc1 {ld}')
    if early:
        a(f's_waitcnt vmcnt({early[1]})')
        for r in (8, 4, 2, 1): a(f'v_min_u32_dpp v{early[0]}, v{early[0]}, v{early[0]} row_ror:{r} row_mask:0xf bank_mask:0xf')
        a(f'v_readfirstlane_b32 {SPC}, v{early[0]}')
        a(f's_cmp_gt_u32 {SPC}, s61'); a(f's_cbranch_scc1 {ld}')
    if kind == 'K': a(f'v_and_b32 v{VT1}, 15, v0'); a(f'v_min_u32 v{VT1}, 2, v{VT1}'); a(f'v_lshlrev_b32 v{VT1}, 7, v{VT1}')
    elif kind == 'Y16': a(f'v_and_b32 v{VT1}, 15, v0'); a(f'v_lshlrev_b32 v{VT1}, 7, v{VT1}')
    else: a(f'v_and_b32 v{VT1}, 3, v0'); a(f'v_mul_u32_u24 v{VT1}, {40*128}, v{VT1}')
    a(f'{lp}:')
    a(f'buffer_load_dword v{VT0}, v{VT1}, {S_WS}, s81 offen sc1'); a('s_waitcnt vmcnt(0)')
    for r in (8, 4, 2, 1): a(f'v_min_u32_dpp v{VT0}, v{VT0}, v{VT0} row_ror:{r} row_mask:0xf bank_mask:0xf')
    a(f'v_readfirstlane_b32 {SPC}, v{VT0}')
    a(f's_cmp_gt_u32 {SPC}, s61'); a(f's_cbranch_scc1 {ld}')
    if skip: a(f's_cmp_lt_u32 s82, {opt.get("self", SELF)}'); a(f's_cbranch_scc1 {skip}')
    budget_loop(a, lp, ld)
    a(f'{ld}:')

def cprog(a):
    a('s_waitcnt vmcnt(0)')
    a(f's_lshl_b32 s67, {SSLOT}, 7'); a(f's_add_u32 s67, s67, {CPRG_OFF}'); a(f's_add_u32 s68, {SSTEP}, 1'); a(f'v_mov_b32 v{VT0}, s68'); a(f'v_mov_b32 v{VT1}, 0')
    a('s_mov_b64 exec, 1')
    a(f'buffer_store_dword v{VT0}, v{VT1}, {S_WS}, s67 offen sc1')
    a('s_mov_b64 exec, -1')

def load_frags6(a, dst, base_off, ct, seg='s82'):
    a(f's_lshl_b32 s67, {seg}, 5'); a(f's_add_u32 s67, s67, {SH}'); a('s_mul_i32 s67, s67, 12288')
    a(f's_add_u32 s67, s67, {base_off + ct*6144}'); a('s_add_u32 s68, s67, 4096')
    for kk in range(6):
        a(f'buffer_load_dwordx4 v[{dst+4*kk}:{dst+4*kk+3}], v{VL16}, {S_WS}, {"s67" if kk < 4 else "s68"} offen offset:{(kk&3)*1024} {STREAM[0]}')

def build_stream(first_items, second_items):
    items = []; ldsq = []; idx2 = {}
    def add(it):
        kind, acc, A, ref, needs = it
        if kind == 'reg': items.append((smf(acc, A, wfrag(ref)), needs))
        elif kind == 'lds':
            sl = len(ldsq) % 4; ldsq.append((len(items), ref, sl))
            items.append((smf(acc, A, f'v[{VB+8*sl}:{VB+8*sl+7}]'), needs + [f'F{ref}']))
        else: items.append((ref, needs))
    for it in first_items: add(it)
    n = 0
    for it in second_items:
        if it[0] != 'raw': idx2[n] = len(items); n += 1
        add(it)
    return items, ldsq, idx2

class Sides:
    def __init__(self): self.side = {}; self.busy = set(); self.vbusy = {}
    def put(self, g, r): self.side.setdefault(g, []).append(r)
    def lds(self, g, r, force=False):
        if not force:
            while g in self.busy: g += 1
        self.put(g, r); self.busy.add(g); return g
    def valu(self, g, instrs, per=1):
        last = g - 1; end = g
        for s in instrs:
            if s is None: g = last + 2; continue
            if isinstance(s, tuple): self.lds(last + 1, s, True); end = max(end, last + 2); continue
            if not s.startswith('v_'): self.put(last + 1, s); end = max(end, last + 2); continue
            while self.vbusy.get(g, 0) >= per: g += 1
            self.put(g, s); self.vbusy[g] = self.vbusy.get(g, 0) + 1; last = g; end = max(end, g + 1)
        self.nxt = g
        return end
    def refills(self, ldsq):
        for n in range(len(ldsq) - 4):
            g = ldsq[n][0]
            lim = ldsq[n+4][0] - 6
            for r in frag_reads(ldsq[n+4][1], ldsq[n][2]):
                g2 = g
                while g2 in self.busy: g2 += 1
                if g2 <= lim: g = self.lds(g2, r)
                else: g = self.lds(max(g, min(lim, g + 1)), r, True)
                assert g < ldsq[n+4][0] - 1, (n, g, ldsq[n+4])

DPP8 = 'row_ror:8 row_mask:0xf bank_mask:0xf'
def dense_reads(dst, off, tagp, kks=range(6)):
    return [('lds', f'ds_read_b64_tr_b16 v[{dst+4*kk+2*x}:{dst+4*kk+2*x+1}], v{VDR} offset:{off + (2*kk+x)*256}', f'{tagp}{kk}')
            for kk in kks for x in range(2)]

def preload_b(a, lg, ldsq):
    for n in range(4):
        for r in frag_reads(ldsq[n][1], ldsq[n][2]): a(r[1]); lg.issue(r[2])

QORD = [[0, 1, 2, 3, 4, 5, 6, 7, 9, 8], [3, 4, 5, 0, 1, 2, 6, 7, 9, 8], [6, 7, 2, 0, 1, 5, 3, 4, 9, 8], [8, 9, 0, 1, 2, 3, 4, 6, 5, 7]]
KORD = [0, 2, 1, 3, 5, 4, 6, 9, 7, 8]

def qk_setup(a, opt):
    common_addr(a)
    T = VTMP
    rho = lambda l: arow(l & 7, (l >> 3) & 1)
    lanefn(a, VXW, lambda l: LDS_MEM + (l & 15)*16 + (l >> 4)*4, T, 256)
    lanefn(a, VDR, lambda l: LDS_MEM + (l >> 2)*16 + (l & 1)*8, T)
    lanefn(a, V9, lambda l: (l >> 5)*256 + rho(l)*16 + ((l >> 4) & 1)*8, T)
    lanefn(a, V10, lambda l: rho(l)*16 + ((l >> 4) & 1)*4, T)
    lanefn(a, V11, lambda l: LDS_MEM + 3072 + l*16, T)
    lanefn(a, V12, lambda l: LDS_MEM + ((l >> 3) & 1)*512 + arow(l & 7, l >> 5)*16 + ((l >> 4) & 1)*8, T)
    a(f's_and_b32 s68, {SH}, 15'); a('s_min_u32 s68, s68, 9'); a('s_lshl_b32 s68, s68, 10'); a(f'v_add_u32 v{V12}, s68, v{V12}')
    lanefn(a, VXS, lambda l: ((l >> 3) & 1)*1024 + (l >> 4)*256 + (l & 7)*16, T)
    a(f's_mul_i32 s67, {SX}, 12288'); a(f's_add_u32 s67, s67, {PA_OFF}')
    a(f's_and_b32 s68, {SH}, 15'); a('s_lshl_b32 s76, s68, 9'); a('s_add_u32 s76, s76, s67')
    a('s_lshr_b32 s77, s68, 1'); a('s_lshl_b32 s77, s77, 8'); a('s_add_u32 s77, s77, s67')
    a('s_and_b32 s68, s68, 1'); a('s_lshl_b32 s68, s68, 3'); a('s_add_u32 s77, s77, s68'); a('s_add_u32 s77, s77, 8192')

def qk_init_clear(a):
    a(f'v_mov_b32 v{VA+16}, -1'); a(f'v_mov_b32 v{VA+17}, -1')
    a(f'buffer_store_dwordx2 v[{VA+16}:{VA+17}], v{V9}, {S_WS}, s76 offen sc1')
    a(f'buffer_store_dword v{VA+16}, v{V10}, {S_WS}, s77 offen sc1')

def mf(D, A, B, first): return f'v_mfma_f32_16x16x32_bf16 v[{D}:{D+3}], v[{A}:{A+3}], v[{B}:{B+3}], ' + ('0' if first else f'v[{D}:{D+3}]')

def stream_head(sd, w, order, AP, opt, rest):
    g = opt.get('gb1', 3)
    sd.put(g, ('wait', 'GW')); sd.put(g, 's_barrier')
    for kb in order:
        if kb not in OWN[w]:
            sd.lds(g, a_read(kb, AP[kb]), True); g += 1
    return g

def qk_loop(a, w, sc, opt):
    VZ = VTMP + 15
    lg = Trk(a, 'lgkmcnt', 15)
    ltop, lent, lfin = a.label('Lqk'), a.label('Lqkent'), a.label('Lqkfin')
    QEX = LDS_EX - LDS_MEM
    SACC, SM = VTMP, VTMP + 4
    QO = QORD[w]
    AP = apos(w, QO)
    seq = [(kb, t) for kb in QO[:6] for t in range(3)] + [(kb, t) for t in range(3) for kb in QO[6:]]
    first = [(xfrag(kb, t, 0)[0], VACC0 + 4*t, AP[kb], xfrag(kb, t, 0)[1], [f'A{kb}']) for kb, t in seq]
    second = []
    n = 0
    SX0 = opt.get('sx0', 19); QS = opt.get('qscale', 0)
    for t in range(3):
        for kb in KORD:
            second.append((xfrag(kb, t, 1)[0], VACC1 + 4*t, AP[kb], xfrag(kb, t, 1)[1], []))
            if w >= 2 and n == SX0:
                for kk in range(6): second.append(('raw', 0, 0, mf(SACC, VKX + 4*kk, VQF + 4*kk, kk == 0), [f'Q{kk}']))
            if w == 0 and n == 29:
                for kk in range(4): second.append(('raw', 0, 0, mf(SM, VKX + 4*kk, VQF + 4*kk, kk == 0), [f'K{kk}', f'Q{kk}']))
            n += 1
    items, ldsq, k2 = build_stream(first, second)
    sd = Sides()
    stream_head(sd, w, QO, AP, opt, None)
    sd.put(opt.get('gb1', 3), lambda o_=opt: stamp(a, o_, 1))
    pub_rd = [('lds', f'ds_read_b64 v[{VKX+2*x}:{VKX+2*x+1}], v{V12} offset:{x*256}', 'PUB') for x in range(2)]
    pub_st = f'buffer_store_dwordx4 v[{VKX}:{VKX+3}], v{VXS}, {S_WS}, s44 offen sc1'
    if w == 1:
        sd.put(0, f'buffer_store_dword v{VT1}, v{VT2}, {S_WS}, s46 offen sc1')
        for r in pub_rd: sd.lds(18, r)
        sd.put(25, ('wait', 'PUB')); sd.put(opt.get('pubg', 25), pub_st)
        for j in range(6):
            sd.put(1 + 3*j, f'buffer_load_dword v{VKX+4+j}, v{V9}, {S_WS}, s{[45, 48, 49][j >> 1]} offen sc1')
            if j % 2 == 0: sd.put(2 + 3*j, f's_add_u32 s{[45, 48, 49][j >> 1]}, s{[45, 48, 49][j >> 1]}, 8192')
    if w == 0:
        sd.put(opt.get('kt0', 1), f'buffer_load_dword v{VTMP+13}, v{V12}, {S_WS}, s45 offen sc1')
        sd.put(opt.get('kt0', 1) + 4, f'buffer_load_dword v{VTMP+13}, v{VXS}, {S_WS}, s45 offen sc1')
        if opt.get('async', 0): sd.put(19, f'buffer_load_dword v{VTMP+14}, v{VT2}, {S_WS}, s54 offen sc1')
    if w == 1 and opt.get('async', 0): sd.put(opt.get('w1p', 21), f'buffer_load_dword v{V11}, v{V10}, {S_WS}, s54 offen sc1')
    wr = lambda acc, t, off, tag: ('lds', f'ds_write_b32 v{VXW}, v{acc} offset:{off + t*1024}', tag)
    for t in range(3): gq = sd.valu([23, 27, 31][t], post(VACC0 + 4*t, VACC0 + 4*t, 's52' if QS else None) + [wr(VACC0 + 4*t, t, QEX, 'QW')], opt.get('qper', [1, 1, 2])[t])
    gb = gq + opt.get('gba', [3, 1, 4, 4])[w]
    if w != 1: sd.put(gb, f's_waitcnt vmcnt({0 if w else 3})')
    sd.put(gb, ('wait', 'QW')); sd.put(gb, 's_barrier')
    if opt.get('diag'): sd.put(gb, lambda: stamp(a, opt, 0))
    if w >= 2:
        for i, r in enumerate(dense_reads(VQF, QEX, 'Q')): sd.lds(gb + (i * opt.get('qspan', 10)) // 12, r, True)
    gk = 0
    for t in range(2): gk = sd.valu(k2[10*t + 9] + 2, post(VACC1 + 4*t, VACC1 + 4*t) + [wr(VACC1 + 4*t, t, 0, 'KW')])
    gB = gk + opt.get('gbb', [1, 1, 3, 3])[w]
    sd.put(gB, ('wait', 'KW')); sd.put(gB, 's_barrier')
    assert gB < len(items)
    if w == 0:
        for i, r in enumerate(dense_reads(VKX, 0, 'K', range(4))): sd.lds(gB + i // opt.get('krd', 3), r, True)
    sd.valu(k2[29] + 2, post(VACC1 + 8, VACC1 + 8, None, w > 0) + [wr(VACC1 + 8, 2, 0, 'KW')])
    E0, T, X0 = VTMP + 8, VTMP + 12, VTMP + 4
    ool4 = None
    if w >= 2:
        lsx, lsxb = a.label('Lsx'), a.label('Lsxb')
        p0 = [f'v_cndmask_b32 v{X0}, v{SACC}, v{SACC+2}, {SMASK8}', f'v_cndmask_b32 v{X0+1}, v{SACC+1}, v{SACC+3}, {SMASK8}',
              f'v_exp_f32 v{E0}, v{X0}', f'v_exp_f32 v{E0+1}, v{X0+1}',
              f'v_max_f32 v{T}, |v{X0}|, |v{X0+1}|', f'v_add_f32 v{E0+3}, v{E0}, v{E0+1}', f'v_cmp_lt_f32 vcc, s79, v{T}']
        if not QS: p0[2:2] = [f'v_mul_f32 v{X0}, s52, v{X0}', f'v_mul_f32 v{X0+1}, s52, v{X0+1}']
        np2 = opt.get('np2', 2 if QS else 4)
        sd.valu(k2[SX0 + 2], p0[:np2], 2)
        g = sd.valu(sd.nxt + 1, p0[np2:])
        sd.put(g, lambda: (a(f's_cbranch_vccnz {lsx}'), a(f'{lsxb}:')))
        sd.lds(g, ('lds', f'ds_write_b128 v{V11}, v[{E0}:{E0+3}] offset:{(w-2)*1024}', 'EW'), True)
        def ool4():
            m = E0 + 2
            a(f'{lsx}:')
            a(f'v_max_f32 v{m}, v{X0}, v{X0+1}'); a(f'v_max_f32_dpp v{m}, v{m}, v{m} {DPP8}')
            for s_ in allred('v_max_f32', m, T): a(s_)
            for i in range(2): a(f'v_sub_f32 v{E0+i}, v{X0+i}, v{m}')
            for i in range(2): a(f'v_exp_f32 v{E0+i}, v{E0+i}')
            a(f'v_add_f32 v{E0+3}, v{E0}, v{E0+1}')
            a(f's_branch {lsxb}')
        sd.valu(5, [f'v_mov_b32 v{E0+2}, 0'])
    sd.refills(ldsq)
    if w == 0:
        for i, r in enumerate(dense_reads(VQF, QEX, 'Q')):
            g = gb
            while g in sd.busy and g < gB - 1: g += 1
            sd.lds(g if g < gB - 1 else gB - 2 - (i & 3), r, True)
    if opt.get('dq'):
        for i_, g_ in zip((0, 6, 7, 3, 4), opt['dq']): sd.put(g_, lambda i_=i_: stamp(a, dict(stamps=1, cyc=1), i_))
        opt = {k_: v_ for k_, v_ in opt.items() if k_ != 'stamps'}; opt['dq1'] = 1

    def top():
        preload_b(a, lg, ldsq)
        for r in range(0, 24, 2): a(f'v_mov_b64 v[{VACC0+r}:{VACC0+r+1}], 0')
        if w == 0: a(f's_bitcmp1_b32 {SSTEP}, 0'); a('s_cselect_b32 s78, -1.0, 1.0')
        if w == 1:
            a(f'v_mov_b32 v{VT1}, {SSTEP}')
            a(f's_lshr_b32 s67, {SSTEP}, 2'); a('s_mul_i32 s44, s67, 40960'); a(f's_bfe_u32 s67, {SSTEP}, 0x10001'); a('s_mul_i32 s67, s67, 20480')
            a('s_add_u32 s44, s44, s67'); a(f's_and_b32 s67, {SSTEP}, 1'); a('s_lshl_b32 s67, s67, 7'); a('s_add_u32 s44, s44, s67'); a('s_add_u32 s44, s44, s47')
    def prefetch():
        ls = a.label('Lnp')
        if w <= 1: a(f's_mov_b32 s45, {OOB}')
        a(f's_cmp_ge_u32 s82, {1 if opt.get("nopf") else 63}'); a(f's_cbranch_scc1 {ls}')
        if w >= 2:
            lk = a.label('Lk')
            a(f's_cmp_ge_u32 s82, {opt.get("self", SELF)}'); a(f's_cbranch_scc1 {lk}')
            check_flags(a, opt, 'K')
            a(f'{lk}:')
            load_frags6(a, VKX, KF_OFF, w - 2)
        elif w == 0:
            check_flags(a, opt, 'K', ls, (VTMP + 14, 2) if opt.get('async', 0) else None)
            a(f's_lshl_b32 s45, s82, 5'); a(f's_add_u32 s45, s45, {SH}'); a('s_mul_i32 s45, s45, 12288'); a(f's_add_u32 s45, s45, {KF_OFF}')
        elif not opt.get('notouch'):
            check_flags(a, opt, 'Y16', ls, (V11, 1 if opt.get('w1p', 21) < opt.get('pubg', 25) else 0) if opt.get('async', 0) else None)
            a(f's_mul_i32 s45, s82, {40*40960}'); a('s_add_u32 s45, s45, s50')
        a(f'{ls}:')
        if w <= 1 and opt.get('async', 0):
            a(f's_sub_u32 s61, s82, {LEAD-4-1}'); a('s_max_i32 s61, s61, 0'); a('s_lshr_b32 s61, s61, 2'); a('s_add_u32 s61, s61, s82'); a('s_add_u32 s61, s61, 1')
            a(f's_cmp_gt_u32 {SPC}, s61'); a(f's_cselect_b32 s54, {OOB}, s81')
        if w == 1:
            a(f's_add_u32 s48, s45, {16*40960}'); a(f's_add_u32 s49, s45, {32*40960}'); a(f's_bitcmp1_b32 {SH}, 3'); a(f's_cselect_b32 s49, {OOB}, s49')
    a(f's_mov_b32 {SSTEP}, 0'); a(f's_mov_b32 s52, {f2u(SC):#x}'); a('s_mov_b32 s53, s52'); a(f's_mov_b32 s79, {f2u(opt.get("safe", 60.0)):#x}')
    if w != 1: a(f's_mul_i32 s81, {SH}, 384'); a(f's_add_u32 s81, s81, {PRGX_OFF + 96*128}')
    if w >= 2: a('s_mov_b32 s82, 0'); prefetch()
    if w == 0:
        a(f's_mov_b32 s45, {OOB}'); a(f'v_lshlrev_b32 v{V12}, 7, v0'); a(f'v_add_u32 v{VXS}, 8192, v{V12}'); a(f'v_min_u32 v{VXS}, 12160, v{VXS}')
        a(f'v_and_b32 v{VT2}, 15, v0'); a(f'v_min_u32 v{VT2}, 2, v{VT2}'); a(f'v_lshlrev_b32 v{VT2}, 7, v{VT2}')
    if w == 1:
        a(f'v_lshlrev_b32 v{V9}, 7, v0'); a(f'v_and_b32 v{V10}, 15, v0'); a(f'v_lshlrev_b32 v{V10}, 7, v{V10}')
        a(f'v_cmp_eq_u32 vcc, 0, v0'); a(f'v_mov_b32 v{VT2}, 0x40000000'); a(f'v_cndmask_b32 v{VT2}, v{VT2}, 0, vcc')
        a(f's_lshl_b32 s81, {SX}, 11'); a(f's_bfe_u32 s67, {SH}, 0x20002'); a(f's_mul_i32 s67, s67, {40*128}'); a('s_add_u32 s81, s81, s67'); a(f's_add_u32 s81, s81, {PRGY_OFF}')
        a(f's_and_b32 s50, {SH}, 15'); a('s_mul_i32 s50, s50, 40960'); a(f's_lshl_b32 s67, {SX}, 14'); a('s_add_u32 s50, s50, s67'); a(f's_add_u32 s50, s50, {VOF_OFF}')
        a(f's_lshl_b32 s46, {SH}, 7'); a(f's_add_u32 s46, s46, {MPRG_OFF}'); a(f's_lshl_b32 s47, {SH}, 11'); a(f's_add_u32 s47, s47, {XN_OFF + 64*40960}')
        a(f's_cmp_ge_u32 {SH}, 10'); a(f's_cselect_b32 s46, {OOB}, s46'); a(f's_cselect_b32 s47, {OOB}, s47')
        for r in (45, 48, 49): a(f's_mov_b32 s{r}, {OOB}')
    if w <= 1: a('s_mov_b32 s54, s81')
    top()
    for kb in OWN[w]: a(a_read(kb, AP[kb])[1])
    a('s_waitcnt lgkmcnt(0)')
    a(f's_branch {lent}')
    a(f'{ltop}:')
    lg.reset()
    a('s_barrier')
    a(f's_add_u32 s82, {SSTEP}, {[1, opt.get("tahead", 2) - 1, 0, 0][w]}'); prefetch()
    top()
    gather_setup(a)
    qs = opt.get('qsleep', 8) - (opt.get('qsk', 2) if w >= 2 else 0)
    if qs > 0: a(f's_sleep {qs}')
    if opt.get('qdet', 0): a(f'v_and_b32 v{VZ}, {(8 if NCH[w] == 2 else 16) - 1}, v0'); a(f'v_min_u32 v{VZ}, {4*NCH[w]-1}, v{VZ}'); a(f'v_lshlrev_b32 v{VZ}, 8, v{VZ}')
    else: a(f'v_mov_b32 v{VZ}, 0')
    a('s_waitcnt lgkmcnt(0)')
    if opt.get('mg', 1): ool = gather_m(a, NCH[w], VTMP, VQF, VTMP + 12, opt, (0, 6, 7), VZ if opt.get('qd', 1) else None, opt.get('rdep', 1), opt.get('rgap', 4))
    else: ool = gather(a, NCH[w], VTMP, {k: v for k, v in opt.items() if k != 'stamps'} if opt.get('diag') else opt, (0, 6, 7), opt.get('qrs', 0), VQF if opt.get('qj', 1) else None, VZ if opt.get('qj', 1) else None)
    a(f'{lent}:')
    lg.reset(); lg.issue('GW')
    left = [x_ for g_ in sorted(sd.side) if g_ >= len(items) for x_ in sd.side[g_]]
    merge(a, lg, items, sd.side)
    for x_ in left: merge(a, lg, [], {-1: [x_]})
    if opt.get('dq1'): stamp(a, dict(stamps=1, cyc=1), 2)
    stamp(a, opt, 2)
    EA, EB = VB, VB + 4
    U, LM, F0, F1, LS = VB + 8, VB + 9, VB + 10, VB + 11, VB + 12
    redl = [f'v_add_f32_dpp v{LS}, v{LS}, v{LS} {DPP8}', f'v_mov_b32 v{T}, v{LS}', f'v_permlane16_swap_b32 v{LS}, v{T}', f'v_add_f32 v{LS}, v{LS}, v{T}',
            f'v_mov_b32 v{T}, v{LS}', f'v_permlane32_swap_b32 v{LS}, v{T}', f'v_add_f32 v{LS}, v{LS}, v{T}', f'v_mul_f32 v{LS}, s78, v{LS}']
    lg.all(); a('s_barrier')
    if opt.get('diag'): stamp(a, opt, 6)
    ool3 = None
    if w == 0:
        lslow, lback = a.label('Lsm'), a.label('Lsb')
        for r in dense_reads(VKX, 0, 'K', range(4, 6)): a(r[1]); lg.issue(r[2])
        a(f'ds_read_b128 v[{EA}:{EA+3}], v{V11}'); lg.issue('E'); a(f'ds_read_b128 v[{EB}:{EB+3}], v{V11} offset:1024'); lg.issue('E')
        for kk in range(4, 6):
            lg.wait(f'K{kk}'); a(mf(SM, VKX + 4*kk, VQF + 4*kk, False))
        lg.wait('E')
        for s_ in [f'v_add_f32 v{LS}, v{EA+3}, v{EB+3}', f'v_max_f32 v{U}, |v{EA+2}|, |v{EB+2}|', f'v_mul_f32 v{U}, 0x71800000, v{U}', redl[0], redl[1]]: a(s_)
        stamp(a, opt, 3)
        T2, PO = VB + 13, VB + 16
        a(f'v_cndmask_b32 v{SM}, v{SM}, v{SM+2}, {SMASK8}'); a(f'v_cndmask_b32 v{SM+1}, v{SM+1}, v{SM+3}, {SMASK8}')
        if not QS: a(f'v_mul_f32 v{SM}, s52, v{SM}'); a(f'v_mul_f32 v{SM+1}, s52, v{SM+1}')
        a(f'v_exp_f32 v{SM+2}, v{SM}'); a(f'v_exp_f32 v{SM+3}, v{SM+1}')
        a(redl[2]); a(f'v_max3_f32 v{U}, |v{SM}|, |v{SM+1}|, v{U}'); a(redl[3])
        a(f'v_add_f32 v{LM}, v{SM+2}, v{SM+3}')
        a(redl[4])
        a(f'v_cmp_lt_f32 vcc, s79, v{U}')
        def fin(first):
            a(f'v_add_f32_dpp v{LM}, v{LM}, v{LM} {DPP8}')
            if first: a(redl[5])
            a(f'v_mov_b32 v{T2}, v{LM}')
            if first: a(redl[6]); a(redl[7])
            a(f'v_permlane16_swap_b32 v{LM}, v{T2}'); a(f'v_add_f32 v{LM}, v{LM}, v{T2}')
            a(f'v_fma_f32 v{LM}, v{LM}, s78, v{LS}')
            a(f'v_rcp_f32 v{LM}, v{LM}')
            a(f'v_pk_mul_f32 v[{PO}:{PO+1}], v[{EA}:{EA+1}], v[{LM-1}:{LM}] op_sel:[0,1]'); a(f'v_pk_mul_f32 v[{PO+2}:{PO+3}], v[{EB}:{EB+1}], v[{LM-1}:{LM}] op_sel:[0,1]')
            a(f'v_cvt_pk_bf16_f32 v{PO}, v{PO}, v{PO+1}'); a(f'v_cvt_pk_bf16_f32 v{PO+1}, v{PO+2}, v{PO+3}')
        fin(True)
        a(f's_cbranch_vccnz {lslow}')
        a(f'{lback}:')
        a(f'buffer_store_dwordx2 v[{PO}:{PO+1}], v{V9}, {S_WS}, s76 offen {sc}')
        a(f'v_pk_mul_f32 v[{SM+2}:{SM+3}], v[{SM+2}:{SM+3}], v[{LM-1}:{LM}] op_sel:[0,1]')
        a(f'v_cvt_pk_bf16_f32 v{SM}, v{SM+2}, v{SM+3}')
        a(f'buffer_store_dword v{SM}, v{V10}, {S_WS}, s77 offen {sc}')
        stamp(a, opt, 4)
        if opt.get('diagp'): a('s_waitcnt vmcnt(0)')
        lkm, lkb = a.label('Lkm'), a.label('Lkb')
        a(f's_cmp_ge_u32 {SSTEP}, {4*NMB}'); a(f's_cbranch_scc1 {lkm}')
        a(f'{lkb}:')
        def ool3():
            a(f'{lkm}:')
            a(f's_mul_i32 s72, {SH}, 12288'); a(f's_bfe_u32 s67, {SSTEP}, 0x10001'); a('s_mul_i32 s67, s67, 6144'); a('s_add_u32 s72, s72, s67')
            a(f's_add_u32 s72, s72, {KF_OFF + (64 + NMB)*32*12288}'); a('s_add_u32 s73, s72, 4096')
            a(f's_bitcmp1_b32 {SSTEP}, 0'); a('s_cselect_b32 s74, 8, 0'); a('s_lshl_b32 s74, 0x00ff00ff, s74'); a('s_mov_b32 exec_lo, s74'); a('s_mov_b32 exec_hi, s74')
            for kk in range(6): a(f'buffer_store_dwordx4 v[{VKX+4*kk}:{VKX+4*kk+3}], v{VL16}, {S_WS}, s{72 + (kk >> 2)} offen offset:{(kk & 3)*1024} sc1')
            a('s_mov_b64 exec, -1')
            cprog(a)
            a(f's_branch {lkb}')
            a(f'{lslow}:')
            a(f'v_max_f32 v{U}, v{SM}, v{SM+1}'); a(f'v_max_f32_dpp v{U}, v{U}, v{U} {DPP8}')
            for s_ in allred('v_max_f32', U, T, (16,)): a(s_)
            a(f'v_max3_f32 v{U}, v{U}, v{EA+2}, v{EB+2}')
            a(f'v_sub_f32 v{SM}, v{SM}, v{U}'); a(f'v_sub_f32 v{SM+1}, v{SM+1}, v{U}'); a(f'v_sub_f32 v{F0}, v{EA+2}, v{U}'); a(f'v_sub_f32 v{F1}, v{EB+2}, v{U}')
            a(f'v_exp_f32 v{SM+2}, v{SM}'); a(f'v_exp_f32 v{SM+3}, v{SM+1}'); a(f'v_exp_f32 v{F0}, v{F0}'); a(f'v_exp_f32 v{F1}, v{F1}')
            a(f'v_mul_f32 v{LS}, v{EA+3}, v{F0}'); a(f'v_fmac_f32 v{LS}, v{EB+3}, v{F1}')
            for s_ in redl: a(s_)
            for i in range(2): a(f'v_mul_f32 v{EA+i}, v{EA+i}, v{F0}'); a(f'v_mul_f32 v{EB+i}, v{EB+i}, v{F1}')
            a(f'v_add_f32 v{LM}, v{SM+2}, v{SM+3}')
            fin(False)
            a(f's_branch {lback}')
    if opt.get('dq1'): opt = dict(opt, stamps=1)
    stamp(a, opt, 5)
    stamp_flush(a, opt, 8)
    a(f's_add_u32 {SSTEP}, {SSTEP}, 1'); a(f's_cmp_lt_u32 {SSTEP}, 64'); a(f's_cbranch_scc1 {ltop}')
    a('s_waitcnt vmcnt(0)'); a('s_endpgm')
    ool()
    if ool3: ool3()
    if ool4: ool4()

def vo_setup(a, opt):
    common_addr(a)
    T = VTMP
    lanefn(a, VXW, lambda l: LDS_EX + tile_pat(l), T, 256)
    a(f'v_and_b32 v{T}, 1, v0'); a(f'v_cmp_ne_u32 vcc, 0, v{T}'); a(f'v_mov_b32 v{T}, 0x05040100'); a(f'v_mov_b32 v{T+1}, 0x03020706')
    a(f'v_cndmask_b32 v{VXS}, v{T}, v{T+1}, vcc')
    lanefn(a, V9, lambda l: ((l >> 4) & 1)*1024 + (l & 15)*16 + (l >> 5)*8, T, 256)
    lanefn(a, V10, lambda l: (l >> 4)*10240 + (l & 15)*16, T)
    lanefn(a, V11, lambda l: (l >> 4)*1024 + (l & 15)*16, T, 256)
    lanefn(a, V12, tile_pat, T)
    a(f's_and_b32 {SDT}, {SH}, 15'); a(f's_lshl_b32 s67, {SWV}, 4'); a(f's_add_u32 {SDT}, {SDT}, s67')
    a(f's_lshl_b32 s81, {SX}, 11'); a(f's_bfe_u32 s67, {SDT}, 0x20002'); a(f's_mul_i32 s67, s67, {40*128}'); a('s_add_u32 s81, s81, s67'); a(f's_add_u32 s81, s81, {PRGY_OFF}')
    a(f's_mul_i32 s44, {SH}, 10240'); a(f's_add_u32 s44, s44, {VOMR_OFF}'); a('s_add_u32 s45, s44, 4096'); a('s_add_u32 s46, s44, 8192')
    a(f's_mul_i32 s72, {SX}, {16*10240}'); a(f's_lshl_b32 s68, {SDT}, 8'); a('s_add_u32 s72, s72, s68'); a(f's_add_u32 s72, s72, {VOMR_OFF}')
    a('s_add_u32 s73, s72, 40960'); a('s_add_u32 s74, s73, 40960'); a('s_add_u32 s75, s74, 40960')
    a(f's_mul_i32 s49, {SX}, 12288'); a(f's_add_u32 s49, s49, {PA_OFF}'); a(f's_add_u32 s76, s49, {SCHK}')
    a(f's_mul_i32 s47, {SDT}, 40960'); a(f's_lshl_b32 s67, {SX}, 14'); a('s_add_u32 s47, s47, s67'); a(f's_add_u32 s47, s47, {VOF_OFF}')

def vom_store1(src, k, base, sc):
    if k < 2: return f'buffer_store_dwordx4 v[{src}:{src+3}], v{V11}, {S_WS}, {base[k]} offen {sc}'
    return f'buffer_store_dwordx2 v[{src}:{src+1}], v{V9}, {S_WS}, {base[2]} offen {sc}'
def memp_off(a, dst, add, dt=SDT):
    a(f's_add_u32 s67, {SSTEP}, {add}'); a('s_and_b32 s67, s67, 3'); a('s_lshl_b32 s67, s67, 1'); a(f's_add_u32 s67, s67, {SX}')
    a(f's_mul_i32 s{dst}, s67, 10240'); a(f's_lshl_b32 s{dst+1}, s67, 15'); a(f's_lshl_b32 s67, {dt}, 8')
    a(f's_add_u32 s{dst}, s{dst}, s67'); a(f's_add_u32 s{dst+1}, s{dst+1}, s67'); a(f's_add_u32 s{dst}, s{dst}, {MEML_OFF}')
    a(f's_add_u32 s{dst+1}, s{dst+1}, {SMR}'); a(f's_cmp_ge_u32 {dt}, 24'); a('s_cselect_b32 s67, 10240, 0'); a(f's_add_u32 s{dst+1}, s{dst+1}, s67')

def vo_init_clear(a):
    for r in range(4): a(f'v_mov_b32 v{VA+16+r}, -1')
    for k in range(3): a(vom_store1(VA + 16, k, ('s44', 's45', 's46'), 'sc1'))
    for sl in range(4):
        memp_off(a, 32, sl)
        a(f's_cmp_ge_u32 {SDT}, 40'); a(f's_cselect_b32 s32, {OOB}, s32'); a(f's_cselect_b32 s33, {OOB}, s33')
        a(f'buffer_store_dword v{VA+16}, v{V12}, {S_WS}, s32 offen sc1')
        a(f'buffer_store_dword v{VA+16}, v{V12}, {S_WS}, s33 offen sc1')
        a('s_add_u32 s33, s33, 8192')
        a(f'buffer_store_dword v{VA+16}, v{V12}, {S_WS}, s33 offen sc1')

VORD = [[0, 1, 2, 3, 4, 5, 6, 7, 9, 8], [3, 4, 5, 0, 1, 2, 6, 7, 9, 8], [6, 7, 2, 0, 1, 5, 3, 4, 9, 8], [8, 9, 0, 1, 3, 2, 4, 6, 5, 7]]
OORD = [0, 1, 2, 3, 4, 5, 6, 7, 8, 9]
OORD0 = [0, 2, 1, 3, 4, 6, 5, 7, 8, 9]
def pairup(acc, tmp):
    return [f'v_mov_b32_dpp v{tmp}, v{acc} quad_perm:[1,0,3,2] row_mask:0xf bank_mask:0xf', f'v_perm_b32 v{acc}, v{tmp}, v{acc}, v{VXS}']

def vo_loop(a, w, duty, sc, opt):
    n = NCH[w]; VO = VORD[w]
    lg = Trk(a, 'lgkmcnt', 15)
    ltop, lent = a.label('Lvo'), a.label('Lvoent')
    VV = VACC1; PK = VACC0
    EXO = LDS_EX - LDS_MEM
    AP = apos(w, VO)
    OA = {t: (VOX + 44 + 4*i if i < 5 else AP[VO[i - 5]]) for i, t in enumerate(OORD)}
    seq = [(kb, t) for kb in VO[:3] for t in range(3)] + [(kb, t) for t in range(3) for kb in VO[3:]]
    first = [(xfrag(kb, t, 0)[0], VACC0 + 4*t, AP[kb], xfrag(kb, t, 0)[1], [f'A{kb}']) for kb, t in seq]
    oseq = [(t, 0) for t in OORD0] + [(t, 1) for t in OORD[:3]]
    for i in range(10): oseq += [(OORD[i], 2)] + ([(OORD[i+3], 1)] if i + 3 < 10 else [])
    if opt.get('oseq', 1):
        oseq = [(0, 0), (2, 0), (1, 0), (3, 0), (4, 0), (6, 0), (0, 1), (2, 1), (1, 1), (3, 1), (5, 0), (7, 0), (0, 2), (1, 2), (2, 2), (3, 2),
                (4, 1), (5, 1), (4, 2), (6, 1), (5, 2), (7, 1), (6, 2), (8, 0), (7, 2), (9, 0), (8, 1), (9, 1), (8, 2), (9, 2)]
    second = [(yfrag(tile, kb)[0], OA[tile], VV + 4*kb, yfrag(tile, kb)[1], [f'V{kb}']) for tile, kb in oseq]
    fin = {t: 30 + oseq.index((t, 2)) for t in OORD}
    items, ldsq, k2 = build_stream(first, second)
    sd = Sides()
    stream_head(sd, w, VO, AP, opt, None)
    sd.put(opt.get('gb1', 3), lambda: stamp(a, opt, 1))
    vox = lambda hh: f'buffer_load_dwordx4 v[{VOX+4*hh}:{VOX+4*hh+3}], v{VL16}, {S_WS}, s83 offen offset:{(hh & 3)*1024} {STREAM[0]}'
    vsp = opt.get('vsp', 3)
    NIN = opt.get('nin', 16)
    NE = opt.get('ne', 0)
    if duty:
        for hh in range(NE, min(NIN, 11)):
            g = opt.get('vs0', 1) + (hh - NE) * vsp
            sd.put(g, vox(hh))
            if hh & 3 == 3: sd.put(g + 1, 's_add_u32 s83, s83, 4096')
    if w == 3:
        for i in range(6): sd.put(opt.get('cl0', 1) + 4*i, f'buffer_store_dword v{VT2}, v{V12}, {S_WS}, s{52 + i} offen {"sc1" if i & 1 else sc}')
    zer = [f'v_mov_b64 v[{AP[VO[r >> 1]] + 2*(r & 1)}:{AP[VO[r >> 1]] + 2*(r & 1) + 1}], 0' for r in range(10)]
    for r in range(6): sd.valu(3*(r >> 1) + 3 + (r & 1), [zer[r]])
    wr = lambda acc, t: ('lds', f'ds_write_b32 v{VXW}, v{acc} offset:{t*1024}', f'VW{t}')
    vpost = lambda t: post(VACC0 + 4*t, VACC0 + 4*t) + [None] + pairup(VACC0 + 4*t, VACC0 + 4*t + 1) + [wr(VACC0 + 4*t, t)]
    vrd = lambda kb: ('lds', f'ds_read_b128 v[{VV+4*kb}:{VV+4*kb+3}], v{VAR} offset:{EXO + kb*1024}', f'V{kb}')
    for t, g0, per in ((0, 17, 1), (1, 24, 1), (2, 31, 2)):
        g = sd.valu(g0, vpost(t), per) + 2
        sd.put(g, ('wait', f'VW{t}')); sd.put(g, 's_barrier'); sd.lds(g, vrd(t), True)
    sd.valu(27, zer[6:])
    if opt.get('diag'): sd.put(g, lambda: stamp(a, opt, 0)); sd.put(29, lambda: stamp(a, opt, 5)); sd.put(42, lambda: stamp(a, opt, 7))
    base = ('s44', 's45', 's46')
    tail = []
    ops = []
    for q in range(3):
        b = PK + 4*q; ts_ = list(range(4*q, min(4*q + 4, 10)))
        for t in ts_:
            p_ = post(OA[t], PK + t, None, t >= 8)
            ops += [(f'a{t}{j}', x_, [], fin[t] + 2) for j, x_ in enumerate(p_[:-1])] + [(f'c{t}', p_[-1], [f'a{t}{j}' for j in range(len(p_) - 1)], 0)]
            if duty and 11 + t < NIN:
                if t == 1: ops.append(('s', 's_add_u32 s83, s83, 4096', ['x0'], 0))
                ops.append((f'x{t}', vox(11 + t), [f'c{t}'] + ([f'x{t-1}'] if t else []) + (['s'] if t == 1 else []), 0))
        ops.append((f'p{q}', f'v_permlane16_swap_b32 v{b}, v{b+1}', [f'c{ts_[0]}', f'c{ts_[1]}'], 0))
        last = [f'p{q}']
        if q < 2:
            ops += [(f'r{q}', f'v_permlane16_swap_b32 v{b+2}, v{b+3}', [f'c{ts_[2]}', f'c{ts_[3]}'], 0),
                    (f'u{q}', f'v_permlane32_swap_b32 v{b}, v{b+2}', [f'p{q}', f'r{q}'], 0), (f'w{q}', f'v_permlane32_swap_b32 v{b+1}, v{b+3}', [f'p{q}', f'r{q}'], 0)]
            last = [f'u{q}', f'w{q}']
        ops += [(f'b{q}', f'v_bfi_b32 v{b}, 1, {SSTEP}, v{b}', last[:1], 0), (f'st{q}', vom_store1(b, q, base, sc), last + [f'b{q}'], 0)]
    at = {}
    g = min(o[3] for o in ops if o[3])
    mem_at = set()
    while len(at) < len(ops):
        for nm, tx, dep, e in ops:
            if nm in at or g < e: continue
            sal = tx.startswith('s_')
            if not all(d in at and (at[d] < g or (at[d] == g and (sal or d == 's'))) for d in dep): continue
            if tx.startswith('v_'):
                if g < len(items) and sd.vbusy.get(g, 0) >= 2: continue
                sd.vbusy[g] = sd.vbusy.get(g, 0) + 1
            elif not sal:
                if g < len(items) and g in mem_at: continue
                mem_at.add(g)
            at[nm] = g; sd.put(g, tx)
        g += 1
    ex = []
    for g in sorted(g for g in sd.side if g >= len(items)): ex += sd.side.pop(g)
    tail = ex + tail
    sd.refills(ldsq)

    def top():
        preload_b(a, lg, ldsq)
        a(f's_bitcmp1_b32 {SSTEP}, 0'); a('s_cselect_b32 s50, 0x80008000, 0')
        if w == 3:
            a(f'v_mov_b32 v{VT2}, -1'); a(f's_and_b32 s35, {SH}, 15')
            for i in range(3):
                memp_off(a, 52 + 2*i, 2, 's35')
                if i < 2: a('s_add_u32 s35, s35, 16')
            a('s_cmp_ge_u32 s35, 40'); a(f's_cselect_b32 s56, {OOB}, s56'); a(f's_cselect_b32 s57, {OOB}, s57')
        if duty:
            memp_off(a, 77, 1)
            if opt.get('nopf'): a('s_mov_b32 s82, 0')
            else: a(f's_mov_b32 s82, {SSTEP}')
            a(f's_mul_i32 s83, s82, {40*40960}'); a('s_add_u32 s83, s83, s47'); a(f's_cmp_eq_u32 {SSTEP}, 63'); a(f's_cselect_b32 s83, {OOB}, s83')
        for r in range(0, 12, 2): a(f'v_mov_b64 v[{VACC0+r}:{VACC0+r+1}], 0')
        for r in range(0, 20, 2): a(f'v_mov_b64 v[{VOX+44+r}:{VOX+45+r}], 0')
        if duty:
            lk = a.label('Lk')
            a(f's_cmp_ge_u32 {SSTEP}, {64 if opt.get("notouch") else opt.get("self", SELF)}'); a(f's_cbranch_scc1 {lk}')
            check_flags(a, opt, 'Y16')
            a(f'{lk}:')
            for hh in range(NE):
                a(vox(hh))
                if hh & 3 == 3: a('s_add_u32 s83, s83, 4096')
    a(f's_mov_b32 {SSTEP}, 0')
    top()
    for kb in OWN[w]: a(a_read(kb, AP[kb])[1])
    a('s_waitcnt lgkmcnt(0)')
    a(f's_branch {lent}')
    a(f'{ltop}:')
    lg.reset()
    a('s_barrier')
    top()
    if opt.get('vsleep', 0): a(f's_sleep {opt.get("vsleep", 0)}')
    a('s_waitcnt lgkmcnt(0)')
    if opt.get('mg', 1): ool = gather_m(a, n, VACC1, VA + 24, VA + 36, {} if opt.get('diagv') else opt, (0, 5, 7), None, 1, 0)
    else: ool = gather(a, n, VACC1, {k: v for k, v in opt.items() if k != 'stamps'} if opt.get('diag') else opt, (0, 0 if opt.get('diag2') else 5, 7), opt.get('vrs', 0), VA + 24 if opt.get('vj', 1) else None)
    a(f'{lent}:')
    lg.reset(); lg.issue('GW')
    merge(a, lg, items, sd.side)
    for s_ in tail:
        a(s_)
    stamp(a, opt, 3)
    lcp, lcb, lcf, lce = [a.label('Lc') for _ in range(4)]
    a(f's_cmp_ge_u32 {SSTEP}, {4*NMB}'); a(f's_cbranch_scc1 {lcp}')
    a(f'{lcb}:')
    def ool5():
        a(f'{lcp}:')
        a(f's_lshl_b32 s52, {SSTEP}, 5'); a(f's_add_u32 s52, s52, {SH}'); a('s_mul_i32 s52, s52, 10240'); a(f's_add_u32 s52, s52, {VOM_OFF}')
        a('s_add_u32 s53, s52, 4096'); a('s_add_u32 s54, s52, 8192')
        for k in range(3): a(vom_store1(PK + 4*k, k, ('s52', 's53', 's54'), 'sc1'))
        a(f's_cmp_lt_u32 {SSTEP}, 63'); a(f's_cbranch_scc1 {lcb}')
        a('s_waitcnt vmcnt(0)'); a('s_barrier')
        if w == 3: cprog(a)
        a('s_waitcnt vmcnt(0)'); a('s_endpgm')
    ACC = VB + 28
    R = VB + 16
    def ldp():
        for c in range(n): a(f'buffer_load_dwordx4 v[{R+4*c}:{R+4*c+3}], v{VL16}, {S_WS}, s76 offen offset:{c*1024} sc1')
    lt, ltd, lp, ld = [a.label('Lp') for _ in range(4)]
    PT = VA
    def pwrite(c): a(f'ds_write_b128 v{VGW}, v[{R+4*c}:{R+4*c+3}] offset:{c*1024}')
    def pcheck_m(first):
        for c in range(n):
            b = R + 4*c
            if first: a(f's_waitcnt vmcnt({n - 1 - c})'); pwrite(c)
            a(f'v_bitop3_b32 v{PT+c}, v{b}, v{b+2}, s50 bitop3:0x7e')
            if w == 3 or not first: a(f'v_bitop3_b32 v{PT+3}, v{b+1}, v{b+3}, s50 bitop3:0x7e'); a(f'v_or_b32 v{PT+c}, v{PT+c}, v{PT+3}')
            a(f'v_cmp_gt_i32 {ML[c]}, 0, v{PT+c}')
        mask_or(a, ML[:n])
    MV = MR + ['s[30:31]']
    def ldv(ms=None):
        for q in range(4):
            if ms: a(f's_mov_b64 exec, {ms[q]}')
            a(f'buffer_load_dwordx4 v[{VB+4*q}:{VB+4*q+3}], v{V10}, {S_WS}, s{72+q} offen sc1')
        if ms: a('s_mov_b64 exec, -1')
    def vcheck():
        for q in range(4):
            if w < 2: a(f'v_bitop3_b32 v{PT+4+q}, v{VB+4*q}, {SSTEP}, 1 bitop3:0x28')
            else: a(f'v_bitop3_b32 v{PT+4+q}, v{VB+4*q}, v{VB+4*q+2}, {SSTEP} bitop3:0x7e'); a(f'v_and_b32 v{PT+4+q}, 1, v{PT+4+q}')
        for q in range(4): a(f'v_cmp_ne_u32 {MV[q]}, 0, v{PT+4+q}')
        mask_or(a, MV)
    if duty:
        for hh in range(NIN, 16):
            a(vox(hh))
            if hh & 3 == 3 and hh < 15: a('s_add_u32 s83, s83, 4096')
    if opt.get('diagv'): a('s_waitcnt vmcnt(0)'); stamp(a, opt, 5)
    gather_setup(a, 1)
    ts = opt.get('tsleep', 4) if duty else opt.get('nsleep', 9)
    if isinstance(ts, list): ts = ts[w]
    if ts: a(f's_sleep {ts}')
    SEP = opt.get('sep', 1)
    if duty and SEP:
        lv2 = a.label('Lp')
        if opt.get('diagv'): stamp(a, opt, 0)
        ldv()
        for r in range(4): a(f'v_mov_b32 v{ACC+r}, 0')
        a('s_waitcnt vmcnt(0)')
        if opt.get('diagv'): stamp(a, opt, 7)
        vcheck()
        a(f's_cbranch_scc1 {lv2}')
        stamp(a, opt, 2)
        if opt.get('psl', 1): a(f's_sleep {opt.get("psl", 1)}')
        ldp()
        a(f'{lv2}x:')
    elif duty:
        ldv()
        if opt.get('pat'): a(f's_sleep {opt["pat"] - ts - 1}')
        ldp()
        for r in range(4): a(f'v_mov_b32 v{ACC+r}, 0')
        a(f's_waitcnt vmcnt({n})'); vcheck()
        if not opt.get('novc'): a(f's_cbranch_scc1 {lt}')
        stamp(a, opt, 2)
    else: ldp()
    pcheck_m(True)
    a(f's_cbranch_scc1 {lp}')
    a(f'{ld}:')
    stamp(a, opt, 4)
    def ool2():
        PD = opt.get('pdep', 1) - 1; gap = opt.get('pgap', 2)
        ltb, lpb, lwr = [a.label('Lp') for _ in range(3)]
        if duty and SEP:
            a(f'{lv2}:')
            ldv(MV); ldp()
            a(f's_waitcnt vmcnt({n})'); vcheck()
            a(f's_cbranch_scc1 {lt}')
            stamp(a, opt, 2)
            a(f's_branch {lv2}x')
        if duty:
            a(f'{lt}:')
            a('s_waitcnt vmcnt(0)'); pcheck_m(False)
            for _ in range(PD): ldv(MV); ld_masked(a, n, R, 's76', ML); a(f's_sleep {gap}')
            a(f'{ltb}:')
            ldv(MV); ld_masked(a, n, R, 's76', ML)
            a(f's_waitcnt vmcnt({(4 + n)*PD})'); pcheck_m(False); a('s_cselect_b32 s51, 1, 0'); vcheck()
            a(f's_cbranch_scc0 {ltd}')
            budget_loop(a, ltb, ltd)
            a(f'{ltd}:')
            stamp(a, opt, 2)
            a('s_cmp_eq_u32 s51, 0'); a(f's_cbranch_scc1 {lwr}')
            if PD: a(f's_branch {lpb}')
        a(f'{lp}:')
        for _ in range(PD): ld_masked(a, n, R, 's76', ML); a(f's_sleep {gap}')
        a(f'{lpb}:')
        if opt.get('pback'): a(f's_sleep {opt["pback"]}')
        ld_masked(a, n, R, 's76', ML); a(f's_waitcnt vmcnt({n*PD})'); pcheck_m(False)
        a(f's_cbranch_scc0 {lwr}')
        budget_loop(a, lpb, lwr)
        a(f'{lwr}:')
        for c in range(n): pwrite(c)
        a(f's_branch {ld}')
    if not duty: a('s_waitcnt lgkmcnt(0)'); a('s_barrier'); a('s_waitcnt vmcnt(0)')
    if duty:
        bop = lambda pp: f'v[{VOX+8*pp}:{VOX+8*pp+7}]' if pp < 8 else f'v[{VB+8*(pp-8)}:{VB+8*(pp-8)+7}]'
        rest = [c for c in range(10) if c not in OWN[w]]
        a(smf(ACC, R, bop(OWN[w][0])))
        a('s_waitcnt lgkmcnt(0)'); a('s_barrier')
        for c in rest[:3]: a(f'ds_read_b128 v[{VA+4*c}:{VA+4*c+3}], v{VAR} offset:{c*1024}')
        k = 3
        for j in range(1, n):
            a(smf(ACC, R + 4*j, bop(OWN[w][j])))
            for c in rest[k:k+2]: a(f'ds_read_b128 v[{VA+4*c}:{VA+4*c+3}], v{VAR} offset:{c*1024}')
            k += 2
        for c in rest[k:]: a(f'ds_read_b128 v[{VA+4*c}:{VA+4*c+3}], v{VAR} offset:{c*1024}')
        for j, pp in enumerate(rest):
            a(f's_waitcnt lgkmcnt({len(rest)-1-j})' if pp != 8 else 's_waitcnt vmcnt(0) lgkmcnt(1)')
            a(smf(ACC, VA + 4*pp, bop(pp)))
        for s_ in post(ACC, ACC, None, True): a(s_)
        a(f'v_xor_b32 v{ACC}, s50, v{ACC}')
        for s_ in pairup(ACC, ACC + 1): a(s_)
        for so, fl in ([('s78', 'sc1'), ('s77', sc)] if opt.get('rfirst') else [('s77', sc), ('s78', 'sc1')]):
            a(f'buffer_store_dword v{ACC}, v{V12}, {S_WS}, {so} offen {fl}')
        stamp(a, opt, 6)
        if opt.get('diagp'): a('s_waitcnt vmcnt(1)'); stamp(a, opt, 2); a('s_waitcnt vmcnt(0)'); stamp(a, opt, 3)
    elif w == 3:
        lnc = a.label('Lnx')
        a(f's_cmp_lt_u32 {SSTEP}, {4*NMB}'); a(f's_cbranch_scc1 {lnc}')
        cprog(a)
        a(f'{lnc}:')
    stamp_flush(a, opt, 8)
    a(f's_add_u32 {SSTEP}, {SSTEP}, 1'); a(f's_branch {ltop}')
    ool(); ool2(); ool5()

def chain_main(a, opt):
    lvo = a.label('Lrole_vo')
    tstamp(a, opt, 0, (14, 15))
    STREAM[0] = opt.get('stream', 'sc1')
    a(f's_lshr_b32 {SX}, {SSLOT}, 5'); a(f's_and_b32 s67, {SSLOT}, 15'); a(f's_lshl_b32 {SH}, {SX}, 4'); a(f's_add_u32 {SH}, {SH}, s67')
    a(f's_mov_b32 {STMO}, {opt.get("tmo", 1 << 21)}'); a(f's_mov_b32 {SSTEP}, 0')
    srd(a, S_AUX, 's[38:39]', 8*640*2)
    a(f's_add_u32 {SMR}, s60, {MEMR_OFF + 0x7ffff}'); a(f's_and_b32 {SMR}, {SMR}, 0xfff80000'); a(f's_sub_u32 {SMR}, {SMR}, s60')
    a(f's_mul_i32 s58, {SWV}, 3072'); a(f's_lshl_b32 s67, {SWV}, 11'); a('s_add_u32 s67, s67, 12288'); a(f's_cmp_ge_u32 {SWV}, 2'); a('s_cselect_b32 s58, s67, s58')
    a(f's_mov_b32 {S_ONE0}, 0x00003f80'); a(f's_mov_b32 {S_ONE1}, 0x3f800000')
    a(f's_bitcmp1_b32 {SSLOT}, 4'); a(f's_cbranch_scc1 {lvo}')
    for role in ('qk', 'vo'):
        if role == 'vo': a(f'{lvo}:')
        if role == 'qk':
            srd(a, S_WA, 's[40:41]', 640*6144*2); srd(a, S_WB, 's[42:43]', 640*6144*2); qk_setup(a, opt)
        else:
            srd(a, S_WA, 's[44:45]', 640*6144*2); srd(a, S_WB, 's[46:47]', 640*6144*2); vo_setup(a, opt)
        l1, l2, l3 = a.label('Ls'), a.label('Ls'), a.label('Ls')
        a(f's_mov_b32 {SPC}, 0')
        a(f's_cmp_lg_u32 {SWV}, 0'); a(f's_cbranch_scc1 {l2}')
        mem0_load(a)
        a(f'{l2}:')
        def after_first(n, vm):
            if n == 0:
                a(f's_cmp_lg_u32 {SWV}, 0'); a(f's_cbranch_scc1 {l3}')
                mem0_write(a)
                a(f'{l3}:')
            if n == 1: rot_load(a, 172, 173); vm.issue('rot')
            if n == 13:
                rot_check(a, 172, 173, True)
                if role == 'vo':
                    vo_init_clear(a)
                    for _ in range(15): vm.issue('init')
                a(f's_cmp_lg_u32 {SWV}, 0'); a(f's_cbranch_scc1 {l1}')
                if role == 'qk': qk_init_clear(a)
                a(f's_lshl_b32 s67, 1, {SXCC}'); a(f'v_mov_b32 v{VT0}, s67'); a(f's_lshl_b32 s67, {SX}, 2'); a(f'v_mov_b32 v{VT1}, s67')
                a('s_mov_b64 exec, 1')
                a(f'buffer_atomic_or v{VT0}, v{VT1}, {S_DBG}, 0 offen sc1')
                a('s_mov_b64 exec, -1')
                a(f'{l1}:')
            assert 32 + opt.get('ldep', 6) + 1 <= 39
            if n == 32: a(f'v_lshlrev_b32 v173, 2, v0'); a(f'buffer_load_dword v172, v173, {S_DBG}, 0 offen sc1'); vm.issue('rdy')
            if n == 14 + opt.get('ldep', 6):
                l4 = a.label('Ls')
                a(f's_cmp_lg_u32 {SWV}, 0'); a(f's_cbranch_scc1 {l4}')
                a(f'v_mov_b32 v{VT0}, 1'); a(f'v_mov_b32 v{VT1}, {DBG_READY*4}')
                a('s_mov_b64 exec, 1')
                a(f'buffer_atomic_add v{VT0}, v{VT1}, {S_DBG}, 0 offen sc1')
                a('s_mov_b64 exec, -1')
                a(f'{l4}:')
        loader(a, role, after_first, opt.get('ldep', 6))
        tstamp(a, opt, 1, (14, 15))
        lp, ld, lslow = a.label('Lr'), a.label('Lrd'), a.label('Lslow')
        lc = a.label('Lrc')
        a(f'v_lshlrev_b32 v{VT1}, 2, v0'); a(f'v_mov_b32 v{VT0}, v172')
        a(f's_branch {lc}')
        a(f'{lp}:')
        a(f'buffer_load_dword v{VT0}, v{VT1}, {S_DBG}, 0 offen sc1'); a('s_waitcnt vmcnt(0)')
        a(f'{lc}:')
        a(f'v_readlane_b32 s67, v{VT0}, {DBG_READY}')
        a(f'v_readlane_b32 s68, v{VT0}, {DBG_VOTE}'); a(f's_cmp_lt_u32 s68, {NAREA*256}'); a('s_cselect_b32 s67, 0, s67')
        if not opt.get('noflags'):
            a(f'v_readlane_b32 s68, v{VT0}, {DBG_AREA}'); a(f's_cmp_lt_u32 s68, {NAREA}'); a('s_cselect_b32 s67, 0, s67')
        a(f's_cmp_eq_u32 {STMO}, 0'); a(f's_cbranch_scc1 {ld}')
        a(f's_sub_u32 {STMO}, {STMO}, 1')
        a('s_cmp_lt_u32 s67, 64'); a(f's_cbranch_scc1 {lp}')
        a(f'{ld}:')
        a(f'v_readlane_b32 s67, v{VT0}, {DBG_VOTE}'); a('s_and_b32 s67, s67, 255'); a(f's_cmp_gt_u32 s67, {NAREA//2}'); a('s_cselect_b32 s67, 1, 0')
        a(f'v_readlane_b32 s68, v{VT0}, 0'); a('s_cmp_gt_u32 s68, 15'); a('s_cselect_b32 s68, 1, 0'); a('s_xor_b32 s67, s67, s68'); a('s_lshl_b32 s67, s67, 13')
        if 'par' in opt: a(f's_mov_b32 s67, {opt["par"]*8192}')
        a(f's_add_u32 {SMR}, {SMR}, s67')
        a(f'v_readlane_b32 s67, v{VT0}, 0'); a(f'v_readlane_b32 s68, v{VT0}, 1')
        a('s_bcnt1_i32_b32 s67, s67'); a('s_bcnt1_i32_b32 s68, s68'); a('s_max_u32 s67, s67, s68')
        if opt.get('force_slow'): a('s_mov_b32 s67, 2')
        a('s_cmp_lg_u32 s67, 1'); a(f's_cbranch_scc1 {lslow}')
        for sc in ('', 'sc1'):
            if sc: a(f'{lslow}:')
            if role == 'qk':
                labs = [a.label('Lw') for _ in range(4)]
                for w in range(1, 4): a(f's_cmp_eq_u32 {SWV}, {w}'); a(f's_cbranch_scc1 {labs[w]}')
                for w in range(4):
                    a(f'{labs[w]}:'); qk_loop(a, w, sc, opt)
            else:
                labs = [a.label('Lw') for _ in range(5)]
                a(f's_cmp_eq_u32 {SWV}, 1'); a(f's_cbranch_scc1 {labs[1]}'); a(f's_cmp_eq_u32 {SWV}, 3'); a(f's_cbranch_scc1 {labs[4]}')
                a(f's_cmp_ge_u32 {SDT}, 40'); a(f's_cbranch_scc1 {labs[3]}'); a(f's_cmp_eq_u32 {SWV}, 2'); a(f's_cbranch_scc1 {labs[2]}')
                for i, (w, duty) in enumerate([(0, True), (1, True), (2, True), (2, False), (3, False)]):
                    a(f'{labs[i]}:'); vo_loop(a, w, duty, sc, opt)
```

```python
from common import *

SC = 0.07216878364870322 * 1.4426950408889634

def wfrag(f, half=None):
    if f < 32: k, b = 'a', f * 8
    else: k, b = 'v', 176 + (f - 32) * 8
    if half is None: return f'{k}[{b}:{b+7}]'
    return k, b + 4 * half

VL16, VGW, VAR, VFR, VXW, VXS, VDR, VIDX, V9, V10, V11, V12, VT0, VT1, VT2 = range(1, 16)
VA = 16
VACC0 = 56
VACC1 = 68
VB = 80
VKX = 112
VQF = 136
VTMP = 160
VOX = 112
SSTEP, SH, SX, SDT = 's62', 's63', 's64', 's66'
SMASK8 = 's[70:71]'
SCM = [f's[{72+2*r}:{73+2*r}]' for r in range(4)]
SCHK = 's80'
S_ONE0, S_ONE1 = 's100', 's101'
NCH = [3, 3, 2, 2]
OWN = [[0, 1, 2], [3, 4, 5], [6, 7], [8, 9]]
REGKB = [0, 1, 3, 4, 6, 7, 8]; LDSKB = [2, 5, 9]
REGT = [0, 2, 3, 4, 6, 7, 8]; LDST = [1, 5, 9]
def yfrag(tile, kb):
    if tile in REGT: return 'reg', 21 + REGT.index(tile)*3 + kb
    return 'lds', 9 + LDST.index(tile)*3 + kb
def xfrag(kb, t, second):
    if kb in REGKB: return 'reg', t*7 + REGKB.index(kb) + (21 if second else 0)
    return 'lds', LDSKB.index(kb)*3 + t + (9 if second else 0)
def apos(w, order):
    ap = {kb: VA + 8*c for c, kb in enumerate(OWN[w])}
    free = [VA + 4*i for i in range(10) if VA + 4*i not in ap.values()]
    for kb in order:
        if kb not in ap: ap[kb] = free.pop(0)
    return ap
STREAM = ['sc1 nt']

def tile_pat(l):
    g, c = l >> 4, l & 15
    return (4*g + 2*(c >> 3) + (c & 1))*16 + ((c >> 1) & 3)*4
def arow(i, h): return 4*(i >> 1) + 2*h + (i & 1)

def common_addr(a):
    T = VTMP
    a(f'v_lshlrev_b32 v{VL16}, 4, v0')
    a(f's_mul_i32 s6, {SWV}, 3'); a(f's_lshl_b32 s7, {SWV}, 1'); a('s_add_u32 s7, s7, 2'); a('s_min_u32 s6, s6, s7')
    a(f's_lshl_b32 {SCHK}, s6, 10')
    a(f'v_add_u32 v{VAR}, {LDS_MEM}, v{VL16}'); a(f'v_add_u32 v{VGW}, {SCHK}, v{VAR}')
    lanefn(a, VFR, lambda l: l*16, T, 36864)
    lanefn(a, VIDX, lambda l: 0x4444 + ((l >> 1) & 1)*0xaaaa, T)
    a(f'v_and_b32 v{T}, 8, v0'); a(f'v_cmp_ne_u32 {SMASK8}, 0, v{T}')

def loader(a, role, after_first=None, dep=11):
    vm = Trk(a, 'vmcnt', 63)
    T = 160
    VD0, VD1, VR0 = T, T + 1, T + 2
    dma_voff(a, VD0, 12288, T + 8, T + 9); dma_voff(a, VD1, 1280, T + 8, T + 9)
    for aa in range(2):
        R = VR0 + 3*aa
        row = lambda l: 4*((l >> 4) & 1) + 2*aa + ((l >> 2) & 1)
        lanefn(a, T + 8, lambda l: row(l) & 6, T + 10); lanefn(a, T + 9, lambda l: (l >> 1) & 1, T + 10, 2)
        a(f'v_xor_b32 v{T+9}, v{T+9}, v{T+8}')
        lanefn(a, R, lambda l: (l >> 5)*2048 + ((l >> 3) & 1)*1024 + row(l)*128 + (l & 1)*8, T + 10)
        a(f'v_lshl_add_u32 v{R}, v{T+9}, 4, v{R}')
        a(f'v_add_u32 v{R+1}, 49152, v{R}'); a(f'v_add_u32 v{R+2}, 98304, v{R}')
    a(f's_mul_i32 s68, {SH}, 384'); a(f's_mul_i32 s67, {SWV}, {8*12288}'); a('s_add_u32 s68, s68, s67')
    a(f's_mul_i32 s69, {SH}, {192*1280}'); a(f's_mul_i32 s67, {SWV}, {8*1280}'); a('s_add_u32 s69, s69, s67')
    a(f's_lshl_b32 s7, {SWV}, 10')
    k2 = 'X' if role == 'qk' else 'Y'
    slabs = [('X', S_WA, i) for i in range(14)] + [(k2, S_WB, i) for i in range(14)] + \
            [('X', S_WA, i) for i in range(14, 20)] + [(k2, S_WB, i) for i in range(14, 20)]
    def dma(n):
        kind, sr, i = slabs[n]
        for c in range(3):
            a(f's_add_u32 m0, s7, {(n % 12)*LDS_SLAB + c*4096}')
            if kind == 'X': a(f's_add_u32 s67, s68, {(2*(REGKB + LDSKB)[i >> 1] + (i & 1))*32*12288 + c*128}')
            else: a(f's_add_u32 s67, s69, {((i&1)*96 + c*32)*1280 + (REGT + LDST)[i >> 1]*128}')
            a(f'buffer_load_dwordx4 v{VD0 if kind=="X" else VD1}, {sr}, s67 offen lds')
            vm.issue(n)
    def dest(n, c):
        kind, sr, i = slabs[n]
        second = (n >= 14) if n < 28 else (n >= 34)
        if kind == 'X': t, kb, half = c, i >> 1, i & 1; f = t * 7 + kb; lf = (kb - 7) * 3 + t
        else:
            ks = (i & 1) * 3 + c; kb, half = ks >> 1, ks & 1; tile = i >> 1
            f = tile * 3 + kb; lf = (tile - 7) * 3 + kb
        if second: f += 21; lf += 9
        return f, lf, half
    def reads(n):
        slot = n % 12
        base = VR0 + slot // 4; off0 = (slot % 4) * LDS_SLAB
        for c in range(3):
            f, lf, half = dest(n, c)
            if n < 28: k, b = wfrag(f, half)
            else: k, b = 'v', 16 + lf * 8 + half * 4
            for aa in range(2):
                a(f'ds_read_b64_tr_b16 {k}[{b+2*aa}:{b+2*aa+1}], v{base + 3*aa} offset:{off0 + c*4096}')
    for n in range(dep): dma(n)
    for n in range(40):
        vm.wait(n)
        a('s_waitcnt lgkmcnt(0)')
        a('s_barrier')
        if n + dep < 40: dma(n + dep)
        reads(n)
        after_first(n, vm)
    a('s_waitcnt lgkmcnt(0)'); a('s_barrier')
    for lf in range(18):
        for half in range(2):
            b = 16 + lf * 8 + half * 4
            a(f'ds_write_b128 v{VFR}, v[{b}:{b+3}] offset:{lf*2048 + half*1024}')
    a('s_waitcnt lgkmcnt(0)')

def mem0_load(a):
    lanefn(a, 18, lambda l: (l & 7)*1280 + (l >> 3)*16, 16)
    lanefn(a, 19, lambda l: LDS_MEM + (l >> 4)*256 + arow(l & 7, (l >> 3) & 1)*16, 16)
    for n in range(10): a(f'buffer_load_dwordx4 v[{24+4*n}:{27+4*n}], v18, {S_AUX}, 0 offen offset:{n*128}')
def mem0_write(a):
    for n in range(10): a(f'ds_write_b128 v19, v[{24+4*n}:{27+4*n}] offset:{n*1024}')

def maxchk(a, regs, first=True):
    regs = list(regs)
    if first:
        a(f'v_max3_u32 v{VT0}, v{regs[0]}, v{regs[1]}, v{regs[2]}'); regs = regs[3:]
    while regs:
        if len(regs) >= 2: a(f'v_max3_u32 v{VT0}, v{VT0}, v{regs[0]}, v{regs[1]}'); regs = regs[2:]
        else: a(f'v_max_u32 v{VT0}, v{VT0}, v{regs[0]}'); regs = []


def gather_setup(a, step_add=0):
    a(f's_add_u32 s67, {SSTEP}, {step_add}'); a('s_and_b32 s67, s67, 3'); a('s_lshl_b32 s67, s67, 1')
    a(f's_add_u32 s68, s67, 1'); a(f's_sub_u32 s68, s68, {SX}'); a(f's_add_u32 s67, s67, {SX}')
    a('s_mul_i32 s67, s67, 10240'); a('s_lshl_b32 s68, s68, 15')
    a(f's_add_u32 s33, s68, {SMR}'); a('s_add_u32 s33, s33, s58')
    a(f's_add_u32 s32, s67, {SCHK}'); a(f's_add_u32 s32, s32, {MEML_OFF}')

def gather(a, n, R, opt, st, rsleep=0, R2=None, det=None):
    ld = lambda r, so: [a(f'buffer_load_dwordx4 v[{r+4*c}:{r+4*c+3}], v{VL16}, {S_WS}, {so} offen offset:{c*1024} sc1') for c in range(n)]
    def chk(r, k=0): a(f's_waitcnt vmcnt({k})'); maxchk(a, range(r, r + 4*n)); a(f'v_cmp_eq_u32 vcc, -1, v{VT0}')
    l1, l1ok, l2, l2ok = [a.label('Lg') for _ in range(4)]
    if det is not None:
        l0, l0d = a.label('Lg'), a.label('Lg')
        a(f'{l0}:')
        a(f'buffer_load_dword v{R}, v{det}, {S_WS}, s32 offen sc1'); a('s_waitcnt vmcnt(0)'); a(f'v_cmp_eq_u32 vcc, -1, v{R}')
        poll_tail(a, l0, l0d)
    stamp(a, opt, st[0])
    if R2 is None:
        a(f'{l1}:')
        ld(R, 's32'); chk(R)
        poll_tail(a, l1, l1ok)
    else:
        ld(R, 's32'); ld(R2, 's33'); chk(R, n)
        a(f's_cbranch_vccnz {l1}')
        a(f'{l1ok}:')
    stamp(a, opt, st[1])
    for c in range(n):
        for i in range(4):
            a(f'v_lshlrev_b32 v{VA+8*c+2*i}, 16, v{R+4*c+i}'); a(f'v_and_b32 v{VA+8*c+2*i+1}, 0xffff0000, v{R+4*c+i}')
    Q = R if R2 is None else R2
    if R2 is None:
        if rsleep: a(f's_sleep {rsleep}')
        ld(Q, 's33')
    chk(Q)
    a(f's_cbranch_vccnz {l2}')
    a(f'{l2ok}:')
    stamp(a, opt, st[2])
    for c in range(n):
        b = VA + 8*c
        for i in range(4):
            a(f'v_dot2c_f32_bf16 v{b+2*i}, {S_ONE0}, v{Q+4*c+i}'); a(f'v_dot2c_f32_bf16 v{b+2*i+1}, {S_ONE1}, v{Q+4*c+i}')
        for i in range(4): a(f'v_cvt_pk_bf16_f32 v{b+i}, v{b+2*i}, v{b+2*i+1}')
        a(f'ds_write_b128 v{VGW}, v[{b}:{b+3}] offset:{c*1024}')
    def outofline():
        if R2 is not None:
            a(f'{l1}:')
            ld(R, 's32'); ld(R2, 's33'); chk(R, n)
            a(f's_cbranch_vccz {l1ok}')
            budget_loop(a, l1, l1ok)
        a(f'{l2}:')
        ld(Q, 's33'); chk(Q)
        a(f's_cbranch_vccz {l2ok}')
        budget_loop(a, l2, l2ok)
    return outofline

ML = ['s[16:17]', 's[18:19]', 's[20:21]']; MR = ['s[22:23]', 's[24:25]', 's[26:27]']; MOR = 's[28:29]'
def mask_or(a, ms):
    a(f's_or_b64 {MOR}, {ms[0]}, {ms[1]}')
    for m in ms[2:]: a(f's_or_b64 {MOR}, {MOR}, {m}')
def ld_masked(a, n, r, so, ms=None):
    for c in range(n):
        if ms: a(f's_mov_b64 exec, {ms[c]}')
        a(f'buffer_load_dwordx4 v[{r+4*c}:{r+4*c+3}], v{VL16}, {S_WS}, {so} offen offset:{c*1024} sc1')
    if ms: a('s_mov_b64 exec, -1')

def gather_m(a, n, R, Q, T, opt, st, det, dep, gap, spec=1):
    def chk(r, ms, k):
        a(f's_waitcnt vmcnt({k})')
        for c in range(n): a(f'v_max3_u32 v{T+c}, v{r+4*c}, v{r+4*c+1}, v{r+4*c+2}')
        for c in range(n): a(f'v_max_u32 v{T+c}, v{T+c}, v{r+4*c+3}')
        for c in range(n): a(f'v_cmp_eq_u32 {ms[c]}, -1, v{T+c}')
        mask_or(a, ms[:n])
    l1, l1ok, l2, l2b, l2ok = [a.label('Lg') for _ in range(5)]
    if det is not None:
        l0, l0d = a.label('Lg'), a.label('Lg')
        a(f'{l0}:')
        a(f'buffer_load_dword v{R}, v{det}, {S_WS}, s32 offen sc1'); a('s_waitcnt vmcnt(0)'); a(f'v_cmp_eq_u32 vcc, -1, v{R}')
        poll_tail(a, l0, l0d)
    stamp(a, opt, st[0])
    ld_masked(a, n, R, 's32'); ld_masked(a, n, Q, 's33'); chk(R, ML, n)
    a(f's_cbranch_scc1 {l1}')
    a(f'{l1ok}:')
    stamp(a, opt, st[1])
    def expand():
        for c in range(n):
            for i in range(4):
                a(f'v_lshlrev_b32 v{VA+8*c+2*i}, 16, v{R+4*c+i}'); a(f'v_and_b32 v{VA+8*c+2*i+1}, 0xffff0000, v{R+4*c+i}')
    def add(c, check=False):
        b = VA + 8*c; q = Q + 4*c
        if check: a(f's_waitcnt vmcnt({n-1-c})'); a(f'v_max3_u32 v{T}, v{q}, v{q+1}, v{q+2}')
        for i in range(4):
            a(f'v_dot2c_f32_bf16 v{b+2*i}, {S_ONE0}, v{q+i}'); a(f'v_dot2c_f32_bf16 v{b+2*i+1}, {S_ONE1}, v{q+i}')
        if check: a(f'v_max_u32 v{T}, v{T}, v{q+3}'); a(f'v_cmp_eq_u32 {MR[c]}, -1, v{T}')
        for i in range(4): a(f'v_cvt_pk_bf16_f32 v{b+i}, v{b+2*i}, v{b+2*i+1}')
        a(f'ds_write_b128 v{VGW}, v[{b}:{b+3}] offset:{c*1024}')
    expand()
    if spec:
        for c in range(n): add(c, True)
        mask_or(a, MR[:n])
        a(f's_cbranch_scc1 {l2}')
        a(f'{l2ok}:')
        stamp(a, opt, st[2])
    else:
        chk(Q, MR, 0)
        a(f's_cbranch_scc1 {l2}')
        a(f'{l2ok}:')
        stamp(a, opt, st[2])
        for c in range(n): add(c)
    def outofline():
        a(f'{l1}:')
        ld_masked(a, n, R, 's32', ML); chk(Q, MR, n)
        ld_masked(a, n, Q, 's33', MR); chk(R, ML, n)
        a(f's_cbranch_scc0 {l1ok}')
        budget_loop(a, l1, l1ok)
        a(f'{l2}:')
        for _ in range(dep - 1):
            ld_masked(a, n, Q, 's33', MR); a(f's_sleep {gap}')
        a(f'{l2b}:')
        ld_masked(a, n, Q, 's33', MR)
        if spec: expand()
        chk(Q, MR, n*(dep - 1))
        if not spec:
            a(f's_cbranch_scc0 {l2ok}')
            budget_loop(a, l2b, l2ok)
            return
        l2c, l2d = a.label('Lg'), a.label('Lg')
        a(f's_cbranch_scc0 {l2d}')
        a(f'{l2c}:')
        ld_masked(a, n, Q, 's33', MR); chk(Q, MR, 0)
        a(f's_cbranch_scc0 {l2d}')
        budget_loop(a, l2c, l2d)
        a(f'{l2d}:')
        for c in range(n): add(c)
        a(f's_branch {l2ok}')
    return outofline

def a_read(kb, reg):
    return ('lds', f'ds_read_b128 v[{reg}:{reg+3}], v{VAR} offset:{kb*1024}', f'A{kb}')
def frag_reads(lf, slot):
    return [('lds', f'ds_read_b128 v[{VB+8*slot+4*x}:{VB+8*slot+4*x+3}], v{VFR} offset:{lf*2048 + x*1024}', f'F{lf}') for x in range(2)]
def smf(acc, A, B): return f'v_smfmac_f32_16x16x64_bf16 v[{acc}:{acc+3}], v[{A}:{A+3}], {B}, v{VIDX}'
def post(acc, out, scale=None, pk=False):
    if pk: r = [f'v_pk_add_f32 v[{acc}:{acc+1}], v[{acc}:{acc+1}], v[{acc+2}:{acc+3}]']
    else: r = [f'v_add_f32 v{acc+i}, v{acc+i}, v{acc+2+i}' for i in range(2)]
    if scale: r += [f'v_mul_f32 v{acc+i}, {scale}, v{acc+i}' for i in range(2)]
    return r + [f'v_cvt_pk_bf16_f32 v{out}, v{acc}, v{acc+1}']

def allred(op, v, t, stages=(16, 32)):
    r = []
    for st in stages: r += [f'v_mov_b32 v{t}, v{v}', f'v_permlane{st}_swap_b32 v{v}, v{t}', f'{op} v{v}, v{v}, v{t}']
    return r

def stamp_flush(a, opt, n):
    if not opt.get('stamps'): return
    a('s_waitcnt lgkmcnt(0)')
    a(f's_lshl_b32 s67, {SSLOT}, 2'); a(f's_add_u32 s67, s67, {SWV}'); a('s_lshl_b32 s67, s67, 6'); a(f's_add_u32 s67, s67, {SSTEP}')
    a('s_lshl_b32 s67, s67, 6'); a(f's_add_u32 s67, s67, {STAMP_OFF}')
    a(f'v_lshlrev_b32 v{VT1}, 2, v0')
    for i in range(n): a(f'v_writelane_b32 v{VT0}, s{STAMP0+2*i}, {i}')
    a('s_mov_b64 exec, 0xffff')
    a(f'buffer_store_dword v{VT0}, v{VT1}, {S_WS}, s67 offen')
    a('s_mov_b64 exec, -1')

SPC = 's60'
SMR = 's59'
SELF = 3
def check_flags(a, opt, kind, skip=None, early=None):
    if opt.get('noflags'): return
    lp, ld = a.label('Lf'), a.label('Lfd')
    a(f's_sub_u32 s61, s82, {LEAD-4}'); a('s_max_i32 s61, s61, 0'); a('s_lshr_b32 s61, s61, 2'); a('s_add_u32 s61, s61, s82')
    a(f's_cmp_gt_u32 {SPC}, s61'); a(f's_cbranch_scc1 {ld}')
    if early:
        a(f's_waitcnt vmcnt({early[1]})')
        for r in (8, 4, 2, 1): a(f'v_min_u32_dpp v{early[0]}, v{early[0]}, v{early[0]} row_ror:{r} row_mask:0xf bank_mask:0xf')
        a(f'v_readfirstlane_b32 {SPC}, v{early[0]}')
        a(f's_cmp_gt_u32 {SPC}, s61'); a(f's_cbranch_scc1 {ld}')
    if kind == 'K': a(f'v_and_b32 v{VT1}, 15, v0'); a(f'v_min_u32 v{VT1}, 2, v{VT1}'); a(f'v_lshlrev_b32 v{VT1}, 7, v{VT1}')
    elif kind == 'Y16': a(f'v_and_b32 v{VT1}, 15, v0'); a(f'v_lshlrev_b32 v{VT1}, 7, v{VT1}')
    else: a(f'v_and_b32 v{VT1}, 3, v0'); a(f'v_mul_u32_u24 v{VT1}, {40*128}, v{VT1}')
    a(f'{lp}:')
    a(f'buffer_load_dword v{VT0}, v{VT1}, {S_WS}, s81 offen sc1'); a('s_waitcnt vmcnt(0)')
    for r in (8, 4, 2, 1): a(f'v_min_u32_dpp v{VT0}, v{VT0}, v{VT0} row_ror:{r} row_mask:0xf bank_mask:0xf')
    a(f'v_readfirstlane_b32 {SPC}, v{VT0}')
    a(f's_cmp_gt_u32 {SPC}, s61'); a(f's_cbranch_scc1 {ld}')
    if skip: a(f's_cmp_lt_u32 s82, {opt.get("self", SELF)}'); a(f's_cbranch_scc1 {skip}')
    budget_loop(a, lp, ld)
    a(f'{ld}:')

def cprog(a):
    a('s_waitcnt vmcnt(0)')
    a(f's_lshl_b32 s67, {SSLOT}, 7'); a(f's_add_u32 s67, s67, {CPRG_OFF}'); a(f's_add_u32 s68, {SSTEP}, 1'); a(f'v_mov_b32 v{VT0}, s68'); a(f'v_mov_b32 v{VT1}, 0')
    a('s_mov_b64 exec, 1')
    a(f'buffer_store_dword v{VT0}, v{VT1}, {S_WS}, s67 offen sc1')
    a('s_mov_b64 exec, -1')

def load_frags6(a, dst, base_off, ct, seg='s82'):
    a(f's_lshl_b32 s67, {seg}, 5'); a(f's_add_u32 s67, s67, {SH}'); a('s_mul_i32 s67, s67, 12288')
    a(f's_add_u32 s67, s67, {base_off + ct*6144}'); a('s_add_u32 s68, s67, 4096')
    for kk in range(6):
        a(f'buffer_load_dwordx4 v[{dst+4*kk}:{dst+4*kk+3}], v{VL16}, {S_WS}, {"s67" if kk < 4 else "s68"} offen offset:{(kk&3)*1024} {STREAM[0]}')

def build_stream(first_items, second_items):
    items = []; ldsq = []; idx2 = {}
    def add(it):
        kind, acc, A, ref, needs = it
        if kind == 'reg': items.append((smf(acc, A, wfrag(ref)), needs))
        elif kind == 'lds':
            sl = len(ldsq) % 4; ldsq.append((len(items), ref, sl))
            items.append((smf(acc, A, f'v[{VB+8*sl}:{VB+8*sl+7}]'), needs + [f'F{ref}']))
        else: items.append((ref, needs))
    for it in first_items: add(it)
    n = 0
    for it in second_items:
        if it[0] != 'raw': idx2[n] = len(items); n += 1
        add(it)
    return items, ldsq, idx2

class Sides:
    def __init__(self): self.side = {}; self.busy = set(); self.vbusy = {}
    def put(self, g, r): self.side.setdefault(g, []).append(r)
    def lds(self, g, r, force=False):
        if not force:
            while g in self.busy: g += 1
        self.put(g, r); self.busy.add(g); return g
    def valu(self, g, instrs, per=1):
        last = g - 1; end = g
        for s in instrs:
            if s is None: g = last + 2; continue
            if isinstance(s, tuple): self.lds(last + 1, s, True); end = max(end, last + 2); continue
            if not s.startswith('v_'): self.put(last + 1, s); end = max(end, last + 2); continue
            while self.vbusy.get(g, 0) >= per: g += 1
            self.put(g, s); self.vbusy[g] = self.vbusy.get(g, 0) + 1; last = g; end = max(end, g + 1)
        self.nxt = g
        return end
    def refills(self, ldsq):
        for n in range(len(ldsq) - 4):
            g = ldsq[n][0]
            lim = ldsq[n+4][0] - 6
            for r in frag_reads(ldsq[n+4][1], ldsq[n][2]):
                g2 = g
                while g2 in self.busy: g2 += 1
                if g2 <= lim: g = self.lds(g2, r)
                else: g = self.lds(max(g, min(lim, g + 1)), r, True)
                assert g < ldsq[n+4][0] - 1, (n, g, ldsq[n+4])

DPP8 = 'row_ror:8 row_mask:0xf bank_mask:0xf'
def dense_reads(dst, off, tagp, kks=range(6)):
    return [('lds', f'ds_read_b64_tr_b16 v[{dst+4*kk+2*x}:{dst+4*kk+2*x+1}], v{VDR} offset:{off + (2*kk+x)*256}', f'{tagp}{kk}')
            for kk in kks for x in range(2)]

def preload_b(a, lg, ldsq):
    for n in range(4):
        for r in frag_reads(ldsq[n][1], ldsq[n][2]): a(r[1]); lg.issue(r[2])

QORD = [[0, 1, 2, 3, 4, 5, 6, 7, 9, 8], [3, 4, 5, 0, 1, 2, 6, 7, 9, 8], [6, 7, 2, 0, 1, 5, 3, 4, 9, 8], [8, 9, 0, 1, 2, 3, 4, 6, 5, 7]]
KORD = [0, 2, 1, 3, 5, 4, 6, 9, 7, 8]

def qk_setup(a, opt):
    common_addr(a)
    T = VTMP
    rho = lambda l: arow(l & 7, (l >> 3) & 1)
    lanefn(a, VXW, lambda l: LDS_MEM + (l & 15)*16 + (l >> 4)*4, T, 256)
    lanefn(a, VDR, lambda l: LDS_MEM + (l >> 2)*16 + (l & 1)*8, T)
    lanefn(a, V9, lambda l: (l >> 5)*256 + rho(l)*16 + ((l >> 4) & 1)*8, T)
    lanefn(a, V10, lambda l: rho(l)*16 + ((l >> 4) & 1)*4, T)
    lanefn(a, V11, lambda l: LDS_MEM + 3072 + l*16, T)
    lanefn(a, V12, lambda l: LDS_MEM + ((l >> 3) & 1)*512 + arow(l & 7, l >> 5)*16 + ((l >> 4) & 1)*8, T)
    a(f's_and_b32 s68, {SH}, 15'); a('s_min_u32 s68, s68, 9'); a('s_lshl_b32 s68, s68, 10'); a(f'v_add_u32 v{V12}, s68, v{V12}')
    lanefn(a, VXS, lambda l: ((l >> 3) & 1)*1024 + (l >> 4)*256 + (l & 7)*16, T)
    a(f's_mul_i32 s67, {SX}, 12288'); a(f's_add_u32 s67, s67, {PA_OFF}')
    a(f's_and_b32 s68, {SH}, 15'); a('s_lshl_b32 s76, s68, 9'); a('s_add_u32 s76, s76, s67')
    a('s_lshr_b32 s77, s68, 1'); a('s_lshl_b32 s77, s77, 8'); a('s_add_u32 s77, s77, s67')
    a('s_and_b32 s68, s68, 1'); a('s_lshl_b32 s68, s68, 3'); a('s_add_u32 s77, s77, s68'); a('s_add_u32 s77, s77, 8192')

def qk_init_clear(a):
    a(f'v_mov_b32 v{VA+16}, -1'); a(f'v_mov_b32 v{VA+17}, -1')
    a(f'buffer_store_dwordx2 v[{VA+16}:{VA+17}], v{V9}, {S_WS}, s76 offen sc1')
    a(f'buffer_store_dword v{VA+16}, v{V10}, {S_WS}, s77 offen sc1')

def mf(D, A, B, first): return f'v_mfma_f32_16x16x32_bf16 v[{D}:{D+3}], v[{A}:{A+3}], v[{B}:{B+3}], ' + ('0' if first else f'v[{D}:{D+3}]')

def stream_head(sd, w, order, AP, opt, rest):
    g = opt.get('gb1', 3)
    sd.put(g, ('wait', 'GW')); sd.put(g, 's_barrier')
    for kb in order:
        if kb not in OWN[w]:
            sd.lds(g, a_read(kb, AP[kb]), True); g += 1
    return g

def qk_loop(a, w, sc, opt):
    VZ = VTMP + 15
    lg = Trk(a, 'lgkmcnt', 15)
    ltop, lent, lfin = a.label('Lqk'), a.label('Lqkent'), a.label('Lqkfin')
    QEX = LDS_EX - LDS_MEM
    SACC, SM = VTMP, VTMP + 4
    QO = QORD[w]
    AP = apos(w, QO)
    seq = [(kb, t) for kb in QO[:6] for t in range(3)] + [(kb, t) for t in range(3) for kb in QO[6:]]
    first = [(xfrag(kb, t, 0)[0], VACC0 + 4*t, AP[kb], xfrag(kb, t, 0)[1], [f'A{kb}']) for kb, t in seq]
    second = []
    n = 0
    SX0 = opt.get('sx0', 19); QS = opt.get('qscale', 0)
    for t in range(3):
        for kb in KORD:
            second.append((xfrag(kb, t, 1)[0], VACC1 + 4*t, AP[kb], xfrag(kb, t, 1)[1], []))
            if w >= 2 and n == SX0:
                for kk in range(6): second.append(('raw', 0, 0, mf(SACC, VKX + 4*kk, VQF + 4*kk, kk == 0), [f'Q{kk}']))
            if w == 0 and n == 29:
                for kk in range(4): second.append(('raw', 0, 0, mf(SM, VKX + 4*kk, VQF + 4*kk, kk == 0), [f'K{kk}', f'Q{kk}']))
            n += 1
    items, ldsq, k2 = build_stream(first, second)
    sd = Sides()
    stream_head(sd, w, QO, AP, opt, None)
    sd.put(opt.get('gb1', 3), lambda o_=opt: stamp(a, o_, 1))
    pub_rd = [('lds', f'ds_read_b64 v[{VKX+2*x}:{VKX+2*x+1}], v{V12} offset:{x*256}', 'PUB') for x in range(2)]
    pub_st = f'buffer_store_dwordx4 v[{VKX}:{VKX+3}], v{VXS}, {S_WS}, s44 offen sc1'
    if w == 1:
        sd.put(0, f'buffer_store_dword v{VT1}, v{VT2}, {S_WS}, s46 offen sc1')
        for r in pub_rd: sd.lds(18, r)
        sd.put(25, ('wait', 'PUB')); sd.put(opt.get('pubg', 25), pub_st)
        for j in range(6):
            sd.put(1 + 3*j, f'buffer_load_dword v{VKX+4+j}, v{V9}, {S_WS}, s{[45, 48, 49][j >> 1]} offen sc1')
            if j % 2 == 0: sd.put(2 + 3*j, f's_add_u32 s{[45, 48, 49][j >> 1]}, s{[45, 48, 49][j >> 1]}, 8192')
    if w == 0:
        sd.put(opt.get('kt0', 1), f'buffer_load_dword v{VTMP+13}, v{V12}, {S_WS}, s45 offen sc1')
        sd.put(opt.get('kt0', 1) + 4, f'buffer_load_dword v{VTMP+13}, v{VXS}, {S_WS}, s45 offen sc1')
        if opt.get('async', 0): sd.put(19, f'buffer_load_dword v{VTMP+14}, v{VT2}, {S_WS}, s54 offen sc1')
    if w == 1 and opt.get('async', 0): sd.put(opt.get('w1p', 21), f'buffer_load_dword v{V11}, v{V10}, {S_WS}, s54 offen sc1')
    wr = lambda acc, t, off, tag: ('lds', f'ds_write_b32 v{VXW}, v{acc} offset:{off + t*1024}', tag)
    for t in range(3): gq = sd.valu([23, 27, 31][t], post(VACC0 + 4*t, VACC0 + 4*t, 's52' if QS else None) + [wr(VACC0 + 4*t, t, QEX, 'QW')], opt.get('qper', [1, 1, 2])[t])
    gb = gq + opt.get('gba', [3, 1, 4, 4])[w]
    if w != 1: sd.put(gb, f's_waitcnt vmcnt({0 if w else 3})')
    sd.put(gb, ('wait', 'QW')); sd.put(gb, 's_barrier')
    if opt.get('diag'): sd.put(gb, lambda: stamp(a, opt, 0))
    if w >= 2:
        for i, r in enumerate(dense_reads(VQF, QEX, 'Q')): sd.lds(gb + (i * opt.get('qspan', 10)) // 12, r, True)
    gk = 0
    for t in range(2): gk = sd.valu(k2[10*t + 9] + 2, post(VACC1 + 4*t, VACC1 + 4*t) + [wr(VACC1 + 4*t, t, 0, 'KW')])
    gB = gk + opt.get('gbb', [1, 1, 3, 3])[w]
    sd.put(gB, ('wait', 'KW')); sd.put(gB, 's_barrier')
    assert gB < len(items)
    if w == 0:
        for i, r in enumerate(dense_reads(VKX, 0, 'K', range(4))): sd.lds(gB + i // opt.get('krd', 3), r, True)
    sd.valu(k2[29] + 2, post(VACC1 + 8, VACC1 + 8, None, w > 0) + [wr(VACC1 + 8, 2, 0, 'KW')])
    E0, T, X0 = VTMP + 8, VTMP + 12, VTMP + 4
    ool4 = None
    if w >= 2:
        lsx, lsxb = a.label('Lsx'), a.label('Lsxb')
        p0 = [f'v_cndmask_b32 v{X0}, v{SACC}, v{SACC+2}, {SMASK8}', f'v_cndmask_b32 v{X0+1}, v{SACC+1}, v{SACC+3}, {SMASK8}',
              f'v_exp_f32 v{E0}, v{X0}', f'v_exp_f32 v{E0+1}, v{X0+1}',
              f'v_max_f32 v{T}, |v{X0}|, |v{X0+1}|', f'v_add_f32 v{E0+3}, v{E0}, v{E0+1}', f'v_cmp_lt_f32 vcc, s79, v{T}']
        if not QS: p0[2:2] = [f'v_mul_f32 v{X0}, s52, v{X0}', f'v_mul_f32 v{X0+1}, s52, v{X0+1}']
        np2 = opt.get('np2', 2 if QS else 4)
        sd.valu(k2[SX0 + 2], p0[:np2], 2)
        g = sd.valu(sd.nxt + 1, p0[np2:])
        sd.put(g, lambda: (a(f's_cbranch_vccnz {lsx}'), a(f'{lsxb}:')))
        sd.lds(g, ('lds', f'ds_write_b128 v{V11}, v[{E0}:{E0+3}] offset:{(w-2)*1024}', 'EW'), True)
        def ool4():
            m = E0 + 2
            a(f'{lsx}:')
            a(f'v_max_f32 v{m}, v{X0}, v{X0+1}'); a(f'v_max_f32_dpp v{m}, v{m}, v{m} {DPP8}')
            for s_ in allred('v_max_f32', m, T): a(s_)
            for i in range(2): a(f'v_sub_f32 v{E0+i}, v{X0+i}, v{m}')
            for i in range(2): a(f'v_exp_f32 v{E0+i}, v{E0+i}')
            a(f'v_add_f32 v{E0+3}, v{E0}, v{E0+1}')
            a(f's_branch {lsxb}')
        sd.valu(5, [f'v_mov_b32 v{E0+2}, 0'])
    sd.refills(ldsq)
    if w == 0:
        for i, r in enumerate(dense_reads(VQF, QEX, 'Q')):
            g = gb
            while g in sd.busy and g < gB - 1: g += 1
            sd.lds(g if g < gB - 1 else gB - 2 - (i & 3), r, True)
    if opt.get('dq'):
        for i_, g_ in zip((0, 6, 7, 3, 4), opt['dq']): sd.put(g_, lambda i_=i_: stamp(a, dict(stamps=1, cyc=1), i_))
        opt = {k_: v_ for k_, v_ in opt.items() if k_ != 'stamps'}; opt['dq1'] = 1

    def top():
        preload_b(a, lg, ldsq)
        for r in range(0, 24, 2): a(f'v_mov_b64 v[{VACC0+r}:{VACC0+r+1}], 0')
        if w == 0: a(f's_bitcmp1_b32 {SSTEP}, 0'); a('s_cselect_b32 s78, -1.0, 1.0')
        if w == 1:
            a(f'v_mov_b32 v{VT1}, {SSTEP}')
            a(f's_lshr_b32 s67, {SSTEP}, 2'); a('s_mul_i32 s44, s67, 40960'); a(f's_bfe_u32 s67, {SSTEP}, 0x10001'); a('s_mul_i32 s67, s67, 20480')
            a('s_add_u32 s44, s44, s67'); a(f's_and_b32 s67, {SSTEP}, 1'); a('s_lshl_b32 s67, s67, 7'); a('s_add_u32 s44, s44, s67'); a('s_add_u32 s44, s44, s47')
    def prefetch():
        ls = a.label('Lnp')
        if w <= 1: a(f's_mov_b32 s45, {OOB}')
        a(f's_cmp_ge_u32 s82, {1 if opt.get("nopf") else 63}'); a(f's_cbranch_scc1 {ls}')
        if w >= 2:
            lk = a.label('Lk')
            a(f's_cmp_ge_u32 s82, {opt.get("self", SELF)}'); a(f's_cbranch_scc1 {lk}')
            check_flags(a, opt, 'K')
            a(f'{lk}:')
            load_frags6(a, VKX, KF_OFF, w - 2)
        elif w == 0:
            check_flags(a, opt, 'K', ls, (VTMP + 14, 2) if opt.get('async', 0) else None)
            a(f's_lshl_b32 s45, s82, 5'); a(f's_add_u32 s45, s45, {SH}'); a('s_mul_i32 s45, s45, 12288'); a(f's_add_u32 s45, s45, {KF_OFF}')
        elif not opt.get('notouch'):
            check_flags(a, opt, 'Y16', ls, (V11, 1 if opt.get('w1p', 21) < opt.get('pubg', 25) else 0) if opt.get('async', 0) else None)
            a(f's_mul_i32 s45, s82, {40*40960}'); a('s_add_u32 s45, s45, s50')
        a(f'{ls}:')
        if w <= 1 and opt.get('async', 0):
            a(f's_sub_u32 s61, s82, {LEAD-4-1}'); a('s_max_i32 s61, s61, 0'); a('s_lshr_b32 s61, s61, 2'); a('s_add_u32 s61, s61, s82'); a('s_add_u32 s61, s61, 1')
            a(f's_cmp_gt_u32 {SPC}, s61'); a(f's_cselect_b32 s54, {OOB}, s81')
        if w == 1:
            a(f's_add_u32 s48, s45, {16*40960}'); a(f's_add_u32 s49, s45, {32*40960}'); a(f's_bitcmp1_b32 {SH}, 3'); a(f's_cselect_b32 s49, {OOB}, s49')
    a(f's_mov_b32 {SSTEP}, 0'); a(f's_mov_b32 s52, {f2u(SC):#x}'); a('s_mov_b32 s53, s52'); a(f's_mov_b32 s79, {f2u(opt.get("safe", 60.0)):#x}')
    if w != 1: a(f's_mul_i32 s81, {SH}, 384'); a(f's_add_u32 s81, s81, {PRGX_OFF + 96*128}')
    if w >= 2: a('s_mov_b32 s82, 0'); prefetch()
    if w == 0:
        a(f's_mov_b32 s45, {OOB}'); a(f'v_lshlrev_b32 v{V12}, 7, v0'); a(f'v_add_u32 v{VXS}, 8192, v{V12}'); a(f'v_min_u32 v{VXS}, 12160, v{VXS}')
        a(f'v_and_b32 v{VT2}, 15, v0'); a(f'v_min_u32 v{VT2}, 2, v{VT2}'); a(f'v_lshlrev_b32 v{VT2}, 7, v{VT2}')
    if w == 1:
        a(f'v_lshlrev_b32 v{V9}, 7, v0'); a(f'v_and_b32 v{V10}, 15, v0'); a(f'v_lshlrev_b32 v{V10}, 7, v{V10}')
        a(f'v_cmp_eq_u32 vcc, 0, v0'); a(f'v_mov_b32 v{VT2}, 0x40000000'); a(f'v_cndmask_b32 v{VT2}, v{VT2}, 0, vcc')
        a(f's_lshl_b32 s81, {SX}, 11'); a(f's_bfe_u32 s67, {SH}, 0x20002'); a(f's_mul_i32 s67, s67, {40*128}'); a('s_add_u32 s81, s81, s67'); a(f's_add_u32 s81, s81, {PRGY_OFF}')
        a(f's_and_b32 s50, {SH}, 15'); a('s_mul_i32 s50, s50, 40960'); a(f's_lshl_b32 s67, {SX}, 14'); a('s_add_u32 s50, s50, s67'); a(f's_add_u32 s50, s50, {VOF_OFF}')
        a(f's_lshl_b32 s46, {SH}, 7'); a(f's_add_u32 s46, s46, {MPRG_OFF}'); a(f's_lshl_b32 s47, {SH}, 11'); a(f's_add_u32 s47, s47, {XN_OFF + 64*40960}')
        a(f's_cmp_ge_u32 {SH}, 10'); a(f's_cselect_b32 s46, {OOB}, s46'); a(f's_cselect_b32 s47, {OOB}, s47')
        for r in (45, 48, 49): a(f's_mov_b32 s{r}, {OOB}')
    if w <= 1: a('s_mov_b32 s54, s81')
    top()
    for kb in OWN[w]: a(a_read(kb, AP[kb])[1])
    a('s_waitcnt lgkmcnt(0)')
    a(f's_branch {lent}')
    a(f'{ltop}:')
    lg.reset()
    a('s_barrier')
    a(f's_add_u32 s82, {SSTEP}, {[1, opt.get("tahead", 2) - 1, 0, 0][w]}'); prefetch()
    top()
    gather_setup(a)
    qs = opt.get('qsleep', 8) - (opt.get('qsk', 2) if w >= 2 else 0)
    if qs > 0: a(f's_sleep {qs}')
    if opt.get('qdet', 0): a(f'v_and_b32 v{VZ}, {(8 if NCH[w] == 2 else 16) - 1}, v0'); a(f'v_min_u32 v{VZ}, {4*NCH[w]-1}, v{VZ}'); a(f'v_lshlrev_b32 v{VZ}, 8, v{VZ}')
    else: a(f'v_mov_b32 v{VZ}, 0')
    a('s_waitcnt lgkmcnt(0)')
    if opt.get('mg', 1): ool = gather_m(a, NCH[w], VTMP, VQF, VTMP + 12, opt, (0, 6, 7), VZ if opt.get('qd', 1) else None, 1, 0, opt.get('spec', 1))
    else: ool = gather(a, NCH[w], VTMP, {k: v for k, v in opt.items() if k != 'stamps'} if opt.get('diag') else opt, (0, 6, 7), opt.get('qrs', 0), VQF if opt.get('qj', 1) else None, VZ if opt.get('qj', 1) else None)
    a(f'{lent}:')
    lg.reset(); lg.issue('GW')
    left = [x_ for g_ in sorted(sd.side) if g_ >= len(items) for x_ in sd.side[g_]]
    merge(a, lg, items, sd.side)
    for x_ in left: merge(a, lg, [], {-1: [x_]})
    if opt.get('dq1'): stamp(a, dict(stamps=1, cyc=1), 2)
    stamp(a, opt, 2)
    EA, EB = VB, VB + 4
    U, LM, F0, F1, LS = VB + 8, VB + 9, VB + 10, VB + 11, VB + 12
    redl = [f'v_add_f32_dpp v{LS}, v{LS}, v{LS} {DPP8}', f'v_mov_b32 v{T}, v{LS}', f'v_permlane16_swap_b32 v{LS}, v{T}', f'v_add_f32 v{LS}, v{LS}, v{T}',
            f'v_mov_b32 v{T}, v{LS}', f'v_permlane32_swap_b32 v{LS}, v{T}', f'v_add_f32 v{LS}, v{LS}, v{T}', f'v_mul_f32 v{LS}, s78, v{LS}']
    lg.all(); a('s_barrier')
    if opt.get('diag'): stamp(a, opt, 6)
    ool3 = None
    if w == 0:
        lslow, lback = a.label('Lsm'), a.label('Lsb')
        for r in dense_reads(VKX, 0, 'K', range(4, 6)): a(r[1]); lg.issue(r[2])
        a(f'ds_read_b128 v[{EA}:{EA+3}], v{V11}'); lg.issue('E'); a(f'ds_read_b128 v[{EB}:{EB+3}], v{V11} offset:1024'); lg.issue('E')
        for kk in range(4, 6):
            lg.wait(f'K{kk}'); a(mf(SM, VKX + 4*kk, VQF + 4*kk, False))
        lg.wait('E')
        for s_ in [f'v_add_f32 v{LS}, v{EA+3}, v{EB+3}', f'v_max_f32 v{U}, |v{EA+2}|, |v{EB+2}|', f'v_mul_f32 v{U}, 0x71800000, v{U}', redl[0], redl[1]]: a(s_)
        stamp(a, opt, 3)
        T2, PO = VB + 13, VB + 16
        a(f'v_cndmask_b32 v{SM}, v{SM}, v{SM+2}, {SMASK8}'); a(f'v_cndmask_b32 v{SM+1}, v{SM+1}, v{SM+3}, {SMASK8}')
        if not QS: a(f'v_mul_f32 v{SM}, s52, v{SM}'); a(f'v_mul_f32 v{SM+1}, s52, v{SM+1}')
        a(f'v_exp_f32 v{SM+2}, v{SM}'); a(f'v_exp_f32 v{SM+3}, v{SM+1}')
        a(redl[2]); a(f'v_max3_f32 v{U}, |v{SM}|, |v{SM+1}|, v{U}'); a(redl[3])
        a(f'v_add_f32 v{LM}, v{SM+2}, v{SM+3}')
        a(redl[4])
        a(f'v_cmp_lt_f32 vcc, s79, v{U}')
        def fin(first):
            a(f'v_add_f32_dpp v{LM}, v{LM}, v{LM} {DPP8}')
            if first: a(redl[5])
            a(f'v_mov_b32 v{T2}, v{LM}')
            if first: a(redl[6]); a(redl[7])
            a(f'v_permlane16_swap_b32 v{LM}, v{T2}'); a(f'v_add_f32 v{LM}, v{LM}, v{T2}')
            a(f'v_fma_f32 v{LM}, v{LM}, s78, v{LS}')
            a(f'v_rcp_f32 v{LM}, v{LM}')
            a(f'v_pk_mul_f32 v[{PO}:{PO+1}], v[{EA}:{EA+1}], v[{LM-1}:{LM}] op_sel:[0,1]'); a(f'v_pk_mul_f32 v[{PO+2}:{PO+3}], v[{EB}:{EB+1}], v[{LM-1}:{LM}] op_sel:[0,1]')
            a(f'v_cvt_pk_bf16_f32 v{PO}, v{PO}, v{PO+1}'); a(f'v_cvt_pk_bf16_f32 v{PO+1}, v{PO+2}, v{PO+3}')
        fin(True)
        a(f's_cbranch_vccnz {lslow}')
        a(f'{lback}:')
        a(f'buffer_store_dwordx2 v[{PO}:{PO+1}], v{V9}, {S_WS}, s76 offen {sc}')
        a(f'v_pk_mul_f32 v[{SM+2}:{SM+3}], v[{SM+2}:{SM+3}], v[{LM-1}:{LM}] op_sel:[0,1]')
        a(f'v_cvt_pk_bf16_f32 v{SM}, v{SM+2}, v{SM+3}')
        a(f'buffer_store_dword v{SM}, v{V10}, {S_WS}, s77 offen {sc}')
        stamp(a, opt, 4)
        if opt.get('diagp'): a('s_waitcnt vmcnt(0)')
        lkm, lkb = a.label('Lkm'), a.label('Lkb')
        a(f's_cmp_ge_u32 {SSTEP}, {4*NMB}'); a(f's_cbranch_scc1 {lkm}')
        a(f'{lkb}:')
        def ool3():
            a(f'{lkm}:')
            a(f's_mul_i32 s72, {SH}, 12288'); a(f's_bfe_u32 s67, {SSTEP}, 0x10001'); a('s_mul_i32 s67, s67, 6144'); a('s_add_u32 s72, s72, s67')
            a(f's_add_u32 s72, s72, {KF_OFF + (64 + NMB)*32*12288}'); a('s_add_u32 s73, s72, 4096')
            a(f's_bitcmp1_b32 {SSTEP}, 0'); a('s_cselect_b32 s74, 8, 0'); a('s_lshl_b32 s74, 0x00ff00ff, s74'); a('s_mov_b32 exec_lo, s74'); a('s_mov_b32 exec_hi, s74')
            for kk in range(6): a(f'buffer_store_dwordx4 v[{VKX+4*kk}:{VKX+4*kk+3}], v{VL16}, {S_WS}, s{72 + (kk >> 2)} offen offset:{(kk & 3)*1024} sc1')
            a('s_mov_b64 exec, -1')
            cprog(a)
            a(f's_branch {lkb}')
            a(f'{lslow}:')
            a(f'v_max_f32 v{U}, v{SM}, v{SM+1}'); a(f'v_max_f32_dpp v{U}, v{U}, v{U} {DPP8}')
            for s_ in allred('v_max_f32', U, T, (16,)): a(s_)
            a(f'v_max3_f32 v{U}, v{U}, v{EA+2}, v{EB+2}')
            a(f'v_sub_f32 v{SM}, v{SM}, v{U}'); a(f'v_sub_f32 v{SM+1}, v{SM+1}, v{U}'); a(f'v_sub_f32 v{F0}, v{EA+2}, v{U}'); a(f'v_sub_f32 v{F1}, v{EB+2}, v{U}')
            a(f'v_exp_f32 v{SM+2}, v{SM}'); a(f'v_exp_f32 v{SM+3}, v{SM+1}'); a(f'v_exp_f32 v{F0}, v{F0}'); a(f'v_exp_f32 v{F1}, v{F1}')
            a(f'v_mul_f32 v{LS}, v{EA+3}, v{F0}'); a(f'v_fmac_f32 v{LS}, v{EB+3}, v{F1}')
            for s_ in redl: a(s_)
            for i in range(2): a(f'v_mul_f32 v{EA+i}, v{EA+i}, v{F0}'); a(f'v_mul_f32 v{EB+i}, v{EB+i}, v{F1}')
            a(f'v_add_f32 v{LM}, v{SM+2}, v{SM+3}')
            fin(False)
            a(f's_branch {lback}')
    if opt.get('dq1'): opt = dict(opt, stamps=1)
    stamp(a, opt, 5)
    stamp_flush(a, opt, 8)
    a(f's_add_u32 {SSTEP}, {SSTEP}, 1'); a(f's_cmp_lt_u32 {SSTEP}, 64'); a(f's_cbranch_scc1 {ltop}')
    a('s_waitcnt vmcnt(0)'); a('s_endpgm')
    ool()
    if ool3: ool3()
    if ool4: ool4()

def vo_setup(a, opt):
    common_addr(a)
    T = VTMP
    lanefn(a, VXW, lambda l: LDS_EX + tile_pat(l), T, 256)
    a(f'v_and_b32 v{T}, 1, v0'); a(f'v_cmp_ne_u32 vcc, 0, v{T}'); a(f'v_mov_b32 v{T}, 0x05040100'); a(f'v_mov_b32 v{T+1}, 0x03020706')
    a(f'v_cndmask_b32 v{VXS}, v{T}, v{T+1}, vcc')
    lanefn(a, V9, lambda l: ((l >> 4) & 1)*1024 + (l & 15)*16 + (l >> 5)*8, T, 256)
    lanefn(a, V10, lambda l: (l >> 4)*10240 + (l & 15)*16, T)
    lanefn(a, V11, lambda l: (l >> 4)*1024 + (l & 15)*16, T, 256)
    lanefn(a, V12, tile_pat, T)
    a(f's_and_b32 {SDT}, {SH}, 15'); a(f's_lshl_b32 s67, {SWV}, 4'); a(f's_add_u32 {SDT}, {SDT}, s67')
    a(f's_lshl_b32 s81, {SX}, 11'); a(f's_bfe_u32 s67, {SDT}, 0x20002'); a(f's_mul_i32 s67, s67, {40*128}'); a('s_add_u32 s81, s81, s67'); a(f's_add_u32 s81, s81, {PRGY_OFF}')
    a(f's_mul_i32 s44, {SH}, 10240'); a(f's_add_u32 s44, s44, {VOMR_OFF}'); a('s_add_u32 s45, s44, 4096'); a('s_add_u32 s46, s44, 8192')
    a(f's_mul_i32 s72, {SX}, {16*10240}'); a(f's_lshl_b32 s68, {SDT}, 8'); a('s_add_u32 s72, s72, s68'); a(f's_add_u32 s72, s72, {VOMR_OFF}')
    a('s_add_u32 s73, s72, 40960'); a('s_add_u32 s74, s73, 40960'); a('s_add_u32 s75, s74, 40960')
    a(f's_mul_i32 s49, {SX}, 12288'); a(f's_add_u32 s49, s49, {PA_OFF}'); a(f's_add_u32 s76, s49, {SCHK}')
    a(f's_mul_i32 s47, {SDT}, 40960'); a(f's_lshl_b32 s67, {SX}, 14'); a('s_add_u32 s47, s47, s67'); a(f's_add_u32 s47, s47, {VOF_OFF}')

def vom_store1(src, k, base, sc):
    if k < 2: return f'buffer_store_dwordx4 v[{src}:{src+3}], v{V11}, {S_WS}, {base[k]} offen {sc}'
    return f'buffer_store_dwordx2 v[{src}:{src+1}], v{V9}, {S_WS}, {base[2]} offen {sc}'
def memp_off(a, dst, add, dt=SDT):
    a(f's_add_u32 s67, {SSTEP}, {add}'); a('s_and_b32 s67, s67, 3'); a('s_lshl_b32 s67, s67, 1'); a(f's_add_u32 s67, s67, {SX}')
    a(f's_mul_i32 s{dst}, s67, 10240'); a(f's_lshl_b32 s{dst+1}, s67, 15'); a(f's_lshl_b32 s67, {dt}, 8')
    a(f's_add_u32 s{dst}, s{dst}, s67'); a(f's_add_u32 s{dst+1}, s{dst+1}, s67'); a(f's_add_u32 s{dst}, s{dst}, {MEML_OFF}')
    a(f's_add_u32 s{dst+1}, s{dst+1}, {SMR}'); a(f's_cmp_ge_u32 {dt}, 24'); a('s_cselect_b32 s67, 10240, 0'); a(f's_add_u32 s{dst+1}, s{dst+1}, s67')

def vo_init_clear(a):
    for r in range(4): a(f'v_mov_b32 v{VA+16+r}, -1')
    for k in range(3): a(vom_store1(VA + 16, k, ('s44', 's45', 's46'), 'sc1'))
    for sl in range(4):
        memp_off(a, 32, sl)
        a(f's_cmp_ge_u32 {SDT}, 40'); a(f's_cselect_b32 s32, {OOB}, s32'); a(f's_cselect_b32 s33, {OOB}, s33')
        a(f'buffer_store_dword v{VA+16}, v{V12}, {S_WS}, s32 offen sc1')
        a(f'buffer_store_dword v{VA+16}, v{V12}, {S_WS}, s33 offen sc1')
        a('s_add_u32 s33, s33, 8192')
        a(f'buffer_store_dword v{VA+16}, v{V12}, {S_WS}, s33 offen sc1')

VORD = [[0, 1, 2, 3, 4, 5, 6, 7, 9, 8], [3, 4, 5, 0, 1, 2, 6, 7, 9, 8], [6, 7, 2, 0, 1, 5, 3, 4, 9, 8], [8, 9, 0, 1, 3, 2, 4, 6, 5, 7]]
OORD = [0, 1, 2, 3, 4, 5, 6, 7, 8, 9]
OORD0 = [0, 2, 1, 3, 4, 6, 5, 7, 8, 9]
def pairup(acc, tmp):
    return [f'v_mov_b32_dpp v{tmp}, v{acc} quad_perm:[1,0,3,2] row_mask:0xf bank_mask:0xf', f'v_perm_b32 v{acc}, v{tmp}, v{acc}, v{VXS}']

def vo_loop(a, w, duty, sc, opt):
    n = NCH[w]; VO = VORD[w]
    lg = Trk(a, 'lgkmcnt', 15)
    ltop, lent = a.label('Lvo'), a.label('Lvoent')
    VV = VACC1; PK = VACC0
    EXO = LDS_EX - LDS_MEM
    AP = apos(w, VO)
    OA = {t: (VOX + 44 + 4*i if i < 5 else AP[VO[i - 5]]) for i, t in enumerate(OORD)}
    seq = [(kb, t) for kb in VO[:3] for t in range(3)] + [(kb, t) for t in range(3) for kb in VO[3:]]
    first = [(xfrag(kb, t, 0)[0], VACC0 + 4*t, AP[kb], xfrag(kb, t, 0)[1], [f'A{kb}']) for kb, t in seq]
    oseq = [(t, 0) for t in OORD0] + [(t, 1) for t in OORD[:3]]
    for i in range(10): oseq += [(OORD[i], 2)] + ([(OORD[i+3], 1)] if i + 3 < 10 else [])
    if opt.get('oseq', 1):
        oseq = [(0, 0), (2, 0), (1, 0), (3, 0), (4, 0), (6, 0), (0, 1), (2, 1), (1, 1), (3, 1), (5, 0), (7, 0), (0, 2), (1, 2), (2, 2), (3, 2),
                (4, 1), (5, 1), (4, 2), (6, 1), (5, 2), (7, 1), (6, 2), (8, 0), (7, 2), (9, 0), (8, 1), (9, 1), (8, 2), (9, 2)]
    second = [(yfrag(tile, kb)[0], OA[tile], VV + 4*kb, yfrag(tile, kb)[1], [f'V{kb}']) for tile, kb in oseq]
    fin = {t: 30 + oseq.index((t, 2)) for t in OORD}
    items, ldsq, k2 = build_stream(first, second)
    sd = Sides()
    stream_head(sd, w, VO, AP, opt, None)
    sd.put(opt.get('gb1', 3), lambda: stamp(a, opt, 1))
    vox = lambda hh: f'buffer_load_dwordx4 v[{VOX+4*hh}:{VOX+4*hh+3}], v{VL16}, {S_WS}, s83 offen offset:{(hh & 3)*1024} {STREAM[0]}'
    vsp = opt.get('vsp', 3)
    NIN = opt.get('nin', 16)
    NE = opt.get('ne', 0)
    if duty:
        for hh in range(NE, min(NIN, 11)):
            g = opt.get('vs0', 1) + (hh - NE) * vsp
            sd.put(g, vox(hh))
            if hh & 3 == 3: sd.put(g + 1, 's_add_u32 s83, s83, 4096')
    if w == 3:
        for i in range(6): sd.put(opt.get('cl0', 1) + 4*i, f'buffer_store_dword v{VT2}, v{V12}, {S_WS}, s{52 + i} offen {"sc1" if i & 1 else sc}')
    zer = [f'v_mov_b64 v[{AP[VO[r >> 1]] + 2*(r & 1)}:{AP[VO[r >> 1]] + 2*(r & 1) + 1}], 0' for r in range(10)]
    for r in range(6): sd.valu(3*(r >> 1) + 3 + (r & 1), [zer[r]])
    wr = lambda acc, t: ('lds', f'ds_write_b32 v{VXW}, v{acc} offset:{t*1024}', f'VW{t}')
    vpost = lambda t: post(VACC0 + 4*t, VACC0 + 4*t) + [None] + pairup(VACC0 + 4*t, VACC0 + 4*t + 1) + [wr(VACC0 + 4*t, t)]
    vrd = lambda kb: ('lds', f'ds_read_b128 v[{VV+4*kb}:{VV+4*kb+3}], v{VAR} offset:{EXO + kb*1024}', f'V{kb}')
    for t, g0, per in ((0, 17, 1), (1, 24, 1), (2, 31, 2)):
        g = sd.valu(g0, vpost(t), per) + 2
        sd.put(g, ('wait', f'VW{t}')); sd.put(g, 's_barrier'); sd.lds(g, vrd(t), True)
    sd.valu(27, zer[6:])
    if opt.get('diag'): sd.put(g, lambda: stamp(a, opt, 0)); sd.put(29, lambda: stamp(a, opt, 5)); sd.put(42, lambda: stamp(a, opt, 7))
    base = ('s44', 's45', 's46')
    tail = []
    ops = []
    for q in range(3):
        b = PK + 4*q; ts_ = list(range(4*q, min(4*q + 4, 10)))
        for t in ts_:
            p_ = post(OA[t], PK + t, None, t >= 8)
            ops += [(f'a{t}{j}', x_, [], fin[t] + 2) for j, x_ in enumerate(p_[:-1])] + [(f'c{t}', p_[-1], [f'a{t}{j}' for j in range(len(p_) - 1)], 0)]
            if duty and 11 + t < NIN:
                if t == 1: ops.append(('s', 's_add_u32 s83, s83, 4096', ['x0'], 0))
                ops.append((f'x{t}', vox(11 + t), [f'c{t}'] + ([f'x{t-1}'] if t else []) + (['s'] if t == 1 else []), 0))
        ops.append((f'p{q}', f'v_permlane16_swap_b32 v{b}, v{b+1}', [f'c{ts_[0]}', f'c{ts_[1]}'], 0))
        last = [f'p{q}']
        if q < 2:
            ops += [(f'r{q}', f'v_permlane16_swap_b32 v{b+2}, v{b+3}', [f'c{ts_[2]}', f'c{ts_[3]}'], 0),
                    (f'u{q}', f'v_permlane32_swap_b32 v{b}, v{b+2}', [f'p{q}', f'r{q}'], 0), (f'w{q}', f'v_permlane32_swap_b32 v{b+1}, v{b+3}', [f'p{q}', f'r{q}'], 0)]
            last = [f'u{q}', f'w{q}']
        ops += [(f'b{q}', f'v_bfi_b32 v{b}, 1, {SSTEP}, v{b}', last[:1], 0), (f'st{q}', vom_store1(b, q, base, sc), last + [f'b{q}'], 0)]
    at = {}
    g = min(o[3] for o in ops if o[3])
    mem_at = set()
    while len(at) < len(ops):
        for nm, tx, dep, e in ops:
            if nm in at or g < e: continue
            sal = tx.startswith('s_')
            if not all(d in at and (at[d] < g or (at[d] == g and (sal or d == 's'))) for d in dep): continue
            if tx.startswith('v_'):
                if g < len(items) and sd.vbusy.get(g, 0) >= 2: continue
                sd.vbusy[g] = sd.vbusy.get(g, 0) + 1
            elif not sal:
                if g < len(items) and g in mem_at: continue
                mem_at.add(g)
            at[nm] = g; sd.put(g, tx)
        g += 1
    ex = []
    for g in sorted(g for g in sd.side if g >= len(items)): ex += sd.side.pop(g)
    tail = ex + tail
    sd.refills(ldsq)

    def top():
        preload_b(a, lg, ldsq)
        a(f's_bitcmp1_b32 {SSTEP}, 0'); a('s_cselect_b32 s50, 0x80008000, 0')
        if w == 3:
            a(f'v_mov_b32 v{VT2}, -1'); a(f's_and_b32 s35, {SH}, 15')
            for i in range(3):
                memp_off(a, 52 + 2*i, 2, 's35')
                if i < 2: a('s_add_u32 s35, s35, 16')
            a('s_cmp_ge_u32 s35, 40'); a(f's_cselect_b32 s56, {OOB}, s56'); a(f's_cselect_b32 s57, {OOB}, s57')
        if duty:
            memp_off(a, 77, 1)
            if opt.get('nopf'): a('s_mov_b32 s82, 0')
            else: a(f's_mov_b32 s82, {SSTEP}')
            a(f's_mul_i32 s83, s82, {40*40960}'); a('s_add_u32 s83, s83, s47'); a(f's_cmp_eq_u32 {SSTEP}, 63'); a(f's_cselect_b32 s83, {OOB}, s83')
        for r in range(0, 12, 2): a(f'v_mov_b64 v[{VACC0+r}:{VACC0+r+1}], 0')
        for r in range(0, 20, 2): a(f'v_mov_b64 v[{VOX+44+r}:{VOX+45+r}], 0')
        if duty:
            lk = a.label('Lk')
            a(f's_cmp_ge_u32 {SSTEP}, {64 if opt.get("notouch") else opt.get("self", SELF)}'); a(f's_cbranch_scc1 {lk}')
            check_flags(a, opt, 'Y16')
            a(f'{lk}:')
            for hh in range(NE):
                a(vox(hh))
                if hh & 3 == 3: a('s_add_u32 s83, s83, 4096')
    a(f's_mov_b32 {SSTEP}, 0')
    top()
    for kb in OWN[w]: a(a_read(kb, AP[kb])[1])
    a('s_waitcnt lgkmcnt(0)')
    a(f's_branch {lent}')
    a(f'{ltop}:')
    lg.reset()
    a('s_barrier')
    top()
    if opt.get('vsleep', 0): a(f's_sleep {opt.get("vsleep", 0)}')
    a('s_waitcnt lgkmcnt(0)')
    if opt.get('mg', 1): ool = gather_m(a, n, VACC1, VA + 24, VA + 36, {} if opt.get('diagv') else opt, (0, 5, 7), None, 1, 0, opt.get('spec', 1))
    else: ool = gather(a, n, VACC1, {k: v for k, v in opt.items() if k != 'stamps'} if opt.get('diag') else opt, (0, 0 if opt.get('diag2') else 5, 7), opt.get('vrs', 0), VA + 24 if opt.get('vj', 1) else None)
    a(f'{lent}:')
    lg.reset(); lg.issue('GW')
    merge(a, lg, items, sd.side)
    for s_ in tail:
        a(s_)
    stamp(a, opt, 3)
    lcp, lcb, lcf, lce = [a.label('Lc') for _ in range(4)]
    a(f's_cmp_ge_u32 {SSTEP}, {4*NMB}'); a(f's_cbranch_scc1 {lcp}')
    a(f'{lcb}:')
    def ool5():
        a(f'{lcp}:')
        a(f's_lshl_b32 s52, {SSTEP}, 5'); a(f's_add_u32 s52, s52, {SH}'); a('s_mul_i32 s52, s52, 10240'); a(f's_add_u32 s52, s52, {VOM_OFF}')
        a('s_add_u32 s53, s52, 4096'); a('s_add_u32 s54, s52, 8192')
        for k in range(3): a(vom_store1(PK + 4*k, k, ('s52', 's53', 's54'), 'sc1'))
        a(f's_cmp_lt_u32 {SSTEP}, 63'); a(f's_cbranch_scc1 {lcb}')
        a('s_waitcnt vmcnt(0)'); a('s_barrier')
        if w == 3: cprog(a)
        a('s_waitcnt vmcnt(0)'); a('s_endpgm')
    ACC = VB + 28
    R = VB + 16
    def ldp():
        for c in range(n): a(f'buffer_load_dwordx4 v[{R+4*c}:{R+4*c+3}], v{VL16}, {S_WS}, s76 offen offset:{c*1024} sc1')
    lt, ltd, lp, ld = [a.label('Lp') for _ in range(4)]
    PT = VA
    def pwrite(c): a(f'ds_write_b128 v{VGW}, v[{R+4*c}:{R+4*c+3}] offset:{c*1024}')
    def pcheck_m(first):
        for c in range(n):
            b = R + 4*c
            if first: a(f's_waitcnt vmcnt({n - 1 - c})'); pwrite(c)
            a(f'v_bitop3_b32 v{PT+c}, v{b}, v{b+2}, s50 bitop3:0x7e')
            if w == 3 or not first: a(f'v_bitop3_b32 v{PT+3}, v{b+1}, v{b+3}, s50 bitop3:0x7e'); a(f'v_or_b32 v{PT+c}, v{PT+c}, v{PT+3}')
            a(f'v_cmp_gt_i32 {ML[c]}, 0, v{PT+c}')
        mask_or(a, ML[:n])
    MV = MR + ['s[30:31]']
    def ldv(ms=None):
        for q in range(4):
            if ms: a(f's_mov_b64 exec, {ms[q]}')
            a(f'buffer_load_dwordx4 v[{VB+4*q}:{VB+4*q+3}], v{V10}, {S_WS}, s{72+q} offen sc1')
        if ms: a('s_mov_b64 exec, -1')
    def vcheck():
        for q in range(4):
            if w < 2: a(f'v_bitop3_b32 v{PT+4+q}, v{VB+4*q}, {SSTEP}, 1 bitop3:0x28')
            else: a(f'v_bitop3_b32 v{PT+4+q}, v{VB+4*q}, v{VB+4*q+2}, {SSTEP} bitop3:0x7e'); a(f'v_and_b32 v{PT+4+q}, 1, v{PT+4+q}')
        for q in range(4): a(f'v_cmp_ne_u32 {MV[q]}, 0, v{PT+4+q}')
        mask_or(a, MV)
    if duty:
        for hh in range(NIN, 16):
            a(vox(hh))
            if hh & 3 == 3 and hh < 15: a('s_add_u32 s83, s83, 4096')
    if opt.get('diagv'): a('s_waitcnt vmcnt(0)'); stamp(a, opt, 5)
    gather_setup(a, 1)
    ts = opt.get('tsleep', 4) if duty else opt.get('nsleep', 9)
    if isinstance(ts, list): ts = ts[w]
    if ts: a(f's_sleep {ts}')
    SEP = opt.get('sep', 1)
    if duty and SEP:
        lv2 = a.label('Lp')
        if opt.get('diagv'): stamp(a, opt, 0)
        ldv()
        for r in range(4): a(f'v_mov_b32 v{ACC+r}, 0')
        a('s_waitcnt vmcnt(0)')
        if opt.get('diagv'): stamp(a, opt, 7)
        vcheck()
        a(f's_cbranch_scc1 {lv2}')
        stamp(a, opt, 2)
        if opt.get('psl', 1): a(f's_sleep {opt.get("psl", 1)}')
        ldp()
        a(f'{lv2}x:')
    elif duty:
        ldv()
        if opt.get('pat'): a(f's_sleep {opt["pat"] - ts - 1}')
        ldp()
        for r in range(4): a(f'v_mov_b32 v{ACC+r}, 0')
        a(f's_waitcnt vmcnt({n})'); vcheck()
        if not opt.get('novc'): a(f's_cbranch_scc1 {lt}')
        stamp(a, opt, 2)
    else: ldp()
    pcheck_m(True)
    a(f's_cbranch_scc1 {lp}')
    a(f'{ld}:')
    stamp(a, opt, 4)
    def ool2():
        PD = opt.get('pdep', 1) - 1; gap = opt.get('pgap', 2)
        ltb, lpb, lwr = [a.label('Lp') for _ in range(3)]
        if duty and SEP:
            a(f'{lv2}:')
            ldv(MV); ldp()
            a(f's_waitcnt vmcnt({n})'); vcheck()
            a(f's_cbranch_scc1 {lt}')
            stamp(a, opt, 2)
            a(f's_branch {lv2}x')
        if duty:
            a(f'{lt}:')
            a('s_waitcnt vmcnt(0)'); pcheck_m(False)
            for _ in range(PD): ldv(MV); ld_masked(a, n, R, 's76', ML); a(f's_sleep {gap}')
            a(f'{ltb}:')
            ldv(MV); ld_masked(a, n, R, 's76', ML)
            a(f's_waitcnt vmcnt({(4 + n)*PD})'); pcheck_m(False); a('s_cselect_b32 s51, 1, 0'); vcheck()
            a(f's_cbranch_scc0 {ltd}')
            budget_loop(a, ltb, ltd)
            a(f'{ltd}:')
            stamp(a, opt, 2)
            a('s_cmp_eq_u32 s51, 0'); a(f's_cbranch_scc1 {lwr}')
            if PD: a(f's_branch {lpb}')
        a(f'{lp}:')
        for _ in range(PD): ld_masked(a, n, R, 's76', ML); a(f's_sleep {gap}')
        a(f'{lpb}:')
        if opt.get('pback'): a(f's_sleep {opt["pback"]}')
        ld_masked(a, n, R, 's76', ML); a(f's_waitcnt vmcnt({n*PD})'); pcheck_m(False)
        a(f's_cbranch_scc0 {lwr}')
        budget_loop(a, lpb, lwr)
        a(f'{lwr}:')
        for c in range(n): pwrite(c)
        a(f's_branch {ld}')
    if not duty: a('s_waitcnt lgkmcnt(0)'); a('s_barrier'); a('s_waitcnt vmcnt(0)')
    if duty:
        bop = lambda pp: f'v[{VOX+8*pp}:{VOX+8*pp+7}]' if pp < 8 else f'v[{VB+8*(pp-8)}:{VB+8*(pp-8)+7}]'
        rest = [c for c in range(10) if c not in OWN[w]]
        a(smf(ACC, R, bop(OWN[w][0])))
        a('s_waitcnt lgkmcnt(0)'); a('s_barrier')
        for c in rest[:3]: a(f'ds_read_b128 v[{VA+4*c}:{VA+4*c+3}], v{VAR} offset:{c*1024}')
        k = 3
        for j in range(1, n):
            a(smf(ACC, R + 4*j, bop(OWN[w][j])))
            for c in rest[k:k+2]: a(f'ds_read_b128 v[{VA+4*c}:{VA+4*c+3}], v{VAR} offset:{c*1024}')
            k += 2
        for c in rest[k:]: a(f'ds_read_b128 v[{VA+4*c}:{VA+4*c+3}], v{VAR} offset:{c*1024}')
        for j, pp in enumerate(rest):
            a(f's_waitcnt lgkmcnt({len(rest)-1-j})' if pp != 8 else 's_waitcnt vmcnt(0) lgkmcnt(1)')
            a(smf(ACC, VA + 4*pp, bop(pp)))
        for s_ in post(ACC, ACC, None, True): a(s_)
        a(f'v_xor_b32 v{ACC}, s50, v{ACC}')
        for s_ in pairup(ACC, ACC + 1): a(s_)
        for so, fl in ([('s78', 'sc1'), ('s77', sc)] if opt.get('rfirst') else [('s77', sc), ('s78', 'sc1')]):
            a(f'buffer_store_dword v{ACC}, v{V12}, {S_WS}, {so} offen {fl}')
        stamp(a, opt, 6)
        if opt.get('diagp'): a('s_waitcnt vmcnt(1)'); stamp(a, opt, 2); a('s_waitcnt vmcnt(0)'); stamp(a, opt, 3)
    elif w == 3:
        lnc = a.label('Lnx')
        a(f's_cmp_lt_u32 {SSTEP}, {4*NMB}'); a(f's_cbranch_scc1 {lnc}')
        cprog(a)
        a(f'{lnc}:')
    stamp_flush(a, opt, 8)
    a(f's_add_u32 {SSTEP}, {SSTEP}, 1'); a(f's_branch {ltop}')
    ool(); ool2(); ool5()

def chain_main(a, opt):
    lvo = a.label('Lrole_vo')
    tstamp(a, opt, 0, (14, 15))
    STREAM[0] = opt.get('stream', 'sc1')
    a(f's_lshr_b32 {SX}, {SSLOT}, 5'); a(f's_and_b32 s67, {SSLOT}, 15'); a(f's_lshl_b32 {SH}, {SX}, 4'); a(f's_add_u32 {SH}, {SH}, s67')
    a(f's_mov_b32 {STMO}, {opt.get("tmo", 1 << 21)}'); a(f's_mov_b32 {SSTEP}, 0')
    srd(a, S_AUX, 's[38:39]', 8*640*2)
    a(f's_add_u32 {SMR}, s60, {MEMR_OFF + 0x7ffff}'); a(f's_and_b32 {SMR}, {SMR}, 0xfff80000'); a(f's_sub_u32 {SMR}, {SMR}, s60')
    a(f's_mul_i32 s58, {SWV}, 3072'); a(f's_lshl_b32 s67, {SWV}, 11'); a('s_add_u32 s67, s67, 12288'); a(f's_cmp_ge_u32 {SWV}, 2'); a('s_cselect_b32 s58, s67, s58')
    a(f's_mov_b32 {S_ONE0}, 0x00003f80'); a(f's_mov_b32 {S_ONE1}, 0x3f800000')
    a(f's_bitcmp1_b32 {SSLOT}, 4'); a(f's_cbranch_scc1 {lvo}')
    for role in ('qk', 'vo'):
        if role == 'vo': a(f'{lvo}:')
        if role == 'qk':
            srd(a, S_WA, 's[40:41]', 640*6144*2); srd(a, S_WB, 's[42:43]', 640*6144*2); qk_setup(a, opt)
        else:
            srd(a, S_WA, 's[44:45]', 640*6144*2); srd(a, S_WB, 's[46:47]', 640*6144*2); vo_setup(a, opt)
        l1, l2, l3 = a.label('Ls'), a.label('Ls'), a.label('Ls')
        a(f's_mov_b32 {SPC}, 0')
        a(f's_cmp_lg_u32 {SWV}, 0'); a(f's_cbranch_scc1 {l2}')
        mem0_load(a)
        a(f'{l2}:')
        def after_first(n, vm):
            if n == 0:
                a(f's_cmp_lg_u32 {SWV}, 0'); a(f's_cbranch_scc1 {l3}')
                mem0_write(a)
                a(f'{l3}:')
            if n == 1: rot_load(a, 172, 173); vm.issue('rot')
            if n == 13:
                rot_check(a, 172, 173, True)
                if role == 'vo':
                    vo_init_clear(a)
                    for _ in range(15): vm.issue('init')
                a(f's_cmp_lg_u32 {SWV}, 0'); a(f's_cbranch_scc1 {l1}')
                if role == 'qk': qk_init_clear(a)
                a(f's_lshl_b32 s67, 1, {SXCC}'); a(f'v_mov_b32 v{VT0}, s67'); a(f's_lshl_b32 s67, {SX}, 2'); a(f'v_mov_b32 v{VT1}, s67')
                a('s_mov_b64 exec, 1')
                a(f'buffer_atomic_or v{VT0}, v{VT1}, {S_DBG}, 0 offen sc1')
                a('s_mov_b64 exec, -1')
                a(f'{l1}:')
            assert 32 + opt.get('ldep', 6) + 1 <= 39
            if n == 32: a(f'v_lshlrev_b32 v173, 2, v0'); a(f'buffer_load_dword v172, v173, {S_DBG}, 0 offen sc1'); vm.issue('rdy')
            if n == 14 + opt.get('ldep', 6):
                l4 = a.label('Ls')
                a(f's_cmp_lg_u32 {SWV}, 0'); a(f's_cbranch_scc1 {l4}')
                a(f'v_mov_b32 v{VT0}, 1'); a(f'v_mov_b32 v{VT1}, {DBG_READY*4}')
                a('s_mov_b64 exec, 1')
                a(f'buffer_atomic_add v{VT0}, v{VT1}, {S_DBG}, 0 offen sc1')
                a('s_mov_b64 exec, -1')
                a(f'{l4}:')
        loader(a, role, after_first, opt.get('ldep', 6))
        tstamp(a, opt, 1, (14, 15))
        lp, ld, lslow = a.label('Lr'), a.label('Lrd'), a.label('Lslow')
        lc = a.label('Lrc')
        a(f'v_lshlrev_b32 v{VT1}, 2, v0'); a(f'v_mov_b32 v{VT0}, v172')
        a(f's_branch {lc}')
        a(f'{lp}:')
        a(f'buffer_load_dword v{VT0}, v{VT1}, {S_DBG}, 0 offen sc1'); a('s_waitcnt vmcnt(0)')
        a(f'{lc}:')
        a(f'v_readlane_b32 s67, v{VT0}, {DBG_READY}')
        a(f'v_readlane_b32 s68, v{VT0}, {DBG_VOTE}'); a(f's_cmp_lt_u32 s68, {NAREA*256}'); a('s_cselect_b32 s67, 0, s67')
        if not opt.get('noflags'):
            a(f'v_readlane_b32 s68, v{VT0}, {DBG_AREA}'); a(f's_cmp_lt_u32 s68, {NAREA}'); a('s_cselect_b32 s67, 0, s67')
        a(f's_cmp_eq_u32 {STMO}, 0'); a(f's_cbranch_scc1 {ld}')
        a(f's_sub_u32 {STMO}, {STMO}, 1')
        a('s_cmp_lt_u32 s67, 64'); a(f's_cbranch_scc1 {lp}')
        a(f'{ld}:')
        a(f'v_readlane_b32 s67, v{VT0}, {DBG_VOTE}'); a('s_and_b32 s67, s67, 255'); a(f's_cmp_gt_u32 s67, {NAREA//2}'); a('s_cselect_b32 s67, 1, 0')
        a(f'v_readlane_b32 s68, v{VT0}, 0'); a('s_cmp_gt_u32 s68, 15'); a('s_cselect_b32 s68, 1, 0'); a('s_xor_b32 s67, s67, s68'); a('s_lshl_b32 s67, s67, 13')
        if 'par' in opt: a(f's_mov_b32 s67, {opt["par"]*8192}')
        a(f's_add_u32 {SMR}, {SMR}, s67')
        a(f'v_readlane_b32 s67, v{VT0}, 0'); a(f'v_readlane_b32 s68, v{VT0}, 1')
        a('s_bcnt1_i32_b32 s67, s67'); a('s_bcnt1_i32_b32 s68, s68'); a('s_max_u32 s67, s67, s68')
        if opt.get('force_slow'): a('s_mov_b32 s67, 2')
        a('s_cmp_lg_u32 s67, 1'); a(f's_cbranch_scc1 {lslow}')
        for sc in ('', 'sc1'):
            if sc: a(f'{lslow}:')
            if role == 'qk':
                labs = [a.label('Lw') for _ in range(4)]
                for w in range(1, 4): a(f's_cmp_eq_u32 {SWV}, {w}'); a(f's_cbranch_scc1 {labs[w]}')
                for w in range(4):
                    a(f'{labs[w]}:'); qk_loop(a, w, sc, opt)
            else:
                labs = [a.label('Lw') for _ in range(5)]
                a(f's_cmp_eq_u32 {SWV}, 1'); a(f's_cbranch_scc1 {labs[1]}'); a(f's_cmp_eq_u32 {SWV}, 3'); a(f's_cbranch_scc1 {labs[4]}')
                a(f's_cmp_ge_u32 {SDT}, 40'); a(f's_cbranch_scc1 {labs[3]}'); a(f's_cmp_eq_u32 {SWV}, 2'); a(f's_cbranch_scc1 {labs[2]}')
                for i, (w, duty) in enumerate([(0, True), (1, True), (2, True), (2, False), (3, False)]):
                    a(f'{labs[i]}:'); vo_loop(a, w, duty, sc, opt)
```

```python
from common import *

SC = 0.07216878364870322 * 1.4426950408889634

def wfrag(f, half=None):
    if f < 32: k, b = 'a', f * 8
    else: k, b = 'v', 176 + (f - 32) * 8
    if half is None: return f'{k}[{b}:{b+7}]'
    return k, b + 4 * half

VL16, VGW, VAR, VFR, VXW, VXS, VDR, VIDX, V9, V10, V11, V12, VT0, VT1, VT2 = range(1, 16)
VA = 16
VACC0 = 56
VACC1 = 68
VB = 80
VKX = 112
VQF = 136
VTMP = 160
VOX = 112
SSTEP, SH, SX, SDT = 's62', 's63', 's64', 's66'
SMASK8 = 's[70:71]'
SCM = [f's[{72+2*r}:{73+2*r}]' for r in range(4)]
SCHK = 's80'
S_ONE0, S_ONE1 = 's100', 's101'
NCH = [3, 3, 2, 2]
OWN = [[0, 1, 2], [3, 4, 5], [6, 7], [8, 9]]
REGKB = [0, 1, 3, 4, 6, 7, 8]; LDSKB = [2, 5, 9]
REGT = [0, 2, 3, 4, 6, 7, 8]; LDST = [1, 5, 9]
def yfrag(tile, kb):
    if tile in REGT: return 'reg', 21 + REGT.index(tile)*3 + kb
    return 'lds', 9 + LDST.index(tile)*3 + kb
def xfrag(kb, t, second):
    if kb in REGKB: return 'reg', t*7 + REGKB.index(kb) + (21 if second else 0)
    return 'lds', LDSKB.index(kb)*3 + t + (9 if second else 0)
def apos(w, order):
    ap = {kb: VA + 8*c for c, kb in enumerate(OWN[w])}
    free = [VA + 4*i for i in range(10) if VA + 4*i not in ap.values()]
    for kb in order:
        if kb not in ap: ap[kb] = free.pop(0)
    return ap
STREAM = ['sc1 nt']

def tile_pat(l):
    g, c = l >> 4, l & 15
    return (4*g + 2*(c >> 3) + (c & 1))*16 + ((c >> 1) & 3)*4
def arow(i, h): return 4*(i >> 1) + 2*h + (i & 1)

def common_addr(a):
    T = VTMP
    a(f'v_lshlrev_b32 v{VL16}, 4, v0')
    a(f's_mul_i32 s6, {SWV}, 3'); a(f's_lshl_b32 s7, {SWV}, 1'); a('s_add_u32 s7, s7, 2'); a('s_min_u32 s6, s6, s7')
    a(f's_lshl_b32 {SCHK}, s6, 10')
    a(f'v_add_u32 v{VAR}, {LDS_MEM}, v{VL16}'); a(f'v_add_u32 v{VGW}, {SCHK}, v{VAR}')
    lanefn(a, VFR, lambda l: l*16, T, 36864)
    lanefn(a, VIDX, lambda l: 0x4444 + ((l >> 1) & 1)*0xaaaa, T)
    a(f'v_and_b32 v{T}, 8, v0'); a(f'v_cmp_ne_u32 {SMASK8}, 0, v{T}')

def loader(a, role, after_first=None, dep=11):
    vm = Trk(a, 'vmcnt', 63)
    T = 160
    VD0, VD1, VR0 = T, T + 1, T + 2
    dma_voff(a, VD0, 12288, T + 8, T + 9); dma_voff(a, VD1, 1280, T + 8, T + 9)
    for aa in range(2):
        R = VR0 + 3*aa
        row = lambda l: 4*((l >> 4) & 1) + 2*aa + ((l >> 2) & 1)
        lanefn(a, T + 8, lambda l: row(l) & 6, T + 10); lanefn(a, T + 9, lambda l: (l >> 1) & 1, T + 10, 2)
        a(f'v_xor_b32 v{T+9}, v{T+9}, v{T+8}')
        lanefn(a, R, lambda l: (l >> 5)*2048 + ((l >> 3) & 1)*1024 + row(l)*128 + (l & 1)*8, T + 10)
        a(f'v_lshl_add_u32 v{R}, v{T+9}, 4, v{R}')
        a(f'v_add_u32 v{R+1}, 49152, v{R}'); a(f'v_add_u32 v{R+2}, 98304, v{R}')
    a(f's_mul_i32 s68, {SH}, 384'); a(f's_mul_i32 s67, {SWV}, {8*12288}'); a('s_add_u32 s68, s68, s67')
    a(f's_mul_i32 s69, {SH}, {192*1280}'); a(f's_mul_i32 s67, {SWV}, {8*1280}'); a('s_add_u32 s69, s69, s67')
    a(f's_lshl_b32 s7, {SWV}, 10')
    k2 = 'X' if role == 'qk' else 'Y'
    slabs = [('X', S_WA, i) for i in range(14)] + [(k2, S_WB, i) for i in range(14)] + \
            [('X', S_WA, i) for i in range(14, 20)] + [(k2, S_WB, i) for i in range(14, 20)]
    def dma(n):
        kind, sr, i = slabs[n]
        for c in range(3):
            a(f's_add_u32 m0, s7, {(n % 12)*LDS_SLAB + c*4096}')
            if kind == 'X': a(f's_add_u32 s67, s68, {(2*(REGKB + LDSKB)[i >> 1] + (i & 1))*32*12288 + c*128}')
            else: a(f's_add_u32 s67, s69, {((i&1)*96 + c*32)*1280 + (REGT + LDST)[i >> 1]*128}')
            a(f'buffer_load_dwordx4 v{VD0 if kind=="X" else VD1}, {sr}, s67 offen lds')
            vm.issue(n)
    def dest(n, c):
        kind, sr, i = slabs[n]
        second = (n >= 14) if n < 28 else (n >= 34)
        if kind == 'X': t, kb, half = c, i >> 1, i & 1; f = t * 7 + kb; lf = (kb - 7) * 3 + t
        else:
            ks = (i & 1) * 3 + c; kb, half = ks >> 1, ks & 1; tile = i >> 1
            f = tile * 3 + kb; lf = (tile - 7) * 3 + kb
        if second: f += 21; lf += 9
        return f, lf, half
    def reads(n):
        slot = n % 12
        base = VR0 + slot // 4; off0 = (slot % 4) * LDS_SLAB
        for c in range(3):
            f, lf, half = dest(n, c)
            if n < 28: k, b = wfrag(f, half)
            else: k, b = 'v', 16 + lf * 8 + half * 4
            for aa in range(2):
                a(f'ds_read_b64_tr_b16 {k}[{b+2*aa}:{b+2*aa+1}], v{base + 3*aa} offset:{off0 + c*4096}')
    for n in range(dep): dma(n)
    for n in range(40):
        vm.wait(n)
        a('s_waitcnt lgkmcnt(0)')
        a('s_barrier')
        if n + dep < 40: dma(n + dep)
        reads(n)
        after_first(n, vm)
    a('s_waitcnt lgkmcnt(0)'); a('s_barrier')
    for lf in range(18):
        for half in range(2):
            b = 16 + lf * 8 + half * 4
            a(f'ds_write_b128 v{VFR}, v[{b}:{b+3}] offset:{lf*2048 + half*1024}')
    a('s_waitcnt lgkmcnt(0)')

def mem0_load(a):
    lanefn(a, 18, lambda l: (l & 7)*1280 + (l >> 3)*16, 16)
    lanefn(a, 19, lambda l: LDS_MEM + (l >> 4)*256 + arow(l & 7, (l >> 3) & 1)*16, 16)
    for n in range(10): a(f'buffer_load_dwordx4 v[{24+4*n}:{27+4*n}], v18, {S_AUX}, 0 offen offset:{n*128}')
def mem0_write(a):
    for n in range(10): a(f'ds_write_b128 v19, v[{24+4*n}:{27+4*n}] offset:{n*1024}')

def maxchk(a, regs, first=True):
    regs = list(regs)
    if first:
        a(f'v_max3_u32 v{VT0}, v{regs[0]}, v{regs[1]}, v{regs[2]}'); regs = regs[3:]
    while regs:
        if len(regs) >= 2: a(f'v_max3_u32 v{VT0}, v{VT0}, v{regs[0]}, v{regs[1]}'); regs = regs[2:]
        else: a(f'v_max_u32 v{VT0}, v{VT0}, v{regs[0]}'); regs = []


def gather_setup(a, step_add=0):
    a(f's_add_u32 s67, {SSTEP}, {step_add}'); a('s_and_b32 s67, s67, 3'); a('s_lshl_b32 s67, s67, 1')
    a(f's_add_u32 s68, s67, 1'); a(f's_sub_u32 s68, s68, {SX}'); a(f's_add_u32 s67, s67, {SX}')
    a('s_mul_i32 s67, s67, 10240'); a('s_lshl_b32 s68, s68, 15')
    a(f's_add_u32 s33, s68, {SMR}'); a('s_add_u32 s33, s33, s58')
    a(f's_add_u32 s32, s67, {SCHK}'); a(f's_add_u32 s32, s32, {MEML_OFF}')

def gather(a, n, R, opt, st, rsleep=0, R2=None, det=None):
    ld = lambda r, so: [a(f'buffer_load_dwordx4 v[{r+4*c}:{r+4*c+3}], v{VL16}, {S_WS}, {so} offen offset:{c*1024} sc1') for c in range(n)]
    def chk(r, k=0): a(f's_waitcnt vmcnt({k})'); maxchk(a, range(r, r + 4*n)); a(f'v_cmp_eq_u32 vcc, -1, v{VT0}')
    l1, l1ok, l2, l2ok = [a.label('Lg') for _ in range(4)]
    if det is not None:
        l0, l0d = a.label('Lg'), a.label('Lg')
        a(f'{l0}:')
        a(f'buffer_load_dword v{R}, v{det}, {S_WS}, s32 offen sc1'); a('s_waitcnt vmcnt(0)'); a(f'v_cmp_eq_u32 vcc, -1, v{R}')
        poll_tail(a, l0, l0d)
    stamp(a, opt, st[0])
    if R2 is None:
        a(f'{l1}:')
        ld(R, 's32'); chk(R)
        poll_tail(a, l1, l1ok)
    else:
        ld(R, 's32'); ld(R2, 's33'); chk(R, n)
        a(f's_cbranch_vccnz {l1}')
        a(f'{l1ok}:')
    stamp(a, opt, st[1])
    for c in range(n):
        for i in range(4):
            a(f'v_lshlrev_b32 v{VA+8*c+2*i}, 16, v{R+4*c+i}'); a(f'v_and_b32 v{VA+8*c+2*i+1}, 0xffff0000, v{R+4*c+i}')
    Q = R if R2 is None else R2
    if R2 is None:
        if rsleep: a(f's_sleep {rsleep}')
        ld(Q, 's33')
    chk(Q)
    a(f's_cbranch_vccnz {l2}')
    a(f'{l2ok}:')
    stamp(a, opt, st[2])
    for c in range(n):
        b = VA + 8*c
        for i in range(4):
            a(f'v_dot2c_f32_bf16 v{b+2*i}, {S_ONE0}, v{Q+4*c+i}'); a(f'v_dot2c_f32_bf16 v{b+2*i+1}, {S_ONE1}, v{Q+4*c+i}')
        for i in range(4): a(f'v_cvt_pk_bf16_f32 v{b+i}, v{b+2*i}, v{b+2*i+1}')
        a(f'ds_write_b128 v{VGW}, v[{b}:{b+3}] offset:{c*1024}')
    def outofline():
        if R2 is not None:
            a(f'{l1}:')
            ld(R, 's32'); ld(R2, 's33'); chk(R, n)
            a(f's_cbranch_vccz {l1ok}')
            budget_loop(a, l1, l1ok)
        a(f'{l2}:')
        ld(Q, 's33'); chk(Q)
        a(f's_cbranch_vccz {l2ok}')
        budget_loop(a, l2, l2ok)
    return outofline

ML = ['s[16:17]', 's[18:19]', 's[20:21]']; MR = ['s[22:23]', 's[24:25]', 's[26:27]']; MOR = 's[28:29]'
def mask_or(a, ms):
    a(f's_or_b64 {MOR}, {ms[0]}, {ms[1]}')
    for m in ms[2:]: a(f's_or_b64 {MOR}, {MOR}, {m}')
def ld_masked(a, n, r, so, ms=None):
    for c in range(n):
        if ms: a(f's_mov_b64 exec, {ms[c]}')
        a(f'buffer_load_dwordx4 v[{r+4*c}:{r+4*c+3}], v{VL16}, {S_WS}, {so} offen offset:{c*1024} sc1')
    if ms: a('s_mov_b64 exec, -1')

def gather_m(a, n, R, Q, T, opt, st, det, dep, gap, spec=0, rb=0):
    def chk(r, ms, k):
        a(f's_waitcnt vmcnt({k})')
        for c in range(n): a(f'v_max3_u32 v{T+c}, v{r+4*c}, v{r+4*c+1}, v{r+4*c+2}')
        for c in range(n): a(f'v_max_u32 v{T+c}, v{T+c}, v{r+4*c+3}')
        for c in range(n): a(f'v_cmp_eq_u32 {ms[c]}, -1, v{T+c}')
        mask_or(a, ms[:n])
    l1, l1ok, l2, l2b, l2ok = [a.label('Lg') for _ in range(5)]
    if det is not None:
        l0, l0d = a.label('Lg'), a.label('Lg')
        a(f'{l0}:')
        a(f'buffer_load_dword v{R}, v{det}, {S_WS}, s32 offen sc1'); a('s_waitcnt vmcnt(0)'); a(f'v_cmp_eq_u32 vcc, -1, v{R}')
        poll_tail(a, l0, l0d)
    stamp(a, opt, st[0])
    ld_masked(a, n, R, 's32'); ld_masked(a, n, Q, 's33')
    if rb: a(f's_sleep {rb}'); ld_masked(a, n, Q, 's33')
    chk(R, ML, 2*n if rb else n)
    a(f's_cbranch_scc1 {l1}')
    a(f'{l1ok}:')
    stamp(a, opt, st[1])
    def expand():
        for c in range(n):
            for i in range(4):
                a(f'v_lshlrev_b32 v{VA+8*c+2*i}, 16, v{R+4*c+i}'); a(f'v_and_b32 v{VA+8*c+2*i+1}, 0xffff0000, v{R+4*c+i}')
    def add(c, check=False):
        b = VA + 8*c; q = Q + 4*c
        if check: a(f's_waitcnt vmcnt({n-1-c})'); a(f'v_max3_u32 v{T}, v{q}, v{q+1}, v{q+2}')
        for i in range(4):
            a(f'v_dot2c_f32_bf16 v{b+2*i}, {S_ONE0}, v{q+i}'); a(f'v_dot2c_f32_bf16 v{b+2*i+1}, {S_ONE1}, v{q+i}')
        if check: a(f'v_max_u32 v{T}, v{T}, v{q+3}'); a(f'v_cmp_eq_u32 {MR[c]}, -1, v{T}')
        for i in range(4): a(f'v_cvt_pk_bf16_f32 v{b+i}, v{b+2*i}, v{b+2*i+1}')
        a(f'ds_write_b128 v{VGW}, v[{b}:{b+3}] offset:{c*1024}')
    expand()
    if spec:
        for c in range(n): add(c, True)
        mask_or(a, MR[:n])
        a(f's_cbranch_scc1 {l2}')
        a(f'{l2ok}:')
        stamp(a, opt, st[2])
    else:
        chk(Q, MR, n if rb else 0)
        a(f's_cbranch_scc1 {l2}')
        a(f'{l2ok}:')
        stamp(a, opt, st[2])
        for c in range(n): add(c)
    def outofline():
        a(f'{l1}:')
        ld_masked(a, n, R, 's32', ML); chk(Q, MR, n)
        ld_masked(a, n, Q, 's33', MR); chk(R, ML, n)
        a(f's_cbranch_scc0 {l1ok}')
        budget_loop(a, l1, l1ok)
        a(f'{l2}:')
        if rb: chk(Q, MR, 0); a(f's_cbranch_scc0 {l2ok}')
        for _ in range(dep - 1):
            ld_masked(a, n, Q, 's33', MR); a(f's_sleep {gap}')
        a(f'{l2b}:')
        ld_masked(a, n, Q, 's33', MR)
        if spec: expand()
        chk(Q, MR, n*(dep - 1))
        if not spec:
            a(f's_cbranch_scc0 {l2ok}')
            budget_loop(a, l2b, l2ok)
            return
        l2c, l2d = a.label('Lg'), a.label('Lg')
        a(f's_cbranch_scc0 {l2d}')
        a(f'{l2c}:')
        ld_masked(a, n, Q, 's33', MR); chk(Q, MR, 0)
        a(f's_cbranch_scc0 {l2d}')
        budget_loop(a, l2c, l2d)
        a(f'{l2d}:')
        for c in range(n): add(c)
        a(f's_branch {l2ok}')
    return outofline

def a_read(kb, reg):
    return ('lds', f'ds_read_b128 v[{reg}:{reg+3}], v{VAR} offset:{kb*1024}', f'A{kb}')
def frag_reads(lf, slot):
    return [('lds', f'ds_read_b128 v[{VB+8*slot+4*x}:{VB+8*slot+4*x+3}], v{VFR} offset:{lf*2048 + x*1024}', f'F{lf}') for x in range(2)]
def smf(acc, A, B): return f'v_smfmac_f32_16x16x64_bf16 v[{acc}:{acc+3}], v[{A}:{A+3}], {B}, v{VIDX}'
def post(acc, out, scale=None, pk=False):
    if pk: r = [f'v_pk_add_f32 v[{acc}:{acc+1}], v[{acc}:{acc+1}], v[{acc+2}:{acc+3}]']
    else: r = [f'v_add_f32 v{acc+i}, v{acc+i}, v{acc+2+i}' for i in range(2)]
    if scale: r += [f'v_mul_f32 v{acc+i}, {scale}, v{acc+i}' for i in range(2)]
    return r + [f'v_cvt_pk_bf16_f32 v{out}, v{acc}, v{acc+1}']

def allred(op, v, t, stages=(16, 32)):
    r = []
    for st in stages: r += [f'v_mov_b32 v{t}, v{v}', f'v_permlane{st}_swap_b32 v{v}, v{t}', f'{op} v{v}, v{v}, v{t}']
    return r

def stamp_flush(a, opt, n):
    if not opt.get('stamps'): return
    a('s_waitcnt lgkmcnt(0)')
    a(f's_lshl_b32 s67, {SSLOT}, 2'); a(f's_add_u32 s67, s67, {SWV}'); a('s_lshl_b32 s67, s67, 6'); a(f's_add_u32 s67, s67, {SSTEP}')
    a('s_lshl_b32 s67, s67, 6'); a(f's_add_u32 s67, s67, {STAMP_OFF}')
    a(f'v_lshlrev_b32 v{VT1}, 2, v0')
    for i in range(n): a(f'v_writelane_b32 v{VT0}, s{STAMP0+2*i}, {i}')
    a('s_mov_b64 exec, 0xffff')
    a(f'buffer_store_dword v{VT0}, v{VT1}, {S_WS}, s67 offen')
    a('s_mov_b64 exec, -1')

SPC = 's60'
SMR = 's59'
SELF = 3
def check_flags(a, opt, kind, skip=None, early=None):
    if opt.get('noflags'): return
    lp, ld = a.label('Lf'), a.label('Lfd')
    a(f's_sub_u32 s61, s82, {LEAD-4}'); a('s_max_i32 s61, s61, 0'); a('s_lshr_b32 s61, s61, 2'); a('s_add_u32 s61, s61, s82')
    a(f's_cmp_gt_u32 {SPC}, s61'); a(f's_cbranch_scc1 {ld}')
    if early:
        a(f's_waitcnt vmcnt({early[1]})')
        for r in (8, 4, 2, 1): a(f'v_min_u32_dpp v{early[0]}, v{early[0]}, v{early[0]} row_ror:{r} row_mask:0xf bank_mask:0xf')
        a(f'v_readfirstlane_b32 {SPC}, v{early[0]}')
        a(f's_cmp_gt_u32 {SPC}, s61'); a(f's_cbranch_scc1 {ld}')
    if kind == 'K': a(f'v_and_b32 v{VT1}, 15, v0'); a(f'v_min_u32 v{VT1}, 2, v{VT1}'); a(f'v_lshlrev_b32 v{VT1}, 7, v{VT1}')
    elif kind == 'Y16': a(f'v_and_b32 v{VT1}, 15, v0'); a(f'v_lshlrev_b32 v{VT1}, 7, v{VT1}')
    else: a(f'v_and_b32 v{VT1}, 3, v0'); a(f'v_mul_u32_u24 v{VT1}, {40*128}, v{VT1}')
    a(f'{lp}:')
    a(f'buffer_load_dword v{VT0}, v{VT1}, {S_WS}, s81 offen sc1'); a('s_waitcnt vmcnt(0)')
    for r in (8, 4, 2, 1): a(f'v_min_u32_dpp v{VT0}, v{VT0}, v{VT0} row_ror:{r} row_mask:0xf bank_mask:0xf')
    a(f'v_readfirstlane_b32 {SPC}, v{VT0}')
    a(f's_cmp_gt_u32 {SPC}, s61'); a(f's_cbranch_scc1 {ld}')
    if skip: a(f's_cmp_lt_u32 s82, {opt.get("self", SELF)}'); a(f's_cbranch_scc1 {skip}')
    budget_loop(a, lp, ld)
    a(f'{ld}:')

def cprog(a):
    a('s_waitcnt vmcnt(0)')
    a(f's_lshl_b32 s67, {SSLOT}, 7'); a(f's_add_u32 s67, s67, {CPRG_OFF}'); a(f's_add_u32 s68, {SSTEP}, 1'); a(f'v_mov_b32 v{VT0}, s68'); a(f'v_mov_b32 v{VT1}, 0')
    a('s_mov_b64 exec, 1')
    a(f'buffer_store_dword v{VT0}, v{VT1}, {S_WS}, s67 offen sc1')
    a('s_mov_b64 exec, -1')

def load_frags6(a, dst, base_off, ct, seg='s82'):
    a(f's_lshl_b32 s67, {seg}, 5'); a(f's_add_u32 s67, s67, {SH}'); a('s_mul_i32 s67, s67, 12288')
    a(f's_add_u32 s67, s67, {base_off + ct*6144}'); a('s_add_u32 s68, s67, 4096')
    for kk in range(6):
        a(f'buffer_load_dwordx4 v[{dst+4*kk}:{dst+4*kk+3}], v{VL16}, {S_WS}, {"s67" if kk < 4 else "s68"} offen offset:{(kk&3)*1024} {STREAM[0]}')

def build_stream(first_items, second_items):
    items = []; ldsq = []; idx2 = {}
    def add(it):
        kind, acc, A, ref, needs = it
        if kind == 'reg': items.append((smf(acc, A, wfrag(ref)), needs))
        elif kind == 'lds':
            sl = len(ldsq) % 4; ldsq.append((len(items), ref, sl))
            items.append((smf(acc, A, f'v[{VB+8*sl}:{VB+8*sl+7}]'), needs + [f'F{ref}']))
        else: items.append((ref, needs))
    for it in first_items: add(it)
    n = 0
    for it in second_items:
        if it[0] != 'raw': idx2[n] = len(items); n += 1
        add(it)
    return items, ldsq, idx2

class Sides:
    def __init__(self): self.side = {}; self.busy = set(); self.vbusy = {}
    def put(self, g, r): self.side.setdefault(g, []).append(r)
    def lds(self, g, r, force=False):
        if not force:
            while g in self.busy: g += 1
        self.put(g, r); self.busy.add(g); return g
    def valu(self, g, instrs, per=1):
        last = g - 1; end = g
        for s in instrs:
            if s is None: g = last + 2; continue
            if isinstance(s, tuple): self.lds(last + 1, s, True); end = max(end, last + 2); continue
            if not s.startswith('v_'): self.put(last + 1, s); end = max(end, last + 2); continue
            while self.vbusy.get(g, 0) >= per: g += 1
            self.put(g, s); self.vbusy[g] = self.vbusy.get(g, 0) + 1; last = g; end = max(end, g + 1)
        self.nxt = g
        return end
    def refills(self, ldsq):
        for n in range(len(ldsq) - 4):
            g = ldsq[n][0]
            lim = ldsq[n+4][0] - 6
            for r in frag_reads(ldsq[n+4][1], ldsq[n][2]):
                g2 = g
                while g2 in self.busy: g2 += 1
                if g2 <= lim: g = self.lds(g2, r)
                else: g = self.lds(max(g, min(lim, g + 1)), r, True)
                assert g < ldsq[n+4][0] - 1, (n, g, ldsq[n+4])

DPP8 = 'row_ror:8 row_mask:0xf bank_mask:0xf'
def dense_reads(dst, off, tagp, kks=range(6)):
    return [('lds', f'ds_read_b64_tr_b16 v[{dst+4*kk+2*x}:{dst+4*kk+2*x+1}], v{VDR} offset:{off + (2*kk+x)*256}', f'{tagp}{kk}')
            for kk in kks for x in range(2)]

def preload_b(a, lg, ldsq):
    for n in range(4):
        for r in frag_reads(ldsq[n][1], ldsq[n][2]): a(r[1]); lg.issue(r[2])

QORD = [[0, 1, 2, 3, 4, 5, 6, 7, 9, 8], [3, 4, 5, 0, 1, 2, 6, 7, 9, 8], [6, 7, 2, 0, 1, 5, 3, 4, 9, 8], [8, 9, 0, 1, 2, 3, 4, 6, 5, 7]]
KORD = [0, 2, 1, 3, 5, 4, 6, 9, 7, 8]

def qk_setup(a, opt):
    common_addr(a)
    T = VTMP
    rho = lambda l: arow(l & 7, (l >> 3) & 1)
    lanefn(a, VXW, lambda l: LDS_MEM + (l & 15)*16 + (l >> 4)*4, T, 256)
    lanefn(a, VDR, lambda l: LDS_MEM + (l >> 2)*16 + (l & 1)*8, T)
    lanefn(a, V9, lambda l: (l >> 5)*256 + rho(l)*16 + ((l >> 4) & 1)*8, T)
    lanefn(a, V10, lambda l: rho(l)*16 + ((l >> 4) & 1)*4, T)
    lanefn(a, V11, lambda l: LDS_MEM + 3072 + l*16, T)
    lanefn(a, V12, lambda l: LDS_MEM + ((l >> 3) & 1)*512 + arow(l & 7, l >> 5)*16 + ((l >> 4) & 1)*8, T)
    a(f's_and_b32 s68, {SH}, 15'); a('s_min_u32 s68, s68, 9'); a('s_lshl_b32 s68, s68, 10'); a(f'v_add_u32 v{V12}, s68, v{V12}')
    lanefn(a, VXS, lambda l: ((l >> 3) & 1)*1024 + (l >> 4)*256 + (l & 7)*16, T)
    a(f's_mul_i32 s67, {SX}, 12288'); a(f's_add_u32 s67, s67, {PA_OFF}')
    a(f's_and_b32 s68, {SH}, 15'); a('s_lshl_b32 s76, s68, 9'); a('s_add_u32 s76, s76, s67')
    a('s_lshr_b32 s77, s68, 1'); a('s_lshl_b32 s77, s77, 8'); a('s_add_u32 s77, s77, s67')
    a('s_and_b32 s68, s68, 1'); a('s_lshl_b32 s68, s68, 3'); a('s_add_u32 s77, s77, s68'); a('s_add_u32 s77, s77, 8192')

def qk_init_clear(a):
    a(f'v_mov_b32 v{VA+16}, -1'); a(f'v_mov_b32 v{VA+17}, -1')
    a(f'buffer_store_dwordx2 v[{VA+16}:{VA+17}], v{V9}, {S_WS}, s76 offen sc1')
    a(f'buffer_store_dword v{VA+16}, v{V10}, {S_WS}, s77 offen sc1')

def mf(D, A, B, first): return f'v_mfma_f32_16x16x32_bf16 v[{D}:{D+3}], v[{A}:{A+3}], v[{B}:{B+3}], ' + ('0' if first else f'v[{D}:{D+3}]')

def stream_head(sd, w, order, AP, opt, rest):
    g = opt.get('gb1', 3)
    sd.put(g, ('wait', 'GW')); sd.put(g, 's_barrier')
    for kb in order:
        if kb not in OWN[w]:
            sd.lds(g, a_read(kb, AP[kb]), True); g += 1
    return g

def qk_loop(a, w, sc, opt):
    VZ = VTMP + 15
    lg = Trk(a, 'lgkmcnt', 15)
    ltop, lent, lfin = a.label('Lqk'), a.label('Lqkent'), a.label('Lqkfin')
    QEX = LDS_EX - LDS_MEM
    SACC, SM = VTMP, VTMP + 4
    QO = QORD[w]
    AP = apos(w, QO)
    seq = [(kb, t) for kb in QO[:6] for t in range(3)] + [(kb, t) for t in range(3) for kb in QO[6:]]
    first = [(xfrag(kb, t, 0)[0], VACC0 + 4*t, AP[kb], xfrag(kb, t, 0)[1], [f'A{kb}']) for kb, t in seq]
    second = []
    n = 0
    SX0 = opt.get('sx0', 19); QS = opt.get('qscale', 0)
    for t in range(3):
        for kb in KORD:
            second.append((xfrag(kb, t, 1)[0], VACC1 + 4*t, AP[kb], xfrag(kb, t, 1)[1], []))
            if w >= 2 and n == SX0:
                for kk in range(6): second.append(('raw', 0, 0, mf(SACC, VKX + 4*kk, VQF + 4*kk, kk == 0), [f'Q{kk}']))
            if w == 0 and n == 29:
                for kk in range(4): second.append(('raw', 0, 0, mf(SM, VKX + 4*kk, VQF + 4*kk, kk == 0), [f'K{kk}', f'Q{kk}']))
            n += 1
    items, ldsq, k2 = build_stream(first, second)
    sd = Sides()
    stream_head(sd, w, QO, AP, opt, None)
    sd.put(opt.get('gb1', 3), lambda o_=opt: stamp(a, o_, 1))
    pub_rd = [('lds', f'ds_read_b64 v[{VKX+2*x}:{VKX+2*x+1}], v{V12} offset:{x*256}', 'PUB') for x in range(2)]
    pub_st = f'buffer_store_dwordx4 v[{VKX}:{VKX+3}], v{VXS}, {S_WS}, s44 offen sc1'
    if w == 1:
        sd.put(0, f'buffer_store_dword v{VT1}, v{VT2}, {S_WS}, s46 offen sc1')
        for r in pub_rd: sd.lds(18, r)
        sd.put(25, ('wait', 'PUB')); sd.put(opt.get('pubg', 25), pub_st)
        for j in range(6):
            sd.put(1 + 3*j, f'buffer_load_dword v{VKX+4+j}, v{V9}, {S_WS}, s{[45, 48, 49][j >> 1]} offen sc1')
            if j % 2 == 0: sd.put(2 + 3*j, f's_add_u32 s{[45, 48, 49][j >> 1]}, s{[45, 48, 49][j >> 1]}, 8192')
    if w == 0:
        sd.put(opt.get('kt0', 1), f'buffer_load_dword v{VTMP+13}, v{V12}, {S_WS}, s45 offen sc1')
        sd.put(opt.get('kt0', 1) + 4, f'buffer_load_dword v{VTMP+13}, v{VXS}, {S_WS}, s45 offen sc1')
        if opt.get('async', 0): sd.put(19, f'buffer_load_dword v{VTMP+14}, v{VT2}, {S_WS}, s54 offen sc1')
    if w == 1 and opt.get('async', 0): sd.put(opt.get('w1p', 21), f'buffer_load_dword v{V11}, v{V10}, {S_WS}, s54 offen sc1')
    wr = lambda acc, t, off, tag: ('lds', f'ds_write_b32 v{VXW}, v{acc} offset:{off + t*1024}', tag)
    for t in range(3): gq = sd.valu([23, 27, 31][t], post(VACC0 + 4*t, VACC0 + 4*t, 's52' if QS else None) + [wr(VACC0 + 4*t, t, QEX, 'QW')], opt.get('qper', [1, 1, 2])[t])
    gb = gq + opt.get('gba', [3, 1, 4, 4])[w]
    if w != 1: sd.put(gb, f's_waitcnt vmcnt({0 if w else 2 + opt.get("async", 0)})')
    sd.put(gb, ('wait', 'QW')); sd.put(gb, 's_barrier')
    if opt.get('diag'): sd.put(gb, lambda: stamp(a, opt, 0))
    if w >= 2:
        for i, r in enumerate(dense_reads(VQF, QEX, 'Q')): sd.lds(gb + (i * opt.get('qspan', 10)) // 12, r, True)
    gk = 0
    for t in range(2): gk = sd.valu(k2[10*t + 9] + 2, post(VACC1 + 4*t, VACC1 + 4*t) + [wr(VACC1 + 4*t, t, 0, 'KW')])
    gB = gk + opt.get('gbb', [1, 1, 3, 3])[w]
    sd.put(gB, ('wait', 'KW')); sd.put(gB, 's_barrier')
    assert gB < len(items)
    if w == 0:
        for i, r in enumerate(dense_reads(VKX, 0, 'K', range(4))): sd.lds(gB + i // opt.get('krd', 3), r, True)
    sd.valu(k2[29] + 2, post(VACC1 + 8, VACC1 + 8, None, w > 0) + [wr(VACC1 + 8, 2, 0, 'KW')])
    E0, T, X0 = VTMP + 8, VTMP + 12, VTMP + 4
    ool4 = None
    if w >= 2:
        lsx, lsxb = a.label('Lsx'), a.label('Lsxb')
        p0 = [f'v_cndmask_b32 v{X0}, v{SACC}, v{SACC+2}, {SMASK8}', f'v_cndmask_b32 v{X0+1}, v{SACC+1}, v{SACC+3}, {SMASK8}',
              f'v_exp_f32 v{E0}, v{X0}', f'v_exp_f32 v{E0+1}, v{X0+1}',
              f'v_max_f32 v{T}, |v{X0}|, |v{X0+1}|', f'v_add_f32 v{E0+3}, v{E0}, v{E0+1}', f'v_cmp_lt_f32 vcc, s79, v{T}']
        if not QS: p0[2:2] = [f'v_mul_f32 v{X0}, s52, v{X0}', f'v_mul_f32 v{X0+1}, s52, v{X0+1}']
        np2 = opt.get('np2', 2 if QS else 4)
        sd.valu(k2[SX0 + 2], p0[:np2], 2)
        g = sd.valu(sd.nxt + 1, p0[np2:])
        sd.put(g, lambda: (a(f's_cbranch_vccnz {lsx}'), a(f'{lsxb}:')))
        sd.lds(g, ('lds', f'ds_write_b128 v{V11}, v[{E0}:{E0+3}] offset:{(w-2)*1024}', 'EW'), True)
        def ool4():
            m = E0 + 2
            a(f'{lsx}:')
            a(f'v_max_f32 v{m}, v{X0}, v{X0+1}'); a(f'v_max_f32_dpp v{m}, v{m}, v{m} {DPP8}')
            for s_ in allred('v_max_f32', m, T): a(s_)
            for i in range(2): a(f'v_sub_f32 v{E0+i}, v{X0+i}, v{m}')
            for i in range(2): a(f'v_exp_f32 v{E0+i}, v{E0+i}')
            a(f'v_add_f32 v{E0+3}, v{E0}, v{E0+1}')
            a(f's_branch {lsxb}')
        sd.valu(5, [f'v_mov_b32 v{E0+2}, 0'])
    sd.refills(ldsq)
    if w == 0:
        for i, r in enumerate(dense_reads(VQF, QEX, 'Q')):
            g = gb
            while g in sd.busy and g < gB - 1: g += 1
            sd.lds(g if g < gB - 1 else gB - 2 - (i & 3), r, True)
    if opt.get('dq'):
        for i_, g_ in zip((0, 6, 7, 3, 4), opt['dq']): sd.put(g_, lambda i_=i_: stamp(a, dict(stamps=1, cyc=1), i_))
        opt = {k_: v_ for k_, v_ in opt.items() if k_ != 'stamps'}; opt['dq1'] = 1

    def top():
        preload_b(a, lg, ldsq)
        for r in range(0, 24, 2): a(f'v_mov_b64 v[{VACC0+r}:{VACC0+r+1}], 0')
        if w == 0: a(f's_bitcmp1_b32 {SSTEP}, 0'); a('s_cselect_b32 s78, -1.0, 1.0')
        if w == 1:
            a(f'v_mov_b32 v{VT1}, {SSTEP}')
            a(f's_lshr_b32 s67, {SSTEP}, 2'); a('s_mul_i32 s44, s67, 40960'); a(f's_bfe_u32 s67, {SSTEP}, 0x10001'); a('s_mul_i32 s67, s67, 20480')
            a('s_add_u32 s44, s44, s67'); a(f's_and_b32 s67, {SSTEP}, 1'); a('s_lshl_b32 s67, s67, 7'); a('s_add_u32 s44, s44, s67'); a('s_add_u32 s44, s44, s47')
    def prefetch():
        ls = a.label('Lnp')
        if w <= 1: a(f's_mov_b32 s45, {OOB}')
        a(f's_cmp_ge_u32 s82, {1 if opt.get("nopf") else 63}'); a(f's_cbranch_scc1 {ls}')
        if w >= 2:
            lk = a.label('Lk')
            a(f's_cmp_ge_u32 s82, {opt.get("self", SELF)}'); a(f's_cbranch_scc1 {lk}')
            check_flags(a, opt, 'K')
            a(f'{lk}:')
            load_frags6(a, VKX, KF_OFF, w - 2)
        elif w == 0:
            check_flags(a, opt, 'K', ls, (VTMP + 14, 2) if opt.get('async', 0) else None)
            a(f's_lshl_b32 s45, s82, 5'); a(f's_add_u32 s45, s45, {SH}'); a('s_mul_i32 s45, s45, 12288'); a(f's_add_u32 s45, s45, {KF_OFF}')
        elif not opt.get('notouch'):
            check_flags(a, opt, 'Y16', ls, (V11, 1 if opt.get('w1p', 21) < opt.get('pubg', 25) else 0) if opt.get('async', 0) else None)
            a(f's_mul_i32 s45, s82, {40*40960}'); a('s_add_u32 s45, s45, s50')
        a(f'{ls}:')
        if w <= 1 and opt.get('async', 0):
            a(f's_sub_u32 s61, s82, {LEAD-4-1}'); a('s_max_i32 s61, s61, 0'); a('s_lshr_b32 s61, s61, 2'); a('s_add_u32 s61, s61, s82'); a('s_add_u32 s61, s61, 1')
            a(f's_cmp_gt_u32 {SPC}, s61'); a(f's_cselect_b32 s54, {OOB}, s81')
        if w == 1:
            a(f's_add_u32 s48, s45, {16*40960}'); a(f's_add_u32 s49, s45, {32*40960}'); a(f's_bitcmp1_b32 {SH}, 3'); a(f's_cselect_b32 s49, {OOB}, s49')
    a(f's_mov_b32 {SSTEP}, 0'); a(f's_mov_b32 s52, {f2u(SC):#x}'); a('s_mov_b32 s53, s52'); a(f's_mov_b32 s79, {f2u(opt.get("safe", 60.0)):#x}')
    if w != 1: a(f's_mul_i32 s81, {SH}, 384'); a(f's_add_u32 s81, s81, {PRGX_OFF + 96*128}')
    if w >= 2: a('s_mov_b32 s82, 0'); prefetch()
    if w == 0:
        a(f's_mov_b32 s45, {OOB}'); a(f'v_lshlrev_b32 v{V12}, 7, v0'); a(f'v_add_u32 v{VXS}, 8192, v{V12}'); a(f'v_min_u32 v{VXS}, 12160, v{VXS}')
        a(f'v_and_b32 v{VT2}, 15, v0'); a(f'v_min_u32 v{VT2}, 2, v{VT2}'); a(f'v_lshlrev_b32 v{VT2}, 7, v{VT2}')
    if w == 1:
        a(f'v_lshlrev_b32 v{V9}, 7, v0'); a(f'v_and_b32 v{V10}, 15, v0'); a(f'v_lshlrev_b32 v{V10}, 7, v{V10}')
        a(f'v_cmp_eq_u32 vcc, 0, v0'); a(f'v_mov_b32 v{VT2}, 0x40000000'); a(f'v_cndmask_b32 v{VT2}, v{VT2}, 0, vcc')
        a(f's_lshl_b32 s81, {SX}, 11'); a(f's_bfe_u32 s67, {SH}, 0x20002'); a(f's_mul_i32 s67, s67, {40*128}'); a('s_add_u32 s81, s81, s67'); a(f's_add_u32 s81, s81, {PRGY_OFF}')
        a(f's_and_b32 s50, {SH}, 15'); a('s_mul_i32 s50, s50, 40960'); a(f's_lshl_b32 s67, {SX}, 14'); a('s_add_u32 s50, s50, s67'); a(f's_add_u32 s50, s50, {VOF_OFF}')
        a(f's_lshl_b32 s46, {SH}, 7'); a(f's_add_u32 s46, s46, {MPRG_OFF}'); a(f's_lshl_b32 s47, {SH}, 11'); a(f's_add_u32 s47, s47, {XN_OFF + 64*40960}')
        a(f's_cmp_ge_u32 {SH}, 10'); a(f's_cselect_b32 s46, {OOB}, s46'); a(f's_cselect_b32 s47, {OOB}, s47')
        for r in (45, 48, 49): a(f's_mov_b32 s{r}, {OOB}')
    if w <= 1: a('s_mov_b32 s54, s81')
    top()
    for kb in OWN[w]: a(a_read(kb, AP[kb])[1])
    a('s_waitcnt lgkmcnt(0)')
    a(f's_branch {lent}')
    a(f'{ltop}:')
    lg.reset()
    a('s_barrier')
    a(f's_add_u32 s82, {SSTEP}, {[1, opt.get("tahead", 2) - 1, 0, 0][w]}'); prefetch()
    top()
    gather_setup(a)
    qs = opt.get('qsleep', 10) - (opt.get('qsk', 2) if w >= 2 else 0)
    if qs > 0: a(f's_sleep {qs}')
    if opt.get('qdet', 0): a(f'v_and_b32 v{VZ}, {(8 if NCH[w] == 2 else 16) - 1}, v0'); a(f'v_min_u32 v{VZ}, {4*NCH[w]-1}, v{VZ}'); a(f'v_lshlrev_b32 v{VZ}, 8, v{VZ}')
    else: a(f'v_mov_b32 v{VZ}, 0')
    a('s_waitcnt lgkmcnt(0)')
    if opt.get('mg', 1): ool = gather_m(a, NCH[w], VTMP, VQF, VTMP + 12, opt, (0, 6, 7), VZ if opt.get('qd', 1) else None, 1, 0, opt.get('spec', 0), opt.get('rbq', 0))
    else: ool = gather(a, NCH[w], VTMP, {k: v for k, v in opt.items() if k != 'stamps'} if opt.get('diag') else opt, (0, 6, 7), opt.get('qrs', 0), VQF if opt.get('qj', 1) else None, VZ if opt.get('qj', 1) else None)
    a(f'{lent}:')
    lg.reset(); lg.issue('GW')
    left = [x_ for g_ in sorted(sd.side) if g_ >= len(items) for x_ in sd.side[g_]]
    merge(a, lg, items, sd.side)
    for x_ in left: merge(a, lg, [], {-1: [x_]})
    if opt.get('dq1'): stamp(a, dict(stamps=1, cyc=1), 2)
    stamp(a, opt, 2)
    EA, EB = VB, VB + 4
    U, LM, F0, F1, LS = VB + 8, VB + 9, VB + 10, VB + 11, VB + 12
    redl = [f'v_add_f32_dpp v{LS}, v{LS}, v{LS} {DPP8}', f'v_mov_b32 v{T}, v{LS}', f'v_permlane16_swap_b32 v{LS}, v{T}', f'v_add_f32 v{LS}, v{LS}, v{T}',
            f'v_mov_b32 v{T}, v{LS}', f'v_permlane32_swap_b32 v{LS}, v{T}', f'v_add_f32 v{LS}, v{LS}, v{T}', f'v_mul_f32 v{LS}, s78, v{LS}']
    lg.all(); a('s_barrier')
    if opt.get('diag'): stamp(a, opt, 6)
    ool3 = None
    if w == 0:
        lslow, lback = a.label('Lsm'), a.label('Lsb')
        for r in dense_reads(VKX, 0, 'K', range(4, 6)): a(r[1]); lg.issue(r[2])
        a(f'ds_read_b128 v[{EA}:{EA+3}], v{V11}'); lg.issue('E'); a(f'ds_read_b128 v[{EB}:{EB+3}], v{V11} offset:1024'); lg.issue('E')
        for kk in range(4, 6):
            lg.wait(f'K{kk}'); a(mf(SM, VKX + 4*kk, VQF + 4*kk, False))
        lg.wait('E')
        for s_ in [f'v_add_f32 v{LS}, v{EA+3}, v{EB+3}', f'v_max_f32 v{U}, |v{EA+2}|, |v{EB+2}|', f'v_mul_f32 v{U}, 0x71800000, v{U}', redl[0], redl[1]]: a(s_)
        stamp(a, opt, 3)
        T2, PO = VB + 13, VB + 16
        a(f'v_cndmask_b32 v{SM}, v{SM}, v{SM+2}, {SMASK8}'); a(f'v_cndmask_b32 v{SM+1}, v{SM+1}, v{SM+3}, {SMASK8}')
        if not QS: a(f'v_mul_f32 v{SM}, s52, v{SM}'); a(f'v_mul_f32 v{SM+1}, s52, v{SM+1}')
        a(f'v_exp_f32 v{SM+2}, v{SM}'); a(f'v_exp_f32 v{SM+3}, v{SM+1}')
        a(redl[2]); a(f'v_max3_f32 v{U}, |v{SM}|, |v{SM+1}|, v{U}'); a(redl[3])
        a(f'v_add_f32 v{LM}, v{SM+2}, v{SM+3}')
        a(redl[4])
        a(f'v_cmp_lt_f32 vcc, s79, v{U}')
        def fin(first):
            a(f'v_add_f32_dpp v{LM}, v{LM}, v{LM} {DPP8}')
            if first: a(redl[5])
            a(f'v_mov_b32 v{T2}, v{LM}')
            if first: a(redl[6]); a(redl[7])
            a(f'v_permlane16_swap_b32 v{LM}, v{T2}'); a(f'v_add_f32 v{LM}, v{LM}, v{T2}')
            a(f'v_fma_f32 v{LM}, v{LM}, s78, v{LS}')
            a(f'v_rcp_f32 v{LM}, v{LM}')
            a(f'v_pk_mul_f32 v[{PO}:{PO+1}], v[{EA}:{EA+1}], v[{LM-1}:{LM}] op_sel:[0,1]'); a(f'v_pk_mul_f32 v[{PO+2}:{PO+3}], v[{EB}:{EB+1}], v[{LM-1}:{LM}] op_sel:[0,1]')
            a(f'v_cvt_pk_bf16_f32 v{PO}, v{PO}, v{PO+1}'); a(f'v_cvt_pk_bf16_f32 v{PO+1}, v{PO+2}, v{PO+3}')
        fin(True)
        a(f's_cbranch_vccnz {lslow}')
        a(f'{lback}:')
        a(f'buffer_store_dwordx2 v[{PO}:{PO+1}], v{V9}, {S_WS}, s76 offen {sc}')
        a(f'v_pk_mul_f32 v[{SM+2}:{SM+3}], v[{SM+2}:{SM+3}], v[{LM-1}:{LM}] op_sel:[0,1]')
        a(f'v_cvt_pk_bf16_f32 v{SM}, v{SM+2}, v{SM+3}')
        a(f'buffer_store_dword v{SM}, v{V10}, {S_WS}, s77 offen {sc}')
        stamp(a, opt, 4)
        if opt.get('diagp'): a('s_waitcnt vmcnt(0)')
        lkm, lkb = a.label('Lkm'), a.label('Lkb')
        a(f's_cmp_ge_u32 {SSTEP}, {4*NMB}'); a(f's_cbranch_scc1 {lkm}')
        a(f'{lkb}:')
        def ool3():
            a(f'{lkm}:')
            a(f's_mul_i32 s72, {SH}, 12288'); a(f's_bfe_u32 s67, {SSTEP}, 0x10001'); a('s_mul_i32 s67, s67, 6144'); a('s_add_u32 s72, s72, s67')
            a(f's_add_u32 s72, s72, {KF_OFF + (64 + NMB)*32*12288}'); a('s_add_u32 s73, s72, 4096')
            a(f's_bitcmp1_b32 {SSTEP}, 0'); a('s_cselect_b32 s74, 8, 0'); a('s_lshl_b32 s74, 0x00ff00ff, s74'); a('s_mov_b32 exec_lo, s74'); a('s_mov_b32 exec_hi, s74')
            for kk in range(6): a(f'buffer_store_dwordx4 v[{VKX+4*kk}:{VKX+4*kk+3}], v{VL16}, {S_WS}, s{72 + (kk >> 2)} offen offset:{(kk & 3)*1024} sc1')
            a('s_mov_b64 exec, -1')
            cprog(a)
            a(f's_branch {lkb}')
            a(f'{lslow}:')
            a(f'v_max_f32 v{U}, v{SM}, v{SM+1}'); a(f'v_max_f32_dpp v{U}, v{U}, v{U} {DPP8}')
            for s_ in allred('v_max_f32', U, T, (16,)): a(s_)
            a(f'v_max3_f32 v{U}, v{U}, v{EA+2}, v{EB+2}')
            a(f'v_sub_f32 v{SM}, v{SM}, v{U}'); a(f'v_sub_f32 v{SM+1}, v{SM+1}, v{U}'); a(f'v_sub_f32 v{F0}, v{EA+2}, v{U}'); a(f'v_sub_f32 v{F1}, v{EB+2}, v{U}')
            a(f'v_exp_f32 v{SM+2}, v{SM}'); a(f'v_exp_f32 v{SM+3}, v{SM+1}'); a(f'v_exp_f32 v{F0}, v{F0}'); a(f'v_exp_f32 v{F1}, v{F1}')
            a(f'v_mul_f32 v{LS}, v{EA+3}, v{F0}'); a(f'v_fmac_f32 v{LS}, v{EB+3}, v{F1}')
            for s_ in redl: a(s_)
            for i in range(2): a(f'v_mul_f32 v{EA+i}, v{EA+i}, v{F0}'); a(f'v_mul_f32 v{EB+i}, v{EB+i}, v{F1}')
            a(f'v_add_f32 v{LM}, v{SM+2}, v{SM+3}')
            fin(False)
            a(f's_branch {lback}')
    if opt.get('dq1'): opt = dict(opt, stamps=1)
    stamp(a, opt, 5)
    stamp_flush(a, opt, 8)
    a(f's_add_u32 {SSTEP}, {SSTEP}, 1'); a(f's_cmp_lt_u32 {SSTEP}, 64'); a(f's_cbranch_scc1 {ltop}')
    a('s_waitcnt vmcnt(0)'); a('s_endpgm')
    ool()
    if ool3: ool3()
    if ool4: ool4()

def vo_setup(a, opt):
    common_addr(a)
    T = VTMP
    lanefn(a, VXW, lambda l: LDS_EX + tile_pat(l), T, 256)
    a(f'v_and_b32 v{T}, 1, v0'); a(f'v_cmp_ne_u32 vcc, 0, v{T}'); a(f'v_mov_b32 v{T}, 0x05040100'); a(f'v_mov_b32 v{T+1}, 0x03020706')
    a(f'v_cndmask_b32 v{VXS}, v{T}, v{T+1}, vcc')
    lanefn(a, V9, lambda l: ((l >> 4) & 1)*1024 + (l & 15)*16 + (l >> 5)*8, T, 256)
    lanefn(a, V10, lambda l: (l >> 4)*10240 + (l & 15)*16, T)
    lanefn(a, V11, lambda l: (l >> 4)*1024 + (l & 15)*16, T, 256)
    lanefn(a, V12, tile_pat, T)
    a(f's_and_b32 {SDT}, {SH}, 15'); a(f's_lshl_b32 s67, {SWV}, 4'); a(f's_add_u32 {SDT}, {SDT}, s67')
    a(f's_lshl_b32 s81, {SX}, 11'); a(f's_bfe_u32 s67, {SDT}, 0x20002'); a(f's_mul_i32 s67, s67, {40*128}'); a('s_add_u32 s81, s81, s67'); a(f's_add_u32 s81, s81, {PRGY_OFF}')
    a(f's_mul_i32 s44, {SH}, 10240'); a(f's_add_u32 s44, s44, {VOMR_OFF}'); a('s_add_u32 s45, s44, 4096'); a('s_add_u32 s46, s44, 8192')
    a(f's_mul_i32 s72, {SX}, {16*10240}'); a(f's_lshl_b32 s68, {SDT}, 8'); a('s_add_u32 s72, s72, s68'); a(f's_add_u32 s72, s72, {VOMR_OFF}')
    a('s_add_u32 s73, s72, 40960'); a('s_add_u32 s74, s73, 40960'); a('s_add_u32 s75, s74, 40960')
    a(f's_mul_i32 s49, {SX}, 12288'); a(f's_add_u32 s49, s49, {PA_OFF}'); a(f's_add_u32 s76, s49, {SCHK}')
    a(f's_mul_i32 s47, {SDT}, 40960'); a(f's_lshl_b32 s67, {SX}, 14'); a('s_add_u32 s47, s47, s67'); a(f's_add_u32 s47, s47, {VOF_OFF}')

def vom_store1(src, k, base, sc):
    if k < 2: return f'buffer_store_dwordx4 v[{src}:{src+3}], v{V11}, {S_WS}, {base[k]} offen {sc}'
    return f'buffer_store_dwordx2 v[{src}:{src+1}], v{V9}, {S_WS}, {base[2]} offen {sc}'
def memp_off(a, dst, add, dt=SDT):
    a(f's_add_u32 s67, {SSTEP}, {add}'); a('s_and_b32 s67, s67, 3'); a('s_lshl_b32 s67, s67, 1'); a(f's_add_u32 s67, s67, {SX}')
    a(f's_mul_i32 s{dst}, s67, 10240'); a(f's_lshl_b32 s{dst+1}, s67, 15'); a(f's_lshl_b32 s67, {dt}, 8')
    a(f's_add_u32 s{dst}, s{dst}, s67'); a(f's_add_u32 s{dst+1}, s{dst+1}, s67'); a(f's_add_u32 s{dst}, s{dst}, {MEML_OFF}')
    a(f's_add_u32 s{dst+1}, s{dst+1}, {SMR}'); a(f's_cmp_ge_u32 {dt}, 24'); a('s_cselect_b32 s67, 10240, 0'); a(f's_add_u32 s{dst+1}, s{dst+1}, s67')

def vo_init_clear(a):
    for r in range(4): a(f'v_mov_b32 v{VA+16+r}, -1')
    for k in range(3): a(vom_store1(VA + 16, k, ('s44', 's45', 's46'), 'sc1'))
    for sl in range(4):
        memp_off(a, 32, sl)
        a(f's_cmp_ge_u32 {SDT}, 40'); a(f's_cselect_b32 s32, {OOB}, s32'); a(f's_cselect_b32 s33, {OOB}, s33')
        a(f'buffer_store_dword v{VA+16}, v{V12}, {S_WS}, s32 offen sc1')
        a(f'buffer_store_dword v{VA+16}, v{V12}, {S_WS}, s33 offen sc1')
        a('s_add_u32 s33, s33, 8192')
        a(f'buffer_store_dword v{VA+16}, v{V12}, {S_WS}, s33 offen sc1')

VORD = [[0, 1, 2, 3, 4, 5, 6, 7, 9, 8], [3, 4, 5, 0, 1, 2, 6, 7, 9, 8], [6, 7, 2, 0, 1, 5, 3, 4, 9, 8], [8, 9, 0, 1, 3, 2, 4, 6, 5, 7]]
OORD = [0, 1, 2, 3, 4, 5, 6, 7, 8, 9]
OORD0 = [0, 2, 1, 3, 4, 6, 5, 7, 8, 9]
def pairup(acc, tmp):
    return [f'v_mov_b32_dpp v{tmp}, v{acc} quad_perm:[1,0,3,2] row_mask:0xf bank_mask:0xf', f'v_perm_b32 v{acc}, v{tmp}, v{acc}, v{VXS}']

def vo_loop(a, w, duty, sc, opt):
    n = NCH[w]; VO = VORD[w]
    lg = Trk(a, 'lgkmcnt', 15)
    ltop, lent = a.label('Lvo'), a.label('Lvoent')
    VV = VACC1; PK = VACC0
    EXO = LDS_EX - LDS_MEM
    AP = apos(w, VO)
    OA = {t: (VOX + 44 + 4*i if i < 5 else AP[VO[i - 5]]) for i, t in enumerate(OORD)}
    seq = [(kb, t) for kb in VO[:3] for t in range(3)] + [(kb, t) for t in range(3) for kb in VO[3:]]
    first = [(xfrag(kb, t, 0)[0], VACC0 + 4*t, AP[kb], xfrag(kb, t, 0)[1], [f'A{kb}']) for kb, t in seq]
    oseq = [(t, 0) for t in OORD0] + [(t, 1) for t in OORD[:3]]
    for i in range(10): oseq += [(OORD[i], 2)] + ([(OORD[i+3], 1)] if i + 3 < 10 else [])
    if opt.get('oseq', 1):
        oseq = [(0, 0), (2, 0), (1, 0), (3, 0), (4, 0), (6, 0), (0, 1), (2, 1), (1, 1), (3, 1), (5, 0), (7, 0), (0, 2), (1, 2), (2, 2), (3, 2),
                (4, 1), (5, 1), (4, 2), (6, 1), (5, 2), (7, 1), (6, 2), (8, 0), (7, 2), (9, 0), (8, 1), (9, 1), (8, 2), (9, 2)]
    second = [(yfrag(tile, kb)[0], OA[tile], VV + 4*kb, yfrag(tile, kb)[1], [f'V{kb}']) for tile, kb in oseq]
    fin = {t: 30 + oseq.index((t, 2)) for t in OORD}
    items, ldsq, k2 = build_stream(first, second)
    sd = Sides()
    stream_head(sd, w, VO, AP, opt, None)
    sd.put(opt.get('gb1', 3), lambda: stamp(a, opt, 1))
    vox = lambda hh: f'buffer_load_dwordx4 v[{VOX+4*hh}:{VOX+4*hh+3}], v{VL16}, {S_WS}, s83 offen offset:{(hh & 3)*1024} {STREAM[0]}'
    vsp = opt.get('vsp', 3)
    NIN = opt.get('nin', 16)
    NE = opt.get('ne', 0)
    if duty:
        for hh in range(NE, min(NIN, 11)):
            g = opt.get('vs0', 1) + (hh - NE) * vsp
            sd.put(g, vox(hh))
            if hh & 3 == 3: sd.put(g + 1, 's_add_u32 s83, s83, 4096')
    if w == 3:
        for i in range(6): sd.put(opt.get('cl0', 1) + 4*i, f'buffer_store_dword v{VT2}, v{V12}, {S_WS}, s{52 + i} offen {"sc1" if i & 1 else sc}')
    zer = [f'v_mov_b64 v[{AP[VO[r >> 1]] + 2*(r & 1)}:{AP[VO[r >> 1]] + 2*(r & 1) + 1}], 0' for r in range(10)]
    for r in range(6): sd.valu(3*(r >> 1) + 3 + (r & 1), [zer[r]])
    wr = lambda acc, t: ('lds', f'ds_write_b32 v{VXW}, v{acc} offset:{t*1024}', f'VW{t}')
    vpost = lambda t: post(VACC0 + 4*t, VACC0 + 4*t) + [None] + pairup(VACC0 + 4*t, VACC0 + 4*t + 1) + [wr(VACC0 + 4*t, t)]
    vrd = lambda kb: ('lds', f'ds_read_b128 v[{VV+4*kb}:{VV+4*kb+3}], v{VAR} offset:{EXO + kb*1024}', f'V{kb}')
    for t, g0, per in ((0, 17, 1), (1, 24, 1), (2, 31, 2)):
        g = sd.valu(g0, vpost(t), per) + 2
        sd.put(g, ('wait', f'VW{t}')); sd.put(g, 's_barrier'); sd.lds(g, vrd(t), True)
    sd.valu(27, zer[6:])
    if opt.get('diag'): sd.put(g, lambda: stamp(a, opt, 0)); sd.put(29, lambda: stamp(a, opt, 5)); sd.put(42, lambda: stamp(a, opt, 7))
    base = ('s44', 's45', 's46')
    tail = []
    ops = []
    for q in range(3):
        b = PK + 4*q; ts_ = list(range(4*q, min(4*q + 4, 10)))
        for t in ts_:
            p_ = post(OA[t], PK + t, None, t >= 8)
            ops += [(f'a{t}{j}', x_, [], fin[t] + 2) for j, x_ in enumerate(p_[:-1])] + [(f'c{t}', p_[-1], [f'a{t}{j}' for j in range(len(p_) - 1)], 0)]
            if duty and 11 + t < NIN:
                if t == 1: ops.append(('s', 's_add_u32 s83, s83, 4096', ['x0'], 0))
                ops.append((f'x{t}', vox(11 + t), [f'c{t}'] + ([f'x{t-1}'] if t else []) + (['s'] if t == 1 else []), 0))
        ops.append((f'p{q}', f'v_permlane16_swap_b32 v{b}, v{b+1}', [f'c{ts_[0]}', f'c{ts_[1]}'], 0))
        last = [f'p{q}']
        if q < 2:
            ops += [(f'r{q}', f'v_permlane16_swap_b32 v{b+2}, v{b+3}', [f'c{ts_[2]}', f'c{ts_[3]}'], 0),
                    (f'u{q}', f'v_permlane32_swap_b32 v{b}, v{b+2}', [f'p{q}', f'r{q}'], 0), (f'w{q}', f'v_permlane32_swap_b32 v{b+1}, v{b+3}', [f'p{q}', f'r{q}'], 0)]
            last = [f'u{q}', f'w{q}']
        ops += [(f'b{q}', f'v_bfi_b32 v{b}, 1, {SSTEP}, v{b}', last[:1], 0), (f'st{q}', vom_store1(b, q, base, sc), last + [f'b{q}'], 0)]
    at = {}
    g = min(o[3] for o in ops if o[3])
    mem_at = set()
    while len(at) < len(ops):
        for nm, tx, dep, e in ops:
            if nm in at or g < e: continue
            sal = tx.startswith('s_')
            if not all(d in at and (at[d] < g or (at[d] == g and (sal or d == 's'))) for d in dep): continue
            if tx.startswith('v_'):
                if g < len(items) and sd.vbusy.get(g, 0) >= 2: continue
                sd.vbusy[g] = sd.vbusy.get(g, 0) + 1
            elif not sal:
                if g < len(items) and g in mem_at: continue
                mem_at.add(g)
            at[nm] = g; sd.put(g, tx)
        g += 1
    ex = []
    for g in sorted(g for g in sd.side if g >= len(items)): ex += sd.side.pop(g)
    tail = ex + tail
    sd.refills(ldsq)

    def top():
        preload_b(a, lg, ldsq)
        a(f's_bitcmp1_b32 {SSTEP}, 0'); a('s_cselect_b32 s50, 0x80008000, 0')
        if w == 3:
            a(f'v_mov_b32 v{VT2}, -1'); a(f's_and_b32 s35, {SH}, 15')
            for i in range(3):
                memp_off(a, 52 + 2*i, 2, 's35')
                if i < 2: a('s_add_u32 s35, s35, 16')
            a('s_cmp_ge_u32 s35, 40'); a(f's_cselect_b32 s56, {OOB}, s56'); a(f's_cselect_b32 s57, {OOB}, s57')
        if duty:
            memp_off(a, 77, 1)
            if opt.get('nopf'): a('s_mov_b32 s82, 0')
            else: a(f's_mov_b32 s82, {SSTEP}')
            a(f's_mul_i32 s83, s82, {40*40960}'); a('s_add_u32 s83, s83, s47'); a(f's_cmp_eq_u32 {SSTEP}, 63'); a(f's_cselect_b32 s83, {OOB}, s83')
        for r in range(0, 12, 2): a(f'v_mov_b64 v[{VACC0+r}:{VACC0+r+1}], 0')
        for r in range(0, 20, 2): a(f'v_mov_b64 v[{VOX+44+r}:{VOX+45+r}], 0')
        if duty:
            lk = a.label('Lk')
            a(f's_cmp_ge_u32 {SSTEP}, {64 if opt.get("notouch") else opt.get("self", SELF)}'); a(f's_cbranch_scc1 {lk}')
            check_flags(a, opt, 'Y16')
            a(f'{lk}:')
            for hh in range(NE):
                a(vox(hh))
                if hh & 3 == 3: a('s_add_u32 s83, s83, 4096')
    a(f's_mov_b32 {SSTEP}, 0')
    top()
    for kb in OWN[w]: a(a_read(kb, AP[kb])[1])
    a('s_waitcnt lgkmcnt(0)')
    a(f's_branch {lent}')
    a(f'{ltop}:')
    lg.reset()
    a('s_barrier')
    top()
    if opt.get('vsleep', 0): a(f's_sleep {opt.get("vsleep", 0)}')
    a('s_waitcnt lgkmcnt(0)')
    if opt.get('mg', 1): ool = gather_m(a, n, VACC1, VOX, VA + 36, {} if opt.get('diagv') else opt, (0, 5, 7), None, 1, 0, opt.get('spec', 0), opt.get('rbv', 0))
    else: ool = gather(a, n, VACC1, {k: v for k, v in opt.items() if k != 'stamps'} if opt.get('diag') else opt, (0, 0 if opt.get('diag2') else 5, 7), opt.get('vrs', 0), VA + 24 if opt.get('vj', 1) else None)
    a(f'{lent}:')
    lg.reset(); lg.issue('GW')
    merge(a, lg, items, sd.side)
    for s_ in tail:
        a(s_)
    stamp(a, opt, 3)
    lcp, lcb, lcf, lce = [a.label('Lc') for _ in range(4)]
    a(f's_cmp_ge_u32 {SSTEP}, {4*NMB}'); a(f's_cbranch_scc1 {lcp}')
    a(f'{lcb}:')
    def ool5():
        a(f'{lcp}:')
        a(f's_lshl_b32 s52, {SSTEP}, 5'); a(f's_add_u32 s52, s52, {SH}'); a('s_mul_i32 s52, s52, 10240'); a(f's_add_u32 s52, s52, {VOM_OFF}')
        a('s_add_u32 s53, s52, 4096'); a('s_add_u32 s54, s52, 8192')
        for k in range(3): a(vom_store1(PK + 4*k, k, ('s52', 's53', 's54'), 'sc1'))
        a(f's_cmp_lt_u32 {SSTEP}, 63'); a(f's_cbranch_scc1 {lcb}')
        a('s_waitcnt vmcnt(0)'); a('s_barrier')
        if w == 3: cprog(a)
        a('s_waitcnt vmcnt(0)'); a('s_endpgm')
    ACC = VB + 28
    R = VB + 16
    def ldp():
        for c in range(n): a(f'buffer_load_dwordx4 v[{R+4*c}:{R+4*c+3}], v{VL16}, {S_WS}, s76 offen offset:{c*1024} sc1')
    lt, ltd, lp, ld = [a.label('Lp') for _ in range(4)]
    PT = VA
    def pwrite(c): a(f'ds_write_b128 v{VGW}, v[{R+4*c}:{R+4*c+3}] offset:{c*1024}')
    def pcheck_m(first):
        for c in range(n):
            b = R + 4*c
            if first: a(f's_waitcnt vmcnt({n - 1 - c})'); pwrite(c)
            a(f'v_bitop3_b32 v{PT+c}, v{b}, v{b+2}, s50 bitop3:0x7e')
            if w == 3 or not first: a(f'v_bitop3_b32 v{PT+3}, v{b+1}, v{b+3}, s50 bitop3:0x7e'); a(f'v_or_b32 v{PT+c}, v{PT+c}, v{PT+3}')
            a(f'v_cmp_gt_i32 {ML[c]}, 0, v{PT+c}')
        mask_or(a, ML[:n])
    MV = MR + ['s[30:31]']
    def ldv(ms=None):
        for q in range(4):
            if ms: a(f's_mov_b64 exec, {ms[q]}')
            a(f'buffer_load_dwordx4 v[{VB+4*q}:{VB+4*q+3}], v{V10}, {S_WS}, s{72+q} offen sc1')
        if ms: a('s_mov_b64 exec, -1')
    def vcheck():
        for q in range(4):
            if w < 2: a(f'v_bitop3_b32 v{PT+4+q}, v{VB+4*q}, {SSTEP}, 1 bitop3:0x28')
            else: a(f'v_bitop3_b32 v{PT+4+q}, v{VB+4*q}, v{VB+4*q+2}, {SSTEP} bitop3:0x7e'); a(f'v_and_b32 v{PT+4+q}, 1, v{PT+4+q}')
        for q in range(4): a(f'v_cmp_ne_u32 {MV[q]}, 0, v{PT+4+q}')
        mask_or(a, MV)
    if duty:
        for hh in range(NIN, 16):
            a(vox(hh))
            if hh & 3 == 3 and hh < 15: a('s_add_u32 s83, s83, 4096')
    if opt.get('diagv'): a('s_waitcnt vmcnt(0)'); stamp(a, opt, 5)
    gather_setup(a, 1)
    ts = opt.get('tsleep', 4) if duty else opt.get('nsleep', 9)
    if isinstance(ts, list): ts = ts[w]
    if ts: a(f's_sleep {ts}')
    SEP = opt.get('sep', 1)
    if duty and SEP:
        lv2 = a.label('Lp')
        if opt.get('diagv'): stamp(a, opt, 0)
        ldv()
        for r in range(4): a(f'v_mov_b32 v{ACC+r}, 0')
        a('s_waitcnt vmcnt(0)')
        if opt.get('diagv'): stamp(a, opt, 7)
        vcheck()
        a(f's_cbranch_scc1 {lv2}')
        stamp(a, opt, 2)
        if opt.get('psl', 1): a(f's_sleep {opt.get("psl", 1)}')
        ldp()
        a(f'{lv2}x:')
    elif duty:
        ldv()
        if opt.get('pat'): a(f's_sleep {opt["pat"] - ts - 1}')
        ldp()
        for r in range(4): a(f'v_mov_b32 v{ACC+r}, 0')
        a(f's_waitcnt vmcnt({n})'); vcheck()
        if not opt.get('novc'): a(f's_cbranch_scc1 {lt}')
        stamp(a, opt, 2)
    else: ldp()
    pcheck_m(True)
    a(f's_cbranch_scc1 {lp}')
    a(f'{ld}:')
    stamp(a, opt, 4)
    def ool2():
        PD = opt.get('pdep', 1) - 1; gap = opt.get('pgap', 2)
        ltb, lpb, lwr = [a.label('Lp') for _ in range(3)]
        if duty and SEP:
            a(f'{lv2}:')
            ldv(MV); ldp()
            a(f's_waitcnt vmcnt({n})'); vcheck()
            a(f's_cbranch_scc1 {lt}')
            stamp(a, opt, 2)
            a(f's_branch {lv2}x')
        if duty:
            a(f'{lt}:')
            a('s_waitcnt vmcnt(0)'); pcheck_m(False)
            for _ in range(PD): ldv(MV); ld_masked(a, n, R, 's76', ML); a(f's_sleep {gap}')
            a(f'{ltb}:')
            ldv(MV); ld_masked(a, n, R, 's76', ML)
            a(f's_waitcnt vmcnt({(4 + n)*PD})'); pcheck_m(False); a('s_cselect_b32 s51, 1, 0'); vcheck()
            a(f's_cbranch_scc0 {ltd}')
            budget_loop(a, ltb, ltd)
            a(f'{ltd}:')
            stamp(a, opt, 2)
            a('s_cmp_eq_u32 s51, 0'); a(f's_cbranch_scc1 {lwr}')
            if PD: a(f's_branch {lpb}')
        a(f'{lp}:')
        for _ in range(PD): ld_masked(a, n, R, 's76', ML); a(f's_sleep {gap}')
        a(f'{lpb}:')
        if opt.get('pback'): a(f's_sleep {opt["pback"]}')
        ld_masked(a, n, R, 's76', ML); a(f's_waitcnt vmcnt({n*PD})'); pcheck_m(False)
        a(f's_cbranch_scc0 {lwr}')
        budget_loop(a, lpb, lwr)
        a(f'{lwr}:')
        for c in range(n): pwrite(c)
        a(f's_branch {ld}')
    if not duty: a('s_waitcnt lgkmcnt(0)'); a('s_barrier'); a('s_waitcnt vmcnt(0)')
    if duty:
        bop = lambda pp: f'v[{VOX+8*pp}:{VOX+8*pp+7}]' if pp < 8 else f'v[{VB+8*(pp-8)}:{VB+8*(pp-8)+7}]'
        rest = [c for c in range(10) if c not in OWN[w]]
        a(smf(ACC, R, bop(OWN[w][0])))
        a('s_waitcnt lgkmcnt(0)'); a('s_barrier')
        for c in rest[:3]: a(f'ds_read_b128 v[{VA+4*c}:{VA+4*c+3}], v{VAR} offset:{c*1024}')
        k = 3
        for j in range(1, n):
            a(smf(ACC, R + 4*j, bop(OWN[w][j])))
            for c in rest[k:k+2]: a(f'ds_read_b128 v[{VA+4*c}:{VA+4*c+3}], v{VAR} offset:{c*1024}')
            k += 2
        for c in rest[k:]: a(f'ds_read_b128 v[{VA+4*c}:{VA+4*c+3}], v{VAR} offset:{c*1024}')
        for j, pp in enumerate(rest):
            a(f's_waitcnt lgkmcnt({len(rest)-1-j})' if pp != 8 else 's_waitcnt vmcnt(0) lgkmcnt(1)')
            a(smf(ACC, VA + 4*pp, bop(pp)))
        for s_ in post(ACC, ACC, None, True): a(s_)
        a(f'v_xor_b32 v{ACC}, s50, v{ACC}')
        for s_ in pairup(ACC, ACC + 1): a(s_)
        for so, fl in ([('s78', 'sc1'), ('s77', sc)] if opt.get('rfirst') else [('s77', sc), ('s78', 'sc1')]):
            a(f'buffer_store_dword v{ACC}, v{V12}, {S_WS}, {so} offen {fl}')
        stamp(a, opt, 6)
        if opt.get('diagp'): a('s_waitcnt vmcnt(1)'); stamp(a, opt, 2); a('s_waitcnt vmcnt(0)'); stamp(a, opt, 3)
    elif w == 3:
        lnc = a.label('Lnx')
        a(f's_cmp_lt_u32 {SSTEP}, {4*NMB}'); a(f's_cbranch_scc1 {lnc}')
        cprog(a)
        a(f'{lnc}:')
    stamp_flush(a, opt, 8)
    a(f's_add_u32 {SSTEP}, {SSTEP}, 1'); a(f's_branch {ltop}')
    ool(); ool2(); ool5()

def chain_main(a, opt):
    lvo = a.label('Lrole_vo')
    tstamp(a, opt, 0, (14, 15))
    STREAM[0] = opt.get('stream', 'sc1')
    a(f's_lshr_b32 {SX}, {SSLOT}, 5'); a(f's_and_b32 s67, {SSLOT}, 15'); a(f's_lshl_b32 {SH}, {SX}, 4'); a(f's_add_u32 {SH}, {SH}, s67')
    a(f's_mov_b32 {STMO}, {opt.get("tmo", 1 << 21)}'); a(f's_mov_b32 {SSTEP}, 0')
    srd(a, S_AUX, 's[38:39]', 8*640*2)
    a(f's_add_u32 {SMR}, s60, {MEMR_OFF + 0x7ffff}'); a(f's_and_b32 {SMR}, {SMR}, 0xfff80000'); a(f's_sub_u32 {SMR}, {SMR}, s60')
    a(f's_mul_i32 s58, {SWV}, 3072'); a(f's_lshl_b32 s67, {SWV}, 11'); a('s_add_u32 s67, s67, 12288'); a(f's_cmp_ge_u32 {SWV}, 2'); a('s_cselect_b32 s58, s67, s58')
    a(f's_mov_b32 {S_ONE0}, 0x00003f80'); a(f's_mov_b32 {S_ONE1}, 0x3f800000')
    a(f's_bitcmp1_b32 {SSLOT}, 4'); a(f's_cbranch_scc1 {lvo}')
    for role in ('qk', 'vo'):
        if role == 'vo': a(f'{lvo}:')
        if role == 'qk':
            srd(a, S_WA, 's[40:41]', 640*6144*2); srd(a, S_WB, 's[42:43]', 640*6144*2); qk_setup(a, opt)
        else:
            srd(a, S_WA, 's[44:45]', 640*6144*2); srd(a, S_WB, 's[46:47]', 640*6144*2); vo_setup(a, opt)
        l1, l2, l3 = a.label('Ls'), a.label('Ls'), a.label('Ls')
        a(f's_mov_b32 {SPC}, 0')
        a(f's_cmp_lg_u32 {SWV}, 0'); a(f's_cbranch_scc1 {l2}')
        mem0_load(a)
        a(f'{l2}:')
        def after_first(n, vm):
            if n == 0:
                a(f's_cmp_lg_u32 {SWV}, 0'); a(f's_cbranch_scc1 {l3}')
                mem0_write(a)
                a(f'{l3}:')
            if n == 1: rot_load(a, 172, 173); vm.issue('rot')
            if n == 13:
                rot_check(a, 172, 173, True)
                if role == 'vo':
                    vo_init_clear(a)
                    for _ in range(15): vm.issue('init')
                a(f's_cmp_lg_u32 {SWV}, 0'); a(f's_cbranch_scc1 {l1}')
                if role == 'qk': qk_init_clear(a)
                a(f's_lshl_b32 s67, 1, {SXCC}'); a(f'v_mov_b32 v{VT0}, s67'); a(f's_lshl_b32 s67, {SX}, 2'); a(f'v_mov_b32 v{VT1}, s67')
                a('s_mov_b64 exec, 1')
                a(f'buffer_atomic_or v{VT0}, v{VT1}, {S_DBG}, 0 offen sc1')
                a('s_mov_b64 exec, -1')
                a(f'{l1}:')
            assert 32 + opt.get('ldep', 6) + 1 <= 39
            if n == 32: a(f'v_lshlrev_b32 v173, 2, v0'); a(f'buffer_load_dword v172, v173, {S_DBG}, 0 offen sc1'); vm.issue('rdy')
            if n == 14 + opt.get('ldep', 6):
                l4 = a.label('Ls')
                a(f's_cmp_lg_u32 {SWV}, 0'); a(f's_cbranch_scc1 {l4}')
                a(f'v_mov_b32 v{VT0}, 1'); a(f'v_mov_b32 v{VT1}, {DBG_READY*4}')
                a('s_mov_b64 exec, 1')
                a(f'buffer_atomic_add v{VT0}, v{VT1}, {S_DBG}, 0 offen sc1')
                a('s_mov_b64 exec, -1')
                a(f'{l4}:')
        loader(a, role, after_first, opt.get('ldep', 6))
        tstamp(a, opt, 1, (14, 15))
        lp, ld, lslow = a.label('Lr'), a.label('Lrd'), a.label('Lslow')
        lc = a.label('Lrc')
        a(f'v_lshlrev_b32 v{VT1}, 2, v0'); a(f'v_mov_b32 v{VT0}, v172')
        a(f's_branch {lc}')
        a(f'{lp}:')
        a(f'buffer_load_dword v{VT0}, v{VT1}, {S_DBG}, 0 offen sc1'); a('s_waitcnt vmcnt(0)')
        a(f'{lc}:')
        a(f'v_readlane_b32 s67, v{VT0}, {DBG_READY}')
        a(f'v_readlane_b32 s68, v{VT0}, {DBG_VOTE}'); a(f's_cmp_lt_u32 s68, {NAREA*256}'); a('s_cselect_b32 s67, 0, s67')
        if not opt.get('noflags'):
            a(f'v_readlane_b32 s68, v{VT0}, {DBG_AREA}'); a(f's_cmp_lt_u32 s68, {NAREA}'); a('s_cselect_b32 s67, 0, s67')
        a(f's_cmp_eq_u32 {STMO}, 0'); a(f's_cbranch_scc1 {ld}')
        a(f's_sub_u32 {STMO}, {STMO}, 1')
        a('s_cmp_lt_u32 s67, 64'); a(f's_cbranch_scc1 {lp}')
        a(f'{ld}:')
        a(f'v_readlane_b32 s67, v{VT0}, {DBG_VOTE}'); a('s_and_b32 s67, s67, 255'); a(f's_cmp_gt_u32 s67, {NAREA//2}'); a('s_cselect_b32 s67, 1, 0')
        a(f'v_readlane_b32 s68, v{VT0}, 0'); a('s_cmp_gt_u32 s68, 15'); a('s_cselect_b32 s68, 1, 0'); a('s_xor_b32 s67, s67, s68'); a('s_lshl_b32 s67, s67, 13')
        if 'par' in opt: a(f's_mov_b32 s67, {opt["par"]*8192}')
        a(f's_add_u32 {SMR}, {SMR}, s67')
        a(f'v_readlane_b32 s67, v{VT0}, 0'); a(f'v_readlane_b32 s68, v{VT0}, 1')
        a('s_bcnt1_i32_b32 s67, s67'); a('s_bcnt1_i32_b32 s68, s68'); a('s_max_u32 s67, s67, s68')
        if opt.get('force_slow'): a('s_mov_b32 s67, 2')
        a('s_cmp_lg_u32 s67, 1'); a(f's_cbranch_scc1 {lslow}')
        for sc in ('', 'sc1'):
            if sc: a(f'{lslow}:')
            if role == 'qk':
                labs = [a.label('Lw') for _ in range(4)]
                for w in range(1, 4): a(f's_cmp_eq_u32 {SWV}, {w}'); a(f's_cbranch_scc1 {labs[w]}')
                for w in range(4):
                    a(f'{labs[w]}:'); qk_loop(a, w, sc, opt)
            else:
                labs = [a.label('Lw') for _ in range(5)]
                a(f's_cmp_eq_u32 {SWV}, 1'); a(f's_cbranch_scc1 {labs[1]}'); a(f's_cmp_eq_u32 {SWV}, 3'); a(f's_cbranch_scc1 {labs[4]}')
                a(f's_cmp_ge_u32 {SDT}, 40'); a(f's_cbranch_scc1 {labs[3]}'); a(f's_cmp_eq_u32 {SWV}, 2'); a(f's_cbranch_scc1 {labs[2]}')
                for i, (w, duty) in enumerate([(0, True), (1, True), (2, True), (2, False), (3, False)]):
                    a(f'{labs[i]}:'); vo_loop(a, w, duty, sc, opt)
```

```python
from common import *

SC = 0.07216878364870322 * 1.4426950408889634

def wfrag(f, half=None):
    if f < 32: k, b = 'a', f * 8
    else: k, b = 'v', 176 + (f - 32) * 8
    if half is None: return f'{k}[{b}:{b+7}]'
    return k, b + 4 * half

VL16, VGW, VAR, VFR, VXW, VXS, VDR, VIDX, V9, V10, V11, V12, VT0, VT1, VT2 = range(1, 16)
VA = 16
VACC0 = 56
VACC1 = 68
VB = 80
VKX = 112
VQF = 136
VTMP = 160
VOX = 112
SSTEP, SH, SX, SDT = 's62', 's63', 's64', 's66'
SMASK8 = 's[70:71]'
SCM = [f's[{72+2*r}:{73+2*r}]' for r in range(4)]
SCHK = 's80'
S_ONE0, S_ONE1 = 's100', 's101'
NCH = [3, 3, 2, 2]
OWN = [[0, 1, 2], [3, 4, 5], [6, 7], [8, 9]]
REGKB = [0, 1, 3, 4, 6, 7, 8]; LDSKB = [2, 5, 9]
REGT = [0, 2, 3, 4, 6, 7, 8]; LDST = [1, 5, 9]
def yfrag(tile, kb):
    if tile in REGT: return 'reg', 21 + REGT.index(tile)*3 + kb
    return 'lds', 9 + LDST.index(tile)*3 + kb
def xfrag(kb, t, second):
    if kb in REGKB: return 'reg', t*7 + REGKB.index(kb) + (21 if second else 0)
    return 'lds', LDSKB.index(kb)*3 + t + (9 if second else 0)
def apos(w, order):
    ap = {kb: VA + 8*c for c, kb in enumerate(OWN[w])}
    free = [VA + 4*i for i in range(10) if VA + 4*i not in ap.values()]
    for kb in order:
        if kb not in ap: ap[kb] = free.pop(0)
    return ap
STREAM = ['sc1 nt']

def tile_pat(l):
    g, c = l >> 4, l & 15
    return (4*g + 2*(c >> 3) + (c & 1))*16 + ((c >> 1) & 3)*4
def arow(i, h): return 4*(i >> 1) + 2*h + (i & 1)

def common_addr(a):
    T = VTMP
    a(f'v_lshlrev_b32 v{VL16}, 4, v0')
    a(f's_mul_i32 s6, {SWV}, 3'); a(f's_lshl_b32 s7, {SWV}, 1'); a('s_add_u32 s7, s7, 2'); a('s_min_u32 s6, s6, s7')
    a(f's_lshl_b32 {SCHK}, s6, 10')
    a(f'v_add_u32 v{VAR}, {LDS_MEM}, v{VL16}'); a(f'v_add_u32 v{VGW}, {SCHK}, v{VAR}')
    lanefn(a, VFR, lambda l: l*16, T, 36864)
    lanefn(a, VIDX, lambda l: 0x4444 + ((l >> 1) & 1)*0xaaaa, T)
    a(f'v_and_b32 v{T}, 8, v0'); a(f'v_cmp_ne_u32 {SMASK8}, 0, v{T}')

def loader(a, role, after_first=None, dep=11):
    vm = Trk(a, 'vmcnt', 63)
    T = 160
    VD0, VD1, VR0 = T, T + 1, T + 2
    dma_voff(a, VD0, 12288, T + 8, T + 9); dma_voff(a, VD1, 1280, T + 8, T + 9)
    for aa in range(2):
        R = VR0 + 3*aa
        row = lambda l: 4*((l >> 4) & 1) + 2*aa + ((l >> 2) & 1)
        lanefn(a, T + 8, lambda l: row(l) & 6, T + 10); lanefn(a, T + 9, lambda l: (l >> 1) & 1, T + 10, 2)
        a(f'v_xor_b32 v{T+9}, v{T+9}, v{T+8}')
        lanefn(a, R, lambda l: (l >> 5)*2048 + ((l >> 3) & 1)*1024 + row(l)*128 + (l & 1)*8, T + 10)
        a(f'v_lshl_add_u32 v{R}, v{T+9}, 4, v{R}')
        a(f'v_add_u32 v{R+1}, 49152, v{R}'); a(f'v_add_u32 v{R+2}, 98304, v{R}')
    a(f's_mul_i32 s68, {SH}, 384'); a(f's_mul_i32 s67, {SWV}, {8*12288}'); a('s_add_u32 s68, s68, s67')
    a(f's_mul_i32 s69, {SH}, {192*1280}'); a(f's_mul_i32 s67, {SWV}, {8*1280}'); a('s_add_u32 s69, s69, s67')
    a(f's_lshl_b32 s7, {SWV}, 10')
    k2 = 'X' if role == 'qk' else 'Y'
    slabs = [('X', S_WA, i) for i in range(14)] + [(k2, S_WB, i) for i in range(14)] + \
            [('X', S_WA, i) for i in range(14, 20)] + [(k2, S_WB, i) for i in range(14, 20)]
    def dma(n):
        kind, sr, i = slabs[n]
        for c in range(3):
            a(f's_add_u32 m0, s7, {(n % 12)*LDS_SLAB + c*4096}')
            if kind == 'X': a(f's_add_u32 s67, s68, {(2*(REGKB + LDSKB)[i >> 1] + (i & 1))*32*12288 + c*128}')
            else: a(f's_add_u32 s67, s69, {((i&1)*96 + c*32)*1280 + (REGT + LDST)[i >> 1]*128}')
            a(f'buffer_load_dwordx4 v{VD0 if kind=="X" else VD1}, {sr}, s67 offen lds')
            vm.issue(n)
    def dest(n, c):
        kind, sr, i = slabs[n]
        second = (n >= 14) if n < 28 else (n >= 34)
        if kind == 'X': t, kb, half = c, i >> 1, i & 1; f = t * 7 + kb; lf = (kb - 7) * 3 + t
        else:
            ks = (i & 1) * 3 + c; kb, half = ks >> 1, ks & 1; tile = i >> 1
            f = tile * 3 + kb; lf = (tile - 7) * 3 + kb
        if second: f += 21; lf += 9
        return f, lf, half
    def reads(n):
        slot = n % 12
        base = VR0 + slot // 4; off0 = (slot % 4) * LDS_SLAB
        for c in range(3):
            f, lf, half = dest(n, c)
            if n < 28: k, b = wfrag(f, half)
            else: k, b = 'v', 16 + lf * 8 + half * 4
            for aa in range(2):
                a(f'ds_read_b64_tr_b16 {k}[{b+2*aa}:{b+2*aa+1}], v{base + 3*aa} offset:{off0 + c*4096}')
    for n in range(dep): dma(n)
    for n in range(40):
        vm.wait(n)
        a('s_waitcnt lgkmcnt(0)')
        a('s_barrier')
        if n + dep < 40: dma(n + dep)
        reads(n)
        after_first(n, vm)
    a('s_waitcnt lgkmcnt(0)'); a('s_barrier')
    for lf in range(18):
        for half in range(2):
            b = 16 + lf * 8 + half * 4
            a(f'ds_write_b128 v{VFR}, v[{b}:{b+3}] offset:{lf*2048 + half*1024}')
    a('s_waitcnt lgkmcnt(0)')

def mem0_load(a):
    lanefn(a, 18, lambda l: (l & 7)*1280 + (l >> 3)*16, 16)
    lanefn(a, 19, lambda l: LDS_MEM + (l >> 4)*256 + arow(l & 7, (l >> 3) & 1)*16, 16)
    for n in range(10): a(f'buffer_load_dwordx4 v[{24+4*n}:{27+4*n}], v18, {S_AUX}, 0 offen offset:{n*128}')
def mem0_write(a):
    for n in range(10): a(f'ds_write_b128 v19, v[{24+4*n}:{27+4*n}] offset:{n*1024}')

def maxchk(a, regs, first=True):
    regs = list(regs)
    if first:
        a(f'v_max3_u32 v{VT0}, v{regs[0]}, v{regs[1]}, v{regs[2]}'); regs = regs[3:]
    while regs:
        if len(regs) >= 2: a(f'v_max3_u32 v{VT0}, v{VT0}, v{regs[0]}, v{regs[1]}'); regs = regs[2:]
        else: a(f'v_max_u32 v{VT0}, v{VT0}, v{regs[0]}'); regs = []


def gather_setup(a, step_add=0):
    a(f's_add_u32 s67, {SSTEP}, {step_add}'); a('s_and_b32 s67, s67, 3'); a('s_lshl_b32 s67, s67, 1')
    a(f's_add_u32 s68, s67, 1'); a(f's_sub_u32 s68, s68, {SX}'); a(f's_add_u32 s67, s67, {SX}')
    a('s_mul_i32 s67, s67, 10240'); a('s_lshl_b32 s68, s68, 15')
    a(f's_add_u32 s33, s68, {SMR}'); a('s_add_u32 s33, s33, s58')
    a(f's_add_u32 s32, s67, {SCHK}'); a(f's_add_u32 s32, s32, {MEML_OFF}')

def gather(a, n, R, opt, st, rsleep=0, R2=None, det=None):
    ld = lambda r, so: [a(f'buffer_load_dwordx4 v[{r+4*c}:{r+4*c+3}], v{VL16}, {S_WS}, {so} offen offset:{c*1024} sc1') for c in range(n)]
    def chk(r, k=0): a(f's_waitcnt vmcnt({k})'); maxchk(a, range(r, r + 4*n)); a(f'v_cmp_eq_u32 vcc, -1, v{VT0}')
    l1, l1ok, l2, l2ok = [a.label('Lg') for _ in range(4)]
    if det is not None:
        l0, l0d = a.label('Lg'), a.label('Lg')
        a(f'{l0}:')
        a(f'buffer_load_dword v{R}, v{det}, {S_WS}, s32 offen sc1'); a('s_waitcnt vmcnt(0)'); a(f'v_cmp_eq_u32 vcc, -1, v{R}')
        poll_tail(a, l0, l0d)
    stamp(a, opt, st[0])
    if R2 is None:
        a(f'{l1}:')
        ld(R, 's32'); chk(R)
        poll_tail(a, l1, l1ok)
    else:
        ld(R, 's32'); ld(R2, 's33'); chk(R, n)
        a(f's_cbranch_vccnz {l1}')
        a(f'{l1ok}:')
    stamp(a, opt, st[1])
    for c in range(n):
        for i in range(4):
            a(f'v_lshlrev_b32 v{VA+8*c+2*i}, 16, v{R+4*c+i}'); a(f'v_and_b32 v{VA+8*c+2*i+1}, 0xffff0000, v{R+4*c+i}')
    Q = R if R2 is None else R2
    if R2 is None:
        if rsleep: a(f's_sleep {rsleep}')
        ld(Q, 's33')
    chk(Q)
    a(f's_cbranch_vccnz {l2}')
    a(f'{l2ok}:')
    stamp(a, opt, st[2])
    for c in range(n):
        b = VA + 8*c
        for i in range(4):
            a(f'v_dot2c_f32_bf16 v{b+2*i}, {S_ONE0}, v{Q+4*c+i}'); a(f'v_dot2c_f32_bf16 v{b+2*i+1}, {S_ONE1}, v{Q+4*c+i}')
        for i in range(4): a(f'v_cvt_pk_bf16_f32 v{b+i}, v{b+2*i}, v{b+2*i+1}')
        a(f'ds_write_b128 v{VGW}, v[{b}:{b+3}] offset:{c*1024}')
    def outofline():
        if R2 is not None:
            a(f'{l1}:')
            ld(R, 's32'); ld(R2, 's33'); chk(R, n)
            a(f's_cbranch_vccz {l1ok}')
            budget_loop(a, l1, l1ok)
        a(f'{l2}:')
        ld(Q, 's33'); chk(Q)
        a(f's_cbranch_vccz {l2ok}')
        budget_loop(a, l2, l2ok)
    return outofline

ML = ['s[16:17]', 's[18:19]', 's[20:21]']; MR = ['s[22:23]', 's[24:25]', 's[26:27]']; MOR = 's[28:29]'
def mask_or(a, ms):
    a(f's_or_b64 {MOR}, {ms[0]}, {ms[1]}')
    for m in ms[2:]: a(f's_or_b64 {MOR}, {MOR}, {m}')
def ld_masked(a, n, r, so, ms=None):
    for c in range(n):
        if ms: a(f's_mov_b64 exec, {ms[c]}')
        a(f'buffer_load_dwordx4 v[{r+4*c}:{r+4*c+3}], v{VL16}, {S_WS}, {so} offen offset:{c*1024} sc1')
    if ms: a('s_mov_b64 exec, -1')

def gather_m(a, n, R, Q, T, opt, st, det, dep, gap, spec=0, rb=0, lr=0):
    def chk(r, ms, k):
        a(f's_waitcnt vmcnt({k})')
        for c in range(n): a(f'v_max3_u32 v{T+c}, v{r+4*c}, v{r+4*c+1}, v{r+4*c+2}')
        for c in range(n): a(f'v_max_u32 v{T+c}, v{T+c}, v{r+4*c+3}')
        for c in range(n): a(f'v_cmp_eq_u32 {ms[c]}, -1, v{T+c}')
        mask_or(a, ms[:n])
    l1, l1ok, l2, l2b, l2ok = [a.label('Lg') for _ in range(5)]
    if det is not None:
        l0, l0d = a.label('Lg'), a.label('Lg')
        a(f'{l0}:')
        a(f'buffer_load_dword v{R}, v{det}, {S_WS}, s32 offen sc1'); a('s_waitcnt vmcnt(0)'); a(f'v_cmp_eq_u32 vcc, -1, v{R}')
        poll_tail(a, l0, l0d)
    stamp(a, opt, st[0])
    if lr:
        ld_masked(a, n, R, 's32'); chk(R, ML, 0)
        a(f's_cbranch_scc1 {l1}')
        a(f'{l1ok}:')
        ld_masked(a, n, Q, 's33')
    else:
        ld_masked(a, n, R, 's32'); ld_masked(a, n, Q, 's33')
        if rb: a(f's_sleep {rb}'); ld_masked(a, n, Q, 's33')
        chk(R, ML, 2*n if rb else n)
        a(f's_cbranch_scc1 {l1}')
        a(f'{l1ok}:')
    stamp(a, opt, st[1])
    def expand():
        for c in range(n):
            for i in range(4):
                a(f'v_lshlrev_b32 v{VA+8*c+2*i}, 16, v{R+4*c+i}'); a(f'v_and_b32 v{VA+8*c+2*i+1}, 0xffff0000, v{R+4*c+i}')
    def add(c, check=False):
        b = VA + 8*c; q = Q + 4*c
        if check: a(f's_waitcnt vmcnt({n-1-c})'); a(f'v_max3_u32 v{T}, v{q}, v{q+1}, v{q+2}')
        for i in range(4):
            a(f'v_dot2c_f32_bf16 v{b+2*i}, {S_ONE0}, v{q+i}'); a(f'v_dot2c_f32_bf16 v{b+2*i+1}, {S_ONE1}, v{q+i}')
        if check: a(f'v_max_u32 v{T}, v{T}, v{q+3}'); a(f'v_cmp_eq_u32 {MR[c]}, -1, v{T}')
        for i in range(4): a(f'v_cvt_pk_bf16_f32 v{b+i}, v{b+2*i}, v{b+2*i+1}')
        a(f'ds_write_b128 v{VGW}, v[{b}:{b+3}] offset:{c*1024}')
    expand()
    if spec:
        for c in range(n): add(c, True)
        mask_or(a, MR[:n])
        a(f's_cbranch_scc1 {l2}')
        a(f'{l2ok}:')
        stamp(a, opt, st[2])
    else:
        chk(Q, MR, n if rb else 0)
        a(f's_cbranch_scc1 {l2}')
        a(f'{l2ok}:')
        stamp(a, opt, st[2])
        for c in range(n): add(c)
    def outofline():
        a(f'{l1}:')
        if lr: ld_masked(a, n, R, 's32', ML); chk(R, ML, 0)
        else:
            ld_masked(a, n, R, 's32', ML); chk(Q, MR, n)
            ld_masked(a, n, Q, 's33', MR); chk(R, ML, n)
        a(f's_cbranch_scc0 {l1ok}')
        budget_loop(a, l1, l1ok)
        a(f'{l2}:')
        if rb: chk(Q, MR, 0); a(f's_cbranch_scc0 {l2ok}')
        for _ in range(dep - 1):
            ld_masked(a, n, Q, 's33', MR); a(f's_sleep {gap}')
        a(f'{l2b}:')
        ld_masked(a, n, Q, 's33', MR)
        if spec: expand()
        chk(Q, MR, n*(dep - 1))
        if not spec:
            a(f's_cbranch_scc0 {l2ok}')
            budget_loop(a, l2b, l2ok)
            return
        l2c, l2d = a.label('Lg'), a.label('Lg')
        a(f's_cbranch_scc0 {l2d}')
        a(f'{l2c}:')
        ld_masked(a, n, Q, 's33', MR); chk(Q, MR, 0)
        a(f's_cbranch_scc0 {l2d}')
        budget_loop(a, l2c, l2d)
        a(f'{l2d}:')
        for c in range(n): add(c)
        a(f's_branch {l2ok}')
    return outofline

def a_read(kb, reg):
    return ('lds', f'ds_read_b128 v[{reg}:{reg+3}], v{VAR} offset:{kb*1024}', f'A{kb}')
def frag_reads(lf, slot):
    return [('lds', f'ds_read_b128 v[{VB+8*slot+4*x}:{VB+8*slot+4*x+3}], v{VFR} offset:{lf*2048 + x*1024}', f'F{lf}') for x in range(2)]
def smf(acc, A, B): return f'v_smfmac_f32_16x16x64_bf16 v[{acc}:{acc+3}], v[{A}:{A+3}], {B}, v{VIDX}'
def post(acc, out, scale=None, pk=False):
    if pk: r = [f'v_pk_add_f32 v[{acc}:{acc+1}], v[{acc}:{acc+1}], v[{acc+2}:{acc+3}]']
    else: r = [f'v_add_f32 v{acc+i}, v{acc+i}, v{acc+2+i}' for i in range(2)]
    if scale: r += [f'v_mul_f32 v{acc+i}, {scale}, v{acc+i}' for i in range(2)]
    return r + [f'v_cvt_pk_bf16_f32 v{out}, v{acc}, v{acc+1}']

def allred(op, v, t, stages=(16, 32)):
    r = []
    for st in stages: r += [f'v_mov_b32 v{t}, v{v}', f'v_permlane{st}_swap_b32 v{v}, v{t}', f'{op} v{v}, v{v}, v{t}']
    return r

def stamp_flush(a, opt, n):
    if not opt.get('stamps'): return
    a('s_waitcnt lgkmcnt(0)')
    a(f's_lshl_b32 s67, {SSLOT}, 2'); a(f's_add_u32 s67, s67, {SWV}'); a('s_lshl_b32 s67, s67, 6'); a(f's_add_u32 s67, s67, {SSTEP}')
    a('s_lshl_b32 s67, s67, 6'); a(f's_add_u32 s67, s67, {STAMP_OFF}')
    a(f'v_lshlrev_b32 v{VT1}, 2, v0')
    for i in range(n): a(f'v_writelane_b32 v{VT0}, s{STAMP0+2*i}, {i}')
    a('s_mov_b64 exec, 0xffff')
    a(f'buffer_store_dword v{VT0}, v{VT1}, {S_WS}, s67 offen')
    a('s_mov_b64 exec, -1')

SPC = 's60'
SMR = 's59'
SELF = 3
def check_flags(a, opt, kind, skip=None, early=None):
    if opt.get('noflags'): return
    lp, ld = a.label('Lf'), a.label('Lfd')
    a(f's_sub_u32 s61, s82, {LEAD-4}'); a('s_max_i32 s61, s61, 0'); a('s_lshr_b32 s61, s61, 2'); a('s_add_u32 s61, s61, s82')
    a(f's_cmp_gt_u32 {SPC}, s61'); a(f's_cbranch_scc1 {ld}')
    if early:
        a(f's_waitcnt vmcnt({early[1]})')
        for r in (8, 4, 2, 1): a(f'v_min_u32_dpp v{early[0]}, v{early[0]}, v{early[0]} row_ror:{r} row_mask:0xf bank_mask:0xf')
        a(f'v_readfirstlane_b32 {SPC}, v{early[0]}')
        a(f's_cmp_gt_u32 {SPC}, s61'); a(f's_cbranch_scc1 {ld}')
    if kind == 'K': a(f'v_and_b32 v{VT1}, 15, v0'); a(f'v_min_u32 v{VT1}, 2, v{VT1}'); a(f'v_lshlrev_b32 v{VT1}, 7, v{VT1}')
    elif kind == 'Y16': a(f'v_and_b32 v{VT1}, 15, v0'); a(f'v_lshlrev_b32 v{VT1}, 7, v{VT1}')
    else: a(f'v_and_b32 v{VT1}, 3, v0'); a(f'v_mul_u32_u24 v{VT1}, {40*128}, v{VT1}')
    a(f'{lp}:')
    a(f'buffer_load_dword v{VT0}, v{VT1}, {S_WS}, s81 offen sc1'); a('s_waitcnt vmcnt(0)')
    for r in (8, 4, 2, 1): a(f'v_min_u32_dpp v{VT0}, v{VT0}, v{VT0} row_ror:{r} row_mask:0xf bank_mask:0xf')
    a(f'v_readfirstlane_b32 {SPC}, v{VT0}')
    a(f's_cmp_gt_u32 {SPC}, s61'); a(f's_cbranch_scc1 {ld}')
    if skip: a(f's_cmp_lt_u32 s82, {opt.get("self", SELF)}'); a(f's_cbranch_scc1 {skip}')
    budget_loop(a, lp, ld)
    a(f'{ld}:')

def cprog(a):
    a('s_waitcnt vmcnt(0)')
    a(f's_lshl_b32 s67, {SSLOT}, 7'); a(f's_add_u32 s67, s67, {CPRG_OFF}'); a(f's_add_u32 s68, {SSTEP}, 1'); a(f'v_mov_b32 v{VT0}, s68'); a(f'v_mov_b32 v{VT1}, 0')
    a('s_mov_b64 exec, 1')
    a(f'buffer_store_dword v{VT0}, v{VT1}, {S_WS}, s67 offen sc1')
    a('s_mov_b64 exec, -1')

def load_frags6(a, dst, base_off, ct, seg='s82'):
    a(f's_lshl_b32 s67, {seg}, 5'); a(f's_add_u32 s67, s67, {SH}'); a('s_mul_i32 s67, s67, 12288')
    a(f's_add_u32 s67, s67, {base_off + ct*6144}'); a('s_add_u32 s68, s67, 4096')
    for kk in range(6):
        a(f'buffer_load_dwordx4 v[{dst+4*kk}:{dst+4*kk+3}], v{VL16}, {S_WS}, {"s67" if kk < 4 else "s68"} offen offset:{(kk&3)*1024} {STREAM[0]}')

def build_stream(first_items, second_items):
    items = []; ldsq = []; idx2 = {}
    def add(it):
        kind, acc, A, ref, needs = it
        if kind == 'reg': items.append((smf(acc, A, wfrag(ref)), needs))
        elif kind == 'lds':
            sl = len(ldsq) % 4; ldsq.append((len(items), ref, sl))
            items.append((smf(acc, A, f'v[{VB+8*sl}:{VB+8*sl+7}]'), needs + [f'F{ref}']))
        else: items.append((ref, needs))
    for it in first_items: add(it)
    n = 0
    for it in second_items:
        if it[0] != 'raw': idx2[n] = len(items); n += 1
        add(it)
    return items, ldsq, idx2

class Sides:
    def __init__(self): self.side = {}; self.busy = set(); self.vbusy = {}
    def put(self, g, r): self.side.setdefault(g, []).append(r)
    def lds(self, g, r, force=False):
        if not force:
            while g in self.busy: g += 1
        self.put(g, r); self.busy.add(g); return g
    def valu(self, g, instrs, per=1):
        last = g - 1; end = g
        for s in instrs:
            if s is None: g = last + 2; continue
            if isinstance(s, tuple): self.lds(last + 1, s, True); end = max(end, last + 2); continue
            if not s.startswith('v_'): self.put(last + 1, s); end = max(end, last + 2); continue
            while self.vbusy.get(g, 0) >= per: g += 1
            self.put(g, s); self.vbusy[g] = self.vbusy.get(g, 0) + 1; last = g; end = max(end, g + 1)
        self.nxt = g
        return end
    def refills(self, ldsq):
        for n in range(len(ldsq) - 4):
            g = ldsq[n][0]
            lim = ldsq[n+4][0] - 6
            for r in frag_reads(ldsq[n+4][1], ldsq[n][2]):
                g2 = g
                while g2 in self.busy: g2 += 1
                if g2 <= lim: g = self.lds(g2, r)
                else: g = self.lds(max(g, min(lim, g + 1)), r, True)
                assert g < ldsq[n+4][0] - 1, (n, g, ldsq[n+4])

DPP8 = 'row_ror:8 row_mask:0xf bank_mask:0xf'
def dense_reads(dst, off, tagp, kks=range(6)):
    return [('lds', f'ds_read_b64_tr_b16 v[{dst+4*kk+2*x}:{dst+4*kk+2*x+1}], v{VDR} offset:{off + (2*kk+x)*256}', f'{tagp}{kk}')
            for kk in kks for x in range(2)]

def preload_b(a, lg, ldsq):
    for n in range(4):
        for r in frag_reads(ldsq[n][1], ldsq[n][2]): a(r[1]); lg.issue(r[2])

QORD = [[0, 1, 2, 3, 4, 5, 6, 7, 9, 8], [3, 4, 5, 0, 1, 2, 6, 7, 9, 8], [6, 7, 2, 0, 1, 5, 3, 4, 9, 8], [8, 9, 0, 1, 2, 3, 4, 6, 5, 7]]
KORD = [0, 2, 1, 3, 5, 4, 6, 9, 7, 8]

def qk_setup(a, opt):
    common_addr(a)
    T = VTMP
    rho = lambda l: arow(l & 7, (l >> 3) & 1)
    lanefn(a, VXW, lambda l: LDS_MEM + (l & 15)*16 + (l >> 4)*4, T, 256)
    lanefn(a, VDR, lambda l: LDS_MEM + (l >> 2)*16 + (l & 1)*8, T)
    lanefn(a, V9, lambda l: (l >> 5)*256 + rho(l)*16 + ((l >> 4) & 1)*8, T)
    lanefn(a, V10, lambda l: rho(l)*16 + ((l >> 4) & 1)*4, T)
    lanefn(a, V11, lambda l: LDS_MEM + 3072 + l*16, T)
    lanefn(a, V12, lambda l: LDS_MEM + ((l >> 3) & 1)*512 + arow(l & 7, l >> 5)*16 + ((l >> 4) & 1)*8, T)
    a(f's_and_b32 s68, {SH}, 15'); a('s_min_u32 s68, s68, 9'); a('s_lshl_b32 s68, s68, 10'); a(f'v_add_u32 v{V12}, s68, v{V12}')
    lanefn(a, VXS, lambda l: ((l >> 3) & 1)*1024 + (l >> 4)*256 + (l & 7)*16, T)
    a(f's_mul_i32 s67, {SX}, 12288'); a(f's_add_u32 s67, s67, {PA_OFF}')
    a(f's_and_b32 s68, {SH}, 15'); a('s_lshl_b32 s76, s68, 9'); a('s_add_u32 s76, s76, s67')
    a('s_lshr_b32 s77, s68, 1'); a('s_lshl_b32 s77, s77, 8'); a('s_add_u32 s77, s77, s67')
    a('s_and_b32 s68, s68, 1'); a('s_lshl_b32 s68, s68, 3'); a('s_add_u32 s77, s77, s68'); a('s_add_u32 s77, s77, 8192')

def qk_init_clear(a):
    a(f'v_mov_b32 v{VA+16}, -1'); a(f'v_mov_b32 v{VA+17}, -1')
    a(f'buffer_store_dwordx2 v[{VA+16}:{VA+17}], v{V9}, {S_WS}, s76 offen sc1')
    a(f'buffer_store_dword v{VA+16}, v{V10}, {S_WS}, s77 offen sc1')

def mf(D, A, B, first): return f'v_mfma_f32_16x16x32_bf16 v[{D}:{D+3}], v[{A}:{A+3}], v[{B}:{B+3}], ' + ('0' if first else f'v[{D}:{D+3}]')

def stream_head(sd, w, order, AP, opt, rest):
    g = opt.get('gb1', 3)
    sd.put(g, ('wait', 'GW')); sd.put(g, 's_barrier')
    for kb in order:
        if kb not in OWN[w]:
            sd.lds(g, a_read(kb, AP[kb]), True); g += 1
    return g

def qk_loop(a, w, sc, opt):
    VZ = VTMP + 15
    lg = Trk(a, 'lgkmcnt', 15)
    ltop, lent, lfin = a.label('Lqk'), a.label('Lqkent'), a.label('Lqkfin')
    QEX = LDS_EX - LDS_MEM
    SACC, SM = VTMP, VTMP + 4
    QO = QORD[w]
    AP = apos(w, QO)
    seq = [(kb, t) for kb in QO[:6] for t in range(3)] + [(kb, t) for t in range(3) for kb in QO[6:]]
    first = [(xfrag(kb, t, 0)[0], VACC0 + 4*t, AP[kb], xfrag(kb, t, 0)[1], [f'A{kb}']) for kb, t in seq]
    second = []
    n = 0
    SX0 = opt.get('sx0', 19); QS = opt.get('qscale', 0)
    for t in range(3):
        for kb in KORD:
            second.append((xfrag(kb, t, 1)[0], VACC1 + 4*t, AP[kb], xfrag(kb, t, 1)[1], []))
            if w >= 2 and n == SX0:
                for kk in range(6): second.append(('raw', 0, 0, mf(SACC, VKX + 4*kk, VQF + 4*kk, kk == 0), [f'Q{kk}']))
            if w == 0 and n == 29:
                for kk in range(4): second.append(('raw', 0, 0, mf(SM, VKX + 4*kk, VQF + 4*kk, kk == 0), [f'K{kk}', f'Q{kk}']))
            n += 1
    items, ldsq, k2 = build_stream(first, second)
    sd = Sides()
    stream_head(sd, w, QO, AP, opt, None)
    sd.put(opt.get('gb1', 3), lambda o_=opt: stamp(a, o_, 1))
    pub_rd = [('lds', f'ds_read_b64 v[{VKX+2*x}:{VKX+2*x+1}], v{V12} offset:{x*256}', 'PUB') for x in range(2)]
    pub_st = f'buffer_store_dwordx4 v[{VKX}:{VKX+3}], v{VXS}, {S_WS}, s44 offen sc1'
    if w == 1:
        sd.put(0, f'buffer_store_dword v{VT1}, v{VT2}, {S_WS}, s46 offen sc1')
        for r in pub_rd: sd.lds(18, r)
        sd.put(25, ('wait', 'PUB')); sd.put(opt.get('pubg', 25), pub_st)
        for j in range(6):
            sd.put(1 + 3*j, f'buffer_load_dword v{VKX+4+j}, v{V9}, {S_WS}, s{[45, 48, 49][j >> 1]} offen sc1')
            if j % 2 == 0: sd.put(2 + 3*j, f's_add_u32 s{[45, 48, 49][j >> 1]}, s{[45, 48, 49][j >> 1]}, 8192')
    if w == 0:
        sd.put(opt.get('kt0', 1), f'buffer_load_dword v{VTMP+13}, v{V12}, {S_WS}, s45 offen sc1')
        sd.put(opt.get('kt0', 1) + 4, f'buffer_load_dword v{VTMP+13}, v{VXS}, {S_WS}, s45 offen sc1')
        if opt.get('async', 0): sd.put(19, f'buffer_load_dword v{VTMP+14}, v{VT2}, {S_WS}, s54 offen sc1')
    if w == 1 and opt.get('async', 0): sd.put(opt.get('w1p', 21), f'buffer_load_dword v{V11}, v{V10}, {S_WS}, s54 offen sc1')
    wr = lambda acc, t, off, tag: ('lds', f'ds_write_b32 v{VXW}, v{acc} offset:{off + t*1024}', tag)
    for t in range(3): gq = sd.valu([23, 27, 31][t], post(VACC0 + 4*t, VACC0 + 4*t, 's52' if QS else None) + [wr(VACC0 + 4*t, t, QEX, 'QW')], opt.get('qper', [1, 1, 2])[t])
    gb = gq + opt.get('gba', [3, 1, 4, 4])[w]
    if w != 1: sd.put(gb, f's_waitcnt vmcnt({0 if w else 2 + opt.get("async", 0)})')
    sd.put(gb, ('wait', 'QW')); sd.put(gb, 's_barrier')
    if opt.get('diag'): sd.put(gb, lambda: stamp(a, opt, 0))
    if w >= 2:
        for i, r in enumerate(dense_reads(VQF, QEX, 'Q')): sd.lds(gb + (i * opt.get('qspan', 10)) // 12, r, True)
    gk = 0
    for t in range(2): gk = sd.valu(k2[10*t + 9] + 2, post(VACC1 + 4*t, VACC1 + 4*t) + [wr(VACC1 + 4*t, t, 0, 'KW')])
    gB = gk + opt.get('gbb', [1, 1, 3, 3])[w]
    sd.put(gB, ('wait', 'KW')); sd.put(gB, 's_barrier')
    assert gB < len(items)
    if w == 0:
        for i, r in enumerate(dense_reads(VKX, 0, 'K', range(4))): sd.lds(gB + i // opt.get('krd', 3), r, True)
    sd.valu(k2[29] + 2, post(VACC1 + 8, VACC1 + 8, None, w > 0) + [wr(VACC1 + 8, 2, 0, 'KW')])
    E0, T, X0 = VTMP + 8, VTMP + 12, VTMP + 4
    ool4 = None
    if w >= 2:
        lsx, lsxb = a.label('Lsx'), a.label('Lsxb')
        p0 = [f'v_cndmask_b32 v{X0}, v{SACC}, v{SACC+2}, {SMASK8}', f'v_cndmask_b32 v{X0+1}, v{SACC+1}, v{SACC+3}, {SMASK8}',
              f'v_exp_f32 v{E0}, v{X0}', f'v_exp_f32 v{E0+1}, v{X0+1}',
              f'v_max_f32 v{T}, |v{X0}|, |v{X0+1}|', f'v_add_f32 v{E0+3}, v{E0}, v{E0+1}', f'v_cmp_lt_f32 vcc, s79, v{T}']
        if not QS: p0[2:2] = [f'v_mul_f32 v{X0}, s52, v{X0}', f'v_mul_f32 v{X0+1}, s52, v{X0+1}']
        np2 = opt.get('np2', 2 if QS else 4)
        sd.valu(k2[SX0 + 2], p0[:np2], 2)
        g = sd.valu(sd.nxt + 1, p0[np2:])
        sd.put(g, lambda: (a(f's_cbranch_vccnz {lsx}'), a(f'{lsxb}:')))
        sd.lds(g, ('lds', f'ds_write_b128 v{V11}, v[{E0}:{E0+3}] offset:{(w-2)*1024}', 'EW'), True)
        def ool4():
            m = E0 + 2
            a(f'{lsx}:')
            a(f'v_max_f32 v{m}, v{X0}, v{X0+1}'); a(f'v_max_f32_dpp v{m}, v{m}, v{m} {DPP8}')
            for s_ in allred('v_max_f32', m, T): a(s_)
            for i in range(2): a(f'v_sub_f32 v{E0+i}, v{X0+i}, v{m}')
            for i in range(2): a(f'v_exp_f32 v{E0+i}, v{E0+i}')
            a(f'v_add_f32 v{E0+3}, v{E0}, v{E0+1}')
            a(f's_branch {lsxb}')
        sd.valu(5, [f'v_mov_b32 v{E0+2}, 0'])
    sd.refills(ldsq)
    if w == 0:
        for i, r in enumerate(dense_reads(VQF, QEX, 'Q')):
            g = gb
            while g in sd.busy and g < gB - 1: g += 1
            sd.lds(g if g < gB - 1 else gB - 2 - (i & 3), r, True)
    if opt.get('dq'):
        for i_, g_ in zip((0, 6, 7, 3, 4), opt['dq']): sd.put(g_, lambda i_=i_: stamp(a, dict(stamps=1, cyc=1), i_))
        opt = {k_: v_ for k_, v_ in opt.items() if k_ != 'stamps'}; opt['dq1'] = 1

    def top():
        preload_b(a, lg, ldsq)
        for r in range(0, 24, 2): a(f'v_mov_b64 v[{VACC0+r}:{VACC0+r+1}], 0')
        if w == 0: a(f's_bitcmp1_b32 {SSTEP}, 0'); a('s_cselect_b32 s78, -1.0, 1.0')
        if w == 1:
            a(f'v_mov_b32 v{VT1}, {SSTEP}')
            a(f's_lshr_b32 s67, {SSTEP}, 2'); a('s_mul_i32 s44, s67, 40960'); a(f's_bfe_u32 s67, {SSTEP}, 0x10001'); a('s_mul_i32 s67, s67, 20480')
            a('s_add_u32 s44, s44, s67'); a(f's_and_b32 s67, {SSTEP}, 1'); a('s_lshl_b32 s67, s67, 7'); a('s_add_u32 s44, s44, s67'); a('s_add_u32 s44, s44, s47')
    def prefetch():
        ls = a.label('Lnp')
        if w <= 1: a(f's_mov_b32 s45, {OOB}')
        a(f's_cmp_ge_u32 s82, {1 if opt.get("nopf") else 63}'); a(f's_cbranch_scc1 {ls}')
        if w >= 2:
            lk = a.label('Lk')
            a(f's_cmp_ge_u32 s82, {opt.get("self", SELF)}'); a(f's_cbranch_scc1 {lk}')
            check_flags(a, opt, 'K')
            a(f'{lk}:')
            load_frags6(a, VKX, KF_OFF, w - 2)
        elif w == 0:
            check_flags(a, opt, 'K', ls, (VTMP + 14, 2) if opt.get('async', 0) else None)
            a(f's_lshl_b32 s45, s82, 5'); a(f's_add_u32 s45, s45, {SH}'); a('s_mul_i32 s45, s45, 12288'); a(f's_add_u32 s45, s45, {KF_OFF}')
        elif not opt.get('notouch'):
            check_flags(a, opt, 'Y16', ls, (V11, 1 if opt.get('w1p', 21) < opt.get('pubg', 25) else 0) if opt.get('async', 0) else None)
            a(f's_mul_i32 s45, s82, {40*40960}'); a('s_add_u32 s45, s45, s50')
        a(f'{ls}:')
        if w <= 1 and opt.get('async', 0):
            a(f's_sub_u32 s61, s82, {LEAD-4-1}'); a('s_max_i32 s61, s61, 0'); a('s_lshr_b32 s61, s61, 2'); a('s_add_u32 s61, s61, s82'); a('s_add_u32 s61, s61, 1')
            a(f's_cmp_gt_u32 {SPC}, s61'); a(f's_cselect_b32 s54, {OOB}, s81')
        if w == 1:
            a(f's_add_u32 s48, s45, {16*40960}'); a(f's_add_u32 s49, s45, {32*40960}'); a(f's_bitcmp1_b32 {SH}, 3'); a(f's_cselect_b32 s49, {OOB}, s49')
    a(f's_mov_b32 {SSTEP}, 0'); a(f's_mov_b32 s52, {f2u(SC):#x}'); a('s_mov_b32 s53, s52'); a(f's_mov_b32 s79, {f2u(opt.get("safe", 60.0)):#x}')
    if w != 1: a(f's_mul_i32 s81, {SH}, 384'); a(f's_add_u32 s81, s81, {PRGX_OFF + 96*128}')
    if w >= 2: a('s_mov_b32 s82, 0'); prefetch()
    if w == 0:
        a(f's_mov_b32 s45, {OOB}'); a(f'v_lshlrev_b32 v{V12}, 7, v0'); a(f'v_add_u32 v{VXS}, 8192, v{V12}'); a(f'v_min_u32 v{VXS}, 12160, v{VXS}')
        a(f'v_and_b32 v{VT2}, 15, v0'); a(f'v_min_u32 v{VT2}, 2, v{VT2}'); a(f'v_lshlrev_b32 v{VT2}, 7, v{VT2}')
    if w == 1:
        a(f'v_lshlrev_b32 v{V9}, 7, v0'); a(f'v_and_b32 v{V10}, 15, v0'); a(f'v_lshlrev_b32 v{V10}, 7, v{V10}')
        a(f'v_cmp_eq_u32 vcc, 0, v0'); a(f'v_mov_b32 v{VT2}, 0x40000000'); a(f'v_cndmask_b32 v{VT2}, v{VT2}, 0, vcc')
        a(f's_lshl_b32 s81, {SX}, 11'); a(f's_bfe_u32 s67, {SH}, 0x20002'); a(f's_mul_i32 s67, s67, {40*128}'); a('s_add_u32 s81, s81, s67'); a(f's_add_u32 s81, s81, {PRGY_OFF}')
        a(f's_and_b32 s50, {SH}, 15'); a('s_mul_i32 s50, s50, 40960'); a(f's_lshl_b32 s67, {SX}, 14'); a('s_add_u32 s50, s50, s67'); a(f's_add_u32 s50, s50, {VOF_OFF}')
        a(f's_lshl_b32 s46, {SH}, 7'); a(f's_add_u32 s46, s46, {MPRG_OFF}'); a(f's_lshl_b32 s47, {SH}, 11'); a(f's_add_u32 s47, s47, {XN_OFF + 64*40960}')
        a(f's_cmp_ge_u32 {SH}, 10'); a(f's_cselect_b32 s46, {OOB}, s46'); a(f's_cselect_b32 s47, {OOB}, s47')
        for r in (45, 48, 49): a(f's_mov_b32 s{r}, {OOB}')
    if w <= 1: a('s_mov_b32 s54, s81')
    top()
    for kb in OWN[w]: a(a_read(kb, AP[kb])[1])
    a('s_waitcnt lgkmcnt(0)')
    a(f's_branch {lent}')
    a(f'{ltop}:')
    lg.reset()
    a('s_barrier')
    a(f's_add_u32 s82, {SSTEP}, {[1, opt.get("tahead", 2) - 1, 0, 0][w]}'); prefetch()
    top()
    gather_setup(a)
    qs = opt.get('qsleep', 10) - (opt.get('qsk', 2) if w >= 2 else 0)
    if qs > 0: a(f's_sleep {qs}')
    if opt.get('qdet', 0): a(f'v_and_b32 v{VZ}, {(8 if NCH[w] == 2 else 16) - 1}, v0'); a(f'v_min_u32 v{VZ}, {4*NCH[w]-1}, v{VZ}'); a(f'v_lshlrev_b32 v{VZ}, 8, v{VZ}')
    else: a(f'v_mov_b32 v{VZ}, 0')
    a('s_waitcnt lgkmcnt(0)')
    if opt.get('mg', 1): ool = gather_m(a, NCH[w], VTMP, VQF, VTMP + 12, opt, (0, 6, 7), VZ if opt.get('qd', 1) else None, 1, 0, opt.get('spec', 0), opt.get('rbq', 0), opt.get('lrq', 0))
    else: ool = gather(a, NCH[w], VTMP, {k: v for k, v in opt.items() if k != 'stamps'} if opt.get('diag') else opt, (0, 6, 7), opt.get('qrs', 0), VQF if opt.get('qj', 1) else None, VZ if opt.get('qj', 1) else None)
    a(f'{lent}:')
    lg.reset(); lg.issue('GW')
    left = [x_ for g_ in sorted(sd.side) if g_ >= len(items) for x_ in sd.side[g_]]
    merge(a, lg, items, sd.side)
    for x_ in left: merge(a, lg, [], {-1: [x_]})
    if opt.get('dq1'): stamp(a, dict(stamps=1, cyc=1), 2)
    stamp(a, opt, 2)
    EA, EB = VB, VB + 4
    U, LM, F0, F1, LS = VB + 8, VB + 9, VB + 10, VB + 11, VB + 12
    redl = [f'v_add_f32_dpp v{LS}, v{LS}, v{LS} {DPP8}', f'v_mov_b32 v{T}, v{LS}', f'v_permlane16_swap_b32 v{LS}, v{T}', f'v_add_f32 v{LS}, v{LS}, v{T}',
            f'v_mov_b32 v{T}, v{LS}', f'v_permlane32_swap_b32 v{LS}, v{T}', f'v_add_f32 v{LS}, v{LS}, v{T}', f'v_mul_f32 v{LS}, s78, v{LS}']
    lg.all(); a('s_barrier')
    if opt.get('diag'): stamp(a, opt, 6)
    ool3 = None
    if w == 0:
        lslow, lback = a.label('Lsm'), a.label('Lsb')
        for r in dense_reads(VKX, 0, 'K', range(4, 6)): a(r[1]); lg.issue(r[2])
        a(f'ds_read_b128 v[{EA}:{EA+3}], v{V11}'); lg.issue('E'); a(f'ds_read_b128 v[{EB}:{EB+3}], v{V11} offset:1024'); lg.issue('E')
        for kk in range(4, 6):
            lg.wait(f'K{kk}'); a(mf(SM, VKX + 4*kk, VQF + 4*kk, False))
        lg.wait('E')
        for s_ in [f'v_add_f32 v{LS}, v{EA+3}, v{EB+3}', f'v_max_f32 v{U}, |v{EA+2}|, |v{EB+2}|', f'v_mul_f32 v{U}, 0x71800000, v{U}', redl[0], redl[1]]: a(s_)
        stamp(a, opt, 3)
        T2, PO = VB + 13, VB + 16
        a(f'v_cndmask_b32 v{SM}, v{SM}, v{SM+2}, {SMASK8}'); a(f'v_cndmask_b32 v{SM+1}, v{SM+1}, v{SM+3}, {SMASK8}')
        if not QS: a(f'v_mul_f32 v{SM}, s52, v{SM}'); a(f'v_mul_f32 v{SM+1}, s52, v{SM+1}')
        a(f'v_exp_f32 v{SM+2}, v{SM}'); a(f'v_exp_f32 v{SM+3}, v{SM+1}')
        a(redl[2]); a(f'v_max3_f32 v{U}, |v{SM}|, |v{SM+1}|, v{U}'); a(redl[3])
        a(f'v_add_f32 v{LM}, v{SM+2}, v{SM+3}')
        a(redl[4])
        a(f'v_cmp_lt_f32 vcc, s79, v{U}')
        def fin(first):
            a(f'v_add_f32_dpp v{LM}, v{LM}, v{LM} {DPP8}')
            if first: a(redl[5])
            a(f'v_mov_b32 v{T2}, v{LM}')
            if first: a(redl[6]); a(redl[7])
            a(f'v_permlane16_swap_b32 v{LM}, v{T2}'); a(f'v_add_f32 v{LM}, v{LM}, v{T2}')
            a(f'v_fma_f32 v{LM}, v{LM}, s78, v{LS}')
            a(f'v_rcp_f32 v{LM}, v{LM}')
            a(f'v_pk_mul_f32 v[{PO}:{PO+1}], v[{EA}:{EA+1}], v[{LM-1}:{LM}] op_sel:[0,1]'); a(f'v_pk_mul_f32 v[{PO+2}:{PO+3}], v[{EB}:{EB+1}], v[{LM-1}:{LM}] op_sel:[0,1]')
            a(f'v_cvt_pk_bf16_f32 v{PO}, v{PO}, v{PO+1}'); a(f'v_cvt_pk_bf16_f32 v{PO+1}, v{PO+2}, v{PO+3}')
        fin(True)
        a(f's_cbranch_vccnz {lslow}')
        a(f'{lback}:')
        a(f'buffer_store_dwordx2 v[{PO}:{PO+1}], v{V9}, {S_WS}, s76 offen {sc}')
        a(f'v_pk_mul_f32 v[{SM+2}:{SM+3}], v[{SM+2}:{SM+3}], v[{LM-1}:{LM}] op_sel:[0,1]')
        a(f'v_cvt_pk_bf16_f32 v{SM}, v{SM+2}, v{SM+3}')
        a(f'buffer_store_dword v{SM}, v{V10}, {S_WS}, s77 offen {sc}')
        stamp(a, opt, 4)
        if opt.get('diagp'): a('s_waitcnt vmcnt(0)')
        lkm, lkb = a.label('Lkm'), a.label('Lkb')
        a(f's_cmp_ge_u32 {SSTEP}, {4*NMB}'); a(f's_cbranch_scc1 {lkm}')
        a(f'{lkb}:')
        def ool3():
            a(f'{lkm}:')
            a(f's_mul_i32 s72, {SH}, 12288'); a(f's_bfe_u32 s67, {SSTEP}, 0x10001'); a('s_mul_i32 s67, s67, 6144'); a('s_add_u32 s72, s72, s67')
            a(f's_add_u32 s72, s72, {KF_OFF + (64 + NMB)*32*12288}'); a('s_add_u32 s73, s72, 4096')
            a(f's_bitcmp1_b32 {SSTEP}, 0'); a('s_cselect_b32 s74, 8, 0'); a('s_lshl_b32 s74, 0x00ff00ff, s74'); a('s_mov_b32 exec_lo, s74'); a('s_mov_b32 exec_hi, s74')
            for kk in range(6): a(f'buffer_store_dwordx4 v[{VKX+4*kk}:{VKX+4*kk+3}], v{VL16}, {S_WS}, s{72 + (kk >> 2)} offen offset:{(kk & 3)*1024} sc1')
            a('s_mov_b64 exec, -1')
            cprog(a)
            a(f's_branch {lkb}')
            a(f'{lslow}:')
            a(f'v_max_f32 v{U}, v{SM}, v{SM+1}'); a(f'v_max_f32_dpp v{U}, v{U}, v{U} {DPP8}')
            for s_ in allred('v_max_f32', U, T, (16,)): a(s_)
            a(f'v_max3_f32 v{U}, v{U}, v{EA+2}, v{EB+2}')
            a(f'v_sub_f32 v{SM}, v{SM}, v{U}'); a(f'v_sub_f32 v{SM+1}, v{SM+1}, v{U}'); a(f'v_sub_f32 v{F0}, v{EA+2}, v{U}'); a(f'v_sub_f32 v{F1}, v{EB+2}, v{U}')
            a(f'v_exp_f32 v{SM+2}, v{SM}'); a(f'v_exp_f32 v{SM+3}, v{SM+1}'); a(f'v_exp_f32 v{F0}, v{F0}'); a(f'v_exp_f32 v{F1}, v{F1}')
            a(f'v_mul_f32 v{LS}, v{EA+3}, v{F0}'); a(f'v_fmac_f32 v{LS}, v{EB+3}, v{F1}')
            for s_ in redl: a(s_)
            for i in range(2): a(f'v_mul_f32 v{EA+i}, v{EA+i}, v{F0}'); a(f'v_mul_f32 v{EB+i}, v{EB+i}, v{F1}')
            a(f'v_add_f32 v{LM}, v{SM+2}, v{SM+3}')
            fin(False)
            a(f's_branch {lback}')
    if opt.get('dq1'): opt = dict(opt, stamps=1)
    stamp(a, opt, 5)
    stamp_flush(a, opt, 8)
    a(f's_add_u32 {SSTEP}, {SSTEP}, 1'); a(f's_cmp_lt_u32 {SSTEP}, 64'); a(f's_cbranch_scc1 {ltop}')
    a('s_waitcnt vmcnt(0)'); a('s_endpgm')
    ool()
    if ool3: ool3()
    if ool4: ool4()

def vo_setup(a, opt):
    common_addr(a)
    T = VTMP
    lanefn(a, VXW, lambda l: LDS_EX + tile_pat(l), T, 256)
    a(f'v_and_b32 v{T}, 1, v0'); a(f'v_cmp_ne_u32 vcc, 0, v{T}'); a(f'v_mov_b32 v{T}, 0x05040100'); a(f'v_mov_b32 v{T+1}, 0x03020706')
    a(f'v_cndmask_b32 v{VXS}, v{T}, v{T+1}, vcc')
    lanefn(a, V9, lambda l: ((l >> 4) & 1)*1024 + (l & 15)*16 + (l >> 5)*8, T, 256)
    lanefn(a, V10, lambda l: (l >> 4)*10240 + (l & 15)*16, T)
    lanefn(a, V11, lambda l: (l >> 4)*1024 + (l & 15)*16, T, 256)
    lanefn(a, V12, tile_pat, T)
    a(f's_and_b32 {SDT}, {SH}, 15'); a(f's_lshl_b32 s67, {SWV}, 4'); a(f's_add_u32 {SDT}, {SDT}, s67')
    a(f's_lshl_b32 s81, {SX}, 11'); a(f's_bfe_u32 s67, {SDT}, 0x20002'); a(f's_mul_i32 s67, s67, {40*128}'); a('s_add_u32 s81, s81, s67'); a(f's_add_u32 s81, s81, {PRGY_OFF}')
    a(f's_mul_i32 s44, {SH}, 10240'); a(f's_add_u32 s44, s44, {VOMR_OFF}'); a('s_add_u32 s45, s44, 4096'); a('s_add_u32 s46, s44, 8192')
    a(f's_mul_i32 s72, {SX}, {16*10240}'); a(f's_lshl_b32 s68, {SDT}, 8'); a('s_add_u32 s72, s72, s68'); a(f's_add_u32 s72, s72, {VOMR_OFF}')
    a('s_add_u32 s73, s72, 40960'); a('s_add_u32 s74, s73, 40960'); a('s_add_u32 s75, s74, 40960')
    a(f's_mul_i32 s49, {SX}, 12288'); a(f's_add_u32 s49, s49, {PA_OFF}'); a(f's_add_u32 s76, s49, {SCHK}')
    a(f's_mul_i32 s47, {SDT}, 40960'); a(f's_lshl_b32 s67, {SX}, 14'); a('s_add_u32 s47, s47, s67'); a(f's_add_u32 s47, s47, {VOF_OFF}')

def vom_store1(src, k, base, sc):
    if k < 2: return f'buffer_store_dwordx4 v[{src}:{src+3}], v{V11}, {S_WS}, {base[k]} offen {sc}'
    return f'buffer_store_dwordx2 v[{src}:{src+1}], v{V9}, {S_WS}, {base[2]} offen {sc}'
def memp_off(a, dst, add, dt=SDT):
    a(f's_add_u32 s67, {SSTEP}, {add}'); a('s_and_b32 s67, s67, 3'); a('s_lshl_b32 s67, s67, 1'); a(f's_add_u32 s67, s67, {SX}')
    a(f's_mul_i32 s{dst}, s67, 10240'); a(f's_lshl_b32 s{dst+1}, s67, 15'); a(f's_lshl_b32 s67, {dt}, 8')
    a(f's_add_u32 s{dst}, s{dst}, s67'); a(f's_add_u32 s{dst+1}, s{dst+1}, s67'); a(f's_add_u32 s{dst}, s{dst}, {MEML_OFF}')
    a(f's_add_u32 s{dst+1}, s{dst+1}, {SMR}'); a(f's_cmp_ge_u32 {dt}, 24'); a('s_cselect_b32 s67, 10240, 0'); a(f's_add_u32 s{dst+1}, s{dst+1}, s67')

def vo_init_clear(a):
    for r in range(4): a(f'v_mov_b32 v{VA+16+r}, -1')
    for k in range(3): a(vom_store1(VA + 16, k, ('s44', 's45', 's46'), 'sc1'))
    for sl in range(4):
        memp_off(a, 32, sl)
        a(f's_cmp_ge_u32 {SDT}, 40'); a(f's_cselect_b32 s32, {OOB}, s32'); a(f's_cselect_b32 s33, {OOB}, s33')
        a(f'buffer_store_dword v{VA+16}, v{V12}, {S_WS}, s32 offen sc1')
        a(f'buffer_store_dword v{VA+16}, v{V12}, {S_WS}, s33 offen sc1')
        a('s_add_u32 s33, s33, 8192')
        a(f'buffer_store_dword v{VA+16}, v{V12}, {S_WS}, s33 offen sc1')

VORD = [[0, 1, 2, 3, 4, 5, 6, 7, 9, 8], [3, 4, 5, 0, 1, 2, 6, 7, 9, 8], [6, 7, 2, 0, 1, 5, 3, 4, 9, 8], [8, 9, 0, 1, 3, 2, 4, 6, 5, 7]]
OORD = [0, 1, 2, 3, 4, 5, 6, 7, 8, 9]
OORD0 = [0, 2, 1, 3, 4, 6, 5, 7, 8, 9]
def pairup(acc, tmp):
    return [f'v_mov_b32_dpp v{tmp}, v{acc} quad_perm:[1,0,3,2] row_mask:0xf bank_mask:0xf', f'v_perm_b32 v{acc}, v{tmp}, v{acc}, v{VXS}']

def vo_loop(a, w, duty, sc, opt):
    n = NCH[w]; VO = VORD[w]
    lg = Trk(a, 'lgkmcnt', 15)
    ltop, lent = a.label('Lvo'), a.label('Lvoent')
    VV = VACC1; PK = VACC0
    EXO = LDS_EX - LDS_MEM
    AP = apos(w, VO)
    OA = {t: (VOX + 44 + 4*i if i < 5 else AP[VO[i - 5]]) for i, t in enumerate(OORD)}
    seq = [(kb, t) for kb in VO[:3] for t in range(3)] + [(kb, t) for t in range(3) for kb in VO[3:]]
    first = [(xfrag(kb, t, 0)[0], VACC0 + 4*t, AP[kb], xfrag(kb, t, 0)[1], [f'A{kb}']) for kb, t in seq]
    oseq = [(t, 0) for t in OORD0] + [(t, 1) for t in OORD[:3]]
    for i in range(10): oseq += [(OORD[i], 2)] + ([(OORD[i+3], 1)] if i + 3 < 10 else [])
    if opt.get('oseq', 1):
        oseq = [(0, 0), (2, 0), (1, 0), (3, 0), (4, 0), (6, 0), (0, 1), (2, 1), (1, 1), (3, 1), (5, 0), (7, 0), (0, 2), (1, 2), (2, 2), (3, 2),
                (4, 1), (5, 1), (4, 2), (6, 1), (5, 2), (7, 1), (6, 2), (8, 0), (7, 2), (9, 0), (8, 1), (9, 1), (8, 2), (9, 2)]
    second = [(yfrag(tile, kb)[0], OA[tile], VV + 4*kb, yfrag(tile, kb)[1], [f'V{kb}']) for tile, kb in oseq]
    fin = {t: 30 + oseq.index((t, 2)) for t in OORD}
    items, ldsq, k2 = build_stream(first, second)
    sd = Sides()
    stream_head(sd, w, VO, AP, opt, None)
    sd.put(opt.get('gb1', 3), lambda: stamp(a, opt, 1))
    vox = lambda hh: f'buffer_load_dwordx4 v[{VOX+4*hh}:{VOX+4*hh+3}], v{VL16}, {S_WS}, s83 offen offset:{(hh & 3)*1024} {STREAM[0]}'
    vsp = opt.get('vsp', 3)
    NIN = opt.get('nin', 16)
    NE = opt.get('ne', 0)
    if duty:
        for hh in range(NE, min(NIN, 11)):
            g = opt.get('vs0', 1) + (hh - NE) * vsp
            sd.put(g, vox(hh))
            if hh & 3 == 3: sd.put(g + 1, 's_add_u32 s83, s83, 4096')
    if w == 3:
        for i in range(6): sd.put(opt.get('cl0', 1) + 4*i, f'buffer_store_dword v{VT2}, v{V12}, {S_WS}, s{52 + i} offen {"sc1" if i & 1 else sc}')
    zer = [f'v_mov_b64 v[{AP[VO[r >> 1]] + 2*(r & 1)}:{AP[VO[r >> 1]] + 2*(r & 1) + 1}], 0' for r in range(10)]
    for r in range(6): sd.valu(3*(r >> 1) + 3 + (r & 1), [zer[r]])
    wr = lambda acc, t: ('lds', f'ds_write_b32 v{VXW}, v{acc} offset:{t*1024}', f'VW{t}')
    vpost = lambda t: post(VACC0 + 4*t, VACC0 + 4*t) + [None] + pairup(VACC0 + 4*t, VACC0 + 4*t + 1) + [wr(VACC0 + 4*t, t)]
    vrd = lambda kb: ('lds', f'ds_read_b128 v[{VV+4*kb}:{VV+4*kb+3}], v{VAR} offset:{EXO + kb*1024}', f'V{kb}')
    for t, g0, per in ((0, 17, 1), (1, 24, 1), (2, 31, 2)):
        g = sd.valu(g0, vpost(t), per) + 2
        sd.put(g, ('wait', f'VW{t}')); sd.put(g, 's_barrier'); sd.lds(g, vrd(t), True)
    sd.valu(27, zer[6:])
    if opt.get('diag'): sd.put(g, lambda: stamp(a, opt, 0)); sd.put(29, lambda: stamp(a, opt, 5)); sd.put(42, lambda: stamp(a, opt, 7))
    base = ('s44', 's45', 's46')
    tail = []
    ops = []
    for q in range(3):
        b = PK + 4*q; ts_ = list(range(4*q, min(4*q + 4, 10)))
        for t in ts_:
            p_ = post(OA[t], PK + t, None, t >= 8)
            ops += [(f'a{t}{j}', x_, [], fin[t] + 2) for j, x_ in enumerate(p_[:-1])] + [(f'c{t}', p_[-1], [f'a{t}{j}' for j in range(len(p_) - 1)], 0)]
            if duty and 11 + t < NIN:
                if t == 1: ops.append(('s', 's_add_u32 s83, s83, 4096', ['x0'], 0))
                ops.append((f'x{t}', vox(11 + t), [f'c{t}'] + ([f'x{t-1}'] if t else []) + (['s'] if t == 1 else []), 0))
        ops.append((f'p{q}', f'v_permlane16_swap_b32 v{b}, v{b+1}', [f'c{ts_[0]}', f'c{ts_[1]}'], 0))
        last = [f'p{q}']
        if q < 2:
            ops += [(f'r{q}', f'v_permlane16_swap_b32 v{b+2}, v{b+3}', [f'c{ts_[2]}', f'c{ts_[3]}'], 0),
                    (f'u{q}', f'v_permlane32_swap_b32 v{b}, v{b+2}', [f'p{q}', f'r{q}'], 0), (f'w{q}', f'v_permlane32_swap_b32 v{b+1}, v{b+3}', [f'p{q}', f'r{q}'], 0)]
            last = [f'u{q}', f'w{q}']
        ops += [(f'b{q}', f'v_bfi_b32 v{b}, 1, {SSTEP}, v{b}', last[:1], 0), (f'st{q}', vom_store1(b, q, base, sc), last + [f'b{q}'], 0)]
    at = {}
    g = min(o[3] for o in ops if o[3])
    mem_at = set()
    while len(at) < len(ops):
        for nm, tx, dep, e in ops:
            if nm in at or g < e: continue
            sal = tx.startswith('s_')
            if not all(d in at and (at[d] < g or (at[d] == g and (sal or d == 's'))) for d in dep): continue
            if tx.startswith('v_'):
                if g < len(items) and sd.vbusy.get(g, 0) >= 2: continue
                sd.vbusy[g] = sd.vbusy.get(g, 0) + 1
            elif not sal:
                if g < len(items) and g in mem_at: continue
                mem_at.add(g)
            at[nm] = g; sd.put(g, tx)
        g += 1
    ex = []
    for g in sorted(g for g in sd.side if g >= len(items)): ex += sd.side.pop(g)
    tail = ex + tail
    sd.refills(ldsq)

    def top():
        preload_b(a, lg, ldsq)
        a(f's_bitcmp1_b32 {SSTEP}, 0'); a('s_cselect_b32 s50, 0x80008000, 0')
        if w == 3:
            a(f'v_mov_b32 v{VT2}, -1'); a(f's_and_b32 s35, {SH}, 15')
            for i in range(3):
                memp_off(a, 52 + 2*i, 2, 's35')
                if i < 2: a('s_add_u32 s35, s35, 16')
            a('s_cmp_ge_u32 s35, 40'); a(f's_cselect_b32 s56, {OOB}, s56'); a(f's_cselect_b32 s57, {OOB}, s57')
        if duty:
            memp_off(a, 77, 1)
            if opt.get('nopf'): a('s_mov_b32 s82, 0')
            else: a(f's_mov_b32 s82, {SSTEP}')
            a(f's_mul_i32 s83, s82, {40*40960}'); a('s_add_u32 s83, s83, s47'); a(f's_cmp_eq_u32 {SSTEP}, 63'); a(f's_cselect_b32 s83, {OOB}, s83')
        for r in range(0, 12, 2): a(f'v_mov_b64 v[{VACC0+r}:{VACC0+r+1}], 0')
        for r in range(0, 20, 2): a(f'v_mov_b64 v[{VOX+44+r}:{VOX+45+r}], 0')
        if duty:
            lk = a.label('Lk')
            a(f's_cmp_ge_u32 {SSTEP}, {64 if opt.get("notouch") else opt.get("self", SELF)}'); a(f's_cbranch_scc1 {lk}')
            check_flags(a, opt, 'Y16')
            a(f'{lk}:')
            for hh in range(NE):
                a(vox(hh))
                if hh & 3 == 3: a('s_add_u32 s83, s83, 4096')
    a(f's_mov_b32 {SSTEP}, 0'); a('s_mov_b32 s36, 0x03030303'); a('s_mov_b32 s37, s36')
    top()
    for kb in OWN[w]: a(a_read(kb, AP[kb])[1])
    a('s_waitcnt lgkmcnt(0)')
    a(f's_branch {lent}')
    a(f'{ltop}:')
    lg.reset()
    a('s_barrier')
    top()
    if opt.get('vsleep', 0): a(f's_sleep {opt.get("vsleep", 0)}')
    a('s_waitcnt lgkmcnt(0)')
    if opt.get('mg', 1): ool = gather_m(a, n, VACC1, VOX, VA + 36, {} if opt.get('diagv') else opt, (0, 5, 7), None, 1, 0, opt.get('spec', 0), opt.get('rbv', 0), opt.get('lrv', 0))
    else: ool = gather(a, n, VACC1, {k: v for k, v in opt.items() if k != 'stamps'} if opt.get('diag') else opt, (0, 0 if opt.get('diag2') else 5, 7), opt.get('vrs', 0), VA + 24 if opt.get('vj', 1) else None)
    a(f'{lent}:')
    lg.reset(); lg.issue('GW')
    merge(a, lg, items, sd.side)
    for s_ in tail:
        a(s_)
    stamp(a, opt, 3)
    lcp, lcb, lcf, lce = [a.label('Lc') for _ in range(4)]
    a(f's_cmp_ge_u32 {SSTEP}, {4*NMB}'); a(f's_cbranch_scc1 {lcp}')
    a(f'{lcb}:')
    def ool5():
        a(f'{lcp}:')
        a(f's_lshl_b32 s52, {SSTEP}, 5'); a(f's_add_u32 s52, s52, {SH}'); a('s_mul_i32 s52, s52, 10240'); a(f's_add_u32 s52, s52, {VOM_OFF}')
        a('s_add_u32 s53, s52, 4096'); a('s_add_u32 s54, s52, 8192')
        for k in range(3): a(vom_store1(PK + 4*k, k, ('s52', 's53', 's54'), 'sc1'))
        a(f's_cmp_lt_u32 {SSTEP}, 63'); a(f's_cbranch_scc1 {lcb}')
        a('s_waitcnt vmcnt(0)'); a('s_barrier')
        if w == 3: cprog(a)
        a('s_waitcnt vmcnt(0)'); a('s_endpgm')
    ACC = VB + 28
    R = VB + 16
    def ldp():
        for c in range(n): a(f'buffer_load_dwordx4 v[{R+4*c}:{R+4*c+3}], v{VL16}, {S_WS}, s76 offen offset:{c*1024} sc1')
    lt, ltd, lp, ld = [a.label('Lp') for _ in range(4)]
    PT = VA
    def pwrite(c): a(f'ds_write_b128 v{VGW}, v[{R+4*c}:{R+4*c+3}] offset:{c*1024}')
    def pcheck_m(first):
        for c in range(n):
            b = R + 4*c
            if first: a(f's_waitcnt vmcnt({n - 1 - c})'); pwrite(c)
            a(f'v_bitop3_b32 v{PT+c}, v{b}, v{b+2}, s50 bitop3:0x7e')
            if w == 3 or not first: a(f'v_bitop3_b32 v{PT+3}, v{b+1}, v{b+3}, s50 bitop3:0x7e'); a(f'v_or_b32 v{PT+c}, v{PT+c}, v{PT+3}')
            a(f'v_cmp_gt_i32 {ML[c]}, 0, v{PT+c}')
        mask_or(a, ML[:n])
    MV = MR + ['s[30:31]']
    def ldv(ms=None):
        for q in range(4):
            if ms: a(f's_mov_b64 exec, {ms[q]}')
            a(f'buffer_load_dwordx4 v[{VB+4*q}:{VB+4*q+3}], v{V10}, {S_WS}, s{72+q} offen sc1')
        if ms: a('s_mov_b64 exec, -1')
    def vcheck():
        for q in range(4):
            if w < 2: a(f'v_bitop3_b32 v{PT+4+q}, v{VB+4*q}, {SSTEP}, 1 bitop3:0x28')
            else: a(f'v_bitop3_b32 v{PT+4+q}, v{VB+4*q}, v{VB+4*q+2}, {SSTEP} bitop3:0x7e'); a(f'v_and_b32 v{PT+4+q}, 1, v{PT+4+q}')
        for q in range(4): a(f'v_cmp_ne_u32 {MV[q]}, 0, v{PT+4+q}')
        mask_or(a, MV)
    if duty:
        for hh in range(NIN, 16):
            a(vox(hh))
            if hh & 3 == 3 and hh < 15: a('s_add_u32 s83, s83, 4096')
    if opt.get('diagv'): a('s_waitcnt vmcnt(0)'); stamp(a, opt, 5)
    gather_setup(a, 1)
    ts = opt.get('tsleep', 4) if duty else opt.get('nsleep', 9)
    if isinstance(ts, list): ts = ts[w]
    if ts: a(f's_sleep {ts}')
    SEP = opt.get('sep', 1)
    if duty and SEP:
        lv2 = a.label('Lp')
        if opt.get('diagv'): stamp(a, opt, 0)
        ldv()
        for r in range(4): a(f'v_mov_b32 v{ACC+r}, 0')
        a('s_waitcnt vmcnt(0)')
        if opt.get('diagv'): stamp(a, opt, 7)
        vcheck()
        a(f's_cbranch_scc1 {lv2}')
        stamp(a, opt, 2)
        if opt.get('psl', 1): a(f's_sleep {opt.get("psl", 1)}')
        ldp()
        a(f'{lv2}x:')
    elif duty:
        ldv()
        if opt.get('pat'): a(f's_sleep {opt["pat"] - ts - 1}')
        ldp()
        for r in range(4): a(f'v_mov_b32 v{ACC+r}, 0')
        a(f's_waitcnt vmcnt({n})'); vcheck()
        if not opt.get('novc'): a(f's_cbranch_scc1 {lt}')
        stamp(a, opt, 2)
    else: ldp()
    pcheck_m(True)
    a(f's_cbranch_scc1 {lp}')
    a(f'{ld}:')
    stamp(a, opt, 4)
    def ool2():
        PD = opt.get('pdep', 1) - 1; gap = opt.get('pgap', 2)
        ltb, lpb, lwr = [a.label('Lp') for _ in range(3)]
        if duty and SEP:
            a(f'{lv2}:')
            ldv(MV); ldp()
            a(f's_waitcnt vmcnt({n})'); vcheck()
            a(f's_cbranch_scc1 {lt}')
            stamp(a, opt, 2)
            a(f's_branch {lv2}x')
        if duty:
            a(f'{lt}:')
            a('s_waitcnt vmcnt(0)'); pcheck_m(False)
            for _ in range(PD): ldv(MV); ld_masked(a, n, R, 's76', ML); a(f's_sleep {gap}')
            a(f'{ltb}:')
            ldv(MV); ld_masked(a, n, R, 's76', ML)
            a(f's_waitcnt vmcnt({(4 + n)*PD})'); pcheck_m(False); a('s_cselect_b32 s51, 1, 0'); vcheck()
            a(f's_cbranch_scc0 {ltd}')
            budget_loop(a, ltb, ltd)
            a(f'{ltd}:')
            stamp(a, opt, 2)
            a('s_cmp_eq_u32 s51, 0'); a(f's_cbranch_scc1 {lwr}')
            if PD: a(f's_branch {lpb}')
        a(f'{lp}:')
        for _ in range(PD): ld_masked(a, n, R, 's76', ML); a(f's_sleep {gap}')
        a(f'{lpb}:')
        if opt.get('pback'): a(f's_sleep {opt["pback"]}')
        ld_masked(a, n, R, 's76', ML); a(f's_waitcnt vmcnt({n*PD})'); pcheck_m(False)
        a(f's_cbranch_scc0 {lwr}')
        budget_loop(a, lpb, lwr)
        a(f'{lwr}:')
        for c in range(n): pwrite(c)
        a(f's_branch {ld}')
    if not duty: a('s_waitcnt lgkmcnt(0)'); a('s_barrier'); a('s_waitcnt vmcnt(0)')
    if duty:
        bop = lambda pp: f'v[{VOX+8*pp}:{VOX+8*pp+7}]' if pp < 8 else f'v[{VB+8*(pp-8)}:{VB+8*(pp-8)+7}]'
        rest = [c for c in range(10) if c not in OWN[w]]
        a(smf(ACC, R, bop(OWN[w][0])))
        a('s_waitcnt lgkmcnt(0)'); a('s_barrier')
        for c in rest[:3]: a(f'ds_read_b128 v[{VA+4*c}:{VA+4*c+3}], v{VAR} offset:{c*1024}')
        k = 3
        for j in range(1, n):
            a(smf(ACC, R + 4*j, bop(OWN[w][j])))
            for c in rest[k:k+2]: a(f'ds_read_b128 v[{VA+4*c}:{VA+4*c+3}], v{VAR} offset:{c*1024}')
            k += 2
        for c in rest[k:]: a(f'ds_read_b128 v[{VA+4*c}:{VA+4*c+3}], v{VAR} offset:{c*1024}')
        for j, pp in enumerate(rest):
            a(f's_waitcnt lgkmcnt({len(rest)-1-j})' if pp != 8 else 's_waitcnt vmcnt(0) lgkmcnt(1)')
            a(smf(ACC, VA + 4*pp, bop(pp)))
        for s_ in post(ACC, ACC, None, True): a(s_)
        a(f'v_xor_b32 v{ACC}, s50, v{ACC}')
        for s_ in pairup(ACC, ACC + 1): a(s_)
        order = [('s78', 'sc1'), ('s77', sc)] if opt.get('rfirst') else [('s77', sc), ('s78', 'sc1')]
        if opt.get('wide', 0):
            if opt['wide'] == 2: a(f'buffer_store_dword v{ACC}, v{V12}, {S_WS}, s77 offen {sc}'); order = [('s78', 'sc1')]
            for j in (1, 2, 3): a(f'v_mov_b32_dpp v{ACC+j}, v{ACC} row_shl:{2*j} row_mask:0xf bank_mask:0xf')
            a('s_mov_b64 exec, s[36:37]')
            for so, fl in order: a(f'buffer_store_dwordx4 v[{ACC}:{ACC+3}], v{V12}, {S_WS}, {so} offen {fl}')
            a('s_mov_b64 exec, -1')
        else:
            for so, fl in order: a(f'buffer_store_dword v{ACC}, v{V12}, {S_WS}, {so} offen {fl}')
        stamp(a, opt, 6)
        if opt.get('diagp'): a('s_waitcnt vmcnt(1)'); stamp(a, opt, 2); a('s_waitcnt vmcnt(0)'); stamp(a, opt, 3)
    elif w == 3:
        lnc = a.label('Lnx')
        a(f's_cmp_lt_u32 {SSTEP}, {4*NMB}'); a(f's_cbranch_scc1 {lnc}')
        cprog(a)
        a(f'{lnc}:')
    stamp_flush(a, opt, 8)
    a(f's_add_u32 {SSTEP}, {SSTEP}, 1'); a(f's_branch {ltop}')
    ool(); ool2(); ool5()

def chain_main(a, opt):
    lvo = a.label('Lrole_vo')
    tstamp(a, opt, 0, (14, 15))
    STREAM[0] = opt.get('stream', 'sc1')
    a(f's_lshr_b32 {SX}, {SSLOT}, 5'); a(f's_and_b32 s67, {SSLOT}, 15'); a(f's_lshl_b32 {SH}, {SX}, 4'); a(f's_add_u32 {SH}, {SH}, s67')
    a(f's_mov_b32 {STMO}, {opt.get("tmo", 1 << 21)}'); a(f's_mov_b32 {SSTEP}, 0')
    srd(a, S_AUX, 's[38:39]', 8*640*2)
    a(f's_add_u32 {SMR}, s60, {MEMR_OFF + 0x7ffff}'); a(f's_and_b32 {SMR}, {SMR}, 0xfff80000'); a(f's_sub_u32 {SMR}, {SMR}, s60')
    a(f's_mul_i32 s58, {SWV}, 3072'); a(f's_lshl_b32 s67, {SWV}, 11'); a('s_add_u32 s67, s67, 12288'); a(f's_cmp_ge_u32 {SWV}, 2'); a('s_cselect_b32 s58, s67, s58')
    a(f's_mov_b32 {S_ONE0}, 0x00003f80'); a(f's_mov_b32 {S_ONE1}, 0x3f800000')
    a(f's_bitcmp1_b32 {SSLOT}, 4'); a(f's_cbranch_scc1 {lvo}')
    for role in ('qk', 'vo'):
        if role == 'vo': a(f'{lvo}:')
        if role == 'qk':
            srd(a, S_WA, 's[40:41]', 640*6144*2); srd(a, S_WB, 's[42:43]', 640*6144*2); qk_setup(a, opt)
        else:
            srd(a, S_WA, 's[44:45]', 640*6144*2); srd(a, S_WB, 's[46:47]', 640*6144*2); vo_setup(a, opt)
        l1, l2, l3 = a.label('Ls'), a.label('Ls'), a.label('Ls')
        a(f's_mov_b32 {SPC}, 0')
        a(f's_cmp_lg_u32 {SWV}, 0'); a(f's_cbranch_scc1 {l2}')
        mem0_load(a)
        a(f'{l2}:')
        def after_first(n, vm):
            if n == 0:
                a(f's_cmp_lg_u32 {SWV}, 0'); a(f's_cbranch_scc1 {l3}')
                mem0_write(a)
                a(f'{l3}:')
            if n == 1: rot_load(a, 172, 173); vm.issue('rot')
            if n == 13:
                rot_check(a, 172, 173, True)
                if role == 'vo':
                    vo_init_clear(a)
                    for _ in range(15): vm.issue('init')
                a(f's_cmp_lg_u32 {SWV}, 0'); a(f's_cbranch_scc1 {l1}')
                if role == 'qk': qk_init_clear(a)
                a(f's_lshl_b32 s67, 1, {SXCC}'); a(f'v_mov_b32 v{VT0}, s67'); a(f's_lshl_b32 s67, {SX}, 2'); a(f'v_mov_b32 v{VT1}, s67')
                a('s_mov_b64 exec, 1')
                a(f'buffer_atomic_or v{VT0}, v{VT1}, {S_DBG}, 0 offen sc1')
                a('s_mov_b64 exec, -1')
                a(f'{l1}:')
            assert 32 + opt.get('ldep', 6) + 1 <= 39
            if n == 32: a(f'v_lshlrev_b32 v173, 2, v0'); a(f'buffer_load_dword v172, v173, {S_DBG}, 0 offen sc1'); vm.issue('rdy')
            if n == 14 + opt.get('ldep', 6):
                l4 = a.label('Ls')
                a(f's_cmp_lg_u32 {SWV}, 0'); a(f's_cbranch_scc1 {l4}')
                a(f'v_mov_b32 v{VT0}, 1'); a(f'v_mov_b32 v{VT1}, {DBG_READY*4}')
                a('s_mov_b64 exec, 1')
                a(f'buffer_atomic_add v{VT0}, v{VT1}, {S_DBG}, 0 offen sc1')
                a('s_mov_b64 exec, -1')
                a(f'{l4}:')
        loader(a, role, after_first, opt.get('ldep', 6))
        tstamp(a, opt, 1, (14, 15))
        lp, ld, lslow = a.label('Lr'), a.label('Lrd'), a.label('Lslow')
        lc = a.label('Lrc')
        a(f'v_lshlrev_b32 v{VT1}, 2, v0'); a(f'v_mov_b32 v{VT0}, v172')
        a(f's_branch {lc}')
        a(f'{lp}:')
        a(f'buffer_load_dword v{VT0}, v{VT1}, {S_DBG}, 0 offen sc1'); a('s_waitcnt vmcnt(0)')
        a(f'{lc}:')
        a(f'v_readlane_b32 s67, v{VT0}, {DBG_READY}')
        a(f'v_readlane_b32 s68, v{VT0}, {DBG_VOTE}'); a(f's_cmp_lt_u32 s68, {NAREA*256}'); a('s_cselect_b32 s67, 0, s67')
        if not opt.get('noflags'):
            a(f'v_readlane_b32 s68, v{VT0}, {DBG_AREA}'); a(f's_cmp_lt_u32 s68, {NAREA}'); a('s_cselect_b32 s67, 0, s67')
        a(f's_cmp_eq_u32 {STMO}, 0'); a(f's_cbranch_scc1 {ld}')
        a(f's_sub_u32 {STMO}, {STMO}, 1')
        a('s_cmp_lt_u32 s67, 64'); a(f's_cbranch_scc1 {lp}')
        a(f'{ld}:')
        a(f'v_readlane_b32 s67, v{VT0}, {DBG_VOTE}'); a('s_and_b32 s67, s67, 255'); a(f's_cmp_gt_u32 s67, {NAREA//2}'); a('s_cselect_b32 s67, 1, 0')
        a(f'v_readlane_b32 s68, v{VT0}, 0'); a('s_cmp_gt_u32 s68, 15'); a('s_cselect_b32 s68, 1, 0'); a('s_xor_b32 s67, s67, s68'); a('s_lshl_b32 s67, s67, 13')
        if 'par' in opt: a(f's_mov_b32 s67, {opt["par"]*8192}')
        a(f's_add_u32 {SMR}, {SMR}, s67')
        a(f'v_readlane_b32 s67, v{VT0}, 0'); a(f'v_readlane_b32 s68, v{VT0}, 1')
        a('s_bcnt1_i32_b32 s67, s67'); a('s_bcnt1_i32_b32 s68, s68'); a('s_max_u32 s67, s67, s68')
        if opt.get('force_slow'): a('s_mov_b32 s67, 2')
        a('s_cmp_lg_u32 s67, 1'); a(f's_cbranch_scc1 {lslow}')
        for sc in ('', 'sc1'):
            if sc: a(f'{lslow}:')
            if role == 'qk':
                labs = [a.label('Lw') for _ in range(4)]
                for w in range(1, 4): a(f's_cmp_eq_u32 {SWV}, {w}'); a(f's_cbranch_scc1 {labs[w]}')
                for w in range(4):
                    a(f'{labs[w]}:'); qk_loop(a, w, sc, opt)
            else:
                labs = [a.label('Lw') for _ in range(5)]
                a(f's_cmp_eq_u32 {SWV}, 1'); a(f's_cbranch_scc1 {labs[1]}'); a(f's_cmp_eq_u32 {SWV}, 3'); a(f's_cbranch_scc1 {labs[4]}')
                a(f's_cmp_ge_u32 {SDT}, 40'); a(f's_cbranch_scc1 {labs[3]}'); a(f's_cmp_eq_u32 {SWV}, 2'); a(f's_cbranch_scc1 {labs[2]}')
                for i, (w, duty) in enumerate([(0, True), (1, True), (2, True), (2, False), (3, False)]):
                    a(f'{labs[i]}:'); vo_loop(a, w, duty, sc, opt)
```

```python
from asmdsl import Asm
from layout import *
import struct
def f2u(x): return struct.unpack('<I', struct.pack('<f', x))[0]

class Trk:
    def __init__(self, a, name, maxn):
        self.a, self.name, self.maxn = a, name, maxn
        self.q = []; self.done = 0
    def reset(self): self.q = []; self.done = 0
    def issue(self, tag): self.q.append(tag)
    def wait(self, *tags):
        idx = -1
        for i in range(len(self.q) - 1, self.done - 1, -1):
            if self.q[i] in tags: idx = i; break
        if idx < self.done: return False
        n = min(len(self.q) - 1 - idx, self.maxn)
        self.a(f's_waitcnt {self.name}({n})')
        self.done = len(self.q) - n
        return True
    def all(self):
        self.a(f's_waitcnt {self.name}(0)'); self.done = len(self.q)

S_WS, S_DBG, S_WA, S_WB, S_AUX, S_OUT = 's[8:11]', 's[12:15]', 's[16:19]', 's[20:23]', 's[24:27]', 's[28:31]'
SWV, SXCC, SSLOT = 's3', 's4', 's5'
STMO = 's65'
SROT = 's34'
STAMP0 = 84

def srd(a, dst, ptr, nbytes):
    b = int(dst[2:dst.index(':')]); p = int(ptr[2:ptr.index(':')])
    a(f's_mov_b32 s{b}, s{p}'); a(f's_mov_b32 s{b+1}, s{p+1}')
    a(f's_mov_b32 s{b+2}, {nbytes}'); a(f's_mov_b32 s{b+3}, 0x20000')

def lanefn(a, dst, f, tmp, wave_mul=0):
    c = f(0); w = [f(1 << i) - c for i in range(6)]
    for l in range(64): assert f(l) == c + sum(w[i] for i in range(6) if l >> i & 1), ('not bit-affine', l)
    if wave_mul:
        a(f's_mul_i32 s67, {SWV}, {wave_mul}'); a(f's_add_u32 s67, s67, {c & 0xffffffff}'); a(f'v_mov_b32 v{dst}, s67')
    else: a(f'v_mov_b32 v{dst}, {c & 0xffffffff}')
    i = 0
    while i < 6:
        if w[i] == 0: i += 1; continue
        n = 1
        while i + n < 6 and w[i + n] == w[i] << n: n += 1
        a(f'v_bfe_u32 v{tmp}, v0, {i}, {n}'); a(f's_mov_b32 s67, {w[i] & 0xffffffff}')
        a(f'v_mad_i32_i24 v{dst}, v{tmp}, s67, v{dst}')
        i += n

def budget_loop(a, lp, lout):
    a(f's_cmp_eq_u32 {STMO}, 0'); a(f's_cbranch_scc1 {lout}')
    a(f's_sub_u32 {STMO}, {STMO}, 1'); a(f's_branch {lp}')

def poll_tail(a, lpoll, ldone):
    a(f's_cbranch_vccz {ldone}')
    budget_loop(a, lpoll, ldone)
    a(f'{ldone}:')

def stamp(a, opt, i):
    if opt.get('stamps'): a(f's_mem{"" if opt.get("cyc") else "real"}time s[{STAMP0+2*i}:{STAMP0+2*i+1}]')

def merge(a, lg, items, side):
    from asmdsl import Ins
    txt = lambda s: s if isinstance(s, str) else (s[1] if not callable(s) and s[0] == 'lds' else None)
    isv = lambda s: isinstance(s, str) and s.startswith('v_')
    def emit(s):
        if isinstance(s, str): a(s)
        elif callable(s): s()
        elif s[0] == 'lds': a(s[1]); lg.issue(s[2])
        elif s[0] == 'wait': lg.wait(*s[1:])
    def run(lst, nxt):
        head, tail = [], []
        for s in lst:
            if isv(s): tail.append(s); continue
            dep = False
            if txt(s) and tail:
                x = Ins(txt(s))
                for v in tail:
                    if txt(v) is None: dep = True; continue
                    y = Ins(txt(v))
                    if (x.rd | x.wr) & y.wr or x.wr & y.rd: dep = True
            if dep: tail.append(s); merge.late += 1
            else: head.append(s)
        for s in head: emit(s)
        if nxt and all(isv(s) for s in tail): lg.wait(*nxt)
        for s in tail: emit(s)
    run(side.get(-1, []), None)
    for i, (t, needs) in enumerate(items):
        if needs: lg.wait(*needs)
        a(t)
        run(side.get(i, []), items[i+1][1] if i + 1 < len(items) else None)
merge.late = 0

def dma_voff(a, dst, stride, t0, t1):
    a(f'v_lshrrev_b32 v{t0}, 3, v0'); a(f'v_and_b32 v{t1}, 6, v{t0}'); a(f'v_and_b32 v{dst}, 7, v0')
    a(f'v_xor_b32 v{dst}, v{dst}, v{t1}'); a(f'v_lshlrev_b32 v{dst}, 4, v{dst}')
    a(f's_mov_b32 s67, {stride}'); a(f'v_mad_u32_u24 v{dst}, v{t0}, s67, v{dst}')

def tstamp(a, opt, idx, vt=(250, 251)):
    if not opt.get('gstamps'): return
    a('s_memrealtime s[96:97]'); a('s_waitcnt lgkmcnt(0)')
    a(f's_lshl_b32 s98, {SSLOT}, 10')
    if isinstance(idx, int): a(f's_add_u32 s98, s98, {idx*4}')
    else: a(f's_lshl_b32 s99, {idx[0]}, 2'); a('s_add_u32 s98, s98, s99'); a(f's_add_u32 s98, s98, {idx[1]*4}')
    a(f's_add_u32 s98, s98, {STAMP_OFF + 0x100000}')
    a(f'v_mov_b32 v{vt[0]}, s96'); a(f'v_mov_b32 v{vt[1]}, 0')
    a(f'buffer_store_dword v{vt[0]}, v{vt[1]}, {S_WS}, s98 offen')

def calibrate(a, idx, dbg=False):
    lc = a.label('Lcal')
    a(f's_cmp_lg_u32 {SWV}, 0'); a(f's_cbranch_scc1 {lc}')
    a(f's_add_u32 s70, s60, {MEMR_OFF + 0x7ffff}'); a('s_and_b32 s70, s70, 0xfff80000'); a('s_sub_u32 s70, s70, s60')
    a(f's_lshl_b32 s71, {idx}, 7'); a('s_add_u32 s70, s70, s71'); a('s_add_u32 s70, s70, 6144')
    a('v_mov_b32 v16, 0'); a('s_mov_b64 exec, 1')
    for p in range(4): a(f's_mov_b32 s{80+p}, -1')
    a('s_waitcnt vmcnt(0)')
    for r in range(6):
        for p in range(4):
            a('s_memtime s[74:75]'); a(f'buffer_store_dword v16, v16, {S_WS}, s70 offen sc1'); a('s_waitcnt vmcnt(0)')
            a('s_memtime s[76:77]'); a('s_add_u32 s70, s70, 8192'); a('s_waitcnt lgkmcnt(0)'); a('s_sub_u32 s76, s76, s74'); a(f's_min_u32 s{80+p}, s{80+p}, s76')
    if dbg:
        a('s_lshl_b32 s74, s81, 16'); a('s_or_b32 s74, s74, s80'); a('s_lshl_b32 s75, s83, 16'); a('s_or_b32 s75, s75, s82')
        a('v_mov_b32 v18, s74'); a('v_mov_b32 v19, s75'); a(f's_lshl_b32 s74, {idx}, 3'); a('s_add_u32 s74, s74, 48')
        a(f'buffer_store_dwordx2 v[18:19], v16, {S_DBG}, s74 offen')
    a('s_add_u32 s72, s80, s82'); a('s_add_u32 s73, s81, s83')
    a('s_cmp_lt_u32 s73, s72'); a('s_cselect_b32 s72, 1, 0'); a('s_cselect_b32 s80, s81, s80'); a('s_cselect_b32 s82, s83, s82')
    a(f's_lshr_b32 s73, {SXCC}, 2'); a('s_xor_b32 s72, s72, s73')
    a('s_cmp_lt_u32 s82, s80'); a('s_cselect_b32 s73, 1, 0'); a(f's_xor_b32 s73, s73, {SXCC}'); a('s_and_b32 s73, s73, 1'); a('s_lshl_b32 s73, s73, 4')
    a('s_add_u32 s72, s72, s73'); a('s_add_u32 s72, s72, 256')
    a('v_mov_b32 v17, s72'); a(f'v_mov_b32 v16, {DBG_VOTE*4}')
    a(f'buffer_atomic_add v17, v16, {S_DBG}, 0 offen sc1')
    a('s_mov_b64 exec, -1')
    a(f'{lc}:')

def rot_load(a, v, t):
    a(f'v_mov_b32 v{t}, {DBG_ROT*4}'); a(f'buffer_load_dword v{v}, v{t}, {S_DBG}, 0 offen sc1')
def rot_check(a, v, t, loaded=False):
    lp, lc, lok = a.label('Lrp'), a.label('Lrc'), a.label('Lro')
    if loaded: a(f's_branch {lc}')
    a(f'{lp}:')
    rot_load(a, v, t); a('s_waitcnt vmcnt(0)')
    a(f'{lc}:')
    a(f'v_readfirstlane_b32 s67, v{v}')
    a('s_sub_u32 s67, s67, 1'); a(f's_cmp_eq_u32 s67, {SROT}'); a(f's_cbranch_scc1 {lok}')
    a(f's_sub_u32 {STMO}, {STMO}, 1'); a(f's_cmp_eq_u32 {STMO}, 0'); a(f's_cbranch_scc1 {lok}')
    a('s_cmp_gt_u32 s67, 7'); a(f's_cbranch_scc1 {lp}')
    a(f's_mov_b32 {SROT}, s67')
    a('s_waitcnt vmcnt(0) lgkmcnt(0)'); a('s_barrier')
    a('s_branch L_restart')
    a(f'{lok}:')
```

```python
from common import *

SC = 0.07216878364870322 * 1.4426950408889634

def wfrag(f, half=None):
    if f < 32: k, b = 'a', f * 8
    else: k, b = 'v', 176 + (f - 32) * 8
    if half is None: return f'{k}[{b}:{b+7}]'
    return k, b + 4 * half

VL16, VGW, VAR, VFR, VXW, VXS, VDR, VIDX, V9, V10, V11, V12, VT0, VT1, VT2 = range(1, 16)
VA = 16
VACC0 = 56
VACC1 = 68
VB = 80
VKX = 112
VQF = 136
VTMP = 160
VOX = 112
SSTEP, SH, SX, SDT = 's62', 's63', 's64', 's66'
SMASK8 = 's[70:71]'
SCM = [f's[{72+2*r}:{73+2*r}]' for r in range(4)]
SCHK = 's80'
S_ONE0, S_ONE1 = 's100', 's101'
NCH = [3, 3, 2, 2]
OWN = [[0, 1, 2], [3, 4, 5], [6, 7], [8, 9]]
REGKB = [0, 1, 3, 4, 6, 7, 8]; LDSKB = [2, 5, 9]
REGT = [0, 2, 3, 4, 6, 7, 8]; LDST = [1, 5, 9]
def yfrag(tile, kb):
    if tile in REGT: return 'reg', 21 + REGT.index(tile)*3 + kb
    return 'lds', 9 + LDST.index(tile)*3 + kb
def xfrag(kb, t, second):
    if kb in REGKB: return 'reg', t*7 + REGKB.index(kb) + (21 if second else 0)
    return 'lds', LDSKB.index(kb)*3 + t + (9 if second else 0)
def apos(w, order):
    ap = {kb: VA + 8*c for c, kb in enumerate(OWN[w])}
    free = [VA + 4*i for i in range(10) if VA + 4*i not in ap.values()]
    for kb in order:
        if kb not in ap: ap[kb] = free.pop(0)
    return ap
STREAM = ['sc1 nt']

def tile_pat(l):
    g, c = l >> 4, l & 15
    return (4*g + 2*(c >> 3) + (c & 1))*16 + ((c >> 1) & 3)*4
def arow(i, h): return 4*(i >> 1) + 2*h + (i & 1)

def common_addr(a):
    T = VTMP
    a(f'v_lshlrev_b32 v{VL16}, 4, v0')
    a(f's_mul_i32 s6, {SWV}, 3'); a(f's_lshl_b32 s7, {SWV}, 1'); a('s_add_u32 s7, s7, 2'); a('s_min_u32 s6, s6, s7')
    a(f's_lshl_b32 {SCHK}, s6, 10')
    a(f'v_add_u32 v{VAR}, {LDS_MEM}, v{VL16}'); a(f'v_add_u32 v{VGW}, {SCHK}, v{VAR}')
    lanefn(a, VFR, lambda l: l*16, T, 36864)
    lanefn(a, VIDX, lambda l: 0x4444 + ((l >> 1) & 1)*0xaaaa, T)
    a(f'v_and_b32 v{T}, 8, v0'); a(f'v_cmp_ne_u32 {SMASK8}, 0, v{T}')

def loader(a, role, after_first=None, dep=11):
    vm = Trk(a, 'vmcnt', 63)
    T = 160
    VD0, VD1, VR0 = T, T + 1, T + 2
    dma_voff(a, VD0, 12288, T + 8, T + 9); dma_voff(a, VD1, 1280, T + 8, T + 9)
    for aa in range(2):
        R = VR0 + 3*aa
        row = lambda l: 4*((l >> 4) & 1) + 2*aa + ((l >> 2) & 1)
        lanefn(a, T + 8, lambda l: row(l) & 6, T + 10); lanefn(a, T + 9, lambda l: (l >> 1) & 1, T + 10, 2)
        a(f'v_xor_b32 v{T+9}, v{T+9}, v{T+8}')
        lanefn(a, R, lambda l: (l >> 5)*2048 + ((l >> 3) & 1)*1024 + row(l)*128 + (l & 1)*8, T + 10)
        a(f'v_lshl_add_u32 v{R}, v{T+9}, 4, v{R}')
        a(f'v_add_u32 v{R+1}, 49152, v{R}'); a(f'v_add_u32 v{R+2}, 98304, v{R}')
    a(f's_mul_i32 s68, {SH}, 384'); a(f's_mul_i32 s67, {SWV}, {8*12288}'); a('s_add_u32 s68, s68, s67')
    a(f's_mul_i32 s69, {SH}, {192*1280}'); a(f's_mul_i32 s67, {SWV}, {8*1280}'); a('s_add_u32 s69, s69, s67')
    a(f's_lshl_b32 s7, {SWV}, 10')
    k2 = 'X' if role == 'qk' else 'Y'
    slabs = [('X', S_WA, i) for i in range(14)] + [(k2, S_WB, i) for i in range(14)] + \
            [('X', S_WA, i) for i in range(14, 20)] + [(k2, S_WB, i) for i in range(14, 20)]
    def dma(n):
        kind, sr, i = slabs[n]
        for c in range(3):
            a(f's_add_u32 m0, s7, {(n % 12)*LDS_SLAB + c*4096}')
            if kind == 'X': a(f's_add_u32 s67, s68, {(2*(REGKB + LDSKB)[i >> 1] + (i & 1))*32*12288 + c*128}')
            else: a(f's_add_u32 s67, s69, {((i&1)*96 + c*32)*1280 + (REGT + LDST)[i >> 1]*128}')
            a(f'buffer_load_dwordx4 v{VD0 if kind=="X" else VD1}, {sr}, s67 offen lds')
            vm.issue(n)
    def dest(n, c):
        kind, sr, i = slabs[n]
        second = (n >= 14) if n < 28 else (n >= 34)
        if kind == 'X': t, kb, half = c, i >> 1, i & 1; f = t * 7 + kb; lf = (kb - 7) * 3 + t
        else:
            ks = (i & 1) * 3 + c; kb, half = ks >> 1, ks & 1; tile = i >> 1
            f = tile * 3 + kb; lf = (tile - 7) * 3 + kb
        if second: f += 21; lf += 9
        return f, lf, half
    def reads(n):
        slot = n % 12
        base = VR0 + slot // 4; off0 = (slot % 4) * LDS_SLAB
        for c in range(3):
            f, lf, half = dest(n, c)
            if n < 28: k, b = wfrag(f, half)
            else: k, b = 'v', 16 + lf * 8 + half * 4
            for aa in range(2):
                a(f'ds_read_b64_tr_b16 {k}[{b+2*aa}:{b+2*aa+1}], v{base + 3*aa} offset:{off0 + c*4096}')
    for n in range(dep): dma(n)
    for n in range(40):
        vm.wait(n)
        a('s_waitcnt lgkmcnt(0)')
        a('s_barrier')
        if n + dep < 40: dma(n + dep)
        reads(n)
        after_first(n, vm)
    a('s_waitcnt lgkmcnt(0)'); a('s_barrier')
    for lf in range(18):
        for half in range(2):
            b = 16 + lf * 8 + half * 4
            a(f'ds_write_b128 v{VFR}, v[{b}:{b+3}] offset:{lf*2048 + half*1024}')
    a('s_waitcnt lgkmcnt(0)')

def mem0_load(a):
    lanefn(a, 18, lambda l: (l & 7)*1280 + (l >> 3)*16, 16)
    lanefn(a, 19, lambda l: LDS_MEM + (l >> 4)*256 + arow(l & 7, (l >> 3) & 1)*16, 16)
    for n in range(10): a(f'buffer_load_dwordx4 v[{24+4*n}:{27+4*n}], v18, {S_AUX}, 0 offen offset:{n*128}')
def mem0_write(a):
    for n in range(10): a(f'ds_write_b128 v19, v[{24+4*n}:{27+4*n}] offset:{n*1024}')

def maxchk(a, regs, first=True):
    regs = list(regs)
    if first:
        a(f'v_max3_u32 v{VT0}, v{regs[0]}, v{regs[1]}, v{regs[2]}'); regs = regs[3:]
    while regs:
        if len(regs) >= 2: a(f'v_max3_u32 v{VT0}, v{VT0}, v{regs[0]}, v{regs[1]}'); regs = regs[2:]
        else: a(f'v_max_u32 v{VT0}, v{VT0}, v{regs[0]}'); regs = []


def gather_setup(a, step_add=0):
    a(f's_add_u32 s67, {SSTEP}, {step_add}'); a('s_and_b32 s67, s67, 3'); a('s_lshl_b32 s67, s67, 1')
    a('s_lshl_b32 s68, s67, 15'); a(f's_add_u32 s67, s67, {SX}')
    a('s_mul_i32 s67, s67, 10240')
    a('s_add_u32 s33, s68, s58')
    a(f's_add_u32 s32, s67, {SCHK}'); a(f's_add_u32 s32, s32, {MEML_OFF}')

def gather(a, n, R, opt, st, rsleep=0, R2=None, det=None):
    ld = lambda r, so: [a(f'buffer_load_dwordx4 v[{r+4*c}:{r+4*c+3}], v{VL16}, {S_WS}, {so} offen offset:{c*1024} sc1') for c in range(n)]
    def chk(r, k=0): a(f's_waitcnt vmcnt({k})'); maxchk(a, range(r, r + 4*n)); a(f'v_cmp_eq_u32 vcc, -1, v{VT0}')
    l1, l1ok, l2, l2ok = [a.label('Lg') for _ in range(4)]
    if det is not None:
        l0, l0d = a.label('Lg'), a.label('Lg')
        a(f'{l0}:')
        a(f'buffer_load_dword v{R}, v{det}, {S_WS}, s32 offen sc1'); a('s_waitcnt vmcnt(0)'); a(f'v_cmp_eq_u32 vcc, -1, v{R}')
        poll_tail(a, l0, l0d)
    stamp(a, opt, st[0])
    if R2 is None:
        a(f'{l1}:')
        ld(R, 's32'); chk(R)
        poll_tail(a, l1, l1ok)
    else:
        ld(R, 's32'); ld(R2, 's33'); chk(R, n)
        a(f's_cbranch_vccnz {l1}')
        a(f'{l1ok}:')
    stamp(a, opt, st[1])
    for c in range(n):
        for i in range(4):
            a(f'v_lshlrev_b32 v{VA+8*c+2*i}, 16, v{R+4*c+i}'); a(f'v_and_b32 v{VA+8*c+2*i+1}, 0xffff0000, v{R+4*c+i}')
    Q = R if R2 is None else R2
    if R2 is None:
        if rsleep: a(f's_sleep {rsleep}')
        ld(Q, 's33')
    chk(Q)
    a(f's_cbranch_vccnz {l2}')
    a(f'{l2ok}:')
    stamp(a, opt, st[2])
    for c in range(n):
        b = VA + 8*c
        for i in range(4):
            a(f'v_dot2c_f32_bf16 v{b+2*i}, {S_ONE0}, v{Q+4*c+i}'); a(f'v_dot2c_f32_bf16 v{b+2*i+1}, {S_ONE1}, v{Q+4*c+i}')
        for i in range(4): a(f'v_cvt_pk_bf16_f32 v{b+i}, v{b+2*i}, v{b+2*i+1}')
        a(f'ds_write_b128 v{VGW}, v[{b}:{b+3}] offset:{c*1024}')
    def outofline():
        if R2 is not None:
            a(f'{l1}:')
            ld(R, 's32'); ld(R2, 's33'); chk(R, n)
            a(f's_cbranch_vccz {l1ok}')
            budget_loop(a, l1, l1ok)
        a(f'{l2}:')
        ld(Q, 's33'); chk(Q)
        a(f's_cbranch_vccz {l2ok}')
        budget_loop(a, l2, l2ok)
    return outofline

ML = ['s[16:17]', 's[18:19]', 's[20:21]']; MR = ['s[22:23]', 's[24:25]', 's[26:27]']; MOR = 's[28:29]'
def mask_or(a, ms):
    a(f's_or_b64 {MOR}, {ms[0]}, {ms[1]}')
    for m in ms[2:]: a(f's_or_b64 {MOR}, {MOR}, {m}')
def ld_masked(a, n, r, so, ms=None):
    for c in range(n):
        if ms: a(f's_mov_b64 exec, {ms[c]}')
        a(f'buffer_load_dwordx4 v[{r+4*c}:{r+4*c+3}], v{VL16}, {S_WS}, {so} offen offset:{c*1024} sc1')
    if ms: a('s_mov_b64 exec, -1')

def gather_m(a, n, R, Q, T, opt, st, det, dep, gap, spec=0, rb=0, lr=0):
    def chk(r, ms, k):
        a(f's_waitcnt vmcnt({k})')
        for c in range(n): a(f'v_max3_u32 v{T+c}, v{r+4*c}, v{r+4*c+1}, v{r+4*c+2}')
        for c in range(n): a(f'v_max_u32 v{T+c}, v{T+c}, v{r+4*c+3}')
        for c in range(n): a(f'v_cmp_eq_u32 {ms[c]}, -1, v{T+c}')
        mask_or(a, ms[:n])
    l1, l1ok, l2, l2b, l2ok = [a.label('Lg') for _ in range(5)]
    if det is not None:
        l0, l0d = a.label('Lg'), a.label('Lg')
        a(f'{l0}:')
        a(f'buffer_load_dword v{R}, v{det}, {S_WS}, s32 offen sc1'); a('s_waitcnt vmcnt(0)'); a(f'v_cmp_eq_u32 vcc, -1, v{R}')
        poll_tail(a, l0, l0d)
    stamp(a, opt, st[0])
    if lr:
        ld_masked(a, n, R, 's32'); chk(R, ML, 0)
        a(f's_cbranch_scc1 {l1}')
        a(f'{l1ok}:')
        ld_masked(a, n, Q, 's33')
    else:
        ld_masked(a, n, R, 's32'); ld_masked(a, n, Q, 's33')
        if rb: a(f's_sleep {rb}'); ld_masked(a, n, Q, 's33')
        chk(R, ML, 2*n if rb else n)
        a(f's_cbranch_scc1 {l1}')
        a(f'{l1ok}:')
    stamp(a, opt, st[1])
    def expand():
        for c in range(n):
            for i in range(4):
                a(f'v_lshlrev_b32 v{VA+8*c+2*i}, 16, v{R+4*c+i}'); a(f'v_and_b32 v{VA+8*c+2*i+1}, 0xffff0000, v{R+4*c+i}')
    def add(c, check=False):
        b = VA + 8*c; q = Q + 4*c
        if check: a(f's_waitcnt vmcnt({n-1-c})'); a(f'v_max3_u32 v{T}, v{q}, v{q+1}, v{q+2}')
        for i in range(4):
            a(f'v_dot2c_f32_bf16 v{b+2*i}, {S_ONE0}, v{q+i}'); a(f'v_dot2c_f32_bf16 v{b+2*i+1}, {S_ONE1}, v{q+i}')
        if check: a(f'v_max_u32 v{T}, v{T}, v{q+3}'); a(f'v_cmp_eq_u32 {MR[c]}, -1, v{T}')
        for i in range(4): a(f'v_cvt_pk_bf16_f32 v{b+i}, v{b+2*i}, v{b+2*i+1}')
        a(f'ds_write_b128 v{VGW}, v[{b}:{b+3}] offset:{c*1024}')
    expand()
    if spec:
        for c in range(n): add(c, True)
        mask_or(a, MR[:n])
        a(f's_cbranch_scc1 {l2}')
        a(f'{l2ok}:')
        stamp(a, opt, st[2])
    else:
        chk(Q, MR, n if rb else 0)
        a(f's_cbranch_scc1 {l2}')
        a(f'{l2ok}:')
        stamp(a, opt, st[2])
        for c in range(n): add(c)
    def outofline():
        a(f'{l1}:')
        if lr: ld_masked(a, n, R, 's32', ML); chk(R, ML, 0)
        else:
            ld_masked(a, n, R, 's32', ML); chk(Q, MR, n)
            ld_masked(a, n, Q, 's33', MR); chk(R, ML, n)
        a(f's_cbranch_scc0 {l1ok}')
        budget_loop(a, l1, l1ok)
        a(f'{l2}:')
        if rb: chk(Q, MR, 0); a(f's_cbranch_scc0 {l2ok}')
        for _ in range(dep - 1):
            ld_masked(a, n, Q, 's33', MR); a(f's_sleep {gap}')
        a(f'{l2b}:')
        ld_masked(a, n, Q, 's33', MR)
        if spec: expand()
        chk(Q, MR, n*(dep - 1))
        if not spec:
            a(f's_cbranch_scc0 {l2ok}')
            budget_loop(a, l2b, l2ok)
            return
        l2c, l2d = a.label('Lg'), a.label('Lg')
        a(f's_cbranch_scc0 {l2d}')
        a(f'{l2c}:')
        ld_masked(a, n, Q, 's33', MR); chk(Q, MR, 0)
        a(f's_cbranch_scc0 {l2d}')
        budget_loop(a, l2c, l2d)
        a(f'{l2d}:')
        for c in range(n): add(c)
        a(f's_branch {l2ok}')
    return outofline

def a_read(kb, reg):
    return ('lds', f'ds_read_b128 v[{reg}:{reg+3}], v{VAR} offset:{kb*1024}', f'A{kb}')
def frag_reads(lf, slot):
    return [('lds', f'ds_read_b128 v[{VB+8*slot+4*x}:{VB+8*slot+4*x+3}], v{VFR} offset:{lf*2048 + x*1024}', f'F{lf}') for x in range(2)]
def smf(acc, A, B): return f'v_smfmac_f32_16x16x64_bf16 v[{acc}:{acc+3}], v[{A}:{A+3}], {B}, v{VIDX}'
def post(acc, out, scale=None, pk=False):
    if pk: r = [f'v_pk_add_f32 v[{acc}:{acc+1}], v[{acc}:{acc+1}], v[{acc+2}:{acc+3}]']
    else: r = [f'v_add_f32 v{acc+i}, v{acc+i}, v{acc+2+i}' for i in range(2)]
    if scale: r += [f'v_mul_f32 v{acc+i}, {scale}, v{acc+i}' for i in range(2)]
    return r + [f'v_cvt_pk_bf16_f32 v{out}, v{acc}, v{acc+1}']

def allred(op, v, t, stages=(16, 32)):
    r = []
    for st in stages: r += [f'v_mov_b32 v{t}, v{v}', f'v_permlane{st}_swap_b32 v{v}, v{t}', f'{op} v{v}, v{v}, v{t}']
    return r

def stamp_flush(a, opt, n):
    if not opt.get('stamps'): return
    a('s_waitcnt lgkmcnt(0)')
    a(f's_lshl_b32 s67, {SSLOT}, 2'); a(f's_add_u32 s67, s67, {SWV}'); a('s_lshl_b32 s67, s67, 6'); a(f's_add_u32 s67, s67, {SSTEP}')
    a('s_lshl_b32 s67, s67, 6'); a(f's_add_u32 s67, s67, {STAMP_OFF}')
    a(f'v_lshlrev_b32 v{VT1}, 2, v0')
    for i in range(n): a(f'v_writelane_b32 v{VT0}, s{STAMP0+2*i}, {i}')
    a('s_mov_b64 exec, 0xffff')
    a(f'buffer_store_dword v{VT0}, v{VT1}, {S_WS}, s67 offen')
    a('s_mov_b64 exec, -1')

SPC = 's60'
SMR = 's59'
SELF = 3
def check_flags(a, opt, kind, skip=None, early=None):
    if opt.get('noflags'): return
    lp, ld = a.label('Lf'), a.label('Lfd')
    a(f's_sub_u32 s61, s82, {LEAD-4}'); a('s_max_i32 s61, s61, 0'); a('s_lshr_b32 s61, s61, 2'); a('s_add_u32 s61, s61, s82')
    a(f's_cmp_gt_u32 {SPC}, s61'); a(f's_cbranch_scc1 {ld}')
    if early:
        a(f's_waitcnt vmcnt({early[1]})')
        for r in (8, 4, 2, 1): a(f'v_min_u32_dpp v{early[0]}, v{early[0]}, v{early[0]} row_ror:{r} row_mask:0xf bank_mask:0xf')
        a(f'v_readfirstlane_b32 {SPC}, v{early[0]}')
        a(f's_cmp_gt_u32 {SPC}, s61'); a(f's_cbranch_scc1 {ld}')
    if kind == 'K': a(f'v_and_b32 v{VT1}, 15, v0'); a(f'v_min_u32 v{VT1}, 2, v{VT1}'); a(f'v_lshlrev_b32 v{VT1}, 7, v{VT1}')
    elif kind == 'Y16': a(f'v_and_b32 v{VT1}, 15, v0'); a(f'v_lshlrev_b32 v{VT1}, 7, v{VT1}')
    else: a(f'v_and_b32 v{VT1}, 3, v0'); a(f'v_mul_u32_u24 v{VT1}, {40*128}, v{VT1}')
    a(f'{lp}:')
    a(f'buffer_load_dword v{VT0}, v{VT1}, {S_WS}, s81 offen sc1'); a('s_waitcnt vmcnt(0)')
    for r in (8, 4, 2, 1): a(f'v_min_u32_dpp v{VT0}, v{VT0}, v{VT0} row_ror:{r} row_mask:0xf bank_mask:0xf')
    a(f'v_readfirstlane_b32 {SPC}, v{VT0}')
    a(f's_cmp_gt_u32 {SPC}, s61'); a(f's_cbranch_scc1 {ld}')
    if skip: a(f's_cmp_lt_u32 s82, {opt.get("self", SELF)}'); a(f's_cbranch_scc1 {skip}')
    budget_loop(a, lp, ld)
    a(f'{ld}:')

def cprog(a):
    a('s_waitcnt vmcnt(0)')
    a(f's_lshl_b32 s67, {SSLOT}, 7'); a(f's_add_u32 s67, s67, {CPRG_OFF}'); a(f's_add_u32 s68, {SSTEP}, 1'); a(f'v_mov_b32 v{VT0}, s68'); a(f'v_mov_b32 v{VT1}, 0')
    a('s_mov_b64 exec, 1')
    a(f'buffer_store_dword v{VT0}, v{VT1}, {S_WS}, s67 offen sc1')
    a('s_mov_b64 exec, -1')

def load_frags6(a, dst, base_off, ct, seg='s82'):
    a(f's_lshl_b32 s67, {seg}, 5'); a(f's_add_u32 s67, s67, {SH}'); a('s_mul_i32 s67, s67, 12288')
    a(f's_add_u32 s67, s67, {base_off + ct*6144}'); a('s_add_u32 s68, s67, 4096')
    for kk in range(6):
        a(f'buffer_load_dwordx4 v[{dst+4*kk}:{dst+4*kk+3}], v{VL16}, {S_WS}, {"s67" if kk < 4 else "s68"} offen offset:{(kk&3)*1024} {STREAM[0]}')

def build_stream(first_items, second_items):
    items = []; ldsq = []; idx2 = {}
    def add(it):
        kind, acc, A, ref, needs = it
        if kind == 'reg': items.append((smf(acc, A, wfrag(ref)), needs))
        elif kind == 'lds':
            sl = len(ldsq) % 4; ldsq.append((len(items), ref, sl))
            items.append((smf(acc, A, f'v[{VB+8*sl}:{VB+8*sl+7}]'), needs + [f'F{ref}']))
        else: items.append((ref, needs))
    for it in first_items: add(it)
    n = 0
    for it in second_items:
        if it[0] != 'raw': idx2[n] = len(items); n += 1
        add(it)
    return items, ldsq, idx2

class Sides:
    def __init__(self): self.side = {}; self.busy = set(); self.vbusy = {}
    def put(self, g, r): self.side.setdefault(g, []).append(r)
    def lds(self, g, r, force=False):
        if not force:
            while g in self.busy: g += 1
        self.put(g, r); self.busy.add(g); return g
    def valu(self, g, instrs, per=1):
        last = g - 1; end = g
        for s in instrs:
            if s is None: g = last + 2; continue
            if isinstance(s, tuple): self.lds(last + 1, s, True); end = max(end, last + 2); continue
            if not s.startswith('v_'): self.put(last + 1, s); end = max(end, last + 2); continue
            while self.vbusy.get(g, 0) >= per: g += 1
            self.put(g, s); self.vbusy[g] = self.vbusy.get(g, 0) + 1; last = g; end = max(end, g + 1)
        self.nxt = g
        return end
    def refills(self, ldsq):
        for n in range(len(ldsq) - 4):
            g = ldsq[n][0]
            lim = ldsq[n+4][0] - 6
            for r in frag_reads(ldsq[n+4][1], ldsq[n][2]):
                g2 = g
                while g2 in self.busy: g2 += 1
                if g2 <= lim: g = self.lds(g2, r)
                else: g = self.lds(max(g, min(lim, g + 1)), r, True)
                assert g < ldsq[n+4][0] - 1, (n, g, ldsq[n+4])

DPP8 = 'row_ror:8 row_mask:0xf bank_mask:0xf'
def dense_reads(dst, off, tagp, kks=range(6)):
    return [('lds', f'ds_read_b64_tr_b16 v[{dst+4*kk+2*x}:{dst+4*kk+2*x+1}], v{VDR} offset:{off + (2*kk+x)*256}', f'{tagp}{kk}')
            for kk in kks for x in range(2)]

def preload_b(a, lg, ldsq):
    for n in range(4):
        for r in frag_reads(ldsq[n][1], ldsq[n][2]): a(r[1]); lg.issue(r[2])

QORD = [[0, 1, 2, 3, 4, 5, 6, 7, 9, 8], [3, 4, 5, 0, 1, 2, 6, 7, 9, 8], [6, 7, 2, 0, 1, 5, 3, 4, 9, 8], [8, 9, 0, 1, 2, 3, 4, 6, 5, 7]]
KORD = [0, 2, 1, 3, 5, 4, 6, 9, 7, 8]

def qk_setup(a, opt):
    common_addr(a)
    T = VTMP
    rho = lambda l: arow(l & 7, (l >> 3) & 1)
    lanefn(a, VXW, lambda l: LDS_MEM + (l & 15)*16 + (l >> 4)*4, T, 256)
    lanefn(a, VDR, lambda l: LDS_MEM + (l >> 2)*16 + (l & 1)*8, T)
    lanefn(a, V9, lambda l: (l >> 5)*256 + rho(l)*16 + ((l >> 4) & 1)*8, T)
    lanefn(a, V10, lambda l: rho(l)*16 + ((l >> 4) & 1)*4, T)
    lanefn(a, V11, lambda l: LDS_MEM + 3072 + l*16, T)
    lanefn(a, V12, lambda l: LDS_MEM + ((l >> 3) & 1)*512 + arow(l & 7, l >> 5)*16 + ((l >> 4) & 1)*8, T)
    a(f's_and_b32 s68, {SH}, 15'); a('s_min_u32 s68, s68, 9'); a('s_lshl_b32 s68, s68, 10'); a(f'v_add_u32 v{V12}, s68, v{V12}')
    lanefn(a, VXS, lambda l: ((l >> 3) & 1)*1024 + (l >> 4)*256 + (l & 7)*16, T)
    a(f's_mul_i32 s67, {SX}, 12288'); a(f's_add_u32 s67, s67, {PA_OFF}')
    a(f's_and_b32 s68, {SH}, 15'); a('s_lshl_b32 s76, s68, 9'); a('s_add_u32 s76, s76, s67')
    a('s_lshr_b32 s77, s68, 1'); a('s_lshl_b32 s77, s77, 8'); a('s_add_u32 s77, s77, s67')
    a('s_and_b32 s68, s68, 1'); a('s_lshl_b32 s68, s68, 3'); a('s_add_u32 s77, s77, s68'); a('s_add_u32 s77, s77, 8192')

def qk_init_clear(a):
    a(f'v_mov_b32 v{VA+16}, -1'); a(f'v_mov_b32 v{VA+17}, -1')
    a(f'buffer_store_dwordx2 v[{VA+16}:{VA+17}], v{V9}, {S_WS}, s76 offen sc1')
    a(f'buffer_store_dword v{VA+16}, v{V10}, {S_WS}, s77 offen sc1')

def mf(D, A, B, first): return f'v_mfma_f32_16x16x32_bf16 v[{D}:{D+3}], v[{A}:{A+3}], v[{B}:{B+3}], ' + ('0' if first else f'v[{D}:{D+3}]')

def stream_head(sd, w, order, AP, opt, rest):
    g = opt.get('gb1', 3)
    sd.put(g, ('wait', 'GW')); sd.put(g, 's_barrier')
    for kb in order:
        if kb not in OWN[w]:
            sd.lds(g, a_read(kb, AP[kb]), True); g += 1
    return g

def qk_loop(a, w, sc, opt):
    VZ = VTMP + 15
    lg = Trk(a, 'lgkmcnt', 15)
    ltop, lent, lfin = a.label('Lqk'), a.label('Lqkent'), a.label('Lqkfin')
    QEX = LDS_EX - LDS_MEM
    SACC, SM = VTMP, VTMP + 4
    QO = QORD[w]
    AP = apos(w, QO)
    seq = [(kb, t) for kb in QO[:6] for t in range(3)] + [(kb, t) for t in range(3) for kb in QO[6:]]
    first = [(xfrag(kb, t, 0)[0], VACC0 + 4*t, AP[kb], xfrag(kb, t, 0)[1], [f'A{kb}']) for kb, t in seq]
    second = []
    n = 0
    SX0 = opt.get('sx0', 19); QS = opt.get('qscale', 0)
    for t in range(3):
        for kb in KORD:
            second.append((xfrag(kb, t, 1)[0], VACC1 + 4*t, AP[kb], xfrag(kb, t, 1)[1], []))
            if w >= 2 and n == SX0:
                for kk in range(6): second.append(('raw', 0, 0, mf(SACC, VKX + 4*kk, VQF + 4*kk, kk == 0), [f'Q{kk}']))
            if w == 0 and n == 29:
                for kk in range(4): second.append(('raw', 0, 0, mf(SM, VKX + 4*kk, VQF + 4*kk, kk == 0), [f'K{kk}', f'Q{kk}']))
            n += 1
    items, ldsq, k2 = build_stream(first, second)
    sd = Sides()
    stream_head(sd, w, QO, AP, opt, None)
    sd.put(opt.get('gb1', 3), lambda o_=opt: stamp(a, o_, 1))
    pub_rd = [('lds', f'ds_read_b64 v[{VKX+2*x}:{VKX+2*x+1}], v{V12} offset:{x*256}', 'PUB') for x in range(2)]
    pub_st = f'buffer_store_dwordx4 v[{VKX}:{VKX+3}], v{VXS}, {S_WS}, s44 offen sc1'
    if w == 1:
        sd.put(0, f'buffer_store_dword v{VT1}, v{VT2}, {S_WS}, s46 offen sc1')
        for r in pub_rd: sd.lds(18, r)
        sd.put(25, ('wait', 'PUB')); sd.put(opt.get('pubg', 25), pub_st)
        for j in range(6):
            sd.put(1 + 3*j, f'buffer_load_dword v{VKX+4+j}, v{V9}, {S_WS}, s{[45, 48, 49][j >> 1]} offen sc1')
            if j % 2 == 0: sd.put(2 + 3*j, f's_add_u32 s{[45, 48, 49][j >> 1]}, s{[45, 48, 49][j >> 1]}, 8192')
    if w == 0:
        sd.put(opt.get('kt0', 1), f'buffer_load_dword v{VTMP+13}, v{V12}, {S_WS}, s45 offen sc1')
        sd.put(opt.get('kt0', 1) + 4, f'buffer_load_dword v{VTMP+13}, v{VXS}, {S_WS}, s45 offen sc1')
        if opt.get('async', 0): sd.put(19, f'buffer_load_dword v{VTMP+14}, v{VT2}, {S_WS}, s54 offen sc1')
    if w == 1 and opt.get('async', 0): sd.put(opt.get('w1p', 21), f'buffer_load_dword v{V11}, v{V10}, {S_WS}, s54 offen sc1')
    wr = lambda acc, t, off, tag: ('lds', f'ds_write_b32 v{VXW}, v{acc} offset:{off + t*1024}', tag)
    for t in range(3): gq = sd.valu([23, 27, 31][t], post(VACC0 + 4*t, VACC0 + 4*t, 's52' if QS else None) + [wr(VACC0 + 4*t, t, QEX, 'QW')], opt.get('qper', [1, 1, 2])[t])
    gb = gq + opt.get('gba', [3, 1, 4, 4])[w]
    if w != 1: sd.put(gb, f's_waitcnt vmcnt({0 if w else 2 + opt.get("async", 0)})')
    sd.put(gb, ('wait', 'QW')); sd.put(gb, 's_barrier')
    if opt.get('diag'): sd.put(gb, lambda: stamp(a, opt, 0))
    if w >= 2:
        for i, r in enumerate(dense_reads(VQF, QEX, 'Q')): sd.lds(gb + (i * opt.get('qspan', 10)) // 12, r, True)
    gk = 0
    for t in range(2): gk = sd.valu(k2[10*t + 9] + 2, post(VACC1 + 4*t, VACC1 + 4*t) + [wr(VACC1 + 4*t, t, 0, 'KW')])
    gB = gk + opt.get('gbb', [1, 1, 3, 3])[w]
    sd.put(gB, ('wait', 'KW')); sd.put(gB, 's_barrier')
    assert gB < len(items)
    if w == 0:
        for i, r in enumerate(dense_reads(VKX, 0, 'K', range(4))): sd.lds(gB + i // opt.get('krd', 3), r, True)
    sd.valu(k2[29] + 2, post(VACC1 + 8, VACC1 + 8, None, w > 0) + [wr(VACC1 + 8, 2, 0, 'KW')])
    E0, T, X0 = VTMP + 8, VTMP + 12, VTMP + 4
    ool4 = None
    if w >= 2:
        lsx, lsxb = a.label('Lsx'), a.label('Lsxb')
        p0 = [f'v_cndmask_b32 v{X0}, v{SACC}, v{SACC+2}, {SMASK8}', f'v_cndmask_b32 v{X0+1}, v{SACC+1}, v{SACC+3}, {SMASK8}',
              f'v_exp_f32 v{E0}, v{X0}', f'v_exp_f32 v{E0+1}, v{X0+1}',
              f'v_max_f32 v{T}, |v{X0}|, |v{X0+1}|', f'v_add_f32 v{E0+3}, v{E0}, v{E0+1}', f'v_cmp_lt_f32 vcc, s79, v{T}']
        if not QS: p0[2:2] = [f'v_mul_f32 v{X0}, s52, v{X0}', f'v_mul_f32 v{X0+1}, s52, v{X0+1}']
        np2 = opt.get('np2', 2 if QS else 4)
        sd.valu(k2[SX0 + 2], p0[:np2], 2)
        g = sd.valu(sd.nxt + 1, p0[np2:])
        sd.put(g, lambda: (a(f's_cbranch_vccnz {lsx}'), a(f'{lsxb}:')))
        sd.lds(g, ('lds', f'ds_write_b128 v{V11}, v[{E0}:{E0+3}] offset:{(w-2)*1024}', 'EW'), True)
        def ool4():
            m = E0 + 2
            a(f'{lsx}:')
            a(f'v_max_f32 v{m}, v{X0}, v{X0+1}'); a(f'v_max_f32_dpp v{m}, v{m}, v{m} {DPP8}')
            for s_ in allred('v_max_f32', m, T): a(s_)
            for i in range(2): a(f'v_sub_f32 v{E0+i}, v{X0+i}, v{m}')
            for i in range(2): a(f'v_exp_f32 v{E0+i}, v{E0+i}')
            a(f'v_add_f32 v{E0+3}, v{E0}, v{E0+1}')
            a(f's_branch {lsxb}')
        sd.valu(5, [f'v_mov_b32 v{E0+2}, 0'])
    sd.refills(ldsq)
    if w == 0:
        for i, r in enumerate(dense_reads(VQF, QEX, 'Q')):
            g = gb
            while g in sd.busy and g < gB - 1: g += 1
            sd.lds(g if g < gB - 1 else gB - 2 - (i & 3), r, True)
    if opt.get('dq'):
        for i_, g_ in zip((0, 6, 7, 3, 4), opt['dq']): sd.put(g_, lambda i_=i_: stamp(a, dict(stamps=1, cyc=1), i_))
        opt = {k_: v_ for k_, v_ in opt.items() if k_ != 'stamps'}; opt['dq1'] = 1

    def top():
        preload_b(a, lg, ldsq)
        for r in range(0, 24, 2): a(f'v_mov_b64 v[{VACC0+r}:{VACC0+r+1}], 0')
        if w == 0: a(f's_bitcmp1_b32 {SSTEP}, 0'); a('s_cselect_b32 s78, -1.0, 1.0')
        if w == 1:
            a(f'v_mov_b32 v{VT1}, {SSTEP}')
            a(f's_lshr_b32 s67, {SSTEP}, 2'); a('s_mul_i32 s44, s67, 40960'); a(f's_bfe_u32 s67, {SSTEP}, 0x10001'); a('s_mul_i32 s67, s67, 20480')
            a('s_add_u32 s44, s44, s67'); a(f's_and_b32 s67, {SSTEP}, 1'); a('s_lshl_b32 s67, s67, 7'); a('s_add_u32 s44, s44, s67'); a('s_add_u32 s44, s44, s47')
    def prefetch():
        ls = a.label('Lnp')
        if w <= 1: a(f's_mov_b32 s45, {OOB}')
        a(f's_cmp_ge_u32 s82, {1 if opt.get("nopf") else 63}'); a(f's_cbranch_scc1 {ls}')
        if w >= 2:
            lk = a.label('Lk')
            a(f's_cmp_ge_u32 s82, {opt.get("self", SELF)}'); a(f's_cbranch_scc1 {lk}')
            check_flags(a, opt, 'K')
            a(f'{lk}:')
            load_frags6(a, VKX, KF_OFF, w - 2)
        elif w == 0:
            check_flags(a, opt, 'K', ls, (VTMP + 14, 2) if opt.get('async', 0) else None)
            a(f's_lshl_b32 s45, s82, 5'); a(f's_add_u32 s45, s45, {SH}'); a('s_mul_i32 s45, s45, 12288'); a(f's_add_u32 s45, s45, {KF_OFF}')
        elif not opt.get('notouch'):
            check_flags(a, opt, 'Y16', ls, (V11, 1 if opt.get('w1p', 21) < opt.get('pubg', 25) else 0) if opt.get('async', 0) else None)
            a(f's_mul_i32 s45, s82, {40*40960}'); a('s_add_u32 s45, s45, s50')
        a(f'{ls}:')
        if w <= 1 and opt.get('async', 0):
            a(f's_sub_u32 s61, s82, {LEAD-4-1}'); a('s_max_i32 s61, s61, 0'); a('s_lshr_b32 s61, s61, 2'); a('s_add_u32 s61, s61, s82'); a('s_add_u32 s61, s61, 1')
            a(f's_cmp_gt_u32 {SPC}, s61'); a(f's_cselect_b32 s54, {OOB}, s81')
        if w == 1:
            a(f's_add_u32 s48, s45, {16*40960}'); a(f's_add_u32 s49, s45, {32*40960}'); a(f's_bitcmp1_b32 {SH}, 3'); a(f's_cselect_b32 s49, {OOB}, s49')
    a(f's_mov_b32 {SSTEP}, 0'); a(f's_mov_b32 s52, {f2u(SC):#x}'); a('s_mov_b32 s53, s52'); a(f's_mov_b32 s79, {f2u(opt.get("safe", 60.0)):#x}')
    if w != 1: a(f's_mul_i32 s81, {SH}, 384'); a(f's_add_u32 s81, s81, {PRGX_OFF + 96*128}')
    if w >= 2: a('s_mov_b32 s82, 0'); prefetch()
    if w == 0:
        a(f's_mov_b32 s45, {OOB}'); a(f'v_lshlrev_b32 v{V12}, 7, v0'); a(f'v_add_u32 v{VXS}, 8192, v{V12}'); a(f'v_min_u32 v{VXS}, 12160, v{VXS}')
        a(f'v_and_b32 v{VT2}, 15, v0'); a(f'v_min_u32 v{VT2}, 2, v{VT2}'); a(f'v_lshlrev_b32 v{VT2}, 7, v{VT2}')
    if w == 1:
        a(f'v_lshlrev_b32 v{V9}, 7, v0'); a(f'v_and_b32 v{V10}, 15, v0'); a(f'v_lshlrev_b32 v{V10}, 7, v{V10}')
        a(f'v_cmp_eq_u32 vcc, 0, v0'); a(f'v_mov_b32 v{VT2}, 0x40000000'); a(f'v_cndmask_b32 v{VT2}, v{VT2}, 0, vcc')
        a(f's_lshl_b32 s81, {SX}, 11'); a(f's_bfe_u32 s67, {SH}, 0x20002'); a(f's_mul_i32 s67, s67, {40*128}'); a('s_add_u32 s81, s81, s67'); a(f's_add_u32 s81, s81, {PRGY_OFF}')
        a(f's_and_b32 s50, {SH}, 15'); a('s_mul_i32 s50, s50, 40960'); a(f's_lshl_b32 s67, {SX}, 14'); a('s_add_u32 s50, s50, s67'); a(f's_add_u32 s50, s50, {VOF_OFF}')
        a(f's_lshl_b32 s46, {SH}, 7'); a(f's_add_u32 s46, s46, {MPRG_OFF}'); a(f's_lshl_b32 s47, {SH}, 11'); a(f's_add_u32 s47, s47, {XN_OFF + 64*40960}')
        a(f's_cmp_ge_u32 {SH}, 10'); a(f's_cselect_b32 s46, {OOB}, s46'); a(f's_cselect_b32 s47, {OOB}, s47')
        for r in (45, 48, 49): a(f's_mov_b32 s{r}, {OOB}')
    if w <= 1: a('s_mov_b32 s54, s81')
    top()
    for kb in OWN[w]: a(a_read(kb, AP[kb])[1])
    a('s_waitcnt lgkmcnt(0)')
    a(f's_branch {lent}')
    a(f'{ltop}:')
    lg.reset()
    a('s_barrier')
    a(f's_add_u32 s82, {SSTEP}, {[1, opt.get("tahead", 2) - 1, 0, 0][w]}'); prefetch()
    top()
    gather_setup(a)
    qs = opt.get('qsleep', 10) - (opt.get('qsk', 2) if w >= 2 else 0)
    if qs > 0: a(f's_sleep {qs}')
    if opt.get('qdet', 0): a(f'v_and_b32 v{VZ}, {(8 if NCH[w] == 2 else 16) - 1}, v0'); a(f'v_min_u32 v{VZ}, {4*NCH[w]-1}, v{VZ}'); a(f'v_lshlrev_b32 v{VZ}, 8, v{VZ}')
    else: a(f'v_mov_b32 v{VZ}, 0')
    a('s_waitcnt lgkmcnt(0)')
    if opt.get('mg', 1): ool = gather_m(a, NCH[w], VTMP, VQF, VTMP + 12, opt, (0, 6, 7), VZ if opt.get('qd', 1) else None, 1, 0, opt.get('spec', 0), opt.get('rbq', 0), opt.get('lrq', 0))
    else: ool = gather(a, NCH[w], VTMP, {k: v for k, v in opt.items() if k != 'stamps'} if opt.get('diag') else opt, (0, 6, 7), opt.get('qrs', 0), VQF if opt.get('qj', 1) else None, VZ if opt.get('qj', 1) else None)
    a(f'{lent}:')
    lg.reset(); lg.issue('GW')
    left = [x_ for g_ in sorted(sd.side) if g_ >= len(items) for x_ in sd.side[g_]]
    merge(a, lg, items, sd.side)
    for x_ in left: merge(a, lg, [], {-1: [x_]})
    if opt.get('dq1'): stamp(a, dict(stamps=1, cyc=1), 2)
    stamp(a, opt, 2)
    EA, EB = VB, VB + 4
    U, LM, F0, F1, LS = VB + 8, VB + 9, VB + 10, VB + 11, VB + 12
    redl = [f'v_add_f32_dpp v{LS}, v{LS}, v{LS} {DPP8}', f'v_mov_b32 v{T}, v{LS}', f'v_permlane16_swap_b32 v{LS}, v{T}', f'v_add_f32 v{LS}, v{LS}, v{T}',
            f'v_mov_b32 v{T}, v{LS}', f'v_permlane32_swap_b32 v{LS}, v{T}', f'v_add_f32 v{LS}, v{LS}, v{T}', f'v_mul_f32 v{LS}, s78, v{LS}']
    lg.all(); a('s_barrier')
    if opt.get('diag'): stamp(a, opt, 6)
    ool3 = None
    if w == 0:
        lslow, lback = a.label('Lsm'), a.label('Lsb')
        for r in dense_reads(VKX, 0, 'K', range(4, 6)): a(r[1]); lg.issue(r[2])
        a(f'ds_read_b128 v[{EA}:{EA+3}], v{V11}'); lg.issue('E'); a(f'ds_read_b128 v[{EB}:{EB+3}], v{V11} offset:1024'); lg.issue('E')
        for kk in range(4, 6):
            lg.wait(f'K{kk}'); a(mf(SM, VKX + 4*kk, VQF + 4*kk, False))
        lg.wait('E')
        for s_ in [f'v_add_f32 v{LS}, v{EA+3}, v{EB+3}', f'v_max_f32 v{U}, |v{EA+2}|, |v{EB+2}|', f'v_mul_f32 v{U}, 0x71800000, v{U}', redl[0], redl[1]]: a(s_)
        stamp(a, opt, 3)
        T2, PO = VB + 13, VB + 16
        a(f'v_cndmask_b32 v{SM}, v{SM}, v{SM+2}, {SMASK8}'); a(f'v_cndmask_b32 v{SM+1}, v{SM+1}, v{SM+3}, {SMASK8}')
        if not QS: a(f'v_mul_f32 v{SM}, s52, v{SM}'); a(f'v_mul_f32 v{SM+1}, s52, v{SM+1}')
        a(f'v_exp_f32 v{SM+2}, v{SM}'); a(f'v_exp_f32 v{SM+3}, v{SM+1}')
        a(redl[2]); a(f'v_max3_f32 v{U}, |v{SM}|, |v{SM+1}|, v{U}'); a(redl[3])
        a(f'v_add_f32 v{LM}, v{SM+2}, v{SM+3}')
        a(redl[4])
        a(f'v_cmp_lt_f32 vcc, s79, v{U}')
        def fin(first):
            a(f'v_add_f32_dpp v{LM}, v{LM}, v{LM} {DPP8}')
            if first: a(redl[5])
            a(f'v_mov_b32 v{T2}, v{LM}')
            if first: a(redl[6]); a(redl[7])
            a(f'v_permlane16_swap_b32 v{LM}, v{T2}'); a(f'v_add_f32 v{LM}, v{LM}, v{T2}')
            a(f'v_fma_f32 v{LM}, v{LM}, s78, v{LS}')
            a(f'v_rcp_f32 v{LM}, v{LM}')
            a(f'v_pk_mul_f32 v[{PO}:{PO+1}], v[{EA}:{EA+1}], v[{LM-1}:{LM}] op_sel:[0,1]'); a(f'v_pk_mul_f32 v[{PO+2}:{PO+3}], v[{EB}:{EB+1}], v[{LM-1}:{LM}] op_sel:[0,1]')
            a(f'v_cvt_pk_bf16_f32 v{PO}, v{PO}, v{PO+1}'); a(f'v_cvt_pk_bf16_f32 v{PO+1}, v{PO+2}, v{PO+3}')
        fin(True)
        a(f's_cbranch_vccnz {lslow}')
        a(f'{lback}:')
        a(f'buffer_store_dwordx2 v[{PO}:{PO+1}], v{V9}, {S_WS}, s76 offen {sc}')
        a(f'v_pk_mul_f32 v[{SM+2}:{SM+3}], v[{SM+2}:{SM+3}], v[{LM-1}:{LM}] op_sel:[0,1]')
        a(f'v_cvt_pk_bf16_f32 v{SM}, v{SM+2}, v{SM+3}')
        a(f'buffer_store_dword v{SM}, v{V10}, {S_WS}, s77 offen {sc}')
        stamp(a, opt, 4)
        if opt.get('diagp'): a('s_waitcnt vmcnt(0)')
        lkm, lkb = a.label('Lkm'), a.label('Lkb')
        a(f's_cmp_ge_u32 {SSTEP}, {4*NMB}'); a(f's_cbranch_scc1 {lkm}')
        a(f'{lkb}:')
        def ool3():
            a(f'{lkm}:')
            a(f's_mul_i32 s72, {SH}, 12288'); a(f's_bfe_u32 s67, {SSTEP}, 0x10001'); a('s_mul_i32 s67, s67, 6144'); a('s_add_u32 s72, s72, s67')
            a(f's_add_u32 s72, s72, {KF_OFF + (64 + NMB)*32*12288}'); a('s_add_u32 s73, s72, 4096')
            a(f's_bitcmp1_b32 {SSTEP}, 0'); a('s_cselect_b32 s74, 8, 0'); a('s_lshl_b32 s74, 0x00ff00ff, s74'); a('s_mov_b32 exec_lo, s74'); a('s_mov_b32 exec_hi, s74')
            for kk in range(6): a(f'buffer_store_dwordx4 v[{VKX+4*kk}:{VKX+4*kk+3}], v{VL16}, {S_WS}, s{72 + (kk >> 2)} offen offset:{(kk & 3)*1024} sc1')
            a('s_mov_b64 exec, -1')
            cprog(a)
            a(f's_branch {lkb}')
            a(f'{lslow}:')
            a(f'v_max_f32 v{U}, v{SM}, v{SM+1}'); a(f'v_max_f32_dpp v{U}, v{U}, v{U} {DPP8}')
            for s_ in allred('v_max_f32', U, T, (16,)): a(s_)
            a(f'v_max3_f32 v{U}, v{U}, v{EA+2}, v{EB+2}')
            a(f'v_sub_f32 v{SM}, v{SM}, v{U}'); a(f'v_sub_f32 v{SM+1}, v{SM+1}, v{U}'); a(f'v_sub_f32 v{F0}, v{EA+2}, v{U}'); a(f'v_sub_f32 v{F1}, v{EB+2}, v{U}')
            a(f'v_exp_f32 v{SM+2}, v{SM}'); a(f'v_exp_f32 v{SM+3}, v{SM+1}'); a(f'v_exp_f32 v{F0}, v{F0}'); a(f'v_exp_f32 v{F1}, v{F1}')
            a(f'v_mul_f32 v{LS}, v{EA+3}, v{F0}'); a(f'v_fmac_f32 v{LS}, v{EB+3}, v{F1}')
            for s_ in redl: a(s_)
            for i in range(2): a(f'v_mul_f32 v{EA+i}, v{EA+i}, v{F0}'); a(f'v_mul_f32 v{EB+i}, v{EB+i}, v{F1}')
            a(f'v_add_f32 v{LM}, v{SM+2}, v{SM+3}')
            fin(False)
            a(f's_branch {lback}')
    if opt.get('dq1'): opt = dict(opt, stamps=1)
    stamp(a, opt, 5)
    stamp_flush(a, opt, 8)
    a(f's_add_u32 {SSTEP}, {SSTEP}, 1'); a(f's_cmp_lt_u32 {SSTEP}, 64'); a(f's_cbranch_scc1 {ltop}')
    a('s_waitcnt vmcnt(0)'); a('s_endpgm')
    ool()
    if ool3: ool3()
    if ool4: ool4()

def vo_setup(a, opt):
    common_addr(a)
    T = VTMP
    lanefn(a, VXW, lambda l: LDS_EX + tile_pat(l), T, 256)
    a(f'v_and_b32 v{T}, 1, v0'); a(f'v_cmp_ne_u32 vcc, 0, v{T}'); a(f'v_mov_b32 v{T}, 0x05040100'); a(f'v_mov_b32 v{T+1}, 0x03020706')
    a(f'v_cndmask_b32 v{VXS}, v{T}, v{T+1}, vcc')
    lanefn(a, V9, lambda l: ((l >> 4) & 1)*1024 + (l & 15)*16 + (l >> 5)*8, T, 256)
    lanefn(a, V10, lambda l: (l >> 4)*10240 + (l & 15)*16, T)
    lanefn(a, V11, lambda l: (l >> 4)*1024 + (l & 15)*16, T, 256)
    lanefn(a, V12, tile_pat, T)
    a(f's_and_b32 {SDT}, {SH}, 15'); a(f's_lshl_b32 s67, {SWV}, 4'); a(f's_add_u32 {SDT}, {SDT}, s67')
    a(f's_lshl_b32 s81, {SX}, 11'); a(f's_bfe_u32 s67, {SDT}, 0x20002'); a(f's_mul_i32 s67, s67, {40*128}'); a('s_add_u32 s81, s81, s67'); a(f's_add_u32 s81, s81, {PRGY_OFF}')
    a(f's_mul_i32 s44, {SH}, 10240'); a(f's_add_u32 s44, s44, {VOMR_OFF}'); a('s_add_u32 s45, s44, 4096'); a('s_add_u32 s46, s44, 8192')
    a(f's_mul_i32 s72, {SX}, {16*10240}'); a(f's_lshl_b32 s68, {SDT}, 8'); a('s_add_u32 s72, s72, s68'); a(f's_add_u32 s72, s72, {VOMR_OFF}')
    a('s_add_u32 s73, s72, 40960'); a('s_add_u32 s74, s73, 40960'); a('s_add_u32 s75, s74, 40960')
    a(f's_mul_i32 s49, {SX}, 12288'); a(f's_add_u32 s49, s49, {PA_OFF}'); a(f's_add_u32 s76, s49, {SCHK}')
    a(f's_mul_i32 s47, {SDT}, 40960'); a(f's_lshl_b32 s67, {SX}, 14'); a('s_add_u32 s47, s47, s67'); a(f's_add_u32 s47, s47, {VOF_OFF}')

def vom_store1(src, k, base, sc):
    if k < 2: return f'buffer_store_dwordx4 v[{src}:{src+3}], v{V11}, {S_WS}, {base[k]} offen {sc}'
    return f'buffer_store_dwordx2 v[{src}:{src+1}], v{V9}, {S_WS}, {base[2]} offen {sc}'
def memp_off(a, dst, add, dt=SDT):
    a(f's_add_u32 s67, {SSTEP}, {add}'); a('s_and_b32 s67, s67, 3'); a('s_lshl_b32 s67, s67, 1'); a(f's_lshl_b32 s{dst+1}, s67, 15'); a(f's_add_u32 s67, s67, {SX}')
    a(f's_mul_i32 s{dst}, s67, 10240'); a(f's_lshl_b32 s67, {dt}, 8')
    a(f's_add_u32 s{dst}, s{dst}, s67'); a(f's_add_u32 s{dst+1}, s{dst+1}, s67'); a(f's_add_u32 s{dst}, s{dst}, {MEML_OFF}')
    a(f's_add_u32 s{dst+1}, s{dst+1}, {SMR}'); a(f's_cmp_ge_u32 {dt}, 24'); a('s_cselect_b32 s67, 26624, 0'); a(f's_add_u32 s{dst+1}, s{dst+1}, s67')

def vo_init_clear(a):
    for r in range(4): a(f'v_mov_b32 v{VA+16+r}, -1')
    for k in range(3): a(vom_store1(VA + 16, k, ('s44', 's45', 's46'), 'sc1'))
    for sl in range(4):
        memp_off(a, 32, sl)
        a(f's_cmp_ge_u32 {SDT}, 40'); a(f's_cselect_b32 s32, {OOB}, s32'); a(f's_cselect_b32 s33, {OOB}, s33')
        a(f'buffer_store_dword v{VA+16}, v{V12}, {S_WS}, s32 offen sc1')
        for p in range(4):
            if p: a('s_add_u32 s33, s33, 8192')
            a(f'buffer_store_dword v{VA+16}, v{V12}, {S_WS}, s33 offen sc1')

VORD = [[0, 1, 2, 3, 4, 5, 6, 7, 9, 8], [3, 4, 5, 0, 1, 2, 6, 7, 9, 8], [6, 7, 2, 0, 1, 5, 3, 4, 9, 8], [8, 9, 0, 1, 3, 2, 4, 6, 5, 7]]
OORD = [0, 1, 2, 3, 4, 5, 6, 7, 8, 9]
OORD0 = [0, 2, 1, 3, 4, 6, 5, 7, 8, 9]
def pairup(acc, tmp):
    return [f'v_mov_b32_dpp v{tmp}, v{acc} quad_perm:[1,0,3,2] row_mask:0xf bank_mask:0xf', f'v_perm_b32 v{acc}, v{tmp}, v{acc}, v{VXS}']

def vo_loop(a, w, duty, sc, opt):
    n = NCH[w]; VO = VORD[w]
    lg = Trk(a, 'lgkmcnt', 15)
    ltop, lent = a.label('Lvo'), a.label('Lvoent')
    VV = VACC1; PK = VACC0
    EXO = LDS_EX - LDS_MEM
    AP = apos(w, VO)
    OA = {t: (VOX + 44 + 4*i if i < 5 else AP[VO[i - 5]]) for i, t in enumerate(OORD)}
    seq = [(kb, t) for kb in VO[:3] for t in range(3)] + [(kb, t) for t in range(3) for kb in VO[3:]]
    first = [(xfrag(kb, t, 0)[0], VACC0 + 4*t, AP[kb], xfrag(kb, t, 0)[1], [f'A{kb}']) for kb, t in seq]
    oseq = [(t, 0) for t in OORD0] + [(t, 1) for t in OORD[:3]]
    for i in range(10): oseq += [(OORD[i], 2)] + ([(OORD[i+3], 1)] if i + 3 < 10 else [])
    if opt.get('oseq', 1):
        oseq = [(0, 0), (2, 0), (1, 0), (3, 0), (4, 0), (6, 0), (0, 1), (2, 1), (1, 1), (3, 1), (5, 0), (7, 0), (0, 2), (1, 2), (2, 2), (3, 2),
                (4, 1), (5, 1), (4, 2), (6, 1), (5, 2), (7, 1), (6, 2), (8, 0), (7, 2), (9, 0), (8, 1), (9, 1), (8, 2), (9, 2)]
    second = [(yfrag(tile, kb)[0], OA[tile], VV + 4*kb, yfrag(tile, kb)[1], [f'V{kb}']) for tile, kb in oseq]
    fin = {t: 30 + oseq.index((t, 2)) for t in OORD}
    items, ldsq, k2 = build_stream(first, second)
    sd = Sides()
    stream_head(sd, w, VO, AP, opt, None)
    sd.put(opt.get('gb1', 3), lambda: stamp(a, opt, 1))
    vox = lambda hh: f'buffer_load_dwordx4 v[{VOX+4*hh}:{VOX+4*hh+3}], v{VL16}, {S_WS}, s83 offen offset:{(hh & 3)*1024} {STREAM[0]}'
    vsp = opt.get('vsp', 3)
    NIN = opt.get('nin', 16)
    NE = opt.get('ne', 0)
    if duty:
        for hh in range(NE, min(NIN, 11)):
            g = opt.get('vs0', 1) + (hh - NE) * vsp
            sd.put(g, vox(hh))
            if hh & 3 == 3: sd.put(g + 1, 's_add_u32 s83, s83, 4096')
    if w == 3:
        for i in range(6): sd.put(opt.get('cl0', 1) + 4*i, f'buffer_store_dword v{VT2}, v{V12}, {S_WS}, s{52 + i} offen {"sc1" if i & 1 else sc}')
    zer = [f'v_mov_b64 v[{AP[VO[r >> 1]] + 2*(r & 1)}:{AP[VO[r >> 1]] + 2*(r & 1) + 1}], 0' for r in range(10)]
    for r in range(6): sd.valu(3*(r >> 1) + 3 + (r & 1), [zer[r]])
    wr = lambda acc, t: ('lds', f'ds_write_b32 v{VXW}, v{acc} offset:{t*1024}', f'VW{t}')
    vpost = lambda t: post(VACC0 + 4*t, VACC0 + 4*t) + [None] + pairup(VACC0 + 4*t, VACC0 + 4*t + 1) + [wr(VACC0 + 4*t, t)]
    vrd = lambda kb: ('lds', f'ds_read_b128 v[{VV+4*kb}:{VV+4*kb+3}], v{VAR} offset:{EXO + kb*1024}', f'V{kb}')
    for t, g0, per in ((0, 17, 1), (1, 24, 1), (2, 31, 2)):
        g = sd.valu(g0, vpost(t), per) + 2
        sd.put(g, ('wait', f'VW{t}')); sd.put(g, 's_barrier'); sd.lds(g, vrd(t), True)
    sd.valu(27, zer[6:])
    if opt.get('diag'): sd.put(g, lambda: stamp(a, opt, 0)); sd.put(29, lambda: stamp(a, opt, 5)); sd.put(42, lambda: stamp(a, opt, 7))
    base = ('s44', 's45', 's46')
    tail = []
    ops = []
    for q in range(3):
        b = PK + 4*q; ts_ = list(range(4*q, min(4*q + 4, 10)))
        for t in ts_:
            p_ = post(OA[t], PK + t, None, t >= 8)
            ops += [(f'a{t}{j}', x_, [], fin[t] + 2) for j, x_ in enumerate(p_[:-1])] + [(f'c{t}', p_[-1], [f'a{t}{j}' for j in range(len(p_) - 1)], 0)]
            if duty and 11 + t < NIN:
                if t == 1: ops.append(('s', 's_add_u32 s83, s83, 4096', ['x0'], 0))
                ops.append((f'x{t}', vox(11 + t), [f'c{t}'] + ([f'x{t-1}'] if t else []) + (['s'] if t == 1 else []), 0))
        ops.append((f'p{q}', f'v_permlane16_swap_b32 v{b}, v{b+1}', [f'c{ts_[0]}', f'c{ts_[1]}'], 0))
        last = [f'p{q}']
        if q < 2:
            ops += [(f'r{q}', f'v_permlane16_swap_b32 v{b+2}, v{b+3}', [f'c{ts_[2]}', f'c{ts_[3]}'], 0),
                    (f'u{q}', f'v_permlane32_swap_b32 v{b}, v{b+2}', [f'p{q}', f'r{q}'], 0), (f'w{q}', f'v_permlane32_swap_b32 v{b+1}, v{b+3}', [f'p{q}', f'r{q}'], 0)]
            last = [f'u{q}', f'w{q}']
        ops += [(f'b{q}', f'v_bfi_b32 v{b}, 1, {SSTEP}, v{b}', last[:1], 0), (f'st{q}', vom_store1(b, q, base, sc), last + [f'b{q}'], 0)]
    at = {}
    g = min(o[3] for o in ops if o[3])
    mem_at = set()
    while len(at) < len(ops):
        for nm, tx, dep, e in ops:
            if nm in at or g < e: continue
            sal = tx.startswith('s_')
            if not all(d in at and (at[d] < g or (at[d] == g and (sal or d == 's'))) for d in dep): continue
            if tx.startswith('v_'):
                if g < len(items) and sd.vbusy.get(g, 0) >= 2: continue
                sd.vbusy[g] = sd.vbusy.get(g, 0) + 1
            elif not sal:
                if g < len(items) and g in mem_at: continue
                mem_at.add(g)
            at[nm] = g; sd.put(g, tx)
        g += 1
    ex = []
    for g in sorted(g for g in sd.side if g >= len(items)): ex += sd.side.pop(g)
    tail = ex + tail
    sd.refills(ldsq)

    def top():
        preload_b(a, lg, ldsq)
        a(f's_bitcmp1_b32 {SSTEP}, 0'); a('s_cselect_b32 s50, 0x80008000, 0')
        if w == 3:
            a(f'v_mov_b32 v{VT2}, -1'); a(f's_and_b32 s35, {SH}, 15')
            for i in range(3):
                memp_off(a, 52 + 2*i, 2, 's35')
                if i < 2: a('s_add_u32 s35, s35, 16')
            a('s_cmp_ge_u32 s35, 40'); a(f's_cselect_b32 s56, {OOB}, s56'); a(f's_cselect_b32 s57, {OOB}, s57')
        if duty:
            memp_off(a, 77, 1)
            if opt.get('nopf'): a('s_mov_b32 s82, 0')
            else: a(f's_mov_b32 s82, {SSTEP}')
            a(f's_mul_i32 s83, s82, {40*40960}'); a('s_add_u32 s83, s83, s47'); a(f's_cmp_eq_u32 {SSTEP}, 63'); a(f's_cselect_b32 s83, {OOB}, s83')
        for r in range(0, 12, 2): a(f'v_mov_b64 v[{VACC0+r}:{VACC0+r+1}], 0')
        for r in range(0, 20, 2): a(f'v_mov_b64 v[{VOX+44+r}:{VOX+45+r}], 0')
        if duty:
            lk = a.label('Lk')
            a(f's_cmp_ge_u32 {SSTEP}, {64 if opt.get("notouch") else opt.get("self", SELF)}'); a(f's_cbranch_scc1 {lk}')
            check_flags(a, opt, 'Y16')
            a(f'{lk}:')
            for hh in range(NE):
                a(vox(hh))
                if hh & 3 == 3: a('s_add_u32 s83, s83, 4096')
    a(f's_mov_b32 {SSTEP}, 0'); a('s_mov_b32 s36, 0x03030303'); a('s_mov_b32 s37, s36')
    top()
    for kb in OWN[w]: a(a_read(kb, AP[kb])[1])
    a('s_waitcnt lgkmcnt(0)')
    a(f's_branch {lent}')
    a(f'{ltop}:')
    lg.reset()
    a('s_barrier')
    top()
    if opt.get('vsleep', 0): a(f's_sleep {opt.get("vsleep", 0)}')
    a('s_waitcnt lgkmcnt(0)')
    if opt.get('mg', 1): ool = gather_m(a, n, VACC1, VOX, VA + 36, {} if opt.get('diagv') else opt, (0, 5, 7), None, 1, 0, opt.get('spec', 0), opt.get('rbv', 0), opt.get('lrv', 0))
    else: ool = gather(a, n, VACC1, {k: v for k, v in opt.items() if k != 'stamps'} if opt.get('diag') else opt, (0, 0 if opt.get('diag2') else 5, 7), opt.get('vrs', 0), VA + 24 if opt.get('vj', 1) else None)
    a(f'{lent}:')
    lg.reset(); lg.issue('GW')
    merge(a, lg, items, sd.side)
    for s_ in tail:
        a(s_)
    stamp(a, opt, 3)
    lcp, lcb, lcf, lce = [a.label('Lc') for _ in range(4)]
    a(f's_cmp_ge_u32 {SSTEP}, {4*NMB}'); a(f's_cbranch_scc1 {lcp}')
    a(f'{lcb}:')
    def ool5():
        a(f'{lcp}:')
        a(f's_lshl_b32 s52, {SSTEP}, 5'); a(f's_add_u32 s52, s52, {SH}'); a('s_mul_i32 s52, s52, 10240'); a(f's_add_u32 s52, s52, {VOM_OFF}')
        a('s_add_u32 s53, s52, 4096'); a('s_add_u32 s54, s52, 8192')
        for k in range(3): a(vom_store1(PK + 4*k, k, ('s52', 's53', 's54'), 'sc1'))
        a(f's_cmp_lt_u32 {SSTEP}, 63'); a(f's_cbranch_scc1 {lcb}')
        a('s_waitcnt vmcnt(0)'); a('s_barrier')
        if w == 3: cprog(a)
        a('s_waitcnt vmcnt(0)'); a('s_endpgm')
    ACC = VB + 28
    R = VB + 16
    def ldp():
        for c in range(n): a(f'buffer_load_dwordx4 v[{R+4*c}:{R+4*c+3}], v{VL16}, {S_WS}, s76 offen offset:{c*1024} sc1')
    lt, ltd, lp, ld = [a.label('Lp') for _ in range(4)]
    PT = VA
    def pwrite(c): a(f'ds_write_b128 v{VGW}, v[{R+4*c}:{R+4*c+3}] offset:{c*1024}')
    def pcheck_m(first):
        for c in range(n):
            b = R + 4*c
            if first: a(f's_waitcnt vmcnt({n - 1 - c})'); pwrite(c)
            a(f'v_bitop3_b32 v{PT+c}, v{b}, v{b+2}, s50 bitop3:0x7e')
            if w == 3 or not first: a(f'v_bitop3_b32 v{PT+3}, v{b+1}, v{b+3}, s50 bitop3:0x7e'); a(f'v_or_b32 v{PT+c}, v{PT+c}, v{PT+3}')
            a(f'v_cmp_gt_i32 {ML[c]}, 0, v{PT+c}')
        mask_or(a, ML[:n])
    MV = MR + ['s[30:31]']
    def ldv(ms=None):
        for q in range(4):
            if ms: a(f's_mov_b64 exec, {ms[q]}')
            a(f'buffer_load_dwordx4 v[{VB+4*q}:{VB+4*q+3}], v{V10}, {S_WS}, s{72+q} offen sc1')
        if ms: a('s_mov_b64 exec, -1')
    def vcheck():
        for q in range(4):
            if w < 2: a(f'v_bitop3_b32 v{PT+4+q}, v{VB+4*q}, {SSTEP}, 1 bitop3:0x28')
            else: a(f'v_bitop3_b32 v{PT+4+q}, v{VB+4*q}, v{VB+4*q+2}, {SSTEP} bitop3:0x7e'); a(f'v_and_b32 v{PT+4+q}, 1, v{PT+4+q}')
        for q in range(4): a(f'v_cmp_ne_u32 {MV[q]}, 0, v{PT+4+q}')
        mask_or(a, MV)
    if duty:
        for hh in range(NIN, 16):
            a(vox(hh))
            if hh & 3 == 3 and hh < 15: a('s_add_u32 s83, s83, 4096')
    if opt.get('diagv'): a('s_waitcnt vmcnt(0)'); stamp(a, opt, 5)
    gather_setup(a, 1)
    ts = opt.get('tsleep', 4) if duty else opt.get('nsleep', 9)
    if isinstance(ts, list): ts = ts[w]
    if ts: a(f's_sleep {ts}')
    SEP = opt.get('sep', 1)
    if duty and SEP:
        lv2 = a.label('Lp')
        if opt.get('diagv'): stamp(a, opt, 0)
        ldv()
        for r in range(4): a(f'v_mov_b32 v{ACC+r}, 0')
        a('s_waitcnt vmcnt(0)')
        if opt.get('diagv'): stamp(a, opt, 7)
        vcheck()
        a(f's_cbranch_scc1 {lv2}')
        stamp(a, opt, 2)
        if opt.get('psl', 1): a(f's_sleep {opt.get("psl", 1)}')
        ldp()
        a(f'{lv2}x:')
    elif duty:
        ldv()
        if opt.get('pat'): a(f's_sleep {opt["pat"] - ts - 1}')
        ldp()
        for r in range(4): a(f'v_mov_b32 v{ACC+r}, 0')
        a(f's_waitcnt vmcnt({n})'); vcheck()
        if not opt.get('novc'): a(f's_cbranch_scc1 {lt}')
        stamp(a, opt, 2)
    else: ldp()
    pcheck_m(True)
    a(f's_cbranch_scc1 {lp}')
    a(f'{ld}:')
    stamp(a, opt, 4)
    def ool2():
        PD = opt.get('pdep', 1) - 1; gap = opt.get('pgap', 2)
        ltb, lpb, lwr = [a.label('Lp') for _ in range(3)]
        if duty and SEP:
            a(f'{lv2}:')
            ldv(MV); ldp()
            a(f's_waitcnt vmcnt({n})'); vcheck()
            a(f's_cbranch_scc1 {lt}')
            stamp(a, opt, 2)
            a(f's_branch {lv2}x')
        if duty:
            a(f'{lt}:')
            a('s_waitcnt vmcnt(0)'); pcheck_m(False)
            for _ in range(PD): ldv(MV); ld_masked(a, n, R, 's76', ML); a(f's_sleep {gap}')
            a(f'{ltb}:')
            ldv(MV); ld_masked(a, n, R, 's76', ML)
            a(f's_waitcnt vmcnt({(4 + n)*PD})'); pcheck_m(False); a('s_cselect_b32 s51, 1, 0'); vcheck()
            a(f's_cbranch_scc0 {ltd}')
            budget_loop(a, ltb, ltd)
            a(f'{ltd}:')
            stamp(a, opt, 2)
            a('s_cmp_eq_u32 s51, 0'); a(f's_cbranch_scc1 {lwr}')
            if PD: a(f's_branch {lpb}')
        a(f'{lp}:')
        for _ in range(PD): ld_masked(a, n, R, 's76', ML); a(f's_sleep {gap}')
        a(f'{lpb}:')
        if opt.get('pback'): a(f's_sleep {opt["pback"]}')
        ld_masked(a, n, R, 's76', ML); a(f's_waitcnt vmcnt({n*PD})'); pcheck_m(False)
        a(f's_cbranch_scc0 {lwr}')
        budget_loop(a, lpb, lwr)
        a(f'{lwr}:')
        for c in range(n): pwrite(c)
        a(f's_branch {ld}')
    if not duty: a('s_waitcnt lgkmcnt(0)'); a('s_barrier'); a('s_waitcnt vmcnt(0)')
    if duty:
        bop = lambda pp: f'v[{VOX+8*pp}:{VOX+8*pp+7}]' if pp < 8 else f'v[{VB+8*(pp-8)}:{VB+8*(pp-8)+7}]'
        rest = [c for c in range(10) if c not in OWN[w]]
        a(smf(ACC, R, bop(OWN[w][0])))
        a('s_waitcnt lgkmcnt(0)'); a('s_barrier')
        for c in rest[:3]: a(f'ds_read_b128 v[{VA+4*c}:{VA+4*c+3}], v{VAR} offset:{c*1024}')
        k = 3
        for j in range(1, n):
            a(smf(ACC, R + 4*j, bop(OWN[w][j])))
            for c in rest[k:k+2]: a(f'ds_read_b128 v[{VA+4*c}:{VA+4*c+3}], v{VAR} offset:{c*1024}')
            k += 2
        for c in rest[k:]: a(f'ds_read_b128 v[{VA+4*c}:{VA+4*c+3}], v{VAR} offset:{c*1024}')
        for j, pp in enumerate(rest):
            a(f's_waitcnt lgkmcnt({len(rest)-1-j})' if pp != 8 else 's_waitcnt vmcnt(0) lgkmcnt(1)')
            a(smf(ACC, VA + 4*pp, bop(pp)))
        for s_ in post(ACC, ACC, None, True): a(s_)
        a(f'v_xor_b32 v{ACC}, s50, v{ACC}')
        for s_ in pairup(ACC, ACC + 1): a(s_)
        order = [('s78', 'sc1'), ('s77', sc)] if opt.get('rfirst') else [('s77', sc), ('s78', 'sc1')]
        if opt.get('wide', 0):
            if opt['wide'] == 2: a(f'buffer_store_dword v{ACC}, v{V12}, {S_WS}, s77 offen {sc}'); order = [('s78', 'sc1')]
            for j in (1, 2, 3): a(f'v_mov_b32_dpp v{ACC+j}, v{ACC} row_shl:{2*j} row_mask:0xf bank_mask:0xf')
            a('s_mov_b64 exec, s[36:37]')
            for so, fl in order: a(f'buffer_store_dwordx4 v[{ACC}:{ACC+3}], v{V12}, {S_WS}, {so} offen {fl}')
            a('s_mov_b64 exec, -1')
        else:
            for so, fl in order: a(f'buffer_store_dword v{ACC}, v{V12}, {S_WS}, {so} offen {fl}')
        stamp(a, opt, 6)
        if opt.get('diagp'): a('s_waitcnt vmcnt(1)'); stamp(a, opt, 2); a('s_waitcnt vmcnt(0)'); stamp(a, opt, 3)
    elif w == 3:
        lnc = a.label('Lnx')
        a(f's_cmp_lt_u32 {SSTEP}, {4*NMB}'); a(f's_cbranch_scc1 {lnc}')
        cprog(a)
        a(f'{lnc}:')
    stamp_flush(a, opt, 8)
    a(f's_add_u32 {SSTEP}, {SSTEP}, 1'); a(f's_branch {ltop}')
    ool(); ool2(); ool5()

def chain_main(a, opt):
    lvo = a.label('Lrole_vo')
    tstamp(a, opt, 0, (14, 15))
    STREAM[0] = opt.get('stream', 'sc1')
    a(f's_lshr_b32 {SX}, {SSLOT}, 5'); a(f's_and_b32 s67, {SSLOT}, 15'); a(f's_lshl_b32 {SH}, {SX}, 4'); a(f's_add_u32 {SH}, {SH}, s67')
    a(f's_mov_b32 {STMO}, {opt.get("tmo", 1 << 21)}'); a(f's_mov_b32 {SSTEP}, 0')
    srd(a, S_AUX, 's[38:39]', 8*640*2)
    a(f's_add_u32 {SMR}, s60, {MEMR_OFF + 0x7ffff}'); a(f's_and_b32 {SMR}, {SMR}, 0xfff80000'); a(f's_sub_u32 {SMR}, {SMR}, s60')
    a(f's_mul_i32 s58, {SWV}, 3072'); a(f's_lshl_b32 s67, {SWV}, 11'); a('s_add_u32 s67, s67, 28672'); a(f's_cmp_ge_u32 {SWV}, 2'); a('s_cselect_b32 s58, s67, s58')
    a(f's_mov_b32 {S_ONE0}, 0x00003f80'); a(f's_mov_b32 {S_ONE1}, 0x3f800000')
    a(f's_bitcmp1_b32 {SSLOT}, 4'); a(f's_cbranch_scc1 {lvo}')
    for role in ('qk', 'vo'):
        if role == 'vo': a(f'{lvo}:')
        if role == 'qk':
            srd(a, S_WA, 's[40:41]', 640*6144*2); srd(a, S_WB, 's[42:43]', 640*6144*2); qk_setup(a, opt)
        else:
            srd(a, S_WA, 's[44:45]', 640*6144*2); srd(a, S_WB, 's[46:47]', 640*6144*2); vo_setup(a, opt)
        l1, l2, l3 = a.label('Ls'), a.label('Ls'), a.label('Ls')
        a(f's_mov_b32 {SPC}, 0')
        a(f's_cmp_lg_u32 {SWV}, 0'); a(f's_cbranch_scc1 {l2}')
        mem0_load(a)
        a(f'{l2}:')
        def after_first(n, vm):
            if n == 0:
                a(f's_cmp_lg_u32 {SWV}, 0'); a(f's_cbranch_scc1 {l3}')
                mem0_write(a)
                a(f'{l3}:')
            if n == 1: rot_load(a, 172, 173); vm.issue('rot')
            if n == 13:
                rot_check(a, 172, 173, True)
                if role == 'vo':
                    vo_init_clear(a)
                    for _ in range(23): vm.issue('init')
                a(f's_cmp_lg_u32 {SWV}, 0'); a(f's_cbranch_scc1 {l1}')
                if role == 'qk': qk_init_clear(a)
                a(f's_lshl_b32 s67, 1, {SXCC}'); a(f'v_mov_b32 v{VT0}, s67'); a(f's_lshl_b32 s67, {SX}, 2'); a(f'v_mov_b32 v{VT1}, s67')
                a('s_mov_b64 exec, 1')
                a(f'buffer_atomic_or v{VT0}, v{VT1}, {S_DBG}, 0 offen sc1')
                a('s_mov_b64 exec, -1')
                a(f'{l1}:')
            assert 32 + opt.get('ldep', 6) + 1 <= 39
            if n == 32: a(f'v_lshlrev_b32 v173, 2, v0'); a(f'buffer_load_dword v172, v173, {S_DBG}, 0 offen sc1'); vm.issue('rdy')
            if n == 14 + opt.get('ldep', 6):
                l4 = a.label('Ls')
                a(f's_cmp_lg_u32 {SWV}, 0'); a(f's_cbranch_scc1 {l4}')
                a(f'v_mov_b32 v{VT0}, 1'); a(f'v_mov_b32 v{VT1}, {DBG_READY*4}')
                a('s_mov_b64 exec, 1')
                a(f'buffer_atomic_add v{VT0}, v{VT1}, {S_DBG}, 0 offen sc1')
                a('s_mov_b64 exec, -1')
                a(f'{l4}:')
        loader(a, role, after_first, opt.get('ldep', 6))
        tstamp(a, opt, 1, (14, 15))
        lp, ld, lslow = a.label('Lr'), a.label('Lrd'), a.label('Lslow')
        lc = a.label('Lrc')
        a(f'v_lshlrev_b32 v{VT1}, 2, v0'); a(f'v_mov_b32 v{VT0}, v172')
        a(f's_branch {lc}')
        a(f'{lp}:')
        a(f'buffer_load_dword v{VT0}, v{VT1}, {S_DBG}, 0 offen sc1'); a('s_waitcnt vmcnt(0)')
        a(f'{lc}:')
        a(f'v_readlane_b32 s67, v{VT0}, {DBG_READY}')
        a(f'v_readlane_b32 s68, v{VT0}, {DBG_VOTE}'); a(f's_cmp_lt_u32 s68, {NAREA*256}'); a('s_cselect_b32 s67, 0, s67')
        if not opt.get('noflags'):
            a(f'v_readlane_b32 s68, v{VT0}, {DBG_AREA}'); a(f's_cmp_lt_u32 s68, {NAREA}'); a('s_cselect_b32 s67, 0, s67')
        a(f's_cmp_eq_u32 {STMO}, 0'); a(f's_cbranch_scc1 {ld}')
        a(f's_sub_u32 {STMO}, {STMO}, 1')
        a('s_cmp_lt_u32 s67, 64'); a(f's_cbranch_scc1 {lp}')
        a(f'{ld}:')
        a(f'v_readlane_b32 s69, v{VT0}, {DBG_VOTE}'); a('s_and_b32 s67, s69, 15'); a(f's_cmp_gt_u32 s67, {NAREA//2}'); a('s_cselect_b32 s67, 1, 0')
        a(f'v_readlane_b32 s68, v{VT0}, 0'); a('s_cmp_gt_u32 s68, 15'); a('s_cselect_b32 s68, 1, 0'); a('s_xor_b32 s67, s67, s68'); a('s_lshl_b32 s67, s67, 13')
        if 'par' in opt: a(f's_mov_b32 s67, {opt["par"]*8192}')
        a(f's_add_u32 {SMR}, {SMR}, s67')
        a('s_bfe_u32 s69, s69, 0x40004'); a(f's_cmp_gt_u32 s69, {NAREA//2}'); a('s_cselect_b32 s69, 1, 0')
        a(f'v_readlane_b32 s68, v{VT0}, 1'); a('s_and_b32 s68, s68, 0xaa'); a('s_cselect_b32 s68, 1, 0'); a('s_xor_b32 s69, s69, s68')
        if opt.get('inv14'): a('s_xor_b32 s69, s69, 1')
        a(f's_xor_b32 s69, s69, {SX}'); a('s_lshl_b32 s69, s69, 14')
        a(f's_add_u32 s58, s58, {SMR}'); a(f's_add_u32 {SMR}, {SMR}, s69'); a('s_xor_b32 s69, s69, 16384'); a('s_add_u32 s58, s58, s69')
        a(f'v_readlane_b32 s67, v{VT0}, 0'); a(f'v_readlane_b32 s68, v{VT0}, 1')
        a('s_bcnt1_i32_b32 s67, s67'); a('s_bcnt1_i32_b32 s68, s68'); a('s_max_u32 s67, s67, s68')
        if opt.get('force_slow'): a('s_mov_b32 s67, 2')
        a('s_cmp_lg_u32 s67, 1'); a(f's_cbranch_scc1 {lslow}')
        for sc in ('', 'sc1'):
            if sc: a(f'{lslow}:')
            if role == 'qk':
                labs = [a.label('Lw') for _ in range(4)]
                for w in range(1, 4): a(f's_cmp_eq_u32 {SWV}, {w}'); a(f's_cbranch_scc1 {labs[w]}')
                for w in range(4):
                    a(f'{labs[w]}:'); qk_loop(a, w, sc, opt)
            else:
                labs = [a.label('Lw') for _ in range(5)]
                a(f's_cmp_eq_u32 {SWV}, 1'); a(f's_cbranch_scc1 {labs[1]}'); a(f's_cmp_eq_u32 {SWV}, 3'); a(f's_cbranch_scc1 {labs[4]}')
                a(f's_cmp_ge_u32 {SDT}, 40'); a(f's_cbranch_scc1 {labs[3]}'); a(f's_cmp_eq_u32 {SWV}, 2'); a(f's_cbranch_scc1 {labs[2]}')
                for i, (w, duty) in enumerate([(0, True), (1, True), (2, True), (2, False), (3, False)]):
                    a(f'{labs[i]}:'); vo_loop(a, w, duty, sc, opt)
```

```python
from common import *

SC = 0.07216878364870322 * 1.4426950408889634

def wfrag(f, half=None):
    if f < 32: k, b = 'a', f * 8
    else: k, b = 'v', 176 + (f - 32) * 8
    if half is None: return f'{k}[{b}:{b+7}]'
    return k, b + 4 * half

VL16, VGW, VAR, VFR, VXW, VXS, VDR, VIDX, V9, V10, V11, V12, VT0, VT1, VT2 = range(1, 16)
VA = 16
VACC0 = 56
VACC1 = 68
VB = 80
VKX = 112
VQF = 136
VTMP = 160
VOX = 112
SSTEP, SH, SX, SDT = 's62', 's63', 's64', 's66'
SMASK8 = 's[70:71]'
SCM = [f's[{72+2*r}:{73+2*r}]' for r in range(4)]
SCHK = 's80'
S_ONE0, S_ONE1 = 's100', 's101'
NCH = [3, 3, 2, 2]
OWN = [[0, 1, 2], [3, 4, 5], [6, 7], [8, 9]]
REGKB = [0, 1, 3, 4, 6, 7, 8]; LDSKB = [2, 5, 9]
REGT = [0, 2, 3, 4, 6, 7, 8]; LDST = [1, 5, 9]
def yfrag(tile, kb):
    if tile in REGT: return 'reg', 21 + REGT.index(tile)*3 + kb
    return 'lds', 9 + LDST.index(tile)*3 + kb
def xfrag(kb, t, second):
    if kb in REGKB: return 'reg', t*7 + REGKB.index(kb) + (21 if second else 0)
    return 'lds', LDSKB.index(kb)*3 + t + (9 if second else 0)
def apos(w, order):
    ap = {kb: VA + 8*c for c, kb in enumerate(OWN[w])}
    free = [VA + 4*i for i in range(10) if VA + 4*i not in ap.values()]
    for kb in order:
        if kb not in ap: ap[kb] = free.pop(0)
    return ap
STREAM = ['sc1 nt']

def tile_pat(l):
    g, c = l >> 4, l & 15
    return (4*g + 2*(c >> 3) + (c & 1))*16 + ((c >> 1) & 3)*4
def arow(i, h): return 4*(i >> 1) + 2*h + (i & 1)

def common_addr(a):
    T = VTMP
    a(f'v_lshlrev_b32 v{VL16}, 4, v0')
    a(f's_mul_i32 s6, {SWV}, 3'); a(f's_lshl_b32 s7, {SWV}, 1'); a('s_add_u32 s7, s7, 2'); a('s_min_u32 s6, s6, s7')
    a(f's_lshl_b32 {SCHK}, s6, 10')
    a(f'v_add_u32 v{VAR}, {LDS_MEM}, v{VL16}'); a(f'v_add_u32 v{VGW}, {SCHK}, v{VAR}')
    lanefn(a, VFR, lambda l: l*16, T, 36864)
    lanefn(a, VIDX, lambda l: 0x4444 + ((l >> 1) & 1)*0xaaaa, T)
    a(f'v_and_b32 v{T}, 8, v0'); a(f'v_cmp_ne_u32 {SMASK8}, 0, v{T}')

def loader(a, role, after_first=None, dep=11):
    vm = Trk(a, 'vmcnt', 63)
    T = 160
    VD0, VD1, VR0 = T, T + 1, T + 2
    dma_voff(a, VD0, 12288, T + 8, T + 9); dma_voff(a, VD1, 1280, T + 8, T + 9)
    for aa in range(2):
        R = VR0 + 3*aa
        row = lambda l: 4*((l >> 4) & 1) + 2*aa + ((l >> 2) & 1)
        lanefn(a, T + 8, lambda l: row(l) & 6, T + 10); lanefn(a, T + 9, lambda l: (l >> 1) & 1, T + 10, 2)
        a(f'v_xor_b32 v{T+9}, v{T+9}, v{T+8}')
        lanefn(a, R, lambda l: (l >> 5)*2048 + ((l >> 3) & 1)*1024 + row(l)*128 + (l & 1)*8, T + 10)
        a(f'v_lshl_add_u32 v{R}, v{T+9}, 4, v{R}')
        a(f'v_add_u32 v{R+1}, 49152, v{R}'); a(f'v_add_u32 v{R+2}, 98304, v{R}')
    a(f's_mul_i32 s68, {SH}, 384'); a(f's_mul_i32 s67, {SWV}, {8*12288}'); a('s_add_u32 s68, s68, s67')
    a(f's_mul_i32 s69, {SH}, {192*1280}'); a(f's_mul_i32 s67, {SWV}, {8*1280}'); a('s_add_u32 s69, s69, s67')
    a(f's_lshl_b32 s7, {SWV}, 10')
    k2 = 'X' if role == 'qk' else 'Y'
    slabs = [('X', S_WA, i) for i in range(14)] + [(k2, S_WB, i) for i in range(14)] + \
            [('X', S_WA, i) for i in range(14, 20)] + [(k2, S_WB, i) for i in range(14, 20)]
    def dma(n):
        kind, sr, i = slabs[n]
        for c in range(3):
            a(f's_add_u32 m0, s7, {(n % 12)*LDS_SLAB + c*4096}')
            if kind == 'X': a(f's_add_u32 s67, s68, {(2*(REGKB + LDSKB)[i >> 1] + (i & 1))*32*12288 + c*128}')
            else: a(f's_add_u32 s67, s69, {((i&1)*96 + c*32)*1280 + (REGT + LDST)[i >> 1]*128}')
            a(f'buffer_load_dwordx4 v{VD0 if kind=="X" else VD1}, {sr}, s67 offen lds')
            vm.issue(n)
    def dest(n, c):
        kind, sr, i = slabs[n]
        second = (n >= 14) if n < 28 else (n >= 34)
        if kind == 'X': t, kb, half = c, i >> 1, i & 1; f = t * 7 + kb; lf = (kb - 7) * 3 + t
        else:
            ks = (i & 1) * 3 + c; kb, half = ks >> 1, ks & 1; tile = i >> 1
            f = tile * 3 + kb; lf = (tile - 7) * 3 + kb
        if second: f += 21; lf += 9
        return f, lf, half
    def reads(n):
        slot = n % 12
        base = VR0 + slot // 4; off0 = (slot % 4) * LDS_SLAB
        for c in range(3):
            f, lf, half = dest(n, c)
            if n < 28: k, b = wfrag(f, half)
            else: k, b = 'v', 16 + lf * 8 + half * 4
            for aa in range(2):
                a(f'ds_read_b64_tr_b16 {k}[{b+2*aa}:{b+2*aa+1}], v{base + 3*aa} offset:{off0 + c*4096}')
    for n in range(dep): dma(n)
    for n in range(40):
        vm.wait(n)
        a('s_waitcnt lgkmcnt(0)')
        a('s_barrier')
        if n + dep < 40: dma(n + dep)
        reads(n)
        after_first(n, vm)
    a('s_waitcnt lgkmcnt(0)'); a('s_barrier')
    for lf in range(18):
        for half in range(2):
            b = 16 + lf * 8 + half * 4
            a(f'ds_write_b128 v{VFR}, v[{b}:{b+3}] offset:{lf*2048 + half*1024}')
    a('s_waitcnt lgkmcnt(0)')

def mem0_load(a):
    lanefn(a, 18, lambda l: (l & 7)*1280 + (l >> 3)*16, 16)
    lanefn(a, 19, lambda l: LDS_MEM + (l >> 4)*256 + arow(l & 7, (l >> 3) & 1)*16, 16)
    for n in range(10): a(f'buffer_load_dwordx4 v[{24+4*n}:{27+4*n}], v18, {S_AUX}, 0 offen offset:{n*128}')
def mem0_write(a):
    for n in range(10): a(f'ds_write_b128 v19, v[{24+4*n}:{27+4*n}] offset:{n*1024}')

def maxchk(a, regs, first=True):
    regs = list(regs)
    if first:
        a(f'v_max3_u32 v{VT0}, v{regs[0]}, v{regs[1]}, v{regs[2]}'); regs = regs[3:]
    while regs:
        if len(regs) >= 2: a(f'v_max3_u32 v{VT0}, v{VT0}, v{regs[0]}, v{regs[1]}'); regs = regs[2:]
        else: a(f'v_max_u32 v{VT0}, v{VT0}, v{regs[0]}'); regs = []


def gather_setup(a, step_add=0):
    a(f's_add_u32 s67, {SSTEP}, {step_add}'); a('s_and_b32 s67, s67, 3'); a('s_lshl_b32 s67, s67, 1')
    a('s_lshl_b32 s68, s67, 15'); a(f's_add_u32 s67, s67, {SX}')
    a('s_mul_i32 s67, s67, 10240')
    a('s_add_u32 s33, s68, s58')
    a(f's_add_u32 s32, s67, {SCHK}'); a(f's_add_u32 s32, s32, {MEML_OFF}')

def gather(a, n, R, opt, st, rsleep=0, R2=None, det=None):
    ld = lambda r, so: [a(f'buffer_load_dwordx4 v[{r+4*c}:{r+4*c+3}], v{VL16}, {S_WS}, {so} offen offset:{c*1024} sc1') for c in range(n)]
    def chk(r, k=0): a(f's_waitcnt vmcnt({k})'); maxchk(a, range(r, r + 4*n)); a(f'v_cmp_eq_u32 vcc, -1, v{VT0}')
    l1, l1ok, l2, l2ok = [a.label('Lg') for _ in range(4)]
    if det is not None:
        l0, l0d = a.label('Lg'), a.label('Lg')
        a(f'{l0}:')
        a(f'buffer_load_dword v{R}, v{det}, {S_WS}, s32 offen sc1'); a('s_waitcnt vmcnt(0)'); a(f'v_cmp_eq_u32 vcc, -1, v{R}')
        poll_tail(a, l0, l0d)
    stamp(a, opt, st[0])
    if R2 is None:
        a(f'{l1}:')
        ld(R, 's32'); chk(R)
        poll_tail(a, l1, l1ok)
    else:
        ld(R, 's32'); ld(R2, 's33'); chk(R, n)
        a(f's_cbranch_vccnz {l1}')
        a(f'{l1ok}:')
    stamp(a, opt, st[1])
    for c in range(n):
        for i in range(4):
            a(f'v_lshlrev_b32 v{VA+8*c+2*i}, 16, v{R+4*c+i}'); a(f'v_and_b32 v{VA+8*c+2*i+1}, 0xffff0000, v{R+4*c+i}')
    Q = R if R2 is None else R2
    if R2 is None:
        if rsleep: a(f's_sleep {rsleep}')
        ld(Q, 's33')
    chk(Q)
    a(f's_cbranch_vccnz {l2}')
    a(f'{l2ok}:')
    stamp(a, opt, st[2])
    for c in range(n):
        b = VA + 8*c
        for i in range(4):
            a(f'v_dot2c_f32_bf16 v{b+2*i}, {S_ONE0}, v{Q+4*c+i}'); a(f'v_dot2c_f32_bf16 v{b+2*i+1}, {S_ONE1}, v{Q+4*c+i}')
        for i in range(4): a(f'v_cvt_pk_bf16_f32 v{b+i}, v{b+2*i}, v{b+2*i+1}')
        a(f'ds_write_b128 v{VGW}, v[{b}:{b+3}] offset:{c*1024}')
    def outofline():
        if R2 is not None:
            a(f'{l1}:')
            ld(R, 's32'); ld(R2, 's33'); chk(R, n)
            a(f's_cbranch_vccz {l1ok}')
            budget_loop(a, l1, l1ok)
        a(f'{l2}:')
        ld(Q, 's33'); chk(Q)
        a(f's_cbranch_vccz {l2ok}')
        budget_loop(a, l2, l2ok)
    return outofline

ML = ['s[16:17]', 's[18:19]', 's[20:21]']; MR = ['s[22:23]', 's[24:25]', 's[26:27]']; MOR = 's[28:29]'
def mask_or(a, ms):
    a(f's_or_b64 {MOR}, {ms[0]}, {ms[1]}')
    for m in ms[2:]: a(f's_or_b64 {MOR}, {MOR}, {m}')
def ld_masked(a, n, r, so, ms=None):
    for c in range(n):
        if ms: a(f's_mov_b64 exec, {ms[c]}')
        a(f'buffer_load_dwordx4 v[{r+4*c}:{r+4*c+3}], v{VL16}, {S_WS}, {so} offen offset:{c*1024} sc1')
    if ms: a('s_mov_b64 exec, -1')

def gather_m(a, n, R, Q, T, opt, st, det, dep, gap, spec=0, rb=0, lr=0):
    def chk(r, ms, k):
        a(f's_waitcnt vmcnt({k})')
        for c in range(n): a(f'v_max3_u32 v{T+c}, v{r+4*c}, v{r+4*c+1}, v{r+4*c+2}')
        for c in range(n): a(f'v_max_u32 v{T+c}, v{T+c}, v{r+4*c+3}')
        for c in range(n): a(f'v_cmp_eq_u32 {ms[c]}, -1, v{T+c}')
        mask_or(a, ms[:n])
    l1, l1ok, l2, l2b, l2ok = [a.label('Lg') for _ in range(5)]
    if det is not None:
        l0, l0d = a.label('Lg'), a.label('Lg')
        a(f'{l0}:')
        a(f'buffer_load_dword v{R}, v{det}, {S_WS}, s32 offen sc1'); a('s_waitcnt vmcnt(0)'); a(f'v_cmp_eq_u32 vcc, -1, v{R}')
        poll_tail(a, l0, l0d)
    stamp(a, opt, st[0])
    if lr:
        ld_masked(a, n, R, 's32'); chk(R, ML, 0)
        a(f's_cbranch_scc1 {l1}')
        a(f'{l1ok}:')
        ld_masked(a, n, Q, 's33')
    else:
        ld_masked(a, n, R, 's32'); ld_masked(a, n, Q, 's33')
        if rb: a(f's_sleep {rb}'); ld_masked(a, n, Q, 's33')
        chk(R, ML, 2*n if rb else n)
        a(f's_cbranch_scc1 {l1}')
        a(f'{l1ok}:')
    stamp(a, opt, st[1])
    def expand():
        for c in range(n):
            for i in range(4):
                a(f'v_lshlrev_b32 v{VA+8*c+2*i}, 16, v{R+4*c+i}'); a(f'v_and_b32 v{VA+8*c+2*i+1}, 0xffff0000, v{R+4*c+i}')
    def add(c, check=False):
        b = VA + 8*c; q = Q + 4*c
        if check: a(f's_waitcnt vmcnt({n-1-c})'); a(f'v_max3_u32 v{T}, v{q}, v{q+1}, v{q+2}')
        for i in range(4):
            a(f'v_dot2c_f32_bf16 v{b+2*i}, {S_ONE0}, v{q+i}'); a(f'v_dot2c_f32_bf16 v{b+2*i+1}, {S_ONE1}, v{q+i}')
        if check: a(f'v_max_u32 v{T}, v{T}, v{q+3}'); a(f'v_cmp_eq_u32 {MR[c]}, -1, v{T}')
        for i in range(4): a(f'v_cvt_pk_bf16_f32 v{b+i}, v{b+2*i}, v{b+2*i+1}')
        a(f'ds_write_b128 v{VGW}, v[{b}:{b+3}] offset:{c*1024}')
    expand()
    if spec:
        for c in range(n): add(c, True)
        mask_or(a, MR[:n])
        a(f's_cbranch_scc1 {l2}')
        a(f'{l2ok}:')
        stamp(a, opt, st[2])
    else:
        chk(Q, MR, n if rb else 0)
        a(f's_cbranch_scc1 {l2}')
        a(f'{l2ok}:')
        stamp(a, opt, st[2])
        for c in range(n): add(c)
    def outofline():
        a(f'{l1}:')
        if lr: ld_masked(a, n, R, 's32', ML); chk(R, ML, 0)
        else:
            ld_masked(a, n, R, 's32', ML); chk(Q, MR, n)
            ld_masked(a, n, Q, 's33', MR); chk(R, ML, n)
        a(f's_cbranch_scc0 {l1ok}')
        budget_loop(a, l1, l1ok)
        a(f'{l2}:')
        if rb: chk(Q, MR, 0); a(f's_cbranch_scc0 {l2ok}')
        for _ in range(dep - 1):
            ld_masked(a, n, Q, 's33', MR); a(f's_sleep {gap}')
        a(f'{l2b}:')
        ld_masked(a, n, Q, 's33', MR)
        if spec: expand()
        chk(Q, MR, n*(dep - 1))
        if not spec:
            a(f's_cbranch_scc0 {l2ok}')
            budget_loop(a, l2b, l2ok)
            return
        l2c, l2d = a.label('Lg'), a.label('Lg')
        a(f's_cbranch_scc0 {l2d}')
        a(f'{l2c}:')
        ld_masked(a, n, Q, 's33', MR); chk(Q, MR, 0)
        a(f's_cbranch_scc0 {l2d}')
        budget_loop(a, l2c, l2d)
        a(f'{l2d}:')
        for c in range(n): add(c)
        a(f's_branch {l2ok}')
    return outofline

def a_read(kb, reg):
    return ('lds', f'ds_read_b128 v[{reg}:{reg+3}], v{VAR} offset:{kb*1024}', f'A{kb}')
def frag_reads(lf, slot):
    return [('lds', f'ds_read_b128 v[{VB+8*slot+4*x}:{VB+8*slot+4*x+3}], v{VFR} offset:{lf*2048 + x*1024}', f'F{lf}') for x in range(2)]
def smf(acc, A, B): return f'v_smfmac_f32_16x16x64_bf16 v[{acc}:{acc+3}], v[{A}:{A+3}], {B}, v{VIDX}'
def post(acc, out, scale=None, pk=False):
    if pk: r = [f'v_pk_add_f32 v[{acc}:{acc+1}], v[{acc}:{acc+1}], v[{acc+2}:{acc+3}]']
    else: r = [f'v_add_f32 v{acc+i}, v{acc+i}, v{acc+2+i}' for i in range(2)]
    if scale: r += [f'v_mul_f32 v{acc+i}, {scale}, v{acc+i}' for i in range(2)]
    return r + [f'v_cvt_pk_bf16_f32 v{out}, v{acc}, v{acc+1}']

def allred(op, v, t, stages=(16, 32)):
    r = []
    for st in stages: r += [f'v_mov_b32 v{t}, v{v}', f'v_permlane{st}_swap_b32 v{v}, v{t}', f'{op} v{v}, v{v}, v{t}']
    return r

def stamp_flush(a, opt, n):
    if not opt.get('stamps'): return
    a('s_waitcnt lgkmcnt(0)')
    a(f's_lshl_b32 s67, {SSLOT}, 2'); a(f's_add_u32 s67, s67, {SWV}'); a('s_lshl_b32 s67, s67, 6'); a(f's_add_u32 s67, s67, {SSTEP}')
    a('s_lshl_b32 s67, s67, 6'); a(f's_add_u32 s67, s67, {STAMP_OFF}')
    a(f'v_lshlrev_b32 v{VT1}, 2, v0')
    for i in range(n): a(f'v_writelane_b32 v{VT0}, s{STAMP0+2*i}, {i}')
    a('s_mov_b64 exec, 0xffff')
    a(f'buffer_store_dword v{VT0}, v{VT1}, {S_WS}, s67 offen')
    a('s_mov_b64 exec, -1')

SPC = 's60'
SMR = 's59'
SELF = 3
def check_flags(a, opt, kind, skip=None, early=None):
    if opt.get('noflags'): return
    lp, ld = a.label('Lf'), a.label('Lfd')
    a(f's_sub_u32 s61, s82, {LEAD-4}'); a('s_max_i32 s61, s61, 0'); a('s_lshr_b32 s61, s61, 2'); a('s_add_u32 s61, s61, s82')
    a(f's_cmp_gt_u32 {SPC}, s61'); a(f's_cbranch_scc1 {ld}')
    if early:
        a(f's_waitcnt vmcnt({early[1]})')
        for r in (8, 4, 2, 1): a(f'v_min_u32_dpp v{early[0]}, v{early[0]}, v{early[0]} row_ror:{r} row_mask:0xf bank_mask:0xf')
        a(f'v_readfirstlane_b32 {SPC}, v{early[0]}')
        a(f's_cmp_gt_u32 {SPC}, s61'); a(f's_cbranch_scc1 {ld}')
    if kind == 'K': a(f'v_and_b32 v{VT1}, 15, v0'); a(f'v_min_u32 v{VT1}, 2, v{VT1}'); a(f'v_lshlrev_b32 v{VT1}, 7, v{VT1}')
    elif kind == 'Y16': a(f'v_and_b32 v{VT1}, 15, v0'); a(f'v_lshlrev_b32 v{VT1}, 7, v{VT1}')
    else: a(f'v_and_b32 v{VT1}, 3, v0'); a(f'v_mul_u32_u24 v{VT1}, {40*128}, v{VT1}')
    a(f'{lp}:')
    a(f'buffer_load_dword v{VT0}, v{VT1}, {S_WS}, s81 offen sc1'); a('s_waitcnt vmcnt(0)')
    for r in (8, 4, 2, 1): a(f'v_min_u32_dpp v{VT0}, v{VT0}, v{VT0} row_ror:{r} row_mask:0xf bank_mask:0xf')
    a(f'v_readfirstlane_b32 {SPC}, v{VT0}')
    a(f's_cmp_gt_u32 {SPC}, s61'); a(f's_cbranch_scc1 {ld}')
    if skip: a(f's_cmp_lt_u32 s82, {opt.get("self", SELF)}'); a(f's_cbranch_scc1 {skip}')
    budget_loop(a, lp, ld)
    a(f'{ld}:')

def cprog(a):
    a('s_waitcnt vmcnt(0)')
    a(f's_lshl_b32 s67, {SSLOT}, 7'); a(f's_add_u32 s67, s67, {CPRG_OFF}'); a(f's_add_u32 s68, {SSTEP}, 1'); a(f'v_mov_b32 v{VT0}, s68'); a(f'v_mov_b32 v{VT1}, 0')
    a('s_mov_b64 exec, 1')
    a(f'buffer_store_dword v{VT0}, v{VT1}, {S_WS}, s67 offen sc1')
    a('s_mov_b64 exec, -1')

def cprog_late(a, sreg, vadr, vval):
    a(f's_lshl_b32 {sreg}, {SSLOT}, 7'); a(f's_add_u32 {sreg}, {sreg}, {CPRG_OFF}'); a(f's_cmp_gt_u32 {SSTEP}, {4*NMB}'); a(f's_cselect_b32 {sreg}, {sreg}, {OOB}')
    a(f'v_mov_b32 v{vval}, {SSTEP}'); a(f'v_min_u32 v{vadr}, 1, v0'); a(f'v_lshlrev_b32 v{vadr}, 30, v{vadr}')

def load_frags6(a, dst, base_off, ct, seg='s82'):
    a(f's_lshl_b32 s67, {seg}, 5'); a(f's_add_u32 s67, s67, {SH}'); a('s_mul_i32 s67, s67, 12288')
    a(f's_add_u32 s67, s67, {base_off + ct*6144}'); a('s_add_u32 s68, s67, 4096')
    for kk in range(6):
        a(f'buffer_load_dwordx4 v[{dst+4*kk}:{dst+4*kk+3}], v{VL16}, {S_WS}, {"s67" if kk < 4 else "s68"} offen offset:{(kk&3)*1024} {STREAM[0]}')

def build_stream(first_items, second_items):
    items = []; ldsq = []; idx2 = {}
    def add(it):
        kind, acc, A, ref, needs = it
        if kind == 'reg': items.append((smf(acc, A, wfrag(ref)), needs))
        elif kind == 'lds':
            sl = len(ldsq) % 4; ldsq.append((len(items), ref, sl))
            items.append((smf(acc, A, f'v[{VB+8*sl}:{VB+8*sl+7}]'), needs + [f'F{ref}']))
        else: items.append((ref, needs))
    for it in first_items: add(it)
    n = 0
    for it in second_items:
        if it[0] != 'raw': idx2[n] = len(items); n += 1
        add(it)
    return items, ldsq, idx2

class Sides:
    def __init__(self): self.side = {}; self.busy = set(); self.vbusy = {}
    def put(self, g, r): self.side.setdefault(g, []).append(r)
    def lds(self, g, r, force=False):
        if not force:
            while g in self.busy: g += 1
        self.put(g, r); self.busy.add(g); return g
    def valu(self, g, instrs, per=1):
        last = g - 1; end = g
        for s in instrs:
            if s is None: g = last + 2; continue
            if isinstance(s, tuple): self.lds(last + 1, s, True); end = max(end, last + 2); continue
            if not s.startswith('v_'): self.put(last + 1, s); end = max(end, last + 2); continue
            while self.vbusy.get(g, 0) >= per: g += 1
            self.put(g, s); self.vbusy[g] = self.vbusy.get(g, 0) + 1; last = g; end = max(end, g + 1)
        self.nxt = g
        return end
    def refills(self, ldsq):
        for n in range(len(ldsq) - 4):
            g = ldsq[n][0]
            lim = ldsq[n+4][0] - 6
            for r in frag_reads(ldsq[n+4][1], ldsq[n][2]):
                g2 = g
                while g2 in self.busy: g2 += 1
                if g2 <= lim: g = self.lds(g2, r)
                else: g = self.lds(max(g, min(lim, g + 1)), r, True)
                assert g < ldsq[n+4][0] - 1, (n, g, ldsq[n+4])

DPP8 = 'row_ror:8 row_mask:0xf bank_mask:0xf'
def dense_reads(dst, off, tagp, kks=range(6)):
    return [('lds', f'ds_read_b64_tr_b16 v[{dst+4*kk+2*x}:{dst+4*kk+2*x+1}], v{VDR} offset:{off + (2*kk+x)*256}', f'{tagp}{kk}')
            for kk in kks for x in range(2)]

def preload_b(a, lg, ldsq):
    for n in range(4):
        for r in frag_reads(ldsq[n][1], ldsq[n][2]): a(r[1]); lg.issue(r[2])

QORD = [[0, 1, 2, 3, 4, 5, 6, 7, 9, 8], [3, 4, 5, 0, 1, 2, 6, 7, 9, 8], [6, 7, 2, 0, 1, 5, 3, 4, 9, 8], [8, 9, 0, 1, 2, 3, 4, 6, 5, 7]]
KORD = [0, 2, 1, 3, 5, 4, 6, 9, 7, 8]

def qk_setup(a, opt):
    common_addr(a)
    T = VTMP
    rho = lambda l: arow(l & 7, (l >> 3) & 1)
    lanefn(a, VXW, lambda l: LDS_MEM + (l & 15)*16 + (l >> 4)*4, T, 256)
    lanefn(a, VDR, lambda l: LDS_MEM + (l >> 2)*16 + (l & 1)*8, T)
    lanefn(a, V9, lambda l: (l >> 5)*256 + rho(l)*16 + ((l >> 4) & 1)*8, T)
    lanefn(a, V10, lambda l: rho(l)*16 + ((l >> 4) & 1)*4, T)
    lanefn(a, V11, lambda l: LDS_MEM + 3072 + l*16, T)
    lanefn(a, V12, lambda l: LDS_MEM + ((l >> 3) & 1)*512 + arow(l & 7, l >> 5)*16 + ((l >> 4) & 1)*8, T)
    a(f's_and_b32 s68, {SH}, 15'); a('s_min_u32 s68, s68, 9'); a('s_lshl_b32 s68, s68, 10'); a(f'v_add_u32 v{V12}, s68, v{V12}')
    lanefn(a, VXS, lambda l: ((l >> 3) & 1)*1024 + (l >> 4)*256 + (l & 7)*16, T)
    a(f's_mul_i32 s67, {SX}, 12288'); a(f's_add_u32 s67, s67, {PA_OFF}')
    a(f's_and_b32 s68, {SH}, 15'); a('s_lshl_b32 s76, s68, 9'); a('s_add_u32 s76, s76, s67')
    a('s_lshr_b32 s77, s68, 1'); a('s_lshl_b32 s77, s77, 8'); a('s_add_u32 s77, s77, s67')
    a('s_and_b32 s68, s68, 1'); a('s_lshl_b32 s68, s68, 3'); a('s_add_u32 s77, s77, s68'); a('s_add_u32 s77, s77, 8192')

def qk_init_clear(a):
    a(f'v_mov_b32 v{VA+16}, -1'); a(f'v_mov_b32 v{VA+17}, -1')
    a(f'buffer_store_dwordx2 v[{VA+16}:{VA+17}], v{V9}, {S_WS}, s76 offen sc1')
    a(f'buffer_store_dword v{VA+16}, v{V10}, {S_WS}, s77 offen sc1')

def mf(D, A, B, first): return f'v_mfma_f32_16x16x32_bf16 v[{D}:{D+3}], v[{A}:{A+3}], v[{B}:{B+3}], ' + ('0' if first else f'v[{D}:{D+3}]')

def stream_head(sd, w, order, AP, opt, rest):
    g = opt.get('gb1', 3)
    sd.put(g, ('wait', 'GW')); sd.put(g, 's_barrier')
    for kb in order:
        if kb not in OWN[w]:
            sd.lds(g, a_read(kb, AP[kb]), True); g += 1
    return g

def qk_loop(a, w, sc, opt):
    VZ = VTMP + 15
    lg = Trk(a, 'lgkmcnt', 15)
    ltop, lent, lfin = a.label('Lqk'), a.label('Lqkent'), a.label('Lqkfin')
    QEX = LDS_EX - LDS_MEM
    SACC, SM = VTMP, VTMP + 4
    QO = QORD[w]
    AP = apos(w, QO)
    seq = [(kb, t) for kb in QO[:6] for t in range(3)] + [(kb, t) for t in range(3) for kb in QO[6:]]
    first = [(xfrag(kb, t, 0)[0], VACC0 + 4*t, AP[kb], xfrag(kb, t, 0)[1], [f'A{kb}']) for kb, t in seq]
    second = []
    n = 0
    SX0 = opt.get('sx0', 19); QS = opt.get('qscale', 0)
    for t in range(3):
        for kb in KORD:
            second.append((xfrag(kb, t, 1)[0], VACC1 + 4*t, AP[kb], xfrag(kb, t, 1)[1], []))
            if w >= 2 and n == SX0:
                for kk in range(6): second.append(('raw', 0, 0, mf(SACC, VKX + 4*kk, VQF + 4*kk, kk == 0), [f'Q{kk}']))
            if w == 0 and n == 29:
                for kk in range(4): second.append(('raw', 0, 0, mf(SM, VKX + 4*kk, VQF + 4*kk, kk == 0), [f'K{kk}', f'Q{kk}']))
            n += 1
    items, ldsq, k2 = build_stream(first, second)
    sd = Sides()
    stream_head(sd, w, QO, AP, opt, None)
    sd.put(opt.get('gb1', 3), lambda o_=opt: stamp(a, o_, 1))
    pub_rd = [('lds', f'ds_read_b64 v[{VKX+2*x}:{VKX+2*x+1}], v{V12} offset:{x*256}', 'PUB') for x in range(2)]
    pub_st = f'buffer_store_dwordx4 v[{VKX}:{VKX+3}], v{VXS}, {S_WS}, s44 offen sc1'
    if w == 1:
        sd.put(0, f'buffer_store_dword v{VT1}, v{VT2}, {S_WS}, s46 offen sc1')
        for r in pub_rd: sd.lds(18, r)
        sd.put(25, ('wait', 'PUB')); sd.put(opt.get('pubg', 25), pub_st)
        for j in range(6):
            sd.put(1 + 3*j, f'buffer_load_dword v{VKX+4+j}, v{V9}, {S_WS}, s{[45, 48, 49][j >> 1]} offen sc1')
            if j % 2 == 0: sd.put(2 + 3*j, f's_add_u32 s{[45, 48, 49][j >> 1]}, s{[45, 48, 49][j >> 1]}, 8192')
    if w == 0:
        sd.put(opt.get('kt0', 1), f'buffer_load_dword v{VTMP+13}, v{V12}, {S_WS}, s45 offen sc1')
        sd.put(opt.get('kt0', 1) + 4, f'buffer_load_dword v{VTMP+13}, v{VXS}, {S_WS}, s45 offen sc1')
        sd.put(9, f'buffer_store_dword v{VT1}, v{VT0}, {S_WS}, s55 offen sc1')
        if opt.get('async', 0): sd.put(19, f'buffer_load_dword v{VTMP+14}, v{VT2}, {S_WS}, s54 offen sc1')
    if w == 1 and opt.get('async', 0): sd.put(opt.get('w1p', 21), f'buffer_load_dword v{V11}, v{V10}, {S_WS}, s54 offen sc1')
    wr = lambda acc, t, off, tag: ('lds', f'ds_write_b32 v{VXW}, v{acc} offset:{off + t*1024}', tag)
    for t in range(3): gq = sd.valu([23, 27, 31][t], post(VACC0 + 4*t, VACC0 + 4*t, 's52' if QS else None) + [wr(VACC0 + 4*t, t, QEX, 'QW')], opt.get('qper', [1, 1, 2])[t])
    gb = gq + opt.get('gba', [3, 1, 4, 4])[w]
    if w != 1: sd.put(gb, f's_waitcnt vmcnt({0 if w else 3 + opt.get("async", 0)})')
    sd.put(gb, ('wait', 'QW')); sd.put(gb, 's_barrier')
    if opt.get('diag'): sd.put(gb, lambda: stamp(a, opt, 0))
    if w >= 2:
        for i, r in enumerate(dense_reads(VQF, QEX, 'Q')): sd.lds(gb + (i * opt.get('qspan', 10)) // 12, r, True)
    gk = 0
    for t in range(2): gk = sd.valu(k2[10*t + 9] + 2, post(VACC1 + 4*t, VACC1 + 4*t) + [wr(VACC1 + 4*t, t, 0, 'KW')])
    gB = gk + opt.get('gbb', [1, 1, 3, 3])[w]
    sd.put(gB, ('wait', 'KW')); sd.put(gB, 's_barrier')
    assert gB < len(items)
    if w == 0:
        for i, r in enumerate(dense_reads(VKX, 0, 'K', range(4))): sd.lds(gB + i // opt.get('krd', 3), r, True)
    sd.valu(k2[29] + 2, post(VACC1 + 8, VACC1 + 8, None, w > 0) + [wr(VACC1 + 8, 2, 0, 'KW')])
    E0, T, X0 = VTMP + 8, VTMP + 12, VTMP + 4
    ool4 = None
    if w >= 2:
        lsx, lsxb = a.label('Lsx'), a.label('Lsxb')
        p0 = [f'v_cndmask_b32 v{X0}, v{SACC}, v{SACC+2}, {SMASK8}', f'v_cndmask_b32 v{X0+1}, v{SACC+1}, v{SACC+3}, {SMASK8}',
              f'v_exp_f32 v{E0}, v{X0}', f'v_exp_f32 v{E0+1}, v{X0+1}',
              f'v_max_f32 v{T}, |v{X0}|, |v{X0+1}|', f'v_add_f32 v{E0+3}, v{E0}, v{E0+1}', f'v_cmp_lt_f32 vcc, s79, v{T}']
        if not QS: p0[2:2] = [f'v_mul_f32 v{X0}, s52, v{X0}', f'v_mul_f32 v{X0+1}, s52, v{X0+1}']
        np2 = opt.get('np2', 2 if QS else 4)
        sd.valu(k2[SX0 + 2], p0[:np2], 2)
        g = sd.valu(sd.nxt + 1, p0[np2:])
        sd.put(g, lambda: (a(f's_cbranch_vccnz {lsx}'), a(f'{lsxb}:')))
        sd.lds(g, ('lds', f'ds_write_b128 v{V11}, v[{E0}:{E0+3}] offset:{(w-2)*1024}', 'EW'), True)
        def ool4():
            m = E0 + 2
            a(f'{lsx}:')
            a(f'v_max_f32 v{m}, v{X0}, v{X0+1}'); a(f'v_max_f32_dpp v{m}, v{m}, v{m} {DPP8}')
            for s_ in allred('v_max_f32', m, T): a(s_)
            for i in range(2): a(f'v_sub_f32 v{E0+i}, v{X0+i}, v{m}')
            for i in range(2): a(f'v_exp_f32 v{E0+i}, v{E0+i}')
            a(f'v_add_f32 v{E0+3}, v{E0}, v{E0+1}')
            a(f's_branch {lsxb}')
        sd.valu(5, [f'v_mov_b32 v{E0+2}, 0'])
    sd.refills(ldsq)
    if w == 0:
        for i, r in enumerate(dense_reads(VQF, QEX, 'Q')):
            g = gb
            while g in sd.busy and g < gB - 1: g += 1
            sd.lds(g if g < gB - 1 else gB - 2 - (i & 3), r, True)
    if opt.get('dq'):
        for i_, g_ in zip((0, 6, 7, 3, 4), opt['dq']): sd.put(g_, lambda i_=i_: stamp(a, dict(stamps=1, cyc=1), i_))
        opt = {k_: v_ for k_, v_ in opt.items() if k_ != 'stamps'}; opt['dq1'] = 1

    def top():
        preload_b(a, lg, ldsq)
        for r in range(0, 24, 2): a(f'v_mov_b64 v[{VACC0+r}:{VACC0+r+1}], 0')
        if w == 0: a(f's_bitcmp1_b32 {SSTEP}, 0'); a('s_cselect_b32 s78, -1.0, 1.0'); cprog_late(a, 's55', VT0, VT1)
        if w == 1:
            a(f'v_mov_b32 v{VT1}, {SSTEP}')
            a(f's_lshr_b32 s67, {SSTEP}, 2'); a('s_mul_i32 s44, s67, 40960'); a(f's_bfe_u32 s67, {SSTEP}, 0x10001'); a('s_mul_i32 s67, s67, 20480')
            a('s_add_u32 s44, s44, s67'); a(f's_and_b32 s67, {SSTEP}, 1'); a('s_lshl_b32 s67, s67, 7'); a('s_add_u32 s44, s44, s67'); a('s_add_u32 s44, s44, s47')
    def prefetch():
        ls = a.label('Lnp')
        if w <= 1: a(f's_mov_b32 s45, {OOB}')
        a(f's_cmp_ge_u32 s82, {1 if opt.get("nopf") else 63}'); a(f's_cbranch_scc1 {ls}')
        if w >= 2:
            lk = a.label('Lk')
            a(f's_cmp_ge_u32 s82, {opt.get("self", SELF)}'); a(f's_cbranch_scc1 {lk}')
            check_flags(a, opt, 'K')
            a(f'{lk}:')
            load_frags6(a, VKX, KF_OFF, w - 2)
        elif w == 0:
            check_flags(a, opt, 'K', ls, (VTMP + 14, 2) if opt.get('async', 0) else None)
            a(f's_lshl_b32 s45, s82, 5'); a(f's_add_u32 s45, s45, {SH}'); a('s_mul_i32 s45, s45, 12288'); a(f's_add_u32 s45, s45, {KF_OFF}')
        elif not opt.get('notouch'):
            check_flags(a, opt, 'Y16', ls, (V11, 1 if opt.get('w1p', 21) < opt.get('pubg', 25) else 0) if opt.get('async', 0) else None)
            a(f's_mul_i32 s45, s82, {40*40960}'); a('s_add_u32 s45, s45, s50')
        a(f'{ls}:')
        if w <= 1 and opt.get('async', 0):
            a(f's_sub_u32 s61, s82, {LEAD-4-1}'); a('s_max_i32 s61, s61, 0'); a('s_lshr_b32 s61, s61, 2'); a('s_add_u32 s61, s61, s82'); a('s_add_u32 s61, s61, 1')
            a(f's_cmp_gt_u32 {SPC}, s61'); a(f's_cselect_b32 s54, {OOB}, s81')
        if w == 1:
            a(f's_add_u32 s48, s45, {16*40960}'); a(f's_add_u32 s49, s45, {32*40960}'); a(f's_bitcmp1_b32 {SH}, 3'); a(f's_cselect_b32 s49, {OOB}, s49')
    a(f's_mov_b32 {SSTEP}, 0'); a(f's_mov_b32 s52, {f2u(SC):#x}'); a('s_mov_b32 s53, s52'); a(f's_mov_b32 s79, {f2u(opt.get("safe", 60.0)):#x}')
    if w != 1: a(f's_mul_i32 s81, {SH}, 384'); a(f's_add_u32 s81, s81, {PRGX_OFF + 96*128}')
    if w >= 2: a('s_mov_b32 s82, 0'); prefetch()
    if w == 0:
        a(f's_mov_b32 s45, {OOB}'); a(f'v_lshlrev_b32 v{V12}, 7, v0'); a(f'v_add_u32 v{VXS}, 8192, v{V12}'); a(f'v_min_u32 v{VXS}, 12160, v{VXS}')
        a(f'v_and_b32 v{VT2}, 15, v0'); a(f'v_min_u32 v{VT2}, 2, v{VT2}'); a(f'v_lshlrev_b32 v{VT2}, 7, v{VT2}')
    if w == 1:
        a(f'v_lshlrev_b32 v{V9}, 7, v0'); a(f'v_and_b32 v{V10}, 15, v0'); a(f'v_lshlrev_b32 v{V10}, 7, v{V10}')
        a(f'v_cmp_eq_u32 vcc, 0, v0'); a(f'v_mov_b32 v{VT2}, 0x40000000'); a(f'v_cndmask_b32 v{VT2}, v{VT2}, 0, vcc')
        a(f's_lshl_b32 s81, {SX}, 11'); a(f's_bfe_u32 s67, {SH}, 0x20002'); a(f's_mul_i32 s67, s67, {40*128}'); a('s_add_u32 s81, s81, s67'); a(f's_add_u32 s81, s81, {PRGY_OFF}')
        a(f's_and_b32 s50, {SH}, 15'); a('s_mul_i32 s50, s50, 40960'); a(f's_lshl_b32 s67, {SX}, 14'); a('s_add_u32 s50, s50, s67'); a(f's_add_u32 s50, s50, {VOF_OFF}')
        a(f's_lshl_b32 s46, {SH}, 7'); a(f's_add_u32 s46, s46, {MPRG_OFF}'); a(f's_lshl_b32 s47, {SH}, 11'); a(f's_add_u32 s47, s47, {XN_OFF + 64*40960}')
        a(f's_cmp_ge_u32 {SH}, 10'); a(f's_cselect_b32 s46, {OOB}, s46'); a(f's_cselect_b32 s47, {OOB}, s47')
        for r in (45, 48, 49): a(f's_mov_b32 s{r}, {OOB}')
    if w <= 1: a('s_mov_b32 s54, s81')
    top()
    for kb in OWN[w]: a(a_read(kb, AP[kb])[1])
    a('s_waitcnt lgkmcnt(0)')
    a(f's_branch {lent}')
    a(f'{ltop}:')
    lg.reset()
    a('s_barrier')
    a(f's_add_u32 s82, {SSTEP}, {[1, opt.get("tahead", 2) - 1, 0, 0][w]}'); prefetch()
    top()
    gather_setup(a)
    qs = opt.get('qsleep', 12) - (opt.get('qsk', 2) if w >= 2 else 0)
    if qs > 0: a(f's_sleep {qs}')
    if opt.get('qdet', 0): a(f'v_and_b32 v{VZ}, {(8 if NCH[w] == 2 else 16) - 1}, v0'); a(f'v_min_u32 v{VZ}, {4*NCH[w]-1}, v{VZ}'); a(f'v_lshlrev_b32 v{VZ}, 8, v{VZ}')
    else: a(f'v_mov_b32 v{VZ}, 0')
    a('s_waitcnt lgkmcnt(0)')
    if opt.get('mg', 1): ool = gather_m(a, NCH[w], VTMP, VQF, VTMP + 12, opt, (0, 6, 7), VZ if opt.get('qd', 0) else None, 1, 0, opt.get('spec', 0), opt.get('rbq', 0), opt.get('lrq', 1))
    else: ool = gather(a, NCH[w], VTMP, {k: v for k, v in opt.items() if k != 'stamps'} if opt.get('diag') else opt, (0, 6, 7), opt.get('qrs', 0), VQF if opt.get('qj', 1) else None, VZ if opt.get('qj', 1) else None)
    a(f'{lent}:')
    lg.reset(); lg.issue('GW')
    left = [x_ for g_ in sorted(sd.side) if g_ >= len(items) for x_ in sd.side[g_]]
    merge(a, lg, items, sd.side)
    for x_ in left: merge(a, lg, [], {-1: [x_]})
    if opt.get('dq1'): stamp(a, dict(stamps=1, cyc=1), 2)
    stamp(a, opt, 2)
    EA, EB = VB, VB + 4
    U, LM, F0, F1, LS = VB + 8, VB + 9, VB + 10, VB + 11, VB + 12
    redl = [f'v_add_f32_dpp v{LS}, v{LS}, v{LS} {DPP8}', f'v_mov_b32 v{T}, v{LS}', f'v_permlane16_swap_b32 v{LS}, v{T}', f'v_add_f32 v{LS}, v{LS}, v{T}',
            f'v_mov_b32 v{T}, v{LS}', f'v_permlane32_swap_b32 v{LS}, v{T}', f'v_add_f32 v{LS}, v{LS}, v{T}', f'v_mul_f32 v{LS}, s78, v{LS}']
    lg.all(); a('s_barrier')
    if opt.get('diag'): stamp(a, opt, 6)
    ool3 = None
    if w == 0:
        lslow, lback = a.label('Lsm'), a.label('Lsb')
        for r in dense_reads(VKX, 0, 'K', range(4, 6)): a(r[1]); lg.issue(r[2])
        a(f'ds_read_b128 v[{EA}:{EA+3}], v{V11}'); lg.issue('E'); a(f'ds_read_b128 v[{EB}:{EB+3}], v{V11} offset:1024'); lg.issue('E')
        lkm, lkb = a.label('Lkm'), a.label('Lkb')
        a(f's_cmp_eq_u32 {SSTEP}, 63'); a(f's_cbranch_scc1 {lkm}')
        for kk in range(4, 6):
            lg.wait(f'K{kk}'); a(mf(SM, VKX + 4*kk, VQF + 4*kk, False))
        lg.wait('E')
        for s_ in [f'v_add_f32 v{LS}, v{EA+3}, v{EB+3}', f'v_max_f32 v{U}, |v{EA+2}|, |v{EB+2}|', f'v_mul_f32 v{U}, 0x71800000, v{U}', redl[0], redl[1]]: a(s_)
        stamp(a, opt, 3)
        T2, PO = VB + 13, VB + 16
        a(f'v_cndmask_b32 v{SM}, v{SM}, v{SM+2}, {SMASK8}'); a(f'v_cndmask_b32 v{SM+1}, v{SM+1}, v{SM+3}, {SMASK8}')
        if not QS: a(f'v_mul_f32 v{SM}, s52, v{SM}'); a(f'v_mul_f32 v{SM+1}, s52, v{SM+1}')
        a(f'v_exp_f32 v{SM+2}, v{SM}'); a(f'v_exp_f32 v{SM+3}, v{SM+1}')
        a(redl[2]); a(f'v_max3_f32 v{U}, |v{SM}|, |v{SM+1}|, v{U}'); a(redl[3])
        a(f'v_add_f32 v{LM}, v{SM+2}, v{SM+3}')
        a(redl[4])
        a(f'v_cmp_lt_f32 vcc, s79, v{U}')
        def fin(first):
            a(f'v_add_f32_dpp v{LM}, v{LM}, v{LM} {DPP8}')
            if first: a(redl[5])
            a(f'v_mov_b32 v{T2}, v{LM}')
            if first: a(redl[6]); a(redl[7])
            a(f'v_permlane16_swap_b32 v{LM}, v{T2}'); a(f'v_add_f32 v{LM}, v{LM}, v{T2}')
            a(f'v_fma_f32 v{LM}, v{LM}, s78, v{LS}')
            a(f'v_rcp_f32 v{LM}, v{LM}')
            a(f'v_pk_mul_f32 v[{PO}:{PO+1}], v[{EA}:{EA+1}], v[{LM-1}:{LM}] op_sel:[0,1]'); a(f'v_pk_mul_f32 v[{PO+2}:{PO+3}], v[{EB}:{EB+1}], v[{LM-1}:{LM}] op_sel:[0,1]')
            a(f'v_cvt_pk_bf16_f32 v{PO}, v{PO}, v{PO+1}'); a(f'v_cvt_pk_bf16_f32 v{PO+1}, v{PO+2}, v{PO+3}')
        fin(True)
        a(f's_cbranch_vccnz {lslow}')
        a(f'{lback}:')
        a(f'buffer_store_dwordx2 v[{PO}:{PO+1}], v{V9}, {S_WS}, s76 offen {sc}')
        a(f'v_pk_mul_f32 v[{SM+2}:{SM+3}], v[{SM+2}:{SM+3}], v[{LM-1}:{LM}] op_sel:[0,1]')
        a(f'v_cvt_pk_bf16_f32 v{SM}, v{SM+2}, v{SM+3}')
        a(f'buffer_store_dword v{SM}, v{V10}, {S_WS}, s77 offen {sc}')
        stamp(a, opt, 4)
        if opt.get('diagp'): a('s_waitcnt vmcnt(0)')
        a(f's_cmp_ge_u32 {SSTEP}, {4*NMB}'); a(f's_cbranch_scc1 {lkm}')
        a(f'{lkb}:')
        def ool3():
            a(f'{lkm}:')
            a(f's_mul_i32 s72, {SH}, 12288'); a(f's_bfe_u32 s67, {SSTEP}, 0x10001'); a('s_mul_i32 s67, s67, 6144'); a('s_add_u32 s72, s72, s67')
            a(f's_lshr_b32 s67, {SSTEP}, 2'); a(f's_mul_i32 s67, s67, {32*12288}'); a('s_add_u32 s72, s72, s67')
            a(f's_add_u32 s72, s72, {KF_OFF + 64*32*12288}'); a('s_add_u32 s73, s72, 4096')
            a(f's_bitcmp1_b32 {SSTEP}, 0'); a('s_cselect_b32 s74, 8, 0'); a('s_lshl_b32 s74, 0x00ff00ff, s74'); a('s_mov_b32 exec_lo, s74'); a('s_mov_b32 exec_hi, s74')
            a('s_waitcnt lgkmcnt(0)')
            for kk in range(6): a(f'buffer_store_dwordx4 v[{VKX+4*kk}:{VKX+4*kk+3}], v{VL16}, {S_WS}, s{72 + (kk >> 2)} offen offset:{(kk & 3)*1024} sc1')
            a('s_mov_b64 exec, -1')
            a(f's_cmp_lt_u32 {SSTEP}, 63'); a(f's_cbranch_scc1 {lkb}')
            cprog(a)
            a('s_waitcnt vmcnt(0)'); a('s_endpgm')
            a(f'{lslow}:')
            a(f'v_max_f32 v{U}, v{SM}, v{SM+1}'); a(f'v_max_f32_dpp v{U}, v{U}, v{U} {DPP8}')
            for s_ in allred('v_max_f32', U, T, (16,)): a(s_)
            a(f'v_max3_f32 v{U}, v{U}, v{EA+2}, v{EB+2}')
            a(f'v_sub_f32 v{SM}, v{SM}, v{U}'); a(f'v_sub_f32 v{SM+1}, v{SM+1}, v{U}'); a(f'v_sub_f32 v{F0}, v{EA+2}, v{U}'); a(f'v_sub_f32 v{F1}, v{EB+2}, v{U}')
            a(f'v_exp_f32 v{SM+2}, v{SM}'); a(f'v_exp_f32 v{SM+3}, v{SM+1}'); a(f'v_exp_f32 v{F0}, v{F0}'); a(f'v_exp_f32 v{F1}, v{F1}')
            a(f'v_mul_f32 v{LS}, v{EA+3}, v{F0}'); a(f'v_fmac_f32 v{LS}, v{EB+3}, v{F1}')
            for s_ in redl: a(s_)
            for i in range(2): a(f'v_mul_f32 v{EA+i}, v{EA+i}, v{F0}'); a(f'v_mul_f32 v{EB+i}, v{EB+i}, v{F1}')
            a(f'v_add_f32 v{LM}, v{SM+2}, v{SM+3}')
            fin(False)
            a(f's_branch {lback}')
    if opt.get('dq1'): opt = dict(opt, stamps=1)
    stamp(a, opt, 5)
    stamp_flush(a, opt, 8)
    a(f's_add_u32 {SSTEP}, {SSTEP}, 1'); a(f's_cmp_lt_u32 {SSTEP}, 64'); a(f's_cbranch_scc1 {ltop}')
    a('s_waitcnt vmcnt(0)'); a('s_endpgm')
    ool()
    if ool3: ool3()
    if ool4: ool4()

def vo_setup(a, opt):
    common_addr(a)
    T = VTMP
    lanefn(a, VXW, lambda l: LDS_EX + tile_pat(l), T, 256)
    a(f'v_and_b32 v{T}, 1, v0'); a(f'v_cmp_ne_u32 vcc, 0, v{T}'); a(f'v_mov_b32 v{T}, 0x05040100'); a(f'v_mov_b32 v{T+1}, 0x03020706')
    a(f'v_cndmask_b32 v{VXS}, v{T}, v{T+1}, vcc')
    lanefn(a, V9, lambda l: ((l >> 4) & 1)*1024 + (l & 15)*16 + (l >> 5)*8, T, 256)
    lanefn(a, V10, lambda l: (l >> 4)*10240 + (l & 15)*16, T)
    lanefn(a, V11, lambda l: (l >> 4)*1024 + (l & 15)*16, T, 256)
    lanefn(a, V12, tile_pat, T)
    a(f's_and_b32 {SDT}, {SH}, 15'); a(f's_lshl_b32 s67, {SWV}, 4'); a(f's_add_u32 {SDT}, {SDT}, s67')
    a(f's_lshl_b32 s81, {SX}, 11'); a(f's_bfe_u32 s67, {SDT}, 0x20002'); a(f's_mul_i32 s67, s67, {40*128}'); a('s_add_u32 s81, s81, s67'); a(f's_add_u32 s81, s81, {PRGY_OFF}')
    a(f's_mul_i32 s44, {SH}, 10240'); a(f's_add_u32 s44, s44, {VOMR_OFF}'); a('s_add_u32 s45, s44, 4096'); a('s_add_u32 s46, s44, 8192')
    a(f's_mul_i32 s72, {SX}, {16*10240}'); a(f's_lshl_b32 s68, {SDT}, 8'); a('s_add_u32 s72, s72, s68'); a(f's_add_u32 s72, s72, {VOMR_OFF}')
    a('s_add_u32 s73, s72, 40960'); a('s_add_u32 s74, s73, 40960'); a('s_add_u32 s75, s74, 40960')
    a(f's_mul_i32 s49, {SX}, 12288'); a(f's_add_u32 s49, s49, {PA_OFF}'); a(f's_add_u32 s76, s49, {SCHK}')
    a(f's_mul_i32 s47, {SDT}, 40960'); a(f's_lshl_b32 s67, {SX}, 14'); a('s_add_u32 s47, s47, s67'); a(f's_add_u32 s47, s47, {VOF_OFF}')

def vom_store1(src, k, base, sc):
    if k < 2: return f'buffer_store_dwordx4 v[{src}:{src+3}], v{V11}, {S_WS}, {base[k]} offen {sc}'
    return f'buffer_store_dwordx2 v[{src}:{src+1}], v{V9}, {S_WS}, {base[2]} offen {sc}'
def memp_off(a, dst, add, dt=SDT):
    a(f's_add_u32 s67, {SSTEP}, {add}'); a('s_and_b32 s67, s67, 3'); a('s_lshl_b32 s67, s67, 1'); a(f's_lshl_b32 s{dst+1}, s67, 15'); a(f's_add_u32 s67, s67, {SX}')
    a(f's_mul_i32 s{dst}, s67, 10240'); a(f's_lshl_b32 s67, {dt}, 8')
    a(f's_add_u32 s{dst}, s{dst}, s67'); a(f's_add_u32 s{dst+1}, s{dst+1}, s67'); a(f's_add_u32 s{dst}, s{dst}, {MEML_OFF}')
    a(f's_add_u32 s{dst+1}, s{dst+1}, {SMR}'); a(f's_cmp_ge_u32 {dt}, 24'); a('s_cselect_b32 s67, 26624, 0'); a(f's_add_u32 s{dst+1}, s{dst+1}, s67')

def vo_init_clear(a):
    for r in range(4): a(f'v_mov_b32 v{VA+16+r}, -1')
    for k in range(3): a(vom_store1(VA + 16, k, ('s44', 's45', 's46'), 'sc1'))
    for sl in range(4):
        memp_off(a, 32, sl)
        a(f's_cmp_ge_u32 {SDT}, 40'); a(f's_cselect_b32 s32, {OOB}, s32'); a(f's_cselect_b32 s33, {OOB}, s33')
        a(f'buffer_store_dword v{VA+16}, v{V12}, {S_WS}, s32 offen sc1')
        for p in range(4):
            if p: a('s_add_u32 s33, s33, 8192')
            a(f'buffer_store_dword v{VA+16}, v{V12}, {S_WS}, s33 offen sc1')

VORD = [[0, 1, 2, 3, 4, 5, 6, 7, 9, 8], [3, 4, 5, 0, 1, 2, 6, 7, 9, 8], [6, 7, 2, 0, 1, 5, 3, 4, 9, 8], [8, 9, 0, 1, 3, 2, 4, 6, 5, 7]]
OORD = [0, 1, 2, 3, 4, 5, 6, 7, 8, 9]
OORD0 = [0, 2, 1, 3, 4, 6, 5, 7, 8, 9]
def pairup(acc, tmp):
    return [f'v_mov_b32_dpp v{tmp}, v{acc} quad_perm:[1,0,3,2] row_mask:0xf bank_mask:0xf', f'v_perm_b32 v{acc}, v{tmp}, v{acc}, v{VXS}']

def vo_loop(a, w, duty, sc, opt):
    n = NCH[w]; VO = VORD[w]
    lg = Trk(a, 'lgkmcnt', 15)
    ltop, lent = a.label('Lvo'), a.label('Lvoent')
    VV = VACC1; PK = VACC0
    EXO = LDS_EX - LDS_MEM
    AP = apos(w, VO)
    OA = {t: (VOX + 44 + 4*i if i < 5 else AP[VO[i - 5]]) for i, t in enumerate(OORD)}
    seq = [(kb, t) for kb in VO[:3] for t in range(3)] + [(kb, t) for t in range(3) for kb in VO[3:]]
    first = [(xfrag(kb, t, 0)[0], VACC0 + 4*t, AP[kb], xfrag(kb, t, 0)[1], [f'A{kb}']) for kb, t in seq]
    oseq = [(t, 0) for t in OORD0] + [(t, 1) for t in OORD[:3]]
    for i in range(10): oseq += [(OORD[i], 2)] + ([(OORD[i+3], 1)] if i + 3 < 10 else [])
    if opt.get('oseq', 1):
        oseq = [(0, 0), (2, 0), (1, 0), (3, 0), (4, 0), (6, 0), (0, 1), (2, 1), (1, 1), (3, 1), (5, 0), (7, 0), (0, 2), (1, 2), (2, 2), (3, 2),
                (4, 1), (5, 1), (4, 2), (6, 1), (5, 2), (7, 1), (6, 2), (8, 0), (7, 2), (9, 0), (8, 1), (9, 1), (8, 2), (9, 2)]
    second = [(yfrag(tile, kb)[0], OA[tile], VV + 4*kb, yfrag(tile, kb)[1], [f'V{kb}']) for tile, kb in oseq]
    fin = {t: 30 + oseq.index((t, 2)) for t in OORD}
    items, ldsq, k2 = build_stream(first, second)
    sd = Sides()
    stream_head(sd, w, VO, AP, opt, None)
    sd.put(opt.get('gb1', 3), lambda: stamp(a, opt, 1))
    vox = lambda hh: f'buffer_load_dwordx4 v[{VOX+4*hh}:{VOX+4*hh+3}], v{VL16}, {S_WS}, s83 offen offset:{(hh & 3)*1024} {STREAM[0]}'
    vsp = opt.get('vsp', 3)
    NIN = opt.get('nin', 16)
    NE = opt.get('ne', 0)
    if duty:
        for hh in range(NE, min(NIN, 11)):
            g = opt.get('vs0', 1) + (hh - NE) * vsp
            sd.put(g, vox(hh))
            if hh & 3 == 3: sd.put(g + 1, 's_add_u32 s83, s83, 4096')
    if w == 3:
        sd.put(26, f'buffer_store_dword v{VT1}, v{VT0}, {S_WS}, s48 offen sc1')
        for i in range(6): sd.put(opt.get('cl0', 1) + 4*i, f'buffer_store_dword v{VT2}, v{V12}, {S_WS}, s{52 + i} offen {"sc1" if i & 1 else sc}')
    zer = [f'v_mov_b64 v[{AP[VO[r >> 1]] + 2*(r & 1)}:{AP[VO[r >> 1]] + 2*(r & 1) + 1}], 0' for r in range(10)]
    for r in range(6): sd.valu(3*(r >> 1) + 3 + (r & 1), [zer[r]])
    wr = lambda acc, t: ('lds', f'ds_write_b32 v{VXW}, v{acc} offset:{t*1024}', f'VW{t}')
    vpost = lambda t: post(VACC0 + 4*t, VACC0 + 4*t) + [None] + pairup(VACC0 + 4*t, VACC0 + 4*t + 1) + [wr(VACC0 + 4*t, t)]
    vrd = lambda kb: ('lds', f'ds_read_b128 v[{VV+4*kb}:{VV+4*kb+3}], v{VAR} offset:{EXO + kb*1024}', f'V{kb}')
    for t, g0, per in ((0, 17, 1), (1, 24, 1), (2, 31, 2)):
        g = sd.valu(g0, vpost(t), per) + 2
        sd.put(g, ('wait', f'VW{t}')); sd.put(g, 's_barrier'); sd.lds(g, vrd(t), True)
    sd.valu(27, zer[6:])
    if opt.get('diag'): sd.put(g, lambda: stamp(a, opt, 0)); sd.put(29, lambda: stamp(a, opt, 5)); sd.put(42, lambda: stamp(a, opt, 7))
    base = ('s44', 's45', 's46')
    tail = []
    ops = []
    for q in range(3):
        b = PK + 4*q; ts_ = list(range(4*q, min(4*q + 4, 10)))
        for t in ts_:
            p_ = post(OA[t], PK + t, None, t >= 8)
            ops += [(f'a{t}{j}', x_, [], fin[t] + 2) for j, x_ in enumerate(p_[:-1])] + [(f'c{t}', p_[-1], [f'a{t}{j}' for j in range(len(p_) - 1)], 0)]
            if duty and 11 + t < NIN:
                if t == 1: ops.append(('s', 's_add_u32 s83, s83, 4096', ['x0'], 0))
                ops.append((f'x{t}', vox(11 + t), [f'c{t}'] + ([f'x{t-1}'] if t else []) + (['s'] if t == 1 else []), 0))
        ops.append((f'p{q}', f'v_permlane16_swap_b32 v{b}, v{b+1}', [f'c{ts_[0]}', f'c{ts_[1]}'], 0))
        last = [f'p{q}']
        if q < 2:
            ops += [(f'r{q}', f'v_permlane16_swap_b32 v{b+2}, v{b+3}', [f'c{ts_[2]}', f'c{ts_[3]}'], 0),
                    (f'u{q}', f'v_permlane32_swap_b32 v{b}, v{b+2}', [f'p{q}', f'r{q}'], 0), (f'w{q}', f'v_permlane32_swap_b32 v{b+1}, v{b+3}', [f'p{q}', f'r{q}'], 0)]
            last = [f'u{q}', f'w{q}']
        ops += [(f'b{q}', f'v_bfi_b32 v{b}, 1, {SSTEP}, v{b}', last[:1], 0), (f'st{q}', vom_store1(b, q, base, sc), last + [f'b{q}'], 0)]
    at = {}
    g = min(o[3] for o in ops if o[3])
    mem_at = set()
    while len(at) < len(ops):
        for nm, tx, dep, e in ops:
            if nm in at or g < e: continue
            sal = tx.startswith('s_')
            if not all(d in at and (at[d] < g or (at[d] == g and (sal or d == 's'))) for d in dep): continue
            if tx.startswith('v_'):
                if g < len(items) and sd.vbusy.get(g, 0) >= 2: continue
                sd.vbusy[g] = sd.vbusy.get(g, 0) + 1
            elif not sal:
                if g < len(items) and g in mem_at: continue
                mem_at.add(g)
            at[nm] = g; sd.put(g, tx)
        g += 1
    ex = []
    for g in sorted(g for g in sd.side if g >= len(items)): ex += sd.side.pop(g)
    tail = ex + tail
    sd.refills(ldsq)

    def top():
        preload_b(a, lg, ldsq)
        a(f's_bitcmp1_b32 {SSTEP}, 0'); a('s_cselect_b32 s50, 0x80008000, 0')
        if w == 3:
            cprog_late(a, 's48', VT0, VT1)
            a(f'v_mov_b32 v{VT2}, -1'); a(f's_and_b32 s35, {SH}, 15')
            for i in range(3):
                memp_off(a, 52 + 2*i, 2, 's35')
                if i < 2: a('s_add_u32 s35, s35, 16')
            a('s_cmp_ge_u32 s35, 40'); a(f's_cselect_b32 s56, {OOB}, s56'); a(f's_cselect_b32 s57, {OOB}, s57')
        if duty:
            memp_off(a, 77, 1)
            if opt.get('nopf'): a('s_mov_b32 s82, 0')
            else: a(f's_mov_b32 s82, {SSTEP}')
            a(f's_mul_i32 s83, s82, {40*40960}'); a('s_add_u32 s83, s83, s47'); a(f's_cmp_eq_u32 {SSTEP}, 63'); a(f's_cselect_b32 s83, {OOB}, s83')
        for r in range(0, 12, 2): a(f'v_mov_b64 v[{VACC0+r}:{VACC0+r+1}], 0')
        for r in range(0, 20, 2): a(f'v_mov_b64 v[{VOX+44+r}:{VOX+45+r}], 0')
        if duty:
            lk = a.label('Lk')
            a(f's_cmp_ge_u32 {SSTEP}, {64 if opt.get("notouch") else opt.get("self", SELF)}'); a(f's_cbranch_scc1 {lk}')
            check_flags(a, opt, 'Y16')
            a(f'{lk}:')
            for hh in range(NE):
                a(vox(hh))
                if hh & 3 == 3: a('s_add_u32 s83, s83, 4096')
    a(f's_mov_b32 {SSTEP}, 0'); a('s_mov_b32 s36, 0x03030303'); a('s_mov_b32 s37, s36')
    top()
    for kb in OWN[w]: a(a_read(kb, AP[kb])[1])
    a('s_waitcnt lgkmcnt(0)')
    a(f's_branch {lent}')
    a(f'{ltop}:')
    lg.reset()
    a('s_barrier')
    top()
    if opt.get('vsleep', 0): a(f's_sleep {opt.get("vsleep", 0)}')
    a('s_waitcnt lgkmcnt(0)')
    if opt.get('mg', 1): ool = gather_m(a, n, VACC1, VOX, VA + 36, {} if opt.get('diagv') else opt, (0, 5, 7), None, 1, 0, opt.get('spec', 0), opt.get('rbv', 0), opt.get('lrv', 1))
    else: ool = gather(a, n, VACC1, {k: v for k, v in opt.items() if k != 'stamps'} if opt.get('diag') else opt, (0, 0 if opt.get('diag2') else 5, 7), opt.get('vrs', 0), VA + 24 if opt.get('vj', 1) else None)
    a(f'{lent}:')
    lg.reset(); lg.issue('GW')
    merge(a, lg, items, sd.side)
    for s_ in tail:
        a(s_)
    stamp(a, opt, 3)
    lcp, lcb, lcf, lce = [a.label('Lc') for _ in range(4)]
    a(f's_cmp_eq_u32 {SSTEP}, 63'); a(f's_cbranch_scc1 {lcp}')
    def copy_check(): a(f's_cmp_ge_u32 {SSTEP}, {4*NMB}'); a(f's_cbranch_scc1 {lcp}'); a(f'{lcb}:')
    def ool5():
        a(f'{lcp}:')
        a(f's_lshl_b32 s52, {SSTEP}, 5'); a(f's_add_u32 s52, s52, {SH}'); a('s_mul_i32 s52, s52, 10240'); a(f's_add_u32 s52, s52, {VOM_OFF}')
        a('s_add_u32 s53, s52, 4096'); a('s_add_u32 s54, s52, 8192')
        for k in range(3): a(vom_store1(PK + 4*k, k, ('s52', 's53', 's54'), 'sc1'))
        a(f's_cmp_lt_u32 {SSTEP}, 63'); a(f's_cbranch_scc1 {lcb}')
        a('s_waitcnt vmcnt(0)'); a('s_barrier')
        if w == 3: cprog(a)
        a('s_waitcnt vmcnt(0)'); a('s_endpgm')
    ACC = VB + 28
    R = VB + 16
    def ldp():
        for c in range(n): a(f'buffer_load_dwordx4 v[{R+4*c}:{R+4*c+3}], v{VL16}, {S_WS}, s76 offen offset:{c*1024} sc1')
    lt, ltd, lp, ld = [a.label('Lp') for _ in range(4)]
    PT = VA
    def pwrite(c): a(f'ds_write_b128 v{VGW}, v[{R+4*c}:{R+4*c+3}] offset:{c*1024}')
    def pcheck_m(first):
        for c in range(n):
            b = R + 4*c
            if first: a(f's_waitcnt vmcnt({n - 1 - c})'); pwrite(c)
            a(f'v_bitop3_b32 v{PT+c}, v{b}, v{b+2}, s50 bitop3:0x7e')
            if w == 3 or not first: a(f'v_bitop3_b32 v{PT+3}, v{b+1}, v{b+3}, s50 bitop3:0x7e'); a(f'v_or_b32 v{PT+c}, v{PT+c}, v{PT+3}')
            a(f'v_cmp_gt_i32 {ML[c]}, 0, v{PT+c}')
        mask_or(a, ML[:n])
    MV = MR + ['s[30:31]']
    def ldv(ms=None):
        for q in range(4):
            if ms: a(f's_mov_b64 exec, {ms[q]}')
            a(f'buffer_load_dwordx4 v[{VB+4*q}:{VB+4*q+3}], v{V10}, {S_WS}, s{72+q} offen sc1')
        if ms: a('s_mov_b64 exec, -1')
    def vcheck():
        for q in range(4):
            if w < 2: a(f'v_bitop3_b32 v{PT+4+q}, v{VB+4*q}, {SSTEP}, 1 bitop3:0x28')
            else: a(f'v_bitop3_b32 v{PT+4+q}, v{VB+4*q}, v{VB+4*q+2}, {SSTEP} bitop3:0x7e'); a(f'v_and_b32 v{PT+4+q}, 1, v{PT+4+q}')
        for q in range(4): a(f'v_cmp_ne_u32 {MV[q]}, 0, v{PT+4+q}')
        mask_or(a, MV)
    if duty:
        for hh in range(NIN, 16):
            a(vox(hh))
            if hh & 3 == 3 and hh < 15: a('s_add_u32 s83, s83, 4096')
    if opt.get('diagv'): a('s_waitcnt vmcnt(0)'); stamp(a, opt, 5)
    gather_setup(a, 1)
    ts = opt.get('tsleep', 4) if duty else opt.get('nsleep', 9)
    if isinstance(ts, list): ts = ts[w]
    if ts: a(f's_sleep {ts}')
    SEP = opt.get('sep', 1)
    if duty and SEP:
        lv2 = a.label('Lp')
        if opt.get('diagv'): stamp(a, opt, 0)
        ldv()
        for r in range(4): a(f'v_mov_b32 v{ACC+r}, 0')
        a('s_waitcnt vmcnt(0)')
        if opt.get('diagv'): stamp(a, opt, 7)
        vcheck()
        a(f's_cbranch_scc1 {lv2}')
        stamp(a, opt, 2)
        if opt.get('psl', 1): a(f's_sleep {opt.get("psl", 1)}')
        ldp()
        a(f'{lv2}x:')
    elif duty:
        ldv()
        if opt.get('pat'): a(f's_sleep {opt["pat"] - ts - 1}')
        ldp()
        for r in range(4): a(f'v_mov_b32 v{ACC+r}, 0')
        a(f's_waitcnt vmcnt({n})'); vcheck()
        if not opt.get('novc'): a(f's_cbranch_scc1 {lt}')
        stamp(a, opt, 2)
    else: ldp()
    pcheck_m(True)
    a(f's_cbranch_scc1 {lp}')
    a(f'{ld}:')
    stamp(a, opt, 4)
    def ool2():
        PD = opt.get('pdep', 1) - 1; gap = opt.get('pgap', 2)
        ltb, lpb, lwr = [a.label('Lp') for _ in range(3)]
        if duty and SEP:
            a(f'{lv2}:')
            ldv(MV); ldp()
            a(f's_waitcnt vmcnt({n})'); vcheck()
            a(f's_cbranch_scc1 {lt}')
            stamp(a, opt, 2)
            a(f's_branch {lv2}x')
        if duty:
            a(f'{lt}:')
            a('s_waitcnt vmcnt(0)'); pcheck_m(False)
            for _ in range(PD): ldv(MV); ld_masked(a, n, R, 's76', ML); a(f's_sleep {gap}')
            a(f'{ltb}:')
            ldv(MV); ld_masked(a, n, R, 's76', ML)
            a(f's_waitcnt vmcnt({(4 + n)*PD})'); pcheck_m(False); a('s_cselect_b32 s51, 1, 0'); vcheck()
            a(f's_cbranch_scc0 {ltd}')
            budget_loop(a, ltb, ltd)
            a(f'{ltd}:')
            stamp(a, opt, 2)
            a('s_cmp_eq_u32 s51, 0'); a(f's_cbranch_scc1 {lwr}')
            if PD: a(f's_branch {lpb}')
        a(f'{lp}:')
        for _ in range(PD): ld_masked(a, n, R, 's76', ML); a(f's_sleep {gap}')
        a(f'{lpb}:')
        if opt.get('pback'): a(f's_sleep {opt["pback"]}')
        ld_masked(a, n, R, 's76', ML); a(f's_waitcnt vmcnt({n*PD})'); pcheck_m(False)
        a(f's_cbranch_scc0 {lwr}')
        budget_loop(a, lpb, lwr)
        a(f'{lwr}:')
        for c in range(n): pwrite(c)
        a(f's_branch {ld}')
    if not duty: a('s_waitcnt lgkmcnt(0)'); a('s_barrier'); a('s_waitcnt vmcnt(0)'); copy_check()
    if duty:
        bop = lambda pp: f'v[{VOX+8*pp}:{VOX+8*pp+7}]' if pp < 8 else f'v[{VB+8*(pp-8)}:{VB+8*(pp-8)+7}]'
        rest = [c for c in range(10) if c not in OWN[w]]
        a(smf(ACC, R, bop(OWN[w][0])))
        a('s_waitcnt lgkmcnt(0)'); a('s_barrier')
        for c in rest[:3]: a(f'ds_read_b128 v[{VA+4*c}:{VA+4*c+3}], v{VAR} offset:{c*1024}')
        k = 3
        for j in range(1, n):
            a(smf(ACC, R + 4*j, bop(OWN[w][j])))
            for c in rest[k:k+2]: a(f'ds_read_b128 v[{VA+4*c}:{VA+4*c+3}], v{VAR} offset:{c*1024}')
            k += 2
        for c in rest[k:]: a(f'ds_read_b128 v[{VA+4*c}:{VA+4*c+3}], v{VAR} offset:{c*1024}')
        for j, pp in enumerate(rest):
            if j == 0: a('s_waitcnt vmcnt(0)'); copy_check()
            a(f's_waitcnt lgkmcnt({len(rest)-1-j})')
            a(smf(ACC, VA + 4*pp, bop(pp)))
        for s_ in post(ACC, ACC, None, True): a(s_)
        a(f'v_xor_b32 v{ACC}, s50, v{ACC}')
        for s_ in pairup(ACC, ACC + 1): a(s_)
        order = [('s78', 'sc1'), ('s77', sc)] if opt.get('rfirst') else [('s77', sc), ('s78', 'sc1')]
        if opt.get('wide', 0):
            if opt['wide'] == 2: a(f'buffer_store_dword v{ACC}, v{V12}, {S_WS}, s77 offen {sc}'); order = [('s78', 'sc1')]
            for j in (1, 2, 3): a(f'v_mov_b32_dpp v{ACC+j}, v{ACC} row_shl:{2*j} row_mask:0xf bank_mask:0xf')
            a('s_mov_b64 exec, s[36:37]')
            for so, fl in order: a(f'buffer_store_dwordx4 v[{ACC}:{ACC+3}], v{V12}, {S_WS}, {so} offen {fl}')
            a('s_mov_b64 exec, -1')
        else:
            for so, fl in order: a(f'buffer_store_dword v{ACC}, v{V12}, {S_WS}, {so} offen {fl}')
        stamp(a, opt, 6)
        if opt.get('diagp'): a('s_waitcnt vmcnt(1)'); stamp(a, opt, 2); a('s_waitcnt vmcnt(0)'); stamp(a, opt, 3)
    stamp_flush(a, opt, 8)
    a(f's_add_u32 {SSTEP}, {SSTEP}, 1'); a(f's_branch {ltop}')
    ool(); ool2(); ool5()

def chain_main(a, opt):
    lvo = a.label('Lrole_vo')
    tstamp(a, opt, 0, (14, 15))
    STREAM[0] = opt.get('stream', 'sc1')
    a(f's_lshr_b32 {SX}, {SSLOT}, 5'); a(f's_and_b32 s67, {SSLOT}, 15'); a(f's_lshl_b32 {SH}, {SX}, 4'); a(f's_add_u32 {SH}, {SH}, s67')
    a(f's_mov_b32 {STMO}, {opt.get("tmo", 1 << 21)}'); a(f's_mov_b32 {SSTEP}, 0')
    srd(a, S_AUX, 's[38:39]', 8*640*2)
    a(f's_add_u32 {SMR}, s60, {MEMR_OFF + 0x7ffff}'); a(f's_and_b32 {SMR}, {SMR}, 0xfff80000'); a(f's_sub_u32 {SMR}, {SMR}, s60')
    a(f's_mul_i32 s58, {SWV}, 3072'); a(f's_lshl_b32 s67, {SWV}, 11'); a('s_add_u32 s67, s67, 28672'); a(f's_cmp_ge_u32 {SWV}, 2'); a('s_cselect_b32 s58, s67, s58')
    a(f's_mov_b32 {S_ONE0}, 0x00003f80'); a(f's_mov_b32 {S_ONE1}, 0x3f800000')
    a(f's_bitcmp1_b32 {SSLOT}, 4'); a(f's_cbranch_scc1 {lvo}')
    for role in ('qk', 'vo'):
        if role == 'vo': a(f'{lvo}:')
        if role == 'qk':
            srd(a, S_WA, 's[40:41]', 640*6144*2); srd(a, S_WB, 's[42:43]', 640*6144*2); qk_setup(a, opt)
        else:
            srd(a, S_WA, 's[44:45]', 640*6144*2); srd(a, S_WB, 's[46:47]', 640*6144*2); vo_setup(a, opt)
        l1, l2, l3 = a.label('Ls'), a.label('Ls'), a.label('Ls')
        a(f's_mov_b32 {SPC}, 0')
        a(f's_cmp_lg_u32 {SWV}, 0'); a(f's_cbranch_scc1 {l2}')
        mem0_load(a)
        a(f'{l2}:')
        def after_first(n, vm):
            if n == 0:
                a(f's_cmp_lg_u32 {SWV}, 0'); a(f's_cbranch_scc1 {l3}')
                mem0_write(a)
                a(f'{l3}:')
            if n == 1: rot_load(a, 172, 173); vm.issue('rot')
            if n == 13:
                rot_check(a, 172, 173, True)
                if role == 'vo':
                    vo_init_clear(a)
                    for _ in range(23): vm.issue('init')
                a(f's_cmp_lg_u32 {SWV}, 0'); a(f's_cbranch_scc1 {l1}')
                if role == 'qk': qk_init_clear(a)
                a(f's_lshl_b32 s67, 1, {SXCC}'); a(f'v_mov_b32 v{VT0}, s67'); a(f's_lshl_b32 s67, {SX}, 2'); a(f'v_mov_b32 v{VT1}, s67')
                a('s_mov_b64 exec, 1')
                a(f'buffer_atomic_or v{VT0}, v{VT1}, {S_DBG}, 0 offen sc1')
                a('s_mov_b64 exec, -1')
                a(f'{l1}:')
            assert 32 + opt.get('ldep', 6) + 1 <= 39
            if n == 32: a(f'v_lshlrev_b32 v173, 2, v0'); a(f'buffer_load_dword v172, v173, {S_DBG}, 0 offen sc1'); vm.issue('rdy')
            if n == 14 + opt.get('ldep', 6):
                l4 = a.label('Ls')
                a(f's_cmp_lg_u32 {SWV}, 0'); a(f's_cbranch_scc1 {l4}')
                a(f'v_mov_b32 v{VT0}, 1'); a(f'v_mov_b32 v{VT1}, {DBG_READY*4}')
                a('s_mov_b64 exec, 1')
                a(f'buffer_atomic_add v{VT0}, v{VT1}, {S_DBG}, 0 offen sc1')
                a('s_mov_b64 exec, -1')
                a(f'{l4}:')
        loader(a, role, after_first, opt.get('ldep', 6))
        tstamp(a, opt, 1, (14, 15))
        lp, ld, lslow = a.label('Lr'), a.label('Lrd'), a.label('Lslow')
        lc = a.label('Lrc')
        a(f'v_lshlrev_b32 v{VT1}, 2, v0'); a(f'v_mov_b32 v{VT0}, v172')
        a(f's_branch {lc}')
        a(f'{lp}:')
        a(f'buffer_load_dword v{VT0}, v{VT1}, {S_DBG}, 0 offen sc1'); a('s_waitcnt vmcnt(0)')
        a(f'{lc}:')
        a(f'v_readlane_b32 s67, v{VT0}, {DBG_READY}')
        a(f'v_readlane_b32 s68, v{VT0}, {DBG_VOTE}'); a(f's_cmp_lt_u32 s68, {NAREA*256}'); a('s_cselect_b32 s67, 0, s67')
        if not opt.get('noflags'):
            a(f'v_readlane_b32 s68, v{VT0}, {DBG_AREA}'); a(f's_cmp_lt_u32 s68, {NAREA}'); a('s_cselect_b32 s67, 0, s67')
        a(f's_cmp_eq_u32 {STMO}, 0'); a(f's_cbranch_scc1 {ld}')
        a(f's_sub_u32 {STMO}, {STMO}, 1')
        a('s_cmp_lt_u32 s67, 64'); a(f's_cbranch_scc1 {lp}')
        a(f'{ld}:')
        a(f'v_readlane_b32 s69, v{VT0}, {DBG_VOTE}'); a('s_and_b32 s67, s69, 15'); a(f's_cmp_gt_u32 s67, {NAREA//2}'); a('s_cselect_b32 s67, 1, 0')
        a(f'v_readlane_b32 s68, v{VT0}, 0'); a('s_cmp_gt_u32 s68, 15'); a('s_cselect_b32 s68, 1, 0'); a('s_xor_b32 s67, s67, s68'); a('s_lshl_b32 s67, s67, 13')
        if 'par' in opt: a(f's_mov_b32 s67, {opt["par"]*8192}')
        a(f's_add_u32 {SMR}, {SMR}, s67')
        a('s_bfe_u32 s69, s69, 0x40004'); a(f's_cmp_gt_u32 s69, {NAREA//2}'); a('s_cselect_b32 s69, 1, 0')
        a(f'v_readlane_b32 s68, v{VT0}, 1'); a('s_and_b32 s68, s68, 0xaa'); a('s_cselect_b32 s68, 1, 0'); a('s_xor_b32 s69, s69, s68')
        if opt.get('inv14'): a('s_xor_b32 s69, s69, 1')
        a(f's_xor_b32 s69, s69, {SX}'); a('s_lshl_b32 s69, s69, 14')
        a(f's_add_u32 s58, s58, {SMR}'); a(f's_add_u32 {SMR}, {SMR}, s69'); a('s_xor_b32 s69, s69, 16384'); a('s_add_u32 s58, s58, s69')
        a(f'v_readlane_b32 s67, v{VT0}, 0'); a(f'v_readlane_b32 s68, v{VT0}, 1')
        a('s_bcnt1_i32_b32 s67, s67'); a('s_bcnt1_i32_b32 s68, s68'); a('s_max_u32 s67, s67, s68')
        if opt.get('force_slow'): a('s_mov_b32 s67, 2')
        a('s_cmp_lg_u32 s67, 1'); a(f's_cbranch_scc1 {lslow}')
        for sc in ('', 'sc1'):
            if sc: a(f'{lslow}:')
            if role == 'qk':
                labs = [a.label('Lw') for _ in range(4)]
                for w in range(1, 4): a(f's_cmp_eq_u32 {SWV}, {w}'); a(f's_cbranch_scc1 {labs[w]}')
                for w in range(4):
                    a(f'{labs[w]}:'); qk_loop(a, w, sc, opt)
            else:
                labs = [a.label('Lw') for _ in range(5)]
                a(f's_cmp_eq_u32 {SWV}, 1'); a(f's_cbranch_scc1 {labs[1]}'); a(f's_cmp_eq_u32 {SWV}, 3'); a(f's_cbranch_scc1 {labs[4]}')
                a(f's_cmp_ge_u32 {SDT}, 40'); a(f's_cbranch_scc1 {labs[3]}'); a(f's_cmp_eq_u32 {SWV}, 2'); a(f's_cbranch_scc1 {labs[2]}')
                for i, (w, duty) in enumerate([(0, True), (1, True), (2, True), (2, False), (3, False)]):
                    a(f'{labs[i]}:'); vo_loop(a, w, duty, sc, opt)
```

```python
from common import *

SG, SU = 's62', 's63'
SSEG = 's66'
S_X = 's[20:23]'
VL16, VD, VFLG, VONE, VT0, VT1, VRD, VPV, VMAX = 1, 2, 3, 4, 5, 6, 7, 8, 9
VR0 = 10
WRING = 81920

def mfma(d, A, B, first): return f'v_mfma_f32_16x16x32_bf16 v[{d}:{d+3}], {A}, {B}, ' + ('0' if first else f'v[{d}:{d+3}]')
def allred(op, v, t):
    r = []
    for st in (16, 32): r += [f'v_mov_b32 v{t}, v{v}', f'v_permlane{st}_swap_b32 v{v}, v{t}', f'{op} v{v}, v{v}, v{t}']
    return r
def wreg(f, vbase):
    return ('a', 4*f) if f < 64 else ('v', vbase + 4*(f - 64))
def wstr(f, vbase):
    k, b = wreg(f, vbase); return f'{k}[{b}:{b+3}]'

def area_wait(a):
    lp, ld = a.label('Lgp'), a.label('Lgd')
    a(f's_mov_b32 s92, {DBG_AREA*4}')
    a(f'{lp}:')
    a(f'buffer_load_dword v{VT0}, v{VFLG}, {S_DBG}, s92 offen sc1'); a('s_waitcnt vmcnt(0)')
    a(f'v_readfirstlane_b32 s93, v{VT0}')
    a(f's_cmp_ge_u32 s93, {NAREA}'); a(f's_cbranch_scc1 {ld}')
    a('s_sleep 8')
    budget_loop(a, lp, ld)
    a(f'{ld}:')
def ln_wait(a):
    lp, ld = a.label('Lgp'), a.label('Lgd')
    a(f'v_lshlrev_b32 v{VT1}, 7, v0'); a(f's_mov_b32 s92, {LNF_OFF}')
    a(f'{lp}:')
    a(f'buffer_load_dword v{VT0}, v{VT1}, {S_WS}, s92 offen sc1'); a('s_waitcnt vmcnt(0)')
    a(f'v_cmp_ne_u32 vcc, 1, v{VT0}')
    a(f's_cbranch_vccz {ld}')
    a('s_sleep 4')
    budget_loop(a, lp, ld)
    a(f'{ld}:')

def late_start(a, opt):
    if opt.get('nolate'): return
    lp, ld = a.label('Lls'), a.label('Lld')
    rot_check(a, VT0, VT1)
    area_wait(a)
    a(f's_mov_b32 s92, {PRGX_OFF + 200*128}')
    a(f'{lp}:')
    a(f'buffer_load_dword v{VT0}, v{VFLG}, {S_WS}, s92 offen sc1'); a('s_waitcnt vmcnt(0)')
    a(f'v_readfirstlane_b32 s93, v{VT0}')
    a('s_cmp_ge_u32 s93, 1'); a(f's_cbranch_scc1 {ld}')
    a('s_sleep 32')
    budget_loop(a, lp, ld)
    a(f'{ld}:')

def wloader(a, nsl, soff, dest, stride, hook, NS=5, ring=WRING):
    vm = Trk(a, 'vmcnt', 63)
    a(f'v_lshrrev_b32 v20, 3, v0'); a('v_and_b32 v21, 6, v20'); a(f'v_and_b32 v{VD}, 7, v0')
    a(f'v_xor_b32 v{VD}, v{VD}, v21'); a(f'v_lshlrev_b32 v{VD}, 4, v{VD}'); a(f'v_mad_u32_u24 v{VD}, v20, {stride}, v{VD}')
    a(f's_lshl_b32 s71, {stride}, 3')
    a(f's_mul_i32 s72, {SWV}, {NS*4096}'); a(f's_add_u32 s72, s72, {ring}')
    def dma(n):
        for s_ in soff(n): a(s_)
        for rb in range(4):
            a(f's_add_u32 m0, s72, {(n % NS)*4096 + rb*1024}')
            if rb: a('s_add_u32 s73, s73, s71')
            else: a('s_nop 0')
            a(f'buffer_load_dwordx4 v{VD}, {S_WA}, s73 offen lds'); vm.issue(n)
    for n in range(NS): dma(n)
    row = lambda l: 4*((l >> 4) & 1) + ((l >> 2) & 3)
    lanefn(a, 20, lambda l: (row(l) & 6) | ((l >> 1) & 1), 21)
    lanefn(a, VR0, lambda l: (l >> 5)*1024 + row(l)*128 + (l & 1)*8, 21)
    a(f'v_lshl_add_u32 v{VR0}, v20, 4, v{VR0}'); a(f'v_add_u32 v{VR0}, s72, v{VR0}')
    for tt in range(1, 4): a(f'v_xor_b32 v{VR0+tt}, {tt*32}, v{VR0}')
    for n in range(nsl):
        vm.wait(n)
        for tt in range(4):
            k, b = dest(n, tt)
            for x in range(2): a(f'ds_read_b64_tr_b16 {k}[{b+2*x}:{b+2*x+1}], v{VR0+tt} offset:{(n % NS)*4096 + x*2048}')
        hook(n, vm)
        a('s_waitcnt lgkmcnt(0)')
        if n + NS < nsl: dma(n + NS)

def spread(lst, n, total):
    return (lst * (n + 1) + total - 1) // total - (lst * n + total - 1) // total

def x_unit(a, opt):
    ACC, XB, STG, WV = 64, 128, 160, 192
    SSTR, SPRG, SOB, SOS, SXD, SXL = 's74', 's75', 's76', 's77', 's78', 's79'
    a(f's_mul_i32 s67, {SU}, 43'); a('s_lshr_b32 s67, s67, 10')
    a('s_mul_i32 s68, s67, 24'); a(f's_sub_u32 s68, {SU}, s68')
    a('s_lshl_b32 s68, s68, 2'); a(f's_add_u32 s68, s68, {SWV}')
    a('s_lshl_b32 s70, s68, 7')
    a('s_mov_b32 s16, s40'); a('s_mov_b32 s17, s41')
    for m, p in ((1, 42), (2, 44), (3, 52)):
        a(f's_cmp_eq_u32 s67, {m}'); a(f's_cselect_b32 s16, s{p}, s16'); a(f's_cselect_b32 s17, s{p+1}, s17')
    a(f's_cselect_b32 {SSTR}, 3, 12'); a(f's_cselect_b32 s69, 0, 0x80008000'); a(f'v_mov_b32 v{VMAX}, s69')
    a(f's_mul_i32 {SSTR}, {SSTR}, 1024'); a(f's_mul_i32 s18, {SSTR}, 640')
    a(f's_lshl_b32 {SPRG}, {SU}, 9'); a(f's_lshl_b32 s69, {SWV}, 7'); a(f's_add_u32 {SPRG}, {SPRG}, s69'); a(f's_add_u32 {SPRG}, {SPRG}, {PRGX_OFF}')
    a('s_mul_i32 s69, s68, 171'); a('s_lshr_b32 s69, s69, 9')
    a('s_mul_i32 s80, s69, 3'); a('s_sub_u32 s80, s68, s80'); a('s_lshl_b32 s80, s80, 11')
    a(f's_mul_i32 {SOB}, s69, 12288'); a(f's_add_u32 {SOB}, {SOB}, s80')
    a(f's_mov_b32 s69, {QF_OFF}')
    a('s_cmp_eq_u32 s67, 1'); a(f's_cselect_b32 s69, {KF_OFF}, s69')
    a('s_cmp_eq_u32 s67, 2'); a(f's_cselect_b32 s69, {VF_OFF}, s69')
    a('s_cmp_eq_u32 s67, 3'); a(f's_cselect_b32 s69, {VF_OFF + 32*12288}, s69')
    a(f's_add_u32 {SOB}, {SOB}, s69')
    a('s_cmp_ge_u32 s67, 2'); a(f's_cselect_b32 {SOS}, 40, 32'); a(f's_mul_i32 {SOS}, {SOS}, 12288')
    a(f's_lshl_b32 s81, {SSTR}, 5')
    SNX, SNM, SCNT, SNJ = 's85', 's86', 's87', 's88'
    J = ['s89', 's90', 's91', 's94']
    a('s_sub_u32 s69, s67, 1'); a('s_cmp_lt_u32 s69, 2'); a(f's_cselect_b32 {SCNT}, {LEAD}, 0xffff'); a(f's_cselect_b32 {SNJ}, {64 + NPM}, 64')
    a(f's_mov_b32 {SNX}, 0'); a(f's_mov_b32 {SNM}, 0')
    lu = a.label('Lu')
    a(f's_cmp_lg_u32 {SNJ}, 64'); a(f's_cbranch_scc1 {lu}')
    late_start(a, opt)
    a(f'{lu}:')
    a(f's_mul_i32 s95, {SWV}, 10240'); a(f's_mov_b32 {SXL}, s95')
    ools = []
    def mwait(early=False):
        lp, ld = a.label('Lmp'), a.label('Lmd')
        a(f'v_min_u32 v{VT1}, 9, v0'); a(f'v_lshlrev_b32 v{VT1}, 7, v{VT1}'); a(f's_lshl_b32 s92, {SNM}, 2'); a('s_add_u32 s92, s92, 4'); a(f's_mov_b32 s93, {MPRG_OFF}')
        if early: a('v_cmp_gt_u32 vcc, s92, v17'); a(f's_cbranch_vccz {ld}')
        a(f'{lp}:')
        a(f'buffer_load_dword v{VT0}, v{VT1}, {S_WS}, s93 offen sc1'); a('s_waitcnt vmcnt(0)')
        a(f'v_cmp_gt_u32 vcc, s92, v{VT0}')
        a(f's_cbranch_vccz {ld}')
        a(f's_sleep {opt.get("msleep", 2)}')
        budget_loop(a, lp, ld)
        a(f'{ld}:')
    def nextjob(dst, early=False):
        lm, lb = a.label('Lnm'), a.label('Lnb')
        def br(): a(f's_cbranch_scc1 {lm}'); a(f's_mov_b32 {dst}, {SNX}'); a(f's_add_u32 {SNX}, {SNX}, 1'); a(f's_sub_u32 {SCNT}, {SCNT}, 1'); a(f'{lb}:')
        def ool():
            a(f'{lm}:'); mwait(early)
            a(f's_add_u32 {dst}, {SNM}, 64'); a(f's_add_u32 {SNM}, {SNM}, 1'); a(f's_cmp_lt_u32 {SNM}, {NPM}'); a(f's_cselect_b32 {SCNT}, 4, 0xffff')
            a(f's_branch {lb}')
        ools.append(ool)
        return [f's_cmp_eq_u32 {SCNT}, 0', br, f's_mul_i32 {SXD}, {dst}, 40960', f's_add_u32 {SXD}, {SXD}, s95']
    def xdma():
        r = []
        for j in range(10):
            if j % 4 == 0: r += [f's_add_u32 m0, {SXL}, {j*1024}', f's_add_u32 s73, {SXD}, {XN_OFF + j*1024}']
            r.append(f'buffer_load_dwordx4 v{VL16}, {S_WS}, s73 offen offset:{(j&3)*1024} sc1 lds')
        return r
    def xadv(): return [f's_add_u32 {SXL}, {SXL}, 40960', f's_cmp_ge_u32 {SXL}, 163840', 's_cselect_b32 s73, 163840, 0', f's_sub_u32 {SXL}, {SXL}, s73']
    def em(lst):
        for s_ in lst:
            if callable(s_): s_()
            elif s_: a(s_)
    def hook(n, vm):
        if n == 19:
            lw = a.label('Lxw')
            rot_check(a, VT0, VT1)
            a(f's_cmp_lg_u32 {SWV}, 0'); a(f's_cbranch_scc1 {lw}')
            area_wait(a); ln_wait(a)
            a(f'{lw}:'); a('s_waitcnt lgkmcnt(0)'); a('s_barrier')
            for j in range(2):
                em(nextjob(J[1 + j]) + xdma() + xadv())
                for _ in range(10): vm.issue('x')
    wloader(a, 20, lambda n: [f's_mul_i32 s73, s81, {n}', 's_add_u32 s73, s73, s70'], lambda n, tt: wreg(n*4 + tt, WV), SSTR, hook, *((10, 0) if opt.get('deepw', 0) else ()))
    a('s_waitcnt vmcnt(0)'); a('s_barrier')
    tstamp(a, opt, 1, (14, 15))
    em(nextjob(J[3]) + xdma())
    LA = 4
    def xread(f):
        kk, ct = f >> 1, f & 1; b = XB + (f % 8)*4
        return f'ds_read_b128 v[{b}:{b+3}], v{VRD} offset:{ct*20480 + kk*1024}'
    a(f'v_mov_b32 v{VRD}, v{VL16}'); a('s_mov_b32 s82, 0'); a('v_min_u32 v16, 9, v0'); a('v_lshlrev_b32 v16, 7, v16')
    for f in range(LA): a(xread(f))
    def epi(par):
        r = [f's_mul_i32 s84, {J[0]}, {SOS}', f's_add_u32 s84, s84, {SOB}', 's_add_u32 s83, s84, 6144',
             f's_sub_u32 s93, {J[0]}, {LEAD-4}', 's_max_i32 s93, s93, 0', 's_lshr_b32 s93, s93, 2', f's_add_u32 s93, s93, {J[0]}',
             f's_mul_i32 s92, {J[0]}, 5', f's_sub_u32 s92, s92, {320 - LEAD}', f's_min_u32 s92, s92, {J[0]}',
             f's_cmp_lt_u32 {J[0]}, 64', 's_cselect_b32 s93, s93, s92', 's_add_u32 s93, s93, 1', f'v_mov_b32 v{VPV}, s93']
        for ct in range(2):
            for j in range(2):
                o = STG + (ct*2 + j)*4
                for x in range(4):
                    b = ACC + par*32 + ((2*j + (x >> 1))*2 + ct)*4 + (x & 1)*2
                    r.append(f'v_cvt_pk_bf16_f32 v{o+x}, v{b}, v{b+1}')
                for x in range(4): r.append(f'v_pk_max_i16 v{o+x}, v{o+x}, v{VMAX}')
                r.append(f'buffer_store_dwordx4 v[{o}:{o+3}], v{VL16}, {S_WS}, {"s84" if ct == 0 else "s83"} offen offset:{j*1024} sc1')
        return r
    def prg(): return ['s_waitcnt vmcnt(0)', f'buffer_store_dword v{VPV}, v{VFLG}, {S_WS}, {SPRG} offen sc1']
    def stream(par, early, mid, late, cont):
        ne, nl = len(early), len(late)
        for n in range(160):
            f, tt = n >> 2, n & 3
            kk, ct = f >> 1, f & 1
            if tt == 0: a(f's_waitcnt lgkmcnt({LA-1 if (cont or f + LA <= 40) else 39 - f})')
            d = ACC + par*32 + (tt*2 + ct)*4; b = XB + (f % 8)*4
            a(mfma(d, wstr(kk*4 + tt, WV), f'v[{b}:{b+3}]', kk == 0))
            if n == 143 and cont: a('s_barrier'); a(f'v_add_u32 v{VRD}, s82, v{VL16}')
            if tt == 0 and (cont or f + LA < 40): a(xread((f + LA) % 40))
            if n < 70: em([early.pop(0) for _ in range(spread(ne, n, 70))])
            if n == opt.get('xpg', 90): em(mid)
            if n >= 144: em([late.pop(0) for _ in range(spread(nl, n - 144, 16))])
        assert not early and not late
    a(f's_mov_b32 {SSEG}, 0'); a(f's_mov_b32 s64, {SOB}'); a(f's_mov_b32 {SOB}, {OOB}'); a(f's_mov_b32 s7, {SPRG}'); a(f's_mov_b32 {SPRG}, {OOB}'); a(f's_mov_b32 {J[0]}, 0')
    lt, lx0, lx1, lx2, ltail = [a.label('Lx') for _ in range(5)]
    a(f'{lt}:')
    for par in range(2):
        early = [None, None, None] + epi(par ^ 1) + xadv() + ['s_add_u32 s82, s82, 40960', 's_cmp_ge_u32 s82, 163840', 's_cselect_b32 s82, 0, s82']
        early += [f's_mov_b32 s73, {OOB}', f's_cmp_eq_u32 {SCNT}, 0', f's_cselect_b32 s73, {MPRG_OFF}, s73', f'buffer_load_dword v17, v16, {S_WS}, s73 offen sc1']
        mid = prg() + [f's_mov_b32 {SOB}, s64', f's_mov_b32 {SPRG}, s7', f's_mov_b32 {J[0]}, {J[1]}', f's_mov_b32 {J[1]}, {J[2]}', f's_mov_b32 {J[2]}, {J[3]}'] + nextjob(J[3], True)
        stream(par, early, mid, xdma(), True)
        tstamp(a, opt, (SSEG, 8), (14, 15))
        a(f's_add_u32 {SSEG}, {SSEG}, 1'); a(f's_cmp_ge_u32 {SSEG}, {SNJ}'); a(f's_cbranch_scc1 {lx0 if par == 0 else lx1}')
    a(f's_branch {lt}')
    a(f'{lx1}:')
    em(epi(1) + prg())
    a(f's_branch {lx2}')
    a(f'{lx0}:')
    em(epi(0) + prg())
    a(f'{lx2}:')
    a(f's_cmp_lt_u32 {SU}, 24'); a('s_cselect_b32 s68, 0, 48'); a(f's_sub_u32 s68, {SU}, s68')
    a(f's_cmp_eq_u32 {SNJ}, 64'); a('s_cbranch_scc1 L_f2')
    if NMB <= NPM:
        a('s_waitcnt vmcnt(0)'); a('s_endpgm')
        for o in ools: o()
        return
    a(f'{ltail}:')
    mwait()
    a(f's_add_u32 {J[0]}, {SNM}, 64'); a(f's_mul_i32 {SXD}, {J[0]}, 40960'); a(f's_add_u32 {SXD}, {SXD}, s95'); a(f's_mov_b32 {SXL}, s95')
    a('s_waitcnt lgkmcnt(0)'); a('s_barrier')
    em(xdma())
    a(f'v_mov_b32 v{VRD}, v{VL16}')
    a('s_waitcnt vmcnt(0)'); a('s_barrier')
    for f in range(LA): a(xread(f))
    stream(0, [], [], [], False)
    em(epi(0) + prg())
    tstamp(a, opt, (SSEG, 8), (14, 15))
    a(f's_add_u32 {SSEG}, {SSEG}, 1')
    a(f's_add_u32 {SNM}, {SNM}, 1'); a(f's_cmp_lt_u32 {SNM}, {NMB}'); a(f's_cbranch_scc1 {ltail}')
    a('s_waitcnt vmcnt(0)'); a('s_endpgm')
    for o in ools: o()

def y_unit(a, opt):
    VF, ACC, STG, WV = 64, 112, 128, 224
    SPRG, SOB, SVB, SPX, SPA = 's75', 's76', 's77', 's78', 's79'
    a(f's_cmp_ge_u32 {SU}, 32'); a('s_cselect_b32 s16, s54, s46'); a('s_cselect_b32 s17, s55, s47')
    a('s_cselect_b32 s18, 1, 4'); a(f's_mul_i32 s18, s18, {1536*1280}')
    a(f's_and_b32 s67, {SU}, 31'); a(f's_mul_i32 s70, s67, {192*1280}'); a(f's_lshl_b32 s67, {SWV}, 7'); a('s_add_u32 s70, s70, s67')
    a(f's_mul_i32 {SPRG}, {SWV}, 40'); a(f's_add_u32 {SPRG}, {SPRG}, {SU}'); a(f's_lshl_b32 {SPRG}, {SPRG}, 7'); a(f's_add_u32 {SPRG}, {SPRG}, {PRGY_OFF}')
    SJOB, SNX, SNM, SCNT, SPOS, SMB = 's84', 's85', 's86', 's87', 's88', 's89'
    VMJ = 16
    a(f's_lshl_b32 {SOB}, {SU}, 10'); a(f's_mul_i32 s67, {SWV}, {4*40960}'); a(f's_add_u32 {SOB}, {SOB}, s67'); a(f's_add_u32 {SOB}, {SOB}, {VOF_OFF}')
    a(f's_mul_i32 {SMB}, {SU}, 10240'); a(f's_lshl_b32 s67, {SWV}, 10'); a(f's_add_u32 {SMB}, {SMB}, s67'); a(f's_add_u32 {SMB}, {SMB}, {VOM_OFF}')
    a(f's_mul_i32 {SVB}, {SU}, 12288'); a(f's_and_b32 s67, {SWV}, 1'); a('s_mul_i32 s80, s67, 6144'); a(f's_add_u32 {SVB}, {SVB}, s80'); a(f's_add_u32 {SVB}, {SVB}, {VF_OFF}')
    a(f's_mul_i32 {SPA}, {SU}, 384'); a(f's_add_u32 {SPA}, {SPA}, {PRGX_OFF + 192*128}'); a(f's_mov_b32 {SPX}, 0')
    lanefn(a, VMJ, lambda l: (l >> 5)*327680 + (l & 15)*16 + ((l >> 4) & 1)*8, 17)
    a('s_mov_b32 s74, 1280')
    lu = a.label('Lu')
    a(f's_cmp_lt_u32 {SU}, 32'); a(f's_cbranch_scc1 {lu}')
    late_start(a, opt)
    a(f'{lu}:')
    l2 = a.label('Ly2')
    a(f's_cmp_ge_u32 {SWV}, 2'); a(f's_cbranch_scc1 {l2}')
    for ng in (3, 2):
        if ng == 2: a(f'{l2}:')
        def hook(n, vm): pass
        wloader(a, 6*ng, lambda n: [f's_add_u32 s73, s70, {(n // 6)*512 + (n % 6)*32*1280}'],
                lambda n, tt: wreg(((n // 6)*4 + tt)*6 + n % 6, WV), 's74', hook, *((8, 32768) if opt.get('deepw', 0) else ()))
        rot_check(a, VT0, VT1)
        tstamp(a, opt, 1, (14, 15))
        SJ2, SP2, SPF = 's94', 's95', 's64'
        def poll():
            a(f'buffer_load_dword v{VT0}, v{VT1}, {S_WS}, {SPA} offen sc1')
        def take():
            for j in range(3): a(f'v_readlane_b32 s{81+j}, v{VT0}, {j}')
            a('s_min_u32 s81, s81, s82'); a(f's_min_u32 {SPX}, s81, s83')
        def dma():
            a(f's_andn2_b32 s81, 1, {SSEG}'); a('s_mul_i32 s81, s81, 12288'); a('s_add_u32 s81, s81, s80')
            a(f's_mul_i32 s82, {SJ2}, {40*12288}'); a(f's_add_u32 s82, s82, {SVB}')
            for j in range(6):
                if j % 4 == 0: a(f's_add_u32 m0, s81, {j*1024}'); a(f's_add_u32 s73, s82, {j*1024}')
                a(f'buffer_load_dwordx4 v{VL16}, {S_WS}, s73 offen offset:{(j&3)*1024} sc1 lds')
        def fetch():
            lp, ld = a.label('Lyp'), a.label('Lyd')
            a(f's_cmp_gt_u32 {SPX}, {SP2}'); a(f's_cbranch_scc1 {ld}')
            a(f'{lp}:')
            poll(); a('s_waitcnt vmcnt(0)'); take()
            a(f's_cmp_gt_u32 {SPX}, {SP2}'); a(f's_cbranch_scc1 {ld}')
            a('s_sleep 2')
            budget_loop(a, lp, ld)
            a(f'{ld}:')
            dma()
        def nextjob():
            lnx, lgo = a.label('Lyn'), a.label('Lyg')
            a(f's_add_u32 {SP2}, {SPOS}, 1')
            a(f's_cmp_lg_u32 {SCNT}, 0'); a(f's_cbranch_scc1 {lnx}')
            a(f's_add_u32 {SJ2}, {SNM}, 64'); a(f's_add_u32 {SNM}, {SNM}, 1'); a(f's_cmp_lt_u32 {SNX}, 64'); a(f's_cselect_b32 {SCNT}, 4, 0')
            a(f's_cmp_lt_u32 {SU}, 32'); a(f's_cbranch_scc1 {lgo}')
            a(f's_mov_b32 {SJ2}, 80'); a(f's_cmp_ge_u32 {SNX}, 64'); a(f's_cbranch_scc1 {lgo}')
            a(f's_add_u32 {SP2}, {SP2}, 1')
            a(f'{lnx}:')
            a(f's_mov_b32 {SJ2}, {SNX}'); a(f's_add_u32 {SNX}, {SNX}, 1'); a(f's_sub_u32 {SCNT}, {SCNT}, 1')
            a(f'{lgo}:')
        a(f's_mov_b32 {SSEG}, -1'); a(f's_mov_b32 {SJ2}, 0'); a(f's_mov_b32 {SP2}, 0'); a(f's_mov_b32 {SNX}, 1'); a(f's_mov_b32 {SNM}, 0'); a(f's_mov_b32 {SCNT}, {LEAD-1}')
        a(f'v_mov_b32 v{VPV}, 0'); a('v_mov_b32 v17, 24576')
        a(f'v_min_u32 v{VT1}, 2, v0'); a(f'v_lshlrev_b32 v{VT1}, 7, v{VT1}')
        if ng == 2:
            area_wait(a)
            fetch(); a('s_waitcnt vmcnt(0)')
        lt, lm, lj, le, lnp, lpf = [a.label('Ly') for _ in range(6)]
        a(f'{lt}:')
        a(f's_add_u32 {SSEG}, {SSEG}, 1'); a(f's_mov_b32 {SJOB}, {SJ2}'); a(f's_mov_b32 {SPOS}, {SP2}')
        a(f's_and_b32 s81, {SSEG}, 1'); a('s_mul_i32 s81, s81, 12288'); a(f'v_add_u32 v{VRD}, s81, v{VL16}')
        a(f's_mul_i32 s90, {SJOB}, {40*40960}'); a(f's_add_u32 s90, s90, {SOB}')
        a(f's_sub_u32 s91, {SJOB}, 64'); a(f's_mul_i32 s91, s91, {4*327680}'); a(f's_add_u32 s91, s91, {SMB}')
        a('s_barrier')
        for ks in range(6):
            for ct in range(2):
                b = VF + (ct*6 + ks)*4
                a(f'ds_read_b128 v[{b}:{b+3}], v{VRD} offset:{(ct*6 + ks)*1024}')
        nextjob()
        if ng == 2:
            pass
        a(f's_cmp_ge_u32 {SJOB}, 64'); a(f's_cbranch_scc1 {lm}')
        for mj in (0, 1):
            if mj: a(f'{lm}:')
            def out(i):
                gi, tt = i >> 2, i & 3
                o = STG + (i & 3)*4
                if mj: r = [f's_add_u32 s82, s91, {gi*4096}', f's_add_u32 s83, s91, {gi*4096 + 2*327680}'] if tt == 0 else []
                else: r = [f's_add_u32 s83, s90, {(16*gi + tt)*40960}']
                for ct in range(2):
                    b = ACC + (i & 1)*8 + ct*4
                    for x in range(2): r.append(f'v_cvt_pk_bf16_f32 v{o+2*ct+x}, v{b+2*x}, v{b+2*x+1}')
                if mj: r += [f'buffer_store_dwordx2 v[{o+2*ct}:{o+2*ct+1}], v{VMJ}, {S_WS}, s{82+ct} offen offset:{tt*256} sc1' for ct in range(2)]
                else: r.append(f'buffer_store_dwordx4 v[{o}:{o+3}], v{VL16}, {S_WS}, s83 offen sc1')
                return r
            for i in range(4*ng):
                side = [None]*4 + out(i - 1) if i else []
                if ng == 3 and i == 7:
                    side[0:2] = [f's_waitcnt vmcnt({12 if mj else 6})', f'buffer_store_dword v{VPV}, v{VFLG}, {S_WS}, {SPRG} offen sc1']
                if ng == 3 and i == 11: side[0:1] = ['ds_read_b32 v18, v17']
                if ng == 2 and i == 2: side[0:1] = [poll]
                if ng == 2 and i == 6:
                    def pref(k=(8 if mj else 4)):
                        lnp = a.label('Lyf')
                        a(f's_waitcnt vmcnt({k})'); take()
                        a(f's_mov_b32 {SPF}, 0')
                        a(f's_cmp_le_u32 {SPX}, {SP2}'); a(f's_cbranch_scc1 {lnp}'); a(f's_cmp_ge_u32 {SJ2}, {64 + NMB}'); a(f's_cbranch_scc1 {lnp}')
                        dma(); a(f's_mov_b32 {SPF}, 1')
                        a(f'{lnp}:')
                        a(f'v_mov_b32 v18, {SPF}'); a('ds_write_b32 v17, v18')
                        if mj: a('s_add_u32 s82, s91, 4096'); a(f's_add_u32 s83, s91, {4096 + 2*327680}')
                    side[0:1] = [pref]
                for n in range(12):
                    ks, ct = n >> 1, n & 1
                    if i == 0: a(f's_waitcnt lgkmcnt({11 - n})')
                    b = VF + (ct*6 + ks)*4
                    a(mfma(ACC + (i & 1)*8 + ct*4, f'v[{b}:{b+3}]', wstr(i*6 + ks, WV), ks == 0))
                    if side:
                        s_ = side.pop(0)
                        if callable(s_): s_()
                        elif s_: a(s_)
                assert not side, side
            for s_ in out(4*ng - 1): a(s_)
            if not mj: a(f's_branch {lj}')
        a(f'{lj}:')
        tstamp(a, opt, (SSEG, 8), (14, 15))
        a(f's_add_u32 s81, {SPOS}, 1'); a(f'v_mov_b32 v{VPV}, s81')
        a(f's_cmp_ge_u32 {SJ2}, {64 + NMB}'); a(f's_cbranch_scc1 {le}')
        if ng == 2:
            a('s_waitcnt vmcnt(0)')
            a(f'buffer_store_dword v{VPV}, v{VFLG}, {S_WS}, {SPRG} offen sc1')
            a(f's_cmp_lg_u32 {SPF}, 0'); a(f's_cbranch_scc1 {lt}')
            fetch()
            a('s_waitcnt vmcnt(0)')
        else:
            a('s_waitcnt lgkmcnt(0)'); a('v_readfirstlane_b32 s81, v18')
            a(f's_cmp_lt_u32 {SSEG}, {opt.get("ypub", 5)}'); a('s_cselect_b32 s81, 0, s81')
            a('s_cmp_lg_u32 s81, 0'); a(f's_cbranch_scc1 {lt}')
            a('s_waitcnt vmcnt(0)'); a(f'buffer_store_dword v{VPV}, v{VFLG}, {S_WS}, {SPRG} offen sc1')
        a(f's_branch {lt}')
        a(f'{le}:')
        a('s_waitcnt vmcnt(0)')
        a(f'buffer_store_dword v{VPV}, v{VFLG}, {S_WS}, {SPRG} offen sc1')
        a(f's_sub_u32 s68, {SU}, 2'); a(f's_cmp_ge_u32 {SU}, 32'); a('s_cbranch_scc1 L_f2')
        a('s_waitcnt vmcnt(0)'); a('s_endpgm')

def layer_norm(a):
    L, F, G, T = 16, 64, 144, 224
    lanefn(a, VT0, lambda l: (l & 15)*1280 + (l >> 4)*8, VT1, 5*64)
    a(f's_mul_i32 s68, {SU}, {32*1280}'); a(f's_add_u32 s69, s68, {16*1280}')
    for c in range(2):
        for k in range(5):
            for x in range(2): a(f'buffer_load_dwordx2 v[{L+20*c+4*k+2*x}:{L+20*c+4*k+2*x+1}], v{VT0}, {S_X}, s{68+c} offen offset:{k*64 + x*32}')
    AW, AR, TT = T + 16, T + 17, T + 18
    lanefn(a, AR, lambda l: (l & 15)*16, TT)
    a(f's_lshl_b32 s67, {SWV}, 2'); a(f'v_add_u32 v{AW}, s67, v{AR}')
    def unpack(c):
        for j in range(20):
            a(f'v_lshlrev_b32 v{F+40*c+2*j}, 16, v{L+20*c+j}'); a(f'v_and_b32 v{F+40*c+2*j+1}, 0xffff0000, v{L+20*c+j}')
    def xchg(off, reg):
        for c in range(2):
            v = T + 8*c + reg
            a(f'v_add_f32 v{v}, v{v}, v{v+1}')
            for s_ in allred('v_add_f32', v, TT): a(s_)
            a(f'ds_write_b32 v{AW}, v{v} offset:{off + c*256}')
        a('s_waitcnt lgkmcnt(0)'); a('s_barrier')
        for c in range(2): a(f'ds_read_b128 v[{T+8*c+4}:{T+8*c+7}], v{AR} offset:{off + c*256}')
        a('s_waitcnt lgkmcnt(0)')
        for c in range(2):
            q = T + 8*c + 4
            a(f'v_add_f32 v{q}, v{q}, v{q+1}'); a(f'v_add_f32 v{q+2}, v{q+2}, v{q+3}'); a(f'v_add_f32 v{T+8*c+reg}, v{q}, v{q+2}')
    pr = lambda r: f'v[{r}:{r+1}]'
    for c in range(2):
        a(f's_waitcnt vmcnt({10*(1-c)})'); unpack(c)
        f, t = F + 40*c, T + 8*c
        a(f'v_pk_add_f32 {pr(t)}, {pr(f)}, {pr(f+2)}')
        for j in range(2, 20): a(f'v_pk_add_f32 {pr(t)}, {pr(t)}, {pr(f+2*j)}')
    xchg(0, 0)
    a(f's_mov_b32 s67, {f2u(-1.0/640):#x}')
    for c in range(2):
        f, g, t = F + 40*c, G + 40*c, T + 8*c
        a(f'v_mul_f32 v{t}, s67, v{t}'); a(f'v_mov_b32 v{t+1}, v{t}')
        for j in range(20): a(f'v_pk_add_f32 {pr(g+2*j)}, {pr(f+2*j)}, {pr(t)}')
        a(f'v_pk_mul_f32 {pr(t+2)}, {pr(g)}, {pr(g)}')
        for j in range(1, 20): a(f'v_pk_fma_f32 {pr(t+2)}, {pr(g+2*j)}, {pr(g+2*j)}, {pr(t+2)}')
    xchg(512, 2)
    def rnd(v): a(f'v_cvt_pk_bf16_f32 v{v}, v{v}, v{v}'); a(f'v_lshlrev_b32 v{v}, 16, v{v}')
    rot_check(a, VT0, VT1)
    a(f's_mov_b32 s67, {f2u(1.0/640):#x}')
    a(f's_mul_i32 s68, {SU}, 40960'); a(f's_mul_i32 s69, {SWV}, 5120'); a('s_add_u32 s68, s68, s69')
    if XN_OFF: a(f's_add_u32 s68, s68, {XN_OFF}')
    for c in range(2):
        f, t, l = F + 40*c, T + 8*c, L + 20*c
        a(f'v_mul_f32 v{t+2}, s67, v{t+2}'); rnd(t + 2)
        a(f'v_add_f32 v{t+2}, {f2u(1e-5):#x}, v{t+2}'); rnd(t + 2)
        a(f'v_sqrt_f32 v{t+2}, v{t+2}'); rnd(t + 2)
        a(f'v_rcp_f32 v{t+2}, v{t+2}'); rnd(t); a(f'v_mov_b32 v{t+3}, v{t+2}'); a(f'v_mov_b32 v{t+1}, v{t}')
        for j in range(20): a(f'v_pk_add_f32 {pr(f+2*j)}, {pr(f+2*j)}, {pr(t)}')
        for j in range(20): a(f'v_cvt_pk_bf16_f32 v{l+j}, v{f+2*j}, v{f+2*j+1}')
        unpack(c)
        for j in range(20): a(f'v_pk_mul_f32 {pr(f+2*j)}, {pr(f+2*j)}, {pr(t+2)}')
        for j in range(20): a(f'v_cvt_pk_bf16_f32 v{l+j}, v{f+2*j}, v{f+2*j+1}')
        a('s_add_u32 s69, s68, 4096')
        for k in range(5):
            a(f'buffer_store_dwordx4 v[{l+4*k}:{l+4*k+3}], v{VL16}, {S_WS}, {"s68" if k < 4 else "s69"} offen offset:{(k&3)*1024} sc1')
        a('s_add_u32 s68, s68, 20480')
    area_wait(a)
    a('s_barrier')
    a(f's_lshl_b32 s68, {SU}, 7'); a(f's_add_u32 s68, s68, {LNF_OFF}')
    a(f'buffer_store_dword v{VONE}, v{VFLG}, {S_WS}, s68 offen sc1')

SC = 0.07216878364870322 * 1.4426950408889634
def posx(a, dst, seg): a(f's_sub_u32 {dst}, {seg}, {LEAD-4}'); a(f's_max_i32 {dst}, {dst}, 0'); a(f's_lshr_b32 {dst}, {dst}, 2'); a(f's_add_u32 {dst}, {dst}, {seg}')
def posm(a, dst, b, t): a(f's_mul_i32 {dst}, {b}, 5'); a(f's_add_u32 {dst}, {dst}, {LEAD}'); a(f's_add_u32 {t}, {b}, 64'); a(f's_min_u32 {dst}, {dst}, {t}')
def poll_gt(a, opt, voff, soff, thr, T, sleep):
    lp, ld = a.label('Lq'), a.label('Lqd')
    a(f'{lp}:')
    a(f'buffer_load_dword v{T}, v{voff}, {S_WS}, {soff} offen sc1'); a('s_waitcnt vmcnt(0)')
    a(f'v_cmp_ge_u32 vcc, {thr}, v{T}')
    a(f's_cbranch_vccz {ld}')
    a(f's_sleep {sleep}')
    budget_loop(a, lp, ld)
    a(f'{ld}:')

def f_class(a, opt):
    lnl, lz, lz2, lf = a.label('Lnoln'), a.label('Lz'), a.label('Lz'), a.label('Lfu')
    a(f's_cmp_ge_u32 {SU}, 64'); a(f's_cbranch_scc1 {lz}')
    layer_norm(a)
    a(f's_branch {lnl}')
    a(f'{lz}:')
    rot_check(a, VT0, VT1)
    for r in range(4): a(f'v_mov_b32 v{16+r}, 0')
    a(f's_sub_u32 s69, {SU}, 64'); a('s_mul_i32 s68, s69, 12288'); a(f's_mul_i32 s67, {SWV}, 3072'); a('s_add_u32 s68, s68, s67'); a(f's_add_u32 s68, s68, {FLAG_OFF}')
    for x in range(3): a(f'buffer_store_dwordx4 v[16:19], v{VL16}, {S_WS}, s68 offen offset:{x*1024} sc1')
    a('s_waitcnt vmcnt(0)'); a('s_barrier')
    a(f's_cmp_lg_u32 {SWV}, 0'); a(f's_cbranch_scc1 {lz2}')
    a(f's_mov_b32 s68, {DBG_AREA*4}')
    a(f'buffer_atomic_add v{VONE}, v{VFLG}, {S_DBG}, s68 offen sc1')
    a(f'{lz2}:')
    calibrate(a, 's69', opt.get('caldbg'))
    a('s_barrier')
    area_wait(a)
    a(f'{lnl}:')
    tstamp(a, opt, 1, (14, 15))
    a(f's_sub_u32 s68, {SU}, 34'); a(f's_cmp_ge_u32 {SU}, 72'); a('s_cbranch_scc1 L_f2')
    if opt.get('no3b'): a('s_branch L_wend'); return
    a(f's_cmp_ge_u32 {SU}, 32'); a(f's_cbranch_scc1 {lf}')
    p_unit(a, opt)
    a(f'{lf}:')
    f_unit(a, opt)

def p_unit(a, opt):
    QF, KF, KM, X00, X01, X11, M0, M1 = 16, 64, 112, 136, 140, 144, 148, 152
    VQO, VMO, T0, M, L, T = 156, 157, 158, 159, 160, 161
    SB, SHD, SPR, SVAL = 's70', 's71', 's72', 's[74:75]'
    SCM = [f's[{76+2*r}:{77+2*r}]' for r in range(4)]
    a(f's_and_b32 {SHD}, {SU}, 7'); a(f's_lshl_b32 {SHD}, {SHD}, 2'); a(f's_add_u32 {SHD}, {SHD}, {SWV}')
    a(f's_lshl_b32 {SPR}, {SU}, 9'); a(f's_lshl_b32 s67, {SWV}, 7'); a(f's_add_u32 {SPR}, {SPR}, s67'); a(f's_add_u32 {SPR}, {SPR}, {PRGP_OFF}')
    a(f'v_min_u32 v{VQO}, 5, v0'); a(f'v_cmp_lt_u32 vcc, 2, v{VQO}'); a(f'v_add_u32 v{T0}, 93, v{VQO}'); a(f'v_cndmask_b32 v{VQO}, v{VQO}, v{T0}, vcc'); a(f'v_lshlrev_b32 v{VQO}, 7, v{VQO}')
    a(f'v_min_u32 v{VT1}, 2, v0'); a(f'v_lshlrev_b32 v{VT1}, 7, v{VT1}')
    lanefn(a, VMO, lambda l: (l & 15)*16 + ((l >> 4) & 1)*8, T0)
    a(f'v_and_b32 v{T}, 15, v0')
    for r in range(4):
        lanefn(a, M, lambda l: (l >> 4)*4 + r, T0); a(f'v_cmp_le_u32 {SCM[r]}, v{M}, v{T}')
    a(f's_bitcmp1_b32 {SU}, 3'); a('s_cselect_b32 s74, 0, -1'); a('s_cselect_b32 s75, -1, 0')
    a(f's_mul_i32 s73, {SHD}, 384'); a(f's_add_u32 s73, s73, {PRGX_OFF}'); a(f's_add_u32 s88, s73, {96*128}')
    a(f's_mov_b32 s84, {f2u(SC):#x}'); a(f's_mov_b32 {SB}, 0')
    lt = a.label('Lp')
    a(f'{lt}:')
    a(f's_lshl_b32 {SSEG}, {SB}, 2'); a(f's_lshr_b32 s67, {SU}, 3'); a(f's_add_u32 {SSEG}, {SSEG}, s67')
    posx(a, 's85', SSEG)
    poll_gt(a, opt, VQO, 's73', 's85', T0, 16)
    def frags(dst, n, base):
        for j in range(n):
            if j % 4 == 0: a(f's_add_u32 s87, s86, {base + j*1024}')
            a(f'buffer_load_dwordx4 v[{dst+4*j}:{dst+4*j+3}], v{VL16}, {S_WS}, s87 offen offset:{(j&3)*1024} sc1')
    a(f's_lshl_b32 s86, {SSEG}, 5'); a(f's_add_u32 s86, s86, {SHD}'); a('s_mul_i32 s86, s86, 12288')
    frags(QF, 12, QF_OFF); frags(KF, 12, KF_OFF)
    vr = lambda b: f'v[{b}:{b+3}]'
    a('s_waitcnt vmcnt(6)')
    for kk in range(6): a(mfma(X00, vr(KF + 4*kk), vr(QF + 4*kk), kk == 0)); a(mfma(X01, vr(KF + 4*kk), vr(QF + 24 + 4*kk), kk == 0))
    a('s_waitcnt vmcnt(0)')
    for kk in range(6): a(mfma(X11, vr(KF + 24 + 4*kk), vr(QF + 24 + 4*kk), kk == 0))
    a(f'v_mov_b32 v{T}, 0xff7fffff')
    for D in (X00, X11):
        for r in range(4): a(f'v_cndmask_b32 v{D+r}, v{T}, v{D+r}, {SCM[r]}')
    posm(a, 's85', SB, 's67')
    lk = a.label('Lpk')
    a(f's_cmp_lt_u32 {SB}, {NMB}'); a(f's_cbranch_scc1 {lk}')
    a(f's_lshr_b32 s88, {SHD}, 4'); a('s_lshl_b32 s88, s88, 4'); a(f's_add_u32 s88, s88, {SHD}'); a('s_lshl_b32 s88, s88, 7'); a(f's_add_u32 s88, s88, {CPRG_OFF}')
    a(f'v_mov_b32 v{VT1}, 0'); a(f's_mov_b32 s85, {SSEG}')
    a(f'{lk}:')
    poll_gt(a, opt, VT1, 's88', 's85', T0, opt.get('psleep', 1))
    a(f's_add_u32 s86, {SB}, 64'); a('s_lshl_b32 s86, s86, 5'); a(f's_add_u32 s86, s86, {SHD}'); a('s_mul_i32 s86, s86, 12288')
    a(f's_bitcmp1_b32 {SU}, 4'); a('s_cselect_b32 s67, 6144, 0'); a('s_add_u32 s86, s86, s67')
    frags(KM, 6, KF_OFF)
    for kk in range(6):
        a(f's_waitcnt vmcnt({5-kk})')
        a(mfma(M0, vr(KM + 4*kk), vr(QF + 4*kk), kk == 0)); a(mfma(M1, vr(KM + 4*kk), vr(QF + 24 + 4*kk), kk == 0))
    a(f's_lshl_b32 s86, {SSEG}, 5'); a(f's_add_u32 s86, s86, {SHD}'); a('s_lshl_b32 s86, s86, 11'); a(f's_add_u32 s86, s86, {P3X_OFF}')
    a(f's_lshl_b32 s87, {SSEG}, 3'); a(f's_lshr_b32 s67, {SHD}, 2'); a('s_add_u32 s87, s87, s67'); a('s_lshl_b32 s87, s87, 11')
    a(f's_and_b32 s67, {SHD}, 3'); a('s_lshl_b32 s67, s67, 8'); a('s_add_u32 s87, s87, s67'); a(f's_add_u32 s87, s87, {P3M_OFF}')
    a(f'v_mov_b32 v{T}, 0xff7fffff')
    for D in (M0, M1):
        for r in range(4): a(f'v_cndmask_b32 v{D+r}, v{T}, v{D+r}, {SVAL}')
    for qt, tiles in ((0, [X00, M0]), (1, [X01, X11, M1])):
        allv = [D + r for D in tiles for r in range(4)]
        a(f'v_max3_f32 v{M}, v{allv[0]}, v{allv[1]}, v{allv[2]}')
        rest = allv[3:]
        while rest:
            if len(rest) >= 2: a(f'v_max3_f32 v{M}, v{M}, v{rest[0]}, v{rest[1]}'); rest = rest[2:]
            else: a(f'v_max_f32 v{M}, v{M}, v{rest[0]}'); rest = []
        for s_ in allred('v_max_f32', M, T): a(s_)
        a(f'v_mul_f32 v{M}, s84, v{M}')
        for v in allv: a(f'v_fma_f32 v{v}, v{v}, s84, -v{M}')
        for v in allv: a(f'v_exp_f32 v{v}, v{v}')
        a(f'v_add_f32 v{L}, v{allv[0]}, v{allv[1]}')
        for v in allv[2:]: a(f'v_add_f32 v{L}, v{L}, v{v}')
        for s_ in allred('v_add_f32', L, T): a(s_)
        a(f'v_rcp_f32 v{L}, v{L}')
        for v in allv: a(f'v_mul_f32 v{v}, v{v}, v{L}')
        o = tiles[0]; m = tiles[-1]
        a(f'v_cvt_pk_bf16_f32 v{o}, v{o}, v{o+1}'); a(f'v_cvt_pk_bf16_f32 v{o+1}, v{o+2}, v{o+3}')
        if qt: a(f'v_cvt_pk_bf16_f32 v{o+2}, v{X11}, v{X11+1}'); a(f'v_cvt_pk_bf16_f32 v{o+3}, v{X11+2}, v{X11+3}')
        else: a(f'v_mov_b32 v{o+2}, 0'); a(f'v_mov_b32 v{o+3}, 0')
        a(f'v_cvt_pk_bf16_f32 v{m}, v{m}, v{m+1}'); a(f'v_cvt_pk_bf16_f32 v{m+1}, v{m+2}, v{m+3}')
        a(f'buffer_store_dwordx4 v[{o}:{o+3}], v{VL16}, {S_WS}, s86 offen offset:{qt*1024} sc1')
        a(f's_mov_b64 exec, {SVAL}')
        a(f'buffer_store_dwordx2 v[{m}:{m+1}], v{VMO}, {S_WS}, s87 offen offset:{qt*1024} sc1')
        a('s_mov_b64 exec, -1')
    a(f's_add_u32 {SB}, {SB}, 1'); a(f'v_mov_b32 v{VPV}, {SB}'); a('s_waitcnt vmcnt(0)')
    a(f'buffer_store_dword v{VPV}, v{VFLG}, {S_WS}, {SPR} offen sc1')
    tstamp(a, opt, (SB, 7), (14, 15))
    a(f's_cmp_lt_u32 {SB}, 16'); a(f's_cbranch_scc1 {lt}')
    a('s_waitcnt vmcnt(0)'); a('s_endpgm')

def f_unit(a, opt):
    SB, SDT, SSG = 's70', 's72', 's71'
    VM, A0, G0, PB, ID, XR, GV = 16, 48, 56, 64, 128, 136, 140
    VMO, VXO, VPR, VFO, VPO, VTH = 150, 151, 152, 153, 154, 155
    T0, T1 = 156, 157
    lgo = a.label('Lfg')
    a(f's_sub_u32 s68, {SU}, 32'); a(f's_mov_b32 {SB}, 0'); a('s_mov_b32 s82, 15')
    a(f's_branch {lgo}')
    a('L_f2:')
    a('s_waitcnt vmcnt(0) lgkmcnt(0)'); a('s_barrier')
    a(f's_mov_b32 {SB}, 15'); a('s_mov_b32 s82, 16')
    a(f'{lgo}:')
    a('s_mov_b32 s83, s68')
    a(f'v_and_b32 v{T0}, 15, v0'); a(f'v_lshrrev_b32 v{T1}, 4, v0'); a(f'v_lshlrev_b32 v{T1}, 2, v{T1}'); a(f'v_sub_u32 v{T0}, v{T0}, v{T1}')
    for r in (0, 1, 4, 5): a(f'v_mov_b32 v{ID+r}, 0')
    a(f'v_mov_b32 v{T1}, 0x3f80'); a(f'v_mov_b32 v{GV}, 0x3f800000')
    for d in range(2):
        a(f'v_cmp_eq_u32 vcc, {2*d}, v{T0}'); a(f'v_cndmask_b32 v{ID+2+d}, 0, v{T1}, vcc')
        a(f'v_cmp_eq_u32 vcc, {2*d+1}, v{T0}'); a(f'v_cndmask_b32 v{ID+2+d}, v{ID+2+d}, v{GV}, vcc')
    lanefn(a, VMO, lambda l: (l >> 4)*10240 + (l & 15)*16, T0)
    lanefn(a, VXO, lambda l: (l & 15)*1280 + (l >> 4)*8, T0)
    a('s_mov_b32 s68, s83'); a(f's_mul_i32 {SSG}, s68, 205'); a(f's_lshr_b32 {SSG}, {SSG}, 11'); a(f's_mul_i32 s67, {SSG}, 10'); a(f's_sub_u32 {SDT}, s68, s67')
    a(f's_and_b32 s79, {SDT}, 3'); a(f's_mul_i32 s79, s79, {40*128}'); a(f's_add_u32 s79, s79, {PRGY_OFF}')
    a(f's_lshl_b32 {SDT}, {SDT}, 2'); a(f's_add_u32 {SDT}, {SDT}, {SWV}')
    a(f'v_min_u32 v{VFO}, 39, v0'); a(f'v_lshlrev_b32 v{VFO}, 7, v{VFO}')
    a(f'v_lshlrev_b32 v{VPO}, 7, v0'); a(f's_lshl_b32 s67, {SSG}, 12'); a(f's_add_u32 s67, s67, {PRGP_OFF - 32*128}'); a('s_sub_u32 s67, s67, s79')
    a(f'v_add_u32 v{T0}, s67, v{VPO}'); a('s_mov_b32 s80, 0'); a('s_mov_b32 s81, -1'); a(f'v_cndmask_b32 v{VPO}, v{VPO}, v{T0}, s[80:81]')
    ltop, ld, lw = [a.label('Lfb') for _ in range(3)]
    a(f'{ltop}:')
    a(f's_lshl_b32 {SSEG}, {SB}, 2'); a(f's_add_u32 {SSEG}, {SSEG}, {SSG}')
    a(f's_cmp_lg_u32 {SWV}, 0'); a(f's_cbranch_scc1 {ld}')
    posx(a, 's73', SSEG)
    poll_gt(a, opt, VFO, 's79', 's73', T0, opt.get('ysleep', 16))
    a(f'{ld}:')
    a('s_barrier')
    a(f's_mul_i32 s73, {SSEG}, 40'); a(f's_add_u32 s73, s73, {SDT}'); a('s_mul_i32 s73, s73, 40960'); a(f's_add_u32 s73, s73, {VOF_OFF}')
    def vo(hh):
        if hh % 4 == 0: a(f's_add_u32 s74, s73, {hh*1024}')
        a(f'buffer_load_dwordx4 a[{4*hh}:{4*hh+3}], v{VL16}, {S_WS}, s74 offen offset:{(hh&3)*1024} sc1')
    for hh in range(32, 40): vo(hh)
    a(f's_mul_i32 s75, {SSEG}, {32*1280}'); a(f's_lshl_b32 s67, {SDT}, 5'); a('s_add_u32 s75, s75, s67'); a(f's_add_u32 s76, s75, {16*1280}')
    for qt in range(2): a(f'buffer_load_dwordx2 v[{XR+2*qt}:{XR+2*qt+1}], v{VXO}, {S_X}, s{75+qt} offen')
    for hh in range(32): vo(hh)
    for hh in range(32, 40):
        a(f's_waitcnt vmcnt({34 + 39 - hh})')
        for qt in range(2):
            b = ID + 2 - 2*qt
            a(mfma(G0 + 4*qt, f'a[{4*hh}:{4*hh+3}]', f'v[{b}:{b+3}]', hh == 32))
    def rnd8(src, dst):
        for j in range(4): a(f'v_cvt_pk_bf16_f32 v{PB+j}, v{src+2*j}, v{src+2*j+1}')
        for j in range(4): a(f'v_lshlrev_b32 v{dst+2*j}, 16, v{PB+j}'); a(f'v_and_b32 v{dst+2*j+1}, 0xffff0000, v{PB+j}')
    rnd8(G0, G0)
    a(f's_mov_b32 s67, {f2u(-1.4426950408889634):#x}')
    for j in range(8): a(f'v_mul_f32 v{GV+j}, s67, v{G0+j}')
    for j in range(8): a(f'v_exp_f32 v{GV+j}, v{GV+j}')
    for j in range(8): a(f'v_add_f32 v{GV+j}, 1.0, v{GV+j}')
    for j in range(8): a(f'v_rcp_f32 v{GV+j}, v{GV+j}')
    for j in range(8): a(f'v_mul_f32 v{GV+j}, v{GV+j}, v{G0+j}')
    rnd8(GV, GV)
    a(f's_cmp_lg_u32 {SWV}, 0'); a(f's_cbranch_scc1 {lw}')
    posm(a, 's73', SB, 's67')
    lk = a.label('Lfk')
    a(f's_cmp_lt_u32 {SB}, {NMB}'); a(f's_cbranch_scc1 {lk}')
    a(f'v_and_b32 v{T0}, 16, v0'); a(f'v_add_u32 v{T0}, v{T0}, v0'); a(f'v_lshlrev_b32 v{T0}, 7, v{T0}'); a(f's_sub_u32 s73, {CPRG_OFF + 16*128}, s79'); a(f'v_add_u32 v{T0}, s73, v{T0}')
    a(f'v_cndmask_b32 v{VPO}, v{T0}, v{VPO}, s[80:81]'); a(f's_mov_b32 s73, {SSEG}')
    a(f'{lk}:')
    a(f'v_mov_b32 v{VTH}, s73'); a(f'v_mov_b32 v{T0}, {SB}'); a(f'v_cndmask_b32 v{VTH}, v{VTH}, v{T0}, s[80:81]')
    poll_gt(a, opt, VPO, 's79', f'v{VTH}', PB, opt.get('psleep', 1))
    a(f'{lw}:')
    a('s_barrier')
    a(f's_mul_i32 s73, {SSEG}, {32*10240}'); a(f's_lshl_b32 s67, {SDT}, 8'); a('s_add_u32 s73, s73, s67'); a(f's_add_u32 s73, s73, {VOM_OFF}')
    a(f's_lshl_b32 s74, {SWV}, 10'); a(f's_lshl_b32 s77, {SSEG}, 16'); a('s_add_u32 s77, s77, s74'); a(f's_add_u32 s77, s77, {P3X_OFF}')
    a(f's_lshl_b32 s78, {SSEG}, 14'); a('s_add_u32 s78, s78, s74'); a(f's_add_u32 s78, s78, {P3M_OFF}')
    for n in range(20):
        sr = "s77" if n < 16 else "s78"
        a(f's_add_u32 m0, s74, {n*4096}')
        if n not in (0, 16): a(f's_add_u32 {sr}, {sr}, 4096')
        a(f'buffer_load_dwordx4 v{VL16}, {S_WS}, {sr} offen sc1 lds')
        if n == 4:
            for m in range(8):
                a(f'buffer_load_dwordx4 v[{VM+4*m}:{VM+4*m+3}], v{VMO}, {S_WS}, s73 offen sc1'); a('s_add_u32 s73, s73, 40960')
    a(f'v_add_u32 v{VPR}, 32768, v{VL16}')
    for st in range(4):
        a(f's_waitcnt vmcnt({[23, 10, 5, 0][st]})'); a('s_barrier')
        def rd(c):
            base, off = (VL16, c*1024) if c < 32 else (VPR, c*1024 - 32768)
            b = PB + (c % 16) * 4
            a(f'ds_read_b128 v[{b}:{b+3}], v{base} offset:{off}')
        for c in range(20*st, 20*st + 8): rd(c)
        for c in range(20*st, 20*st + 20):
            left = min(20*st + 20, c + 8) - c - 1
            a(f's_waitcnt lgkmcnt({left})')
            h2, qt = c >> 1, c & 1
            A = f'a[{4*h2}:{4*h2+3}]' if c < 64 else f'v[{VM+4*(h2-32)}:{VM+4*(h2-32)+3}]'
            b = PB + (c % 16) * 4
            a(mfma(A0 + 4*qt, A, f'v[{b}:{b+3}]', c < 2))
            if c + 8 < 20*st + 20: rd(c + 8)
    rnd8(A0, A0)
    for j in range(8): a(f'v_mul_f32 v{A0+j}, v{A0+j}, v{GV+j}')
    rnd8(A0, A0)
    for j in range(4): a(f'v_lshlrev_b32 v{G0+2*j}, 16, v{XR+j}'); a(f'v_and_b32 v{G0+2*j+1}, 0xffff0000, v{XR+j}')
    for j in range(8): a(f'v_add_f32 v{A0+j}, v{A0+j}, v{G0+j}')
    for j in range(4): a(f'v_cvt_pk_bf16_f32 v{A0+j}, v{A0+2*j}, v{A0+2*j+1}')
    for qt in range(2): a(f'buffer_store_dwordx2 v[{A0+2*qt}:{A0+2*qt+1}], v{VXO}, {S_OUT}, s{75+qt} offen')
    tstamp(a, opt, (SB, 100), (14, 15))
    a(f's_add_u32 {SB}, {SB}, 1'); a(f's_cmp_lt_u32 {SB}, s82'); a(f's_cbranch_scc1 {ltop}')
    a('s_waitcnt vmcnt(0)'); a('s_endpgm')

def gemm_main(a, opt):
    tstamp(a, opt, 0, (14, 15))
    a(f's_sub_u32 {SG}, {SSLOT}, 64')
    a(f's_mov_b32 {STMO}, {opt.get("tmo", 1 << 21)}')
    srd(a, S_X, 's[36:37]', 2048*640*2); srd(a, S_OUT, 's[56:57]', 2048*640*2); srd(a, S_WA, 's[40:41]', 0)
    a(f'v_lshlrev_b32 v{VL16}, 4, v0')
    a(f'v_mov_b32 v{VONE}, 1'); a(f'v_cmp_eq_u32 vcc, 0, v0'); a(f'v_mov_b32 v{VT0}, 0x40000000'); a(f'v_cndmask_b32 v{VFLG}, v{VT0}, 0, vcc')
    ly, lf = a.label('Lyu'), a.label('Lfu')
    a(f's_lshr_b32 s67, {SG}, 5'); a(f's_and_b32 s68, {SG}, 31')
    a(f's_mul_i32 {SU}, s67, 13'); a(f's_add_u32 {SU}, {SU}, s68')
    a('s_cmp_ge_u32 s68, 13'); a(f's_cbranch_scc1 {ly}')
    x_unit(a, opt)
    a(f'{ly}:')
    a('s_sub_u32 s68, s68, 13'); a('s_min_u32 s69, s67, 4')
    a('s_cmp_lt_u32 s67, 4'); a('s_cselect_b32 s70, 7, 6')
    a(f's_mul_i32 {SU}, s67, 6'); a(f's_add_u32 {SU}, {SU}, s69'); a(f's_add_u32 {SU}, {SU}, s68')
    a('s_cmp_ge_u32 s68, s70'); a(f's_cbranch_scc1 {lf}')
    y_unit(a, opt)
    a(f'{lf}:')
    a(f's_mul_i32 {SU}, s67, 13'); a(f's_sub_u32 {SU}, {SU}, s69'); a(f's_add_u32 {SU}, {SU}, s68'); a(f's_sub_u32 {SU}, {SU}, s70')
    f_class(a, opt)
    a('L_wend:'); a('s_waitcnt vmcnt(0)')
```

```python
from common import *

SC = 0.07216878364870322 * 1.4426950408889634

def wfrag(f, half=None):
    if f < 32: k, b = 'a', f * 8
    else: k, b = 'v', 176 + (f - 32) * 8
    if half is None: return f'{k}[{b}:{b+7}]'
    return k, b + 4 * half

VL16, VGW, VAR, VFR, VXW, VXS, VDR, VIDX, V9, V10, V11, V12, VT0, VT1, VT2 = range(1, 16)
VA = 16
VACC0 = 56
VACC1 = 68
VB = 80
VKX = 112
VQF = 136
VTMP = 160
VOX = 112
SSTEP, SH, SX, SDT = 's62', 's63', 's64', 's66'
SMASK8 = 's[70:71]'
SCM = [f's[{72+2*r}:{73+2*r}]' for r in range(4)]
SCHK = 's80'
S_ONE0, S_ONE1 = 's100', 's101'
NCH = [3, 3, 2, 2]
OWN = [[0, 1, 2], [3, 4, 5], [6, 7], [8, 9]]
REGKB = [0, 1, 3, 4, 6, 7, 8]; LDSKB = [2, 5, 9]
REGT = [0, 2, 3, 4, 6, 7, 8]; LDST = [1, 5, 9]
def yfrag(tile, kb):
    if tile in REGT: return 'reg', 21 + REGT.index(tile)*3 + kb
    return 'lds', 9 + LDST.index(tile)*3 + kb
def xfrag(kb, t, second):
    if kb in REGKB: return 'reg', t*7 + REGKB.index(kb) + (21 if second else 0)
    return 'lds', LDSKB.index(kb)*3 + t + (9 if second else 0)
def apos(w, order):
    ap = {kb: VA + 8*c for c, kb in enumerate(OWN[w])}
    free = [VA + 4*i for i in range(10) if VA + 4*i not in ap.values()]
    for kb in order:
        if kb not in ap: ap[kb] = free.pop(0)
    return ap
STREAM = ['sc1 nt']

def tile_pat(l):
    g, c = l >> 4, l & 15
    return (4*g + 2*(c >> 3) + (c & 1))*16 + ((c >> 1) & 3)*4
def arow(i, h): return 4*(i >> 1) + 2*h + (i & 1)

def common_addr(a):
    T = VTMP
    a(f'v_lshlrev_b32 v{VL16}, 4, v0')
    a(f's_mul_i32 s6, {SWV}, 3'); a(f's_lshl_b32 s7, {SWV}, 1'); a('s_add_u32 s7, s7, 2'); a('s_min_u32 s6, s6, s7')
    a(f's_lshl_b32 {SCHK}, s6, 10')
    a(f'v_add_u32 v{VAR}, {LDS_MEM}, v{VL16}'); a(f'v_add_u32 v{VGW}, {SCHK}, v{VAR}')
    lanefn(a, VFR, lambda l: l*16, T, 36864)
    lanefn(a, VIDX, lambda l: 0x4444 + ((l >> 1) & 1)*0xaaaa, T)
    a(f'v_and_b32 v{T}, 8, v0'); a(f'v_cmp_ne_u32 {SMASK8}, 0, v{T}')

def loader(a, role, after_first=None, dep=11):
    vm = Trk(a, 'vmcnt', 63)
    T = 160
    VD0, VD1, VR0 = T, T + 1, T + 2
    dma_voff(a, VD0, 12288, T + 8, T + 9); dma_voff(a, VD1, 1280, T + 8, T + 9)
    for aa in range(2):
        R = VR0 + 3*aa
        row = lambda l: 4*((l >> 4) & 1) + 2*aa + ((l >> 2) & 1)
        lanefn(a, T + 8, lambda l: row(l) & 6, T + 10); lanefn(a, T + 9, lambda l: (l >> 1) & 1, T + 10, 2)
        a(f'v_xor_b32 v{T+9}, v{T+9}, v{T+8}')
        lanefn(a, R, lambda l: (l >> 5)*2048 + ((l >> 3) & 1)*1024 + row(l)*128 + (l & 1)*8, T + 10)
        a(f'v_lshl_add_u32 v{R}, v{T+9}, 4, v{R}')
        a(f'v_add_u32 v{R+1}, 49152, v{R}'); a(f'v_add_u32 v{R+2}, 98304, v{R}')
    a(f's_mul_i32 s68, {SH}, 384'); a(f's_mul_i32 s67, {SWV}, {8*12288}'); a('s_add_u32 s68, s68, s67')
    a(f's_mul_i32 s69, {SH}, {192*1280}'); a(f's_mul_i32 s67, {SWV}, {8*1280}'); a('s_add_u32 s69, s69, s67')
    a(f's_lshl_b32 s7, {SWV}, 10')
    k2 = 'X' if role == 'qk' else 'Y'
    slabs = [('X', S_WA, i) for i in range(14)] + [(k2, S_WB, i) for i in range(14)] + \
            [('X', S_WA, i) for i in range(14, 20)] + [(k2, S_WB, i) for i in range(14, 20)]
    def dma(n):
        kind, sr, i = slabs[n]
        for c in range(3):
            a(f's_add_u32 m0, s7, {(n % 12)*LDS_SLAB + c*4096}')
            if kind == 'X': a(f's_add_u32 s67, s68, {(2*(REGKB + LDSKB)[i >> 1] + (i & 1))*32*12288 + c*128}')
            else: a(f's_add_u32 s67, s69, {((i&1)*96 + c*32)*1280 + (REGT + LDST)[i >> 1]*128}')
            a(f'buffer_load_dwordx4 v{VD0 if kind=="X" else VD1}, {sr}, s67 offen lds')
            vm.issue(n)
    def dest(n, c):
        kind, sr, i = slabs[n]
        second = (n >= 14) if n < 28 else (n >= 34)
        if kind == 'X': t, kb, half = c, i >> 1, i & 1; f = t * 7 + kb; lf = (kb - 7) * 3 + t
        else:
            ks = (i & 1) * 3 + c; kb, half = ks >> 1, ks & 1; tile = i >> 1
            f = tile * 3 + kb; lf = (tile - 7) * 3 + kb
        if second: f += 21; lf += 9
        return f, lf, half
    def reads(n):
        slot = n % 12
        base = VR0 + slot // 4; off0 = (slot % 4) * LDS_SLAB
        for c in range(3):
            f, lf, half = dest(n, c)
            if n < 28: k, b = wfrag(f, half)
            else: k, b = 'v', 16 + lf * 8 + half * 4
            for aa in range(2):
                a(f'ds_read_b64_tr_b16 {k}[{b+2*aa}:{b+2*aa+1}], v{base + 3*aa} offset:{off0 + c*4096}')
    for n in range(dep): dma(n)
    for n in range(40):
        vm.wait(n)
        a('s_waitcnt lgkmcnt(0)')
        a('s_barrier')
        if n + dep < 40: dma(n + dep)
        reads(n)
        after_first(n, vm)
    a('s_waitcnt lgkmcnt(0)'); a('s_barrier')
    for lf in range(18):
        for half in range(2):
            b = 16 + lf * 8 + half * 4
            a(f'ds_write_b128 v{VFR}, v[{b}:{b+3}] offset:{lf*2048 + half*1024}')
    a('s_waitcnt lgkmcnt(0)')

def mem0_load(a):
    lanefn(a, 18, lambda l: (l & 7)*1280 + (l >> 3)*16, 16)
    lanefn(a, 19, lambda l: LDS_MEM + (l >> 4)*256 + arow(l & 7, (l >> 3) & 1)*16, 16)
    for n in range(10): a(f'buffer_load_dwordx4 v[{24+4*n}:{27+4*n}], v18, {S_AUX}, 0 offen offset:{n*128}')
def mem0_write(a):
    for n in range(10): a(f'ds_write_b128 v19, v[{24+4*n}:{27+4*n}] offset:{n*1024}')

def maxchk(a, regs, first=True):
    regs = list(regs)
    if first:
        a(f'v_max3_u32 v{VT0}, v{regs[0]}, v{regs[1]}, v{regs[2]}'); regs = regs[3:]
    while regs:
        if len(regs) >= 2: a(f'v_max3_u32 v{VT0}, v{VT0}, v{regs[0]}, v{regs[1]}'); regs = regs[2:]
        else: a(f'v_max_u32 v{VT0}, v{VT0}, v{regs[0]}'); regs = []


def gather_setup(a, step_add=0):
    a(f's_add_u32 s67, {SSTEP}, {step_add}'); a('s_and_b32 s67, s67, 3'); a('s_lshl_b32 s67, s67, 1')
    a('s_lshl_b32 s68, s67, 15'); a(f's_add_u32 s67, s67, {SX}')
    a('s_mul_i32 s67, s67, 10240')
    a('s_add_u32 s33, s68, s58')
    a(f's_add_u32 s32, s67, {SCHK}'); a(f's_add_u32 s32, s32, {MEML_OFF}')

def gather(a, n, R, opt, st, rsleep=0, R2=None, det=None):
    ld = lambda r, so: [a(f'buffer_load_dwordx4 v[{r+4*c}:{r+4*c+3}], v{VL16}, {S_WS}, {so} offen offset:{c*1024} sc1') for c in range(n)]
    def chk(r, k=0): a(f's_waitcnt vmcnt({k})'); maxchk(a, range(r, r + 4*n)); a(f'v_cmp_eq_u32 vcc, -1, v{VT0}')
    l1, l1ok, l2, l2ok = [a.label('Lg') for _ in range(4)]
    if det is not None:
        l0, l0d = a.label('Lg'), a.label('Lg')
        a(f'{l0}:')
        a(f'buffer_load_dword v{R}, v{det}, {S_WS}, s32 offen sc1'); a('s_waitcnt vmcnt(0)'); a(f'v_cmp_eq_u32 vcc, -1, v{R}')
        poll_tail(a, l0, l0d)
    stamp(a, opt, st[0])
    if R2 is None:
        a(f'{l1}:')
        ld(R, 's32'); chk(R)
        poll_tail(a, l1, l1ok)
    else:
        ld(R, 's32'); ld(R2, 's33'); chk(R, n)
        a(f's_cbranch_vccnz {l1}')
        a(f'{l1ok}:')
    stamp(a, opt, st[1])
    for c in range(n):
        for i in range(4):
            a(f'v_lshlrev_b32 v{VA+8*c+2*i}, 16, v{R+4*c+i}'); a(f'v_and_b32 v{VA+8*c+2*i+1}, 0xffff0000, v{R+4*c+i}')
    Q = R if R2 is None else R2
    if R2 is None:
        if rsleep: a(f's_sleep {rsleep}')
        ld(Q, 's33')
    chk(Q)
    a(f's_cbranch_vccnz {l2}')
    a(f'{l2ok}:')
    stamp(a, opt, st[2])
    for c in range(n):
        b = VA + 8*c
        for i in range(4):
            a(f'v_dot2c_f32_bf16 v{b+2*i}, {S_ONE0}, v{Q+4*c+i}'); a(f'v_dot2c_f32_bf16 v{b+2*i+1}, {S_ONE1}, v{Q+4*c+i}')
        for i in range(4): a(f'v_cvt_pk_bf16_f32 v{b+i}, v{b+2*i}, v{b+2*i+1}')
        a(f'ds_write_b128 v{VGW}, v[{b}:{b+3}] offset:{c*1024}')
    def outofline():
        if R2 is not None:
            a(f'{l1}:')
            ld(R, 's32'); ld(R2, 's33'); chk(R, n)
            a(f's_cbranch_vccz {l1ok}')
            budget_loop(a, l1, l1ok)
        a(f'{l2}:')
        ld(Q, 's33'); chk(Q)
        a(f's_cbranch_vccz {l2ok}')
        budget_loop(a, l2, l2ok)
    return outofline

ML = ['s[16:17]', 's[18:19]', 's[20:21]']; MR = ['s[22:23]', 's[24:25]', 's[26:27]']; MOR = 's[28:29]'
def mask_or(a, ms):
    a(f's_or_b64 {MOR}, {ms[0]}, {ms[1]}')
    for m in ms[2:]: a(f's_or_b64 {MOR}, {MOR}, {m}')
def ld_masked(a, n, r, so, ms=None):
    for c in range(n):
        if ms: a(f's_mov_b64 exec, {ms[c]}')
        a(f'buffer_load_dwordx4 v[{r+4*c}:{r+4*c+3}], v{VL16}, {S_WS}, {so} offen offset:{c*1024} sc1')
    if ms: a('s_mov_b64 exec, -1')

def gather_m(a, n, R, Q, T, opt, st, det, dep, gap, spec=0, rb=0, lr=0):
    def chk(r, ms, k):
        a(f's_waitcnt vmcnt({k})')
        for c in range(n): a(f'v_max3_u32 v{T+c}, v{r+4*c}, v{r+4*c+1}, v{r+4*c+2}')
        for c in range(n): a(f'v_max_u32 v{T+c}, v{T+c}, v{r+4*c+3}')
        for c in range(n): a(f'v_cmp_eq_u32 {ms[c]}, -1, v{T+c}')
        mask_or(a, ms[:n])
    l1, l1ok, l2, l2b, l2ok = [a.label('Lg') for _ in range(5)]
    if det is not None:
        l0, l0d = a.label('Lg'), a.label('Lg')
        a(f'{l0}:')
        a(f'buffer_load_dword v{R}, v{det}, {S_WS}, s32 offen sc1'); a('s_waitcnt vmcnt(0)'); a(f'v_cmp_eq_u32 vcc, -1, v{R}')
        poll_tail(a, l0, l0d)
    stamp(a, opt, st[0])
    if lr:
        ld_masked(a, n, R, 's32'); chk(R, ML, 0)
        a(f's_cbranch_scc1 {l1}')
        a(f'{l1ok}:')
        ld_masked(a, n, Q, 's33')
    else:
        ld_masked(a, n, R, 's32'); ld_masked(a, n, Q, 's33')
        if rb: a(f's_sleep {rb}'); ld_masked(a, n, Q, 's33')
        chk(R, ML, 2*n if rb else n)
        a(f's_cbranch_scc1 {l1}')
        a(f'{l1ok}:')
    stamp(a, opt, st[1])
    def expand():
        for c in range(n):
            for i in range(4):
                a(f'v_lshlrev_b32 v{VA+8*c+2*i}, 16, v{R+4*c+i}'); a(f'v_and_b32 v{VA+8*c+2*i+1}, 0xffff0000, v{R+4*c+i}')
    def add(c, check=False):
        b = VA + 8*c; q = Q + 4*c
        if check: a(f's_waitcnt vmcnt({n-1-c})'); a(f'v_max3_u32 v{T}, v{q}, v{q+1}, v{q+2}')
        for i in range(4):
            a(f'v_dot2c_f32_bf16 v{b+2*i}, {S_ONE0}, v{q+i}'); a(f'v_dot2c_f32_bf16 v{b+2*i+1}, {S_ONE1}, v{q+i}')
        if check: a(f'v_max_u32 v{T}, v{T}, v{q+3}'); a(f'v_cmp_eq_u32 {MR[c]}, -1, v{T}')
        for i in range(4): a(f'v_cvt_pk_bf16_f32 v{b+i}, v{b+2*i}, v{b+2*i+1}')
        a(f'ds_write_b128 v{VGW}, v[{b}:{b+3}] offset:{c*1024}')
    expand()
    if spec:
        for c in range(n): add(c, True)
        mask_or(a, MR[:n])
        a(f's_cbranch_scc1 {l2}')
        a(f'{l2ok}:')
        stamp(a, opt, st[2])
    else:
        chk(Q, MR, n if rb else 0)
        a(f's_cbranch_scc1 {l2}')
        a(f'{l2ok}:')
        stamp(a, opt, st[2])
        for c in range(n): add(c)
    def outofline():
        a(f'{l1}:')
        if lr: ld_masked(a, n, R, 's32', ML); chk(R, ML, 0)
        else:
            ld_masked(a, n, R, 's32', ML); chk(Q, MR, n)
            ld_masked(a, n, Q, 's33', MR); chk(R, ML, n)
        a(f's_cbranch_scc0 {l1ok}')
        budget_loop(a, l1, l1ok)
        a(f'{l2}:')
        if rb: chk(Q, MR, 0); a(f's_cbranch_scc0 {l2ok}')
        for _ in range(dep - 1):
            ld_masked(a, n, Q, 's33', MR); a(f's_sleep {gap}')
        a(f'{l2b}:')
        ld_masked(a, n, Q, 's33', MR)
        if spec: expand()
        chk(Q, MR, n*(dep - 1))
        if not spec:
            a(f's_cbranch_scc0 {l2ok}')
            budget_loop(a, l2b, l2ok)
            return
        l2c, l2d = a.label('Lg'), a.label('Lg')
        a(f's_cbranch_scc0 {l2d}')
        a(f'{l2c}:')
        ld_masked(a, n, Q, 's33', MR); chk(Q, MR, 0)
        a(f's_cbranch_scc0 {l2d}')
        budget_loop(a, l2c, l2d)
        a(f'{l2d}:')
        for c in range(n): add(c)
        a(f's_branch {l2ok}')
    return outofline

def a_read(kb, reg):
    return ('lds', f'ds_read_b128 v[{reg}:{reg+3}], v{VAR} offset:{kb*1024}', f'A{kb}')
def frag_reads(lf, slot):
    return [('lds', f'ds_read_b128 v[{VB+8*slot+4*x}:{VB+8*slot+4*x+3}], v{VFR} offset:{lf*2048 + x*1024}', f'F{lf}') for x in range(2)]
def smf(acc, A, B): return f'v_smfmac_f32_16x16x64_bf16 v[{acc}:{acc+3}], v[{A}:{A+3}], {B}, v{VIDX}'
def post(acc, out, scale=None, pk=False):
    if pk: r = [f'v_pk_add_f32 v[{acc}:{acc+1}], v[{acc}:{acc+1}], v[{acc+2}:{acc+3}]']
    else: r = [f'v_add_f32 v{acc+i}, v{acc+i}, v{acc+2+i}' for i in range(2)]
    if scale: r += [f'v_mul_f32 v{acc+i}, {scale}, v{acc+i}' for i in range(2)]
    return r + [f'v_cvt_pk_bf16_f32 v{out}, v{acc}, v{acc+1}']

def allred(op, v, t, stages=(16, 32)):
    r = []
    for st in stages: r += [f'v_mov_b32 v{t}, v{v}', f'v_permlane{st}_swap_b32 v{v}, v{t}', f'{op} v{v}, v{v}, v{t}']
    return r

def stamp_flush(a, opt, n):
    if not opt.get('stamps'): return
    a('s_waitcnt lgkmcnt(0)')
    a(f's_lshl_b32 s67, {SSLOT}, 2'); a(f's_add_u32 s67, s67, {SWV}'); a('s_lshl_b32 s67, s67, 6'); a(f's_add_u32 s67, s67, {SSTEP}')
    a('s_lshl_b32 s67, s67, 6'); a(f's_add_u32 s67, s67, {STAMP_OFF}')
    a(f'v_lshlrev_b32 v{VT1}, 2, v0')
    for i in range(n): a(f'v_writelane_b32 v{VT0}, s{STAMP0+2*i}, {i}')
    a('s_mov_b64 exec, 0xffff')
    a(f'buffer_store_dword v{VT0}, v{VT1}, {S_WS}, s67 offen')
    a('s_mov_b64 exec, -1')

SPC = 's60'
SMR = 's59'
SELF = 3
def check_flags(a, opt, kind, skip=None, early=None):
    if opt.get('noflags'): return
    lp, ld = a.label('Lf'), a.label('Lfd')
    a(f's_sub_u32 s61, s82, {LEAD-4}'); a('s_max_i32 s61, s61, 0'); a('s_lshr_b32 s61, s61, 2'); a('s_add_u32 s61, s61, s82')
    a(f's_cmp_gt_u32 {SPC}, s61'); a(f's_cbranch_scc1 {ld}')
    if early:
        a(f's_waitcnt vmcnt({early[1]})')
        for r in (8, 4, 2, 1): a(f'v_min_u32_dpp v{early[0]}, v{early[0]}, v{early[0]} row_ror:{r} row_mask:0xf bank_mask:0xf')
        a(f'v_readfirstlane_b32 {SPC}, v{early[0]}')
        a(f's_cmp_gt_u32 {SPC}, s61'); a(f's_cbranch_scc1 {ld}')
    if kind == 'K': a(f'v_and_b32 v{VT1}, 15, v0'); a(f'v_min_u32 v{VT1}, 2, v{VT1}'); a(f'v_lshlrev_b32 v{VT1}, 7, v{VT1}')
    elif kind == 'Y16': a(f'v_and_b32 v{VT1}, 15, v0'); a(f'v_lshlrev_b32 v{VT1}, 7, v{VT1}')
    else: a(f'v_and_b32 v{VT1}, 3, v0'); a(f'v_mul_u32_u24 v{VT1}, {40*128}, v{VT1}')
    a(f'{lp}:')
    a(f'buffer_load_dword v{VT0}, v{VT1}, {S_WS}, s81 offen sc1'); a('s_waitcnt vmcnt(0)')
    for r in (8, 4, 2, 1): a(f'v_min_u32_dpp v{VT0}, v{VT0}, v{VT0} row_ror:{r} row_mask:0xf bank_mask:0xf')
    a(f'v_readfirstlane_b32 {SPC}, v{VT0}')
    a(f's_cmp_gt_u32 {SPC}, s61'); a(f's_cbranch_scc1 {ld}')
    if skip: a(f's_cmp_lt_u32 s82, {opt.get("self", SELF)}'); a(f's_cbranch_scc1 {skip}')
    budget_loop(a, lp, ld)
    a(f'{ld}:')

def cprog(a):
    a('s_waitcnt vmcnt(0)')
    a(f's_lshl_b32 s67, {SSLOT}, 7'); a(f's_add_u32 s67, s67, {CPRG_OFF}'); a(f's_add_u32 s68, {SSTEP}, 1'); a(f'v_mov_b32 v{VT0}, s68'); a(f'v_mov_b32 v{VT1}, 0')
    a('s_mov_b64 exec, 1')
    a(f'buffer_store_dword v{VT0}, v{VT1}, {S_WS}, s67 offen sc1')
    a('s_mov_b64 exec, -1')

def cprog_late(a, sreg, vadr, vval):
    a(f's_lshl_b32 {sreg}, {SSLOT}, 7'); a(f's_add_u32 {sreg}, {sreg}, {CPRG_OFF}'); a(f's_cmp_gt_u32 {SSTEP}, {4*NMB}'); a(f's_cselect_b32 {sreg}, {sreg}, {OOB}')
    a(f'v_mov_b32 v{vval}, {SSTEP}'); a(f'v_min_u32 v{vadr}, 1, v0'); a(f'v_lshlrev_b32 v{vadr}, 30, v{vadr}')

def load_frags6(a, dst, base_off, ct, seg='s82'):
    a(f's_lshl_b32 s67, {seg}, 5'); a(f's_add_u32 s67, s67, {SH}'); a('s_mul_i32 s67, s67, 12288')
    a(f's_add_u32 s67, s67, {base_off + ct*6144}'); a('s_add_u32 s68, s67, 4096')
    for kk in range(6):
        a(f'buffer_load_dwordx4 v[{dst+4*kk}:{dst+4*kk+3}], v{VL16}, {S_WS}, {"s67" if kk < 4 else "s68"} offen offset:{(kk&3)*1024} {STREAM[0]}')

def build_stream(first_items, second_items):
    items = []; ldsq = []; idx2 = {}
    def add(it):
        kind, acc, A, ref, needs = it
        if kind == 'reg': items.append((smf(acc, A, wfrag(ref)), needs))
        elif kind == 'lds':
            sl = len(ldsq) % 4; ldsq.append((len(items), ref, sl))
            items.append((smf(acc, A, f'v[{VB+8*sl}:{VB+8*sl+7}]'), needs + [f'F{ref}']))
        else: items.append((ref, needs))
    for it in first_items: add(it)
    n = 0
    for it in second_items:
        if it[0] != 'raw': idx2[n] = len(items); n += 1
        add(it)
    return items, ldsq, idx2

class Sides:
    def __init__(self): self.side = {}; self.busy = set(); self.vbusy = {}
    def put(self, g, r): self.side.setdefault(g, []).append(r)
    def lds(self, g, r, force=False):
        if not force:
            while g in self.busy: g += 1
        self.put(g, r); self.busy.add(g); return g
    def valu(self, g, instrs, per=1):
        last = g - 1; end = g
        for s in instrs:
            if s is None: g = last + 2; continue
            if isinstance(s, tuple): self.lds(last + 1, s, True); end = max(end, last + 2); continue
            if not s.startswith('v_'): self.put(last + 1, s); end = max(end, last + 2); continue
            while self.vbusy.get(g, 0) >= per: g += 1
            self.put(g, s); self.vbusy[g] = self.vbusy.get(g, 0) + 1; last = g; end = max(end, g + 1)
        self.nxt = g
        return end
    def refills(self, ldsq):
        for n in range(len(ldsq) - 4):
            g = ldsq[n][0]
            lim = ldsq[n+4][0] - 6
            for r in frag_reads(ldsq[n+4][1], ldsq[n][2]):
                g2 = g
                while g2 in self.busy: g2 += 1
                if g2 <= lim: g = self.lds(g2, r)
                else: g = self.lds(max(g, min(lim, g + 1)), r, True)
                assert g < ldsq[n+4][0] - 1, (n, g, ldsq[n+4])

DPP8 = 'row_ror:8 row_mask:0xf bank_mask:0xf'
def dense_reads(dst, off, tagp, kks=range(6)):
    return [('lds', f'ds_read_b64_tr_b16 v[{dst+4*kk+2*x}:{dst+4*kk+2*x+1}], v{VDR} offset:{off + (2*kk+x)*256}', f'{tagp}{kk}')
            for kk in kks for x in range(2)]

def preload_b(a, lg, ldsq):
    for n in range(4):
        for r in frag_reads(ldsq[n][1], ldsq[n][2]): a(r[1]); lg.issue(r[2])

QORD = [[0, 1, 2, 3, 4, 5, 6, 7, 9, 8], [3, 4, 5, 0, 1, 2, 6, 7, 9, 8], [6, 7, 2, 0, 1, 5, 3, 4, 9, 8], [8, 9, 0, 1, 2, 3, 4, 6, 5, 7]]
KORD = [0, 2, 1, 3, 5, 4, 6, 9, 7, 8]

def qk_setup(a, opt):
    common_addr(a)
    T = VTMP
    rho = lambda l: arow(l & 7, (l >> 3) & 1)
    lanefn(a, VXW, lambda l: LDS_MEM + (l & 15)*16 + (l >> 4)*4, T, 256)
    lanefn(a, VDR, lambda l: LDS_MEM + (l >> 2)*16 + (l & 1)*8, T)
    lanefn(a, V9, lambda l: (l >> 5)*256 + rho(l)*16 + ((l >> 4) & 1)*8, T)
    lanefn(a, V10, lambda l: rho(l)*16 + ((l >> 4) & 1)*4, T)
    lanefn(a, V11, lambda l: LDS_MEM + 3072 + l*16, T)
    lanefn(a, V12, lambda l: LDS_MEM + ((l >> 3) & 1)*512 + arow(l & 7, l >> 5)*16 + ((l >> 4) & 1)*8, T)
    a(f's_and_b32 s68, {SH}, 15'); a('s_min_u32 s68, s68, 9'); a('s_lshl_b32 s68, s68, 10'); a(f'v_add_u32 v{V12}, s68, v{V12}')
    lanefn(a, VXS, lambda l: ((l >> 3) & 1)*1024 + (l >> 4)*256 + (l & 7)*16, T)
    a(f's_mul_i32 s67, {SX}, 12288'); a(f's_add_u32 s67, s67, {PA_OFF}')
    a(f's_and_b32 s68, {SH}, 15'); a('s_lshl_b32 s76, s68, 9'); a('s_add_u32 s76, s76, s67')
    a('s_lshr_b32 s77, s68, 1'); a('s_lshl_b32 s77, s77, 8'); a('s_add_u32 s77, s77, s67')
    a('s_and_b32 s68, s68, 1'); a('s_lshl_b32 s68, s68, 3'); a('s_add_u32 s77, s77, s68'); a('s_add_u32 s77, s77, 8192')

def qk_init_clear(a):
    a(f'v_mov_b32 v{VA+16}, -1'); a(f'v_mov_b32 v{VA+17}, -1')
    a(f'buffer_store_dwordx2 v[{VA+16}:{VA+17}], v{V9}, {S_WS}, s76 offen sc1')
    a(f'buffer_store_dword v{VA+16}, v{V10}, {S_WS}, s77 offen sc1')

def mf(D, A, B, first): return f'v_mfma_f32_16x16x32_bf16 v[{D}:{D+3}], v[{A}:{A+3}], v[{B}:{B+3}], ' + ('0' if first else f'v[{D}:{D+3}]')

def stream_head(sd, w, order, AP, opt, rest):
    g = opt.get('gb1', 3)
    sd.put(g, ('wait', 'GW')); sd.put(g, 's_barrier')
    for kb in order:
        if kb not in OWN[w]:
            sd.lds(g, a_read(kb, AP[kb]), True); g += 1
    return g

def qk_loop(a, w, sc, opt):
    VZ = VTMP + 15
    lg = Trk(a, 'lgkmcnt', 15)
    ltop, lent, lfin = a.label('Lqk'), a.label('Lqkent'), a.label('Lqkfin')
    QEX = LDS_EX - LDS_MEM
    SACC, SM = VTMP, VTMP + 4
    QO = QORD[w]
    AP = apos(w, QO)
    seq = [(kb, t) for kb in QO[:6] for t in range(3)] + [(kb, t) for t in range(3) for kb in QO[6:]]
    first = [(xfrag(kb, t, 0)[0], VACC0 + 4*t, AP[kb], xfrag(kb, t, 0)[1], [f'A{kb}']) for kb, t in seq]
    second = []
    n = 0
    SX0 = opt.get('sx0', 19); QS = opt.get('qscale', 0)
    for t in range(3):
        for kb in KORD:
            second.append((xfrag(kb, t, 1)[0], VACC1 + 4*t, AP[kb], xfrag(kb, t, 1)[1], []))
            if w >= 2 and n == SX0:
                for kk in range(6): second.append(('raw', 0, 0, mf(SACC, VKX + 4*kk, VQF + 4*kk, kk == 0), [f'Q{kk}']))
            if w == 0 and n == 29:
                for kk in range(4): second.append(('raw', 0, 0, mf(SM, VKX + 4*kk, VQF + 4*kk, kk == 0), [f'K{kk}', f'Q{kk}']))
            n += 1
    items, ldsq, k2 = build_stream(first, second)
    sd = Sides()
    stream_head(sd, w, QO, AP, opt, None)
    sd.put(opt.get('gb1', 3), lambda o_=opt: stamp(a, o_, 1))
    pub_rd = [('lds', f'ds_read_b64 v[{VKX+2*x}:{VKX+2*x+1}], v{V12} offset:{x*256}', 'PUB') for x in range(2)]
    pub_st = f'buffer_store_dwordx4 v[{VKX}:{VKX+3}], v{VXS}, {S_WS}, s44 offen sc1'
    if w == 1:
        sd.put(0, f'buffer_store_dword v{VT1}, v{VT2}, {S_WS}, s46 offen sc1')
        for r in pub_rd: sd.lds(18, r)
        sd.put(25, ('wait', 'PUB')); sd.put(opt.get('pubg', 25), pub_st)
        for j in range(6):
            sd.put(1 + 3*j, f'buffer_load_dword v{VKX+4+j}, v{V9}, {S_WS}, s{[45, 48, 49][j >> 1]} offen sc1')
            if j % 2 == 0: sd.put(2 + 3*j, f's_add_u32 s{[45, 48, 49][j >> 1]}, s{[45, 48, 49][j >> 1]}, 8192')
    if w == 0:
        sd.put(opt.get('kt0', 1), f'buffer_load_dword v{VTMP+13}, v{V12}, {S_WS}, s45 offen sc1')
        sd.put(opt.get('kt0', 1) + 4, f'buffer_load_dword v{VTMP+13}, v{VXS}, {S_WS}, s45 offen sc1')
        sd.put(9, f'buffer_store_dword v{VT1}, v{VT0}, {S_WS}, s55 offen sc1')
        if opt.get('async', 0): sd.put(19, f'buffer_load_dword v{VTMP+14}, v{VT2}, {S_WS}, s54 offen sc1')
    if w == 1 and opt.get('async', 0): sd.put(opt.get('w1p', 21), f'buffer_load_dword v{V11}, v{V10}, {S_WS}, s54 offen sc1')
    wr = lambda acc, t, off, tag: ('lds', f'ds_write_b32 v{VXW}, v{acc} offset:{off + t*1024}', tag)
    for t in range(3): gq = sd.valu([23, 27, 31][t], post(VACC0 + 4*t, VACC0 + 4*t, 's52' if QS else None) + [wr(VACC0 + 4*t, t, QEX, 'QW')], opt.get('qper', [1, 1, 2])[t])
    gb = gq + opt.get('gba', [3, 1, 4, 4])[w]
    if w != 1: sd.put(gb, f's_waitcnt vmcnt({0 if w else 3 + opt.get("async", 0)})')
    sd.put(gb, ('wait', 'QW')); sd.put(gb, 's_barrier')
    if opt.get('diag'): sd.put(gb, lambda: stamp(a, opt, 0))
    if w >= 2:
        for i, r in enumerate(dense_reads(VQF, QEX, 'Q')): sd.lds(gb + (i * opt.get('qspan', 10)) // 12, r, True)
    gk = 0
    for t in range(2): gk = sd.valu(k2[10*t + 9] + 2, post(VACC1 + 4*t, VACC1 + 4*t) + [wr(VACC1 + 4*t, t, 0, 'KW')])
    gB = gk + opt.get('gbb', [1, 1, 3, 3])[w]
    sd.put(gB, ('wait', 'KW')); sd.put(gB, 's_barrier')
    assert gB < len(items)
    if w == 0:
        for i, r in enumerate(dense_reads(VKX, 0, 'K', range(4))): sd.lds(gB + i // opt.get('krd', 3), r, True)
    sd.valu(k2[29] + 2, post(VACC1 + 8, VACC1 + 8, None, w > 0) + [wr(VACC1 + 8, 2, 0, 'KW')])
    E0, T, X0 = VTMP + 8, VTMP + 12, VTMP + 4
    ool4 = None
    if w >= 2:
        lsx, lsxb = a.label('Lsx'), a.label('Lsxb')
        p0 = [f'v_cndmask_b32 v{X0}, v{SACC}, v{SACC+2}, {SMASK8}', f'v_cndmask_b32 v{X0+1}, v{SACC+1}, v{SACC+3}, {SMASK8}',
              f'v_exp_f32 v{E0}, v{X0}', f'v_exp_f32 v{E0+1}, v{X0+1}',
              f'v_max_f32 v{T}, |v{X0}|, |v{X0+1}|', f'v_add_f32 v{E0+3}, v{E0}, v{E0+1}', f'v_cmp_lt_f32 vcc, s79, v{T}']
        if not QS: p0[2:2] = [f'v_mul_f32 v{X0}, s52, v{X0}', f'v_mul_f32 v{X0+1}, s52, v{X0+1}']
        np2 = opt.get('np2', 2 if QS else 4)
        sd.valu(k2[SX0 + 2], p0[:np2], 2)
        g = sd.valu(sd.nxt + 1, p0[np2:])
        sd.put(g, lambda: (a(f's_cbranch_vccnz {lsx}'), a(f'{lsxb}:')))
        sd.lds(g, ('lds', f'ds_write_b128 v{V11}, v[{E0}:{E0+3}] offset:{(w-2)*1024}', 'EW'), True)
        def ool4():
            m = E0 + 2
            a(f'{lsx}:')
            a(f'v_max_f32 v{m}, v{X0}, v{X0+1}'); a(f'v_max_f32_dpp v{m}, v{m}, v{m} {DPP8}')
            for s_ in allred('v_max_f32', m, T): a(s_)
            for i in range(2): a(f'v_sub_f32 v{E0+i}, v{X0+i}, v{m}')
            for i in range(2): a(f'v_exp_f32 v{E0+i}, v{E0+i}')
            a(f'v_add_f32 v{E0+3}, v{E0}, v{E0+1}')
            a(f's_branch {lsxb}')
        sd.valu(5, [f'v_mov_b32 v{E0+2}, 0'])
    sd.refills(ldsq)
    if w == 0:
        for i, r in enumerate(dense_reads(VQF, QEX, 'Q')):
            g = gb
            while g in sd.busy and g < gB - 1: g += 1
            sd.lds(g if g < gB - 1 else gB - 2 - (i & 3), r, True)
    if opt.get('dq'):
        for i_, g_ in zip((0, 6, 7, 3, 4), opt['dq']): sd.put(g_, lambda i_=i_: stamp(a, dict(stamps=1, cyc=1), i_))
        opt = {k_: v_ for k_, v_ in opt.items() if k_ != 'stamps'}; opt['dq1'] = 1

    def top():
        preload_b(a, lg, ldsq)
        for r in range(0, 24, 2): a(f'v_mov_b64 v[{VACC0+r}:{VACC0+r+1}], 0')
        if w == 0: a(f's_bitcmp1_b32 {SSTEP}, 0'); a('s_cselect_b32 s78, -1.0, 1.0'); cprog_late(a, 's55', VT0, VT1)
        if w == 1:
            a(f'v_mov_b32 v{VT1}, {SSTEP}')
            a(f's_lshr_b32 s67, {SSTEP}, 2'); a('s_mul_i32 s44, s67, 40960'); a(f's_bfe_u32 s67, {SSTEP}, 0x10001'); a('s_mul_i32 s67, s67, 20480')
            a('s_add_u32 s44, s44, s67'); a(f's_and_b32 s67, {SSTEP}, 1'); a('s_lshl_b32 s67, s67, 7'); a('s_add_u32 s44, s44, s67'); a('s_add_u32 s44, s44, s47')
    def prefetch():
        ls = a.label('Lnp')
        if w <= 1: a(f's_mov_b32 s45, {OOB}')
        a(f's_cmp_ge_u32 s82, {1 if opt.get("nopf") else 63}'); a(f's_cbranch_scc1 {ls}')
        if w >= 2:
            lk = a.label('Lk')
            a(f's_cmp_ge_u32 s82, {opt.get("self", SELF)}'); a(f's_cbranch_scc1 {lk}')
            check_flags(a, opt, 'K')
            a(f'{lk}:')
            load_frags6(a, VKX, KF_OFF, w - 2)
        elif w == 0:
            check_flags(a, opt, 'K', ls, (VTMP + 14, 2) if opt.get('async', 0) else None)
            a(f's_lshl_b32 s45, s82, 5'); a(f's_add_u32 s45, s45, {SH}'); a('s_mul_i32 s45, s45, 12288'); a(f's_add_u32 s45, s45, {KF_OFF}')
        elif not opt.get('notouch'):
            check_flags(a, opt, 'Y16', ls, (V11, 1 if opt.get('w1p', 21) < opt.get('pubg', 25) else 0) if opt.get('async', 0) else None)
            a(f's_mul_i32 s45, s82, {40*40960}'); a('s_add_u32 s45, s45, s50')
        a(f'{ls}:')
        if w <= 1 and opt.get('async', 0):
            a(f's_sub_u32 s61, s82, {LEAD-4-1}'); a('s_max_i32 s61, s61, 0'); a('s_lshr_b32 s61, s61, 2'); a('s_add_u32 s61, s61, s82'); a('s_add_u32 s61, s61, 1')
            a(f's_cmp_gt_u32 {SPC}, s61'); a(f's_cselect_b32 s54, {OOB}, s81')
        if w == 1:
            a(f's_add_u32 s48, s45, {16*40960}'); a(f's_add_u32 s49, s45, {32*40960}'); a(f's_bitcmp1_b32 {SH}, 3'); a(f's_cselect_b32 s49, {OOB}, s49')
    a(f's_mov_b32 {SSTEP}, 0'); a(f's_mov_b32 s52, {f2u(SC):#x}'); a('s_mov_b32 s53, s52'); a(f's_mov_b32 s79, {f2u(opt.get("safe", 60.0)):#x}')
    if w != 1: a(f's_mul_i32 s81, {SH}, 384'); a(f's_add_u32 s81, s81, {PRGX_OFF + 96*128}')
    if w >= 2: a('s_mov_b32 s82, 0'); prefetch()
    if w == 0:
        a(f's_mov_b32 s45, {OOB}'); a(f'v_lshlrev_b32 v{V12}, 7, v0'); a(f'v_add_u32 v{VXS}, 8192, v{V12}'); a(f'v_min_u32 v{VXS}, 12160, v{VXS}')
        a(f'v_and_b32 v{VT2}, 15, v0'); a(f'v_min_u32 v{VT2}, 2, v{VT2}'); a(f'v_lshlrev_b32 v{VT2}, 7, v{VT2}')
    if w == 1:
        a(f'v_lshlrev_b32 v{V9}, 7, v0'); a(f'v_and_b32 v{V10}, 15, v0'); a(f'v_lshlrev_b32 v{V10}, 7, v{V10}')
        a(f'v_cmp_eq_u32 vcc, 0, v0'); a(f'v_mov_b32 v{VT2}, 0x40000000'); a(f'v_cndmask_b32 v{VT2}, v{VT2}, 0, vcc')
        a(f's_lshl_b32 s81, {SX}, 11'); a(f's_bfe_u32 s67, {SH}, 0x20002'); a(f's_mul_i32 s67, s67, {40*128}'); a('s_add_u32 s81, s81, s67'); a(f's_add_u32 s81, s81, {PRGY_OFF}')
        a(f's_and_b32 s50, {SH}, 15'); a('s_mul_i32 s50, s50, 40960'); a(f's_lshl_b32 s67, {SX}, 14'); a('s_add_u32 s50, s50, s67'); a(f's_add_u32 s50, s50, {VOF_OFF}')
        a(f's_lshl_b32 s46, {SH}, 7'); a(f's_add_u32 s46, s46, {MPRG_OFF}'); a(f's_lshl_b32 s47, {SH}, 11'); a(f's_add_u32 s47, s47, {XN_OFF + 64*40960}')
        a(f's_cmp_ge_u32 {SH}, 10'); a(f's_cselect_b32 s46, {OOB}, s46'); a(f's_cselect_b32 s47, {OOB}, s47')
        for r in (45, 48, 49): a(f's_mov_b32 s{r}, {OOB}')
    if w <= 1: a('s_mov_b32 s54, s81')
    if w == 1: a(f's_mov_b32 {SPC}, 0')
    top()
    for kb in OWN[w]: a(a_read(kb, AP[kb])[1])
    a('s_waitcnt lgkmcnt(0)')
    a(f's_branch {lent}')
    a(f'{ltop}:')
    lg.reset()
    a('s_barrier')
    a(f's_add_u32 s82, {SSTEP}, {[1, opt.get("tahead", 2) - 1, 0, 0][w]}'); prefetch()
    top()
    gather_setup(a)
    qs = opt.get('qsleep', 11) - (opt.get('qsk', 2) if w >= 2 else 0)
    if qs > 0: a(f's_sleep {qs}')
    if opt.get('qdet', 0): a(f'v_and_b32 v{VZ}, {(8 if NCH[w] == 2 else 16) - 1}, v0'); a(f'v_min_u32 v{VZ}, {4*NCH[w]-1}, v{VZ}'); a(f'v_lshlrev_b32 v{VZ}, 8, v{VZ}')
    else: a(f'v_mov_b32 v{VZ}, 0')
    a('s_waitcnt lgkmcnt(0)')
    if opt.get('mg', 1): ool = gather_m(a, NCH[w], VTMP, VQF, VTMP + 12, opt, (0, 6, 7), VZ if opt.get('qd', 0) else None, 1, 0, opt.get('spec', 0), opt.get('rbq', 0), opt.get('lrq', 1))
    else: ool = gather(a, NCH[w], VTMP, {k: v for k, v in opt.items() if k != 'stamps'} if opt.get('diag') else opt, (0, 6, 7), opt.get('qrs', 0), VQF if opt.get('qj', 1) else None, VZ if opt.get('qj', 1) else None)
    a(f'{lent}:')
    lg.reset(); lg.issue('GW')
    left = [x_ for g_ in sorted(sd.side) if g_ >= len(items) for x_ in sd.side[g_]]
    merge(a, lg, items, sd.side)
    for x_ in left: merge(a, lg, [], {-1: [x_]})
    if opt.get('dq1'): stamp(a, dict(stamps=1, cyc=1), 2)
    stamp(a, opt, 2)
    EA, EB = VB, VB + 4
    U, LM, F0, F1, LS = VB + 8, VB + 9, VB + 10, VB + 11, VB + 12
    redl = [f'v_add_f32_dpp v{LS}, v{LS}, v{LS} {DPP8}', f'v_mov_b32 v{T}, v{LS}', f'v_permlane16_swap_b32 v{LS}, v{T}', f'v_add_f32 v{LS}, v{LS}, v{T}',
            f'v_mov_b32 v{T}, v{LS}', f'v_permlane32_swap_b32 v{LS}, v{T}', f'v_add_f32 v{LS}, v{LS}, v{T}', f'v_mul_f32 v{LS}, s78, v{LS}']
    lg.all(); a('s_barrier')
    if opt.get('diag'): stamp(a, opt, 6)
    ool3 = None
    if w == 0:
        lslow, lback = a.label('Lsm'), a.label('Lsb')
        for r in dense_reads(VKX, 0, 'K', range(4, 6)): a(r[1]); lg.issue(r[2])
        a(f'ds_read_b128 v[{EA}:{EA+3}], v{V11}'); lg.issue('E'); a(f'ds_read_b128 v[{EB}:{EB+3}], v{V11} offset:1024'); lg.issue('E')
        lkm, lkb = a.label('Lkm'), a.label('Lkb')
        a(f's_cmp_eq_u32 {SSTEP}, 63'); a(f's_cbranch_scc1 {lkm}')
        for kk in range(4, 6):
            lg.wait(f'K{kk}'); a(mf(SM, VKX + 4*kk, VQF + 4*kk, False))
        lg.wait('E')
        for s_ in [f'v_add_f32 v{LS}, v{EA+3}, v{EB+3}', f'v_max_f32 v{U}, |v{EA+2}|, |v{EB+2}|', f'v_mul_f32 v{U}, 0x71800000, v{U}', redl[0], redl[1]]: a(s_)
        stamp(a, opt, 3)
        T2, PO = VB + 13, VB + 16
        a(f'v_cndmask_b32 v{SM}, v{SM}, v{SM+2}, {SMASK8}'); a(f'v_cndmask_b32 v{SM+1}, v{SM+1}, v{SM+3}, {SMASK8}')
        if not QS: a(f'v_mul_f32 v{SM}, s52, v{SM}'); a(f'v_mul_f32 v{SM+1}, s52, v{SM+1}')
        a(f'v_exp_f32 v{SM+2}, v{SM}'); a(f'v_exp_f32 v{SM+3}, v{SM+1}')
        a(redl[2]); a(f'v_max3_f32 v{U}, |v{SM}|, |v{SM+1}|, v{U}'); a(redl[3])
        a(f'v_add_f32 v{LM}, v{SM+2}, v{SM+3}')
        a(redl[4])
        a(f'v_cmp_lt_f32 vcc, s79, v{U}')
        def fin(first):
            a(f'v_add_f32_dpp v{LM}, v{LM}, v{LM} {DPP8}')
            if first: a(redl[5])
            a(f'v_mov_b32 v{T2}, v{LM}')
            if first: a(redl[6]); a(redl[7])
            a(f'v_permlane16_swap_b32 v{LM}, v{T2}'); a(f'v_add_f32 v{LM}, v{LM}, v{T2}')
            a(f'v_fma_f32 v{LM}, v{LM}, s78, v{LS}')
            a(f'v_rcp_f32 v{LM}, v{LM}')
            a(f'v_pk_mul_f32 v[{PO}:{PO+1}], v[{EA}:{EA+1}], v[{LM-1}:{LM}] op_sel:[0,1]'); a(f'v_pk_mul_f32 v[{PO+2}:{PO+3}], v[{EB}:{EB+1}], v[{LM-1}:{LM}] op_sel:[0,1]')
            a(f'v_cvt_pk_bf16_f32 v{PO}, v{PO}, v{PO+1}'); a(f'v_cvt_pk_bf16_f32 v{PO+1}, v{PO+2}, v{PO+3}')
        fin(True)
        a(f's_cbranch_vccnz {lslow}')
        a(f'{lback}:')
        a(f'buffer_store_dwordx2 v[{PO}:{PO+1}], v{V9}, {S_WS}, s76 offen {sc}')
        a(f'v_pk_mul_f32 v[{SM+2}:{SM+3}], v[{SM+2}:{SM+3}], v[{LM-1}:{LM}] op_sel:[0,1]')
        a(f'v_cvt_pk_bf16_f32 v{SM}, v{SM+2}, v{SM+3}')
        a(f'buffer_store_dword v{SM}, v{V10}, {S_WS}, s77 offen {sc}')
        stamp(a, opt, 4)
        if opt.get('diagp'): a('s_waitcnt vmcnt(0)')
        a(f's_cmp_ge_u32 {SSTEP}, {4*NMB}'); a(f's_cbranch_scc1 {lkm}')
        a(f'{lkb}:')
        def ool3():
            a(f'{lkm}:')
            a(f's_mul_i32 s72, {SH}, 12288'); a(f's_bfe_u32 s67, {SSTEP}, 0x10001'); a('s_mul_i32 s67, s67, 6144'); a('s_add_u32 s72, s72, s67')
            a(f's_lshr_b32 s67, {SSTEP}, 2'); a(f's_mul_i32 s67, s67, {32*12288}'); a('s_add_u32 s72, s72, s67')
            a(f's_add_u32 s72, s72, {KF_OFF + 64*32*12288}'); a('s_add_u32 s73, s72, 4096')
            a(f's_bitcmp1_b32 {SSTEP}, 0'); a('s_cselect_b32 s74, 8, 0'); a('s_lshl_b32 s74, 0x00ff00ff, s74'); a('s_mov_b32 exec_lo, s74'); a('s_mov_b32 exec_hi, s74')
            a('s_waitcnt lgkmcnt(0)')
            for kk in range(6): a(f'buffer_store_dwordx4 v[{VKX+4*kk}:{VKX+4*kk+3}], v{VL16}, {S_WS}, s{72 + (kk >> 2)} offen offset:{(kk & 3)*1024} sc1')
            a('s_mov_b64 exec, -1')
            a(f's_cmp_lt_u32 {SSTEP}, 63'); a(f's_cbranch_scc1 {lkb}')
            cprog(a)
            a('s_waitcnt vmcnt(0)'); a('s_endpgm')
            a(f'{lslow}:')
            a(f'v_max_f32 v{U}, v{SM}, v{SM+1}'); a(f'v_max_f32_dpp v{U}, v{U}, v{U} {DPP8}')
            for s_ in allred('v_max_f32', U, T, (16,)): a(s_)
            a(f'v_max3_f32 v{U}, v{U}, v{EA+2}, v{EB+2}')
            a(f'v_sub_f32 v{SM}, v{SM}, v{U}'); a(f'v_sub_f32 v{SM+1}, v{SM+1}, v{U}'); a(f'v_sub_f32 v{F0}, v{EA+2}, v{U}'); a(f'v_sub_f32 v{F1}, v{EB+2}, v{U}')
            a(f'v_exp_f32 v{SM+2}, v{SM}'); a(f'v_exp_f32 v{SM+3}, v{SM+1}'); a(f'v_exp_f32 v{F0}, v{F0}'); a(f'v_exp_f32 v{F1}, v{F1}')
            a(f'v_mul_f32 v{LS}, v{EA+3}, v{F0}'); a(f'v_fmac_f32 v{LS}, v{EB+3}, v{F1}')
            for s_ in redl: a(s_)
            for i in range(2): a(f'v_mul_f32 v{EA+i}, v{EA+i}, v{F0}'); a(f'v_mul_f32 v{EB+i}, v{EB+i}, v{F1}')
            a(f'v_add_f32 v{LM}, v{SM+2}, v{SM+3}')
            fin(False)
            a(f's_branch {lback}')
    if opt.get('dq1'): opt = dict(opt, stamps=1)
    stamp(a, opt, 5)
    stamp_flush(a, opt, 8)
    a(f's_add_u32 {SSTEP}, {SSTEP}, 1'); a(f's_cmp_lt_u32 {SSTEP}, 64'); a(f's_cbranch_scc1 {ltop}')
    a('s_waitcnt vmcnt(0)'); a('s_endpgm')
    ool()
    if ool3: ool3()
    if ool4: ool4()

def vo_setup(a, opt):
    common_addr(a)
    T = VTMP
    lanefn(a, VXW, lambda l: LDS_EX + tile_pat(l), T, 256)
    a(f'v_and_b32 v{T}, 1, v0'); a(f'v_cmp_ne_u32 vcc, 0, v{T}'); a(f'v_mov_b32 v{T}, 0x05040100'); a(f'v_mov_b32 v{T+1}, 0x03020706')
    a(f'v_cndmask_b32 v{VXS}, v{T}, v{T+1}, vcc')
    lanefn(a, V9, lambda l: ((l >> 4) & 1)*1024 + (l & 15)*16 + (l >> 5)*8, T, 256)
    lanefn(a, V10, lambda l: (l >> 4)*10240 + (l & 15)*16, T)
    lanefn(a, V11, lambda l: (l >> 4)*1024 + (l & 15)*16, T, 256)
    lanefn(a, V12, tile_pat, T)
    a(f's_and_b32 {SDT}, {SH}, 15'); a(f's_lshl_b32 s67, {SWV}, 4'); a(f's_add_u32 {SDT}, {SDT}, s67')
    a(f's_lshl_b32 s81, {SX}, 11'); a(f's_bfe_u32 s67, {SDT}, 0x20002'); a(f's_mul_i32 s67, s67, {40*128}'); a('s_add_u32 s81, s81, s67'); a(f's_add_u32 s81, s81, {PRGY_OFF}')
    a(f's_mul_i32 s44, {SH}, 10240'); a(f's_add_u32 s44, s44, {VOMR_OFF}'); a('s_add_u32 s45, s44, 4096'); a('s_add_u32 s46, s44, 8192')
    a(f's_mul_i32 s72, {SX}, {16*10240}'); a(f's_lshl_b32 s68, {SDT}, 8'); a('s_add_u32 s72, s72, s68'); a(f's_add_u32 s72, s72, {VOMR_OFF}')
    a('s_add_u32 s73, s72, 40960'); a('s_add_u32 s74, s73, 40960'); a('s_add_u32 s75, s74, 40960')
    a(f's_mul_i32 s49, {SX}, 12288'); a(f's_add_u32 s49, s49, {PA_OFF}'); a(f's_add_u32 s76, s49, {SCHK}')
    a(f's_mul_i32 s47, {SDT}, 40960'); a(f's_lshl_b32 s67, {SX}, 14'); a('s_add_u32 s47, s47, s67'); a(f's_add_u32 s47, s47, {VOF_OFF}')

def vom_store1(src, k, base, sc):
    if k < 2: return f'buffer_store_dwordx4 v[{src}:{src+3}], v{V11}, {S_WS}, {base[k]} offen {sc}'
    return f'buffer_store_dwordx2 v[{src}:{src+1}], v{V9}, {S_WS}, {base[2]} offen {sc}'
def memp_off(a, dst, add, dt=SDT):
    a(f's_add_u32 s67, {SSTEP}, {add}'); a('s_and_b32 s67, s67, 3'); a('s_lshl_b32 s67, s67, 1'); a(f's_lshl_b32 s{dst+1}, s67, 15'); a(f's_add_u32 s67, s67, {SX}')
    a(f's_mul_i32 s{dst}, s67, 10240'); a(f's_lshl_b32 s67, {dt}, 8')
    a(f's_add_u32 s{dst}, s{dst}, s67'); a(f's_add_u32 s{dst+1}, s{dst+1}, s67'); a(f's_add_u32 s{dst}, s{dst}, {MEML_OFF}')
    a(f's_add_u32 s{dst+1}, s{dst+1}, {SMR}'); a(f's_cmp_ge_u32 {dt}, 24'); a('s_cselect_b32 s67, 26624, 0'); a(f's_add_u32 s{dst+1}, s{dst+1}, s67')

def vo_init_clear(a):
    for r in range(4): a(f'v_mov_b32 v{VA+16+r}, -1')
    for k in range(3): a(vom_store1(VA + 16, k, ('s44', 's45', 's46'), 'sc1'))
    for sl in range(4):
        memp_off(a, 32, sl)
        a(f's_cmp_ge_u32 {SDT}, 40'); a(f's_cselect_b32 s32, {OOB}, s32'); a(f's_cselect_b32 s33, {OOB}, s33')
        a(f'buffer_store_dword v{VA+16}, v{V12}, {S_WS}, s32 offen sc1')
        for p in range(4):
            if p: a('s_add_u32 s33, s33, 8192')
            a(f'buffer_store_dword v{VA+16}, v{V12}, {S_WS}, s33 offen sc1')

VORD = [[0, 1, 2, 3, 4, 5, 6, 7, 9, 8], [3, 4, 5, 0, 1, 2, 6, 7, 9, 8], [6, 7, 2, 0, 1, 5, 3, 4, 9, 8], [8, 9, 0, 1, 3, 2, 4, 6, 5, 7]]
OORD = [0, 1, 2, 3, 4, 5, 6, 7, 8, 9]
OORD0 = [0, 2, 1, 3, 4, 6, 5, 7, 8, 9]
def pairup(acc, tmp):
    return [f'v_mov_b32_dpp v{tmp}, v{acc} quad_perm:[1,0,3,2] row_mask:0xf bank_mask:0xf', f'v_perm_b32 v{acc}, v{tmp}, v{acc}, v{VXS}']

def vo_loop(a, w, duty, sc, opt):
    n = NCH[w]; VO = VORD[w]
    lg = Trk(a, 'lgkmcnt', 15)
    ltop, lent = a.label('Lvo'), a.label('Lvoent')
    VV = VACC1; PK = VACC0
    EXO = LDS_EX - LDS_MEM
    AP = apos(w, VO)
    OA = {t: (VOX + 44 + 4*i if i < 5 else AP[VO[i - 5]]) for i, t in enumerate(OORD)}
    seq = [(kb, t) for kb in VO[:3] for t in range(3)] + [(kb, t) for t in range(3) for kb in VO[3:]]
    first = [(xfrag(kb, t, 0)[0], VACC0 + 4*t, AP[kb], xfrag(kb, t, 0)[1], [f'A{kb}']) for kb, t in seq]
    oseq = [(t, 0) for t in OORD0] + [(t, 1) for t in OORD[:3]]
    for i in range(10): oseq += [(OORD[i], 2)] + ([(OORD[i+3], 1)] if i + 3 < 10 else [])
    if opt.get('oseq', 1):
        oseq = [(0, 0), (2, 0), (1, 0), (3, 0), (4, 0), (6, 0), (0, 1), (2, 1), (1, 1), (3, 1), (5, 0), (7, 0), (0, 2), (1, 2), (2, 2), (3, 2),
                (4, 1), (5, 1), (4, 2), (6, 1), (5, 2), (7, 1), (6, 2), (8, 0), (7, 2), (9, 0), (8, 1), (9, 1), (8, 2), (9, 2)]
    second = [(yfrag(tile, kb)[0], OA[tile], VV + 4*kb, yfrag(tile, kb)[1], [f'V{kb}']) for tile, kb in oseq]
    fin = {t: 30 + oseq.index((t, 2)) for t in OORD}
    items, ldsq, k2 = build_stream(first, second)
    sd = Sides()
    stream_head(sd, w, VO, AP, opt, None)
    sd.put(opt.get('gb1', 3), lambda: stamp(a, opt, 1))
    vox = lambda hh: f'buffer_load_dwordx4 v[{VOX+4*hh}:{VOX+4*hh+3}], v{VL16}, {S_WS}, s83 offen offset:{(hh & 3)*1024} {STREAM[0]}'
    vsp = opt.get('vsp', 3)
    NIN = opt.get('nin', 16)
    NE = opt.get('ne', 0)
    if duty:
        for hh in range(NE, min(NIN, 11)):
            g = opt.get('vs0', 1) + (hh - NE) * vsp
            sd.put(g, vox(hh))
            if hh & 3 == 3: sd.put(g + 1, 's_add_u32 s83, s83, 4096')
    if w == 3:
        sd.put(26, f'buffer_store_dword v{VT1}, v{VT0}, {S_WS}, s48 offen sc1')
        for i in range(6): sd.put(opt.get('cl0', 1) + 4*i, f'buffer_store_dword v{VT2}, v{V12}, {S_WS}, s{52 + i} offen {"sc1" if i & 1 else sc}')
    zer = [f'v_mov_b64 v[{AP[VO[r >> 1]] + 2*(r & 1)}:{AP[VO[r >> 1]] + 2*(r & 1) + 1}], 0' for r in range(10)]
    for r in range(6): sd.valu(3*(r >> 1) + 3 + (r & 1), [zer[r]])
    wr = lambda acc, t: ('lds', f'ds_write_b32 v{VXW}, v{acc} offset:{t*1024}', f'VW{t}')
    vpost = lambda t: post(VACC0 + 4*t, VACC0 + 4*t) + [None] + pairup(VACC0 + 4*t, VACC0 + 4*t + 1) + [wr(VACC0 + 4*t, t)]
    vrd = lambda kb: ('lds', f'ds_read_b128 v[{VV+4*kb}:{VV+4*kb+3}], v{VAR} offset:{EXO + kb*1024}', f'V{kb}')
    for t, g0, per in ((0, 17, 1), (1, 24, 1), (2, 31, 2)):
        g = sd.valu(g0, vpost(t), per) + 2
        sd.put(g, ('wait', f'VW{t}')); sd.put(g, 's_barrier'); sd.lds(g, vrd(t), True)
    sd.valu(27, zer[6:])
    if opt.get('diag'): sd.put(g, lambda: stamp(a, opt, 0)); sd.put(29, lambda: stamp(a, opt, 5)); sd.put(42, lambda: stamp(a, opt, 7))
    base = ('s44', 's45', 's46')
    tail = []
    ops = []
    for q in range(3):
        b = PK + 4*q; ts_ = list(range(4*q, min(4*q + 4, 10)))
        for t in ts_:
            p_ = post(OA[t], PK + t, None, t >= 8)
            ops += [(f'a{t}{j}', x_, [], fin[t] + 2) for j, x_ in enumerate(p_[:-1])] + [(f'c{t}', p_[-1], [f'a{t}{j}' for j in range(len(p_) - 1)], 0)]
            if duty and 11 + t < NIN:
                if t == 1: ops.append(('s', 's_add_u32 s83, s83, 4096', ['x0'], 0))
                ops.append((f'x{t}', vox(11 + t), [f'c{t}'] + ([f'x{t-1}'] if t else []) + (['s'] if t == 1 else []), 0))
        ops.append((f'p{q}', f'v_permlane16_swap_b32 v{b}, v{b+1}', [f'c{ts_[0]}', f'c{ts_[1]}'], 0))
        last = [f'p{q}']
        if q < 2:
            ops += [(f'r{q}', f'v_permlane16_swap_b32 v{b+2}, v{b+3}', [f'c{ts_[2]}', f'c{ts_[3]}'], 0),
                    (f'u{q}', f'v_permlane32_swap_b32 v{b}, v{b+2}', [f'p{q}', f'r{q}'], 0), (f'w{q}', f'v_permlane32_swap_b32 v{b+1}, v{b+3}', [f'p{q}', f'r{q}'], 0)]
            last = [f'u{q}', f'w{q}']
        ops += [(f'b{q}', f'v_bfi_b32 v{b}, 1, {SSTEP}, v{b}', last[:1], 0), (f'st{q}', vom_store1(b, q, base, sc), last + [f'b{q}'], 0)]
    at = {}
    g = min(o[3] for o in ops if o[3])
    mem_at = set()
    while len(at) < len(ops):
        for nm, tx, dep, e in ops:
            if nm in at or g < e: continue
            sal = tx.startswith('s_')
            if not all(d in at and (at[d] < g or (at[d] == g and (sal or d == 's'))) for d in dep): continue
            if tx.startswith('v_'):
                if g < len(items) and sd.vbusy.get(g, 0) >= 2: continue
                sd.vbusy[g] = sd.vbusy.get(g, 0) + 1
            elif not sal:
                if g < len(items) and g in mem_at: continue
                mem_at.add(g)
            at[nm] = g; sd.put(g, tx)
        g += 1
    ex = []
    for g in sorted(g for g in sd.side if g >= len(items)): ex += sd.side.pop(g)
    tail = ex + tail
    sd.refills(ldsq)

    def top():
        preload_b(a, lg, ldsq)
        a(f's_bitcmp1_b32 {SSTEP}, 0'); a('s_cselect_b32 s50, 0x80008000, 0')
        if w == 3:
            cprog_late(a, 's48', VT0, VT1)
            a(f'v_mov_b32 v{VT2}, -1'); a(f's_and_b32 s35, {SH}, 15')
            for i in range(3):
                memp_off(a, 52 + 2*i, 2, 's35')
                if i < 2: a('s_add_u32 s35, s35, 16')
            a('s_cmp_ge_u32 s35, 40'); a(f's_cselect_b32 s56, {OOB}, s56'); a(f's_cselect_b32 s57, {OOB}, s57')
        if duty:
            memp_off(a, 77, 1)
            if opt.get('nopf'): a('s_mov_b32 s82, 0')
            else: a(f's_mov_b32 s82, {SSTEP}')
            a(f's_mul_i32 s83, s82, {40*40960}'); a('s_add_u32 s83, s83, s47'); a(f's_cmp_eq_u32 {SSTEP}, 63'); a(f's_cselect_b32 s83, {OOB}, s83')
        for r in range(0, 12, 2): a(f'v_mov_b64 v[{VACC0+r}:{VACC0+r+1}], 0')
        for r in range(0, 20, 2): a(f'v_mov_b64 v[{VOX+44+r}:{VOX+45+r}], 0')
        if duty:
            lk = a.label('Lk')
            a(f's_cmp_ge_u32 {SSTEP}, {64 if opt.get("notouch") else opt.get("self", SELF)}'); a(f's_cbranch_scc1 {lk}')
            check_flags(a, opt, 'Y16')
            a(f'{lk}:')
            for hh in range(NE):
                a(vox(hh))
                if hh & 3 == 3: a('s_add_u32 s83, s83, 4096')
    a(f's_mov_b32 {SSTEP}, 0'); a('s_mov_b32 s36, 0x03030303'); a('s_mov_b32 s37, s36')
    top()
    for kb in OWN[w]: a(a_read(kb, AP[kb])[1])
    a('s_waitcnt lgkmcnt(0)')
    a(f's_branch {lent}')
    a(f'{ltop}:')
    lg.reset()
    a('s_barrier')
    top()
    if opt.get('vsleep', 1): a(f's_sleep {opt.get("vsleep", 1)}')
    a('s_waitcnt lgkmcnt(0)')
    if opt.get('mg', 1): ool = gather_m(a, n, VACC1, VOX, VA + 36, {} if opt.get('diagv') else opt, (0, 5, 7), None, 1, 0, opt.get('spec', 0), opt.get('rbv', 0), opt.get('lrv', 1))
    else: ool = gather(a, n, VACC1, {k: v for k, v in opt.items() if k != 'stamps'} if opt.get('diag') else opt, (0, 0 if opt.get('diag2') else 5, 7), opt.get('vrs', 0), VA + 24 if opt.get('vj', 1) else None)
    a(f'{lent}:')
    lg.reset(); lg.issue('GW')
    merge(a, lg, items, sd.side)
    for s_ in tail:
        a(s_)
    stamp(a, opt, 3)
    lcp, lcb, lcf, lce = [a.label('Lc') for _ in range(4)]
    a(f's_cmp_eq_u32 {SSTEP}, 63'); a(f's_cbranch_scc1 {lcp}')
    def copy_check(): a(f's_cmp_ge_u32 {SSTEP}, {4*NMB}'); a(f's_cbranch_scc1 {lcp}'); a(f'{lcb}:')
    def ool5():
        a(f'{lcp}:')
        a(f's_lshl_b32 s52, {SSTEP}, 5'); a(f's_add_u32 s52, s52, {SH}'); a('s_mul_i32 s52, s52, 10240'); a(f's_add_u32 s52, s52, {VOM_OFF}')
        a('s_add_u32 s53, s52, 4096'); a('s_add_u32 s54, s52, 8192')
        for k in range(3): a(vom_store1(PK + 4*k, k, ('s52', 's53', 's54'), 'sc1'))
        a(f's_cmp_lt_u32 {SSTEP}, 63'); a(f's_cbranch_scc1 {lcb}')
        a('s_waitcnt vmcnt(0)'); a('s_barrier')
        if w == 3: cprog(a)
        a('s_waitcnt vmcnt(0)'); a('s_endpgm')
    ACC = VB + 28
    R = VB + 16
    def ldp():
        for c in range(n): a(f'buffer_load_dwordx4 v[{R+4*c}:{R+4*c+3}], v{VL16}, {S_WS}, s76 offen offset:{c*1024} sc1')
    lt, ltd, lp, ld = [a.label('Lp') for _ in range(4)]
    PT = VA
    def pwrite(c): a(f'ds_write_b128 v{VGW}, v[{R+4*c}:{R+4*c+3}] offset:{c*1024}')
    def pcheck_m(first):
        for c in range(n):
            b = R + 4*c
            if first: a(f's_waitcnt vmcnt({n - 1 - c})'); pwrite(c)
            a(f'v_bitop3_b32 v{PT+c}, v{b}, v{b+2}, s50 bitop3:0x7e')
            if w == 3 or not first: a(f'v_bitop3_b32 v{PT+3}, v{b+1}, v{b+3}, s50 bitop3:0x7e'); a(f'v_or_b32 v{PT+c}, v{PT+c}, v{PT+3}')
            a(f'v_cmp_gt_i32 {ML[c]}, 0, v{PT+c}')
        mask_or(a, ML[:n])
    MV = MR + ['s[30:31]']
    def ldv(ms=None):
        for q in range(4):
            if ms: a(f's_mov_b64 exec, {ms[q]}')
            a(f'buffer_load_dwordx4 v[{VB+4*q}:{VB+4*q+3}], v{V10}, {S_WS}, s{72+q} offen sc1')
        if ms: a('s_mov_b64 exec, -1')
    def vcheck():
        for q in range(4):
            if w < 2: a(f'v_bitop3_b32 v{PT+4+q}, v{VB+4*q}, {SSTEP}, 1 bitop3:0x28')
            else: a(f'v_bitop3_b32 v{PT+4+q}, v{VB+4*q}, v{VB+4*q+2}, {SSTEP} bitop3:0x7e'); a(f'v_and_b32 v{PT+4+q}, 1, v{PT+4+q}')
        for q in range(4): a(f'v_cmp_ne_u32 {MV[q]}, 0, v{PT+4+q}')
        mask_or(a, MV)
    if duty:
        for hh in range(NIN, 16):
            a(vox(hh))
            if hh & 3 == 3 and hh < 15: a('s_add_u32 s83, s83, 4096')
    if opt.get('diagv'): a('s_waitcnt vmcnt(0)'); stamp(a, opt, 5)
    gather_setup(a, 1)
    ts = opt.get('tsleep', 4) if duty else opt.get('nsleep', 9)
    if isinstance(ts, list): ts = ts[w]
    if ts: a(f's_sleep {ts}')
    SEP = opt.get('sep', 1)
    if duty and SEP:
        lv2 = a.label('Lp')
        if opt.get('diagv'): stamp(a, opt, 0)
        ldv()
        for r in range(4): a(f'v_mov_b32 v{ACC+r}, 0')
        a('s_waitcnt vmcnt(0)')
        if opt.get('diagv'): stamp(a, opt, 7)
        vcheck()
        a(f's_cbranch_scc1 {lv2}')
        stamp(a, opt, 2)
        if opt.get('psl', 1): a(f's_sleep {opt.get("psl", 1)}')
        ldp()
        a(f'{lv2}x:')
    elif duty:
        ldv()
        if opt.get('pat'): a(f's_sleep {opt["pat"] - ts - 1}')
        ldp()
        for r in range(4): a(f'v_mov_b32 v{ACC+r}, 0')
        a(f's_waitcnt vmcnt({n})'); vcheck()
        if not opt.get('novc'): a(f's_cbranch_scc1 {lt}')
        stamp(a, opt, 2)
    else: ldp()
    pcheck_m(True)
    a(f's_cbranch_scc1 {lp}')
    a(f'{ld}:')
    stamp(a, opt, 4)
    def ool2():
        PD = opt.get('pdep', 1) - 1; gap = opt.get('pgap', 2)
        ltb, lpb, lwr = [a.label('Lp') for _ in range(3)]
        if duty and SEP:
            a(f'{lv2}:')
            ldv(MV); ldp()
            a(f's_waitcnt vmcnt({n})'); vcheck()
            a(f's_cbranch_scc1 {lt}')
            stamp(a, opt, 2)
            a(f's_branch {lv2}x')
        if duty:
            a(f'{lt}:')
            a('s_waitcnt vmcnt(0)'); pcheck_m(False)
            for _ in range(PD): ldv(MV); ld_masked(a, n, R, 's76', ML); a(f's_sleep {gap}')
            a(f'{ltb}:')
            ldv(MV); ld_masked(a, n, R, 's76', ML)
            a(f's_waitcnt vmcnt({(4 + n)*PD})'); pcheck_m(False); a('s_cselect_b32 s51, 1, 0'); vcheck()
            a(f's_cbranch_scc0 {ltd}')
            budget_loop(a, ltb, ltd)
            a(f'{ltd}:')
            stamp(a, opt, 2)
            a('s_cmp_eq_u32 s51, 0'); a(f's_cbranch_scc1 {lwr}')
            if PD: a(f's_branch {lpb}')
        a(f'{lp}:')
        for _ in range(PD): ld_masked(a, n, R, 's76', ML); a(f's_sleep {gap}')
        a(f'{lpb}:')
        if opt.get('pback'): a(f's_sleep {opt["pback"]}')
        ld_masked(a, n, R, 's76', ML); a(f's_waitcnt vmcnt({n*PD})'); pcheck_m(False)
        a(f's_cbranch_scc0 {lwr}')
        budget_loop(a, lpb, lwr)
        a(f'{lwr}:')
        for c in range(n): pwrite(c)
        a(f's_branch {ld}')
    if not duty: a('s_waitcnt lgkmcnt(0)'); a('s_barrier'); a('s_waitcnt vmcnt(0)'); copy_check()
    if duty:
        bop = lambda pp: f'v[{VOX+8*pp}:{VOX+8*pp+7}]' if pp < 8 else f'v[{VB+8*(pp-8)}:{VB+8*(pp-8)+7}]'
        rest = [c for c in range(10) if c not in OWN[w]]
        a(smf(ACC, R, bop(OWN[w][0])))
        a('s_waitcnt lgkmcnt(0)'); a('s_barrier')
        for c in rest[:3]: a(f'ds_read_b128 v[{VA+4*c}:{VA+4*c+3}], v{VAR} offset:{c*1024}')
        k = 3
        for j in range(1, n):
            a(smf(ACC, R + 4*j, bop(OWN[w][j])))
            for c in rest[k:k+2]: a(f'ds_read_b128 v[{VA+4*c}:{VA+4*c+3}], v{VAR} offset:{c*1024}')
            k += 2
        for c in rest[k:]: a(f'ds_read_b128 v[{VA+4*c}:{VA+4*c+3}], v{VAR} offset:{c*1024}')
        for j, pp in enumerate(rest):
            if j == 0: a('s_waitcnt vmcnt(0)'); copy_check()
            a(f's_waitcnt lgkmcnt({len(rest)-1-j})')
            a(smf(ACC, VA + 4*pp, bop(pp)))
        for s_ in post(ACC, ACC, None, True): a(s_)
        a(f'v_xor_b32 v{ACC}, s50, v{ACC}')
        for s_ in pairup(ACC, ACC + 1): a(s_)
        order = [('s78', 'sc1'), ('s77', sc)] if opt.get('rfirst') else [('s77', sc), ('s78', 'sc1')]
        if opt.get('wide', 0):
            if opt['wide'] == 2: a(f'buffer_store_dword v{ACC}, v{V12}, {S_WS}, s77 offen {sc}'); order = [('s78', 'sc1')]
            for j in (1, 2, 3): a(f'v_mov_b32_dpp v{ACC+j}, v{ACC} row_shl:{2*j} row_mask:0xf bank_mask:0xf')
            a('s_mov_b64 exec, s[36:37]')
            for so, fl in order: a(f'buffer_store_dwordx4 v[{ACC}:{ACC+3}], v{V12}, {S_WS}, {so} offen {fl}')
            a('s_mov_b64 exec, -1')
        else:
            for so, fl in order: a(f'buffer_store_dword v{ACC}, v{V12}, {S_WS}, {so} offen {fl}')
        stamp(a, opt, 6)
        if opt.get('diagp'): a('s_waitcnt vmcnt(1)'); stamp(a, opt, 2); a('s_waitcnt vmcnt(0)'); stamp(a, opt, 3)
    stamp_flush(a, opt, 8)
    a(f's_add_u32 {SSTEP}, {SSTEP}, 1'); a(f's_branch {ltop}')
    ool(); ool2(); ool5()

def chain_main(a, opt):
    lvo = a.label('Lrole_vo')
    tstamp(a, opt, 0, (14, 15))
    STREAM[0] = opt.get('stream', 'sc1')
    a(f's_lshr_b32 {SX}, {SSLOT}, 5'); a(f's_and_b32 s67, {SSLOT}, 15'); a(f's_lshl_b32 {SH}, {SX}, 4'); a(f's_add_u32 {SH}, {SH}, s67')
    a(f's_mov_b32 {STMO}, {opt.get("tmo", 1 << 21)}'); a(f's_mov_b32 {SSTEP}, 0')
    srd(a, S_AUX, 's[38:39]', 8*640*2)
    a(f's_add_u32 {SMR}, s60, {MEMR_OFF + 0x7ffff}'); a(f's_and_b32 {SMR}, {SMR}, 0xfff80000'); a(f's_sub_u32 {SMR}, {SMR}, s60')
    a(f's_mul_i32 s58, {SWV}, 3072'); a(f's_lshl_b32 s67, {SWV}, 11'); a('s_add_u32 s67, s67, 28672'); a(f's_cmp_ge_u32 {SWV}, 2'); a('s_cselect_b32 s58, s67, s58')
    a(f's_mov_b32 {S_ONE0}, 0x00003f80'); a(f's_mov_b32 {S_ONE1}, 0x3f800000')
    a(f's_bitcmp1_b32 {SSLOT}, 4'); a(f's_cbranch_scc1 {lvo}')
    for role in ('qk', 'vo'):
        if role == 'vo': a(f'{lvo}:')
        if role == 'qk':
            srd(a, S_WA, 's[40:41]', 640*6144*2); srd(a, S_WB, 's[42:43]', 640*6144*2); qk_setup(a, opt)
        else:
            srd(a, S_WA, 's[44:45]', 640*6144*2); srd(a, S_WB, 's[46:47]', 640*6144*2); vo_setup(a, opt)
        l1, l2, l3 = a.label('Ls'), a.label('Ls'), a.label('Ls')
        a(f's_mov_b32 {SPC}, 0')
        a(f's_cmp_lg_u32 {SWV}, 0'); a(f's_cbranch_scc1 {l2}')
        mem0_load(a)
        a(f'{l2}:')
        def after_first(n, vm):
            if n == 0:
                a(f's_cmp_lg_u32 {SWV}, 0'); a(f's_cbranch_scc1 {l3}')
                mem0_write(a)
                a(f'{l3}:')
            if n == 1: rot_load(a, 172, 173); vm.issue('rot')
            if n == 13:
                rot_check(a, 172, 173, True)
                if role == 'vo':
                    vo_init_clear(a)
                    for _ in range(23): vm.issue('init')
                a(f's_cmp_lg_u32 {SWV}, 0'); a(f's_cbranch_scc1 {l1}')
                if role == 'qk': qk_init_clear(a)
                a(f's_lshl_b32 s67, 1, {SXCC}'); a(f'v_mov_b32 v{VT0}, s67'); a(f's_lshl_b32 s67, {SX}, 2'); a(f'v_mov_b32 v{VT1}, s67')
                a('s_mov_b64 exec, 1')
                a(f'buffer_atomic_or v{VT0}, v{VT1}, {S_DBG}, 0 offen sc1')
                a('s_mov_b64 exec, -1')
                a(f'{l1}:')
            assert opt.get('ldep', 6) == 6
            if n == 31: a(f'v_lshlrev_b32 v173, 2, v0'); a(f'buffer_load_dword v172, v173, {S_DBG}, 0 offen sc1'); vm.issue('rdy')
            if n == 38:
                a('v_and_b32 v175, 15, v0')
                if role == 'qk': a('v_min_u32 v175, 2, v175'); a(f's_mul_i32 s81, {SH}, 384'); a(f's_add_u32 s81, s81, {PRGX_OFF + 96*128}')
                a('v_lshlrev_b32 v175, 7, v175')
                a(f'buffer_load_dword v174, v175, {S_WS}, s81 offen sc1'); vm.issue('rdy')
            if n == 14 + opt.get('ldep', 6):
                l4 = a.label('Ls')
                a(f's_cmp_lg_u32 {SWV}, 0'); a(f's_cbranch_scc1 {l4}')
                a(f'v_mov_b32 v{VT0}, 1'); a(f'v_mov_b32 v{VT1}, {DBG_READY*4}')
                a('s_mov_b64 exec, 1')
                a(f'buffer_atomic_add v{VT0}, v{VT1}, {S_DBG}, 0 offen sc1')
                a('s_mov_b64 exec, -1')
                a(f'{l4}:')
        loader(a, role, after_first, opt.get('ldep', 6))
        tstamp(a, opt, 1, (14, 15))
        lp, ld, lslow = a.label('Lr'), a.label('Lrd'), a.label('Lslow')
        lc = a.label('Lrc')
        a('s_waitcnt vmcnt(0)')
        for r in (8, 4, 2, 1): a(f'v_min_u32_dpp v174, v174, v174 row_ror:{r} row_mask:0xf bank_mask:0xf')
        a(f'v_readfirstlane_b32 {SPC}, v174')
        a(f'v_lshlrev_b32 v{VT1}, 2, v0'); a(f'v_mov_b32 v{VT0}, v172')
        a(f's_branch {lc}')
        a(f'{lp}:')
        a(f's_mov_b32 {SPC}, 0')
        a(f'buffer_load_dword v{VT0}, v{VT1}, {S_DBG}, 0 offen sc1'); a('s_waitcnt vmcnt(0)')
        a(f'{lc}:')
        a(f'v_readlane_b32 s67, v{VT0}, {DBG_READY}')
        a(f'v_readlane_b32 s68, v{VT0}, {DBG_VOTE}'); a(f's_cmp_lt_u32 s68, {NAREA*256}'); a('s_cselect_b32 s67, 0, s67')
        if not opt.get('noflags'):
            a(f'v_readlane_b32 s68, v{VT0}, {DBG_AREA}'); a(f's_cmp_lt_u32 s68, {NAREA}'); a('s_cselect_b32 s67, 0, s67')
        a(f's_cmp_eq_u32 {STMO}, 0'); a(f's_cbranch_scc1 {ld}')
        a(f's_sub_u32 {STMO}, {STMO}, 1')
        a('s_cmp_lt_u32 s67, 64'); a(f's_cbranch_scc1 {lp}')
        a(f'{ld}:')
        a(f'v_readlane_b32 s69, v{VT0}, {DBG_VOTE}'); a('s_and_b32 s67, s69, 15'); a(f's_cmp_gt_u32 s67, {NAREA//2}'); a('s_cselect_b32 s67, 1, 0')
        a(f'v_readlane_b32 s68, v{VT0}, 0'); a('s_cmp_gt_u32 s68, 15'); a('s_cselect_b32 s68, 1, 0'); a('s_xor_b32 s67, s67, s68'); a('s_lshl_b32 s67, s67, 13')
        if 'par' in opt: a(f's_mov_b32 s67, {opt["par"]*8192}')
        a(f's_add_u32 {SMR}, {SMR}, s67')
        a('s_bfe_u32 s69, s69, 0x40004'); a(f's_cmp_gt_u32 s69, {NAREA//2}'); a('s_cselect_b32 s69, 1, 0')
        a(f'v_readlane_b32 s68, v{VT0}, 1'); a('s_and_b32 s68, s68, 0xaa'); a('s_cselect_b32 s68, 1, 0'); a('s_xor_b32 s69, s69, s68')
        if opt.get('inv14'): a('s_xor_b32 s69, s69, 1')
        a(f's_xor_b32 s69, s69, {SX}'); a('s_lshl_b32 s69, s69, 14')
        a(f's_add_u32 s58, s58, {SMR}'); a(f's_add_u32 {SMR}, {SMR}, s69'); a('s_xor_b32 s69, s69, 16384'); a('s_add_u32 s58, s58, s69')
        a(f'v_readlane_b32 s67, v{VT0}, 0'); a(f'v_readlane_b32 s68, v{VT0}, 1')
        a('s_bcnt1_i32_b32 s67, s67'); a('s_bcnt1_i32_b32 s68, s68'); a('s_max_u32 s67, s67, s68')
        if opt.get('force_slow'): a('s_mov_b32 s67, 2')
        a('s_cmp_lg_u32 s67, 1'); a(f's_cbranch_scc1 {lslow}')
        for sc in ('', 'sc1'):
            if sc: a(f'{lslow}:')
            if role == 'qk':
                labs = [a.label('Lw') for _ in range(4)]
                for w in range(1, 4): a(f's_cmp_eq_u32 {SWV}, {w}'); a(f's_cbranch_scc1 {labs[w]}')
                for w in range(4):
                    a(f'{labs[w]}:'); qk_loop(a, w, sc, opt)
            else:
                labs = [a.label('Lw') for _ in range(5)]
                a(f's_cmp_eq_u32 {SWV}, 1'); a(f's_cbranch_scc1 {labs[1]}'); a(f's_cmp_eq_u32 {SWV}, 3'); a(f's_cbranch_scc1 {labs[4]}')
                a(f's_cmp_ge_u32 {SDT}, 40'); a(f's_cbranch_scc1 {labs[3]}'); a(f's_cmp_eq_u32 {SWV}, 2'); a(f's_cbranch_scc1 {labs[2]}')
                for i, (w, duty) in enumerate([(0, True), (1, True), (2, True), (2, False), (3, False)]):
                    a(f'{labs[i]}:'); vo_loop(a, w, duty, sc, opt)
```
